```python
import torch

def _softmax(x, axis=-1):
    return torch.softmax(x, dim=axis)
def _gelu(x):
    return torch.nn.functional.gelu(x, approximate="tanh")
def _silu(x):
    return torch.nn.functional.silu(x)
def _sigmoid(x):
    return torch.sigmoid(x)
def _layernorm(x, axis=-1, eps=1e-5):
    m = x.mean(dim=axis, keepdim=True)
    v = x.var(dim=axis, keepdim=True, unbiased=False)
    return (x - m) / torch.sqrt(v + eps)
def _scatter_add(tgt, idx, src, axis=0):
    return tgt.clone().index_add_(axis, idx, src)
def _segment_sum(src, seg, n):
    out = torch.zeros((n,) + src.shape[1:], dtype=src.dtype)
    return out.index_add_(0, seg, src)
def _pad(x, pw):
    flat = tuple(v for pair in reversed(pw) for v in pair)
    return torch.nn.functional.pad(x, flat)

kernel_name = 'concat_heads__softmax_full_mha__softmax_full_mha__prompt'

def setup_inputs():

    _w = (lambda a: (lambda t: t.to(torch.bfloat16) if t.is_floating_point() else t)(torch.as_tensor(a)))
    def _A_setup():
        B, S, D = 1, 2048, 448
        return {
            "x": _w((lambda *s: torch.randn(*s, dtype=torch.bfloat16) * 0.2)(B, S, D)),
            "wqkv": _w((lambda *s: torch.randn(*s, dtype=torch.bfloat16) * 0.2)(D, 3 * D)),
            "wo": _w((lambda *s: torch.randn(*s, dtype=torch.bfloat16) * 0.05)(D, D)),
        }
    _A_in = _A_setup()

    def _B_setup():
        B, S, D = 1, 2048, 448
        return {
            "x": _w((lambda *s: torch.randn(*s, dtype=torch.bfloat16) * 0.2)(B, S, D)),
            "wqkv": _w((lambda *s: torch.randn(*s, dtype=torch.bfloat16) * 0.2)(D, 3 * D)),
            "wo": _w((lambda *s: torch.randn(*s, dtype=torch.bfloat16) * 0.05)(D, D)),
        }
    _B_in = _B_setup()

    return {
        "A_x": _A_in["x"],
        "A_wqkv": _A_in["wqkv"],
        "A_wo": _A_in["wo"],
        "B_x": _B_in["x"],
        "B_wqkv": _B_in["wqkv"],
        "B_wo": _B_in["wo"],
    }

def reference(A_x, A_wqkv, A_wo, B_x, B_wqkv, B_wo):
    def _A_ref(x, wqkv, wo):
        B, S, D = x.shape
        H = 16; Dh = D // H
        qkv = (lambda x, *d: x.permute(*d))((x @ wqkv).reshape(B, S, 3, H, Dh), 2, 0, 3, 1, 4)
        q, k, v = qkv[0], qkv[1], qkv[2]
        scale = Dh ** -0.5
        scores = torch.einsum("bhqd,bhkd->bhqk", q, k) * scale
        p = _softmax(scores, axis=-1)
        o = torch.einsum("bhqk,bhkd->bhqd", p, v)
        return (lambda x, *d: x.permute(*d))(o, 0, 2, 1, 3).reshape(B, S, D) @ wo

    def _B_ref(x, wqkv, wo):
        B, S, D = x.shape
        H = 16; Dh = D // H
        qkv = (lambda x, *d: x.permute(*d))((x @ wqkv).reshape(B, S, 3, H, Dh), 2, 0, 3, 1, 4)
        q, k, v = qkv[0], qkv[1], qkv[2]
        scale = Dh ** -0.5
        scores = torch.einsum("bhqd,bhkd->bhqk", q, k) * scale
        p = _softmax(scores, axis=-1)
        o = torch.einsum("bhqk,bhkd->bhqd", p, v)
        return (lambda x, *d: x.permute(*d))(o, 0, 2, 1, 3).reshape(B, S, D) @ wo

    a = _A_ref(A_x, A_wqkv, A_wo)
    b = _B_ref(B_x, B_wqkv, B_wo)
    return torch.concatenate([a, b], axis=-1)
```

```python
import re

TRANS = ("v_exp_", "v_log_", "v_rcp_", "v_rsq_", "v_sqrt_", "v_sin_", "v_cos_")


def v(a, n=1):
    return f"v{a}" if n == 1 else f"v[{a}:{a+n-1}]"


def s(a, n=1):
    return f"s{a}" if n == 1 else f"s[{a}:{a+n-1}]"


_REG = re.compile(r"^(-|abs\()?(v|s|a)(\d+|\[(\d+):(\d+)\])\)?$")


def regs_of(op):
    op = op.strip()
    if op in ("vcc",):
        return {("s", "vcc_lo"), ("s", "vcc_hi")}
    if op in ("vcc_lo", "vcc_hi"):
        return {("s", op)}
    if op == "exec":
        return {("s", "exec_lo"), ("s", "exec_hi")}
    if op in ("exec_lo", "exec_hi"):
        return {("s", op)}
    if op == "m0":
        return {("s", "m0")}
    m = _REG.match(op)
    if not m:
        return set()
    k = m.group(2)
    if m.group(4) is not None:
        return {(k, i) for i in range(int(m.group(4)), int(m.group(5)) + 1)}
    return {(k, int(m.group(3)))}


class Ins:
    def __init__(self, text):
        self.text = text
        t = text.split(";")[0].strip()
        self.label = None
        self.mn = None
        self.directive = False
        if t.endswith(":"):
            self.label = t[:-1]
            return
        if t.startswith(".") or not t:
            self.directive = True
            return
        parts = t.split(None, 1)
        self.mn = mn = parts[0]
        rest = parts[1] if len(parts) > 1 else ""
        ops = [o.strip() for o in rest.split(",")] if rest else []
        mods = ""
        if ops:
            last = ops[-1].split()
            if len(last) > 1:
                ops[-1] = last[0]
                mods = " ".join(last[1:])
        if "op_sel" in rest:
            pre = rest.split("op_sel")[0]
            ops = [o.strip() for o in pre.split(",")]
            mods = rest[len(pre):]
        self.ops, self.mods = ops, mods
        self.is_mfma = mn.startswith("v_mfma") or mn.startswith("v_smfmac")
        self.is_smf = mn.startswith("v_smfmac")
        self.is_valu = mn.startswith("v_") and not self.is_mfma
        self.is_trans = mn.startswith(TRANS)
        self.is_vmem = mn.startswith("buffer_") or mn.startswith("global_")
        self.is_ds = mn.startswith("ds_")
        self.is_salu = mn.startswith("s_")
        self.is_dpp = "_dpp" in mn or "row_" in mods or "quad_perm" in mods
        self.is_perml = mn.startswith("v_permlane")
        self.is_rdlane = mn.startswith("v_readlane") or mn.startswith("v_readfirstlane")
        self.is_branch = mn.startswith("s_cbranch") or mn == "s_branch"
        self.passes = 0
        W, R = set(), set()
        self.srcC = set()
        self.srcAB = set()
        self.store_data = set()
        self.ws = 1
        if mn == "s_nop":
            self.ws = int(ops[0], 0) + 1
        if self.is_mfma:
            self.passes = 8 if "32x32" in mn else 4
            W = regs_of(ops[0])
            self.srcAB = regs_of(ops[1]) | regs_of(ops[2])
            if self.is_smf:
                self.srcAB |= regs_of(ops[3])
                self.srcC = set(W)
            else:
                self.srcC = regs_of(ops[3])
            R = self.srcAB | self.srcC
        elif self.is_valu:
            if mn.startswith("v_cmp"):
                W = regs_of(ops[0])
                for o in ops[1:]:
                    R |= regs_of(o)
            elif self.is_perml:
                W = regs_of(ops[0]) | regs_of(ops[1])
                R = set(W)
            else:
                W = regs_of(ops[0])
                st = 1
                if "_co_" in mn:
                    W |= regs_of(ops[1])
                    st = 2
                for o in ops[st:]:
                    R |= regs_of(o)
                if mn.startswith(("v_fmac", "v_writelane")) or self.is_dpp:
                    R |= regs_of(ops[0])
        elif self.is_vmem:
            lds = "lds" in mods.split()
            if mn.startswith("buffer_inv") or mn.startswith("buffer_wbl2"):
                pass
            elif mn.startswith("buffer_load"):
                if lds:
                    for o in ops:
                        R |= regs_of(o)
                    R |= {("s", "m0")}
                else:
                    W = regs_of(ops[0])
                    for o in ops[1:]:
                        R |= regs_of(o)
            elif mn.startswith("buffer_store") or mn.startswith("buffer_atomic"):
                for o in ops:
                    R |= regs_of(o)
                if "x4" in mn or "x3" in mn:
                    self.store_data = regs_of(ops[0])
                if mn.startswith("buffer_atomic") and "sc0" in mods:
                    W = regs_of(ops[0])
            elif mn.startswith("global_load"):
                W = regs_of(ops[0])
                for o in ops[1:]:
                    R |= regs_of(o)
            elif mn.startswith("global_store"):
                for o in ops:
                    R |= regs_of(o)
                if "x4" in mn or "x3" in mn:
                    self.store_data = regs_of(ops[1])
            self.is_ldsdma = lds
        elif self.is_ds:
            if mn.startswith("ds_read") or mn.startswith("ds_bpermute") or mn.startswith("ds_swizzle"):
                W = regs_of(ops[0])
                for o in ops[1:]:
                    R |= regs_of(o)
            else:
                for o in ops:
                    R |= regs_of(o)
        elif self.is_salu:
            nodst = mn.startswith(("s_cmp", "s_cbranch", "s_branch", "s_waitcnt", "s_barrier", "s_nop", "s_sleep",
                                   "s_setprio", "s_endpgm", "s_bitcmp"))
            if not nodst and ops:
                W = regs_of(ops[0])
                for o in ops[1:]:
                    R |= regs_of(o)
                if "saveexec" in mn:
                    W |= regs_of("exec")
            else:
                for o in ops:
                    R |= regs_of(o)
        self.W, self.R = W, R


def need(p, c):
    n = 0
    pv = {r for r in p.W if r[0] in ("v", "a")}
    ps = {r for r in p.W if r[0] == "s"}
    if p.is_valu:
        if c.is_mfma and (pv & c.R):
            n = max(n, 2)
        if p.is_trans and c.is_valu and not c.is_trans and (pv & c.R):
            n = max(n, 1)
        if c.is_valu and c.is_rdlane and (pv & c.R):
            n = max(n, 1)
        if c.is_valu and (c.is_perml or c.is_dpp) and (pv & c.R):
            n = max(n, 2)
        if ps:
            if c.is_valu and (ps & c.R):
                n = max(n, 4 if (c.is_rdlane or c.mn.startswith("v_writelane")) else 2)
            if c.is_vmem and (ps & c.R):
                n = max(n, 5)
            if c.is_salu and (ps & c.R):
                n = max(n, 1)
            if c.is_branch and c.mn.startswith("s_cbranch_vcc") and (("s", "vcc_lo") in ps):
                n = max(n, 5)
    if p.is_mfma:
        k = p.passes
        if c.is_mfma:
            if pv & c.srcAB:
                n = max(n, 12 if k == 8 else 8)
            if pv & c.srcC:
                if not (pv == c.srcC and c.passes == k):
                    n = max(n, 10 if k == 8 else 6)
            elif pv & c.W and c.passes != k:
                n = max(n, 12 if k == 8 else 8)
        elif c.mn and (c.is_valu or c.is_vmem or c.is_ds):
            if pv & (c.R | c.W):
                n = max(n, 12 if k == 8 else 8)
            if c.is_valu and (p.srcC & c.W):
                n = max(n, 7 if k == 8 else 3)
    if p.is_salu and ("s", "m0") in p.W and c.is_vmem and getattr(c, "is_ldsdma", False):
        n = max(n, 1)
    if p.store_data and (p.store_data & c.W):
        n = max(n, 2 if c.is_valu else 1)
    return n


class Asm:
    def __init__(self):
        self.lines = []

    def __call__(self, text):
        for ln in text.split("\n"):
            if ln.strip():
                self.lines.append(ln.strip())

    def label(self, name):
        self.lines.append(name + ":")

    def fix_hazards(self, verbose=True):
        MAXW = 12
        total = 0
        while True:
            ins = [Ins(t) for t in self.lines]
            lab = {x.label: i for i, x in enumerate(ins) if x.label}

            def succ(i):
                x = ins[i]
                out = []
                if x.mn == "s_endpgm":
                    return out
                if x.mn and x.is_branch:
                    out.append(lab[x.ops[0]])
                    if x.mn == "s_branch":
                        return out
                if i + 1 < len(ins):
                    out.append(i + 1)
                return out

            viol = None
            for i, p in enumerate(ins):
                if not p.mn:
                    continue
                if not (p.is_valu or p.is_mfma or p.store_data or (p.is_salu and ("s", "m0") in p.W)):
                    continue
                lim = MAXW if p.is_mfma else 5
                best = {}
                stack = [(j, 0) for j in succ(i)]
                while stack:
                    j, d = stack.pop()
                    if d >= lim:
                        continue
                    if j in best and best[j] <= d:
                        continue
                    best[j] = d
                    c = ins[j]
                    if c.mn:
                        n = need(p, c)
                        if n > d:
                            viol = (i, j, n - d)
                            break
                        nd = d + c.ws
                    else:
                        nd = d
                    for k in succ(j):
                        stack.append((k, nd))
                if viol:
                    break
            if not viol:
                break
            i, j, d = viol
            if verbose:
                print(f"; hazard: [{ins[i].text}] -> [{ins[j].text}] short by {d}: nop inserted at line {j}")
            self.lines.insert(j, f"s_nop {d-1}")
            total += 1
        return total

    def text(self):
        out = []
        for t in self.lines:
            if t.endswith(":") or t.startswith("."):
                out.append(t)
            else:
                out.append("    " + t)
        return "\n".join(out) + "\n"


class Alloc:
    def __init__(self, start, limit):
        self.next = start
        self.limit = limit
        self.hi = start

    def __call__(self, n=1, align=None):
        if align is None:
            align = 1 if n == 1 else (2 if n < 4 else 4)
        a = -(-self.next // align) * align
        self.next = a + n
        self.hi = max(self.hi, self.next)
        assert self.next <= self.limit, f"out of registers: {self.next}"
        return a

    def mark(self):
        return self.next

    def reset(self, m):
        self.next = m
```

```python
import sys, struct, math
from asmlib import Asm, Alloc, v, s

NAME = "concat_heads__softmax_full_mha__softmax_full_mha__prompt"

OPT = dict(ts=0, force_slow=0, rot=1, map=1)
for a in sys.argv[2:]:
    k, val = a.split("=")
    OPT[k] = int(val)

FLAG_OFF = 0
EPOCH_OFF = 0x10000
TS_OFF = 0x20000
KV_OFF = 0x100000
O_OFF = 0x900000
WS_BYTES = 0x1000000

XPOS = [65536, 0, 32768]
WR = 98304
QOFF = 135168
WOB = 66944
MISC = 161024
RED = 32768
OT = 8192
LDS_BYTES = 163840

CSCALE = math.log2(math.e) / math.sqrt(28.0)
THR2 = 30.0 * 30.0


def f2u(x):
    return struct.unpack("<I", struct.pack("<f", x))[0]


A = Asm()
sX, sW, sWS, sWO, sOUT = 28, 32, 36, 40, 44
sw, sb, sh, sj, stag, sE = 48, 49, 50, 51, 52, 53
sC, sXb, sWb, sMX, sMW = 54, 55, 56, 57, 58
sT0, sT1, sT2, sT3 = 60, 61, 62, 63
sLo = 64
sVk = 66
sKV = 68
sKmax, sQmax = 69, 70
sI, sPos, sPosN, sHH = 71, 72, 73, 74
sSpin = 75
sOt = 76
sWoff = 77
sKap = 78
sFl = 79
sTS = 80
sTSo = 84
NSGPR = 96


def ts(idx):
    if not OPT["ts"]:
        return
    A(f"""s_memrealtime s[{sTS}:{sTS+1}]
    s_waitcnt lgkmcnt(0)
    v_writelane_b32 v{vTS}, s{sTS}, {idx}""")


V = Alloc(1, 256)
vLane = V()
vTS = V()
vL16 = V()
vIdx = V()
vT = [V() for _ in range(6)]

A.label(NAME + "_kernel")
A(f"""s_cmp_ge_u32 s2, 256
s_cbranch_scc1 L_end
s_load_dwordx16 s[8:23], s[0:1], 0
s_load_dwordx2 s[24:25], s[0:1], 64
v_lshrrev_b32 v{vT[0]}, 6, v0
v_and_b32 v{vLane}, 63, v0
v_readfirstlane_b32 s{sw}, v{vT[0]}
v_lshlrev_b32 v{vL16}, 4, v{vLane}""")
if OPT["ts"]:
    A(f"v_mov_b32 v{vTS}, 0")
    ts(0)
if OPT["map"] == 1:
    A(f"""s_and_b32 s{sT0}, s2, 7
    s_lshr_b32 s{sT1}, s2, 3
    s_and_b32 s{sj}, s{sT1}, 7
    s_lshr_b32 s{sT1}, s{sT1}, 3
    s_lshl_b32 s{sT0}, s{sT0}, 2
    s_add_u32 s{sHH}, s{sT0}, s{sT1}""")
elif OPT["map"] == 2:
    A(f"""s_and_b32 s{sT0}, s2, 7
    s_lshr_b32 s{sT1}, s2, 3
    s_and_b32 s{sT2}, s{sT0}, 3
    s_lshl_b32 s{sT2}, s{sT2}, 1
    s_lshr_b32 s{sT3}, s{sT1}, 4
    s_add_u32 s{sj}, s{sT2}, s{sT3}
    s_lshr_b32 s{sT0}, s{sT0}, 2
    s_lshl_b32 s{sT0}, s{sT0}, 4
    s_and_b32 s{sT1}, s{sT1}, 15
    s_add_u32 s{sHH}, s{sT0}, s{sT1}""")
elif OPT["map"] == 3:
    A(f"""s_and_b32 s{sT0}, s2, 7
    s_lshr_b32 s{sT1}, s2, 3
    s_and_b32 s{sT2}, s{sT0}, 1
    s_lshl_b32 s{sT2}, s{sT2}, 2
    s_lshr_b32 s{sT3}, s{sT1}, 3
    s_add_u32 s{sj}, s{sT2}, s{sT3}
    s_lshr_b32 s{sT0}, s{sT0}, 1
    s_lshl_b32 s{sT0}, s{sT0}, 3
    s_and_b32 s{sT1}, s{sT1}, 7
    s_add_u32 s{sHH}, s{sT0}, s{sT1}""")
A(f"""s_lshr_b32 s{sb}, s{sHH}, 4
s_and_b32 s{sh}, s{sHH}, 15
s_lshr_b32 s{sKap}, s{sw}, 2""")

m_p1 = V.mark()
vXd = [V() for _ in range(4)]
vWa, vWb = V(), V()
vXa = [V() for _ in range(4)]
vXb = [V() for _ in range(4)]
vWr = V()
t0, t1, t2, t3, t4, t5 = vT
A(f"""v_lshrrev_b32 v{t0}, 3, v{vLane}
v_mul_u32_u24 v{t0}, 896, v{t0}
v_lshrrev_b32 v{t1}, 4, v{vLane}
v_and_b32 v{t2}, 7, v{vLane}
v_xor_b32 v{t1}, v{t1}, v{t2}
v_lshl_add_u32 v{vXd[0]}, v{t1}, 4, v{t0}
v_xor_b32 v{t1}, 4, v{t1}
v_lshl_add_u32 v{t1}, v{t1}, 4, v{t0}
v_add_u32 v{vXd[1]}, {7168-1024}, v{t1}
v_add_u32 v{vXd[2]}, {14336-2048}, v{vXd[0]}
v_add_u32 v{vXd[3]}, {21504-3072}, v{t1}
v_bfe_u32 v{t0}, v{vLane}, 2, 3
v_mul_u32_u24 v{t0}, 2688, v{t0}
v_and_b32 v{t1}, 3, v{vLane}
v_lshl_add_u32 v{t0}, v{t1}, 4, v{t0}
v_lshrrev_b32 v{t2}, 5, v{vLane}
v_mul_u32_u24 v{t3}, 896, v{t2}
v_add_u32 v{vWa}, v{t0}, v{t3}
v_add_u32 v{vWb}, {1792-1024}, v{t0}""")
A(f"""s_lshl_b32 s{sT0}, s{sj}, 3
s_add_u32 s{sT0}, s{sT0}, s{sw}
s_mul_i32 s{sXb}, s{sT0}, {32*896}
s_mul_i32 s{sT1}, s{sh}, 56
s_and_b32 s{sT1}, s{sT1}, 0xfffffff0
s_mul_i32 s{sWb}, s{sw}, {8*2688}
s_add_u32 s{sWb}, s{sWb}, s{sT1}
s_lshl_b32 s{sMX}, s{sw}, 12
s_mul_i32 s{sMW}, s{sw}, 1536
s_add_u32 s{sMW}, s{sMW}, {WR}""")
if OPT["rot"] == 1:
    A(f"""s_add_u32 s{sC}, s{sh}, s{sj}
    s_mul_i32 s{sT1}, s{sC}, 37
    s_lshr_b32 s{sT1}, s{sT1}, 8
    s_mul_i32 s{sT1}, s{sT1}, 7
    s_sub_u32 s{sC}, s{sC}, s{sT1}""")
else:
    A(f"s_mov_b32 s{sC}, 0")
A(f"""s_waitcnt lgkmcnt(0)
s_cmp_eq_u32 s{sb}, 0
s_cselect_b32 s{sX}, s8, s14
s_cselect_b32 s{sX+1}, s9, s15
s_mov_b32 s{sX+2}, {2048*896}
s_mov_b32 s{sX+3}, 0x20000
s_cselect_b32 s{sW}, s10, s16
s_cselect_b32 s{sW+1}, s11, s17
s_mov_b32 s{sW+2}, {448*2688}
s_mov_b32 s{sW+3}, 0x20000
s_cselect_b32 s{sWO}, s12, s18
s_cselect_b32 s{sWO+1}, s13, s19""")


def issue_chunk(slot):
    A(f"""s_lshl_b32 s{sT0}, s{sC}, 7
    s_add_u32 s{sT0}, s{sT0}, s{sXb}
    s_mul_i32 s{sT1}, s{sC}, {64*2688}
    s_add_u32 s{sT1}, s{sT1}, s{sWb}
    s_add_u32 m0, s{sMW}, {slot*12288}
    s_add_u32 s{sC}, s{sC}, 1
    buffer_load_dwordx4 v{vWa}, s[{sW}:{sW+3}], s{sT1} offen lds
    s_mov_b32 exec_hi, 0
    buffer_load_dwordx4 v{vWb}, s[{sW}:{sW+3}], s{sT1} offen offset:1024 lds
    s_mov_b32 exec_hi, -1
    s_add_u32 m0, s{sMX}, {XPOS[slot]}
    s_cmp_eq_u32 s{sC}, 7""")
    for i in range(4):
        A(f"buffer_load_dwordx4 v{vXd[i]}, s[{sX}:{sX+3}], s{sT0} offen offset:{1024*i} lds")
    A(f"s_cselect_b32 s{sC}, 0, s{sC}")


for c in range(3):
    issue_chunk(c)

A(f"""s_mov_b32 s{sWO+2}, {448*896}
s_mov_b32 s{sWO+3}, 0x20000
s_mov_b32 s{sWS}, s24
s_mov_b32 s{sWS+1}, s25
s_mov_b32 s{sWS+2}, {WS_BYTES}
s_mov_b32 s{sWS+3}, 0x20000
s_mov_b32 s{sOUT}, s20
s_mov_b32 s{sOUT+1}, s21
s_mov_b32 s{sOUT+2}, {2048*1792}
s_mov_b32 s{sOUT+3}, 0x20000
s_lshl_b32 s{sT0}, s{sb}, 8
s_add_u32 s{sT0}, s{sT0}, {EPOCH_OFF}
s_load_dword s{sE}, s[24:25], s{sT0}
s_mov_b32 s{sLo}, -1
s_mov_b32 s{sLo+1}, 0
s_mov_b32 s{sVk}, 0x0fffffff
s_mov_b32 s{sVk+1}, 0x0fffffff
s_lshl_b32 s{sKV}, s{sHH}, 18
s_add_u32 s{sKV}, s{sKV}, {KV_OFF}
s_lshl_b32 s{sFl}, s{sHH}, 3
s_add_u32 s{sFl}, s{sFl}, s{sw}
s_lshl_b32 s{sFl}, s{sFl}, 7""")
A(f"""s_and_b32 s{sT0}, s{sw}, 3
s_lshl_b32 s{sT0}, s{sT0}, 1
s_add_u32 s{sT0}, s{sT0}, s{sKap}
s_lshl_b32 s{sT1}, s{sb}, 3
s_add_u32 s{sT1}, s{sT1}, s{sj}
s_lshl_b32 s{sT1}, s{sT1}, 3
s_add_u32 s{sT0}, s{sT0}, s{sT1}
s_lshl_b32 s{sT0}, s{sT0}, 4
s_add_u32 s{sT0}, s{sT0}, s{sh}
s_lshl_b32 s{sOt}, s{sT0}, 11
s_add_u32 s{sOt}, s{sOt}, {O_OFF}
s_and_b32 s{sWoff}, s{sh}, 3
s_mul_i32 s{sWoff}, s{sWoff}, 224""")
A(f"""v_and_b32 v{t0}, 31, v{vLane}
v_bfe_u32 v{t1}, v{vLane}, 1, 3
v_xor_b32 v{t1}, v{t1}, v{t2}
v_lshlrev_b32 v{t0}, 7, v{t0}
v_add_u32 v{t0}, s{sMX}, v{t0}""")
for sst in range(4):
    A(f"""v_xor_b32 v{t3}, {2*sst}, v{t1}
    v_lshl_add_u32 v{vXa[sst]}, v{t3}, 4, v{t0}
    v_add_u32 v{vXb[sst]}, 0x10000, v{vXa[sst]}""")
A(f"""v_mul_u32_u24 v{t0}, 1536, v{t2}
v_bfe_u32 v{t1}, v{vLane}, 2, 2
v_lshl_add_u32 v{t0}, v{t1}, 6, v{t0}
v_bfe_u32 v{t1}, v{vLane}, 4, 1
v_lshl_add_u32 v{t0}, v{t1}, 5, v{t0}
v_and_b32 v{t1}, 3, v{vLane}
v_lshl_add_u32 v{t0}, v{t1}, 3, v{t0}
s_and_b32 s{sT0}, s{sh}, 1
s_lshl_b32 s{sT0}, s{sT0}, 3
s_add_u32 s{sT0}, s{sT0}, {WR}
v_add_u32 v{vWr}, s{sT0}, v{t0}
v_mov_b32 v{vIdx}, 0xdddddddd
v_mov_b32 v{t0}, {MISC+64}
v_mov_b32 v{t1}, {OPT['force_slow']}
ds_write_b32 v{t0}, v{t1}
s_waitcnt lgkmcnt(0)
s_mul_i32 s{stag}, s{sE}, 0x9e3779b1
s_add_u32 s{stag}, s{stag}, 0x7f4a7c15""")

accQ, accK, accV = V(16), V(16), V(16)
Xf = [V(4), V(4)]
Wf = [[V(4) for _ in range(3)] for _ in range(2)]


def p1_reads(c, st):
    slot = c % 3
    b = st & 1
    if XPOS[slot] >= 65536:
        A(f"ds_read_b128 {v(Xf[b],4)}, v{vXb[st]} offset:{XPOS[slot]-65536}")
    else:
        A(f"ds_read_b128 {v(Xf[b],4)}, v{vXa[st]} offset:{XPOS[slot]}")
    for m in range(3):
        for u in range(2):
            A(f"ds_read_b64_tr_b16 {v(Wf[b][m]+2*u,2)}, v{vWr} offset:{slot*12288+st*3072+m*512+u*256}")


def p1_mfma(c, st):
    b = st & 1
    first = (c == 0 and st == 0)
    cq, ck, cv = [("0" if first else v(x, 16)) for x in (accQ, accK, accV)]
    A(f"""v_mfma_f32_32x32x16_bf16 {v(accK,16)}, {v(Wf[b][1],4)}, {v(Xf[b],4)}, {ck}
    v_mfma_f32_32x32x16_bf16 {v(accV,16)}, {v(Xf[b],4)}, {v(Wf[b][2],4)}, {cv}
    v_mfma_f32_32x32x16_bf16 {v(accQ,16)}, {v(Wf[b][0],4)}, {v(Xf[b],4)}, {cq}""")


for c in range(7):
    A(f"s_waitcnt vmcnt({[12,6,6,6,6,6,0][c]})")
    A("s_barrier")
    if c == 0:
        ts(1)
    p1_reads(c, 0)
    p1_reads(c, 1)
    if 1 <= c <= 4:
        issue_chunk((c + 2) % 3)
    A("s_waitcnt lgkmcnt(7)")
    p1_mfma(c, 0)
    p1_reads(c, 2)
    A("s_waitcnt lgkmcnt(7)")
    p1_mfma(c, 1)
    p1_reads(c, 3)
    A("s_waitcnt lgkmcnt(7)")
    p1_mfma(c, 2)
    A("s_waitcnt lgkmcnt(0)")
    p1_mfma(c, 3)
ts(2)

pk = V(8)
pv = V(8)
pq = V(8)
vOnes = V(4)
vKa, vKl, vVl, vPad, nq, nk = V(), V(), V(), V(), V(), V()
A(f"""v_and_b32 v{t0}, 0x33, v{vLane}
v_bfe_u32 v{t1}, v{vLane}, 2, 1
v_lshl_add_u32 v{t0}, v{t1}, 3, v{t0}
v_bfe_u32 v{t1}, v{vLane}, 3, 1
v_lshl_add_u32 v{t0}, v{t1}, 2, v{t0}
v_lshlrev_b32 v{vKa}, 4, v{t0}
s_add_u32 s{sT0}, s{sMX}, 32768
v_add_u32 v{vKl}, s{sT0}, v{vKa}
v_add_u32 v{vVl}, s{sT0}, v{vL16}
v_and_b32 v{t0}, 31, v{vLane}
v_cmp_eq_u32 vcc, 28, v{t0}
v_mov_b32 v{t1}, 0x3f803f80
v_mov_b32 v{vOnes}, -1
v_mov_b32 v{vOnes+1}, -1
v_cndmask_b32 v{vPad}, 0, v{t1}, vcc
v_mov_b32 v{vOnes+2}, -1
v_mov_b32 v{vOnes+3}, -1
s_lshl_b32 s{sT1}, s{sj}, 15
s_add_u32 s{sT1}, s{sT1}, s{sKV}
s_add_u32 s{sT1}, s{sT1}, s{sMX}""")
for r in range(12, 16):
    A(f"v_cndmask_b32 v{accK+r}, 0, v{accK+r}, s[{sLo}:{sLo+1}]")
for r in range(8):
    A(f"v_cvt_pk_bf16_f32 v{pk+r}, v{accK+2*r}, v{accK+2*r+1}")
A(f"""buffer_store_dwordx4 {v(pk,4)}, v{vKa}, s[{sWS}:{sWS+3}], s{sT1} offen sc1
buffer_store_dwordx4 {v(pk+4,4)}, v{vKa}, s[{sWS}:{sWS+3}], s{sT1} offen offset:1024 sc1""")
for r in range(8):
    A(f"v_cvt_pk_bf16_f32 v{pv+r}, v{accV+2*r}, v{accV+2*r+1}")
for r in range(8):
    A(f"v_cndmask_b32 v{pv+r}, v{vPad}, v{pv+r}, s[{sVk}:{sVk+1}]")
A(f"""buffer_store_dwordx4 {v(pv,4)}, v{vL16}, s[{sWS}:{sWS+3}], s{sT1} offen offset:2048 sc1
buffer_store_dwordx4 {v(pv+4,4)}, v{vL16}, s[{sWS}:{sWS+3}], s{sT1} offen offset:3072 sc1
buffer_store_dwordx4 {v(vOnes,4)}, v{vL16}, s[{sWS}:{sWS+3}], s{sOt} offen sc1
buffer_store_dwordx4 {v(vOnes,4)}, v{vL16}, s[{sWS}:{sWS+3}], s{sOt} offen offset:1024 sc1
ds_write_b128 v{vKl}, {v(pk,4)}
ds_write_b128 v{vKl}, {v(pk+4,4)} offset:1024
ds_write_b128 v{vVl}, {v(pv,4)} offset:2048
ds_write_b128 v{vVl}, {v(pv+4,4)} offset:3072
s_mov_b32 s{sT2}, {hex(f2u(CSCALE))}""")
for r in range(16):
    A(f"v_mul_f32 v{accQ+r}, s{sT2}, v{accQ+r}")
for r in range(12, 16):
    A(f"v_cndmask_b32 v{accQ+r}, 0, v{accQ+r}, s[{sLo}:{sLo+1}]")
for r in range(8):
    A(f"v_cvt_pk_bf16_f32 v{pq+r}, v{accQ+2*r}, v{accQ+2*r+1}")
A(f"""s_lshl_b32 s{sT0}, s{sw}, 11
s_add_u32 s{sT0}, s{sT0}, {QOFF}
v_add_u32 v{t0}, s{sT0}, v{vL16}
ds_write_b128 v{t0}, {v(pq,4)}
ds_write_b128 v{t0}, {v(pq+4,4)} offset:1024
v_mul_f32 v{nq}, v{accQ}, v{accQ}
v_mul_f32 v{nk}, v{accK}, v{accK}""")
for r in range(1, 16):
    A(f"v_fmac_f32 v{nq}, v{accQ+r}, v{accQ+r}")
    A(f"v_fmac_f32 v{nk}, v{accK+r}, v{accK+r}")
A(f"""v_permlane32_swap_b32 v{nq}, v{nk}
v_add_f32 v{nq}, v{nq}, v{nk}""")
for sh_ in (1, 2, 4, 8):
    A(f"v_max_u32_dpp v{nq}, v{nq}, v{nq} row_shr:{sh_} row_mask:0xf bank_mask:0xf bound_ctrl:0")
A(f"""v_max_u32_dpp v{nq}, v{nq}, v{nq} row_bcast:15 row_mask:0xa bank_mask:0xf
v_readlane_b32 s{sQmax}, v{nq}, 31
v_readlane_b32 s{sKmax}, v{nq}, 63
s_lshl_b32 s{sT0}, s{sw}, 2
s_add_u32 s{sT0}, s{sT0}, {MISC}
v_mov_b32 v{t0}, s{sT0}
v_mov_b32 v{t1}, s{sQmax}
s_mov_b64 exec, 1
ds_write_b32 v{t0}, v{t1}
s_mov_b64 exec, -1
s_waitcnt lgkmcnt(0)
s_barrier""")
ts(3)

V.reset(m_p1)
Q = [V(8), V(8)]
O = [V(16), V(16)]
S = [V(16) for _ in range(4)]
Kf = [V(8), V(8)]
Vf = [V(8), V(8)]
vCur, vNxt, vBase, vQm = V(), V(), V(), V()
vFl = V(2)
vWod = V()
m_p2 = V.mark()

A(f"""s_lshl_b32 s{sT0}, s{sKap}, 14
v_add_u32 v{vBase}, s{sT0}, v{vL16}
s_and_b32 s{sT1}, s{sw}, 3
s_lshl_b32 s{sT1}, s{sT1}, 12
s_add_u32 s{sT1}, s{sT1}, {QOFF}
v_add_u32 v{t0}, s{sT1}, v{vL16}
v_add_u32 v{vCur}, 32768, v{vBase}
v_mov_b32 v{vNxt}, v{vBase}
v_lshrrev_b32 v{t1}, 3, v{vLane}
v_lshlrev_b32 v{t1}, 2, v{t1}
v_add_u32 v{t1}, {MISC}, v{t1}
ds_read_b128 {v(Q[0],4)}, v{t0}
ds_read_b128 {v(Kf[0],4)}, v{vCur}
ds_read_b128 {v(Q[0]+4,4)}, v{t0} offset:1024
ds_read_b128 {v(Kf[0]+4,4)}, v{vCur} offset:1024
ds_read_b128 {v(Q[1],4)}, v{t0} offset:2048
ds_read_b128 {v(Q[1]+4,4)}, v{t0} offset:3072
ds_read_b128 {v(Kf[1],4)}, v{vCur} offset:4096
ds_read_b128 {v(Kf[1]+4,4)}, v{vCur} offset:5120
ds_read_b128 {v(Vf[0],4)}, v{vCur} offset:2048
ds_read_b128 {v(Vf[0]+4,4)}, v{vCur} offset:3072
ds_read_b32 v{vQm}, v{t1}""")
for q in range(2):
    for r in range(16):
        A(f"v_mov_b32 v{O[q]+r}, 0")
A(f"""v_mul_u32_u24 v{t2}, 0x4925, v{vLane}
v_lshrrev_b32 v{t2}, 18, v{t2}
v_mul_u32_u24 v{t3}, 14, v{t2}
v_sub_u32 v{t3}, v{vLane}, v{t3}
v_mul_u32_u24 v{t2}, 896, v{t2}
v_lshl_add_u32 v{vWod}, v{t3}, 4, v{t2}
s_mov_b32 s{sPosN}, 0
s_waitcnt lgkmcnt(7)
v_mfma_f32_32x32x16_bf16 {v(S[0],16)}, {v(Kf[0],4)}, {v(Q[0],4)}, 0
v_mfma_f32_32x32x16_bf16 {v(S[0],16)}, {v(Kf[0]+4,4)}, {v(Q[0]+4,4)}, {v(S[0],16)}
s_waitcnt lgkmcnt(0)""")


def kv_dma(blk_sgpr_or_rel, pos_sgpr):
    A(f"""s_add_u32 s{sT0}, s{sT0}, s{sj}
    s_and_b32 s{sT0}, s{sT0}, 7
    s_lshl_b32 s{sT0}, s{sT0}, 15
    s_add_u32 s{sT0}, s{sT0}, s{sKV}
    s_add_u32 m0, s{sMX}, {pos_sgpr}
    s_add_u32 s{sT0}, s{sT0}, s{sMX}""")
    for i in range(4):
        A(f"buffer_load_dwordx4 v{vL16}, s[{sWS}:{sWS+3}], s{sT0} offen offset:{1024*i} sc1 lds")


def wo_dma(n_sgpr, last=False):
    A(f"""s_mul_i32 s{sT2}, s{n_sgpr}, 896
    s_mul_i32 s{sT3}, s{n_sgpr}, 3584
    {"s_sub_u32" if last else "s_add_u32"} m0, s{sT2}, {105*896 if last else WOB}
    s_add_u32 s{sT3}, s{sT3}, s{sWoff}
    buffer_load_dwordx4 v{vWod}, s[{sWO}:{sWO+3}], s{sT3} offen lds""")


def window(u, first=False, hooks=None):
    t = u // 2
    un, up = u + 1, u - 1
    tn, qn = un // 2, un % 2
    tp, qp = up // 2, up % 2
    Sc, Sn, Sp = S[u % 4], S[un % 4], S[up % 4]
    Kn, Vp = Kf[tn % 2], Vf[tp % 2]
    m = [f"v_mfma_f32_32x32x16_bf16 {v(Sn,16)}, {v(Kn,4)}, {v(Q[qn],4)}, 0",
         f"v_mfma_f32_32x32x16_bf16 {v(Sn,16)}, {v(Kn+4,4)}, {v(Q[qn]+4,4)}, {v(Sn,16)}",
         f"v_smfmac_f32_32x32x32_bf16 {v(O[qp],16)}, {v(Vp,4)}, {v(Sp,8)}, v{vIdx}",
         f"v_smfmac_f32_32x32x32_bf16 {v(O[qp],16)}, {v(Vp+4,4)}, {v(Sp+8,8)}, v{vIdx}"]
    if first and u == 0:
        m[2] = m[3] = None
    mem = [[], [], [], []]
    if u % 2 == 1:
        A("s_waitcnt lgkmcnt(0)")
        tt = tn
        ka = (vCur, (tt + 1) * 4096) if tt + 1 < 4 else (vNxt, (tt + 1 - 4) * 4096)
        va = (vCur, tt * 4096) if tt < 4 else (vNxt, (tt - 4) * 4096)
        Kd, Vd = Kf[(tt + 1) % 2], Vf[tt % 2]
        mem[0].append(f"ds_read_b128 {v(Kd,4)}, v{ka[0]} offset:{ka[1]}")
        mem[1].append(f"ds_read_b128 {v(Kd+4,4)}, v{ka[0]} offset:{ka[1]+1024}")
        mem[2].append(f"ds_read_b128 {v(Vd,4)}, v{va[0]} offset:{va[1]+2048}")
        mem[3].append(f"ds_read_b128 {v(Vd+4,4)}, v{va[0]} offset:{va[1]+3072}")
    for q in range(4):
        if m[q]:
            A(m[q])
        for x in mem[q]:
            A(x)
        for e in range(4):
            A(f"v_exp_f32 v{Sc+4*q+e}, v{Sc+4*q+e}")
    if hooks and u in hooks:
        hooks[u]()


def advance():
    A(f"""s_sub_u32 s{sPosN}, s{sPosN}, 0x8000
    s_cselect_b32 s{sPosN}, 0x10000, s{sPosN}
    v_mov_b32 v{vCur}, v{vNxt}
    v_add_u32 v{vNxt}, s{sPosN}, v{vBase}""")


def hook_flag():
    A(f"""v_mov_b32 v{vFl}, s{stag}
    v_mov_b32 v{vFl+1}, s{sKmax}
    s_lshl_b32 s{sT0}, s{sj}, 3
    v_mov_b32 v{t0}, s{sT0}
    s_waitcnt vmcnt(0)
    s_mov_b64 exec, 1
    buffer_store_dwordx2 {v(vFl,2)}, v{t0}, s[{sWS}:{sWS+3}], s{sFl} offen sc1
    s_mov_b64 exec, -1""")
    ts(4)


def hook_poll():
    A(f"""v_and_b32 v{t0}, 7, v{vLane}
    v_lshlrev_b32 v{t0}, 3, v{t0}
    s_mov_b32 s{sSpin}, 0x40000
    s_waitcnt vmcnt(0)""")
    A.label("L_poll")
    A(f"""buffer_load_dwordx2 {v(vFl,2)}, v{t0}, s[{sWS}:{sWS+3}], s{sFl} offen sc1
    s_sub_u32 s{sSpin}, s{sSpin}, 1
    s_cbranch_scc1 L_poll_done
    s_waitcnt vmcnt(0)
    v_cmp_ne_u32 vcc, s{stag}, v{vFl}
    s_cmp_lg_u64 vcc, 0
    s_cbranch_scc1 L_poll""")
    A.label("L_poll_done")
    ts(5)
    A(f"s_mov_b32 s{sT0}, 1")
    kv_dma(1, 0)
    A(f"s_mov_b32 s{sT0}, 2")
    kv_dma(2, 65536)
    A(f"""v_mul_f32 v{t1}, v{vFl+1}, v{vQm}
    s_mov_b32 s{sT0}, {hex(f2u(THR2))}
    v_cmp_nge_f32 vcc, s{sT0}, v{t1}
    s_cmp_eq_u64 vcc, 0
    s_cbranch_scc1 L_fast_ok
    v_mov_b32 v{t0}, {MISC+64}
    v_mov_b32 v{t1}, 1
    ds_write_b32 v{t0}, v{t1}
    s_waitcnt lgkmcnt(0)""")
    A.label("L_fast_ok")


def hook_bar0():
    A("""s_waitcnt vmcnt(4)
    s_barrier""")
    ts(6)


for u in range(8):
    window(u, first=True, hooks={1: hook_flag, 3: hook_poll, 4: hook_bar0})
advance()
A(f"s_mov_b32 s{sI}, 1")
A(".p2align 3")
A.label("L_blk")


def hook_bar():
    A(f"""s_waitcnt vmcnt(0)
    s_barrier
    s_cmp_gt_u32 s{sI}, 5
    s_cbranch_scc1 L_late
    s_sub_u32 s{sPos}, s{sPosN}, 0x8000
    s_cselect_b32 s{sPos}, 0x10000, s{sPos}
    s_add_u32 s{sT0}, s{sI}, 2""")
    kv_dma(0, f"s{sPos}")
    A(f"""s_lshl_b32 s{sT0}, s{sI}, 4
    s_add_u32 s{sT0}, s{sT0}, s{sw}
    s_add_u32 s{sT0}, s{sT0}, {35-16}
    s_mov_b32 exec_hi, 0xffffff
    s_min_u32 s{sT0}, s{sT0}, 104""")
    wo_dma(sT0)
    A(f"""s_add_u32 s{sT0}, s{sT0}, 8
    s_min_u32 s{sT0}, s{sT0}, 104""")
    wo_dma(sT0)
    A(f"""s_mov_b32 exec_hi, -1
    s_branch L_cont""")
    A.label("L_late")
    A(f"""s_mov_b32 exec_hi, 0xffffff
    s_cmp_eq_u32 s{sI}, 7
    s_cbranch_scc1 L_last
    s_mov_b32 s{sT0}, s{sw}""")
    A.label("L_wo2")
    wo_dma(sT0)
    A(f"""s_add_u32 s{sT0}, s{sT0}, 8
    s_cmp_lt_u32 s{sT0}, 35
    s_cbranch_scc1 L_wo2
    s_mov_b32 exec_hi, -1
    s_branch L_cont""")
    A.label("L_last")
    A(f"""s_add_u32 s{sT0}, s{sw}, 105
    s_min_u32 s{sT0}, s{sT0}, 111""")
    wo_dma(sT0, last=True)
    A("s_mov_b32 exec_hi, -1")
    A.label("L_cont")


for u in range(8):
    window(u, hooks={4: hook_bar})
advance()
A(f"""s_add_u32 s{sI}, s{sI}, 1
s_cmp_lt_u32 s{sI}, 8
s_cbranch_scc1 L_blk
v_smfmac_f32_32x32x32_bf16 {v(O[1],16)}, {v(Vf[1],4)}, {v(S[3],8)}, v{vIdx}
v_smfmac_f32_32x32x32_bf16 {v(O[1],16)}, {v(Vf[1]+4,4)}, {v(S[3]+8,8)}, v{vIdx}""")
ts(7)

R = S[0]
A(f"""s_add_u32 s{sT0}, s{sMX}, {RED}
v_add_u32 v{t0}, s{sT0}, v{vL16}
s_xor_b32 s{sT0}, s{sT0}, 0x4000
v_add_u32 v{t1}, s{sT0}, v{vL16}
v_mov_b32 v{t2}, {MISC+64}
s_waitcnt lgkmcnt(0)
s_cmp_eq_u32 s{sKap}, 0
s_cbranch_scc1 L_send_b""")
for i in range(4):
    A(f"ds_write_b128 v{t0}, {v(O[0]+4*i,4)} offset:{1024*i}")
for r in range(16):
    A(f"v_mov_b32 v{O[0]+r}, v{O[1]+r}")
for r in range(8):
    A(f"v_mov_b32 v{Q[0]+r}, v{Q[1]+r}")
A("s_branch L_sent")
A.label("L_send_b")
for i in range(4):
    A(f"ds_write_b128 v{t0}, {v(O[1]+4*i,4)} offset:{1024*i}")
A.label("L_sent")
A("""s_waitcnt vmcnt(0) lgkmcnt(0)
s_barrier""")
A(f"ds_read_b32 v{t3}, v{t2}")
for i in range(4):
    A(f"ds_read_b128 {v(R+4*i,4)}, v{t1} offset:{1024*i}")
A(f"""s_waitcnt lgkmcnt(4)
v_readfirstlane_b32 s{sT0}, v{t3}
s_cmp_lg_u32 s{sT0}, 0
s_cbranch_scc1 L_slow
s_waitcnt lgkmcnt(0)""")
for r in range(16):
    A(f"v_add_f32 v{O[0]+r}, v{O[0]+r}, v{R+r}")
A.label("L_norm")
po = S[1]
A(f"""v_mov_b32 v{t0}, v{O[0]+12}
v_mov_b32 v{t1}, v{O[0]+12}
v_permlane32_swap_b32 v{t0}, v{t1}
v_rcp_f32 v{t1}, v{t1}""")
for r in range(16):
    A(f"v_mul_f32 v{O[0]+r}, v{t1}, v{O[0]+r}")
for r in range(8):
    A(f"v_cvt_pk_bf16_f32 v{po+r}, v{O[0]+2*r}, v{O[0]+2*r+1}")
for r in (6, 7):
    A(f"v_cndmask_b32 v{po+r}, 0, v{po+r}, s[{sLo}:{sLo+1}]")
for r in range(8):
    A(f"v_min_u32 v{po+r}, -2, v{po+r}")
A(f"""buffer_store_dwordx4 {v(po,4)}, v{vL16}, s[{sWS}:{sWS+3}], s{sOt} offen sc1
buffer_store_dwordx4 {v(po+4,4)}, v{vL16}, s[{sWS}:{sWS+3}], s{sOt} offen offset:1024 sc1""")
ts(8)

V.reset(m_p2)
Of = V(64)
vOa, vW0, vW1, vW0b, vW1b, vW0c, vW1c = [V() for _ in range(7)]
acc = O[1]
Wb_ = [S[2], S[3]]
A(f"""s_lshr_b32 s{sT0}, s{sh}, 2
s_bfe_u32 s{sT1}, s{sw}, 0x10001
s_lshl_b32 s{sT2}, s{sT1}, 2
s_add_u32 s{sT2}, s{sT2}, s{sT0}
s_lshl_b32 s{sT2}, s{sT2}, 7
s_lshl_b32 s{sT3}, s{sb}, 14
s_add_u32 s{sT2}, s{sT2}, s{sT3}
s_lshl_b32 s{sT3}, s{sj}, 3
s_add_u32 s{sT2}, s{sT2}, s{sT3}
v_and_b32 v{t0}, 15, v{vLane}
v_lshlrev_b32 v{t1}, 10, v{t0}
s_mov_b32 s{sSpin}, 0x40000""")
A.label("L_pollc")
A(f"""buffer_load_dword v{t2}, v{t1}, s[{sWS}:{sWS+3}], s{sT2} offen sc1
s_sub_u32 s{sSpin}, s{sSpin}, 1
s_cbranch_scc1 L_pollc_done
s_waitcnt vmcnt(0)
v_cmp_ne_u32 vcc, s{stag}, v{t2}
s_cmp_lg_u64 vcc, 0
s_cbranch_scc1 L_pollc""")
A.label("L_pollc_done")
A(f"""s_lshl_b32 s{sT0}, s{sT0}, 1
s_add_u32 s{sT0}, s{sT0}, s{sT1}
s_lshl_b32 s{sT2}, s{sb}, 3
s_add_u32 s{sT2}, s{sT2}, s{sj}
s_lshl_b32 s{sT2}, s{sT2}, 3
s_add_u32 s{sT0}, s{sT0}, s{sT2}
s_lshl_b32 s{sOt}, s{sT0}, 15
s_add_u32 s{sOt}, s{sOt}, {O_OFF}
s_and_b32 s{sT1}, s{sw}, 1
s_lshl_b32 s{sT1}, s{sT1}, 8
s_add_u32 s{sOt}, s{sOt}, s{sT1}
v_lshrrev_b32 v{t1}, 4, v{vLane}
v_lshlrev_b32 v{t2}, 9, v{t1}
v_lshl_add_u32 v{vOa}, v{t0}, 4, v{t2}""")
A(f"""v_lshrrev_b32 v{t2}, 1, v{t1}
v_lshlrev_b32 v{t2}, 4, v{t2}
v_and_b32 v{t3}, 1, v{t1}
v_lshl_add_u32 v{t2}, v{t3}, 2, v{t2}
v_bfe_u32 v{t3}, v{vLane}, 2, 2
v_add_u32 v{t2}, v{t2}, v{t3}
v_mul_u32_u24 v{t2}, 224, v{t2}
v_and_b32 v{t3}, 3, v{vLane}
v_lshl_add_u32 v{t2}, v{t3}, 3, v{t2}
s_mul_i32 s{sT1}, s{sKap}, 96
v_add_u32 v{vW0c}, s{sT1}, v{t2}
v_cmp_eq_u32 vcc, 3, v{t1}
v_mov_b32 v{t3}, {8*224}
v_mov_b32 v{t4}, {4*224}
v_cndmask_b32 v{t3}, v{t3}, v{t4}, vcc
v_add_u32 v{vW1c}, v{vW0c}, v{t3}
v_add_u32 v{vW0}, {WOB}, v{vW0c}
v_add_u32 v{vW1}, {WOB}, v{vW1c}
v_add_u32 v{vW0b}, {WOB+8*6272}, v{vW0c}
v_add_u32 v{vW1b}, {WOB+8*6272}, v{vW1c}
s_mov_b32 s{sSpin}, 0x40000""")
A.label("L_pollo")
for hh in range(16):
    if hh % 2 == 0:
        A(f"s_add_u32 s{sT0}, s{sOt}, {hh*2048}")
    A(f"buffer_load_dwordx4 {v(Of+4*hh,4)}, v{vOa}, s[{sWS}:{sWS+3}], s{sT0} offen offset:{(hh%2)*2048} sc1")
A(f"""s_sub_u32 s{sSpin}, s{sSpin}, 1
s_cbranch_scc1 L_pollo_done
s_waitcnt vmcnt(0)
v_max_u32 v{t0}, v{Of}, v{Of+1}""")
for r in range(2, 64, 2):
    A(f"v_max3_u32 v{t0}, v{Of+r}, v{Of+r+1}, v{t0}")
A(f"""v_cmp_eq_u32 vcc, -1, v{t0}
s_cmp_lg_u64 vcc, 0
s_cbranch_scc1 L_pollo""")
A.label("L_pollo_done")
A("s_waitcnt vmcnt(0)")
ts(9)


def wo_reads(hh):
    if hh == 15:
        a0, a1, off = vW0c, vW1c, 0
    elif hh >= 8:
        a0, a1, off = vW0b, vW1b, (hh - 8) * 6272
    else:
        a0, a1, off = vW0, vW1, hh * 6272
    for ct in range(4):
        A(f"ds_read_b64_tr_b16 {v(Wb_[hh%2]+4*ct,2)}, v{a0} offset:{off+32*ct}")
        A(f"ds_read_b64_tr_b16 {v(Wb_[hh%2]+4*ct+2,2)}, v{a1} offset:{off+32*ct}")


wo_reads(0)
for hh in range(16):
    if hh < 15:
        wo_reads(hh + 1)
        A("s_waitcnt lgkmcnt(8)")
    else:
        A("s_waitcnt lgkmcnt(0)")
    for ct in range(4):
        c = "0" if hh == 0 else v(acc + 4 * ct, 4)
        A(f"v_mfma_f32_16x16x32_bf16 {v(acc+4*ct,4)}, {v(Wb_[hh%2]+4*ct,4)}, {v(Of+4*hh,4)}, {c}")
pk2 = S[0]
A(f"""s_mul_i32 s{sT0}, s{sw}, 2304
s_add_u32 s{sT0}, s{sT0}, {OT}
v_and_b32 v{t0}, 15, v{vLane}
v_mul_u32_u24 v{t0}, 144, v{t0}
v_lshrrev_b32 v{t1}, 4, v{vLane}
v_lshl_add_u32 v{t0}, v{t1}, 3, v{t0}
v_add_u32 v{t0}, s{sT0}, v{t0}
v_lshrrev_b32 v{t1}, 3, v{vLane}
v_and_b32 v{t2}, 7, v{vLane}
v_mul_u32_u24 v{t3}, 144, v{t1}
v_lshl_add_u32 v{t3}, v{t2}, 4, v{t3}
v_add_u32 v{t3}, s{sT0}, v{t3}
v_mul_u32_u24 v{t4}, 1792, v{t1}
v_lshl_add_u32 v{t4}, v{t2}, 4, v{t4}""")
A(f"""s_lshl_b32 s{sT0}, s{sj}, 2
s_lshr_b32 s{sT1}, s{sh}, 2
s_add_u32 s{sT0}, s{sT0}, s{sT1}
s_lshl_b32 s{sT0}, s{sT0}, 2
s_and_b32 s{sT1}, s{sw}, 3
s_add_u32 s{sT0}, s{sT0}, s{sT1}
s_mul_i32 s{sT0}, s{sT0}, {16*1792}
s_mul_i32 s{sT1}, s{sb}, 896
s_add_u32 s{sT0}, s{sT0}, s{sT1}
s_add_u32 s{sT0}, s{sT0}, s{sWoff}
s_mul_i32 s{sT1}, s{sKap}, 96
s_add_u32 s{sT0}, s{sT0}, s{sT1}
s_add_u32 s{sT1}, s{sT0}, {8*1792}""")
for ct in range(4):
    A(f"""v_cvt_pk_bf16_f32 v{pk2+2*ct}, v{acc+4*ct}, v{acc+4*ct+1}
    v_cvt_pk_bf16_f32 v{pk2+2*ct+1}, v{acc+4*ct+2}, v{acc+4*ct+3}
    ds_write_b64 v{t0}, {v(pk2+2*ct,2)} offset:{32*ct}""")
A(f"""s_waitcnt lgkmcnt(0)
ds_read_b128 {v(pk2+8,4)}, v{t3}
ds_read_b128 {v(pk2+12,4)}, v{t3} offset:{8*144}
s_waitcnt lgkmcnt(1)
buffer_store_dwordx4 {v(pk2+8,4)}, v{t4}, s[{sOUT}:{sOUT+3}], s{sT0} offen
s_waitcnt lgkmcnt(0)
buffer_store_dwordx4 {v(pk2+12,4)}, v{t4}, s[{sOUT}:{sOUT+3}], s{sT1} offen""")
A(f"""s_or_b32 s{sT0}, s{sh}, s{sj}
s_or_b32 s{sT0}, s{sT0}, s{sw}
s_cmp_lg_u32 s{sT0}, 0
s_cbranch_scc1 L_noep
s_add_u32 s{sE}, s{sE}, 1
s_lshl_b32 s{sT0}, s{sb}, 8
s_add_u32 s{sT0}, s{sT0}, {EPOCH_OFF}
v_mov_b32 v{t0}, 0
v_mov_b32 v{t1}, s{sE}
s_mov_b64 exec, 1
buffer_store_dword v{t1}, v{t0}, s[{sWS}:{sWS+3}], s{sT0} offen sc1
s_mov_b64 exec, -1""")
A.label("L_noep")
if OPT["ts"]:
    A("s_waitcnt vmcnt(0)")
    ts(10)
    A(f"""s_lshl_b32 s{sT0}, s2, 3
    s_add_u32 s{sT0}, s{sT0}, s{sw}
    s_lshl_b32 s{sT0}, s{sT0}, 6
    s_add_u32 s{sT0}, s{sT0}, {TS_OFF}
    s_getreg_b32 s{sT1}, hwreg(HW_REG_XCC_ID)
    v_writelane_b32 v{vTS}, s{sT1}, 15
    v_lshlrev_b32 v{t0}, 2, v{vLane}
    s_mov_b64 exec, 0xffff
    buffer_store_dword v{vTS}, v{t0}, s[{sWS}:{sWS+3}], s{sT0} offen""")
A.label("L_end")
A("s_endpgm")

A.label("L_slow")
Sx, vM, vMn, vAl = S[2], t2, t3, t4
A(f"""s_waitcnt lgkmcnt(0)
v_mov_b32 v{vM}, 0xff7fffff
s_mov_b32 s{sT0}, s{sKV}
s_mov_b32 s{sI}, 0""")
for r in range(16):
    A(f"v_mov_b32 v{O[0]+r}, 0")
A.label("L_slow_t")
A(f"""buffer_load_dwordx4 {v(Kf[0],4)}, v{vL16}, s[{sWS}:{sWS+3}], s{sT0} offen sc1
buffer_load_dwordx4 {v(Kf[0]+4,4)}, v{vL16}, s[{sWS}:{sWS+3}], s{sT0} offen offset:1024 sc1
buffer_load_dwordx4 {v(Vf[0],4)}, v{vL16}, s[{sWS}:{sWS+3}], s{sT0} offen offset:2048 sc1
buffer_load_dwordx4 {v(Vf[0]+4,4)}, v{vL16}, s[{sWS}:{sWS+3}], s{sT0} offen offset:3072 sc1
s_add_u32 s{sT0}, s{sT0}, 4096
s_waitcnt vmcnt(0)
v_mfma_f32_32x32x16_bf16 {v(Sx,16)}, {v(Kf[0],4)}, {v(Q[0],4)}, 0
v_mfma_f32_32x32x16_bf16 {v(Sx,16)}, {v(Kf[0]+4,4)}, {v(Q[0]+4,4)}, {v(Sx,16)}
v_max3_f32 v{t0}, v{Sx}, v{Sx+1}, v{vM}""")
for r in range(2, 16, 2):
    A(f"v_max3_f32 v{t0}, v{Sx+r}, v{Sx+r+1}, v{t0}")
A(f"""v_mov_b32 v{t1}, v{t0}
v_permlane32_swap_b32 v{t0}, v{t1}
v_max_f32 v{vMn}, v{t0}, v{t1}
v_sub_f32 v{vAl}, v{vM}, v{vMn}
v_exp_f32 v{vAl}, v{vAl}
v_mov_b32 v{vM}, v{vMn}""")
for r in range(16):
    A(f"v_sub_f32 v{Sx+r}, v{Sx+r}, v{vMn}")
for r in range(16):
    A(f"v_exp_f32 v{Sx+r}, v{Sx+r}")
for r in range(16):
    A(f"v_mul_f32 v{O[0]+r}, v{vAl}, v{O[0]+r}")
A(f"""v_smfmac_f32_32x32x32_bf16 {v(O[0],16)}, {v(Vf[0],4)}, {v(Sx,8)}, v{vIdx}
v_smfmac_f32_32x32x32_bf16 {v(O[0],16)}, {v(Vf[0]+4,4)}, {v(Sx+8,8)}, v{vIdx}
s_add_u32 s{sI}, s{sI}, 1
s_cmp_lt_u32 s{sI}, 64
s_cbranch_scc1 L_slow_t
s_nop 11
s_branch L_norm""")

n = A.fix_hazards(verbose=bool(OPT.get("v", 0)))
NV = -(-V.hi // 8) * 8
hdr = open("cdna_kernels/" + NAME + ".s.ref").read().split("; Override launch")[0]
out = hdr + f"""; Fused kernel: QKV projection -> softmax attention -> output projection, one workgroup per
; (branch, head, 256-token block).  Generated by gen/gen.py.
; @launch grid=(256,1,1) block=(512,1,1) lds={LDS_BYTES}
.amdgcn_target "amdgcn-amd-amdhsa--gfx950"
.text
.globl {NAME}_kernel
.p2align 8
.type {NAME}_kernel,@function
""" + A.text() + f""".section .rodata,"a"
.p2align 6
.amdhsa_kernel {NAME}_kernel
  .amdhsa_next_free_vgpr {NV}
  .amdhsa_next_free_sgpr {NSGPR}
  .amdhsa_accum_offset {NV}
  .amdhsa_group_segment_fixed_size 0
  .amdhsa_kernarg_size 72
  .amdhsa_user_sgpr_count 2
  .amdhsa_user_sgpr_kernarg_segment_ptr 1
  .amdhsa_system_sgpr_workgroup_id_x 1
.end_amdhsa_kernel
"""
open(sys.argv[1], "w").write(out)
print(f"wrote {sys.argv[1]}: {len(A.lines)} lines, {n} nops inserted, {NV} vgprs", file=sys.stderr)
```

```python
import re

TRANS = ("v_exp_", "v_log_", "v_rcp_", "v_rsq_", "v_sqrt_", "v_sin_", "v_cos_")


def v(a, n=1):
    return f"v{a}" if n == 1 else f"v[{a}:{a+n-1}]"


def s(a, n=1):
    return f"s{a}" if n == 1 else f"s[{a}:{a+n-1}]"


_REG = re.compile(r"^(-|abs\()?(v|s|a)(\d+|\[(\d+):(\d+)\])\)?$")


def regs_of(op):
    op = op.strip()
    if op in ("vcc",):
        return {("s", "vcc_lo"), ("s", "vcc_hi")}
    if op in ("vcc_lo", "vcc_hi"):
        return {("s", op)}
    if op == "exec":
        return {("s", "exec_lo"), ("s", "exec_hi")}
    if op in ("exec_lo", "exec_hi"):
        return {("s", op)}
    if op == "m0":
        return {("s", "m0")}
    m = _REG.match(op)
    if not m:
        return set()
    k = m.group(2)
    if m.group(4) is not None:
        return {(k, i) for i in range(int(m.group(4)), int(m.group(5)) + 1)}
    return {(k, int(m.group(3)))}


class Ins:
    def __init__(self, text):
        self.text = text
        t = text.split(";")[0].strip()
        self.label = None
        self.mn = None
        self.directive = False
        if t.endswith(":"):
            self.label = t[:-1]
            return
        if t.startswith(".") or not t:
            self.directive = True
            return
        parts = t.split(None, 1)
        self.mn = mn = parts[0]
        rest = parts[1] if len(parts) > 1 else ""
        ops = [o.strip() for o in rest.split(",")] if rest else []
        mods = ""
        if ops:
            last = ops[-1].split()
            if len(last) > 1:
                ops[-1] = last[0]
                mods = " ".join(last[1:])
        if "op_sel" in rest:
            pre = rest.split("op_sel")[0]
            ops = [o.strip() for o in pre.split(",")]
            mods = rest[len(pre):]
        self.ops, self.mods = ops, mods
        self.is_mfma = mn.startswith("v_mfma") or mn.startswith("v_smfmac")
        self.is_smf = mn.startswith("v_smfmac")
        self.is_valu = mn.startswith("v_") and not self.is_mfma
        self.is_trans = mn.startswith(TRANS)
        self.is_vmem = mn.startswith("buffer_") or mn.startswith("global_")
        self.is_ds = mn.startswith("ds_")
        self.is_salu = mn.startswith("s_")
        self.is_dpp = "_dpp" in mn or "row_" in mods or "quad_perm" in mods
        self.is_perml = mn.startswith("v_permlane")
        self.is_rdlane = mn.startswith("v_readlane") or mn.startswith("v_readfirstlane")
        self.is_branch = mn.startswith("s_cbranch") or mn == "s_branch"
        self.passes = 0
        W, R = set(), set()
        self.srcC = set()
        self.srcAB = set()
        self.store_data = set()
        self.ws = 1
        if mn == "s_nop":
            self.ws = int(ops[0], 0) + 1
        if self.is_mfma:
            self.passes = 8 if "32x32" in mn else 4
            W = regs_of(ops[0])
            self.srcAB = regs_of(ops[1]) | regs_of(ops[2])
            if self.is_smf:
                self.srcAB |= regs_of(ops[3])
                self.srcC = set(W)
            else:
                self.srcC = regs_of(ops[3])
            R = self.srcAB | self.srcC
        elif self.is_valu:
            if mn.startswith("v_cmp"):
                W = regs_of(ops[0])
                for o in ops[1:]:
                    R |= regs_of(o)
            elif self.is_perml:
                W = regs_of(ops[0]) | regs_of(ops[1])
                R = set(W)
            else:
                W = regs_of(ops[0])
                st = 1
                if "_co_" in mn:
                    W |= regs_of(ops[1])
                    st = 2
                for o in ops[st:]:
                    R |= regs_of(o)
                if mn.startswith(("v_fmac", "v_writelane", "v_dot2c")) or self.is_dpp:
                    R |= regs_of(ops[0])
        elif self.is_vmem:
            lds = "lds" in mods.split()
            if mn.startswith("buffer_inv") or mn.startswith("buffer_wbl2"):
                pass
            elif mn.startswith("buffer_load"):
                if lds:
                    for o in ops:
                        R |= regs_of(o)
                    R |= {("s", "m0")}
                else:
                    W = regs_of(ops[0])
                    for o in ops[1:]:
                        R |= regs_of(o)
            elif mn.startswith("buffer_store") or mn.startswith("buffer_atomic"):
                for o in ops:
                    R |= regs_of(o)
                if "x4" in mn or "x3" in mn:
                    self.store_data = regs_of(ops[0])
                if mn.startswith("buffer_atomic") and "sc0" in mods:
                    W = regs_of(ops[0])
            elif mn.startswith("global_load"):
                W = regs_of(ops[0])
                for o in ops[1:]:
                    R |= regs_of(o)
            elif mn.startswith("global_store"):
                for o in ops:
                    R |= regs_of(o)
                if "x4" in mn or "x3" in mn:
                    self.store_data = regs_of(ops[1])
            self.is_ldsdma = lds
        elif self.is_ds:
            if mn.startswith("ds_read") or mn.startswith("ds_bpermute") or mn.startswith("ds_swizzle") or "_rtn_" in mn:
                W = regs_of(ops[0])
                for o in ops[1:]:
                    R |= regs_of(o)
            else:
                for o in ops:
                    R |= regs_of(o)
        elif self.is_salu:
            nodst = mn.startswith(("s_cmp", "s_cbranch", "s_branch", "s_waitcnt", "s_barrier", "s_nop", "s_sleep",
                                   "s_setprio", "s_endpgm", "s_bitcmp", "s_setpc"))
            if not nodst and ops:
                W = regs_of(ops[0])
                for o in ops[1:]:
                    R |= regs_of(o)
                if "saveexec" in mn:
                    W |= regs_of("exec")
            else:
                for o in ops:
                    R |= regs_of(o)
        self.W, self.R = W, R


def need(p, c):
    n = 0
    pv = {r for r in p.W if r[0] in ("v", "a")}
    ps = {r for r in p.W if r[0] == "s"}
    if p.is_valu and p.mn.startswith("v_dot"):
        if c.mn == p.mn:
            ab = regs_of(c.ops[1]) | regs_of(c.ops[2])
            if pv & ab:
                n = max(n, 3)
        elif (c.is_valu or c.is_mfma or c.is_vmem or c.is_ds) and (pv & (c.R | c.W)):
            n = max(n, 3)
    if p.is_valu:
        if c.is_mfma and (pv & c.R):
            n = max(n, 2)
        if p.is_trans and c.is_valu and not c.is_trans and (pv & c.R):
            n = max(n, 1)
        if c.is_valu and c.is_rdlane and (pv & c.R):
            n = max(n, 1)
        if c.is_valu and (c.is_perml or c.is_dpp) and (pv & c.R):
            n = max(n, 2)
        if ps:
            if c.is_valu and (ps & c.R):
                n = max(n, 4 if (c.is_rdlane or c.mn.startswith("v_writelane")) else 2)
            if c.is_vmem and (ps & c.R):
                n = max(n, 5)
            if c.is_salu and (ps & c.R):
                n = max(n, 1)
            if c.is_branch and c.mn.startswith("s_cbranch_vcc") and (("s", "vcc_lo") in ps):
                n = max(n, 5)
    if p.is_mfma:
        k = p.passes
        if c.is_mfma:
            if pv & c.srcAB:
                n = max(n, 12 if k == 8 else 8)
            if pv & c.srcC:
                if not (pv == c.srcC and c.passes == k):
                    n = max(n, 10 if k == 8 else 6)
            elif pv & c.W and c.passes != k:
                n = max(n, 12 if k == 8 else 8)
        elif c.mn and (c.is_valu or c.is_vmem or c.is_ds):
            if pv & (c.R | c.W):
                n = max(n, 12 if k == 8 else 8)
            if c.is_valu and (p.srcC & c.W):
                n = max(n, 7 if k == 8 else 3)
    if p.is_salu and ("s", "m0") in p.W and c.is_vmem and getattr(c, "is_ldsdma", False):
        n = max(n, 1)
    if p.store_data and (p.store_data & c.W):
        n = max(n, 2 if c.is_valu else 1)
    return n


class Asm:
    def __init__(self):
        self.lines = []

    def __call__(self, text):
        for ln in text.split("\n"):
            if ln.strip():
                self.lines.append(ln.strip())

    def label(self, name):
        self.lines.append(name + ":")

    def fix_hazards(self, verbose=True):
        MAXW = 12
        total = 0
        while True:
            ins = [Ins(t) for t in self.lines]
            lab = {x.label: i for i, x in enumerate(ins) if x.label}

            rets = [i + 1 for i, x in enumerate(ins) if x.mn == "s_call_b64"]

            def succ(i):
                x = ins[i]
                out = []
                if x.mn == "s_endpgm":
                    return out
                if x.mn == "s_call_b64":
                    return [lab[x.ops[1]]]
                if x.mn == "s_setpc_b64":
                    return list(rets)
                if x.mn and x.is_branch:
                    out.append(lab[x.ops[0]])
                    if x.mn == "s_branch":
                        return out
                if i + 1 < len(ins):
                    out.append(i + 1)
                return out

            viol = None
            for i, p in enumerate(ins):
                if not p.mn:
                    continue
                if not (p.is_valu or p.is_mfma or p.store_data or (p.is_salu and ("s", "m0") in p.W)):
                    continue
                lim = MAXW if p.is_mfma else 5
                best = {}
                stack = [(j, 0) for j in succ(i)]
                while stack:
                    j, d = stack.pop()
                    if d >= lim:
                        continue
                    if j in best and best[j] <= d:
                        continue
                    best[j] = d
                    c = ins[j]
                    if c.mn:
                        n = need(p, c)
                        if n > d:
                            viol = (i, j, n - d)
                            break
                        nd = d + c.ws
                    else:
                        nd = d
                    for k in succ(j):
                        stack.append((k, nd))
                if viol:
                    break
            if not viol:
                break
            i, j, d = viol
            if verbose:
                print(f"; hazard: [{ins[i].text}] -> [{ins[j].text}] short by {d}: nop inserted at line {j}")
            self.lines.insert(j, f"s_nop {d-1}")
            total += 1
        return total

    def text(self):
        out = []
        for t in self.lines:
            if t.endswith(":") or t.startswith("."):
                out.append(t)
            else:
                out.append("    " + t)
        return "\n".join(out) + "\n"


class Alloc:
    def __init__(self, start, limit):
        self.next = start
        self.limit = limit
        self.hi = start

    def __call__(self, n=1, align=None):
        if align is None:
            align = 1 if n == 1 else (2 if n < 4 else 4)
        a = -(-self.next // align) * align
        self.next = a + n
        self.hi = max(self.hi, self.next)
        assert self.next <= self.limit, f"out of registers: {self.next}"
        return a

    def mark(self):
        return self.next

    def reset(self, m):
        self.next = m
```

```python
import sys, struct, math
from asmlib import Asm, Alloc, v, s

NAME = "concat_heads__softmax_full_mha__softmax_full_mha__prompt"

OPT = dict(ts=0, force_slow=0, rot=2, map=1, ibar=1, pf=1, clr=0, flagw=0, pollw=1, full=1, grp=1, per=2)
for a in sys.argv[2:]:
    k, val = a.split("=")
    OPT[k] = int(val)

FLAG_OFF = 0
EPOCH_OFF = 0x10000
TS_OFF = 0x20000
KV_OFF = 0x100000
O_OFF = 0x900000
WS_BYTES = 0x1000000

XPOS = [65536, 0, 32768]
WR = 98304
QOFF = 135168
WOB = 66944
WO15 = 32768
MISC = 161280
OT = 16384
LDS_BYTES = 163840

CSCALE = math.log2(math.e) / math.sqrt(28.0)
THR2 = 30.0 * 30.0


def f2u(x):
    return struct.unpack("<I", struct.pack("<f", x))[0]


A = Asm()
sX, sW, sWS, sWO, sOUT = 28, 32, 36, 40, 44
sw, sb, sh, sj, stag, sE = 48, 49, 50, 51, 52, 53
sC, sXb, sWb, sMX, sMW = 54, 55, 56, 57, 58
sT0, sT1, sT2, sT3 = 60, 61, 62, 63
sLo = 64
sVk = 66
sKV = 68
sKmax, sQmax = 69, 70
sI, sRel, sWn, sHH = 71, 72, 73, 74
sWm, sWm13 = 26, 27
sSpin = 75
sOt = 76
sWoff = 77
sKap = 78
sFl = 79
sTS = 80
sRet = 82
sDone, sTodo = 84, 85
sOin = 86
sPc = 87
sOut = 88
sCs = 90
sKVo = 92
sD0, sD1 = 93, 94
sPend, sRem = 95, 96
sOp = 97
sRdy = 98
NSGPR = 100


def ts(idx, grp=1):
    if not OPT["ts"] or (idx != 0 and OPT["ts"] != grp):
        return
    A(f"""{"s_memtime" if OPT.get("clk") else "s_memrealtime"} s[{sTS}:{sTS+1}]
    s_waitcnt lgkmcnt(0)
    v_writelane_b32 v{vTS}, s{sTS}, {idx}""")


V = Alloc(1, 256)
vLane = V()
vTS = V()
vL16 = V()
vIdx = V()
vT = [V() for _ in range(6)]
t0, t1, t2, t3, t4, t5 = vT
vKa, vKl, vVl, vPad, vQw, vQr, vBase, vCur, vNxt, vWod, vQa, vPl, vPc = [V() for _ in range(13)]
vOa, vW0, vW1, vW0b, vW1b, vW0c, vW1c, vRw, vMf, vTw, vTr, vOs, vMi, vOs2, vLp = [V() for _ in range(15)]
vFl = V(2)
nq, nk, vQm = V(), V(), V()
O = [V(16), V(16)]
pk = V(8)
pq = V(8)
m_ph = V.mark()

A.label(NAME + "_kernel")
A(f"""s_cmp_ge_u32 s2, 256
s_cbranch_scc1 L_end
s_load_dwordx16 s[8:23], s[0:1], 0
s_load_dwordx2 s[24:25], s[0:1], 64
v_lshrrev_b32 v{t0}, 6, v0
v_and_b32 v{vLane}, 63, v0
v_readfirstlane_b32 s{sw}, v{t0}
v_lshlrev_b32 v{vL16}, 4, v{vLane}""")
if OPT["ts"]:
    A(f"v_mov_b32 v{vTS}, 0")
    ts(0)
if OPT["map"] == 1:
    A(f"""s_and_b32 s{sT0}, s2, 7
    s_lshr_b32 s{sT1}, s2, 3
    s_and_b32 s{sj}, s{sT1}, 7
    s_lshr_b32 s{sT1}, s{sT1}, 3
    s_lshl_b32 s{sT0}, s{sT0}, 2
    s_add_u32 s{sHH}, s{sT0}, s{sT1}""")
elif OPT["map"] == 2:
    A(f"""s_and_b32 s{sT0}, s2, 7
    s_lshr_b32 s{sT1}, s2, 3
    s_and_b32 s{sT2}, s{sT0}, 3
    s_lshl_b32 s{sT2}, s{sT2}, 1
    s_lshr_b32 s{sT3}, s{sT1}, 4
    s_add_u32 s{sj}, s{sT2}, s{sT3}
    s_lshr_b32 s{sT0}, s{sT0}, 2
    s_lshl_b32 s{sT0}, s{sT0}, 4
    s_and_b32 s{sT1}, s{sT1}, 15
    s_add_u32 s{sHH}, s{sT0}, s{sT1}""")
elif OPT["map"] == 3:
    A(f"""s_and_b32 s{sT0}, s2, 7
    s_lshr_b32 s{sT1}, s2, 3
    s_and_b32 s{sT2}, s{sT0}, 1
    s_lshl_b32 s{sT2}, s{sT2}, 2
    s_lshr_b32 s{sT3}, s{sT1}, 3
    s_add_u32 s{sj}, s{sT2}, s{sT3}
    s_lshr_b32 s{sT0}, s{sT0}, 1
    s_lshl_b32 s{sT0}, s{sT0}, 3
    s_and_b32 s{sT1}, s{sT1}, 7
    s_add_u32 s{sHH}, s{sT0}, s{sT1}""")
A(f"""s_lshr_b32 s{sb}, s{sHH}, 4
s_and_b32 s{sh}, s{sHH}, 15
s_lshr_b32 s{sKap}, s{sw}, 2""")
if OPT["pf"]:
    A(f"""s_lshr_b32 s{sT0}, s2, 3
    s_and_b32 s{sT0}, s{sT0}, 7
    s_cmp_lg_u32 s{sT0}, 0
    s_cbranch_scc1 L_nopf
    s_getpc_b64 s[{sRet}:{sRet+1}]
    v_lshlrev_b32 v{t1}, 6, v0
    v_min_u32 v{t1}, CODE_SPAN, v{t1}
    global_load_dword v{t5}, v{t1}, s[{sRet}:{sRet+1}]""")
    A.label("L_nopf")

vXd = [V() for _ in range(4)]
vWa, vWb = V(), V()
vXa = [V() for _ in range(4)]
vXb = [V() for _ in range(4)]
vWr = V()
A(f"""v_lshrrev_b32 v{t0}, 3, v{vLane}
v_mul_u32_u24 v{t0}, 896, v{t0}
v_lshrrev_b32 v{t1}, 4, v{vLane}
v_and_b32 v{t2}, 7, v{vLane}
v_xor_b32 v{t1}, v{t1}, v{t2}
v_lshl_add_u32 v{vXd[0]}, v{t1}, 4, v{t0}
v_xor_b32 v{t1}, 4, v{t1}
v_lshl_add_u32 v{t1}, v{t1}, 4, v{t0}
v_add_u32 v{vXd[1]}, {7168-1024}, v{t1}
v_add_u32 v{vXd[2]}, {14336-2048}, v{vXd[0]}
v_add_u32 v{vXd[3]}, {21504-3072}, v{t1}
v_bfe_u32 v{t0}, v{vLane}, 2, 3
v_mul_u32_u24 v{t0}, 2688, v{t0}
v_and_b32 v{t1}, 3, v{vLane}
v_lshl_add_u32 v{t0}, v{t1}, 4, v{t0}
v_lshrrev_b32 v{t2}, 5, v{vLane}
v_mul_u32_u24 v{t3}, 896, v{t2}
v_add_u32 v{vWa}, v{t0}, v{t3}
v_add_u32 v{vWb}, {1792-1024}, v{t0}""")
A(f"""s_lshl_b32 s{sT0}, s{sj}, 3
s_add_u32 s{sT0}, s{sT0}, s{sw}
s_mul_i32 s{sXb}, s{sT0}, {32*896}
s_mul_i32 s{sT1}, s{sh}, 56
s_and_b32 s{sT1}, s{sT1}, 0xfffffff0
s_mul_i32 s{sWb}, s{sw}, {8*2688}
s_add_u32 s{sWb}, s{sWb}, s{sT1}
s_lshl_b32 s{sMX}, s{sw}, 12
s_mul_i32 s{sMW}, s{sw}, 1536
s_add_u32 s{sMW}, s{sMW}, {WR}""")
if OPT["rot"] == 0:
    A(f"s_mov_b32 s{sC}, 0")
else:
    if OPT["rot"] == 1:
        A(f"s_add_u32 s{sC}, s{sh}, s{sj}")
    elif OPT["rot"] == 2:
        A(f"""s_mul_i32 s{sC}, s{sh}, 7
        s_lshr_b32 s{sC}, s{sC}, 4
        s_add_u32 s{sC}, s{sC}, s{sj}""")
    elif OPT["rot"] == 3:
        A(f"""s_mul_i32 s{sC}, s{sh}, 7
        s_lshr_b32 s{sC}, s{sC}, 4""")
    A(f"""s_mul_i32 s{sT1}, s{sC}, 37
    s_lshr_b32 s{sT1}, s{sT1}, 8
    s_mul_i32 s{sT1}, s{sT1}, 7
    s_sub_u32 s{sC}, s{sC}, s{sT1}""")
A(f"""s_waitcnt lgkmcnt(0)
s_cmp_eq_u32 s{sb}, 0
s_cselect_b32 s{sX}, s8, s14
s_cselect_b32 s{sX+1}, s9, s15
s_mov_b32 s{sX+2}, {2048*896}
s_mov_b32 s{sX+3}, 0x20000
s_cselect_b32 s{sW}, s10, s16
s_cselect_b32 s{sW+1}, s11, s17
s_mov_b32 s{sW+2}, {448*2688}
s_mov_b32 s{sW+3}, 0x20000
s_cselect_b32 s{sWO}, s12, s18
s_cselect_b32 s{sWO+1}, s13, s19""")


def chunk_pieces(slot):
    p = [f"""s_mul_i32 s{sD1}, s{sC}, {64*2688}
    s_add_u32 m0, s{sMW}, {slot*12288}
    s_add_u32 s{sD1}, s{sD1}, s{sWb}
    buffer_load_dwordx4 v{vWa}, s[{sW}:{sW+3}], s{sD1} offen lds""",
         f"""s_mov_b32 exec_hi, 0
    buffer_load_dwordx4 v{vWb}, s[{sW}:{sW+3}], s{sD1} offen offset:1024 lds
    s_mov_b32 exec_hi, -1""",
         f"""s_lshl_b32 s{sD0}, s{sC}, 7
    s_add_u32 m0, s{sMX}, {XPOS[slot]}
    s_add_u32 s{sD0}, s{sD0}, s{sXb}
    buffer_load_dwordx4 v{vXd[0]}, s[{sX}:{sX+3}], s{sD0} offen lds
    s_add_u32 s{sC}, s{sC}, 1
    s_cmp_eq_u32 s{sC}, 7
    s_cselect_b32 s{sC}, 0, s{sC}"""]
    for i in range(1, 4):
        p.append(f"buffer_load_dwordx4 v{vXd[i]}, s[{sX}:{sX+3}], s{sD0} offen offset:{1024*i} lds")
    return p


EARLY, LATE = [], []


def FE(text):
    EARLY.extend(x.strip() for x in text.split("\n") if x.strip())


def F(text):
    LATE.extend(x.strip() for x in text.split("\n") if x.strip())


def emit(lst, n):
    for _ in range(min(n, len(lst))):
        A(lst.pop(0))


FE(f"""s_lshl_b32 s{sT0}, s{sb}, 8
s_add_u32 s{sT0}, s{sT0}, {EPOCH_OFF}
s_load_dword s{sE}, s[24:25], s{sT0}""")
FE(f"""v_and_b32 v{t0}, 31, v{vLane}
v_bfe_u32 v{t1}, v{vLane}, 1, 3
v_xor_b32 v{t1}, v{t1}, v{t2}
v_cmp_eq_u32 vcc, 28, v{t0}
v_lshlrev_b32 v{t4}, 2, v{t0}
v_add_u32 v{vMi}, {MISC+64}, v{t4}
v_lshlrev_b32 v{t0}, 7, v{t0}
v_add_u32 v{t0}, s{sMX}, v{t0}
v_mov_b32 v{t4}, 0x3f803f80
v_cndmask_b32 v{vPad}, 0, v{t4}, vcc
v_mov_b32 v{t4}, 0
ds_write_b32 v{vMi}, v{t4}
v_mov_b32 v{vMi}, {MISC+64}""")
if OPT["force_slow"]:
    FE(f"""v_mov_b32 v{t4}, 1
    ds_write_b32 v{vMi}, v{t4}""")
for sst in range(4):
    FE(f"""v_xor_b32 v{t3}, {2*sst}, v{t1}
    v_lshl_add_u32 v{vXa[sst]}, v{t3}, 4, v{t0}
    v_add_u32 v{vXb[sst]}, 0x10000, v{vXa[sst]}""")
FE(f"""v_mul_u32_u24 v{t0}, 1536, v{t2}
v_bfe_u32 v{t1}, v{vLane}, 2, 2
v_lshl_add_u32 v{t0}, v{t1}, 6, v{t0}
v_bfe_u32 v{t1}, v{vLane}, 4, 1
v_lshl_add_u32 v{t0}, v{t1}, 5, v{t0}
v_and_b32 v{t1}, 3, v{vLane}
v_lshl_add_u32 v{t0}, v{t1}, 3, v{t0}
s_and_b32 s{sT0}, s{sh}, 1
s_lshl_b32 s{sT0}, s{sT0}, 3
s_add_u32 s{sT0}, s{sT0}, {WR}
v_add_u32 v{vWr}, s{sT0}, v{t0}""")

F(f"""s_mov_b32 s{sWO+2}, {448*896}
s_mov_b32 s{sWO+3}, 0x20000
s_mov_b32 s{sWS}, s24
s_mov_b32 s{sWS+1}, s25
s_mov_b32 s{sWS+2}, {WS_BYTES}
s_mov_b32 s{sWS+3}, 0x20000
s_mov_b32 s{sOUT}, s20
s_mov_b32 s{sOUT+1}, s21
s_mov_b32 s{sOUT+2}, {2048*1792}
s_mov_b32 s{sOUT+3}, 0x20000
s_mov_b32 s{sLo}, -1
s_mov_b32 s{sLo+1}, 0
s_mov_b32 s{sVk}, 0x0fffffff
s_mov_b32 s{sVk+1}, 0x0fffffff
s_mov_b32 s{sCs}, {hex(f2u(CSCALE))}
s_mov_b32 s{sCs+1}, {hex(f2u(CSCALE))}
s_lshl_b32 s{sKV}, s{sHH}, 18
s_add_u32 s{sKV}, s{sKV}, {KV_OFF}
s_lshl_b32 s{sKVo}, s{sj}, 15
s_add_u32 s{sKVo}, s{sKVo}, s{sKV}
s_add_u32 s{sKVo}, s{sKVo}, s{sMX}
s_lshl_b32 s{sFl}, s{sHH}, 3
s_add_u32 s{sFl}, s{sFl}, s{sw}
s_lshl_b32 s{sFl}, s{sFl}, 7""")
F(f"""s_and_b32 s{sT0}, s{sw}, 3
s_lshl_b32 s{sT0}, s{sT0}, 1
s_lshl_b32 s{sT1}, s{sb}, 3
s_add_u32 s{sT1}, s{sT1}, s{sj}
s_lshl_b32 s{sT1}, s{sT1}, 3
s_add_u32 s{sT0}, s{sT0}, s{sT1}
s_lshl_b32 s{sT0}, s{sT0}, 4
s_add_u32 s{sT0}, s{sT0}, s{sh}
s_lshl_b32 s{sOp}, s{sT0}, 11
s_add_u32 s{sOp}, s{sOp}, {O_OFF}
s_lshl_b32 s{sOt}, s{sKap}, 15
s_add_u32 s{sOt}, s{sOt}, s{sOp}
s_and_b32 s{sWoff}, s{sh}, 3
s_mul_i32 s{sWoff}, s{sWoff}, 224""")
F(f"""s_lshr_b32 s{sT0}, s{sh}, 2
s_bfe_u32 s{sT2}, s{sw}, 0x10001
s_lshl_b32 s{sPc}, s{sT2}, 2
s_add_u32 s{sPc}, s{sPc}, s{sT0}
s_lshl_b32 s{sPc}, s{sPc}, 7
s_lshl_b32 s{sT3}, s{sb}, 14
s_add_u32 s{sPc}, s{sPc}, s{sT3}
s_lshl_b32 s{sT3}, s{sj}, 3
s_add_u32 s{sPc}, s{sPc}, s{sT3}
s_lshl_b32 s{sT3}, s{sT0}, 1
s_add_u32 s{sT3}, s{sT3}, s{sT2}
s_add_u32 s{sT3}, s{sT3}, s{sT1}
s_lshl_b32 s{sOin}, s{sT3}, 15
s_add_u32 s{sOin}, s{sOin}, {O_OFF}
s_and_b32 s{sT3}, s{sw}, 1
s_lshl_b32 s{sT3}, s{sT3}, 8
s_add_u32 s{sOin}, s{sOin}, s{sT3}""")
F(f"""s_lshl_b32 s{sT1}, s{sj}, 2
s_add_u32 s{sT0}, s{sT0}, s{sT1}
s_lshl_b32 s{sT0}, s{sT0}, 2
s_and_b32 s{sT1}, s{sw}, 3
s_add_u32 s{sT0}, s{sT0}, s{sT1}
s_mul_i32 s{sOut}, s{sT0}, {16*1792}
s_mul_i32 s{sT1}, s{sb}, 896
s_add_u32 s{sOut}, s{sOut}, s{sT1}
s_add_u32 s{sOut}, s{sOut}, s{sWoff}
v_mov_b32 v{vIdx}, 0xdddddddd""")
F(f"""v_and_b32 v{t0}, 0x33, v{vLane}
v_bfe_u32 v{t1}, v{vLane}, 2, 1
v_lshl_add_u32 v{t0}, v{t1}, 3, v{t0}
v_bfe_u32 v{t1}, v{vLane}, 3, 1
v_lshl_add_u32 v{t0}, v{t1}, 2, v{t0}
v_lshlrev_b32 v{vKa}, 4, v{t0}
s_add_u32 s{sT0}, s{sMX}, 32768
v_add_u32 v{vKl}, s{sT0}, v{vKa}
v_add_u32 v{vVl}, s{sT0}, v{vL16}
s_lshl_b32 s{sT0}, s{sw}, 11
s_add_u32 s{sT0}, s{sT0}, {QOFF}
v_add_u32 v{vQw}, s{sT0}, v{vL16}
s_and_b32 s{sT1}, s{sw}, 3
s_lshl_b32 s{sT2}, s{sT1}, 12
s_add_u32 s{sT2}, s{sT2}, {QOFF}
v_add_u32 v{vQr}, s{sT2}, v{vL16}
s_lshl_b32 s{sT0}, s{sKap}, 14
v_add_u32 v{vBase}, s{sT0}, v{vL16}
v_add_u32 v{vCur}, 0x10000, v{vBase}
s_add_u32 s{sT0}, s{sT1}, 5
s_lshl_b32 s{sT0}, s{sT0}, 13
s_and_b32 s{sT0}, s{sT0}, 0xffff
v_add_u32 v{vRw}, s{sT0}, v{vL16}
s_lshl_b32 s{sT0}, s{sT1}, 2
s_add_u32 s{sT0}, s{sT0}, {MISC+128}
v_mov_b32 v{vMf}, s{sT0}
v_lshrrev_b32 v{t1}, 3, v{vLane}
v_lshlrev_b32 v{t0}, 2, v{t1}
v_add_u32 v{vQa}, {MISC}, v{t0}
v_and_b32 v{t2}, 7, v{vLane}
v_lshlrev_b32 v{vPl}, 3, v{t2}
s_lshl_b32 s{sT0}, s{sT1}, 11
s_add_u32 s{sT0}, s{sT0}, {OT}
v_xor_b32 v{t3}, v{t1}, v{t2}
v_lshlrev_b32 v{t3}, 4, v{t3}
v_lshl_add_u32 v{t3}, v{t1}, 7, v{t3}
v_add_u32 v{vTr}, s{sT0}, v{t3}
v_mul_u32_u24 v{t3}, 1792, v{t1}
v_lshl_add_u32 v{vOs}, v{t2}, 4, v{t3}
v_cmp_gt_u32 vcc, 6, v{t2}
v_add_u32 v{t3}, 128, v{vOs}
v_mov_b32 v{t4}, 0x40000000
v_cndmask_b32 v{vOs2}, v{t4}, v{t3}, vcc
v_and_b32 v{t0}, 15, v{vLane}
v_lshrrev_b32 v{t1}, 4, v{vLane}
v_lshrrev_b32 v{t3}, 1, v{t1}
v_xor_b32 v{t3}, v{t3}, v{t2}
v_lshlrev_b32 v{t3}, 4, v{t3}
v_lshl_add_u32 v{t3}, v{t0}, 7, v{t3}
v_and_b32 v{t4}, 1, v{t1}
v_lshl_add_u32 v{t3}, v{t4}, 3, v{t3}
v_add_u32 v{vTw}, s{sT0}, v{t3}
v_lshlrev_b32 v{vPc}, 10, v{t0}
v_lshlrev_b32 v{t2}, 11, v{t0}
v_add_u32 v{vLp}, {3*512+15*16}, v{t2}
v_lshlrev_b32 v{t2}, 9, v{t1}
v_lshl_add_u32 v{vOa}, v{t0}, 4, v{t2}""")
F(f"""v_lshrrev_b32 v{t2}, 1, v{t1}
v_lshlrev_b32 v{t2}, 4, v{t2}
v_lshl_add_u32 v{t2}, v{t4}, 2, v{t2}
v_bfe_u32 v{t3}, v{vLane}, 2, 2
v_add_u32 v{t2}, v{t2}, v{t3}
v_mul_u32_u24 v{t2}, 224, v{t2}
v_and_b32 v{t3}, 3, v{vLane}
v_lshl_add_u32 v{t2}, v{t3}, 3, v{t2}
v_cmp_eq_u32 vcc, 3, v{t1}
v_mov_b32 v{t3}, {8*224}
v_mov_b32 v{t4}, {4*224}
v_cndmask_b32 v{t3}, v{t3}, v{t4}, vcc
v_add_u32 v{t3}, v{t2}, v{t3}
v_add_u32 v{vW0}, {WOB}, v{t2}
v_add_u32 v{vW1}, {WOB}, v{t3}
v_add_u32 v{vW0b}, {WOB+8*6272}, v{t2}
v_add_u32 v{vW1b}, {WOB+8*6272}, v{t3}
v_add_u32 v{vW0c}, {WO15}, v{t2}
v_add_u32 v{vW1c}, {WO15}, v{t3}""")
F(f"""v_mul_u32_u24 v{t2}, 0x4925, v{vLane}
v_lshrrev_b32 v{t2}, 18, v{t2}
v_mul_u32_u24 v{t3}, 14, v{t2}
v_sub_u32 v{t3}, v{vLane}, v{t3}
v_mul_u32_u24 v{t2}, 896, v{t2}
v_lshl_add_u32 v{vWod}, v{t3}, 4, v{t2}
s_mov_b32 s{sDone}, 0
s_lshl_b32 s{sRel}, s{sj}, 15
s_add_u32 s{sRel}, s{sRel}, s{sMX}
s_mul_i32 s{sWn}, s{sw}, 3584
s_add_u32 s{sWn}, s{sWn}, s{sWoff}
s_mul_i32 s{sWm}, s{sw}, 896
s_add_u32 s{sWm13}, s{sWm}, {WO15-896}
s_max_u32 s{sT0}, s{sw}, 1
s_sub_u32 s{sT0}, s{sT0}, s{sw}
s_mul_i32 s{sT0}, s{sT0}, {WOB+104*896-(WO15-896)}
s_add_u32 s{sWm13}, s{sWm13}, s{sT0}
s_mul_i32 s{stag}, s{sE}, 0x9e3779b1
s_add_u32 s{stag}, s{stag}, 0x7f4a7c15""")
for r in range(4):
    F(f"v_mov_b32 v{pq+r}, -1")
for q in range(2):
    for r in range(16):
        F(f"v_mov_b32 v{O[q]+r}, 0")


def clear_o():
    A(f"""buffer_store_dwordx4 {v(pq,4)}, v{vL16}, s[{sWS}:{sWS+3}], s{sOt} offen sc1
    buffer_store_dwordx4 {v(pq,4)}, v{vL16}, s[{sWS}:{sWS+3}], s{sOt} offen offset:1024 sc1""")


accQ, accK, accV = V(16), V(16), V(16)
Xf = [V(4) for _ in range(3)]
Wf = [[V(4) for _ in range(3)] for _ in range(3)]
pv = V(8)


def p1_reads(g):
    c, st = divmod(g, 4)
    slot = c % 3
    b = g % 3
    if XPOS[slot] >= 65536:
        A(f"ds_read_b128 {v(Xf[b],4)}, v{vXb[st]} offset:{XPOS[slot]-65536}")
    else:
        A(f"ds_read_b128 {v(Xf[b],4)}, v{vXa[st]} offset:{XPOS[slot]}")
    for m in (1, 2, 0):
        for u in range(2):
            A(f"ds_read_b64_tr_b16 {v(Wf[b][m]+2*u,2)}, v{vWr} offset:{slot*12288+st*3072+m*512+u*256}")


def p1_mfma(g, dma, nd, nfill):
    b = g % 3
    cq, ck, cv = [("0" if g == 0 else v(x, 16)) for x in (accQ, accK, accV)]
    mm = [f"v_mfma_f32_32x32x16_bf16 {v(accK,16)}, {v(Wf[b][1],4)}, {v(Xf[b],4)}, {ck}",
          f"v_mfma_f32_32x32x16_bf16 {v(accV,16)}, {v(Xf[b],4)}, {v(Wf[b][2],4)}, {cv}",
          f"v_mfma_f32_32x32x16_bf16 {v(accQ,16)}, {v(Wf[b][0],4)}, {v(Xf[b],4)}, {cq}"]
    for i in range(3):
        A(mm[i])
        if dma and ((i == 0 and nd >= 1) or (i == 2 and nd >= 2) or (i == 1 and nd >= 3)):
            A(dma.pop(0))
        emit(LATE, nfill)


for p in chunk_pieces(0):
    A(p)
ts(1, 2)
ne = -(-len(EARLY) // 6)
for p in chunk_pieces(1):
    emit(EARLY, ne)
    A(p)
ts(2, 2)
NF = -(-len(LATE) // 54)
for c in range(7):
    A(f"s_waitcnt vmcnt({6 if c < 6 else 0}) lgkmcnt(0)")
    A("s_barrier")
    ts(5 + c, 2)
    if c == 0:
        ts(1)
    dma = chunk_pieces((c + 2) % 3) if c <= 4 else []
    if c == 6:
        clear_o()
    for st in range(4):
        g = 4 * c + st
        if st >= 2:
            A("s_waitcnt lgkmcnt(7)")
        p1_reads(g)
        if g >= 2:
            p1_mfma(g - 2, dma, [2, 2, 1, 1][st] if c else 3, NF)
    assert not dma
assert not LATE and not EARLY
A("s_waitcnt lgkmcnt(7)")
p1_mfma(26, [], 0, 0)
A("s_waitcnt lgkmcnt(0)")
p1_mfma(27, [], 0, 0)
ts(2)
ts(12, 2)

for r in range(8):
    A(f"v_cvt_pk_bf16_f32 v{pk+r}, v{accK+2*r}, v{accK+2*r+1}")
for r in (6, 7):
    A(f"v_cndmask_b32 v{pk+r}, 0, v{pk+r}, s[{sLo}:{sLo+1}]")
A(f"""buffer_store_dwordx4 {v(pk,4)}, v{vKa}, s[{sWS}:{sWS+3}], s{sKVo} offen sc1
buffer_store_dwordx4 {v(pk+4,4)}, v{vKa}, s[{sWS}:{sWS+3}], s{sKVo} offen offset:1024 sc1
ds_write_b128 v{vKl}, {v(pk,4)}
ds_write_b128 v{vKl}, {v(pk+4,4)} offset:1024""")
for r in range(8):
    A(f"v_cvt_pk_bf16_f32 v{pv+r}, v{accV+2*r}, v{accV+2*r+1}")
for r in range(8):
    A(f"v_cndmask_b32 v{pv+r}, v{vPad}, v{pv+r}, s[{sVk}:{sVk+1}]")
A(f"""buffer_store_dwordx4 {v(pv,4)}, v{vL16}, s[{sWS}:{sWS+3}], s{sKVo} offen offset:2048 sc1
buffer_store_dwordx4 {v(pv+4,4)}, v{vL16}, s[{sWS}:{sWS+3}], s{sKVo} offen offset:3072 sc1
ds_write_b128 v{vVl}, {v(pv,4)} offset:2048
ds_write_b128 v{vVl}, {v(pv+4,4)} offset:3072""")
for r in range(8):
    A(f"v_pk_mul_f32 {v(accQ+2*r,2)}, {v(accQ+2*r,2)}, s[{sCs}:{sCs+1}]")
for r in range(8):
    A(f"v_cvt_pk_bf16_f32 v{pq+r}, v{accQ+2*r}, v{accQ+2*r+1}")
for r in (6, 7):
    A(f"v_cndmask_b32 v{pq+r}, 0, v{pq+r}, s[{sLo}:{sLo+1}]")
A(f"""ds_write_b128 v{vQw}, {v(pq,4)}
ds_write_b128 v{vQw}, {v(pq+4,4)} offset:1024
s_waitcnt lgkmcnt(0)
s_barrier""")
ts(3)
ts(13, 2)

V.reset(m_ph)
Q = [V(8), V(8)]
S = [V(16) for _ in range(4)]
Kf = [V(8), V(8)]
Vf = [V(8), V(8)]

A(f"""ds_read_b128 {v(Q[0],4)}, v{vQr}
ds_read_b128 {v(Kf[0],4)}, v{vBase} offset:32768
ds_read_b128 {v(Q[0]+4,4)}, v{vQr} offset:1024
ds_read_b128 {v(Kf[0]+4,4)}, v{vBase} offset:33792
ds_read_b128 {v(Q[1],4)}, v{vQr} offset:2048
ds_read_b128 {v(Q[1]+4,4)}, v{vQr} offset:3072
ds_read_b128 {v(Kf[1],4)}, v{vBase} offset:36864
ds_read_b128 {v(Kf[1]+4,4)}, v{vBase} offset:37888
ds_read_b128 {v(Vf[0],4)}, v{vBase} offset:34816
ds_read_b128 {v(Vf[0]+4,4)}, v{vBase} offset:35840
v_dot2_f32_bf16 v{nq}, v{pq}, v{pq}, 0
v_dot2_f32_bf16 v{nk}, v{pk}, v{pk}, 0""")
for r in range(1, 8):
    A(f"v_dot2_f32_bf16 v{nq}, v{pq+r}, v{pq+r}, v{nq}")
    A(f"v_dot2_f32_bf16 v{nk}, v{pk+r}, v{pk+r}, v{nk}")
A(f"""s_waitcnt lgkmcnt(6)
v_mfma_f32_32x32x16_bf16 {v(S[0],16)}, {v(Kf[0],4)}, {v(Q[0],4)}, 0
v_mfma_f32_32x32x16_bf16 {v(S[0],16)}, {v(Kf[0]+4,4)}, {v(Q[0]+4,4)}, {v(S[0],16)}
s_nop 0
v_permlane32_swap_b32 v{nq}, v{nk}
v_add_f32 v{nq}, v{nq}, v{nk}""")
for sh_ in (1, 2, 4, 8):
    A(f"v_max_u32_dpp v{nq}, v{nq}, v{nq} row_shr:{sh_} row_mask:0xf bank_mask:0xf bound_ctrl:0")
A(f"""v_max_u32_dpp v{nq}, v{nq}, v{nq} row_bcast:15 row_mask:0xa bank_mask:0xf
s_lshl_b32 s{sT0}, s{sw}, 2
s_add_u32 s{sT0}, s{sT0}, {MISC}
v_mov_b32 v{t0}, s{sT0}
v_readlane_b32 s{sKmax}, v{nq}, 63
s_mov_b32 exec_lo, 0x80000000
s_mov_b32 exec_hi, 0
ds_write_b32 v{t0}, v{nq}
s_mov_b64 exec, -1
s_lshl_b32 s{sT0}, s{sj}, 3
v_mov_b32 v{vFl}, s{stag}
v_mov_b32 v{vFl+1}, s{sKmax}
v_mov_b32 v{t0}, s{sT0}
s_waitcnt lgkmcnt(0)""")


POS = [32768, 0, 65536]


def kv_addr(blk, t, off):
    p = POS[blk % 3] + t * 4096 + off
    return (vCur, p - 65536) if POS[blk % 3] >= 65536 else (vBase, p)


def kv_next(pos):
    return f"""s_add_u32 s{sRel}, s{sRel}, 0x8000
    s_and_b32 s{sRel}, s{sRel}, 0x3ffff
    s_add_u32 m0, s{sMX}, {pos}
    s_add_u32 s{sD0}, s{sRel}, s{sKV}"""


def kv_piece(i):
    return f"buffer_load_dwordx4 v{vL16}, s[{sWS}:{sWS+3}], s{sD0} offen offset:{1024*i} sc1 lds"


def wo_piece(r):
    m = f"s_mov_b32 m0, s{sWm13}" if r == 13 else f"s_add_u32 m0, s{sWm}, {WOB + 8*r*896}"
    return f"""{m}
    s_add_u32 s{sD1}, s{sWn}, {8*r*3584}
    buffer_load_dwordx4 v{vWod}, s[{sWO}:{sWO+3}], s{sD1} offen lds"""


EXTRA = {}
AFTER = {}


def extra(w_, sl, text):
    EXTRA.setdefault((w_, sl), []).append(text)


def window(W):
    blk, u = divmod(W, 8)
    un, up = u + 1, u - 1
    tn, qn = un // 2, un % 2
    tp, qp = up // 2, up % 2
    Sc, Sn, Sp = S[u % 4], S[un % 4], S[up % 4]
    Kn, Vp = Kf[tn % 2], Vf[tp % 2]
    m = [f"v_mfma_f32_32x32x16_bf16 {v(Sn,16)}, {v(Kn,4)}, {v(Q[qn],4)}, 0",
         f"v_mfma_f32_32x32x16_bf16 {v(Sn,16)}, {v(Kn+4,4)}, {v(Q[qn]+4,4)}, {v(Sn,16)}",
         f"v_smfmac_f32_32x32x32_bf16 {v(O[qp],16)}, {v(Vp,4)}, {v(Sp,8)}, v{vIdx}",
         f"v_smfmac_f32_32x32x32_bf16 {v(O[qp],16)}, {v(Vp+4,4)}, {v(Sp+8,8)}, v{vIdx}"]
    if W == 0:
        m[2] = m[3] = None
    if W == 63:
        m = [m[2], None, m[3], None]
    mem = [[], [], [], []]
    pre = [[], [], [], []]

    def rd(dst, T, off):
        a, o = kv_addr(blk + T // 4, T % 4, off)
        return f"ds_read_b128 {v(dst,4)}, v{a} offset:{o}"
    if u % 2 == 1:
        if not (u == 5 and blk > 0):
            A("s_waitcnt lgkmcnt(0)")
        tt = tn
        Kd, Vd = Kf[(tt + 1) % 2], Vf[tt % 2]
        rk = [rd(Kd, tt + 1, 0), rd(Kd + 4, tt + 1, 1024)]
        rv = [rd(Vd, tt, 2048), rd(Vd + 4, tt, 3072)]
        if W in (5, 61):
            mem[2].append(rv[0])
            mem[3].append(rv[1])
        elif W == 63:
            pass
        elif W == 7:
            A(rd(Kn, 4, 0))
            A(rd(Kn + 4, 4, 1024))
            m = [m[2], m[3], m[0], m[1]]
            mem[0] += [rk[0], rk[1]]
            mem[1] += [rv[0], rv[1]]
            pre[2].append("s_waitcnt lgkmcnt(4)")
        else:
            mem[0].append(rk[0])
            mem[1].append(rk[1])
            mem[2].append(rv[0])
            mem[3].append(rv[1])
    for q in range(4):
        for x in pre[q]:
            A(x)
        if m[q]:
            A(m[q])
        for x in mem[q] + EXTRA.get((W, q), []):
            A(x)
        for e in range(4):
            A(f"v_exp_f32 v{Sc+4*q+e}, v{Sc+4*q+e}")
    for hk in AFTER.get(W, []):
        hk()


def hook_flag():
    A(f"""s_waitcnt vmcnt(0)
    s_mov_b64 exec, 1
    buffer_store_dwordx2 {v(vFl,2)}, v{t0}, s[{sWS}:{sWS+3}], s{sFl} offen sc1
    s_mov_b64 exec, -1""")
    ts(4)


def poll_issue():
    A(f"buffer_load_dwordx2 {v(vFl,2)}, v{vPl}, s[{sWS}:{sWS+3}], s{sFl} offen sc1")


ntry = [0]


def hook_try():
    ntry[0] += 1
    A(f"""s_cmp_lg_u32 s{sDone}, 0
    s_cbranch_scc1 L_skip{ntry[0]}
    s_call_b64 s[{sRet}:{sRet+1}], L_try""")
    A.label(f"L_skip{ntry[0]}")


def hook_bar0():
    A(f"s_mov_b32 s{sSpin}, 0x40000")
    A.label("L_spin")
    A(f"""s_cmp_lg_u32 s{sDone}, 0
    s_cbranch_scc1 L_spun
    s_call_b64 s[{sRet}:{sRet+1}], L_try
    s_sub_u32 s{sSpin}, s{sSpin}, 1
    s_cbranch_scc0 L_spin""")
    A.label("L_spun")
    A("""s_waitcnt vmcnt(0)
    s_barrier""")
    ts(6)


def hook_check():
    A(f"""v_mul_f32 v{t1}, v{vFl+1}, v{vQm}
    s_mov_b32 s{sT0}, {hex(f2u(THR2))}
    v_cmp_nge_f32 vcc, s{sT0}, v{t1}
    s_cmp_eq_u64 vcc, 0
    s_cbranch_scc1 L_fast_ok
    v_mov_b32 v{t1}, 1
    ds_write_b32 v{vMi}, v{t1}""")
    A.label("L_fast_ok")


def mk_bar(n):
    def f():
        A(f"""s_waitcnt vmcnt({n}) lgkmcnt(0)
        s_barrier""")
    return f


def hook_pollc():
    A(f"""v_cmp_ne_u32 vcc, s{stag}, v{vQm}
    s_cmp_lg_u64 vcc, 0
    s_cbranch_scc1 L_pollc""")
    A.label("L_pollc_done")


fw, pw = OPT["flagw"], OPT["pollw"]
AFTER.setdefault(fw, []).append(hook_flag)
AFTER.setdefault(pw, []).append(poll_issue)
for u in range(pw + 1, 6):
    AFTER.setdefault(u, []).append(hook_try)
AFTER.setdefault(6, []).append(hook_bar0)
extra(8, 0, f"ds_read_b32 v{vQm}, v{vQa}")
AFTER.setdefault(9, []).append(hook_check)
extra(7, 2, kv_next(POS[2]) + "\n" + kv_piece(0))
extra(7, 3, kv_piece(1))
extra(8, 1, kv_piece(2))
extra(8, 3, kv_piece(3))
wo_early = list(range(5, 13))
for i in range(1, 8):
    nwo = 0
    if i >= 2 and wo_early:
        for sl in (0, 2):
            extra(8 * i + 2, sl, wo_piece(wo_early.pop(0)))
            nwo += 1
    AFTER.setdefault(8 * i + 4, []).append(mk_bar(nwo))
    if i <= 5:
        extra(8 * i + 6, 0, kv_next(POS[(i + 2) % 3]) + "\n" + kv_piece(0))
        extra(8 * i + 6, 2, kv_piece(1))
        extra(8 * i + 8, 0, kv_piece(2))
        extra(8 * i + 8, 2, kv_piece(3))
assert not wo_early
for k, r in enumerate([0, 1, 2, 3, 4, 13]):
    extra([54, 54, 55, 56, 56, 57][k], [0, 2, 1, 0, 2, 1][k], wo_piece(r))
extra(53, 1, f"buffer_load_dword v{vQm}, v{vPc}, s[{sWS}:{sWS+3}], s{sPc} offen sc1")
AFTER[60].append(hook_pollc)
for W in range(64):
    window(W)
A(f"""s_nop 0
v_smfmac_f32_32x32x32_bf16 {v(O[1],16)}, {v(Vf[1],4)}, {v(S[3],8)}, v{vIdx}
v_smfmac_f32_32x32x32_bf16 {v(O[1],16)}, {v(Vf[1]+4,4)}, {v(S[3]+8,8)}, v{vIdx}""")
ts(7)

A(f"""s_waitcnt lgkmcnt(0)
s_cmp_eq_u32 s{sKap}, 0
s_cbranch_scc1 L_p3
s_mov_b32 s{sSpin}, 0x400000""")
A.label("L_mwait")
A(f"""ds_read_b32 v{t2}, v{vMf}
ds_read_b32 v{t3}, v{vMi}
s_sub_u32 s{sSpin}, s{sSpin}, 1
s_cbranch_scc1 L_mgo
s_waitcnt lgkmcnt(0)
v_readfirstlane_b32 s{sT0}, v{t2}
s_cmp_eq_u32 s{sT0}, 0
s_cbranch_scc1 L_mwait""")
A.label("L_mgo")
R = S[0]
for i in range(8):
    A(f"ds_read_b128 {v(R+4*i,4)}, v{vRw} offset:{1024*i}")
A(f"""v_readfirstlane_b32 s{sT0}, v{t3}
s_cmp_lg_u32 s{sT0}, 0
s_cbranch_scc1 L_slow""")
for q in range(2):
    A(f"s_waitcnt lgkmcnt({4-4*q})")
    for r in range(0, 16, 2):
        A(f"v_pk_add_f32 {v(O[q]+r,2)}, {v(O[q]+r,2)}, {v(R+16*q+r,2)}")
A.label("L_norm")
rc = [vFl, Q[0]]
A(f"""v_mov_b32 v{t0}, v{O[0]+12}
v_mov_b32 v{rc[0]}, v{O[0]+12}
v_mov_b32 v{t1}, v{O[1]+12}
v_mov_b32 v{rc[1]}, v{O[1]+12}
s_add_u32 s{sT0}, s{sOp}, 32768
v_permlane32_swap_b32 v{t0}, v{rc[0]}
v_permlane32_swap_b32 v{t1}, v{rc[1]}
v_rcp_f32 v{rc[0]}, v{rc[0]}
v_rcp_f32 v{rc[1]}, v{rc[1]}""")
for q in range(2):
    po = [pk, pq][q]
    so = [sOp, sT0][q]
    for r in range(0, 16, 2):
        A(f"v_pk_mul_f32 {v(O[q]+r,2)}, {v(O[q]+r,2)}, {v(rc[q],2)} op_sel_hi:[1,0]")
    for r in range(8):
        A(f"v_cvt_pk_bf16_f32 v{po+r}, v{O[q]+2*r}, v{O[q]+2*r+1}")
    for r in (6, 7):
        A(f"v_cndmask_b32 v{po+r}, 0, v{po+r}, s[{sLo}:{sLo+1}]")
    for r in range(8):
        A(f"v_min_u32 v{po+r}, -2, v{po+r}")
    A(f"""buffer_store_dwordx4 {v(po,4)}, v{vL16}, s[{sWS}:{sWS+3}], s{so} offen sc1
    buffer_store_dwordx4 {v(po+4,4)}, v{vL16}, s[{sWS}:{sWS+3}], s{so} offen offset:1024 sc1""")
ts(8)
A("s_branch L_noep")

A.label("L_p3")
Of = S[0]
Wr_ = Kf[0]
acc = O[0]
vLr = vQm
assert Vf[1] == Kf[0] + 24 and S[3] == S[0] + 48 and O[1] == O[0] + 16


def light_poll():
    A(f"""s_mov_b64 exec, 0xffff
    buffer_load_dword v{vLr}, v{vLp}, s[{sWS}:{sWS+3}], s{sOin} offen sc1
    s_mov_b64 exec, -1""")


light_poll()
for i in range(8):
    A(f"ds_write_b128 v{vRw}, {v(O[0]+4*i,4)} offset:{1024*i}")
A(f"""v_mov_b32 v{t0}, 1
s_waitcnt lgkmcnt(0)
ds_write_b32 v{vMf}, v{t0}""")
for r in range(28):
    A(f"v_mov_b32 v{acc+r}, 0")
ts(8)


GROUPS = [[[0, 1, 2, 3], [4, 5, 6, 7], [8, 9, 10, 11], [12, 13, 14, 15]],
          [[0, 1, 3, 5], [7, 8, 10, 12], [14, 15, 2, 4], [6, 9, 11, 13]]][OPT["grp"]]


def o_loads(g):
    for k, hh in enumerate(GROUPS[g]):
        A(f"s_add_u32 s{sT0}, s{sOin}, {hh*2048}")
        A(f"buffer_load_dwordx4 {v(Of+16*g+4*k,4)}, v{vOa}, s[{sWS}:{sWS+3}], s{sT0} offen sc1")


def wo_read(g, i):
    hh, ct = GROUPS[g][i // 7], i % 7
    if hh == 15:
        a0, a1, off = vW0c, vW1c, 0
    elif hh >= 8:
        a0, a1, off = vW0b, vW1b, (hh - 8) * 6272
    else:
        a0, a1, off = vW0, vW1, hh * 6272
    d = Wr_ + 4 * (i % 8)
    A(f"ds_read_b64_tr_b16 {v(d,2)}, v{a0} offset:{off+32*ct}")
    A(f"ds_read_b64_tr_b16 {v(d+2,2)}, v{a1} offset:{off+32*ct}")


A(f"""s_mov_b32 s{sDone}, 0
s_mov_b32 s{sPend}, 0
s_mov_b32 s{sTodo}, 0
s_mov_b32 s{sSpin}, 0x40000""")
A.label("L_round")
A(f"""s_waitcnt vmcnt(0) lgkmcnt(0)
v_cmp_ne_u32 s[{sRdy}:{sRdy+1}], -1, v{vLr}""")
for g in range(4):
    b0 = Of + 16 * g
    A(f"""s_bitcmp0_b32 s{sPend}, {g}
    s_cbranch_scc1 L_chk{g}
    v_max3_u32 v{t0}, v{b0}, v{b0+1}, v{b0+2}""")
    for r in range(3, 15, 2):
        A(f"v_max3_u32 v{t0}, v{b0+r}, v{b0+r+1}, v{t0}")
    A(f"""v_max_u32 v{t0}, v{b0+15}, v{t0}
    v_cmp_eq_u32 vcc, -1, v{t0}
    s_cmp_lg_u64 vcc, 0
    s_cbranch_scc1 L_chk{g}
    s_bitset1_b32 s{sTodo}, {g}
    s_bitset1_b32 s{sDone}, {g}""")
    A.label(f"L_chk{g}")
A(f"""s_mov_b32 s{sPend}, 0
s_mov_b32 s{sI}, 4
s_xor_b32 s{sRem}, s{sDone}, 15
s_cbranch_scc0 L_issued
s_mov_b32 s{sI}, {OPT['per']}
s_bcnt1_i32_b32 s{sT0}, s{sRem}
s_cmp_le_u32 s{sT0}, {OPT['full']}
s_cselect_b32 s{sRdy}, -1, s{sRdy}""")
for g in range(4):
    mask = sum(1 << hh for hh in GROUPS[g])
    A(f"""s_bitcmp0_b32 s{sRem}, {g}
    s_cbranch_scc1 L_iss{g}
    s_andn2_b32 s{sT0}, {hex(mask)}, s{sRdy}
    s_cbranch_scc1 L_iss{g}
    s_bitset1_b32 s{sPend}, {g}""")
    o_loads(g)
    A.label(f"L_iss{g}")
light_poll()
A.label("L_issued")
for g in range(4):
    A(f"""s_bitcmp0_b32 s{sTodo}, {g}
    s_cbranch_scc1 L_prc{g}
    s_sub_u32 s{sI}, s{sI}, 1
    s_cbranch_scc1 L_round
    s_bitset0_b32 s{sTodo}, {g}""")
    for i in range(6):
        wo_read(g, i)
    for i in range(0, 28, 2):
        A(f"s_waitcnt lgkmcnt({2*(min(28, i+6) - (i+2))})")
        for k in (i, i + 1):
            ct = k % 7
            A(f"v_mfma_f32_16x16x32_bf16 {v(acc+4*ct,4)}, {v(Wr_+4*(k%8),4)}, {v(Of+16*g+4*(k//7),4)}, {v(acc+4*ct,4)}")
            if k + 6 < 28:
                wo_read(g, k + 6)
    A.label(f"L_prc{g}")
A(f"""s_sub_u32 s{sSpin}, s{sSpin}, 1
s_cbranch_scc1 L_rounds_done
s_cmp_lg_u32 s{sDone}, 15
s_cbranch_scc1 L_round""")
A.label("L_rounds_done")
ts(9)
pk2 = Q[0]
rb = S[0]
A(f"s_add_u32 s{sT1}, s{sOut}, {8*1792}")
for ct in range(1, 4):
    A(f"v_xor_b32 v{vT[ct]}, {32*ct}, v{vTw}")
wa = [vTw, vT[1], vT[2], vT[3]]
for ps in range(2):
    for ct in range(4 * ps, min(7, 4 * ps + 4)):
        A(f"""v_cvt_pk_bf16_f32 v{pk2+2*ct}, v{acc+4*ct}, v{acc+4*ct+1}
        v_cvt_pk_bf16_f32 v{pk2+2*ct+1}, v{acc+4*ct+2}, v{acc+4*ct+3}
        ds_write_b64 v{wa[ct%4]}, {v(pk2+2*ct,2)}""")
    A(f"""ds_read_b128 {v(rb+8*ps,4)}, v{vTr}
    ds_read_b128 {v(rb+8*ps+4,4)}, v{vTr} offset:1024""")
A(f"""s_waitcnt lgkmcnt(5)
buffer_store_dwordx4 {v(rb,4)}, v{vOs}, s[{sOUT}:{sOUT+3}], s{sOut} offen
buffer_store_dwordx4 {v(rb+4,4)}, v{vOs}, s[{sOUT}:{sOUT+3}], s{sT1} offen
s_waitcnt lgkmcnt(0)
buffer_store_dwordx4 {v(rb+8,4)}, v{vOs2}, s[{sOUT}:{sOUT+3}], s{sOut} offen
buffer_store_dwordx4 {v(rb+12,4)}, v{vOs2}, s[{sOUT}:{sOUT+3}], s{sT1} offen""")
A(f"""s_or_b32 s{sT0}, s{sh}, s{sj}
s_or_b32 s{sT0}, s{sT0}, s{sw}
s_cmp_lg_u32 s{sT0}, 0
s_cbranch_scc1 L_noep
s_add_u32 s{sE}, s{sE}, 1
s_lshl_b32 s{sT0}, s{sb}, 8
s_add_u32 s{sT0}, s{sT0}, {EPOCH_OFF}
v_mov_b32 v{t0}, 0
v_mov_b32 v{t1}, s{sE}
s_mov_b64 exec, 1
buffer_store_dword v{t1}, v{t0}, s[{sWS}:{sWS+3}], s{sT0} offen sc1
s_mov_b64 exec, -1""")
A.label("L_noep")
if OPT["ts"]:
    A("s_waitcnt vmcnt(0)")
    ts(10)
    A(f"""s_lshl_b32 s{sT0}, s2, 3
    s_add_u32 s{sT0}, s{sT0}, s{sw}
    s_lshl_b32 s{sT0}, s{sT0}, 6
    s_add_u32 s{sT0}, s{sT0}, {TS_OFF}
    s_getreg_b32 s{sT1}, hwreg(HW_REG_XCC_ID)
    v_writelane_b32 v{vTS}, s{sT1}, 15
    v_lshlrev_b32 v{t0}, 2, v{vLane}
    s_mov_b64 exec, 0xffff
    buffer_store_dword v{vTS}, v{t0}, s[{sWS}:{sWS+3}], s{sT0} offen""")
A.label("L_end")
A("s_endpgm")

A.label("L_try")
A(f"""s_waitcnt vmcnt(0)
v_cmp_ne_u32 vcc, s{stag}, v{vFl}
s_cmp_eq_u64 vcc, 0
s_cbranch_scc1 L_ready""")
poll_issue()
A(f"s_setpc_b64 s[{sRet}:{sRet+1}]")
A.label("L_ready")
ts(5)
A(kv_next(POS[1]))
for i in range(4):
    A(kv_piece(i))
A(f"""s_mov_b32 s{sDone}, 1
s_setpc_b64 s[{sRet}:{sRet+1}]""")

A.label("L_pollc")
A(f"s_mov_b32 s{sSpin}, 0x40000")
A.label("L_pollc1")
A(f"""buffer_load_dword v{vQm}, v{vPc}, s[{sWS}:{sWS+3}], s{sPc} offen sc1
s_sub_u32 s{sSpin}, s{sSpin}, 1
s_cbranch_scc1 L_pollc_done
s_waitcnt vmcnt(0)
v_cmp_ne_u32 vcc, s{stag}, v{vQm}
s_cmp_lg_u64 vcc, 0
s_cbranch_scc1 L_pollc1
s_branch L_pollc_done""")

A.label("L_slow")
Sx, vMn, vAl = S[2], t2, t3
vM = [t4, t5]
A(f"""s_waitcnt lgkmcnt(0)
v_mov_b32 v{vM[0]}, 0xff7fffff
v_mov_b32 v{vM[1]}, 0xff7fffff
s_mov_b32 s{sT0}, s{sKV}
s_mov_b32 s{sI}, 0""")
for r in range(32):
    A(f"v_mov_b32 v{O[0]+r}, 0")
A.label("L_slow_t")
A(f"""buffer_load_dwordx4 {v(Kf[0],4)}, v{vL16}, s[{sWS}:{sWS+3}], s{sT0} offen sc1
buffer_load_dwordx4 {v(Kf[0]+4,4)}, v{vL16}, s[{sWS}:{sWS+3}], s{sT0} offen offset:1024 sc1
buffer_load_dwordx4 {v(Vf[0],4)}, v{vL16}, s[{sWS}:{sWS+3}], s{sT0} offen offset:2048 sc1
buffer_load_dwordx4 {v(Vf[0]+4,4)}, v{vL16}, s[{sWS}:{sWS+3}], s{sT0} offen offset:3072 sc1
s_add_u32 s{sT0}, s{sT0}, 4096
s_waitcnt vmcnt(0)""")
for q in range(2):
    A(f"""v_mfma_f32_32x32x16_bf16 {v(Sx,16)}, {v(Kf[0],4)}, {v(Q[q],4)}, 0
    v_mfma_f32_32x32x16_bf16 {v(Sx,16)}, {v(Kf[0]+4,4)}, {v(Q[q]+4,4)}, {v(Sx,16)}
    v_max3_f32 v{t0}, v{Sx}, v{Sx+1}, v{vM[q]}""")
    for r in range(2, 16, 2):
        A(f"v_max3_f32 v{t0}, v{Sx+r}, v{Sx+r+1}, v{t0}")
    A(f"""v_mov_b32 v{t1}, v{t0}
    v_permlane32_swap_b32 v{t0}, v{t1}
    v_max_f32 v{vMn}, v{t0}, v{t1}
    v_sub_f32 v{vAl}, v{vM[q]}, v{vMn}
    v_exp_f32 v{vAl}, v{vAl}
    v_mov_b32 v{vM[q]}, v{vMn}""")
    for r in range(16):
        A(f"v_sub_f32 v{Sx+r}, v{Sx+r}, v{vMn}")
    for r in range(16):
        A(f"v_exp_f32 v{Sx+r}, v{Sx+r}")
    for r in range(16):
        A(f"v_mul_f32 v{O[q]+r}, v{vAl}, v{O[q]+r}")
    A(f"""v_smfmac_f32_32x32x32_bf16 {v(O[q],16)}, {v(Vf[0],4)}, {v(Sx,8)}, v{vIdx}
    v_smfmac_f32_32x32x32_bf16 {v(O[q],16)}, {v(Vf[0]+4,4)}, {v(Sx+8,8)}, v{vIdx}""")
A(f"""s_add_u32 s{sI}, s{sI}, 1
s_cmp_lt_u32 s{sI}, 64
s_cbranch_scc1 L_slow_t
s_nop 11
s_branch L_norm""")

n = A.fix_hazards(verbose=bool(OPT.get("v", 0)))
NV = -(-V.hi // 8) * 8
hdr = open("cdna_kernels/" + NAME + ".s.ref").read().split("; Override launch")[0]
out = hdr + f"""; Fused kernel: QKV projection -> softmax attention -> output projection, one workgroup per
; (branch, head, 256-token block).  Generated by gen/gen.py.
; @launch grid=(256,1,1) block=(512,1,1) lds={LDS_BYTES}
.amdgcn_target "amdgcn-amd-amdhsa--gfx950"
.text
.globl {NAME}_kernel
.p2align 8
.type {NAME}_kernel,@function
""" + A.text().replace("CODE_SPAN", "L_slow-L_nopf") + f""".section .rodata,"a"
.p2align 6
.amdhsa_kernel {NAME}_kernel
  .amdhsa_next_free_vgpr {NV}
  .amdhsa_next_free_sgpr {NSGPR}
  .amdhsa_accum_offset {NV}
  .amdhsa_group_segment_fixed_size 0
  .amdhsa_kernarg_size 72
  .amdhsa_user_sgpr_count 2
  .amdhsa_user_sgpr_kernarg_segment_ptr 1
  .amdhsa_system_sgpr_workgroup_id_x 1
.end_amdhsa_kernel
"""
open(sys.argv[1], "w").write(out)
print(f"wrote {sys.argv[1]}: {len(A.lines)} lines, {n} nops inserted, {NV} vgprs", file=sys.stderr)
```

```python
import sys, struct, math
from asmlib import Asm, Alloc, v, s

NAME = "concat_heads__softmax_full_mha__softmax_full_mha__prompt"

OPT = dict(ts=0, force_slow=0, rot=2, map=1, ibar=1, pf=1, clr=0, flagw=0, pollw=1, full=1, grp=1, per=2)
for a in sys.argv[2:]:
    k, val = a.split("=")
    OPT[k] = int(val)

FLAG_OFF = 0
EPOCH_OFF = 0x10000
TS_OFF = 0x20000
KV_OFF = 0x100000
O_OFF = 0x900000
WS_BYTES = 0x1000000

XPOS = [65536, 0, 32768]
WR = 98304
QOFF = 135168
WOB = 66944
WO15 = 32768
MISC = 161280
OT = 16384
LDS_BYTES = 163840

CSCALE = math.log2(math.e) / math.sqrt(28.0)
THR2 = 30.0 * 30.0


def f2u(x):
    return struct.unpack("<I", struct.pack("<f", x))[0]


A = Asm()
sX, sW, sWS, sWO, sOUT = 28, 32, 36, 40, 44
sw, sb, sh, sj, stag, sE = 48, 49, 50, 51, 52, 53
sC, sXb, sWb, sMX, sMW = 54, 55, 56, 57, 58
sT0, sT1, sT2, sT3 = 60, 61, 62, 63
sLo = 64
sVk = 66
sKV = 68
sKmax, sQmax = 69, 70
sI, sRel, sWn, sHH = 71, 72, 73, 74
sWm, sWm13 = 26, 27
sSpin = 75
sOt = 76
sWoff = 77
sKap = 78
sFl = 79
sTS = 80
sRet = 82
sDone, sTodo = 84, 85
sOin = 86
sPc = 87
sOut = 88
sCs = 90
sKVo = 92
sD0, sD1 = 93, 94
sPend, sRem = 95, 96
sOp = 97
sRdy = 98
NSGPR = 100


def ts(idx, grp=1):
    if not OPT["ts"] or (idx != 0 and OPT["ts"] != grp):
        return
    A(f"""{"s_memtime" if OPT.get("clk") else "s_memrealtime"} s[{sTS}:{sTS+1}]
    s_waitcnt lgkmcnt(0)
    v_writelane_b32 v{vTS}, s{sTS}, {idx}""")


V = Alloc(1, 256)
vLane = V()
vTS = V()
vL16 = V()
vIdx = V()
vT = [V() for _ in range(6)]
t0, t1, t2, t3, t4, t5 = vT
vKa, vKl, vVl, vPad, vQw, vQr, vBase, vCur, vNxt, vWod, vQa, vPl, vPc = [V() for _ in range(13)]
vOa, vW0, vW1, vW0b, vW1b, vW0c, vW1c, vRw, vMf, vTw, vTr, vOs, vMi, vOs2, vLp = [V() for _ in range(15)]
vFl = V(2)
nq, nk, vQm = V(), V(), V()
O = [V(16), V(16)]
pk = V(8)
pq = V(8)
m_ph = V.mark()

A.label(NAME + "_kernel")
A(f"""s_cmp_ge_u32 s2, 256
s_cbranch_scc1 L_end
s_load_dwordx16 s[8:23], s[0:1], 0
s_load_dwordx2 s[24:25], s[0:1], 64
v_lshrrev_b32 v{t0}, 6, v0
v_and_b32 v{vLane}, 63, v0
v_readfirstlane_b32 s{sw}, v{t0}
v_lshlrev_b32 v{vL16}, 4, v{vLane}""")
if OPT["ts"]:
    A(f"v_mov_b32 v{vTS}, 0")
    ts(0)
if OPT["map"] == 1:
    A(f"""s_and_b32 s{sT0}, s2, 7
    s_lshr_b32 s{sT1}, s2, 3
    s_and_b32 s{sj}, s{sT1}, 7
    s_lshr_b32 s{sT1}, s{sT1}, 3
    s_lshl_b32 s{sT0}, s{sT0}, 2
    s_add_u32 s{sHH}, s{sT0}, s{sT1}""")
elif OPT["map"] == 2:
    A(f"""s_and_b32 s{sT0}, s2, 7
    s_lshr_b32 s{sT1}, s2, 3
    s_and_b32 s{sT2}, s{sT0}, 3
    s_lshl_b32 s{sT2}, s{sT2}, 1
    s_lshr_b32 s{sT3}, s{sT1}, 4
    s_add_u32 s{sj}, s{sT2}, s{sT3}
    s_lshr_b32 s{sT0}, s{sT0}, 2
    s_lshl_b32 s{sT0}, s{sT0}, 4
    s_and_b32 s{sT1}, s{sT1}, 15
    s_add_u32 s{sHH}, s{sT0}, s{sT1}""")
elif OPT["map"] == 3:
    A(f"""s_and_b32 s{sT0}, s2, 7
    s_lshr_b32 s{sT1}, s2, 3
    s_and_b32 s{sT2}, s{sT0}, 1
    s_lshl_b32 s{sT2}, s{sT2}, 2
    s_lshr_b32 s{sT3}, s{sT1}, 3
    s_add_u32 s{sj}, s{sT2}, s{sT3}
    s_lshr_b32 s{sT0}, s{sT0}, 1
    s_lshl_b32 s{sT0}, s{sT0}, 3
    s_and_b32 s{sT1}, s{sT1}, 7
    s_add_u32 s{sHH}, s{sT0}, s{sT1}""")
A(f"""s_lshr_b32 s{sb}, s{sHH}, 4
s_and_b32 s{sh}, s{sHH}, 15
s_lshr_b32 s{sKap}, s{sw}, 2""")
if OPT["pf"]:
    A(f"""s_lshr_b32 s{sT0}, s2, 3
    s_and_b32 s{sT0}, s{sT0}, 7
    s_cmp_lg_u32 s{sT0}, 0
    s_cbranch_scc1 L_nopf
    s_getpc_b64 s[{sRet}:{sRet+1}]
    v_lshlrev_b32 v{t1}, 6, v0
    v_min_u32 v{t1}, CODE_SPAN, v{t1}
    global_load_dword v{t5}, v{t1}, s[{sRet}:{sRet+1}]""")
    A.label("L_nopf")

vXd = [V() for _ in range(4)]
vWa, vWb = V(), V()
vXa = [V() for _ in range(4)]
vXb = [V() for _ in range(4)]
vWr = V()
A(f"""v_lshrrev_b32 v{t0}, 3, v{vLane}
v_mul_u32_u24 v{t0}, 896, v{t0}
v_lshrrev_b32 v{t1}, 4, v{vLane}
v_and_b32 v{t2}, 7, v{vLane}
v_xor_b32 v{t1}, v{t1}, v{t2}
v_lshl_add_u32 v{vXd[0]}, v{t1}, 4, v{t0}
v_xor_b32 v{t1}, 4, v{t1}
v_lshl_add_u32 v{t1}, v{t1}, 4, v{t0}
v_add_u32 v{vXd[1]}, {7168-1024}, v{t1}
v_add_u32 v{vXd[2]}, {14336-2048}, v{vXd[0]}
v_add_u32 v{vXd[3]}, {21504-3072}, v{t1}
v_bfe_u32 v{t0}, v{vLane}, 2, 3
v_mul_u32_u24 v{t0}, 2688, v{t0}
v_and_b32 v{t1}, 3, v{vLane}
v_lshl_add_u32 v{t0}, v{t1}, 4, v{t0}
v_lshrrev_b32 v{t2}, 5, v{vLane}
v_mul_u32_u24 v{t3}, 896, v{t2}
v_add_u32 v{vWa}, v{t0}, v{t3}
v_add_u32 v{vWb}, {1792-1024}, v{t0}""")
A(f"""s_lshl_b32 s{sT0}, s{sj}, 3
s_add_u32 s{sT0}, s{sT0}, s{sw}
s_mul_i32 s{sXb}, s{sT0}, {32*896}
s_mul_i32 s{sT1}, s{sh}, 56
s_and_b32 s{sT1}, s{sT1}, 0xfffffff0
s_mul_i32 s{sWb}, s{sw}, {8*2688}
s_add_u32 s{sWb}, s{sWb}, s{sT1}
s_lshl_b32 s{sMX}, s{sw}, 12
s_mul_i32 s{sMW}, s{sw}, 1536
s_add_u32 s{sMW}, s{sMW}, {WR}""")
if OPT["rot"] == 0:
    A(f"s_mov_b32 s{sC}, 0")
else:
    if OPT["rot"] == 1:
        A(f"s_add_u32 s{sC}, s{sh}, s{sj}")
    elif OPT["rot"] == 2:
        A(f"""s_mul_i32 s{sC}, s{sh}, 7
        s_lshr_b32 s{sC}, s{sC}, 4
        s_add_u32 s{sC}, s{sC}, s{sj}""")
    elif OPT["rot"] == 3:
        A(f"""s_mul_i32 s{sC}, s{sh}, 7
        s_lshr_b32 s{sC}, s{sC}, 4""")
    A(f"""s_mul_i32 s{sT1}, s{sC}, 37
    s_lshr_b32 s{sT1}, s{sT1}, 8
    s_mul_i32 s{sT1}, s{sT1}, 7
    s_sub_u32 s{sC}, s{sC}, s{sT1}""")
A(f"""s_waitcnt lgkmcnt(0)
s_cmp_eq_u32 s{sb}, 0
s_cselect_b32 s{sX}, s8, s14
s_cselect_b32 s{sX+1}, s9, s15
s_mov_b32 s{sX+2}, {2048*896}
s_mov_b32 s{sX+3}, 0x20000
s_cselect_b32 s{sW}, s10, s16
s_cselect_b32 s{sW+1}, s11, s17
s_mov_b32 s{sW+2}, {448*2688}
s_mov_b32 s{sW+3}, 0x20000
s_cselect_b32 s{sWO}, s12, s18
s_cselect_b32 s{sWO+1}, s13, s19""")


def chunk_pieces(slot):
    p = [f"""s_mul_i32 s{sD1}, s{sC}, {64*2688}
    s_add_u32 m0, s{sMW}, {slot*12288}
    s_add_u32 s{sD1}, s{sD1}, s{sWb}
    buffer_load_dwordx4 v{vWa}, s[{sW}:{sW+3}], s{sD1} offen lds""",
         f"""s_mov_b32 exec_hi, 0
    buffer_load_dwordx4 v{vWb}, s[{sW}:{sW+3}], s{sD1} offen offset:1024 lds
    s_mov_b32 exec_hi, -1""",
         f"""s_lshl_b32 s{sD0}, s{sC}, 7
    s_add_u32 m0, s{sMX}, {XPOS[slot]}
    s_add_u32 s{sD0}, s{sD0}, s{sXb}
    buffer_load_dwordx4 v{vXd[0]}, s[{sX}:{sX+3}], s{sD0} offen lds
    s_add_u32 s{sC}, s{sC}, 1
    s_cmp_eq_u32 s{sC}, 7
    s_cselect_b32 s{sC}, 0, s{sC}"""]
    for i in range(1, 4):
        p.append(f"buffer_load_dwordx4 v{vXd[i]}, s[{sX}:{sX+3}], s{sD0} offen offset:{1024*i} lds")
    return p


EARLY, LATE = [], []


def FE(text):
    EARLY.extend(x.strip() for x in text.split("\n") if x.strip())


def F(text):
    LATE.extend(x.strip() for x in text.split("\n") if x.strip())


def emit(lst, n):
    for _ in range(min(n, len(lst))):
        A(lst.pop(0))


FE(f"""s_lshl_b32 s{sT0}, s{sb}, 8
s_add_u32 s{sT0}, s{sT0}, {EPOCH_OFF}
s_load_dword s{sE}, s[24:25], s{sT0}""")
FE(f"""v_and_b32 v{t0}, 31, v{vLane}
v_bfe_u32 v{t1}, v{vLane}, 1, 3
v_xor_b32 v{t1}, v{t1}, v{t2}
v_cmp_eq_u32 vcc, 28, v{t0}
v_lshlrev_b32 v{t4}, 2, v{t0}
v_add_u32 v{vMi}, {MISC+64}, v{t4}
v_lshlrev_b32 v{t0}, 7, v{t0}
v_add_u32 v{t0}, s{sMX}, v{t0}
v_mov_b32 v{t4}, 0x3f803f80
v_cndmask_b32 v{vPad}, 0, v{t4}, vcc
v_mov_b32 v{t4}, 0
ds_write_b32 v{vMi}, v{t4}
v_mov_b32 v{vMi}, {MISC+64}""")
if OPT["force_slow"]:
    FE(f"""v_mov_b32 v{t4}, 1
    ds_write_b32 v{vMi}, v{t4}""")
for sst in range(4):
    FE(f"""v_xor_b32 v{t3}, {2*sst}, v{t1}
    v_lshl_add_u32 v{vXa[sst]}, v{t3}, 4, v{t0}
    v_add_u32 v{vXb[sst]}, 0x10000, v{vXa[sst]}""")
FE(f"""v_mul_u32_u24 v{t0}, 1536, v{t2}
v_bfe_u32 v{t1}, v{vLane}, 2, 2
v_lshl_add_u32 v{t0}, v{t1}, 6, v{t0}
v_bfe_u32 v{t1}, v{vLane}, 4, 1
v_lshl_add_u32 v{t0}, v{t1}, 5, v{t0}
v_and_b32 v{t1}, 3, v{vLane}
v_lshl_add_u32 v{t0}, v{t1}, 3, v{t0}
s_and_b32 s{sT0}, s{sh}, 1
s_lshl_b32 s{sT0}, s{sT0}, 3
s_add_u32 s{sT0}, s{sT0}, {WR}
v_add_u32 v{vWr}, s{sT0}, v{t0}""")

F(f"""s_mov_b32 s{sWO+2}, {448*896}
s_mov_b32 s{sWO+3}, 0x20000
s_mov_b32 s{sWS}, s24
s_mov_b32 s{sWS+1}, s25
s_mov_b32 s{sWS+2}, {WS_BYTES}
s_mov_b32 s{sWS+3}, 0x20000
s_mov_b32 s{sOUT}, s20
s_mov_b32 s{sOUT+1}, s21
s_mov_b32 s{sOUT+2}, {2048*1792}
s_mov_b32 s{sOUT+3}, 0x20000
s_mov_b32 s{sLo}, -1
s_mov_b32 s{sLo+1}, 0
s_mov_b32 s{sVk}, 0x0fffffff
s_mov_b32 s{sVk+1}, 0x0fffffff
s_mov_b32 s{sCs}, {hex(f2u(CSCALE))}
s_mov_b32 s{sCs+1}, {hex(f2u(CSCALE))}
s_lshl_b32 s{sKV}, s{sHH}, 18
s_add_u32 s{sKV}, s{sKV}, {KV_OFF}
s_lshl_b32 s{sKVo}, s{sj}, 15
s_add_u32 s{sKVo}, s{sKVo}, s{sKV}
s_add_u32 s{sKVo}, s{sKVo}, s{sMX}
s_lshl_b32 s{sFl}, s{sHH}, 3
s_add_u32 s{sFl}, s{sFl}, s{sw}
s_lshl_b32 s{sFl}, s{sFl}, 7""")
F(f"""s_and_b32 s{sT0}, s{sw}, 3
s_lshl_b32 s{sT0}, s{sT0}, 1
s_lshl_b32 s{sT1}, s{sb}, 3
s_add_u32 s{sT1}, s{sT1}, s{sj}
s_lshl_b32 s{sT1}, s{sT1}, 3
s_add_u32 s{sT0}, s{sT0}, s{sT1}
s_lshl_b32 s{sT0}, s{sT0}, 4
s_add_u32 s{sT0}, s{sT0}, s{sh}
s_lshl_b32 s{sOp}, s{sT0}, 11
s_add_u32 s{sOp}, s{sOp}, {O_OFF}
s_lshl_b32 s{sOt}, s{sKap}, 15
s_add_u32 s{sOt}, s{sOt}, s{sOp}
s_and_b32 s{sWoff}, s{sh}, 3
s_mul_i32 s{sWoff}, s{sWoff}, 224""")
F(f"""s_lshr_b32 s{sT0}, s{sh}, 2
s_bfe_u32 s{sT2}, s{sw}, 0x10001
s_lshl_b32 s{sPc}, s{sT2}, 2
s_add_u32 s{sPc}, s{sPc}, s{sT0}
s_lshl_b32 s{sPc}, s{sPc}, 7
s_lshl_b32 s{sT3}, s{sb}, 14
s_add_u32 s{sPc}, s{sPc}, s{sT3}
s_lshl_b32 s{sT3}, s{sj}, 3
s_add_u32 s{sPc}, s{sPc}, s{sT3}
s_lshl_b32 s{sT3}, s{sT0}, 1
s_add_u32 s{sT3}, s{sT3}, s{sT2}
s_add_u32 s{sT3}, s{sT3}, s{sT1}
s_lshl_b32 s{sOin}, s{sT3}, 15
s_add_u32 s{sOin}, s{sOin}, {O_OFF}
s_and_b32 s{sT3}, s{sw}, 1
s_lshl_b32 s{sT3}, s{sT3}, 8
s_add_u32 s{sOin}, s{sOin}, s{sT3}""")
F(f"""s_lshl_b32 s{sT1}, s{sj}, 2
s_add_u32 s{sT0}, s{sT0}, s{sT1}
s_lshl_b32 s{sT0}, s{sT0}, 2
s_and_b32 s{sT1}, s{sw}, 3
s_add_u32 s{sT0}, s{sT0}, s{sT1}
s_mul_i32 s{sOut}, s{sT0}, {16*1792}
s_mul_i32 s{sT1}, s{sb}, 896
s_add_u32 s{sOut}, s{sOut}, s{sT1}
s_add_u32 s{sOut}, s{sOut}, s{sWoff}
v_mov_b32 v{vIdx}, 0xdddddddd""")
F(f"""v_and_b32 v{t0}, 0x33, v{vLane}
v_bfe_u32 v{t1}, v{vLane}, 2, 1
v_lshl_add_u32 v{t0}, v{t1}, 3, v{t0}
v_bfe_u32 v{t1}, v{vLane}, 3, 1
v_lshl_add_u32 v{t0}, v{t1}, 2, v{t0}
v_lshlrev_b32 v{vKa}, 4, v{t0}
s_add_u32 s{sT0}, s{sMX}, 32768
v_add_u32 v{vKl}, s{sT0}, v{vKa}
v_add_u32 v{vVl}, s{sT0}, v{vL16}
s_lshl_b32 s{sT0}, s{sw}, 11
s_add_u32 s{sT0}, s{sT0}, {QOFF}
v_add_u32 v{vQw}, s{sT0}, v{vL16}
s_and_b32 s{sT1}, s{sw}, 3
s_lshl_b32 s{sT2}, s{sT1}, 12
s_add_u32 s{sT2}, s{sT2}, {QOFF}
v_add_u32 v{vQr}, s{sT2}, v{vL16}
s_lshl_b32 s{sT0}, s{sKap}, 14
v_add_u32 v{vBase}, s{sT0}, v{vL16}
v_add_u32 v{vCur}, 0x10000, v{vBase}
s_add_u32 s{sT0}, s{sT1}, 5
s_lshl_b32 s{sT0}, s{sT0}, 13
s_and_b32 s{sT0}, s{sT0}, 0xffff
v_add_u32 v{vRw}, s{sT0}, v{vL16}
s_lshl_b32 s{sT0}, s{sT1}, 2
s_add_u32 s{sT0}, s{sT0}, {MISC+128}
v_mov_b32 v{vMf}, s{sT0}
v_lshrrev_b32 v{t1}, 3, v{vLane}
v_lshlrev_b32 v{t0}, 2, v{t1}
v_add_u32 v{vQa}, {MISC}, v{t0}
v_and_b32 v{t2}, 7, v{vLane}
v_lshlrev_b32 v{vPl}, 3, v{t2}
s_lshl_b32 s{sT0}, s{sT1}, 11
s_add_u32 s{sT0}, s{sT0}, {OT}
v_xor_b32 v{t3}, v{t1}, v{t2}
v_lshlrev_b32 v{t3}, 4, v{t3}
v_lshl_add_u32 v{t3}, v{t1}, 7, v{t3}
v_add_u32 v{vTr}, s{sT0}, v{t3}
v_mul_u32_u24 v{t3}, 1792, v{t1}
v_lshl_add_u32 v{vOs}, v{t2}, 4, v{t3}
v_cmp_gt_u32 vcc, 6, v{t2}
v_add_u32 v{t3}, 128, v{vOs}
v_mov_b32 v{t4}, 0x40000000
v_cndmask_b32 v{vOs2}, v{t4}, v{t3}, vcc
v_and_b32 v{t0}, 15, v{vLane}
v_lshrrev_b32 v{t1}, 4, v{vLane}
v_lshrrev_b32 v{t3}, 1, v{t1}
v_xor_b32 v{t3}, v{t3}, v{t2}
v_lshlrev_b32 v{t3}, 4, v{t3}
v_lshl_add_u32 v{t3}, v{t0}, 7, v{t3}
v_and_b32 v{t4}, 1, v{t1}
v_lshl_add_u32 v{t3}, v{t4}, 3, v{t3}
v_add_u32 v{vTw}, s{sT0}, v{t3}
v_lshlrev_b32 v{vPc}, 10, v{t0}
v_lshlrev_b32 v{t2}, 11, v{t0}
v_add_u32 v{vLp}, {3*512+15*16}, v{t2}
v_lshlrev_b32 v{t2}, 9, v{t1}
v_lshl_add_u32 v{vOa}, v{t0}, 4, v{t2}""")
F(f"""v_lshrrev_b32 v{t2}, 1, v{t1}
v_lshlrev_b32 v{t2}, 4, v{t2}
v_lshl_add_u32 v{t2}, v{t4}, 2, v{t2}
v_bfe_u32 v{t3}, v{vLane}, 2, 2
v_add_u32 v{t2}, v{t2}, v{t3}
v_mul_u32_u24 v{t2}, 224, v{t2}
v_and_b32 v{t3}, 3, v{vLane}
v_lshl_add_u32 v{t2}, v{t3}, 3, v{t2}
v_cmp_eq_u32 vcc, 3, v{t1}
v_mov_b32 v{t3}, {8*224}
v_mov_b32 v{t4}, {4*224}
v_cndmask_b32 v{t3}, v{t3}, v{t4}, vcc
v_add_u32 v{t3}, v{t2}, v{t3}
v_add_u32 v{vW0}, {WOB}, v{t2}
v_add_u32 v{vW1}, {WOB}, v{t3}
v_add_u32 v{vW0b}, {WOB+8*6272}, v{t2}
v_add_u32 v{vW1b}, {WOB+8*6272}, v{t3}
v_add_u32 v{vW0c}, {WO15}, v{t2}
v_add_u32 v{vW1c}, {WO15}, v{t3}""")
F(f"""v_mul_u32_u24 v{t2}, 0x4925, v{vLane}
v_lshrrev_b32 v{t2}, 18, v{t2}
v_mul_u32_u24 v{t3}, 14, v{t2}
v_sub_u32 v{t3}, v{vLane}, v{t3}
v_mul_u32_u24 v{t2}, 896, v{t2}
v_lshl_add_u32 v{vWod}, v{t3}, 4, v{t2}
s_mov_b32 s{sDone}, 0
s_lshl_b32 s{sRel}, s{sj}, 15
s_add_u32 s{sRel}, s{sRel}, s{sMX}
s_mul_i32 s{sWn}, s{sw}, 3584
s_add_u32 s{sWn}, s{sWn}, s{sWoff}
s_mul_i32 s{sWm}, s{sw}, 896
s_add_u32 s{sWm13}, s{sWm}, {WO15-896}
s_max_u32 s{sT0}, s{sw}, 1
s_sub_u32 s{sT0}, s{sT0}, s{sw}
s_mul_i32 s{sT0}, s{sT0}, {WOB+104*896-(WO15-896)}
s_add_u32 s{sWm13}, s{sWm13}, s{sT0}
s_mul_i32 s{stag}, s{sE}, 0x9e3779b1
s_add_u32 s{stag}, s{stag}, 0x7f4a7c15""")
for r in range(4):
    F(f"v_mov_b32 v{pq+r}, -1")
for q in range(2):
    for r in range(16):
        F(f"v_mov_b32 v{O[q]+r}, 0")


def clear_o():
    A(f"""buffer_store_dwordx4 {v(pq,4)}, v{vL16}, s[{sWS}:{sWS+3}], s{sOt} offen sc1
    buffer_store_dwordx4 {v(pq,4)}, v{vL16}, s[{sWS}:{sWS+3}], s{sOt} offen offset:1024 sc1""")


accQ, accK, accV = V(16), V(16), V(16)
Xf = [V(4) for _ in range(3)]
Wf = [[V(4) for _ in range(3)] for _ in range(3)]
pv = V(8)


def p1_reads(g):
    c, st = divmod(g, 4)
    slot = c % 3
    b = g % 3
    if XPOS[slot] >= 65536:
        A(f"ds_read_b128 {v(Xf[b],4)}, v{vXb[st]} offset:{XPOS[slot]-65536}")
    else:
        A(f"ds_read_b128 {v(Xf[b],4)}, v{vXa[st]} offset:{XPOS[slot]}")
    for m in (1, 2, 0):
        for u in range(2):
            A(f"ds_read_b64_tr_b16 {v(Wf[b][m]+2*u,2)}, v{vWr} offset:{slot*12288+st*3072+m*512+u*256}")


def p1_mfma(g, dma, nd, nfill):
    b = g % 3
    cq, ck, cv = [("0" if g == 0 else v(x, 16)) for x in (accQ, accK, accV)]
    mm = [f"v_mfma_f32_32x32x16_bf16 {v(accK,16)}, {v(Wf[b][1],4)}, {v(Xf[b],4)}, {ck}",
          f"v_mfma_f32_32x32x16_bf16 {v(accV,16)}, {v(Xf[b],4)}, {v(Wf[b][2],4)}, {cv}",
          f"v_mfma_f32_32x32x16_bf16 {v(accQ,16)}, {v(Wf[b][0],4)}, {v(Xf[b],4)}, {cq}"]
    for i in range(3):
        A(mm[i])
        if dma and ((i == 0 and nd >= 1) or (i == 2 and nd >= 2) or (i == 1 and nd >= 3)):
            A(dma.pop(0))
        emit(LATE, nfill)


for p in chunk_pieces(0):
    A(p)
ts(1, 2)
ne = -(-len(EARLY) // 6)
for p in chunk_pieces(1):
    emit(EARLY, ne)
    A(p)
ts(2, 2)
NF = -(-len(LATE) // 54)
for c in range(7):
    A(f"s_waitcnt vmcnt({6 if c < 6 else 0}) lgkmcnt(0)")
    A("s_barrier")
    ts(5 + c, 2)
    if c == 0:
        ts(1)
    dma = chunk_pieces((c + 2) % 3) if c <= 4 else []
    if c == 6:
        clear_o()
    for st in range(4):
        g = 4 * c + st
        if st >= 2:
            A("s_waitcnt lgkmcnt(7)")
        p1_reads(g)
        if g >= 2:
            p1_mfma(g - 2, dma, [2, 2, 1, 1][st] if c else 3, NF)
    assert not dma
assert not LATE and not EARLY
A("s_waitcnt lgkmcnt(7)")
p1_mfma(26, [], 0, 0)
A("s_waitcnt lgkmcnt(0)")
p1_mfma(27, [], 0, 0)
ts(2)
ts(12, 2)

for r in range(8):
    A(f"v_cvt_pk_bf16_f32 v{pk+r}, v{accK+2*r}, v{accK+2*r+1}")
for r in (6, 7):
    A(f"v_cndmask_b32 v{pk+r}, 0, v{pk+r}, s[{sLo}:{sLo+1}]")
A(f"""buffer_store_dwordx4 {v(pk,4)}, v{vKa}, s[{sWS}:{sWS+3}], s{sKVo} offen sc1
buffer_store_dwordx4 {v(pk+4,4)}, v{vKa}, s[{sWS}:{sWS+3}], s{sKVo} offen offset:1024 sc1
ds_write_b128 v{vKl}, {v(pk,4)}
ds_write_b128 v{vKl}, {v(pk+4,4)} offset:1024""")
for r in range(8):
    A(f"v_cvt_pk_bf16_f32 v{pv+r}, v{accV+2*r}, v{accV+2*r+1}")
for r in range(8):
    A(f"v_cndmask_b32 v{pv+r}, v{vPad}, v{pv+r}, s[{sVk}:{sVk+1}]")
A(f"""buffer_store_dwordx4 {v(pv,4)}, v{vL16}, s[{sWS}:{sWS+3}], s{sKVo} offen offset:2048 sc1
buffer_store_dwordx4 {v(pv+4,4)}, v{vL16}, s[{sWS}:{sWS+3}], s{sKVo} offen offset:3072 sc1
ds_write_b128 v{vVl}, {v(pv,4)} offset:2048
ds_write_b128 v{vVl}, {v(pv+4,4)} offset:3072""")
for r in range(8):
    A(f"v_pk_mul_f32 {v(accQ+2*r,2)}, {v(accQ+2*r,2)}, s[{sCs}:{sCs+1}]")
for r in range(8):
    A(f"v_cvt_pk_bf16_f32 v{pq+r}, v{accQ+2*r}, v{accQ+2*r+1}")
for r in (6, 7):
    A(f"v_cndmask_b32 v{pq+r}, 0, v{pq+r}, s[{sLo}:{sLo+1}]")
A(f"""ds_write_b128 v{vQw}, {v(pq,4)}
ds_write_b128 v{vQw}, {v(pq+4,4)} offset:1024
s_waitcnt lgkmcnt(0)
s_barrier""")
ts(3)
ts(13, 2)

V.reset(m_ph)
Q = [V(8), V(8)]
S = [V(16) for _ in range(4)]
Kf = [V(8), V(8)]
Vf = [V(8), V(8)]

A(f"""ds_read_b128 {v(Q[0],4)}, v{vQr}
ds_read_b128 {v(Kf[0],4)}, v{vBase} offset:32768
ds_read_b128 {v(Q[0]+4,4)}, v{vQr} offset:1024
ds_read_b128 {v(Kf[0]+4,4)}, v{vBase} offset:33792
ds_read_b128 {v(Q[1],4)}, v{vQr} offset:2048
ds_read_b128 {v(Q[1]+4,4)}, v{vQr} offset:3072
ds_read_b128 {v(Kf[1],4)}, v{vBase} offset:36864
ds_read_b128 {v(Kf[1]+4,4)}, v{vBase} offset:37888
ds_read_b128 {v(Vf[0],4)}, v{vBase} offset:34816
ds_read_b128 {v(Vf[0]+4,4)}, v{vBase} offset:35840
v_dot2_f32_bf16 v{nq}, v{pq}, v{pq}, 0
v_dot2_f32_bf16 v{nk}, v{pk}, v{pk}, 0""")
for r in range(1, 8):
    A(f"v_dot2_f32_bf16 v{nq}, v{pq+r}, v{pq+r}, v{nq}")
    A(f"v_dot2_f32_bf16 v{nk}, v{pk+r}, v{pk+r}, v{nk}")
A(f"""s_waitcnt lgkmcnt(6)
v_mfma_f32_32x32x16_bf16 {v(S[0],16)}, {v(Kf[0],4)}, {v(Q[0],4)}, 0
v_mfma_f32_32x32x16_bf16 {v(S[0],16)}, {v(Kf[0]+4,4)}, {v(Q[0]+4,4)}, {v(S[0],16)}
s_nop 0
v_permlane32_swap_b32 v{nq}, v{nk}
v_add_f32 v{nq}, v{nq}, v{nk}""")
for sh_ in (1, 2, 4, 8):
    A(f"v_max_u32_dpp v{nq}, v{nq}, v{nq} row_shr:{sh_} row_mask:0xf bank_mask:0xf bound_ctrl:0")
A(f"""v_max_u32_dpp v{nq}, v{nq}, v{nq} row_bcast:15 row_mask:0xa bank_mask:0xf
s_lshl_b32 s{sT0}, s{sw}, 2
s_add_u32 s{sT0}, s{sT0}, {MISC}
v_mov_b32 v{t0}, s{sT0}
v_readlane_b32 s{sKmax}, v{nq}, 63
s_mov_b32 exec_lo, 0x80000000
s_mov_b32 exec_hi, 0
ds_write_b32 v{t0}, v{nq}
s_mov_b64 exec, -1
s_lshl_b32 s{sT0}, s{sj}, 3
v_mov_b32 v{vFl}, s{stag}
v_mov_b32 v{vFl+1}, s{sKmax}
v_mov_b32 v{t0}, s{sT0}
s_waitcnt lgkmcnt(0)""")


POS = [32768, 0, 65536]


def kv_addr(blk, t, off):
    p = POS[blk % 3] + t * 4096 + off
    return (vCur, p - 65536) if POS[blk % 3] >= 65536 else (vBase, p)


def kv_next(pos):
    return f"""s_add_u32 s{sRel}, s{sRel}, 0x8000
    s_and_b32 s{sRel}, s{sRel}, 0x3ffff
    s_add_u32 m0, s{sMX}, {pos}
    s_add_u32 s{sD0}, s{sRel}, s{sKV}"""


def kv_piece(i):
    return f"buffer_load_dwordx4 v{vL16}, s[{sWS}:{sWS+3}], s{sD0} offen offset:{1024*i} sc1 lds"


def wo_piece(r):
    m = f"s_mov_b32 m0, s{sWm13}" if r == 13 else f"s_add_u32 m0, s{sWm}, {WOB + 8*r*896}"
    return f"""{m}
    s_add_u32 s{sD1}, s{sWn}, {8*r*3584}
    buffer_load_dwordx4 v{vWod}, s[{sWO}:{sWO+3}], s{sD1} offen lds"""


EXTRA = {}
AFTER = {}


def extra(w_, sl, text):
    EXTRA.setdefault((w_, sl), []).append(text)


def window(W):
    blk, u = divmod(W, 8)
    un, up = u + 1, u - 1
    tn, qn = un // 2, un % 2
    tp, qp = up // 2, up % 2
    Sc, Sn, Sp = S[u % 4], S[un % 4], S[up % 4]
    Kn, Vp = Kf[tn % 2], Vf[tp % 2]
    m = [f"v_mfma_f32_32x32x16_bf16 {v(Sn,16)}, {v(Kn,4)}, {v(Q[qn],4)}, 0",
         f"v_mfma_f32_32x32x16_bf16 {v(Sn,16)}, {v(Kn+4,4)}, {v(Q[qn]+4,4)}, {v(Sn,16)}",
         f"v_smfmac_f32_32x32x32_bf16 {v(O[qp],16)}, {v(Vp,4)}, {v(Sp,8)}, v{vIdx}",
         f"v_smfmac_f32_32x32x32_bf16 {v(O[qp],16)}, {v(Vp+4,4)}, {v(Sp+8,8)}, v{vIdx}"]
    if W == 0:
        m[2] = m[3] = None
    if W == 63:
        m = [m[2], None, m[3], None]
    mem = [[], [], [], []]
    pre = [[], [], [], []]

    def rd(dst, T, off):
        a, o = kv_addr(blk + T // 4, T % 4, off)
        return f"ds_read_b128 {v(dst,4)}, v{a} offset:{o}"
    if u % 2 == 1:
        if not (u == 5 and blk > 0):
            A("s_waitcnt lgkmcnt(0)")
        tt = tn
        Kd, Vd = Kf[(tt + 1) % 2], Vf[tt % 2]
        rk = [rd(Kd, tt + 1, 0), rd(Kd + 4, tt + 1, 1024)]
        rv = [rd(Vd, tt, 2048), rd(Vd + 4, tt, 3072)]
        if W in (5, 61):
            mem[2].append(rv[0])
            mem[3].append(rv[1])
        elif W == 63:
            pass
        elif W == 7:
            A(rd(Kn, 4, 0))
            A(rd(Kn + 4, 4, 1024))
            m = [m[2], m[3], m[0], m[1]]
            mem[0] += [rk[0], rk[1]]
            mem[1] += [rv[0], rv[1]]
            pre[2].append("s_waitcnt lgkmcnt(4)")
        else:
            mem[0].append(rk[0])
            mem[1].append(rk[1])
            mem[2].append(rv[0])
            mem[3].append(rv[1])
    for q in range(4):
        for x in pre[q]:
            A(x)
        if m[q]:
            A(m[q])
        for x in mem[q] + EXTRA.get((W, q), []):
            A(x)
        for e in range(4):
            A(f"v_exp_f32 v{Sc+4*q+e}, v{Sc+4*q+e}")
    for hk in AFTER.get(W, []):
        hk()


def hook_flag():
    A(f"""s_waitcnt vmcnt(0)
    s_mov_b64 exec, 1
    buffer_store_dwordx2 {v(vFl,2)}, v{t0}, s[{sWS}:{sWS+3}], s{sFl} offen sc1
    s_mov_b64 exec, -1""")
    ts(4)


def poll_issue():
    A(f"buffer_load_dwordx2 {v(vFl,2)}, v{vPl}, s[{sWS}:{sWS+3}], s{sFl} offen sc1")


ntry = [0]


def hook_try():
    ntry[0] += 1
    A(f"""s_cmp_lg_u32 s{sDone}, 0
    s_cbranch_scc1 L_skip{ntry[0]}
    s_call_b64 s[{sRet}:{sRet+1}], L_try""")
    A.label(f"L_skip{ntry[0]}")


def hook_bar0():
    A(f"s_mov_b32 s{sSpin}, 0x40000")
    A.label("L_spin")
    A(f"""s_cmp_lg_u32 s{sDone}, 0
    s_cbranch_scc1 L_spun
    s_call_b64 s[{sRet}:{sRet+1}], L_try
    s_sub_u32 s{sSpin}, s{sSpin}, 1
    s_cbranch_scc0 L_spin""")
    A.label("L_spun")
    A("""s_waitcnt vmcnt(0)
    s_barrier""")
    ts(6)


def hook_check():
    A(f"""v_mul_f32 v{t1}, v{vFl+1}, v{vQm}
    s_mov_b32 s{sT0}, {hex(f2u(THR2))}
    v_cmp_nge_f32 vcc, s{sT0}, v{t1}
    s_cmp_eq_u64 vcc, 0
    s_cbranch_scc1 L_fast_ok
    v_mov_b32 v{t1}, 1
    ds_write_b32 v{vMi}, v{t1}""")
    A.label("L_fast_ok")


def mk_bar(n):
    def f():
        A(f"""s_waitcnt vmcnt({n}) lgkmcnt(0)
        s_barrier""")
    return f


def hook_pollc():
    A(f"""v_cmp_ne_u32 vcc, s{stag}, v{vQm}
    s_cmp_lg_u64 vcc, 0
    s_cbranch_scc1 L_pollc""")
    A.label("L_pollc_done")


fw, pw = OPT["flagw"], OPT["pollw"]
AFTER.setdefault(fw, []).append(hook_flag)
AFTER.setdefault(pw, []).append(poll_issue)
for u in range(pw + 1, 6):
    AFTER.setdefault(u, []).append(hook_try)
AFTER.setdefault(6, []).append(hook_bar0)
extra(8, 0, f"ds_read_b32 v{vQm}, v{vQa}")
AFTER.setdefault(9, []).append(hook_check)
extra(7, 2, kv_next(POS[2]) + "\n" + kv_piece(0))
extra(7, 3, kv_piece(1))
extra(8, 1, kv_piece(2))
extra(8, 3, kv_piece(3))
wo_early = list(range(5, 13))
for i in range(1, 8):
    nwo = 0
    if i >= 2 and wo_early:
        for sl in (0, 2):
            extra(8 * i + 2, sl, wo_piece(wo_early.pop(0)))
            nwo += 1
    AFTER.setdefault(8 * i + 4, []).append(mk_bar(nwo))
    if i <= 5:
        extra(8 * i + 6, 0, kv_next(POS[(i + 2) % 3]) + "\n" + kv_piece(0))
        extra(8 * i + 6, 2, kv_piece(1))
        extra(8 * i + 8, 0, kv_piece(2))
        extra(8 * i + 8, 2, kv_piece(3))
assert not wo_early
for k, r in enumerate([0, 1, 2, 3, 4, 13]):
    extra([54, 54, 55, 56, 56, 57][k], [0, 2, 1, 0, 2, 1][k], wo_piece(r))
extra(53, 1, f"buffer_load_dword v{vQm}, v{vPc}, s[{sWS}:{sWS+3}], s{sPc} offen sc1")
AFTER[60].append(hook_pollc)
for W in range(64):
    window(W)
A(f"""s_nop 0
v_smfmac_f32_32x32x32_bf16 {v(O[1],16)}, {v(Vf[1],4)}, {v(S[3],8)}, v{vIdx}
v_smfmac_f32_32x32x32_bf16 {v(O[1],16)}, {v(Vf[1]+4,4)}, {v(S[3]+8,8)}, v{vIdx}""")
ts(7)

A(f"""s_waitcnt lgkmcnt(0)
s_cmp_eq_u32 s{sKap}, 0
s_cbranch_scc1 L_p3
s_mov_b32 s{sSpin}, 0x400000""")
A.label("L_mwait")
A(f"""ds_read_b32 v{t2}, v{vMf}
ds_read_b32 v{t3}, v{vMi}
s_sub_u32 s{sSpin}, s{sSpin}, 1
s_cbranch_scc1 L_mgo
s_waitcnt lgkmcnt(0)
v_readfirstlane_b32 s{sT0}, v{t2}
s_cmp_eq_u32 s{sT0}, 0
s_cbranch_scc1 L_mwait""")
A.label("L_mgo")
R = S[0]
for i in range(8):
    A(f"ds_read_b128 {v(R+4*i,4)}, v{vRw} offset:{1024*i}")
A(f"""v_readfirstlane_b32 s{sT0}, v{t3}
s_cmp_lg_u32 s{sT0}, 0
s_cbranch_scc1 L_slow""")
for q in range(2):
    A(f"s_waitcnt lgkmcnt({4-4*q})")
    for r in range(0, 16, 2):
        A(f"v_pk_add_f32 {v(O[q]+r,2)}, {v(O[q]+r,2)}, {v(R+16*q+r,2)}")
A.label("L_norm")
rc = [vFl, Q[0]]
A(f"""v_mov_b32 v{t0}, v{O[0]+12}
v_mov_b32 v{rc[0]}, v{O[0]+12}
v_mov_b32 v{t1}, v{O[1]+12}
v_mov_b32 v{rc[1]}, v{O[1]+12}
s_add_u32 s{sT0}, s{sOp}, 32768
v_permlane32_swap_b32 v{t0}, v{rc[0]}
v_permlane32_swap_b32 v{t1}, v{rc[1]}
v_rcp_f32 v{rc[0]}, v{rc[0]}
v_rcp_f32 v{rc[1]}, v{rc[1]}""")
for q in range(2):
    po = [pk, pq][q]
    so = [sOp, sT0][q]
    for r in range(0, 16, 2):
        A(f"v_pk_mul_f32 {v(O[q]+r,2)}, {v(O[q]+r,2)}, {v(rc[q],2)} op_sel_hi:[1,0]")
    for r in range(8):
        A(f"v_cvt_pk_bf16_f32 v{po+r}, v{O[q]+2*r}, v{O[q]+2*r+1}")
    for r in (6, 7):
        A(f"v_cndmask_b32 v{po+r}, 0, v{po+r}, s[{sLo}:{sLo+1}]")
    for r in range(8):
        A(f"v_min_u32 v{po+r}, -2, v{po+r}")
    A(f"""buffer_store_dwordx4 {v(po,4)}, v{vL16}, s[{sWS}:{sWS+3}], s{so} offen sc1
    buffer_store_dwordx4 {v(po+4,4)}, v{vL16}, s[{sWS}:{sWS+3}], s{so} offen offset:1024 sc1""")
ts(8)
ts(10, 3)
A("s_branch L_noep")

A.label("L_p3")
Of = S[0]
Wr_ = Kf[0]
acc = O[0]
vLr = vQm
assert Vf[1] == Kf[0] + 24 and S[3] == S[0] + 48 and O[1] == O[0] + 16


def light_poll():
    A(f"""s_mov_b64 exec, 0xffff
    buffer_load_dword v{vLr}, v{vLp}, s[{sWS}:{sWS+3}], s{sOin} offen sc1
    s_mov_b64 exec, -1""")


light_poll()
for i in range(8):
    A(f"ds_write_b128 v{vRw}, {v(O[0]+4*i,4)} offset:{1024*i}")
A(f"""v_mov_b32 v{t0}, 1
s_waitcnt lgkmcnt(0)
ds_write_b32 v{vMf}, v{t0}""")
for r in range(28):
    A(f"v_mov_b32 v{acc+r}, 0")
ts(8)
ts(10, 3)


GROUPS = [[[0, 1, 2, 3], [4, 5, 6, 7], [8, 9, 10, 11], [12, 13, 14, 15]],
          [[0, 1, 3, 5], [7, 8, 10, 12], [14, 15, 2, 4], [6, 9, 11, 13]]][OPT["grp"]]


def o_loads(g):
    for k, hh in enumerate(GROUPS[g]):
        A(f"s_add_u32 s{sT0}, s{sOin}, {hh*2048}")
        A(f"buffer_load_dwordx4 {v(Of+16*g+4*k,4)}, v{vOa}, s[{sWS}:{sWS+3}], s{sT0} offen sc1")


def wo_read(g, i):
    hh, ct = GROUPS[g][i // 7], i % 7
    if hh == 15:
        a0, a1, off = vW0c, vW1c, 0
    elif hh >= 8:
        a0, a1, off = vW0b, vW1b, (hh - 8) * 6272
    else:
        a0, a1, off = vW0, vW1, hh * 6272
    d = Wr_ + 4 * (i % 8)
    A(f"ds_read_b64_tr_b16 {v(d,2)}, v{a0} offset:{off+32*ct}")
    A(f"ds_read_b64_tr_b16 {v(d+2,2)}, v{a1} offset:{off+32*ct}")


A(f"""s_mov_b32 s{sDone}, 0
s_mov_b32 s{sPend}, 0
s_mov_b32 s{sTodo}, 0
s_mov_b32 s{sSpin}, 0x40000""")
A.label("L_round")
A(f"""s_waitcnt vmcnt(0) lgkmcnt(0)
v_cmp_ne_u32 s[{sRdy}:{sRdy+1}], -1, v{vLr}""")
for g in range(4):
    b0 = Of + 16 * g
    A(f"""s_bitcmp0_b32 s{sPend}, {g}
    s_cbranch_scc1 L_chk{g}
    v_max3_u32 v{t0}, v{b0}, v{b0+1}, v{b0+2}""")
    for r in range(3, 15, 2):
        A(f"v_max3_u32 v{t0}, v{b0+r}, v{b0+r+1}, v{t0}")
    A(f"""v_max_u32 v{t0}, v{b0+15}, v{t0}
    v_cmp_eq_u32 vcc, -1, v{t0}
    s_cmp_lg_u64 vcc, 0
    s_cbranch_scc1 L_chk{g}
    s_bitset1_b32 s{sTodo}, {g}
    s_bitset1_b32 s{sDone}, {g}""")
    ts(1 + g, 3)
    A.label(f"L_chk{g}")
A(f"""s_mov_b32 s{sPend}, 0
s_mov_b32 s{sI}, 4
s_xor_b32 s{sRem}, s{sDone}, 15
s_cbranch_scc0 L_issued
s_mov_b32 s{sI}, {OPT['per']}
s_bcnt1_i32_b32 s{sT0}, s{sRem}
s_cmp_le_u32 s{sT0}, {OPT['full']}
s_cselect_b32 s{sRdy}, -1, s{sRdy}""")
for g in range(4):
    mask = sum(1 << hh for hh in GROUPS[g])
    A(f"""s_bitcmp0_b32 s{sRem}, {g}
    s_cbranch_scc1 L_iss{g}
    s_andn2_b32 s{sT0}, {hex(mask)}, s{sRdy}
    s_cbranch_scc1 L_iss{g}
    s_bitset1_b32 s{sPend}, {g}""")
    o_loads(g)
    A.label(f"L_iss{g}")
light_poll()
A.label("L_issued")
for g in range(4):
    A(f"""s_bitcmp0_b32 s{sTodo}, {g}
    s_cbranch_scc1 L_prc{g}
    s_sub_u32 s{sI}, s{sI}, 1
    s_cbranch_scc1 L_round
    s_bitset0_b32 s{sTodo}, {g}""")
    for i in range(6):
        wo_read(g, i)
    for i in range(0, 28, 2):
        A(f"s_waitcnt lgkmcnt({2*(min(28, i+6) - (i+2))})")
        for k in (i, i + 1):
            ct = k % 7
            A(f"v_mfma_f32_16x16x32_bf16 {v(acc+4*ct,4)}, {v(Wr_+4*(k%8),4)}, {v(Of+16*g+4*(k//7),4)}, {v(acc+4*ct,4)}")
            if k + 6 < 28:
                wo_read(g, k + 6)
    ts(5 + g, 3)
    A.label(f"L_prc{g}")
A(f"""s_sub_u32 s{sSpin}, s{sSpin}, 1
s_cbranch_scc1 L_rounds_done
s_cmp_lg_u32 s{sDone}, 15
s_cbranch_scc1 L_round""")
A.label("L_rounds_done")
ts(9)
ts(9, 3)
if OPT["ts"] == 3:
    A(f"""s_sub_u32 s{sT0}, 0x40000, s{sSpin}
    v_writelane_b32 v{vTS}, s{sT0}, 14""")
pk2 = Q[0]
rb = S[0]
A(f"s_add_u32 s{sT1}, s{sOut}, {8*1792}")
for ct in range(1, 4):
    A(f"v_xor_b32 v{vT[ct]}, {32*ct}, v{vTw}")
wa = [vTw, vT[1], vT[2], vT[3]]
for ps in range(2):
    for ct in range(4 * ps, min(7, 4 * ps + 4)):
        A(f"""v_cvt_pk_bf16_f32 v{pk2+2*ct}, v{acc+4*ct}, v{acc+4*ct+1}
        v_cvt_pk_bf16_f32 v{pk2+2*ct+1}, v{acc+4*ct+2}, v{acc+4*ct+3}
        ds_write_b64 v{wa[ct%4]}, {v(pk2+2*ct,2)}""")
    A(f"""ds_read_b128 {v(rb+8*ps,4)}, v{vTr}
    ds_read_b128 {v(rb+8*ps+4,4)}, v{vTr} offset:1024""")
A(f"""s_waitcnt lgkmcnt(5)
buffer_store_dwordx4 {v(rb,4)}, v{vOs}, s[{sOUT}:{sOUT+3}], s{sOut} offen
buffer_store_dwordx4 {v(rb+4,4)}, v{vOs}, s[{sOUT}:{sOUT+3}], s{sT1} offen
s_waitcnt lgkmcnt(0)
buffer_store_dwordx4 {v(rb+8,4)}, v{vOs2}, s[{sOUT}:{sOUT+3}], s{sOut} offen
buffer_store_dwordx4 {v(rb+12,4)}, v{vOs2}, s[{sOUT}:{sOUT+3}], s{sT1} offen""")
A(f"""s_or_b32 s{sT0}, s{sh}, s{sj}
s_or_b32 s{sT0}, s{sT0}, s{sw}
s_cmp_lg_u32 s{sT0}, 0
s_cbranch_scc1 L_noep
s_add_u32 s{sE}, s{sE}, 1
s_lshl_b32 s{sT0}, s{sb}, 8
s_add_u32 s{sT0}, s{sT0}, {EPOCH_OFF}
v_mov_b32 v{t0}, 0
v_mov_b32 v{t1}, s{sE}
s_mov_b64 exec, 1
buffer_store_dword v{t1}, v{t0}, s[{sWS}:{sWS+3}], s{sT0} offen sc1
s_mov_b64 exec, -1""")
A.label("L_noep")
if OPT["ts"]:
    A("s_waitcnt vmcnt(0)")
    ts(10)
    ts(11, 3)
    A(f"""s_lshl_b32 s{sT0}, s2, 3
    s_add_u32 s{sT0}, s{sT0}, s{sw}
    s_lshl_b32 s{sT0}, s{sT0}, 6
    s_add_u32 s{sT0}, s{sT0}, {TS_OFF}
    s_getreg_b32 s{sT1}, hwreg(HW_REG_XCC_ID)
    v_writelane_b32 v{vTS}, s{sT1}, 15
    v_lshlrev_b32 v{t0}, 2, v{vLane}
    s_mov_b64 exec, 0xffff
    buffer_store_dword v{vTS}, v{t0}, s[{sWS}:{sWS+3}], s{sT0} offen""")
    if OPT.get("dbg"):
        A(f"""v_readlane_b32 s{sT0}, v{vTS}, 0
        s_not_b32 s{sT0}, s{sT0}
        v_writelane_b32 v{vTS}, s{sT0}, 15
        s_mov_b32 s{sX}, s22
        s_mov_b32 s{sX+1}, s23
        s_mov_b32 s{sX+2}, 256
        buffer_atomic_umax v{vTS}, v{t0}, s[{sX}:{sX+3}], 0 offen""")
A.label("L_end")
A("s_endpgm")

A.label("L_try")
A(f"""s_waitcnt vmcnt(0)
v_cmp_ne_u32 vcc, s{stag}, v{vFl}
s_cmp_eq_u64 vcc, 0
s_cbranch_scc1 L_ready""")
poll_issue()
A(f"s_setpc_b64 s[{sRet}:{sRet+1}]")
A.label("L_ready")
ts(5)
A(kv_next(POS[1]))
for i in range(4):
    A(kv_piece(i))
A(f"""s_mov_b32 s{sDone}, 1
s_setpc_b64 s[{sRet}:{sRet+1}]""")

A.label("L_pollc")
A(f"s_mov_b32 s{sSpin}, 0x40000")
A.label("L_pollc1")
A(f"""buffer_load_dword v{vQm}, v{vPc}, s[{sWS}:{sWS+3}], s{sPc} offen sc1
s_sub_u32 s{sSpin}, s{sSpin}, 1
s_cbranch_scc1 L_pollc_done
s_waitcnt vmcnt(0)
v_cmp_ne_u32 vcc, s{stag}, v{vQm}
s_cmp_lg_u64 vcc, 0
s_cbranch_scc1 L_pollc1
s_branch L_pollc_done""")

A.label("L_slow")
Sx, vMn, vAl = S[2], t2, t3
vM = [t4, t5]
A(f"""s_waitcnt lgkmcnt(0)
v_mov_b32 v{vM[0]}, 0xff7fffff
v_mov_b32 v{vM[1]}, 0xff7fffff
s_mov_b32 s{sT0}, s{sKV}
s_mov_b32 s{sI}, 0""")
for r in range(32):
    A(f"v_mov_b32 v{O[0]+r}, 0")
A.label("L_slow_t")
A(f"""buffer_load_dwordx4 {v(Kf[0],4)}, v{vL16}, s[{sWS}:{sWS+3}], s{sT0} offen sc1
buffer_load_dwordx4 {v(Kf[0]+4,4)}, v{vL16}, s[{sWS}:{sWS+3}], s{sT0} offen offset:1024 sc1
buffer_load_dwordx4 {v(Vf[0],4)}, v{vL16}, s[{sWS}:{sWS+3}], s{sT0} offen offset:2048 sc1
buffer_load_dwordx4 {v(Vf[0]+4,4)}, v{vL16}, s[{sWS}:{sWS+3}], s{sT0} offen offset:3072 sc1
s_add_u32 s{sT0}, s{sT0}, 4096
s_waitcnt vmcnt(0)""")
for q in range(2):
    A(f"""v_mfma_f32_32x32x16_bf16 {v(Sx,16)}, {v(Kf[0],4)}, {v(Q[q],4)}, 0
    v_mfma_f32_32x32x16_bf16 {v(Sx,16)}, {v(Kf[0]+4,4)}, {v(Q[q]+4,4)}, {v(Sx,16)}
    v_max3_f32 v{t0}, v{Sx}, v{Sx+1}, v{vM[q]}""")
    for r in range(2, 16, 2):
        A(f"v_max3_f32 v{t0}, v{Sx+r}, v{Sx+r+1}, v{t0}")
    A(f"""v_mov_b32 v{t1}, v{t0}
    v_permlane32_swap_b32 v{t0}, v{t1}
    v_max_f32 v{vMn}, v{t0}, v{t1}
    v_sub_f32 v{vAl}, v{vM[q]}, v{vMn}
    v_exp_f32 v{vAl}, v{vAl}
    v_mov_b32 v{vM[q]}, v{vMn}""")
    for r in range(16):
        A(f"v_sub_f32 v{Sx+r}, v{Sx+r}, v{vMn}")
    for r in range(16):
        A(f"v_exp_f32 v{Sx+r}, v{Sx+r}")
    for r in range(16):
        A(f"v_mul_f32 v{O[q]+r}, v{vAl}, v{O[q]+r}")
    A(f"""v_smfmac_f32_32x32x32_bf16 {v(O[q],16)}, {v(Vf[0],4)}, {v(Sx,8)}, v{vIdx}
    v_smfmac_f32_32x32x32_bf16 {v(O[q],16)}, {v(Vf[0]+4,4)}, {v(Sx+8,8)}, v{vIdx}""")
A(f"""s_add_u32 s{sI}, s{sI}, 1
s_cmp_lt_u32 s{sI}, 64
s_cbranch_scc1 L_slow_t
s_nop 11
s_branch L_norm""")

n = A.fix_hazards(verbose=bool(OPT.get("v", 0)))
NV = -(-V.hi // 8) * 8
hdr = open("cdna_kernels/" + NAME + ".s.ref").read().split("; Override launch")[0]
out = hdr + f"""; Fused kernel: QKV projection -> softmax attention -> output projection, one workgroup per
; (branch, head, 256-token block).  Generated by gen/gen.py.
; @launch grid=(256,1,1) block=(512,1,1) lds={LDS_BYTES}
.amdgcn_target "amdgcn-amd-amdhsa--gfx950"
.text
.globl {NAME}_kernel
.p2align 8
.type {NAME}_kernel,@function
""" + A.text().replace("CODE_SPAN", "L_slow-L_nopf") + f""".section .rodata,"a"
.p2align 6
.amdhsa_kernel {NAME}_kernel
  .amdhsa_next_free_vgpr {NV}
  .amdhsa_next_free_sgpr {NSGPR}
  .amdhsa_accum_offset {NV}
  .amdhsa_group_segment_fixed_size 0
  .amdhsa_kernarg_size 72
  .amdhsa_user_sgpr_count 2
  .amdhsa_user_sgpr_kernarg_segment_ptr 1
  .amdhsa_system_sgpr_workgroup_id_x 1
.end_amdhsa_kernel
"""
open(sys.argv[1], "w").write(out)
print(f"wrote {sys.argv[1]}: {len(A.lines)} lines, {n} nops inserted, {NV} vgprs", file=sys.stderr)
```

```python
import sys, struct, math
from asmlib import Asm, Alloc, v, s

NAME = "concat_heads__softmax_full_mha__softmax_full_mha__prompt"

OPT = dict(ts=0, force_slow=0, rot=2, map=1, pf=1, full=2, grp=0, per=2, pq=8, tq=6, wq0=17, wqs=2, padg=20, ibar=1, pubw=1, wqpf=6, pseg=2, npro=170, qd=3)
for a in sys.argv[2:]:
    k, val = a.split("=")
    OPT[k] = int(val)

FLAG_OFF = 0xD00000
ES = OPT.get("es", 7)
FS = OPT.get("fs", 16 << ES)
EPOCH_OFF = 0x10000
TS_OFF = 0x20000
KV_OFF = 0x100000
O_OFF = 0x900000
WS_BYTES = 0x1000000
OOB = 0x40000000

XS = 57344
WQ = 131072
QOFF = 98304
WOB = 66944
WO15 = 32768
MISC = 161280
OT = 16384
LDS_BYTES = 163840

CSCALE = math.log2(math.e) / math.sqrt(28.0)
L_LO = (127 - 60) << 23
L_RANGE = 120 << 23


def f2u(x):
    return struct.unpack("<I", struct.pack("<f", x))[0]


NTX = " nt" if OPT.get("ntx") else ""
NTW = " nt" if OPT.get("ntw") else ""
A = Asm()
sWm, sWm13 = 26, 27
sX, sW, sWS, sWO, sOUT = 28, 32, 36, 40, 44
sw, sb, sh, sj, stag, sE = 48, 49, 50, 51, 52, 53
sCx, sXb, sWb, sMX, sMW, sCw = 54, 55, 56, 57, 58, 59
sT0, sT1, sT2, sT3 = 60, 61, 62, 63
sLo = 64
sLine, sRole = 66, 67
sKV = 68
sMXs, sWq = 69, 70
sI, sRel, sWn, sHH = 71, 72, 73, 74
sSpin = 75
sOt = 76
sWoff = 77
sKap = 78
sFl = 79
sTS = 80
sRet = 82
sDone, sTodo = 84, 85
sOin = 86
sPc = 87
sOut = 88
sChk = 89
sCs = 90
sKVt = 92
sD0, sD1 = 93, 94
sPend, sRem = 95, 96
sOp = 97
sRdy = 98
sHi, sPl, sC0, sMQ = 4, 5, 6, 7
sCq, sNone = 3, 100
NSGPR = 102


def ts(idx, grp=1):
    if not OPT["ts"] or (idx != 0 and OPT["ts"] != grp):
        return
    A(f"""{"s_memtime" if OPT.get("clk") else "s_memrealtime"} s[{sTS}:{sTS+1}]
    s_waitcnt lgkmcnt(0)
    v_writelane_b32 v{vTS}, s{sTS}, {idx}""")


class Cnt:
    def __init__(self, name, cap):
        self.name, self.cap, self.q = name, cap, []

    def issue(self, tag, n=1):
        self.q += [tag] * n
        assert len(self.q) <= self.cap, (self.name, self.q)

    def wait(self, *tags):
        idx = [i for i, t in enumerate(self.q) if t in tags]
        if idx:
            n = len(self.q) - 1 - idx[-1]
            A(f"s_waitcnt {self.name}({n})")
            self.q = self.q[idx[-1] + 1:]


def lines(text):
    return [x.strip() for x in text.split("\n") if x.strip()]


def emit(lst, n):
    for _ in range(min(n, len(lst))):
        A(lst.pop(0))


V = Alloc(1, 256)
vLane = V()
vTS = V()
vL16 = V()
vIdx = V()
vT = [V() for _ in range(6)]
t0, t1, t2, t3, t4, t5 = vT
vQw, vQr, vBase, vCur, vWod, vPl, vPc, vQm, vBk = [V() for _ in range(9)]
vOa, vW0, vW1, vW0b, vW1b, vW0c, vW1c, vRw, vMf, vTw, vTr, vOs, vOs2, vLp = [V() for _ in range(14)]
vFl = V(2)
m_ph = V.mark()
Xr = V(112)
acc0, acc1 = V(16), V(16)
Wf = V(24)
vXd = [V() for _ in range(4)]
vWd = V()
vWq = V()
vXa = [V() for _ in range(4)]
vWr = [V(), V()]
vWqr = V()
vSt = [V() for _ in range(4)]
vP = [V()]
vPf = V()
vOnes = V(4)
vPd = V(4)
Wq8 = V(24)
V.reset(m_ph)
O = [V(16), V(16)]
Q = [V(8), V(8)]
S = [V(16) for _ in range(4)]
Kf = [V(8), V(8)]
Vf = [V(8), V(8)]
pk, pq = V(8), V(8)
assert O[0] == Xr

A.label(NAME + "_kernel")
A(f"""s_cmp_ge_u32 s2, 256
s_cbranch_scc1 L_end
s_load_dwordx16 s[8:23], s[0:1], 0
s_load_dwordx2 s[24:25], s[0:1], 64
v_lshrrev_b32 v{t0}, 6, v0
v_and_b32 v{vLane}, 63, v0
v_readfirstlane_b32 s{sw}, v{t0}
v_lshlrev_b32 v{vL16}, 4, v{vLane}""")
if OPT["ts"]:
    A(f"""{"s_memtime" if OPT.get("clk") else "s_memrealtime"} s[{sTS}:{sTS+1}]
    v_mov_b32 v{vTS}, 0""")
if OPT["map"] == 1:
    A(f"""s_and_b32 s{sT0}, s2, 7
    s_lshr_b32 s{sT1}, s2, 3
    s_and_b32 s{sj}, s{sT1}, 7
    s_lshr_b32 s{sT1}, s{sT1}, 3
    s_lshl_b32 s{sT0}, s{sT0}, 2
    s_add_u32 s{sHH}, s{sT0}, s{sT1}""")
elif OPT["map"] == 2:
    A(f"""s_and_b32 s{sT0}, s2, 7
    s_lshr_b32 s{sT1}, s2, 3
    s_and_b32 s{sT2}, s{sT0}, 3
    s_lshl_b32 s{sT2}, s{sT2}, 1
    s_lshr_b32 s{sT3}, s{sT1}, 4
    s_add_u32 s{sj}, s{sT2}, s{sT3}
    s_lshr_b32 s{sT0}, s{sT0}, 2
    s_lshl_b32 s{sT0}, s{sT0}, 4
    s_and_b32 s{sT1}, s{sT1}, 15
    s_add_u32 s{sHH}, s{sT0}, s{sT1}""")
elif OPT["map"] == 3:
    A(f"""s_and_b32 s{sT0}, s2, 7
    s_lshr_b32 s{sT1}, s2, 3
    s_and_b32 s{sT2}, s{sT0}, 1
    s_lshl_b32 s{sT2}, s{sT2}, 2
    s_lshr_b32 s{sT3}, s{sT1}, 3
    s_add_u32 s{sj}, s{sT2}, s{sT3}
    s_lshr_b32 s{sT0}, s{sT0}, 1
    s_lshl_b32 s{sT0}, s{sT0}, 3
    s_and_b32 s{sT1}, s{sT1}, 7
    s_add_u32 s{sHH}, s{sT0}, s{sT1}""")
A(f"""s_lshr_b32 s{sb}, s{sHH}, 4
s_and_b32 s{sh}, s{sHH}, 15
s_lshr_b32 s{sKap}, s{sw}, 2""")
A(f"""s_cmp_gt_u32 s{sh}, 7
s_cselect_b32 s{sRole}, 1, 0
s_cselect_b32 s{sT0}, 16, 1
s_cselect_b32 s{sT1}, 1, 2
s_cselect_b32 s{sT2}, 2, 8
s_cselect_b32 s{sT3}, 8, 16
v_bfe_u32 v{t0}, v{vLane}, 3, 1
v_mul_u32_u24 v{t0}, s{sT0}, v{t0}
v_bfe_u32 v{t1}, v{vLane}, 4, 1
v_mad_u32_u24 v{t0}, v{t1}, s{sT1}, v{t0}
v_lshrrev_b32 v{t1}, 5, v{vLane}
v_lshl_add_u32 v{t0}, v{t1}, 2, v{t0}
v_mul_u32_u24 v{t3}, 896, v{t0}
s_mul_i32 s{sT2}, s{sT2}, 896
s_mul_i32 s{sT3}, s{sT3}, 896
s_sub_u32 s{sT2}, s{sT2}, 1024
s_sub_u32 s{sT3}, s{sT3}, 2048
v_lshrrev_b32 v{t1}, 4, v{vLane}
v_and_b32 v{t2}, 7, v{vLane}
v_xor_b32 v{t1}, v{t1}, v{t2}
v_lshl_add_u32 v{vXd[0]}, v{t1}, 4, v{t3}
v_xor_b32 v{t1}, 4, v{t1}
v_lshl_add_u32 v{t1}, v{t1}, 4, v{t3}
v_add_u32 v{vXd[1]}, s{sT2}, v{t1}
v_add_u32 v{vXd[2]}, s{sT3}, v{vXd[0]}
v_add_u32 v{vXd[3]}, s{sT3}, v{vXd[1]}
s_lshl_b32 s{sT0}, s{sj}, 3
s_add_u32 s{sT0}, s{sT0}, s{sw}
s_mul_i32 s{sXb}, s{sT0}, {32*896}
s_lshl_b32 s{sMX}, s{sw}, 12
s_add_u32 s{sMXs}, s{sMX}, {XS}""")
if OPT["rot"] == 0:
    A(f"s_mov_b32 s{sC0}, 0")
else:
    if OPT["rot"] == 1:
        A(f"s_add_u32 s{sC0}, s{sh}, s{sj}")
    elif OPT["rot"] == 2:
        A(f"""s_mul_i32 s{sC0}, s{sh}, 7
        s_lshr_b32 s{sC0}, s{sC0}, 4
        s_add_u32 s{sC0}, s{sC0}, s{sj}""")
    elif OPT["rot"] == 3:
        A(f"""s_mul_i32 s{sC0}, s{sh}, 7
        s_lshr_b32 s{sC0}, s{sC0}, 4""")
    A(f"""s_mul_i32 s{sT1}, s{sC0}, 37
    s_lshr_b32 s{sT1}, s{sT1}, 8
    s_mul_i32 s{sT1}, s{sT1}, 7
    s_sub_u32 s{sC0}, s{sC0}, s{sT1}""")
if OPT["pf"]:
    A(f"""s_and_b32 s{sT0}, s2, 0xf8
    s_add_u32 s{sT0}, s{sT0}, s{sw}
    s_lshl_b32 s{sT0}, s{sT0}, 7
    s_min_u32 s{sT0}, s{sT0}, CODE_SPAN
    s_getpc_b64 s[{sRet}:{sRet+1}]""")
    A.label("L_nopf")
    A(f"""v_mov_b32 v{t4}, s{sT0}
    global_load_dword v{t5}, v{t4}, s[{sRet}:{sRet+1}]""")
A(f"""s_lshl_b32 s{sCx}, s{sC0}, 7
s_mov_b32 s{sX+2}, {2048*896}
s_mov_b32 s{sX+3}, 0x20000
s_cmp_eq_u32 s{sb}, 0
s_waitcnt lgkmcnt(0)
s_cselect_b32 s{sX}, s8, s14
s_cselect_b32 s{sX+1}, s9, s15
s_cselect_b32 s{sW}, s10, s16
s_cselect_b32 s{sW+1}, s11, s17
s_cselect_b32 s{sWO}, s12, s18
s_cselect_b32 s{sWO+1}, s13, s19""")
if OPT["ts"]:
    A(f"v_writelane_b32 v{vTS}, s{sTS}, 0")
    ts(14, 2)


def x_pieces(c):
    p = [f"""s_add_u32 m0, s{sMXs}, {(c % 2) * 32768}
    s_add_u32 s{sD0}, s{sCx}, s{sXb}
    buffer_load_dwordx4 v{vXd[0]}, s[{sX}:{sX+3}], s{sD0} offen{NTX} lds
    s_add_u32 s{sCx}, s{sCx}, 128
    s_cmp_eq_u32 s{sCx}, 896
    s_cselect_b32 s{sCx}, 0, s{sCx}"""]
    for i in range(1, 4):
        p.append(f"buffer_load_dwordx4 v{vXd[i]}, s[{sX}:{sX+3}], s{sD0} offen offset:{1024*i}{NTX} lds")
    return [(x, f"X{c}") for x in p]


def w_piece(it):
    return (f"""s_add_u32 m0, s{sMW}, {it*8192}
    s_add_u32 s{sD1}, s{sCw}, s{sWb}
    buffer_load_dwordx4 v{vWd}, s[{sW}:{sW+3}], s{sD1} offen{NTW} lds
    s_add_u32 s{sCw}, s{sCw}, {64*2688}
    s_cmp_eq_u32 s{sCw}, {448*2688}
    s_cselect_b32 s{sCw}, 0, s{sCw}""", f"W{it}")


def wq_piece(i):
    return (f"""s_add_u32 m0, s{sMQ}, {i*1024}
    s_add_u32 s{sD1}, s{sCq}, s{sWq}
    buffer_load_dwordx4 v{vWq}, s[{sW}:{sW+3}], s{sD1} offen lds
    s_add_u32 s{sCq}, s{sCq}, {16*2688}
    s_cmp_eq_u32 s{sCq}, {448*2688}
    s_cselect_b32 s{sCq}, 0, s{sCq}""", "WQ")


def wq_touch():
    return (f"""s_mov_b64 exec, 0x3fff
    buffer_load_dword v{t5}, v{vPf}, s[{sW}:{sW+3}], 0 offen{NTW}
    s_mov_b64 exec, -1""", "PF")


for p, _ in x_pieces(0):
    A(p)
ts(1, 2)
A(f"""s_mov_b32 s{sW+2}, {448*2688}
s_mov_b32 s{sW+3}, 0x20000
s_cmp_gt_u32 s{sh}, 6
s_subb_u32 s{sLine}, s{sh}, 0
s_cmp_gt_u32 s{sh}, 9
s_subb_u32 s{sLine}, s{sLine}, 0
s_lshl_b32 s{sWb}, s{sLine}, 7
s_cmp_ge_u32 s{sLine}, 7
s_cselect_b32 s{sT0}, 7, 0
s_sub_u32 s{sLine}, s{sLine}, s{sT0}
s_mul_i32 s{sT0}, s{sw}, {8*2688}
s_add_u32 s{sWb}, s{sWb}, s{sT0}
s_add_u32 s{sWb}, s{sWb}, 896
s_mul_i32 s{sCw}, s{sC0}, {64*2688}
s_lshl_b32 s{sMW}, s{sw}, 10
v_lshrrev_b32 v{t0}, 3, v{vLane}
v_mul_u32_u24 v{t0}, 2688, v{t0}
v_bfe_u32 v{t1}, v{vLane}, 4, 1
v_lshlrev_b32 v{t1}, 2, v{t1}
v_xor_b32 v{t1}, v{t1}, v{t2}
v_lshl_add_u32 v{vWd}, v{t1}, 4, v{t0}
s_lshr_b32 s{sNone}, 0x240, s{sh}
s_and_b32 s{sNone}, s{sNone}, 1""")

EARLY = lines(f"""s_lshl_b32 s{sT0}, s{sb}, 8
s_add_u32 s{sT0}, s{sT0}, {EPOCH_OFF}
s_load_dword s{sE}, s[24:25], s{sT0}
v_lshrrev_b32 v{t2}, 5, v{vLane}
v_and_b32 v{t0}, 31, v{vLane}
v_bfe_u32 v{t1}, v{vLane}, 1, 3
v_xor_b32 v{t1}, v{t1}, v{t2}
v_lshlrev_b32 v{t0}, 7, v{t0}
v_add_u32 v{t0}, s{sMXs}, v{t0}""")
for sst in range(4):
    EARLY += lines(f"""v_xor_b32 v{t3}, {2*sst}, v{t1}
    v_lshl_add_u32 v{vXa[sst]}, v{t3}, 4, v{t0}""")
EARLY += lines(f"""v_bfe_u32 v{t1}, v{vLane}, 2, 2
v_lshl_add_u32 v{t0}, v{t2}, 3, v{t1}
v_bfe_u32 v{t3}, v{vLane}, 4, 1
v_and_b32 v{t4}, 3, v{vLane}
v_lshlrev_b32 v{t4}, 3, v{t4}
v_lshl_add_u32 v{t4}, v{t3}, 5, v{t4}
v_lshl_add_u32 v{vWqr}, v{t0}, 6, v{t4}
v_lshl_add_u32 v{t4}, v{t0}, 7, v{t4}
v_lshrrev_b32 v{t1}, 1, v{t1}
v_lshl_add_u32 v{vWr[0]}, v{t1}, 6, v{t4}
v_xor_b32 v{vWr[1]}, 64, v{vWr[0]}
v_mov_b32 v{t0}, {MISC}
v_mov_b32 v{vPd}, 0
v_mov_b32 v{vPd+1}, 0
v_mov_b32 v{vPd+2}, 0
v_mov_b32 v{vPd+3}, 0
ds_write_b128 v{t0}, {v(vPd,4)}""")

MID = lines(f"""s_lshl_b32 s{sT0}, s{sj}, 3
s_add_u32 s{sT0}, s{sT0}, s{sw}
s_mul_i32 s{sT0}, s{sT0}, {7*2688}
s_mul_i32 s{sT1}, s{sh}, 56
s_add_u32 s{sT0}, s{sT0}, s{sT1}
v_lshrrev_b32 v{t0}, 1, v{vLane}
v_mul_u32_u24 v{t0}, 2688, v{t0}
v_and_b32 v{t1}, 1, v{vLane}
v_mad_u32_u24 v{t0}, v{t1}, 52, v{t0}
v_add_u32 v{vPf}, s{sT0}, v{t0}
s_and_b32 s{sT0}, s{sh}, 1
s_lshl_b32 s{sT0}, s{sT0}, 3
s_add_u32 s{sT0}, s{sT0}, {WQ}
v_add_u32 v{vWqr}, s{sT0}, v{vWqr}
s_mul_i32 s{sWq}, s{sh}, 56
s_and_b32 s{sWq}, s{sWq}, 0xfffffff0
s_and_b32 s{sT0}, s{sw}, 3
s_mul_i32 s{sMQ}, s{sT0}, 7168
s_add_u32 s{sMQ}, s{sMQ}, {WQ}
s_mul_i32 s{sT0}, s{sT0}, 7
s_lshl_b32 s{sT1}, s{sC0}, 2
s_add_u32 s{sT0}, s{sT0}, s{sT1}
s_sub_u32 s{sT1}, s{sT0}, 28
s_min_u32 s{sT0}, s{sT0}, s{sT1}
s_mul_i32 s{sCq}, s{sT0}, {16*2688}
v_lshrrev_b32 v{t0}, 2, v{vLane}
v_mul_u32_u24 v{t0}, 2688, v{t0}
v_and_b32 v{t1}, 3, v{vLane}
v_lshl_add_u32 v{vWq}, v{t1}, 4, v{t0}""")
MID += lines(f"""s_mov_b32 s{sWS}, s24
s_mov_b32 s{sWS+1}, s25
s_mov_b32 s{sWS+2}, {WS_BYTES}
s_mov_b32 s{sWS+3}, 0x20000
s_lshl_b32 s{sKVt}, s{sb}, 22
s_lshl_b32 s{sRel}, s{sj}, 15
s_add_u32 s{sRel}, s{sRel}, s{sMX}
s_add_u32 s{sKVt}, s{sKVt}, s{sRel}
s_add_u32 s{sKVt}, s{sKVt}, {KV_OFF}
s_and_b32 s{sT0}, s{sw}, 3
s_lshl_b32 s{sT0}, s{sT0}, 1
s_lshl_b32 s{sT1}, s{sb}, 3
s_add_u32 s{sT1}, s{sT1}, s{sj}
s_lshl_b32 s{sT1}, s{sT1}, 3
s_add_u32 s{sT0}, s{sT0}, s{sT1}
s_lshl_b32 s{sT0}, s{sT0}, 4
s_add_u32 s{sT0}, s{sT0}, s{sh}
s_lshl_b32 s{sOp}, s{sT0}, 11
s_add_u32 s{sOp}, s{sOp}, {O_OFF}
s_lshl_b32 s{sOt}, s{sKap}, 15
s_add_u32 s{sOt}, s{sOt}, s{sOp}
v_mov_b32 v{vOnes}, -1
v_mov_b32 v{vOnes+1}, -1
v_mov_b32 v{vOnes+2}, -1
v_mov_b32 v{vOnes+3}, -1
s_add_u32 s{sFl}, s{sT1}, s{sw}
s_mul_i32 s{sFl}, s{sFl}, {FS}
s_lshl_b32 s{sT0}, s{sh}, {ES}
s_add_u32 s{sFl}, s{sFl}, s{sT0}
s_add_u32 s{sFl}, s{sFl}, {FLAG_OFF}
v_mov_b32 v{vFl+1}, 0""")
LATE = lines(f"""s_lshl_b32 s{sPl}, s{sb}, 6
s_and_b32 s{sT1}, s{sw}, 3
s_add_u32 s{sPl}, s{sPl}, s{sT1}
s_mul_i32 s{sPl}, s{sPl}, {FS}
s_add_u32 s{sPl}, s{sPl}, {FLAG_OFF}
s_add_u32 s{sT0}, s{sj}, s{sKap}
s_and_b32 s{sT0}, s{sT0}, 7
s_lshl_b32 s{sRel}, s{sT0}, 15
s_lshl_b32 s{sT1}, s{sT1}, 12
s_add_u32 s{sRel}, s{sRel}, s{sT1}
s_sub_u32 s{sRel}, s{sRel}, 0x10000
v_bfe_u32 v{t3}, v{vLane}, 2, 2
v_lshl_add_u32 v{t3}, v{t3}, 1, s{sT0}
v_and_b32 v{t3}, 7, v{t3}
v_bfe_u32 v{t1}, v{vLane}, 4, 1
v_lshl_add_u32 v{t3}, v{t3}, 1, v{t1}
v_mul_u32_u24 v{t3}, {4*FS}, v{t3}
s_mul_i32 s{sT0}, s{sh}, 28
s_add_u32 s{sT1}, s{sT0}, 27
s_lshr_b32 s{sT0}, s{sT0}, 6
s_lshr_b32 s{sT1}, s{sT1}, 6
s_sub_u32 s{sT1}, s{sT1}, s{sT0}
v_and_b32 v{t0}, 1, v{vLane}
v_mul_u32_u24 v{t0}, s{sT1}, v{t0}
v_add_u32 v{t0}, s{sT0}, v{t0}
v_bfe_u32 v{t1}, v{vLane}, 1, 1
v_mad_u32_u24 v{t0}, v{t1}, 7, v{t0}
v_add_u32 v{t4}, 10, v{t0}
v_lshrrev_b32 v{t4}, 4, v{t4}
v_lshrrev_b32 v{t2}, 3, v{t0}
v_add3_u32 v{t0}, v{t0}, v{t4}, v{t2}
s_sub_u32 s{sT2}, s{sT1}, 1
s_and_b32 s{sT2}, s{sT2}, 0xaaaaaaaa
s_mov_b32 s{sT3}, s{sT2}
v_mad_u32_u24 v{t1}, v{t1}, 3, 6
v_cndmask_b32 v{t0}, v{t0}, v{t1}, s[{sT2}:{sT3}]
v_lshl_add_u32 v{vPl}, v{t0}, {ES}, v{t3}
v_and_b32 v{t2}, 7, v{vLane}
s_lshl_b32 s{sKV}, s{sHH}, 18
s_add_u32 s{sKV}, s{sKV}, {KV_OFF}
s_mov_b32 s{sDone}, 0""")
NPRE = len(LATE)
LATE += lines(f"""s_mov_b32 s{sWO+2}, {448*896}
s_mov_b32 s{sWO+3}, 0x20000
s_mov_b32 s{sOUT}, s20
s_mov_b32 s{sOUT+1}, s21
s_mov_b32 s{sOUT+2}, {2048*1792}
s_mov_b32 s{sOUT+3}, 0x20000
s_mov_b32 s{sLo}, -1
s_mov_b32 s{sLo+1}, 0
s_mov_b32 s{sCs}, {hex(f2u(CSCALE))}
s_mov_b32 s{sCs+1}, {hex(f2u(CSCALE))}
s_mov_b32 s{sChk}, {0 if OPT['force_slow'] else L_RANGE}
s_and_b32 s{sWoff}, s{sh}, 3
s_mul_i32 s{sWoff}, s{sWoff}, 224""")
LATE += lines(f"""s_lshl_b32 s{sT1}, s{sb}, 3
s_add_u32 s{sT1}, s{sT1}, s{sj}
s_lshl_b32 s{sT1}, s{sT1}, 3
s_lshr_b32 s{sT0}, s{sh}, 2
s_bfe_u32 s{sT2}, s{sw}, 0x10001
s_lshl_b32 s{sPc}, s{sT2}, 2
s_add_u32 s{sPc}, s{sPc}, s{sT0}
s_add_u32 s{sPc}, s{sPc}, s{sT1}
s_mul_i32 s{sPc}, s{sPc}, {FS}
s_add_u32 s{sPc}, s{sPc}, {FLAG_OFF}
s_add_u32 s{sHi}, s{sT0}, s{sT1}
s_mul_i32 s{sHi}, s{sHi}, {FS}
s_add_u32 s{sHi}, s{sHi}, {FLAG_OFF+4*FS}
s_lshl_b32 s{sT3}, s{sT0}, 1
s_add_u32 s{sT3}, s{sT3}, s{sT2}
s_add_u32 s{sT3}, s{sT3}, s{sT1}
s_lshl_b32 s{sOin}, s{sT3}, 15
s_add_u32 s{sOin}, s{sOin}, {O_OFF}
s_and_b32 s{sT3}, s{sw}, 1
s_lshl_b32 s{sT3}, s{sT3}, 8
s_add_u32 s{sOin}, s{sOin}, s{sT3}""")
LATE += lines(f"""s_lshl_b32 s{sT1}, s{sj}, 2
s_add_u32 s{sT0}, s{sT0}, s{sT1}
s_lshl_b32 s{sT0}, s{sT0}, 2
s_and_b32 s{sT1}, s{sw}, 3
s_add_u32 s{sT0}, s{sT0}, s{sT1}
s_mul_i32 s{sOut}, s{sT0}, {16*1792}
s_mul_i32 s{sT0}, s{sb}, 896
s_add_u32 s{sOut}, s{sOut}, s{sT0}
s_add_u32 s{sOut}, s{sOut}, s{sWoff}
v_mov_b32 v{vIdx}, 0xdddddddd
s_lshl_b32 s{sT0}, s{sw}, 11
s_add_u32 s{sT0}, s{sT0}, {QOFF}
v_and_b32 v{t0}, 1, v{vLane}
v_lshlrev_b32 v{t0}, 4, v{t0}
v_bfe_u32 v{t1}, v{vLane}, 4, 1
v_lshl_add_u32 v{t0}, v{t1}, 3, v{t0}
v_bfe_u32 v{t1}, v{vLane}, 3, 1
v_lshl_add_u32 v{t0}, v{t1}, 1, v{t0}
v_bfe_u32 v{t1}, v{vLane}, 1, 1
v_add_u32 v{t0}, v{t0}, v{t1}
v_and_b32 v{t1}, 0x24, v{vLane}
v_add_u32 v{t0}, v{t0}, v{t1}
v_sub_u32 v{t0}, v{t0}, v{vLane}
v_mul_lo_u32 v{t0}, v{t0}, s{sRole}
v_add_u32 v{t0}, v{t0}, v{vLane}
v_lshl_add_u32 v{vQw}, v{t0}, 4, s{sT0}
s_lshl_b32 s{sT2}, s{sT1}, 12
s_add_u32 s{sT2}, s{sT2}, {QOFF}
v_add_u32 v{vQr}, s{sT2}, v{vL16}
s_lshl_b32 s{sT0}, s{sKap}, 14
v_add_u32 v{vBase}, s{sT0}, v{vL16}
v_add_u32 v{vCur}, 0x10000, v{vBase}
v_lshl_add_u32 v{vBk}, v{vLane}, 3, s{sT0}
s_add_u32 s{sT0}, s{sT1}, 5
s_lshl_b32 s{sT0}, s{sT0}, 13
s_and_b32 s{sT0}, s{sT0}, 0xffff
v_add_u32 v{vRw}, s{sT0}, v{vL16}
s_lshl_b32 s{sT0}, s{sT1}, 2
s_add_u32 s{sT0}, s{sT0}, {MISC}
v_mov_b32 v{vMf}, s{sT0}
v_lshrrev_b32 v{t1}, 3, v{vLane}
s_lshl_b32 s{sT0}, s{sT1}, 11
s_add_u32 s{sT0}, s{sT0}, {OT}
v_xor_b32 v{t3}, v{t1}, v{t2}
v_lshlrev_b32 v{t3}, 4, v{t3}
v_lshl_add_u32 v{t3}, v{t1}, 7, v{t3}
v_add_u32 v{vTr}, s{sT0}, v{t3}
v_mul_u32_u24 v{t3}, 1792, v{t1}
v_lshl_add_u32 v{vOs}, v{t2}, 4, v{t3}
v_add_u32 v{t3}, 2, v{t2}
v_lshrrev_b32 v{t3}, 3, v{t3}
v_lshlrev_b32 v{t3}, 30, v{t3}
v_add_u32 v{t3}, 128, v{t3}
v_add_u32 v{vOs2}, v{t3}, v{vOs}
v_and_b32 v{t0}, 15, v{vLane}
v_lshrrev_b32 v{t1}, 4, v{vLane}
v_lshrrev_b32 v{t3}, 1, v{t1}
v_xor_b32 v{t3}, v{t3}, v{t2}
v_lshlrev_b32 v{t3}, 4, v{t3}
v_lshl_add_u32 v{t3}, v{t0}, 7, v{t3}
v_and_b32 v{t4}, 1, v{t1}
v_lshl_add_u32 v{t3}, v{t4}, 3, v{t3}
v_add_u32 v{vTw}, s{sT0}, v{t3}
v_lshlrev_b32 v{vPc}, {ES}, v{t0}
v_lshlrev_b32 v{t2}, 11, v{t0}
v_add_u32 v{vLp}, {3*512+15*16}, v{t2}
v_lshlrev_b32 v{t2}, 9, v{t1}
v_lshl_add_u32 v{vOa}, v{t0}, 4, v{t2}""")
LATE += lines(f"""v_lshrrev_b32 v{t2}, 1, v{t1}
v_lshlrev_b32 v{t2}, 4, v{t2}
v_lshl_add_u32 v{t2}, v{t4}, 2, v{t2}
v_bfe_u32 v{t3}, v{vLane}, 2, 2
v_add_u32 v{t2}, v{t2}, v{t3}
v_mul_u32_u24 v{t2}, 224, v{t2}
v_and_b32 v{t3}, 3, v{vLane}
v_lshl_add_u32 v{t2}, v{t3}, 3, v{t2}
v_add_u32 v{t3}, 1, v{t1}
v_lshrrev_b32 v{t3}, 2, v{t3}
v_mul_u32_u24 v{t3}, {4*224}, v{t3}
v_sub_u32 v{t3}, v{t2}, v{t3}
v_add_u32 v{vW0}, {WOB}, v{t2}
v_add_u32 v{vW1}, {WOB+8*224}, v{t3}
v_add_u32 v{vW0b}, {WOB+8*6272}, v{t2}
v_add_u32 v{vW1b}, {WOB+8*6272+8*224}, v{t3}
v_add_u32 v{vW0c}, {WO15}, v{t2}
v_add_u32 v{vW1c}, {WO15+8*224}, v{t3}""")
LATE += lines(f"""v_mul_u32_u24 v{t2}, 0x4925, v{vLane}
v_lshrrev_b32 v{t2}, 18, v{t2}
v_mul_u32_u24 v{t3}, 14, v{t2}
v_sub_u32 v{t3}, v{vLane}, v{t3}
v_mul_u32_u24 v{t2}, 896, v{t2}
v_lshl_add_u32 v{vWod}, v{t3}, 4, v{t2}
s_mul_i32 s{sWn}, s{sw}, 3584
s_add_u32 s{sWn}, s{sWn}, s{sWoff}
s_mul_i32 s{sWm}, s{sw}, 896
s_add_u32 s{sWm13}, s{sWm}, {WO15-896}
s_max_u32 s{sT0}, s{sw}, 1
s_sub_u32 s{sT0}, s{sT0}, s{sw}
s_mul_i32 s{sT0}, s{sT0}, {WOB+104*896-(WO15-896)}
s_add_u32 s{sWm13}, s{sWm13}, s{sT0}""")
ENDS = lines(f"""s_mul_i32 s{sT2}, s{sLine}, {16*9363}
s_add_u32 s{sT3}, s{sT2}, {16*9363}
s_lshr_b32 s{sT2}, s{sT2}, 16
s_lshr_b32 s{sT3}, s{sT3}, 16
s_sub_u32 s{sT3}, s{sT3}, s{sT2}
s_lshl_b32 s{sT2}, s{sT2}, 18""")
FK = lines(f"""v_and_b32 v{t0}, 15, v{vLane}
v_lshlrev_b32 v{t0}, 4, v{t0}
v_bfe_u32 v{t1}, v{vLane}, 4, 1
v_lshrrev_b32 v{t4}, 5, v{vLane}
v_lshl_add_u32 v{t1}, v{t1}, 1, v{t4}
s_lshl_b32 s{sT0}, s{sLine}, 4
v_add_u32 v{t1}, s{sT0}, v{t1}""")
for i in range(4):
    FK += lines(f"""v_add_u32 v{t2}, {4*i}, v{t1}
    v_mul_u32_u24 v{t3}, 9363, v{t2}
    v_lshrrev_b32 v{t3}, 16, v{t3}
    v_lshl_add_u32 v{vSt[i]}, v{t3}, 18, v{t0}
    v_mul_u32_u24 v{t3}, 7, v{t3}
    v_sub_u32 v{t2}, v{t2}, v{t3}
    v_lshl_add_u32 v{vSt[i]}, v{t2}, 8, v{vSt[i]}""")
FK += ENDS + lines(f"""s_add_u32 s{sT2}, s{sT2}, {7*256}
v_lshrrev_b32 v{t1}, 4, v{vLane}
v_cmp_gt_u32 vcc, s{sT3}, v{t1}
v_lshl_add_u32 v{t0}, v{t1}, 18, v{t0}
v_add_u32 v{t0}, s{sT2}, v{t0}
v_mov_b32 v{t3}, {OOB}
v_cndmask_b32 v{vP[0]}, v{t3}, v{t0}, vcc""")
FV = lines(f"""v_and_b32 v{t0}, 31, v{vLane}
s_lshl_b32 s{sT0}, s{sLine}, 6
v_add_u32 v{t0}, s{sT0}, v{t0}
v_and_b32 v{t4}, 32, v{vLane}""")
for ct in range(2):
    FV += lines(f"""v_add_u32 v{t2}, {32*ct}, v{t0}
    v_mul_u32_u24 v{t3}, 2341, v{t2}
    v_lshrrev_b32 v{t3}, 16, v{t3}
    v_mul_u32_u24 v{t1}, 28, v{t3}
    v_sub_u32 v{t2}, v{t2}, v{t1}
    v_add_u32 v{t2}, v{t2}, v{t4}
    v_lshlrev_b32 v{t2}, 4, v{t2}
    v_lshl_add_u32 v{t2}, v{t3}, 18, v{t2}
    v_add_u32 v{vSt[2*ct]}, 2048, v{t2}
    v_add_u32 v{vSt[2*ct+1]}, 3072, v{t2}""")
FV += ENDS + lines(f"""s_add_u32 s{sT2}, s{sT2}, {2048+28*16}
v_lshrrev_b32 v{t0}, 4, v{vLane}
v_cmp_gt_u32 vcc, s{sT3}, v{t0}
v_bfe_u32 v{t1}, v{vLane}, 2, 2
v_lshlrev_b32 v{t1}, 9, v{t1}
v_lshl_add_u32 v{t1}, v{t0}, 18, v{t1}
v_and_b32 v{t2}, 3, v{vLane}
v_lshl_add_u32 v{t1}, v{t2}, 4, v{t1}
v_add_u32 v{t1}, s{sT2}, v{t1}
v_mov_b32 v{t3}, {OOB}
v_cndmask_b32 v{vP[0]}, v{t3}, v{t1}, vcc
v_cmp_eq_u32 vcc, 0, v{t2}
v_mov_b32 v{t3}, 0x3f803f80
s_nop 0
v_cndmask_b32 v{vPd}, 0, v{t3}, vcc
v_mov_b32 v{vPd+1}, v{vPd}
v_mov_b32 v{vPd+2}, v{vPd}
v_mov_b32 v{vPd+3}, v{vPd}""")


def st16(data, addr, soff, off=0):
    return (f"buffer_store_dwordx4 {v(data,4)}, v{addr}, s[{sWS}:{sWS+3}], s{soff} offen offset:{off} sc1", "ST")


def st8(data, addr, soff):
    return (f"buffer_store_dwordx2 {v(data,2)}, v{addr}, s[{sWS}:{sWS+3}], s{soff} offen sc1", "ST")


def flag_store(vm):
    vm.wait("ST")
    A(f"""s_mov_b64 exec, 1
    buffer_store_dword v{vFl}, v{vFl+1}, s[{sWS}:{sWS+3}], s{sFl} offen sc1
    s_mov_b64 exec, -1""")
    vm.issue("FL")
    ts(4)


def pass1(role):
    vm, lg = Cnt("vmcnt", 63), Cnt("lgkmcnt", 15)
    vm.issue("X0", 4)
    if role != "N":
        for i in range(3):
            vm.issue(f"W{i}")
    vm.issue("X1", 4)
    fill = list(REST) + {"K": list(FK), "V": list(FV), "N": []}[role]

    def dma(p):
        A(p[0])
        vm.issue(p[1])

    def xread(c):
        vm.wait(f"X{c}")
        for st in range(4):
            A(f"ds_read_b128 {v(Xr+16*c+4*st,4)}, v{vXa[st]} offset:{(c % 2) * 32768}")
        lg.issue(f"R{c}", 4)

    def wread(g):
        for ct in range(2):
            for u in range(2):
                A(f"ds_read_b64_tr_b16 {v(Wf+8*(g%3)+4*ct+2*u,2)}, v{vWr[ct]} offset:{g*2048+u*512}")
        lg.issue(f"F{g}", 4)

    xread(0)
    if role == "N":
        emit(fill, len(fill))
        flag_store(vm)
        if OPT["wqpf"]:
            dma(wq_touch())
        for i in range(4):
            A(f"v_mov_b32 v{vSt[i]}, {OOB}")
        for c in range(0, 7):
            if c:
                xread(c)
            lg.wait(f"R{c}")
            if c + 2 <= 6:
                for p in x_pieces(c + 2):
                    dma(p)
        A(f"""s_cmp_eq_u32 s{sKap}, 0
        s_cbranch_scc1 L_nq""")
        for i in range(7):
            dma(wq_piece(i))
        A.label("L_nq")
        return
    slots = {}
    for i, p in enumerate(x_pieces(2)):
        slots[(i // 2, i % 2)] = p
    for i in range(4):
        slots[([2, 2, 5, 5][i], i % 2)] = w_piece(3 + i)
    for c in range(0, 4):
        for i, p in enumerate(x_pieces(c + 3)):
            slots[(4 * c + 3 + i // 2, i % 2)] = p
    slots[(OPT["padg"], 1)] = st16(vPd, vP[0], sKVt)
    if OPT["wqpf"]:
        slots[(OPT["wqpf"], 0)] = wq_touch()
    nf = -(-len(fill) // 32)
    vm.wait("W2")
    ts(3, 2)
    A("s_barrier")
    ts(4, 2)
    wread(0)
    wread(1)

    def step(g):
        c = g // 4
        lg.wait(f"F{g}", f"R{c}")
        if g % 4 == 3:
            lg.wait(f"R{c+1}")
        if g % 4 == 2 and c + 1 <= 6:
            xread(c + 1)
        if g == 10:
            vm.wait("W6")
            A("s_barrier")
        if g % 4 == 0:
            ts(5 + c, 2)
        if g + 2 < 28:
            wread(g + 2)
        for ct in range(2):
            ac = [acc0, acc1][ct]
            wf, xf = v(Wf + 8 * (g % 3) + 4 * ct, 4), v(Xr + 4 * g, 4)
            a_, b_ = (wf, xf) if role == "K" else (xf, wf)
            A(f"v_mfma_f32_32x32x16_bf16 {v(ac,16)}, {a_}, {b_}, {'0' if g == 0 else v(ac,16)}")
            if (g, ct) in slots:
                dma(slots[(g, ct)])
            emit(fill, nf)

    def pack(store):
        for ct in range(2):
            ac = [acc0, acc1][ct]
            pp = Wf + 8 * ct
            for r in range(8):
                A(f"v_cvt_pk_bf16_f32 v{pp+r}, v{ac+2*r}, v{ac+2*r+1}")
                if role == "V" and r % 4 == 3 and store:
                    dma(st16(pp + r - 3, vSt[2 * ct + r // 4], sKVt))
            if role == "K":
                for i in range(2):
                    A(f"v_permlane16_swap_b32 v{pp+4*i}, v{pp+4*i+2}")
                    A(f"v_permlane16_swap_b32 v{pp+4*i+1}, v{pp+4*i+3}")
                    if store:
                        dma(st16(pp + 4 * i, vSt[2 * ct + i], sKVt))

    G0 = 17
    for g in range(G0):
        step(g)
    assert not fill
    A(f"""s_cmp_lg_u32 s{sKap}, 0
    s_cbranch_scc1 L_young{role}""")
    save = (list(vm.q), list(lg.q))
    for g in range(G0, 28):
        step(g)
    ts(2)
    ts(12, 2)
    pack(True)
    ts(1)
    for i in range(4):
        A(f"v_mov_b32 v{vSt[i]}, {OOB}")
    A("s_branch L_q")
    A.label(f"L_young{role}")
    vm.q, lg.q = save
    for i in range(7):
        k = OPT["wq0"] * 2 + OPT["wqs"] * i
        while (k // 2, k % 2) in slots:
            k += 1
        slots[(k // 2, k % 2)] = wq_piece(i)
    for g in range(G0, 28):
        step(g)
    ts(2)
    ts(12, 2)
    pack(False)
    A("s_branch L_q")


A(f"s_cbranch_scc1 L_now")
for i in range(3):
    A(w_piece(i)[0])
A.label("L_now")
ALLS = EARLY + MID + LATE
npro = max(len(EARLY), min(len(ALLS), OPT["npro"]))
PRO, REST = ALLS[:npro], ALLS[npro:]
PRO += lines(f"""s_waitcnt lgkmcnt(0)
s_mul_i32 s{stag}, s{sE}, 0x9e3779b1
s_add_u32 s{stag}, s{stag}, 0x7f4a7c15
v_mov_b32 v{vFl}, s{stag}""")
emit(PRO, 12)
if OPT["ibar"]:
    A("s_barrier")
for p in x_pieces(1):
    A(p[0])
    emit(PRO, 12)
emit(PRO, len(PRO))
ts(2, 2)
A(f"""s_cmp_eq_u32 s{sNone}, 1
s_cbranch_scc1 L_roleN
s_cmp_eq_u32 s{sRole}, 1
s_cbranch_scc1 L_roleV""")
pass1("K")
A.label("L_roleV")
pass1("V")
A.label("L_roleN")
pass1("N")
A.label("L_q")

LATE = []
A(f"""s_waitcnt vmcnt(0)
s_cmp_lg_u32 s{sKap}, 0
s_cbranch_scc1 L_noflag""")
flag_store(Cnt("vmcnt", 63))
A.label("L_noflag")
A("s_barrier")
ts(3)
ts(13, 2)
for r in range(32):
    LATE.append(f"v_mov_b32 v{O[0]+r}, 0")


def poll_text(mask):
    return f"""s_mov_b64 exec, {mask if mask < 64 else hex(mask)}
    buffer_load_dword v{vFl}, v{vPl}, s[{sWS}:{sWS+3}], s{sPl} offen sc1
    s_mov_b64 exec, -1"""


def poll_issue(mask=15):
    A(poll_text(mask))


ntry = [0]


def hook_try(level=2):
    ntry[0] += 1
    A(f"""s_cmp_ge_u32 s{sDone}, {level}
    s_cbranch_scc1 L_skip{ntry[0]}
    s_call_b64 s[{sRet}:{sRet+1}], L_try""")
    A.label(f"L_skip{ntry[0]}")


def spin(level, name):
    A(f"s_mov_b32 s{sSpin}, 0x40000")
    A.label(name)
    A(f"""s_cmp_ge_u32 s{sDone}, {level}
    s_cbranch_scc1 {name}_done
    s_call_b64 s[{sRet}:{sRet+1}], L_try
    s_sub_u32 s{sSpin}, s{sSpin}, 1
    s_cbranch_scc0 {name}""")
    A.label(name + "_done")


accQ = acc0
QD = OPT["qd"]
Wg = acc1 if QD == 3 else Wq8
lg = Cnt("lgkmcnt", 15)


def qread(g):
    for u in range(2):
        A(f"ds_read_b64_tr_b16 {v(Wg+4*(g%(QD+1))+2*u,2)}, v{vWqr} offset:{g*1024+u*256}")
    lg.issue(f"F{g}", 2)


for g in range(QD):
    qread(g)
for g in range(28):
    lg.wait(f"F{g}")
    A(f"v_mfma_f32_32x32x16_bf16 {v(accQ,16)}, {v(Wg+4*(g%(QD+1)),4)}, {v(Xr+4*g,4)}, {'0' if g == 0 else v(accQ,16)}")
    if g + QD < 28:
        qread(g + QD)
    if g >= 9:
        emit(LATE, 2)
    if g == OPT["pq"]:
        poll_issue()
    if g > OPT["pq"] and (g - OPT["pq"]) % OPT["tq"] == 0:
        hook_try(1)
assert not LATE
pqq = Wf + 16
for r in range(8):
    A(f"v_pk_mul_f32 {v(accQ+2*r,2)}, {v(accQ+2*r,2)}, s[{sCs}:{sCs+1}]")
for r in range(8):
    A(f"v_cvt_pk_bf16_f32 v{pqq+r}, v{accQ+2*r}, v{accQ+2*r+1}")
for r in (6, 7):
    A(f"v_cndmask_b32 v{pqq+r}, 0, v{pqq+r}, s[{sLo}:{sLo+1}]")
A(f"""ds_write_b128 v{vQw}, {v(pqq,4)}
ds_write_b128 v{vQw}, {v(pqq+4,4)} offset:1024""")
ts(11)
spin(1, "L_spin0")
A("""s_waitcnt vmcnt(1) lgkmcnt(0)
s_barrier""")
ts(12)

A(f"""ds_read_b128 {v(Q[0],4)}, v{vQr}
ds_read2st64_b64 {v(Kf[0],4)}, v{vBk} offset0:64 offset1:65
ds_read_b128 {v(Q[0]+4,4)}, v{vQr} offset:1024
ds_read2st64_b64 {v(Kf[0]+4,4)}, v{vBk} offset0:66 offset1:67
ds_read_b128 {v(Q[1],4)}, v{vQr} offset:2048
ds_read_b128 {v(Q[1]+4,4)}, v{vQr} offset:3072
ds_read2st64_b64 {v(Kf[1],4)}, v{vBk} offset0:72 offset1:73
ds_read2st64_b64 {v(Kf[1]+4,4)}, v{vBk} offset0:74 offset1:75
ds_read_b128 {v(Vf[0],4)}, v{vBase} offset:34816
ds_read_b128 {v(Vf[0]+4,4)}, v{vBase} offset:35840
s_waitcnt lgkmcnt(6)
v_mfma_f32_32x32x16_bf16 {v(S[0],16)}, {v(Kf[0],4)}, {v(Q[0],4)}, 0
v_mfma_f32_32x32x16_bf16 {v(S[0],16)}, {v(Kf[0]+4,4)}, {v(Q[0]+4,4)}, {v(S[0],16)}
s_waitcnt lgkmcnt(4)""")

POS = [32768, 0, 65536]


def kv_addr(blk, t, off):
    p = POS[blk % 3] + t * 4096 + off
    return (vCur, p - 65536) if POS[blk % 3] >= 65536 else (vBase, p)


def kv_next(st):
    pos = POS[st % 3]
    return f"""s_add_u32 s{sRel}, s{sRel}, {0x14000 if st == 4 else 0x10000}
    s_and_b32 s{sRel}, s{sRel}, 0x3ffff
    s_add_u32 m0, s{sMX}, {pos}
    s_add_u32 s{sD0}, s{sRel}, s{sKV}"""


def kv_piece(i):
    return f"buffer_load_dwordx4 v{vL16}, s[{sWS}:{sWS+3}], s{sD0} offen offset:{1024*i} sc1 lds"


def wo_piece(r):
    m = f"s_mov_b32 m0, s{sWm13}" if r == 13 else f"s_add_u32 m0, s{sWm}, {WOB + 8*r*896}"
    return f"""{m}
    s_add_u32 s{sD1}, s{sWn}, {8*r*3584}
    buffer_load_dwordx4 v{vWod}, s[{sWO}:{sWO+3}], s{sD1} offen lds"""


EXTRA = {}
AFTER = {}


def extra(w_, sl, text):
    EXTRA.setdefault((w_, sl), []).append(text)


def window(W):
    blk, u = divmod(W, 8)
    un, up = u + 1, u - 1
    tn, qn = un // 2, un % 2
    tp, qp = up // 2, up % 2
    Sc, Sn, Sp = S[u % 4], S[un % 4], S[up % 4]
    Kn, Vp = Kf[tn % 2], Vf[tp % 2]
    m = [f"v_mfma_f32_32x32x16_bf16 {v(Sn,16)}, {v(Kn,4)}, {v(Q[qn],4)}, 0",
         f"v_mfma_f32_32x32x16_bf16 {v(Sn,16)}, {v(Kn+4,4)}, {v(Q[qn]+4,4)}, {v(Sn,16)}",
         f"v_smfmac_f32_32x32x32_bf16 {v(O[qp],16)}, {v(Vp,4)}, {v(Sp,8)}, v{vIdx}",
         f"v_smfmac_f32_32x32x32_bf16 {v(O[qp],16)}, {v(Vp+4,4)}, {v(Sp+8,8)}, v{vIdx}"]
    if W == 0:
        m[2] = m[3] = None
    if W == 63:
        m = [m[2], None, m[3], None]
    mem = [[], [], [], []]
    pre = [[], [], [], []]

    def rd(dst, T, off):
        if off < 2048:
            o = (POS[(blk + T // 4) % 3] + (T % 4) * 4096 + off) // 512
            return f"ds_read2st64_b64 {v(dst,4)}, v{vBk} offset0:{o} offset1:{o+1}"
        a, o = kv_addr(blk + T // 4, T % 4, off)
        return f"ds_read_b128 {v(dst,4)}, v{a} offset:{o}"
    if u % 2 == 1:
        if not (u == 5 and blk > 0):
            A("s_waitcnt lgkmcnt(0)")
        tt = tn
        Kd, Vd = Kf[(tt + 1) % 2], Vf[tt % 2]
        rk = [rd(Kd, tt + 1, 0), rd(Kd + 4, tt + 1, 1024)]
        rv = [rd(Vd, tt, 2048), rd(Vd + 4, tt, 3072)]
        if W in (5, 61):
            mem[2].append(rv[0])
            mem[3].append(rv[1])
        elif W == 63:
            pass
        elif W == 7:
            A(rd(Kn, 4, 0))
            A(rd(Kn + 4, 4, 1024))
            m = [m[2], m[3], m[0], m[1]]
            mem[0] += [rk[0], rk[1]]
            mem[1] += [rv[0], rv[1]]
            pre[2].append("s_waitcnt lgkmcnt(4)")
        else:
            mem[0].append(rk[0])
            mem[1].append(rk[1])
            mem[2].append(rv[0])
            mem[3].append(rv[1])
    for q in range(4):
        for x in pre[q]:
            A(x)
        if m[q]:
            A(m[q])
        for x in mem[q] + (EXTRA.get((W, q), []) if not (OPT.get("nodma") and 23 <= W < 53) else []):
            A(x)
        for e in range(4):
            A(f"v_exp_f32 v{Sc+4*q+e}, v{Sc+4*q+e}")
    for hk in AFTER.get(W, []):
        hk()


def hook_bar0():
    spin(2, "L_spin1")
    A("""s_waitcnt vmcnt(0)
    s_barrier""")
    ts(6)


def mk_bar(n):
    def f():
        A(f"""s_waitcnt vmcnt({n}) lgkmcnt(0)""")
        if not OPT.get("nobar"):
            A("s_barrier")
    return f


def hook_pollc():
    A(f"""v_cmp_ne_u32 vcc, s{stag}, v{vQm}
    s_cmp_lg_u64 vcc, 0
    s_cbranch_scc1 L_pollc""")
    A.label("L_pollc_done")


hook_try()
for u in range(0, 6):
    AFTER.setdefault(u, []).append(hook_try)
AFTER.setdefault(6, []).append(hook_bar0)
extra(7, 2, kv_next(2) + "\n" + kv_piece(0))
extra(7, 3, kv_piece(1))
extra(8, 1, kv_piece(2))
extra(8, 3, kv_piece(3))
for i in range(4):
    extra(OPT["pubw"] + i // 2, [1, 3][i % 2], st16(Wf + 4 * i, vSt[i], sKVt)[0])
extra(10, 0, st16(vOnes, vL16, sOt)[0])
extra(10, 2, st16(vOnes, vL16, sOt, 1024)[0])
for ww, off in ((8, 0), (22, 64)):
    extra(ww, 1 if ww == 22 else 0, f"""v_mov_b32 v{t0}, s{stag}
    s_mov_b64 exec, 1
    buffer_store_dword v{t0}, v{vFl+1}, s[{sWS}:{sWS+3}], s{sFl} offen offset:{off} sc1
    s_mov_b64 exec, -1""")
extra(17, 1, poll_text(0x7fff0000).replace("0x7fff0000", "0xffff0000"))


def hook_pollh():
    A(f"""v_cmp_ne_u32 vcc, s{stag}, v{vFl}
    s_and_b32 s{sD1}, vcc_lo, 0xffff0000
    s_cbranch_scc1 L_pollh""")
    A.label("L_pollh_done")


wo_early = list(range(5, 13))
for i in range(1, 8):
    nwo = 2 if i == 1 else 0
    if i >= 2 and wo_early:
        for sl in (0, 2):
            extra(8 * i + 2, sl, wo_piece(wo_early.pop(0)))
            nwo += 1
    AFTER.setdefault(8 * i + 4, []).append(mk_bar(nwo))
    if i <= 5:
        extra(8 * i + 6, 0, kv_next(i + 2) + "\n" + kv_piece(0))
        extra(8 * i + 6, 2, kv_piece(1))
        extra(8 * i + 8, 0, kv_piece(2))
        extra(8 * i + 8, 2, kv_piece(3))
assert not wo_early
for k, r in enumerate([0, 1, 2, 3, 4, 13]):
    extra([54, 54, 55, 56, 56, 57][k], [0, 2, 1, 0, 2, 1][k], wo_piece(r))
extra(53, 1, f"buffer_load_dword v{vQm}, v{vPc}, s[{sWS}:{sWS+3}], s{sPc} offen offset:64 sc1")
AFTER[60].append(hook_pollc)
AFTER[20].append(hook_pollh)
PSEG = {1: [(0, 0, 3), (3, 0, 2), (6, 0, 1), (7, 2, 0)], 2: [(0, 0, 3), (4, 0, 2), (6, 2, 1), (7, 3, 0)],
        3: [(0, 0, 1), (7, 2, 0)], 4: [(0, 0, 3), (2, 0, 2), (4, 0, 1), (6, 0, 0)], 5: [(0, 0, 1), (7, 0, 0)],
        6: [(0, 0, 2), (5, 0, 1), (7, 2, 0)]}
if OPT.get("pseg"):
    for (ww, sl, pr) in [(0, 0, 3), (3, 0, 2), (5, 2, 1), (6, 3, 0), (7, 0, 3), (9, 0, 2), (11, 2, 1), (12, 3, 0)]:
        EXTRA.setdefault((ww, sl), []).insert(0, f"s_setprio {pr}")
    for i in range(1, 7):
        for (dw, sl, pr) in PSEG[OPT["pseg"]]:
            EXTRA.setdefault((8 * i + 5 + dw, sl), []).insert(0, f"s_setprio {pr}")
if OPT.get("prio"):
    A(f"""s_cmp_eq_u32 s{sKap}, {OPT["prio"] & 1}
    s_cbranch_scc0 L_np
    s_setprio 1""")
    A.label("L_np")
for W in range(64):
    if W in (24, 48):
        ts(1 if W == 24 else 2, 4)
    window(W)
A(f"""s_nop 0
v_smfmac_f32_32x32x32_bf16 {v(O[1],16)}, {v(Vf[1],4)}, {v(S[3],8)}, v{vIdx}
v_smfmac_f32_32x32x32_bf16 {v(O[1],16)}, {v(Vf[1]+4,4)}, {v(S[3]+8,8)}, v{vIdx}""")
ts(7)

A(f"""s_waitcnt lgkmcnt(0)
s_cmp_eq_u32 s{sKap}, 0
s_cbranch_scc1 L_p3
s_mov_b32 s{sSpin}, 0x400000""")
A.label("L_mwait")
A(f"""ds_read_b32 v{t2}, v{vMf}
s_sub_u32 s{sSpin}, s{sSpin}, 1
s_cbranch_scc1 L_mgo
s_waitcnt lgkmcnt(0)
v_readfirstlane_b32 s{sT0}, v{t2}
s_cmp_eq_u32 s{sT0}, 0
s_cbranch_scc1 L_mwait""")
A.label("L_mgo")
R = S[0]
for i in range(8):
    A(f"ds_read_b128 {v(R+4*i,4)}, v{vRw} offset:{1024*i}")
for q in range(2):
    A(f"s_waitcnt lgkmcnt({4-4*q})")
    for r in range(0, 16, 2):
        A(f"v_pk_add_f32 {v(O[q]+r,2)}, {v(O[q]+r,2)}, {v(R+16*q+r,2)}")
A.label("L_norm")
rc = [vFl, S[2]]
A(f"""v_mov_b32 v{t0}, v{O[0]+12}
v_mov_b32 v{rc[0]}, v{O[0]+12}
v_mov_b32 v{t1}, v{O[1]+12}
v_mov_b32 v{rc[1]}, v{O[1]+12}
s_add_u32 s{sT0}, s{sOp}, 32768
v_permlane32_swap_b32 v{t0}, v{rc[0]}
v_permlane32_swap_b32 v{t1}, v{rc[1]}
v_subrev_u32 v{t0}, {hex(L_LO)}, v{rc[0]}
v_subrev_u32 v{t1}, {hex(L_LO)}, v{rc[1]}
v_max_u32 v{t0}, v{t0}, v{t1}
v_cmp_lt_u32 vcc, s{sChk}, v{t0}
s_cmp_lg_u64 vcc, 0
s_cbranch_scc1 L_slow
v_rcp_f32 v{rc[0]}, v{rc[0]}
v_rcp_f32 v{rc[1]}, v{rc[1]}""")
for q in range(2):
    po = [pk, pq][q]
    so = [sOp, sT0][q]
    for r in range(0, 16, 2):
        A(f"v_pk_mul_f32 {v(O[q]+r,2)}, {v(O[q]+r,2)}, {v(rc[q],2)} op_sel_hi:[1,0]")
    for r in range(8):
        A(f"v_cvt_pk_bf16_f32 v{po+r}, v{O[q]+2*r}, v{O[q]+2*r+1}")
    for r in (6, 7):
        A(f"v_cndmask_b32 v{po+r}, 0, v{po+r}, s[{sLo}:{sLo+1}]")
    for r in range(8):
        A(f"v_min_u32 v{po+r}, -2, v{po+r}")
    A(f"""buffer_store_dwordx4 {v(po,4)}, v{vL16}, s[{sWS}:{sWS+3}], s{so} offen sc1
    buffer_store_dwordx4 {v(po+4,4)}, v{vL16}, s[{sWS}:{sWS+3}], s{so} offen offset:1024 sc1""")
ts(8)
ts(10, 3)
A("s_branch L_noep")

A.label("L_p3")
Of = S[0]
Wr_ = Kf[0]
acc = O[0]
vLr = vQm
assert Vf[1] == Kf[0] + 24 and S[3] == S[0] + 48 and O[1] == O[0] + 16


def light_poll():
    A(f"""s_mov_b64 exec, 0xffff
    buffer_load_dword v{vLr}, v{vLp}, s[{sWS}:{sWS+3}], s{sOin} offen sc1
    s_mov_b64 exec, -1""")


light_poll()
for i in range(8):
    A(f"ds_write_b128 v{vRw}, {v(O[0]+4*i,4)} offset:{1024*i}")
A(f"""v_mov_b32 v{t0}, 1
s_waitcnt lgkmcnt(0)
ds_write_b32 v{vMf}, v{t0}""")
for r in range(28):
    A(f"v_mov_b32 v{acc+r}, 0")
ts(8)
ts(10, 3)


GROUPS = [[[0, 1, 2, 3], [4, 5, 6, 7], [8, 9, 10, 11], [12, 13, 14, 15]],
          [[0, 1, 3, 5], [7, 8, 10, 12], [14, 15, 2, 4], [6, 9, 11, 13]]][OPT["grp"]]


def o_loads(g):
    for k, hh in enumerate(GROUPS[g]):
        A(f"s_add_u32 s{sT0}, s{sOin}, {hh*2048}")
        A(f"buffer_load_dwordx4 {v(Of+16*g+4*k,4)}, v{vOa}, s[{sWS}:{sWS+3}], s{sT0} offen sc1")


def wo_read(g, i):
    hh, ct = GROUPS[g][i // 7], i % 7
    if hh == 15:
        a0, a1, off = vW0c, vW1c, 0
    elif hh >= 8:
        a0, a1, off = vW0b, vW1b, (hh - 8) * 6272
    else:
        a0, a1, off = vW0, vW1, hh * 6272
    d = Wr_ + 4 * (i % 8)
    A(f"ds_read_b64_tr_b16 {v(d,2)}, v{a0} offset:{off+32*ct}")
    A(f"ds_read_b64_tr_b16 {v(d+2,2)}, v{a1} offset:{off+32*ct}")


A(f"""s_mov_b32 s{sDone}, 0
s_mov_b32 s{sPend}, 0
s_mov_b32 s{sTodo}, 0
s_mov_b32 s{sSpin}, 0x40000""")
A.label("L_round")
A(f"""s_waitcnt vmcnt(0) lgkmcnt(0)
v_cmp_ne_u32 s[{sRdy}:{sRdy+1}], -1, v{vLr}""")
for g in range(4):
    b0 = Of + 16 * g
    A(f"""s_bitcmp0_b32 s{sPend}, {g}
    s_cbranch_scc1 L_chk{g}
    v_max3_u32 v{t0}, v{b0}, v{b0+1}, v{b0+2}""")
    for r in range(3, 15, 2):
        A(f"v_max3_u32 v{t0}, v{b0+r}, v{b0+r+1}, v{t0}")
    A(f"""v_max_u32 v{t0}, v{b0+15}, v{t0}
    v_cmp_eq_u32 vcc, -1, v{t0}
    s_cmp_lg_u64 vcc, 0
    s_cbranch_scc1 L_chk{g}
    s_bitset1_b32 s{sTodo}, {g}
    s_bitset1_b32 s{sDone}, {g}""")
    ts(1 + g, 3)
    A.label(f"L_chk{g}")
A(f"""s_mov_b32 s{sPend}, 0
s_mov_b32 s{sI}, 4
s_xor_b32 s{sRem}, s{sDone}, 15
s_cbranch_scc0 L_issued
s_mov_b32 s{sI}, {OPT['per']}
s_bcnt1_i32_b32 s{sT0}, s{sRem}
s_cmp_le_u32 s{sT0}, {OPT['full']}
s_cselect_b32 s{sRdy}, -1, s{sRdy}""")
for g in range(4):
    mask = sum(1 << hh for hh in GROUPS[g])
    A(f"""s_bitcmp0_b32 s{sRem}, {g}
    s_cbranch_scc1 L_iss{g}
    s_andn2_b32 s{sT0}, {hex(mask)}, s{sRdy}
    s_cbranch_scc1 L_iss{g}
    s_bitset1_b32 s{sPend}, {g}""")
    o_loads(g)
    A.label(f"L_iss{g}")
light_poll()
A.label("L_issued")
for g in range(4):
    A(f"""s_bitcmp0_b32 s{sTodo}, {g}
    s_cbranch_scc1 L_prc{g}
    s_sub_u32 s{sI}, s{sI}, 1
    s_cbranch_scc1 L_round
    s_bitset0_b32 s{sTodo}, {g}""")
    for i in range(6):
        wo_read(g, i)
    for i in range(0, 28, 2):
        A(f"s_waitcnt lgkmcnt({2*(min(28, i+6) - (i+2))})")
        for k in (i, i + 1):
            ct = k % 7
            A(f"v_mfma_f32_16x16x32_bf16 {v(acc+4*ct,4)}, {v(Wr_+4*(k%8),4)}, {v(Of+16*g+4*(k//7),4)}, {v(acc+4*ct,4)}")
            if k + 6 < 28:
                wo_read(g, k + 6)
    ts(5 + g, 3)
    A.label(f"L_prc{g}")
A(f"""s_sub_u32 s{sSpin}, s{sSpin}, 1
s_cbranch_scc1 L_rounds_done
s_cmp_lg_u32 s{sDone}, 15
s_cbranch_scc1 L_round""")
A.label("L_rounds_done")
ts(9)
ts(9, 3)
if OPT["ts"] == 3:
    A(f"""s_sub_u32 s{sT0}, 0x40000, s{sSpin}
    v_writelane_b32 v{vTS}, s{sT0}, 14""")
pk2 = Q[0]
rb = S[0]
A(f"s_add_u32 s{sT1}, s{sOut}, {8*1792}")
for ct in range(1, 4):
    A(f"v_xor_b32 v{vT[ct]}, {32*ct}, v{vTw}")
wa = [vTw, vT[1], vT[2], vT[3]]
for ps in range(2):
    for ct in range(4 * ps, min(7, 4 * ps + 4)):
        A(f"""v_cvt_pk_bf16_f32 v{pk2+2*ct}, v{acc+4*ct}, v{acc+4*ct+1}
        v_cvt_pk_bf16_f32 v{pk2+2*ct+1}, v{acc+4*ct+2}, v{acc+4*ct+3}
        ds_write_b64 v{wa[ct%4]}, {v(pk2+2*ct,2)}""")
    A(f"""ds_read_b128 {v(rb+8*ps,4)}, v{vTr}
    ds_read_b128 {v(rb+8*ps+4,4)}, v{vTr} offset:1024""")
A(f"""s_waitcnt lgkmcnt(5)
buffer_store_dwordx4 {v(rb,4)}, v{vOs}, s[{sOUT}:{sOUT+3}], s{sOut} offen
buffer_store_dwordx4 {v(rb+4,4)}, v{vOs}, s[{sOUT}:{sOUT+3}], s{sT1} offen
s_waitcnt lgkmcnt(0)
buffer_store_dwordx4 {v(rb+8,4)}, v{vOs2}, s[{sOUT}:{sOUT+3}], s{sOut} offen
buffer_store_dwordx4 {v(rb+12,4)}, v{vOs2}, s[{sOUT}:{sOUT+3}], s{sT1} offen""")
A(f"""s_or_b32 s{sT0}, s{sh}, s{sj}
s_or_b32 s{sT0}, s{sT0}, s{sw}
s_cmp_lg_u32 s{sT0}, 0
s_cbranch_scc1 L_noep
s_add_u32 s{sE}, s{sE}, 1
s_lshl_b32 s{sT0}, s{sb}, 8
s_add_u32 s{sT0}, s{sT0}, {EPOCH_OFF}
v_mov_b32 v{t0}, 0
v_mov_b32 v{t1}, s{sE}
s_mov_b64 exec, 1
buffer_store_dword v{t1}, v{t0}, s[{sWS}:{sWS+3}], s{sT0} offen sc1
s_mov_b64 exec, -1""")
A.label("L_noep")
if OPT["ts"]:
    A("s_waitcnt vmcnt(0)")
    ts(10)
    ts(11, 3)
    A(f"""s_lshl_b32 s{sT0}, s2, 3
    s_add_u32 s{sT0}, s{sT0}, s{sw}
    s_lshl_b32 s{sT0}, s{sT0}, 6
    s_add_u32 s{sT0}, s{sT0}, {TS_OFF}
    s_getreg_b32 s{sT1}, hwreg(HW_REG_XCC_ID)
    v_writelane_b32 v{vTS}, s{sT1}, 15
    v_lshlrev_b32 v{t0}, 2, v{vLane}
    s_mov_b64 exec, 0xffff
    buffer_store_dword v{vTS}, v{t0}, s[{sWS}:{sWS+3}], s{sT0} offen""")
    if OPT.get("dbg"):
        A(f"""v_readlane_b32 s{sT0}, v{vTS}, 0
        s_not_b32 s{sT0}, s{sT0}
        v_writelane_b32 v{vTS}, s{sT0}, 15
        s_mov_b32 s{sX}, s22
        s_mov_b32 s{sX+1}, s23
        s_mov_b32 s{sX+2}, 256
        buffer_atomic_umax v{vTS}, v{t0}, s[{sX}:{sX+3}], 0 offen""")
A.label("L_end")
A("s_endpgm")

A.label("L_try")
A(f"""s_waitcnt vmcnt(0)
v_cmp_ne_u32 vcc, s{stag}, v{vFl}
s_cmp_lg_u32 s{sDone}, 0
s_cbranch_scc1 L_try1
s_and_b32 s{sD1}, vcc_lo, 15
s_cbranch_scc0 L_try0""")
poll_issue(15)
A(f"s_setpc_b64 s[{sRet}:{sRet+1}]")
A.label("L_try0")
ts(5)
A(kv_next(0))
for i in range(4):
    A(kv_piece(i))
A(f"""s_mov_b32 s{sDone}, 1
s_branch L_again""")
A.label("L_try1")
A(f"""s_and_b32 s{sD1}, vcc_lo, 0xffff
s_cbranch_scc1 L_again""")
ts(13)
A(kv_next(1))
for i in range(4):
    A(kv_piece(i))
A(f"""s_mov_b32 s{sDone}, 2
s_setpc_b64 s[{sRet}:{sRet+1}]""")
A.label("L_again")
poll_issue(0xffff)
A(f"s_setpc_b64 s[{sRet}:{sRet+1}]")

A.label("L_pollc")
A(f"s_mov_b32 s{sSpin}, 0x40000")
A.label("L_pollc1")
A(f"""buffer_load_dword v{vQm}, v{vPc}, s[{sWS}:{sWS+3}], s{sPc} offen offset:64 sc1
s_sub_u32 s{sSpin}, s{sSpin}, 1
s_cbranch_scc1 L_pollc_done
s_waitcnt vmcnt(0)
v_cmp_ne_u32 vcc, s{stag}, v{vQm}
s_cmp_lg_u64 vcc, 0
s_cbranch_scc1 L_pollc1
s_branch L_pollc_done""")

A.label("L_pollh")
A(f"s_mov_b32 s{sSpin}, 0x40000")
A.label("L_pollh1")
A(poll_text(0x7fff0000).replace('0x7fff0000', '0xffff0000'))
A(f"""s_sub_u32 s{sSpin}, s{sSpin}, 1
s_cbranch_scc1 L_pollh_done
s_waitcnt vmcnt(0)
v_cmp_ne_u32 vcc, s{stag}, v{vFl}
s_and_b32 s{sD1}, vcc_lo, 0xffff0000
s_cbranch_scc1 L_pollh1
s_branch L_pollh_done""")

A.label("L_slow")
Sx, vMn, vAl = S[2], t2, t3
vM = [t4, t5]
A(f"""s_mov_b32 s{sChk}, -1
v_lshlrev_b32 v{vBk}, 3, v{vLane}
v_mov_b32 v{vM[0]}, 0xff7fffff
v_mov_b32 v{vM[1]}, 0xff7fffff
s_mov_b32 s{sT0}, s{sKV}
s_mov_b32 s{sI}, 0""")
for r in range(32):
    A(f"v_mov_b32 v{O[0]+r}, 0")
A.label("L_slow_t")
for i in range(4):
    A(f"buffer_load_dwordx2 {v(Kf[0]+2*i,2)}, v{vBk}, s[{sWS}:{sWS+3}], s{sT0} offen offset:{512*i} sc1")
A(f"""buffer_load_dwordx4 {v(Vf[0],4)}, v{vL16}, s[{sWS}:{sWS+3}], s{sT0} offen offset:2048 sc1
buffer_load_dwordx4 {v(Vf[0]+4,4)}, v{vL16}, s[{sWS}:{sWS+3}], s{sT0} offen offset:3072 sc1
s_add_u32 s{sT0}, s{sT0}, 4096
s_waitcnt vmcnt(0)""")
for q in range(2):
    A(f"""v_mfma_f32_32x32x16_bf16 {v(Sx,16)}, {v(Kf[0],4)}, {v(Q[q],4)}, 0
    v_mfma_f32_32x32x16_bf16 {v(Sx,16)}, {v(Kf[0]+4,4)}, {v(Q[q]+4,4)}, {v(Sx,16)}
    v_max3_f32 v{t0}, v{Sx}, v{Sx+1}, v{vM[q]}""")
    for r in range(2, 16, 2):
        A(f"v_max3_f32 v{t0}, v{Sx+r}, v{Sx+r+1}, v{t0}")
    A(f"""v_mov_b32 v{t1}, v{t0}
    v_permlane32_swap_b32 v{t0}, v{t1}
    v_max_f32 v{vMn}, v{t0}, v{t1}
    v_sub_f32 v{vAl}, v{vM[q]}, v{vMn}
    v_exp_f32 v{vAl}, v{vAl}
    v_mov_b32 v{vM[q]}, v{vMn}""")
    for r in range(16):
        A(f"v_sub_f32 v{Sx+r}, v{Sx+r}, v{vMn}")
    for r in range(16):
        A(f"v_exp_f32 v{Sx+r}, v{Sx+r}")
    for r in range(16):
        A(f"v_mul_f32 v{O[q]+r}, v{vAl}, v{O[q]+r}")
    A(f"""v_smfmac_f32_32x32x32_bf16 {v(O[q],16)}, {v(Vf[0],4)}, {v(Sx,8)}, v{vIdx}
    v_smfmac_f32_32x32x32_bf16 {v(O[q],16)}, {v(Vf[0]+4,4)}, {v(Sx+8,8)}, v{vIdx}""")
A(f"""s_add_u32 s{sI}, s{sI}, 1
s_cmp_lt_u32 s{sI}, 64
s_cbranch_scc1 L_slow_t
s_nop 11
s_branch L_norm""")

n = A.fix_hazards(verbose=bool(OPT.get("v", 0)))
NV = -(-V.hi // 8) * 8
hdr = open("cdna_kernels/" + NAME + ".s.ref").read().split("; Override launch")[0]
out = hdr + f"""; Fused kernel: QKV projection -> softmax attention -> output projection, one workgroup per
; (branch, head, 256-token block).  Generated by gen/gen.py.
; @launch grid=(256,1,1) block=(512,1,1) lds={LDS_BYTES}
.amdgcn_target "amdgcn-amd-amdhsa--gfx950"
.text
.globl {NAME}_kernel
.p2align 8
.type {NAME}_kernel,@function
""" + A.text().replace("CODE_SPAN", "L_slow-L_nopf") + f""".section .rodata,"a"
.p2align 6
.amdhsa_kernel {NAME}_kernel
  .amdhsa_next_free_vgpr {NV}
  .amdhsa_next_free_sgpr {NSGPR}
  .amdhsa_accum_offset {NV}
  .amdhsa_group_segment_fixed_size 0
  .amdhsa_kernarg_size 72
  .amdhsa_user_sgpr_count 2
  .amdhsa_user_sgpr_kernarg_segment_ptr 1
  .amdhsa_system_sgpr_workgroup_id_x 1
.end_amdhsa_kernel
"""
open(sys.argv[1], "w").write(out)
print(f"wrote {sys.argv[1]}: {len(A.lines)} lines, {n} nops inserted, {NV} vgprs", file=sys.stderr)
```

```python
import sys, struct, math
from asmlib import Asm, Alloc, v, s

NAME = "concat_heads__softmax_full_mha__softmax_full_mha__prompt"

OPT = dict(ts=0, force_slow=0, rot=2, map=1, pf=1, full=2, grp=0, per=2, pq=8, tq=6, wq0=17, wqs=2, padg=20, ibar=1, pubw=1, wqpf=6, pseg=2, npro=170, qd=3)
for a in sys.argv[2:]:
    k, val = a.split("=")
    OPT[k] = int(val)

FLAG_OFF = 0xD00000
ES = OPT.get("es", 7)
FS = OPT.get("fs", 16 << ES)
EPOCH_OFF = 0x10000
TS_OFF = 0x20000
KV_OFF = 0x100000
O_OFF = 0x900000
WS_BYTES = 0x1000000
OOB = 0x40000000

XS = 57344
WQ = 131072
QOFF = 98304
WOB = 66944
WO15 = 32768
MISC = 161280
OT = 16384
LDS_BYTES = 163840

CSCALE = math.log2(math.e) / math.sqrt(28.0)
L_LO = (127 - 60) << 23
L_RANGE = 120 << 23


def f2u(x):
    return struct.unpack("<I", struct.pack("<f", x))[0]


NTX = " nt" if OPT.get("ntx") else ""
NTW = " nt" if OPT.get("ntw") else ""
OSC = ["", " sc1", " nt", " sc0 sc1", " sc1 nt"][OPT.get("osc", 0)]
A = Asm()
sWm, sWm13 = 26, 27
sX, sW, sWS, sWO, sOUT = 28, 32, 36, 40, 44
sw, sb, sh, sj, stag, sE = 48, 49, 50, 51, 52, 53
sCx, sXb, sWb, sMX, sMW, sCw = 54, 55, 56, 57, 58, 59
sT0, sT1, sT2, sT3 = 60, 61, 62, 63
sLo = 64
sLine, sRole = 66, 67
sKV = 68
sMXs, sWq = 69, 70
sI, sRel, sWn, sHH = 71, 72, 73, 74
sSpin = 75
sOt = 76
sWoff = 77
sKap = 78
sFl = 79
sTS = 80
sRet = 82
sDone, sTodo = 84, 85
sOin = 86
sPc = 87
sOut = 88
sChk = 89
sCs = 90
sKVt = 92
sD0, sD1 = 93, 94
sPend, sRem = 95, 96
sOp = 97
sRdy = 98
sHi, sPl, sC0, sMQ = 4, 5, 6, 7
sCq, sNone = 3, 100
NSGPR = 102


def ts(idx, grp=1):
    if not OPT["ts"] or (idx != 0 and OPT["ts"] != grp):
        return
    A(f"""{"s_memtime" if OPT.get("clk") else "s_memrealtime"} s[{sTS}:{sTS+1}]
    s_waitcnt lgkmcnt(0)
    v_writelane_b32 v{vTS}, s{sTS}, {idx}""")


class Cnt:
    def __init__(self, name, cap):
        self.name, self.cap, self.q = name, cap, []

    def issue(self, tag, n=1):
        self.q += [tag] * n
        assert len(self.q) <= self.cap, (self.name, self.q)

    def wait(self, *tags):
        idx = [i for i, t in enumerate(self.q) if t in tags]
        if idx:
            n = len(self.q) - 1 - idx[-1]
            A(f"s_waitcnt {self.name}({n})")
            self.q = self.q[idx[-1] + 1:]


def lines(text):
    return [x.strip() for x in text.split("\n") if x.strip()]


def emit(lst, n):
    for _ in range(min(n, len(lst))):
        A(lst.pop(0))


V = Alloc(1, 256)
vLane = V()
vTS = V()
vL16 = V()
vIdx = V()
vT = [V() for _ in range(6)]
t0, t1, t2, t3, t4, t5 = vT
vQw, vQr, vBase, vCur, vWod, vPl, vPc, vQm, vBk = [V() for _ in range(9)]
vOa, vW0, vW1, vW0b, vW1b, vW0c, vW1c, vRw, vMf, vTw, vTr, vOs, vOs2, vLp = [V() for _ in range(14)]
vFl = V(2)
m_ph = V.mark()
Xr = V(112)
acc0, acc1 = V(16), V(16)
Wf = V(24)
vXd = [V() for _ in range(4)]
vWd = V()
vWq = V()
vXa = [V() for _ in range(4)]
vWr = [V(), V()]
vWqr = V()
vSt = [V() for _ in range(4)]
vP = [V()]
vPf = V()
vOnes = V(4)
vPd = V(4)
Wq8 = V(24)
V.reset(m_ph)
O = [V(16), V(16)]
Q = [V(8), V(8)]
S = [V(16) for _ in range(4)]
Kf = [V(8), V(8)]
Vf = [V(8), V(8)]
pk, pq = V(8), V(8)
assert O[0] == Xr

A.label(NAME + "_kernel")
A(f"""s_cmp_ge_u32 s2, 256
s_cbranch_scc1 L_end
s_load_dwordx16 s[8:23], s[0:1], 0
s_load_dwordx2 s[24:25], s[0:1], 64
v_lshrrev_b32 v{t0}, 6, v0
v_and_b32 v{vLane}, 63, v0
v_readfirstlane_b32 s{sw}, v{t0}
v_lshlrev_b32 v{vL16}, 4, v{vLane}""")
if OPT.get("padto"):
    A(f"s_memrealtime s[{sTS}:{sTS+1}]")
if OPT["ts"]:
    A(f"""{"s_memtime" if OPT.get("clk") else "s_memrealtime"} s[{sTS}:{sTS+1}]
    v_mov_b32 v{vTS}, 0""")
if OPT["map"] == 1:
    A(f"""s_and_b32 s{sT0}, s2, 7
    s_lshr_b32 s{sT1}, s2, 3
    s_and_b32 s{sj}, s{sT1}, 7
    s_lshr_b32 s{sT1}, s{sT1}, 3
    s_lshl_b32 s{sT0}, s{sT0}, 2
    s_add_u32 s{sHH}, s{sT0}, s{sT1}""")
elif OPT["map"] == 2:
    A(f"""s_and_b32 s{sT0}, s2, 7
    s_lshr_b32 s{sT1}, s2, 3
    s_and_b32 s{sT2}, s{sT0}, 3
    s_lshl_b32 s{sT2}, s{sT2}, 1
    s_lshr_b32 s{sT3}, s{sT1}, 4
    s_add_u32 s{sj}, s{sT2}, s{sT3}
    s_lshr_b32 s{sT0}, s{sT0}, 2
    s_lshl_b32 s{sT0}, s{sT0}, 4
    s_and_b32 s{sT1}, s{sT1}, 15
    s_add_u32 s{sHH}, s{sT0}, s{sT1}""")
elif OPT["map"] == 3:
    A(f"""s_and_b32 s{sT0}, s2, 7
    s_lshr_b32 s{sT1}, s2, 3
    s_and_b32 s{sT2}, s{sT0}, 1
    s_lshl_b32 s{sT2}, s{sT2}, 2
    s_lshr_b32 s{sT3}, s{sT1}, 3
    s_add_u32 s{sj}, s{sT2}, s{sT3}
    s_lshr_b32 s{sT0}, s{sT0}, 1
    s_lshl_b32 s{sT0}, s{sT0}, 3
    s_and_b32 s{sT1}, s{sT1}, 7
    s_add_u32 s{sHH}, s{sT0}, s{sT1}""")
A(f"""s_lshr_b32 s{sb}, s{sHH}, 4
s_and_b32 s{sh}, s{sHH}, 15
s_lshr_b32 s{sKap}, s{sw}, 2""")
A(f"""s_cmp_gt_u32 s{sh}, 7
s_cselect_b32 s{sRole}, 1, 0
s_cselect_b32 s{sT0}, 16, 1
s_cselect_b32 s{sT1}, 1, 2
s_cselect_b32 s{sT2}, 2, 8
s_cselect_b32 s{sT3}, 8, 16
v_bfe_u32 v{t0}, v{vLane}, 3, 1
v_mul_u32_u24 v{t0}, s{sT0}, v{t0}
v_bfe_u32 v{t1}, v{vLane}, 4, 1
v_mad_u32_u24 v{t0}, v{t1}, s{sT1}, v{t0}
v_lshrrev_b32 v{t1}, 5, v{vLane}
v_lshl_add_u32 v{t0}, v{t1}, 2, v{t0}
v_mul_u32_u24 v{t3}, 896, v{t0}
s_mul_i32 s{sT2}, s{sT2}, 896
s_mul_i32 s{sT3}, s{sT3}, 896
s_sub_u32 s{sT2}, s{sT2}, 1024
s_sub_u32 s{sT3}, s{sT3}, 2048
v_lshrrev_b32 v{t1}, 4, v{vLane}
v_and_b32 v{t2}, 7, v{vLane}
v_xor_b32 v{t1}, v{t1}, v{t2}
v_lshl_add_u32 v{vXd[0]}, v{t1}, 4, v{t3}
v_xor_b32 v{t1}, 4, v{t1}
v_lshl_add_u32 v{t1}, v{t1}, 4, v{t3}
v_add_u32 v{vXd[1]}, s{sT2}, v{t1}
v_add_u32 v{vXd[2]}, s{sT3}, v{vXd[0]}
v_add_u32 v{vXd[3]}, s{sT3}, v{vXd[1]}
s_lshl_b32 s{sT0}, s{sj}, 3
s_add_u32 s{sT0}, s{sT0}, s{sw}
s_mul_i32 s{sXb}, s{sT0}, {32*896}
s_lshl_b32 s{sMX}, s{sw}, 12
s_add_u32 s{sMXs}, s{sMX}, {XS}""")
if OPT["rot"] == 0:
    A(f"s_mov_b32 s{sC0}, 0")
else:
    if OPT["rot"] == 1:
        A(f"s_add_u32 s{sC0}, s{sh}, s{sj}")
    elif OPT["rot"] == 2:
        A(f"""s_mul_i32 s{sC0}, s{sh}, 7
        s_lshr_b32 s{sC0}, s{sC0}, 4
        s_add_u32 s{sC0}, s{sC0}, s{sj}""")
    elif OPT["rot"] == 3:
        A(f"""s_mul_i32 s{sC0}, s{sh}, 7
        s_lshr_b32 s{sC0}, s{sC0}, 4""")
    A(f"""s_mul_i32 s{sT1}, s{sC0}, 37
    s_lshr_b32 s{sT1}, s{sT1}, 8
    s_mul_i32 s{sT1}, s{sT1}, 7
    s_sub_u32 s{sC0}, s{sC0}, s{sT1}""")
if OPT["pf"]:
    A(f"""s_and_b32 s{sT0}, s2, 0xf8
    s_add_u32 s{sT0}, s{sT0}, s{sw}
    s_lshl_b32 s{sT0}, s{sT0}, 7
    s_min_u32 s{sT0}, s{sT0}, CODE_SPAN
    s_getpc_b64 s[{sRet}:{sRet+1}]""")
    A.label("L_nopf")
    A(f"""v_mov_b32 v{t4}, s{sT0}
    global_load_dword v{t5}, v{t4}, s[{sRet}:{sRet+1}]""")
A(f"""s_lshl_b32 s{sCx}, s{sC0}, 7
s_mov_b32 s{sX+2}, {2048*896}
s_mov_b32 s{sX+3}, 0x20000
s_cmp_eq_u32 s{sb}, 0
s_waitcnt lgkmcnt(0)
s_cselect_b32 s{sX}, s8, s14
s_cselect_b32 s{sX+1}, s9, s15
s_cselect_b32 s{sW}, s10, s16
s_cselect_b32 s{sW+1}, s11, s17
s_cselect_b32 s{sWO}, s12, s18
s_cselect_b32 s{sWO+1}, s13, s19""")
if OPT["ts"]:
    A(f"v_writelane_b32 v{vTS}, s{sTS}, 0")
    ts(14, 2)


def x_pieces(c):
    p = [f"""s_add_u32 m0, s{sMXs}, {(c % 2) * 32768}
    s_add_u32 s{sD0}, s{sCx}, s{sXb}
    buffer_load_dwordx4 v{vXd[0]}, s[{sX}:{sX+3}], s{sD0} offen{NTX} lds
    s_add_u32 s{sCx}, s{sCx}, 128
    s_cmp_eq_u32 s{sCx}, 896
    s_cselect_b32 s{sCx}, 0, s{sCx}"""]
    for i in range(1, 4):
        p.append(f"buffer_load_dwordx4 v{vXd[i]}, s[{sX}:{sX+3}], s{sD0} offen offset:{1024*i}{NTX} lds")
    return [(x, f"X{c}") for x in p]


def w_piece(it):
    return (f"""s_add_u32 m0, s{sMW}, {it*8192}
    s_add_u32 s{sD1}, s{sCw}, s{sWb}
    buffer_load_dwordx4 v{vWd}, s[{sW}:{sW+3}], s{sD1} offen{NTW} lds
    s_add_u32 s{sCw}, s{sCw}, {64*2688}
    s_cmp_eq_u32 s{sCw}, {448*2688}
    s_cselect_b32 s{sCw}, 0, s{sCw}""", f"W{it}")


def wq_piece(i):
    return (f"""s_add_u32 m0, s{sMQ}, {i*1024}
    s_add_u32 s{sD1}, s{sCq}, s{sWq}
    buffer_load_dwordx4 v{vWq}, s[{sW}:{sW+3}], s{sD1} offen lds
    s_add_u32 s{sCq}, s{sCq}, {16*2688}
    s_cmp_eq_u32 s{sCq}, {448*2688}
    s_cselect_b32 s{sCq}, 0, s{sCq}""", "WQ")


def wq_touch():
    return (f"""s_mov_b64 exec, 0x3fff
    buffer_load_dword v{t5}, v{vPf}, s[{sW}:{sW+3}], 0 offen{NTW}
    s_mov_b64 exec, -1""", "PF")


for p, _ in x_pieces(0):
    A(p)
ts(1, 2)
A(f"""s_mov_b32 s{sW+2}, {448*2688}
s_mov_b32 s{sW+3}, 0x20000
s_cmp_gt_u32 s{sh}, 6
s_subb_u32 s{sLine}, s{sh}, 0
s_cmp_gt_u32 s{sh}, 9
s_subb_u32 s{sLine}, s{sLine}, 0
s_lshl_b32 s{sWb}, s{sLine}, 7
s_cmp_ge_u32 s{sLine}, 7
s_cselect_b32 s{sT0}, 7, 0
s_sub_u32 s{sLine}, s{sLine}, s{sT0}
s_mul_i32 s{sT0}, s{sw}, {8*2688}
s_add_u32 s{sWb}, s{sWb}, s{sT0}
s_add_u32 s{sWb}, s{sWb}, 896
s_mul_i32 s{sCw}, s{sC0}, {64*2688}
s_lshl_b32 s{sMW}, s{sw}, 10
v_lshrrev_b32 v{t0}, 3, v{vLane}
v_mul_u32_u24 v{t0}, 2688, v{t0}
v_bfe_u32 v{t1}, v{vLane}, 4, 1
v_lshlrev_b32 v{t1}, 2, v{t1}
v_xor_b32 v{t1}, v{t1}, v{t2}
v_lshl_add_u32 v{vWd}, v{t1}, 4, v{t0}
s_lshr_b32 s{sNone}, 0x240, s{sh}
s_and_b32 s{sNone}, s{sNone}, 1""")

EARLY = lines(f"""s_lshl_b32 s{sT0}, s{sb}, 8
s_add_u32 s{sT0}, s{sT0}, {EPOCH_OFF}
s_load_dword s{sE}, s[24:25], s{sT0}
v_lshrrev_b32 v{t2}, 5, v{vLane}
v_and_b32 v{t0}, 31, v{vLane}
v_bfe_u32 v{t1}, v{vLane}, 1, 3
v_xor_b32 v{t1}, v{t1}, v{t2}
v_lshlrev_b32 v{t0}, 7, v{t0}
v_add_u32 v{t0}, s{sMXs}, v{t0}""")
for sst in range(4):
    EARLY += lines(f"""v_xor_b32 v{t3}, {2*sst}, v{t1}
    v_lshl_add_u32 v{vXa[sst]}, v{t3}, 4, v{t0}""")
EARLY += lines(f"""v_bfe_u32 v{t1}, v{vLane}, 2, 2
v_lshl_add_u32 v{t0}, v{t2}, 3, v{t1}
v_bfe_u32 v{t3}, v{vLane}, 4, 1
v_and_b32 v{t4}, 3, v{vLane}
v_lshlrev_b32 v{t4}, 3, v{t4}
v_lshl_add_u32 v{t4}, v{t3}, 5, v{t4}
v_lshl_add_u32 v{vWqr}, v{t0}, 6, v{t4}
v_lshl_add_u32 v{t4}, v{t0}, 7, v{t4}
v_lshrrev_b32 v{t1}, 1, v{t1}
v_lshl_add_u32 v{vWr[0]}, v{t1}, 6, v{t4}
v_xor_b32 v{vWr[1]}, 64, v{vWr[0]}
v_mov_b32 v{t0}, {MISC}
v_mov_b32 v{vPd}, 0
v_mov_b32 v{vPd+1}, 0
v_mov_b32 v{vPd+2}, 0
v_mov_b32 v{vPd+3}, 0
ds_write_b128 v{t0}, {v(vPd,4)}""")

MID = lines(f"""s_lshl_b32 s{sT0}, s{sj}, 3
s_add_u32 s{sT0}, s{sT0}, s{sw}
s_mul_i32 s{sT0}, s{sT0}, {7*2688}
s_mul_i32 s{sT1}, s{sh}, 56
s_add_u32 s{sT0}, s{sT0}, s{sT1}
v_lshrrev_b32 v{t0}, 1, v{vLane}
v_mul_u32_u24 v{t0}, 2688, v{t0}
v_and_b32 v{t1}, 1, v{vLane}
v_mad_u32_u24 v{t0}, v{t1}, 52, v{t0}
v_add_u32 v{vPf}, s{sT0}, v{t0}
s_and_b32 s{sT0}, s{sh}, 1
s_lshl_b32 s{sT0}, s{sT0}, 3
s_add_u32 s{sT0}, s{sT0}, {WQ}
v_add_u32 v{vWqr}, s{sT0}, v{vWqr}
s_mul_i32 s{sWq}, s{sh}, 56
s_and_b32 s{sWq}, s{sWq}, 0xfffffff0
s_and_b32 s{sT0}, s{sw}, 3
s_mul_i32 s{sMQ}, s{sT0}, 7168
s_add_u32 s{sMQ}, s{sMQ}, {WQ}
s_mul_i32 s{sT0}, s{sT0}, 7
s_lshl_b32 s{sT1}, s{sC0}, 2
s_add_u32 s{sT0}, s{sT0}, s{sT1}
s_sub_u32 s{sT1}, s{sT0}, 28
s_min_u32 s{sT0}, s{sT0}, s{sT1}
s_mul_i32 s{sCq}, s{sT0}, {16*2688}
v_lshrrev_b32 v{t0}, 2, v{vLane}
v_mul_u32_u24 v{t0}, 2688, v{t0}
v_and_b32 v{t1}, 3, v{vLane}
v_lshl_add_u32 v{vWq}, v{t1}, 4, v{t0}""")
MID += lines(f"""s_mov_b32 s{sWS}, s24
s_mov_b32 s{sWS+1}, s25
s_mov_b32 s{sWS+2}, {WS_BYTES}
s_mov_b32 s{sWS+3}, 0x20000
s_lshl_b32 s{sKVt}, s{sb}, 22
s_lshl_b32 s{sRel}, s{sj}, 15
s_add_u32 s{sRel}, s{sRel}, s{sMX}
s_add_u32 s{sKVt}, s{sKVt}, s{sRel}
s_add_u32 s{sKVt}, s{sKVt}, {KV_OFF}
s_and_b32 s{sT0}, s{sw}, 3
s_lshl_b32 s{sT0}, s{sT0}, 1
s_lshl_b32 s{sT1}, s{sb}, 3
s_add_u32 s{sT1}, s{sT1}, s{sj}
s_lshl_b32 s{sT1}, s{sT1}, 3
s_add_u32 s{sT0}, s{sT0}, s{sT1}
s_lshl_b32 s{sT0}, s{sT0}, 4
s_add_u32 s{sT0}, s{sT0}, s{sh}
s_lshl_b32 s{sOp}, s{sT0}, 11
s_add_u32 s{sOp}, s{sOp}, {O_OFF}
s_lshl_b32 s{sOt}, s{sKap}, 15
s_add_u32 s{sOt}, s{sOt}, s{sOp}
v_mov_b32 v{vOnes}, -1
v_mov_b32 v{vOnes+1}, -1
v_mov_b32 v{vOnes+2}, -1
v_mov_b32 v{vOnes+3}, -1
s_add_u32 s{sFl}, s{sT1}, s{sw}
s_mul_i32 s{sFl}, s{sFl}, {FS}
s_lshl_b32 s{sT0}, s{sh}, {ES}
s_add_u32 s{sFl}, s{sFl}, s{sT0}
s_add_u32 s{sFl}, s{sFl}, {FLAG_OFF}
v_mov_b32 v{vFl+1}, 0""")
LATE = lines(f"""s_lshl_b32 s{sPl}, s{sb}, 6
s_and_b32 s{sT1}, s{sw}, 3
s_add_u32 s{sPl}, s{sPl}, s{sT1}
s_mul_i32 s{sPl}, s{sPl}, {FS}
s_add_u32 s{sPl}, s{sPl}, {FLAG_OFF}
s_add_u32 s{sT0}, s{sj}, s{sKap}
s_and_b32 s{sT0}, s{sT0}, 7
s_lshl_b32 s{sRel}, s{sT0}, 15
s_lshl_b32 s{sT1}, s{sT1}, 12
s_add_u32 s{sRel}, s{sRel}, s{sT1}
s_sub_u32 s{sRel}, s{sRel}, 0x10000
v_bfe_u32 v{t3}, v{vLane}, 2, 2
v_lshl_add_u32 v{t3}, v{t3}, 1, s{sT0}
v_and_b32 v{t3}, 7, v{t3}
v_bfe_u32 v{t1}, v{vLane}, 4, 1
v_lshl_add_u32 v{t3}, v{t3}, 1, v{t1}
v_mul_u32_u24 v{t3}, {4*FS}, v{t3}
s_mul_i32 s{sT0}, s{sh}, 28
s_add_u32 s{sT1}, s{sT0}, 27
s_lshr_b32 s{sT0}, s{sT0}, 6
s_lshr_b32 s{sT1}, s{sT1}, 6
s_sub_u32 s{sT1}, s{sT1}, s{sT0}
v_and_b32 v{t0}, 1, v{vLane}
v_mul_u32_u24 v{t0}, s{sT1}, v{t0}
v_add_u32 v{t0}, s{sT0}, v{t0}
v_bfe_u32 v{t1}, v{vLane}, 1, 1
v_mad_u32_u24 v{t0}, v{t1}, 7, v{t0}
v_add_u32 v{t4}, 10, v{t0}
v_lshrrev_b32 v{t4}, 4, v{t4}
v_lshrrev_b32 v{t2}, 3, v{t0}
v_add3_u32 v{t0}, v{t0}, v{t4}, v{t2}
s_sub_u32 s{sT2}, s{sT1}, 1
s_and_b32 s{sT2}, s{sT2}, 0xaaaaaaaa
s_mov_b32 s{sT3}, s{sT2}
v_mad_u32_u24 v{t1}, v{t1}, 3, 6
v_cndmask_b32 v{t0}, v{t0}, v{t1}, s[{sT2}:{sT3}]
v_lshl_add_u32 v{vPl}, v{t0}, {ES}, v{t3}
v_and_b32 v{t2}, 7, v{vLane}
s_lshl_b32 s{sKV}, s{sHH}, 18
s_add_u32 s{sKV}, s{sKV}, {KV_OFF}
s_mov_b32 s{sDone}, 0""")
NPRE = len(LATE)
LATE += lines(f"""s_mov_b32 s{sWO+2}, {448*896}
s_mov_b32 s{sWO+3}, 0x20000
s_mov_b32 s{sOUT}, s20
s_mov_b32 s{sOUT+1}, s21
s_mov_b32 s{sOUT+2}, {2048*1792}
s_mov_b32 s{sOUT+3}, 0x20000
s_mov_b32 s{sLo}, -1
s_mov_b32 s{sLo+1}, 0
s_mov_b32 s{sCs}, {hex(f2u(CSCALE))}
s_mov_b32 s{sCs+1}, {hex(f2u(CSCALE))}
s_mov_b32 s{sChk}, {0 if OPT['force_slow'] else L_RANGE}
s_and_b32 s{sWoff}, s{sh}, 3
s_mul_i32 s{sWoff}, s{sWoff}, 224""")
LATE += lines(f"""s_lshl_b32 s{sT1}, s{sb}, 3
s_add_u32 s{sT1}, s{sT1}, s{sj}
s_lshl_b32 s{sT1}, s{sT1}, 3
s_lshr_b32 s{sT0}, s{sh}, 2
s_bfe_u32 s{sT2}, s{sw}, 0x10001
s_lshl_b32 s{sPc}, s{sT2}, 2
s_add_u32 s{sPc}, s{sPc}, s{sT0}
s_add_u32 s{sPc}, s{sPc}, s{sT1}
s_mul_i32 s{sPc}, s{sPc}, {FS}
s_add_u32 s{sPc}, s{sPc}, {FLAG_OFF}
s_add_u32 s{sHi}, s{sT0}, s{sT1}
s_mul_i32 s{sHi}, s{sHi}, {FS}
s_add_u32 s{sHi}, s{sHi}, {FLAG_OFF+4*FS}
s_lshl_b32 s{sT3}, s{sT0}, 1
s_add_u32 s{sT3}, s{sT3}, s{sT2}
s_add_u32 s{sT3}, s{sT3}, s{sT1}
s_lshl_b32 s{sOin}, s{sT3}, 15
s_add_u32 s{sOin}, s{sOin}, {O_OFF}
s_and_b32 s{sT3}, s{sw}, 1
s_lshl_b32 s{sT3}, s{sT3}, 8
s_add_u32 s{sOin}, s{sOin}, s{sT3}""")
LATE += lines(f"""s_lshl_b32 s{sT1}, s{sj}, 2
s_add_u32 s{sT0}, s{sT0}, s{sT1}
s_lshl_b32 s{sT0}, s{sT0}, 2
s_and_b32 s{sT1}, s{sw}, 3
s_add_u32 s{sT0}, s{sT0}, s{sT1}
s_mul_i32 s{sOut}, s{sT0}, {16*1792}
s_mul_i32 s{sT0}, s{sb}, 896
s_add_u32 s{sOut}, s{sOut}, s{sT0}
s_add_u32 s{sOut}, s{sOut}, s{sWoff}
v_mov_b32 v{vIdx}, 0xdddddddd
s_lshl_b32 s{sT0}, s{sw}, 11
s_add_u32 s{sT0}, s{sT0}, {QOFF}
v_and_b32 v{t0}, 1, v{vLane}
v_lshlrev_b32 v{t0}, 4, v{t0}
v_bfe_u32 v{t1}, v{vLane}, 4, 1
v_lshl_add_u32 v{t0}, v{t1}, 3, v{t0}
v_bfe_u32 v{t1}, v{vLane}, 3, 1
v_lshl_add_u32 v{t0}, v{t1}, 1, v{t0}
v_bfe_u32 v{t1}, v{vLane}, 1, 1
v_add_u32 v{t0}, v{t0}, v{t1}
v_and_b32 v{t1}, 0x24, v{vLane}
v_add_u32 v{t0}, v{t0}, v{t1}
v_sub_u32 v{t0}, v{t0}, v{vLane}
v_mul_lo_u32 v{t0}, v{t0}, s{sRole}
v_add_u32 v{t0}, v{t0}, v{vLane}
v_lshl_add_u32 v{vQw}, v{t0}, 4, s{sT0}
s_lshl_b32 s{sT2}, s{sT1}, 12
s_add_u32 s{sT2}, s{sT2}, {QOFF}
v_add_u32 v{vQr}, s{sT2}, v{vL16}
s_lshl_b32 s{sT0}, s{sKap}, 14
v_add_u32 v{vBase}, s{sT0}, v{vL16}
v_add_u32 v{vCur}, 0x10000, v{vBase}
v_lshl_add_u32 v{vBk}, v{vLane}, 3, s{sT0}
s_add_u32 s{sT0}, s{sT1}, 5
s_lshl_b32 s{sT0}, s{sT0}, 13
s_and_b32 s{sT0}, s{sT0}, 0xffff
v_add_u32 v{vRw}, s{sT0}, v{vL16}
s_lshl_b32 s{sT0}, s{sT1}, 2
s_add_u32 s{sT0}, s{sT0}, {MISC}
v_mov_b32 v{vMf}, s{sT0}
v_lshrrev_b32 v{t1}, 3, v{vLane}
s_lshl_b32 s{sT0}, s{sT1}, 11
s_add_u32 s{sT0}, s{sT0}, {OT}
v_xor_b32 v{t3}, v{t1}, v{t2}
v_lshlrev_b32 v{t3}, 4, v{t3}
v_lshl_add_u32 v{t3}, v{t1}, 7, v{t3}
v_add_u32 v{vTr}, s{sT0}, v{t3}
v_mul_u32_u24 v{t3}, 1792, v{t1}
v_lshl_add_u32 v{vOs}, v{t2}, 4, v{t3}
v_add_u32 v{t3}, 2, v{t2}
v_lshrrev_b32 v{t3}, 3, v{t3}
v_lshlrev_b32 v{t3}, 30, v{t3}
v_add_u32 v{t3}, 128, v{t3}
v_add_u32 v{vOs2}, v{t3}, v{vOs}
v_and_b32 v{t0}, 15, v{vLane}
v_lshrrev_b32 v{t1}, 4, v{vLane}
v_lshrrev_b32 v{t3}, 1, v{t1}
v_xor_b32 v{t3}, v{t3}, v{t2}
v_lshlrev_b32 v{t3}, 4, v{t3}
v_lshl_add_u32 v{t3}, v{t0}, 7, v{t3}
v_and_b32 v{t4}, 1, v{t1}
v_lshl_add_u32 v{t3}, v{t4}, 3, v{t3}
v_add_u32 v{vTw}, s{sT0}, v{t3}
v_lshlrev_b32 v{vPc}, {ES}, v{t0}
v_lshlrev_b32 v{t2}, 11, v{t0}
v_add_u32 v{vLp}, {3*512+15*16}, v{t2}
v_lshlrev_b32 v{t2}, 9, v{t1}
v_lshl_add_u32 v{vOa}, v{t0}, 4, v{t2}""")
LATE += lines(f"""v_lshrrev_b32 v{t2}, 1, v{t1}
v_lshlrev_b32 v{t2}, 4, v{t2}
v_lshl_add_u32 v{t2}, v{t4}, 2, v{t2}
v_bfe_u32 v{t3}, v{vLane}, 2, 2
v_add_u32 v{t2}, v{t2}, v{t3}
v_mul_u32_u24 v{t2}, 224, v{t2}
v_and_b32 v{t3}, 3, v{vLane}
v_lshl_add_u32 v{t2}, v{t3}, 3, v{t2}
v_add_u32 v{t3}, 1, v{t1}
v_lshrrev_b32 v{t3}, 2, v{t3}
v_mul_u32_u24 v{t3}, {4*224}, v{t3}
v_sub_u32 v{t3}, v{t2}, v{t3}
v_add_u32 v{vW0}, {WOB}, v{t2}
v_add_u32 v{vW1}, {WOB+8*224}, v{t3}
v_add_u32 v{vW0b}, {WOB+8*6272}, v{t2}
v_add_u32 v{vW1b}, {WOB+8*6272+8*224}, v{t3}
v_add_u32 v{vW0c}, {WO15}, v{t2}
v_add_u32 v{vW1c}, {WO15+8*224}, v{t3}""")
LATE += lines(f"""v_mul_u32_u24 v{t2}, 0x4925, v{vLane}
v_lshrrev_b32 v{t2}, 18, v{t2}
v_mul_u32_u24 v{t3}, 14, v{t2}
v_sub_u32 v{t3}, v{vLane}, v{t3}
v_mul_u32_u24 v{t2}, 896, v{t2}
v_lshl_add_u32 v{vWod}, v{t3}, 4, v{t2}
s_mul_i32 s{sWn}, s{sw}, 3584
s_add_u32 s{sWn}, s{sWn}, s{sWoff}
s_mul_i32 s{sWm}, s{sw}, 896
s_add_u32 s{sWm13}, s{sWm}, {WO15-896}
s_max_u32 s{sT0}, s{sw}, 1
s_sub_u32 s{sT0}, s{sT0}, s{sw}
s_mul_i32 s{sT0}, s{sT0}, {WOB+104*896-(WO15-896)}
s_add_u32 s{sWm13}, s{sWm13}, s{sT0}""")
ENDS = lines(f"""s_mul_i32 s{sT2}, s{sLine}, {16*9363}
s_add_u32 s{sT3}, s{sT2}, {16*9363}
s_lshr_b32 s{sT2}, s{sT2}, 16
s_lshr_b32 s{sT3}, s{sT3}, 16
s_sub_u32 s{sT3}, s{sT3}, s{sT2}
s_lshl_b32 s{sT2}, s{sT2}, 18""")
FK = lines(f"""v_and_b32 v{t0}, 15, v{vLane}
v_lshlrev_b32 v{t0}, 4, v{t0}
v_bfe_u32 v{t1}, v{vLane}, 4, 1
v_lshrrev_b32 v{t4}, 5, v{vLane}
v_lshl_add_u32 v{t1}, v{t1}, 1, v{t4}
s_lshl_b32 s{sT0}, s{sLine}, 4
v_add_u32 v{t1}, s{sT0}, v{t1}""")
for i in range(4):
    FK += lines(f"""v_add_u32 v{t2}, {4*i}, v{t1}
    v_mul_u32_u24 v{t3}, 9363, v{t2}
    v_lshrrev_b32 v{t3}, 16, v{t3}
    v_lshl_add_u32 v{vSt[i]}, v{t3}, 18, v{t0}
    v_mul_u32_u24 v{t3}, 7, v{t3}
    v_sub_u32 v{t2}, v{t2}, v{t3}
    v_lshl_add_u32 v{vSt[i]}, v{t2}, 8, v{vSt[i]}""")
FK += ENDS + lines(f"""s_add_u32 s{sT2}, s{sT2}, {7*256}
v_lshrrev_b32 v{t1}, 4, v{vLane}
v_cmp_gt_u32 vcc, s{sT3}, v{t1}
v_lshl_add_u32 v{t0}, v{t1}, 18, v{t0}
v_add_u32 v{t0}, s{sT2}, v{t0}
v_mov_b32 v{t3}, {OOB}
v_cndmask_b32 v{vP[0]}, v{t3}, v{t0}, vcc""")
FV = lines(f"""v_and_b32 v{t0}, 31, v{vLane}
s_lshl_b32 s{sT0}, s{sLine}, 6
v_add_u32 v{t0}, s{sT0}, v{t0}
v_and_b32 v{t4}, 32, v{vLane}""")
for ct in range(2):
    FV += lines(f"""v_add_u32 v{t2}, {32*ct}, v{t0}
    v_mul_u32_u24 v{t3}, 2341, v{t2}
    v_lshrrev_b32 v{t3}, 16, v{t3}
    v_mul_u32_u24 v{t1}, 28, v{t3}
    v_sub_u32 v{t2}, v{t2}, v{t1}
    v_add_u32 v{t2}, v{t2}, v{t4}
    v_lshlrev_b32 v{t2}, 4, v{t2}
    v_lshl_add_u32 v{t2}, v{t3}, 18, v{t2}
    v_add_u32 v{vSt[2*ct]}, 2048, v{t2}
    v_add_u32 v{vSt[2*ct+1]}, 3072, v{t2}""")
FV += ENDS + lines(f"""s_add_u32 s{sT2}, s{sT2}, {2048+28*16}
v_lshrrev_b32 v{t0}, 4, v{vLane}
v_cmp_gt_u32 vcc, s{sT3}, v{t0}
v_bfe_u32 v{t1}, v{vLane}, 2, 2
v_lshlrev_b32 v{t1}, 9, v{t1}
v_lshl_add_u32 v{t1}, v{t0}, 18, v{t1}
v_and_b32 v{t2}, 3, v{vLane}
v_lshl_add_u32 v{t1}, v{t2}, 4, v{t1}
v_add_u32 v{t1}, s{sT2}, v{t1}
v_mov_b32 v{t3}, {OOB}
v_cndmask_b32 v{vP[0]}, v{t3}, v{t1}, vcc
v_cmp_eq_u32 vcc, 0, v{t2}
v_mov_b32 v{t3}, 0x3f803f80
s_nop 0
v_cndmask_b32 v{vPd}, 0, v{t3}, vcc
v_mov_b32 v{vPd+1}, v{vPd}
v_mov_b32 v{vPd+2}, v{vPd}
v_mov_b32 v{vPd+3}, v{vPd}""")


def st16(data, addr, soff, off=0):
    return (f"buffer_store_dwordx4 {v(data,4)}, v{addr}, s[{sWS}:{sWS+3}], s{soff} offen offset:{off} sc1", "ST")


def st8(data, addr, soff):
    return (f"buffer_store_dwordx2 {v(data,2)}, v{addr}, s[{sWS}:{sWS+3}], s{soff} offen sc1", "ST")


def flag_store(vm):
    vm.wait("ST")
    A(f"""s_mov_b64 exec, 1
    buffer_store_dword v{vFl}, v{vFl+1}, s[{sWS}:{sWS+3}], s{sFl} offen sc1
    s_mov_b64 exec, -1""")
    vm.issue("FL")
    ts(4)


def pass1(role):
    vm, lg = Cnt("vmcnt", 63), Cnt("lgkmcnt", 15)
    vm.issue("X0", 4)
    if role != "N":
        for i in range(3):
            vm.issue(f"W{i}")
    vm.issue("X1", 4)
    fill = list(REST) + {"K": list(FK), "V": list(FV), "N": []}[role]

    def dma(p):
        A(p[0])
        vm.issue(p[1])

    def xread(c):
        vm.wait(f"X{c}")
        for st in range(4):
            A(f"ds_read_b128 {v(Xr+16*c+4*st,4)}, v{vXa[st]} offset:{(c % 2) * 32768}")
        lg.issue(f"R{c}", 4)

    def wread(g):
        for ct in range(2):
            for u in range(2):
                A(f"ds_read_b64_tr_b16 {v(Wf+8*(g%3)+4*ct+2*u,2)}, v{vWr[ct]} offset:{g*2048+u*512}")
        lg.issue(f"F{g}", 4)

    xread(0)
    if role == "N":
        emit(fill, len(fill))
        flag_store(vm)
        if OPT["wqpf"]:
            dma(wq_touch())
        for i in range(4):
            A(f"v_mov_b32 v{vSt[i]}, {OOB}")
        for c in range(0, 7):
            if c:
                xread(c)
            lg.wait(f"R{c}")
            if c + 2 <= 6:
                for p in x_pieces(c + 2):
                    dma(p)
        A(f"""s_cmp_eq_u32 s{sKap}, 0
        s_cbranch_scc1 L_nq""")
        for i in range(7):
            dma(wq_piece(i))
        A.label("L_nq")
        return
    slots = {}
    for i, p in enumerate(x_pieces(2)):
        slots[(i // 2, i % 2)] = p
    for i in range(4):
        slots[([2, 2, 5, 5][i], i % 2)] = w_piece(3 + i)
    for c in range(0, 4):
        for i, p in enumerate(x_pieces(c + 3)):
            slots[(4 * c + 3 + i // 2, i % 2)] = p
    slots[(OPT["padg"], 1)] = st16(vPd, vP[0], sKVt)
    if OPT["wqpf"]:
        slots[(OPT["wqpf"], 0)] = wq_touch()
    nf = -(-len(fill) // 32)
    vm.wait("W2")
    ts(3, 2)
    A("s_barrier")
    ts(4, 2)
    wread(0)
    wread(1)

    def step(g):
        c = g // 4
        lg.wait(f"F{g}", f"R{c}")
        if g % 4 == 3:
            lg.wait(f"R{c+1}")
        if g % 4 == 2 and c + 1 <= 6:
            xread(c + 1)
        if g == 10:
            vm.wait("W6")
            A("s_barrier")
        if g % 4 == 0:
            ts(5 + c, 2)
        if g + 2 < 28:
            wread(g + 2)
        for ct in range(2):
            ac = [acc0, acc1][ct]
            wf, xf = v(Wf + 8 * (g % 3) + 4 * ct, 4), v(Xr + 4 * g, 4)
            a_, b_ = (wf, xf) if role == "K" else (xf, wf)
            A(f"v_mfma_f32_32x32x16_bf16 {v(ac,16)}, {a_}, {b_}, {'0' if g == 0 else v(ac,16)}")
            if (g, ct) in slots:
                dma(slots[(g, ct)])
            emit(fill, nf)

    def pack(store):
        for ct in range(2):
            ac = [acc0, acc1][ct]
            pp = Wf + 8 * ct
            for r in range(8):
                A(f"v_cvt_pk_bf16_f32 v{pp+r}, v{ac+2*r}, v{ac+2*r+1}")
                if role == "V" and r % 4 == 3 and store:
                    dma(st16(pp + r - 3, vSt[2 * ct + r // 4], sKVt))
            if role == "K":
                for i in range(2):
                    A(f"v_permlane16_swap_b32 v{pp+4*i}, v{pp+4*i+2}")
                    A(f"v_permlane16_swap_b32 v{pp+4*i+1}, v{pp+4*i+3}")
                    if store:
                        dma(st16(pp + 4 * i, vSt[2 * ct + i], sKVt))

    G0 = 17
    for g in range(G0):
        step(g)
    assert not fill
    A(f"""s_cmp_lg_u32 s{sKap}, 0
    s_cbranch_scc1 L_young{role}""")
    save = (list(vm.q), list(lg.q))
    for g in range(G0, 28):
        step(g)
    ts(2)
    ts(12, 2)
    pack(True)
    ts(1)
    for i in range(4):
        A(f"v_mov_b32 v{vSt[i]}, {OOB}")
    A("s_branch L_q")
    A.label(f"L_young{role}")
    vm.q, lg.q = save
    for i in range(7):
        k = OPT["wq0"] * 2 + OPT["wqs"] * i
        while (k // 2, k % 2) in slots:
            k += 1
        slots[(k // 2, k % 2)] = wq_piece(i)
    for g in range(G0, 28):
        step(g)
    ts(2)
    ts(12, 2)
    pack(False)
    A("s_branch L_q")


A(f"s_cbranch_scc1 L_now")
for i in range(3):
    A(w_piece(i)[0])
A.label("L_now")
ALLS = EARLY + MID + LATE
npro = max(len(EARLY), min(len(ALLS), OPT["npro"]))
PRO, REST = ALLS[:npro], ALLS[npro:]
PRO += lines(f"""s_waitcnt lgkmcnt(0)
s_mul_i32 s{stag}, s{sE}, 0x9e3779b1
s_add_u32 s{stag}, s{stag}, 0x7f4a7c15
v_mov_b32 v{vFl}, s{stag}""")
emit(PRO, 12)
if OPT["ibar"]:
    A("s_barrier")
for p in x_pieces(1):
    A(p[0])
    emit(PRO, 12)
emit(PRO, len(PRO))
ts(2, 2)
A(f"""s_cmp_eq_u32 s{sNone}, 1
s_cbranch_scc1 L_roleN
s_cmp_eq_u32 s{sRole}, 1
s_cbranch_scc1 L_roleV""")
pass1("K")
A.label("L_roleV")
pass1("V")
A.label("L_roleN")
pass1("N")
A.label("L_q")

LATE = []
A(f"""s_waitcnt vmcnt(0)
s_cmp_lg_u32 s{sKap}, 0
s_cbranch_scc1 L_noflag""")
flag_store(Cnt("vmcnt", 63))
A.label("L_noflag")
A("s_barrier")
ts(3)
ts(13, 2)
for r in range(32):
    LATE.append(f"v_mov_b32 v{O[0]+r}, 0")


def poll_text(mask):
    return f"""s_mov_b64 exec, {mask if mask < 64 else hex(mask)}
    buffer_load_dword v{vFl}, v{vPl}, s[{sWS}:{sWS+3}], s{sPl} offen sc1
    s_mov_b64 exec, -1"""


def poll_issue(mask=15):
    A(poll_text(mask))


ntry = [0]


def hook_try(level=2):
    ntry[0] += 1
    A(f"""s_cmp_ge_u32 s{sDone}, {level}
    s_cbranch_scc1 L_skip{ntry[0]}
    s_call_b64 s[{sRet}:{sRet+1}], L_try""")
    A.label(f"L_skip{ntry[0]}")


def spin(level, name):
    A(f"s_mov_b32 s{sSpin}, 0x40000")
    A.label(name)
    A(f"""s_cmp_ge_u32 s{sDone}, {level}
    s_cbranch_scc1 {name}_done
    s_call_b64 s[{sRet}:{sRet+1}], L_try
    s_sub_u32 s{sSpin}, s{sSpin}, 1
    s_cbranch_scc0 {name}""")
    A.label(name + "_done")


accQ = acc0
QD = OPT["qd"]
Wg = acc1 if QD == 3 else Wq8
lg = Cnt("lgkmcnt", 15)


def qread(g):
    for u in range(2):
        A(f"ds_read_b64_tr_b16 {v(Wg+4*(g%(QD+1))+2*u,2)}, v{vWqr} offset:{g*1024+u*256}")
    lg.issue(f"F{g}", 2)


for g in range(QD):
    qread(g)
for g in range(28):
    lg.wait(f"F{g}")
    A(f"v_mfma_f32_32x32x16_bf16 {v(accQ,16)}, {v(Wg+4*(g%(QD+1)),4)}, {v(Xr+4*g,4)}, {'0' if g == 0 else v(accQ,16)}")
    if g + QD < 28:
        qread(g + QD)
    if g >= 9:
        emit(LATE, 2)
    if g == OPT["pq"]:
        poll_issue()
    if g > OPT["pq"] and (g - OPT["pq"]) % OPT["tq"] == 0:
        hook_try(1)
assert not LATE
pqq = Wf + 16
for r in range(8):
    A(f"v_pk_mul_f32 {v(accQ+2*r,2)}, {v(accQ+2*r,2)}, s[{sCs}:{sCs+1}]")
for r in range(8):
    A(f"v_cvt_pk_bf16_f32 v{pqq+r}, v{accQ+2*r}, v{accQ+2*r+1}")
for r in (6, 7):
    A(f"v_cndmask_b32 v{pqq+r}, 0, v{pqq+r}, s[{sLo}:{sLo+1}]")
A(f"""ds_write_b128 v{vQw}, {v(pqq,4)}
ds_write_b128 v{vQw}, {v(pqq+4,4)} offset:1024""")
ts(11)
spin(1, "L_spin0")
A("""s_waitcnt vmcnt(1) lgkmcnt(0)
s_barrier""")
ts(12)

A(f"""ds_read_b128 {v(Q[0],4)}, v{vQr}
ds_read2st64_b64 {v(Kf[0],4)}, v{vBk} offset0:64 offset1:65
ds_read_b128 {v(Q[0]+4,4)}, v{vQr} offset:1024
ds_read2st64_b64 {v(Kf[0]+4,4)}, v{vBk} offset0:66 offset1:67
ds_read_b128 {v(Q[1],4)}, v{vQr} offset:2048
ds_read_b128 {v(Q[1]+4,4)}, v{vQr} offset:3072
ds_read2st64_b64 {v(Kf[1],4)}, v{vBk} offset0:72 offset1:73
ds_read2st64_b64 {v(Kf[1]+4,4)}, v{vBk} offset0:74 offset1:75
ds_read_b128 {v(Vf[0],4)}, v{vBase} offset:34816
ds_read_b128 {v(Vf[0]+4,4)}, v{vBase} offset:35840
s_waitcnt lgkmcnt(6)
v_mfma_f32_32x32x16_bf16 {v(S[0],16)}, {v(Kf[0],4)}, {v(Q[0],4)}, 0
v_mfma_f32_32x32x16_bf16 {v(S[0],16)}, {v(Kf[0]+4,4)}, {v(Q[0]+4,4)}, {v(S[0],16)}
s_waitcnt lgkmcnt(4)""")

POS = [32768, 0, 65536]


def kv_addr(blk, t, off):
    p = POS[blk % 3] + t * 4096 + off
    return (vCur, p - 65536) if POS[blk % 3] >= 65536 else (vBase, p)


def kv_next(st):
    pos = POS[st % 3]
    return f"""s_add_u32 s{sRel}, s{sRel}, {0x14000 if st == 4 else 0x10000}
    s_and_b32 s{sRel}, s{sRel}, 0x3ffff
    s_add_u32 m0, s{sMX}, {pos}
    s_add_u32 s{sD0}, s{sRel}, s{sKV}"""


def kv_piece(i):
    return f"buffer_load_dwordx4 v{vL16}, s[{sWS}:{sWS+3}], s{sD0} offen offset:{1024*i} sc1 lds"


def wo_piece(r):
    m = f"s_mov_b32 m0, s{sWm13}" if r == 13 else f"s_add_u32 m0, s{sWm}, {WOB + 8*r*896}"
    return f"""{m}
    s_add_u32 s{sD1}, s{sWn}, {8*r*3584}
    buffer_load_dwordx4 v{vWod}, s[{sWO}:{sWO+3}], s{sD1} offen lds"""


EXTRA = {}
AFTER = {}


def extra(w_, sl, text):
    EXTRA.setdefault((w_, sl), []).append(text)


def window(W):
    blk, u = divmod(W, 8)
    un, up = u + 1, u - 1
    tn, qn = un // 2, un % 2
    tp, qp = up // 2, up % 2
    Sc, Sn, Sp = S[u % 4], S[un % 4], S[up % 4]
    Kn, Vp = Kf[tn % 2], Vf[tp % 2]
    m = [f"v_mfma_f32_32x32x16_bf16 {v(Sn,16)}, {v(Kn,4)}, {v(Q[qn],4)}, 0",
         f"v_mfma_f32_32x32x16_bf16 {v(Sn,16)}, {v(Kn+4,4)}, {v(Q[qn]+4,4)}, {v(Sn,16)}",
         f"v_smfmac_f32_32x32x32_bf16 {v(O[qp],16)}, {v(Vp,4)}, {v(Sp,8)}, v{vIdx}",
         f"v_smfmac_f32_32x32x32_bf16 {v(O[qp],16)}, {v(Vp+4,4)}, {v(Sp+8,8)}, v{vIdx}"]
    if W == 0:
        m[2] = m[3] = None
    if W == 63:
        m = [m[2], None, m[3], None]
    mem = [[], [], [], []]
    pre = [[], [], [], []]

    def rd(dst, T, off):
        if off < 2048:
            o = (POS[(blk + T // 4) % 3] + (T % 4) * 4096 + off) // 512
            return f"ds_read2st64_b64 {v(dst,4)}, v{vBk} offset0:{o} offset1:{o+1}"
        a, o = kv_addr(blk + T // 4, T % 4, off)
        return f"ds_read_b128 {v(dst,4)}, v{a} offset:{o}"
    if u % 2 == 1:
        if not (u == 5 and blk > 0):
            A("s_waitcnt lgkmcnt(0)")
        tt = tn
        Kd, Vd = Kf[(tt + 1) % 2], Vf[tt % 2]
        rk = [rd(Kd, tt + 1, 0), rd(Kd + 4, tt + 1, 1024)]
        rv = [rd(Vd, tt, 2048), rd(Vd + 4, tt, 3072)]
        if W in (5, 61):
            mem[2].append(rv[0])
            mem[3].append(rv[1])
        elif W == 63:
            pass
        elif W == 7:
            A(rd(Kn, 4, 0))
            A(rd(Kn + 4, 4, 1024))
            m = [m[2], m[3], m[0], m[1]]
            mem[0] += [rk[0], rk[1]]
            mem[1] += [rv[0], rv[1]]
            pre[2].append("s_waitcnt lgkmcnt(4)")
        else:
            mem[0].append(rk[0])
            mem[1].append(rk[1])
            mem[2].append(rv[0])
            mem[3].append(rv[1])
    for q in range(4):
        for x in pre[q]:
            A(x)
        if m[q]:
            A(m[q])
        for x in mem[q] + (EXTRA.get((W, q), []) if not (OPT.get("nodma") and 23 <= W < 53) else []):
            A(x)
        for e in range(4):
            A(f"v_exp_f32 v{Sc+4*q+e}, v{Sc+4*q+e}")
    for hk in AFTER.get(W, []):
        hk()


def hook_bar0():
    spin(2, "L_spin1")
    A("""s_waitcnt vmcnt(0)
    s_barrier""")
    ts(6)


def mk_bar(n):
    def f():
        A(f"""s_waitcnt vmcnt({n}) lgkmcnt(0)""")
        if not OPT.get("nobar"):
            A("s_barrier")
    return f


def hook_pollc():
    A(f"""v_cmp_ne_u32 vcc, s{stag}, v{vQm}
    s_cmp_lg_u64 vcc, 0
    s_cbranch_scc1 L_pollc""")
    A.label("L_pollc_done")


hook_try()
for u in range(0, 6):
    AFTER.setdefault(u, []).append(hook_try)
AFTER.setdefault(6, []).append(hook_bar0)
extra(7, 2, kv_next(2) + "\n" + kv_piece(0))
extra(7, 3, kv_piece(1))
extra(8, 1, kv_piece(2))
extra(8, 3, kv_piece(3))
for i in range(4):
    extra(OPT["pubw"] + i // 2, [1, 3][i % 2], st16(Wf + 4 * i, vSt[i], sKVt)[0])
extra(10, 0, st16(vOnes, vL16, sOt)[0])
extra(10, 2, st16(vOnes, vL16, sOt, 1024)[0])
for ww, off in ((8, 0), (22, 64)):
    extra(ww, 1 if ww == 22 else 0, f"""v_mov_b32 v{t0}, s{stag}
    s_mov_b64 exec, 1
    buffer_store_dword v{t0}, v{vFl+1}, s[{sWS}:{sWS+3}], s{sFl} offen offset:{off} sc1
    s_mov_b64 exec, -1""")
extra(17, 1, poll_text(0x7fff0000).replace("0x7fff0000", "0xffff0000"))


def hook_pollh():
    A(f"""v_cmp_ne_u32 vcc, s{stag}, v{vFl}
    s_and_b32 s{sD1}, vcc_lo, 0xffff0000
    s_cbranch_scc1 L_pollh""")
    A.label("L_pollh_done")


wo_early = list(range(5, 13))
for i in range(1, 8):
    nwo = 2 if i == 1 else 0
    if i >= 2 and wo_early:
        for sl in (0, 2):
            extra(8 * i + 2, sl, wo_piece(wo_early.pop(0)))
            nwo += 1
    AFTER.setdefault(8 * i + 4, []).append(mk_bar(nwo))
    if i <= 5:
        extra(8 * i + 6, 0, kv_next(i + 2) + "\n" + kv_piece(0))
        extra(8 * i + 6, 2, kv_piece(1))
        extra(8 * i + 8, 0, kv_piece(2))
        extra(8 * i + 8, 2, kv_piece(3))
assert not wo_early
for k, r in enumerate([0, 1, 2, 3, 4, 13]):
    extra([54, 54, 55, 56, 56, 57][k], [0, 2, 1, 0, 2, 1][k], wo_piece(r))
extra(53, 1, f"buffer_load_dword v{vQm}, v{vPc}, s[{sWS}:{sWS+3}], s{sPc} offen offset:64 sc1")
AFTER[60].append(hook_pollc)
AFTER[20].append(hook_pollh)
PSEG = {1: [(0, 0, 3), (3, 0, 2), (6, 0, 1), (7, 2, 0)], 2: [(0, 0, 3), (4, 0, 2), (6, 2, 1), (7, 3, 0)],
        3: [(0, 0, 1), (7, 2, 0)], 4: [(0, 0, 3), (2, 0, 2), (4, 0, 1), (6, 0, 0)], 5: [(0, 0, 1), (7, 0, 0)],
        6: [(0, 0, 2), (5, 0, 1), (7, 2, 0)]}
if OPT.get("pseg"):
    for (ww, sl, pr) in [(0, 0, 3), (3, 0, 2), (5, 2, 1), (6, 3, 0), (7, 0, 3), (9, 0, 2), (11, 2, 1), (12, 3, 0)]:
        EXTRA.setdefault((ww, sl), []).insert(0, f"s_setprio {pr}")
    for i in range(1, 7):
        for (dw, sl, pr) in PSEG[OPT["pseg"]]:
            EXTRA.setdefault((8 * i + 5 + dw, sl), []).insert(0, f"s_setprio {pr}")
if OPT.get("prio"):
    A(f"""s_cmp_eq_u32 s{sKap}, {OPT["prio"] & 1}
    s_cbranch_scc0 L_np
    s_setprio 1""")
    A.label("L_np")
for W in range(64):
    if W in (24, 48):
        ts(1 if W == 24 else 2, 4)
    window(W)
A(f"""s_nop 0
v_smfmac_f32_32x32x32_bf16 {v(O[1],16)}, {v(Vf[1],4)}, {v(S[3],8)}, v{vIdx}
v_smfmac_f32_32x32x32_bf16 {v(O[1],16)}, {v(Vf[1]+4,4)}, {v(S[3]+8,8)}, v{vIdx}""")
ts(7)

A(f"""s_waitcnt lgkmcnt(0)
s_cmp_eq_u32 s{sKap}, 0
s_cbranch_scc1 L_p3
s_mov_b32 s{sSpin}, 0x400000""")
A.label("L_mwait")
A(f"""ds_read_b32 v{t2}, v{vMf}
s_sub_u32 s{sSpin}, s{sSpin}, 1
s_cbranch_scc1 L_mgo
s_waitcnt lgkmcnt(0)
v_readfirstlane_b32 s{sT0}, v{t2}
s_cmp_eq_u32 s{sT0}, 0
s_cbranch_scc1 L_mwait""")
A.label("L_mgo")
R = S[0]
for i in range(8):
    A(f"ds_read_b128 {v(R+4*i,4)}, v{vRw} offset:{1024*i}")
for q in range(2):
    A(f"s_waitcnt lgkmcnt({4-4*q})")
    for r in range(0, 16, 2):
        A(f"v_pk_add_f32 {v(O[q]+r,2)}, {v(O[q]+r,2)}, {v(R+16*q+r,2)}")
A.label("L_norm")
rc = [vFl, S[2]]
A(f"""v_mov_b32 v{t0}, v{O[0]+12}
v_mov_b32 v{rc[0]}, v{O[0]+12}
v_mov_b32 v{t1}, v{O[1]+12}
v_mov_b32 v{rc[1]}, v{O[1]+12}
s_add_u32 s{sT0}, s{sOp}, 32768
v_permlane32_swap_b32 v{t0}, v{rc[0]}
v_permlane32_swap_b32 v{t1}, v{rc[1]}
v_subrev_u32 v{t0}, {hex(L_LO)}, v{rc[0]}
v_subrev_u32 v{t1}, {hex(L_LO)}, v{rc[1]}
v_max_u32 v{t0}, v{t0}, v{t1}
v_cmp_lt_u32 vcc, s{sChk}, v{t0}
s_cmp_lg_u64 vcc, 0
s_cbranch_scc1 L_slow
v_rcp_f32 v{rc[0]}, v{rc[0]}
v_rcp_f32 v{rc[1]}, v{rc[1]}""")
for q in range(2):
    po = [pk, pq][q]
    so = [sOp, sT0][q]
    for r in range(0, 16, 2):
        A(f"v_pk_mul_f32 {v(O[q]+r,2)}, {v(O[q]+r,2)}, {v(rc[q],2)} op_sel_hi:[1,0]")
    for r in range(8):
        A(f"v_cvt_pk_bf16_f32 v{po+r}, v{O[q]+2*r}, v{O[q]+2*r+1}")
    for r in (6, 7):
        A(f"v_cndmask_b32 v{po+r}, 0, v{po+r}, s[{sLo}:{sLo+1}]")
    for r in range(8):
        A(f"v_min_u32 v{po+r}, -2, v{po+r}")
    A(f"""buffer_store_dwordx4 {v(po,4)}, v{vL16}, s[{sWS}:{sWS+3}], s{so} offen sc1
    buffer_store_dwordx4 {v(po+4,4)}, v{vL16}, s[{sWS}:{sWS+3}], s{so} offen offset:1024 sc1""")
ts(8)
ts(10, 3)
A("s_branch L_noep")

A.label("L_p3")
Of = S[0]
Wr_ = Kf[0]
acc = O[0]
vLr = vQm
assert Vf[1] == Kf[0] + 24 and S[3] == S[0] + 48 and O[1] == O[0] + 16


def light_poll():
    A(f"""s_mov_b64 exec, 0xffff
    buffer_load_dword v{vLr}, v{vLp}, s[{sWS}:{sWS+3}], s{sOin} offen sc1
    s_mov_b64 exec, -1""")


light_poll()
for i in range(8):
    A(f"ds_write_b128 v{vRw}, {v(O[0]+4*i,4)} offset:{1024*i}")
A(f"""v_mov_b32 v{t0}, 1
s_waitcnt lgkmcnt(0)
ds_write_b32 v{vMf}, v{t0}""")
for r in range(28):
    A(f"v_mov_b32 v{acc+r}, 0")
ts(8)
ts(10, 3)


GROUPS = [[[0, 1, 2, 3], [4, 5, 6, 7], [8, 9, 10, 11], [12, 13, 14, 15]],
          [[0, 1, 3, 5], [7, 8, 10, 12], [14, 15, 2, 4], [6, 9, 11, 13]]][OPT["grp"]]


def o_loads(g):
    for k, hh in enumerate(GROUPS[g]):
        A(f"s_add_u32 s{sT0}, s{sOin}, {hh*2048}")
        A(f"buffer_load_dwordx4 {v(Of+16*g+4*k,4)}, v{vOa}, s[{sWS}:{sWS+3}], s{sT0} offen sc1")


def wo_read(g, i):
    hh, ct = GROUPS[g][i // 7], i % 7
    if hh == 15:
        a0, a1, off = vW0c, vW1c, 0
    elif hh >= 8:
        a0, a1, off = vW0b, vW1b, (hh - 8) * 6272
    else:
        a0, a1, off = vW0, vW1, hh * 6272
    d = Wr_ + 4 * (i % 8)
    A(f"ds_read_b64_tr_b16 {v(d,2)}, v{a0} offset:{off+32*ct}")
    A(f"ds_read_b64_tr_b16 {v(d+2,2)}, v{a1} offset:{off+32*ct}")


A(f"""s_mov_b32 s{sDone}, 0
s_mov_b32 s{sPend}, 0
s_mov_b32 s{sTodo}, 0
s_mov_b32 s{sSpin}, 0x40000""")
A.label("L_round")
A(f"""s_waitcnt vmcnt(0) lgkmcnt(0)
v_cmp_ne_u32 s[{sRdy}:{sRdy+1}], -1, v{vLr}""")
for g in range(4):
    b0 = Of + 16 * g
    A(f"""s_bitcmp0_b32 s{sPend}, {g}
    s_cbranch_scc1 L_chk{g}
    v_max3_u32 v{t0}, v{b0}, v{b0+1}, v{b0+2}""")
    for r in range(3, 15, 2):
        A(f"v_max3_u32 v{t0}, v{b0+r}, v{b0+r+1}, v{t0}")
    A(f"""v_max_u32 v{t0}, v{b0+15}, v{t0}
    v_cmp_eq_u32 vcc, -1, v{t0}
    s_cmp_lg_u64 vcc, 0
    s_cbranch_scc1 L_chk{g}
    s_bitset1_b32 s{sTodo}, {g}
    s_bitset1_b32 s{sDone}, {g}""")
    ts(1 + g, 3)
    A.label(f"L_chk{g}")
A(f"""s_mov_b32 s{sPend}, 0
s_mov_b32 s{sI}, 4
s_xor_b32 s{sRem}, s{sDone}, 15
s_cbranch_scc0 L_issued
s_mov_b32 s{sI}, {OPT['per']}
s_bcnt1_i32_b32 s{sT0}, s{sRem}
s_cmp_le_u32 s{sT0}, {OPT['full']}
s_cselect_b32 s{sRdy}, -1, s{sRdy}""")
for g in range(4):
    mask = sum(1 << hh for hh in GROUPS[g])
    A(f"""s_bitcmp0_b32 s{sRem}, {g}
    s_cbranch_scc1 L_iss{g}
    s_andn2_b32 s{sT0}, {hex(mask)}, s{sRdy}
    s_cbranch_scc1 L_iss{g}
    s_bitset1_b32 s{sPend}, {g}""")
    o_loads(g)
    A.label(f"L_iss{g}")
light_poll()
A.label("L_issued")
for g in range(4):
    A(f"""s_bitcmp0_b32 s{sTodo}, {g}
    s_cbranch_scc1 L_prc{g}
    s_sub_u32 s{sI}, s{sI}, 1
    s_cbranch_scc1 L_round
    s_bitset0_b32 s{sTodo}, {g}""")
    for i in range(6):
        wo_read(g, i)
    for i in range(0, 28, 2):
        A(f"s_waitcnt lgkmcnt({2*(min(28, i+6) - (i+2))})")
        for k in (i, i + 1):
            ct = k % 7
            A(f"v_mfma_f32_16x16x32_bf16 {v(acc+4*ct,4)}, {v(Wr_+4*(k%8),4)}, {v(Of+16*g+4*(k//7),4)}, {v(acc+4*ct,4)}")
            if k + 6 < 28:
                wo_read(g, k + 6)
    ts(5 + g, 3)
    A.label(f"L_prc{g}")
A(f"""s_sub_u32 s{sSpin}, s{sSpin}, 1
s_cbranch_scc1 L_rounds_done
s_cmp_lg_u32 s{sDone}, 15
s_cbranch_scc1 L_round""")
A.label("L_rounds_done")
ts(9)
ts(9, 3)
if OPT["ts"] == 3:
    A(f"""s_sub_u32 s{sT0}, 0x40000, s{sSpin}
    v_writelane_b32 v{vTS}, s{sT0}, 14""")
pk2 = Q[0]
rb = S[0]
A(f"s_add_u32 s{sT1}, s{sOut}, {8*1792}")
for ct in range(1, 4):
    A(f"v_xor_b32 v{vT[ct]}, {32*ct}, v{vTw}")
wa = [vTw, vT[1], vT[2], vT[3]]
for ps in range(2):
    for ct in range(4 * ps, min(7, 4 * ps + 4)):
        A(f"""v_cvt_pk_bf16_f32 v{pk2+2*ct}, v{acc+4*ct}, v{acc+4*ct+1}
        v_cvt_pk_bf16_f32 v{pk2+2*ct+1}, v{acc+4*ct+2}, v{acc+4*ct+3}
        ds_write_b64 v{wa[ct%4]}, {v(pk2+2*ct,2)}""")
    A(f"""ds_read_b128 {v(rb+8*ps,4)}, v{vTr}
    ds_read_b128 {v(rb+8*ps+4,4)}, v{vTr} offset:1024""")
A(f"""s_waitcnt lgkmcnt(5)
buffer_store_dwordx4 {v(rb,4)}, v{vOs}, s[{sOUT}:{sOUT+3}], s{sOut} offen{OSC}
buffer_store_dwordx4 {v(rb+4,4)}, v{vOs}, s[{sOUT}:{sOUT+3}], s{sT1} offen{OSC}
s_waitcnt lgkmcnt(0)
buffer_store_dwordx4 {v(rb+8,4)}, v{vOs2}, s[{sOUT}:{sOUT+3}], s{sOut} offen{OSC}
buffer_store_dwordx4 {v(rb+12,4)}, v{vOs2}, s[{sOUT}:{sOUT+3}], s{sT1} offen{OSC}""")
A(f"""s_or_b32 s{sT0}, s{sh}, s{sj}
s_or_b32 s{sT0}, s{sT0}, s{sw}
s_cmp_lg_u32 s{sT0}, 0
s_cbranch_scc1 L_noep
s_add_u32 s{sE}, s{sE}, 1
s_lshl_b32 s{sT0}, s{sb}, 8
s_add_u32 s{sT0}, s{sT0}, {EPOCH_OFF}
v_mov_b32 v{t0}, 0
v_mov_b32 v{t1}, s{sE}
s_mov_b64 exec, 1
buffer_store_dword v{t1}, v{t0}, s[{sWS}:{sWS+3}], s{sT0} offen sc1
s_mov_b64 exec, -1""")
A.label("L_noep")
if OPT.get("padto"):
    A.label("L_pad")
    A(f"""s_sleep 4
    s_memrealtime s[{sRet}:{sRet+1}]
    s_waitcnt lgkmcnt(0)
    s_sub_u32 s{sT0}, s{sRet}, s{sTS}
    s_cmp_lt_u32 s{sT0}, {OPT["padto"]}
    s_cbranch_scc1 L_pad""")
if OPT["ts"]:
    A("s_waitcnt vmcnt(0)")
    ts(10)
    ts(11, 3)
    A(f"""s_lshl_b32 s{sT0}, s2, 3
    s_add_u32 s{sT0}, s{sT0}, s{sw}
    s_lshl_b32 s{sT0}, s{sT0}, 6
    s_add_u32 s{sT0}, s{sT0}, {TS_OFF}
    s_getreg_b32 s{sT1}, hwreg(HW_REG_XCC_ID)
    v_writelane_b32 v{vTS}, s{sT1}, 15
    v_lshlrev_b32 v{t0}, 2, v{vLane}
    s_mov_b64 exec, 0xffff
    buffer_store_dword v{vTS}, v{t0}, s[{sWS}:{sWS+3}], s{sT0} offen""")
    if OPT.get("dbg"):
        A(f"""v_readlane_b32 s{sT0}, v{vTS}, 0
        s_not_b32 s{sT0}, s{sT0}
        v_writelane_b32 v{vTS}, s{sT0}, 15
        s_mov_b32 s{sX}, s22
        s_mov_b32 s{sX+1}, s23
        s_mov_b32 s{sX+2}, 256
        buffer_atomic_umax v{vTS}, v{t0}, s[{sX}:{sX+3}], 0 offen""")
A.label("L_end")
A("s_endpgm")

A.label("L_try")
A(f"""s_waitcnt vmcnt(0)
v_cmp_ne_u32 vcc, s{stag}, v{vFl}
s_cmp_lg_u32 s{sDone}, 0
s_cbranch_scc1 L_try1
s_and_b32 s{sD1}, vcc_lo, 15
s_cbranch_scc0 L_try0""")
poll_issue(15)
A(f"s_setpc_b64 s[{sRet}:{sRet+1}]")
A.label("L_try0")
ts(5)
A(kv_next(0))
for i in range(4):
    A(kv_piece(i))
A(f"""s_mov_b32 s{sDone}, 1
s_branch L_again""")
A.label("L_try1")
A(f"""s_and_b32 s{sD1}, vcc_lo, 0xffff
s_cbranch_scc1 L_again""")
ts(13)
A(kv_next(1))
for i in range(4):
    A(kv_piece(i))
A(f"""s_mov_b32 s{sDone}, 2
s_setpc_b64 s[{sRet}:{sRet+1}]""")
A.label("L_again")
poll_issue(0xffff)
A(f"s_setpc_b64 s[{sRet}:{sRet+1}]")

A.label("L_pollc")
A(f"s_mov_b32 s{sSpin}, 0x40000")
A.label("L_pollc1")
A(f"""buffer_load_dword v{vQm}, v{vPc}, s[{sWS}:{sWS+3}], s{sPc} offen offset:64 sc1
s_sub_u32 s{sSpin}, s{sSpin}, 1
s_cbranch_scc1 L_pollc_done
s_waitcnt vmcnt(0)
v_cmp_ne_u32 vcc, s{stag}, v{vQm}
s_cmp_lg_u64 vcc, 0
s_cbranch_scc1 L_pollc1
s_branch L_pollc_done""")

A.label("L_pollh")
A(f"s_mov_b32 s{sSpin}, 0x40000")
A.label("L_pollh1")
A(poll_text(0x7fff0000).replace('0x7fff0000', '0xffff0000'))
A(f"""s_sub_u32 s{sSpin}, s{sSpin}, 1
s_cbranch_scc1 L_pollh_done
s_waitcnt vmcnt(0)
v_cmp_ne_u32 vcc, s{stag}, v{vFl}
s_and_b32 s{sD1}, vcc_lo, 0xffff0000
s_cbranch_scc1 L_pollh1
s_branch L_pollh_done""")

A.label("L_slow")
Sx, vMn, vAl = S[2], t2, t3
vM = [t4, t5]
A(f"""s_mov_b32 s{sChk}, -1
v_lshlrev_b32 v{vBk}, 3, v{vLane}
v_mov_b32 v{vM[0]}, 0xff7fffff
v_mov_b32 v{vM[1]}, 0xff7fffff
s_mov_b32 s{sT0}, s{sKV}
s_mov_b32 s{sI}, 0""")
for r in range(32):
    A(f"v_mov_b32 v{O[0]+r}, 0")
A.label("L_slow_t")
for i in range(4):
    A(f"buffer_load_dwordx2 {v(Kf[0]+2*i,2)}, v{vBk}, s[{sWS}:{sWS+3}], s{sT0} offen offset:{512*i} sc1")
A(f"""buffer_load_dwordx4 {v(Vf[0],4)}, v{vL16}, s[{sWS}:{sWS+3}], s{sT0} offen offset:2048 sc1
buffer_load_dwordx4 {v(Vf[0]+4,4)}, v{vL16}, s[{sWS}:{sWS+3}], s{sT0} offen offset:3072 sc1
s_add_u32 s{sT0}, s{sT0}, 4096
s_waitcnt vmcnt(0)""")
for q in range(2):
    A(f"""v_mfma_f32_32x32x16_bf16 {v(Sx,16)}, {v(Kf[0],4)}, {v(Q[q],4)}, 0
    v_mfma_f32_32x32x16_bf16 {v(Sx,16)}, {v(Kf[0]+4,4)}, {v(Q[q]+4,4)}, {v(Sx,16)}
    v_max3_f32 v{t0}, v{Sx}, v{Sx+1}, v{vM[q]}""")
    for r in range(2, 16, 2):
        A(f"v_max3_f32 v{t0}, v{Sx+r}, v{Sx+r+1}, v{t0}")
    A(f"""v_mov_b32 v{t1}, v{t0}
    v_permlane32_swap_b32 v{t0}, v{t1}
    v_max_f32 v{vMn}, v{t0}, v{t1}
    v_sub_f32 v{vAl}, v{vM[q]}, v{vMn}
    v_exp_f32 v{vAl}, v{vAl}
    v_mov_b32 v{vM[q]}, v{vMn}""")
    for r in range(16):
        A(f"v_sub_f32 v{Sx+r}, v{Sx+r}, v{vMn}")
    for r in range(16):
        A(f"v_exp_f32 v{Sx+r}, v{Sx+r}")
    for r in range(16):
        A(f"v_mul_f32 v{O[q]+r}, v{vAl}, v{O[q]+r}")
    A(f"""v_smfmac_f32_32x32x32_bf16 {v(O[q],16)}, {v(Vf[0],4)}, {v(Sx,8)}, v{vIdx}
    v_smfmac_f32_32x32x32_bf16 {v(O[q],16)}, {v(Vf[0]+4,4)}, {v(Sx+8,8)}, v{vIdx}""")
A(f"""s_add_u32 s{sI}, s{sI}, 1
s_cmp_lt_u32 s{sI}, 64
s_cbranch_scc1 L_slow_t
s_nop 11
s_branch L_norm""")

n = A.fix_hazards(verbose=bool(OPT.get("v", 0)))
NV = -(-V.hi // 8) * 8
hdr = open("cdna_kernels/" + NAME + ".s.ref").read().split("; Override launch")[0]
out = hdr + f"""; Fused kernel: QKV projection -> softmax attention -> output projection, one workgroup per
; (branch, head, 256-token block).  Generated by gen/gen.py.
; @launch grid=(256,1,1) block=(512,1,1) lds={LDS_BYTES}
.amdgcn_target "amdgcn-amd-amdhsa--gfx950"
.text
.globl {NAME}_kernel
.p2align 8
.type {NAME}_kernel,@function
""" + A.text().replace("CODE_SPAN", "L_slow-L_nopf") + f""".section .rodata,"a"
.p2align 6
.amdhsa_kernel {NAME}_kernel
  .amdhsa_next_free_vgpr {NV}
  .amdhsa_next_free_sgpr {NSGPR}
  .amdhsa_accum_offset {NV}
  .amdhsa_group_segment_fixed_size 0
  .amdhsa_kernarg_size 72
  .amdhsa_user_sgpr_count 2
  .amdhsa_user_sgpr_kernarg_segment_ptr 1
  .amdhsa_system_sgpr_workgroup_id_x 1
.end_amdhsa_kernel
"""
open(sys.argv[1], "w").write(out)
print(f"wrote {sys.argv[1]}: {len(A.lines)} lines, {n} nops inserted, {NV} vgprs", file=sys.stderr)
```

```python
import sys, struct, math
from asmlib import Asm, Alloc, v, s

NAME = "concat_heads__softmax_full_mha__softmax_full_mha__prompt"

OPT = dict(ts=0, force_slow=0, rot=2, map=1, pf=1, full=2, grp=0, per=2, pq=8, tq=6, wq0=17, wqs=2, padg=20, ibar=1, pubw=1, wqpf=6, pseg=2, npro=170, qd=3)
for a in sys.argv[2:]:
    k, val = a.split("=")
    OPT[k] = int(val)

FLAG_OFF = 0xD00000
ES = OPT.get("es", 7)
FS = OPT.get("fs", 16 << ES)
EPOCH_OFF = 0x10000
TS_OFF = 0x20000
KV_OFF = 0x100000
O_OFF = 0x900000
WS_BYTES = 0x1000000
OOB = 0x40000000

XS = 57344
WQ = 131072
QOFF = 98304
WOB = 66944
WO15 = 32768
MISC = 161280
OT = 16384
LDS_BYTES = 163840

CSCALE = math.log2(math.e) / math.sqrt(28.0)
L_LO = (127 - 60) << 23
L_RANGE = 120 << 23


def f2u(x):
    return struct.unpack("<I", struct.pack("<f", x))[0]


NTX = " nt" if OPT.get("ntx") else ""
NTW = " nt" if OPT.get("ntw") else ""
OSC = ["", " sc1", " nt", " sc0 sc1", " sc1 nt"][OPT.get("osc", 3)]
A = Asm()
sWm, sWm13 = 26, 27
sX, sW, sWS, sWO, sOUT = 28, 32, 36, 40, 44
sw, sb, sh, sj, stag, sE = 48, 49, 50, 51, 52, 53
sCx, sXb, sWb, sMX, sMW, sCw = 54, 55, 56, 57, 58, 59
sT0, sT1, sT2, sT3 = 60, 61, 62, 63
sLo = 64
sLine, sRole = 66, 67
sKV = 68
sMXs, sWq = 69, 70
sI, sRel, sWn, sHH = 71, 72, 73, 74
sSpin = 75
sOt = 76
sWoff = 77
sKap = 78
sFl = 79
sTS = 80
sRet = 82
sDone, sTodo = 84, 85
sOin = 86
sPc = 87
sOut = 88
sChk = 89
sCs = 90
sKVt = 92
sD0, sD1 = 93, 94
sPend, sRem = 95, 96
sOp = 97
sRdy = 98
sHi, sPl, sC0, sMQ = 4, 5, 6, 7
sCq, sNone = 3, 100
NSGPR = 102


def ts(idx, grp=1):
    if OPT.get("padat") == 100 * grp + idx:
        A(f"s_memrealtime s[{sTS}:{sTS+1}]\ns_waitcnt lgkmcnt(0)")
    if not OPT["ts"] or (idx != 0 and OPT["ts"] != grp):
        return
    A(f"""{"s_memtime" if OPT.get("clk") else "s_memrealtime"} s[{sTS}:{sTS+1}]
    s_waitcnt lgkmcnt(0)
    v_writelane_b32 v{vTS}, s{sTS}, {idx}""")


class Cnt:
    def __init__(self, name, cap):
        self.name, self.cap, self.q = name, cap, []

    def issue(self, tag, n=1):
        self.q += [tag] * n
        assert len(self.q) <= self.cap, (self.name, self.q)

    def wait(self, *tags):
        idx = [i for i, t in enumerate(self.q) if t in tags]
        if idx:
            n = len(self.q) - 1 - idx[-1]
            A(f"s_waitcnt {self.name}({n})")
            self.q = self.q[idx[-1] + 1:]


def lines(text):
    return [x.strip() for x in text.split("\n") if x.strip()]


def emit(lst, n):
    for _ in range(min(n, len(lst))):
        A(lst.pop(0))


V = Alloc(1, 256)
vLane = V()
vTS = V()
vL16 = V()
vIdx = V()
vT = [V() for _ in range(6)]
t0, t1, t2, t3, t4, t5 = vT
vQw, vQr, vBase, vCur, vWod, vPl, vPc, vQm, vBk = [V() for _ in range(9)]
vOa, vW0, vW1, vW0b, vW1b, vW0c, vW1c, vRw, vMf, vTw, vTr, vOs, vOs2, vLp = [V() for _ in range(14)]
vFl = V(2)
m_ph = V.mark()
Xr = V(112)
acc0, acc1 = V(16), V(16)
Wf = V(24)
vXd = [V() for _ in range(4)]
vWd = V()
vWq = V()
vXa = [V() for _ in range(4)]
vWr = [V(), V()]
vWqr = V()
vSt = [V() for _ in range(4)]
vP = [V()]
vPf = V()
vOnes = V(4)
vPd = V(4)
Wq8 = V(24)
V.reset(m_ph)
O = [V(16), V(16)]
Q = [V(8), V(8)]
S = [V(16) for _ in range(4)]
Kf = [V(8), V(8)]
Vf = [V(8), V(8)]
pk, pq = V(8), V(8)
assert O[0] == Xr

A.label(NAME + "_kernel")
A(f"""s_cmp_ge_u32 s2, 256
s_cbranch_scc1 L_end
s_load_dwordx16 s[8:23], s[0:1], 0
s_load_dwordx2 s[24:25], s[0:1], 64
v_lshrrev_b32 v{t0}, 6, v0
v_and_b32 v{vLane}, 63, v0
v_readfirstlane_b32 s{sw}, v{t0}
v_lshlrev_b32 v{vL16}, 4, v{vLane}""")
if OPT.get("padto"):
    A(f"s_memrealtime s[{sTS}:{sTS+1}]")
if OPT["ts"]:
    A(f"""{"s_memtime" if OPT.get("clk") else "s_memrealtime"} s[{sTS}:{sTS+1}]
    v_mov_b32 v{vTS}, 0""")
if OPT["map"] == 1:
    A(f"""s_and_b32 s{sT0}, s2, 7
    s_lshr_b32 s{sT1}, s2, 3
    s_and_b32 s{sj}, s{sT1}, 7
    s_lshr_b32 s{sT1}, s{sT1}, 3
    s_lshl_b32 s{sT0}, s{sT0}, 2
    s_add_u32 s{sHH}, s{sT0}, s{sT1}""")
elif OPT["map"] == 2:
    A(f"""s_and_b32 s{sT0}, s2, 7
    s_lshr_b32 s{sT1}, s2, 3
    s_and_b32 s{sT2}, s{sT0}, 3
    s_lshl_b32 s{sT2}, s{sT2}, 1
    s_lshr_b32 s{sT3}, s{sT1}, 4
    s_add_u32 s{sj}, s{sT2}, s{sT3}
    s_lshr_b32 s{sT0}, s{sT0}, 2
    s_lshl_b32 s{sT0}, s{sT0}, 4
    s_and_b32 s{sT1}, s{sT1}, 15
    s_add_u32 s{sHH}, s{sT0}, s{sT1}""")
elif OPT["map"] == 3:
    A(f"""s_and_b32 s{sT0}, s2, 7
    s_lshr_b32 s{sT1}, s2, 3
    s_and_b32 s{sT2}, s{sT0}, 1
    s_lshl_b32 s{sT2}, s{sT2}, 2
    s_lshr_b32 s{sT3}, s{sT1}, 3
    s_add_u32 s{sj}, s{sT2}, s{sT3}
    s_lshr_b32 s{sT0}, s{sT0}, 1
    s_lshl_b32 s{sT0}, s{sT0}, 3
    s_and_b32 s{sT1}, s{sT1}, 7
    s_add_u32 s{sHH}, s{sT0}, s{sT1}""")
A(f"""s_lshr_b32 s{sb}, s{sHH}, 4
s_and_b32 s{sh}, s{sHH}, 15
s_lshr_b32 s{sKap}, s{sw}, 2""")
A(f"""s_cmp_gt_u32 s{sh}, 7
s_cselect_b32 s{sRole}, 1, 0
s_cselect_b32 s{sT0}, 16, 1
s_cselect_b32 s{sT1}, 1, 2
s_cselect_b32 s{sT2}, 2, 8
s_cselect_b32 s{sT3}, 8, 16
v_bfe_u32 v{t0}, v{vLane}, 3, 1
v_mul_u32_u24 v{t0}, s{sT0}, v{t0}
v_bfe_u32 v{t1}, v{vLane}, 4, 1
v_mad_u32_u24 v{t0}, v{t1}, s{sT1}, v{t0}
v_lshrrev_b32 v{t1}, 5, v{vLane}
v_lshl_add_u32 v{t0}, v{t1}, 2, v{t0}
v_mul_u32_u24 v{t3}, 896, v{t0}
s_mul_i32 s{sT2}, s{sT2}, 896
s_mul_i32 s{sT3}, s{sT3}, 896
s_sub_u32 s{sT2}, s{sT2}, 1024
s_sub_u32 s{sT3}, s{sT3}, 2048
v_lshrrev_b32 v{t1}, 4, v{vLane}
v_and_b32 v{t2}, 7, v{vLane}
v_xor_b32 v{t1}, v{t1}, v{t2}
v_lshl_add_u32 v{vXd[0]}, v{t1}, 4, v{t3}
v_xor_b32 v{t1}, 4, v{t1}
v_lshl_add_u32 v{t1}, v{t1}, 4, v{t3}
v_add_u32 v{vXd[1]}, s{sT2}, v{t1}
v_add_u32 v{vXd[2]}, s{sT3}, v{vXd[0]}
v_add_u32 v{vXd[3]}, s{sT3}, v{vXd[1]}
s_lshl_b32 s{sT0}, s{sj}, 3
s_add_u32 s{sT0}, s{sT0}, s{sw}
s_mul_i32 s{sXb}, s{sT0}, {32*896}
s_lshl_b32 s{sMX}, s{sw}, 12
s_add_u32 s{sMXs}, s{sMX}, {XS}""")
if OPT["rot"] == 0:
    A(f"s_mov_b32 s{sC0}, 0")
else:
    if OPT["rot"] == 1:
        A(f"s_add_u32 s{sC0}, s{sh}, s{sj}")
    elif OPT["rot"] == 2:
        A(f"""s_mul_i32 s{sC0}, s{sh}, 7
        s_lshr_b32 s{sC0}, s{sC0}, 4
        s_add_u32 s{sC0}, s{sC0}, s{sj}""")
    elif OPT["rot"] == 3:
        A(f"""s_mul_i32 s{sC0}, s{sh}, 7
        s_lshr_b32 s{sC0}, s{sC0}, 4""")
    A(f"""s_mul_i32 s{sT1}, s{sC0}, 37
    s_lshr_b32 s{sT1}, s{sT1}, 8
    s_mul_i32 s{sT1}, s{sT1}, 7
    s_sub_u32 s{sC0}, s{sC0}, s{sT1}""")
if OPT["pf"]:
    A(f"""s_and_b32 s{sT0}, s2, 0xf8
    s_add_u32 s{sT0}, s{sT0}, s{sw}
    s_lshl_b32 s{sT0}, s{sT0}, 7
    s_min_u32 s{sT0}, s{sT0}, CODE_SPAN
    s_getpc_b64 s[{sRet}:{sRet+1}]""")
    A.label("L_nopf")
    A(f"""v_mov_b32 v{t4}, s{sT0}
    global_load_dword v{t5}, v{t4}, s[{sRet}:{sRet+1}]""")
A(f"""s_lshl_b32 s{sCx}, s{sC0}, 7
s_mov_b32 s{sX+2}, {2048*896}
s_mov_b32 s{sX+3}, 0x20000
s_cmp_eq_u32 s{sb}, 0
s_waitcnt lgkmcnt(0)
s_cselect_b32 s{sX}, s8, s14
s_cselect_b32 s{sX+1}, s9, s15
s_cselect_b32 s{sW}, s10, s16
s_cselect_b32 s{sW+1}, s11, s17
s_cselect_b32 s{sWO}, s12, s18
s_cselect_b32 s{sWO+1}, s13, s19""")
if OPT["ts"]:
    A(f"v_writelane_b32 v{vTS}, s{sTS}, 0")
ts(14, 2)


def x_pieces(c):
    p = [f"""s_add_u32 m0, s{sMXs}, {(c % 2) * 32768}
    s_add_u32 s{sD0}, s{sCx}, s{sXb}
    buffer_load_dwordx4 v{vXd[0]}, s[{sX}:{sX+3}], s{sD0} offen{NTX} lds
    s_add_u32 s{sCx}, s{sCx}, 128
    s_cmp_eq_u32 s{sCx}, 896
    s_cselect_b32 s{sCx}, 0, s{sCx}"""]
    for i in range(1, 4):
        p.append(f"buffer_load_dwordx4 v{vXd[i]}, s[{sX}:{sX+3}], s{sD0} offen offset:{1024*i}{NTX} lds")
    return [(x, f"X{c}") for x in p]


def w_piece(it):
    return (f"""s_add_u32 m0, s{sMW}, {it*8192}
    s_add_u32 s{sD1}, s{sCw}, s{sWb}
    buffer_load_dwordx4 v{vWd}, s[{sW}:{sW+3}], s{sD1} offen{NTW} lds
    s_add_u32 s{sCw}, s{sCw}, {64*2688}
    s_cmp_eq_u32 s{sCw}, {448*2688}
    s_cselect_b32 s{sCw}, 0, s{sCw}""", f"W{it}")


def wq_piece(i):
    return (f"""s_add_u32 m0, s{sMQ}, {i*1024}
    s_add_u32 s{sD1}, s{sCq}, s{sWq}
    buffer_load_dwordx4 v{vWq}, s[{sW}:{sW+3}], s{sD1} offen lds
    s_add_u32 s{sCq}, s{sCq}, {16*2688}
    s_cmp_eq_u32 s{sCq}, {448*2688}
    s_cselect_b32 s{sCq}, 0, s{sCq}""", "WQ")


def wq_touch():
    return (f"""s_mov_b64 exec, 0x3fff
    buffer_load_dword v{t5}, v{vPf}, s[{sW}:{sW+3}], 0 offen{NTW}
    s_mov_b64 exec, -1""", "PF")


for p, _ in x_pieces(0):
    A(p)
ts(1, 2)
A(f"""s_mov_b32 s{sW+2}, {448*2688}
s_mov_b32 s{sW+3}, 0x20000
s_cmp_gt_u32 s{sh}, 6
s_subb_u32 s{sLine}, s{sh}, 0
s_cmp_gt_u32 s{sh}, 9
s_subb_u32 s{sLine}, s{sLine}, 0
s_lshl_b32 s{sWb}, s{sLine}, 7
s_cmp_ge_u32 s{sLine}, 7
s_cselect_b32 s{sT0}, 7, 0
s_sub_u32 s{sLine}, s{sLine}, s{sT0}
s_mul_i32 s{sT0}, s{sw}, {8*2688}
s_add_u32 s{sWb}, s{sWb}, s{sT0}
s_add_u32 s{sWb}, s{sWb}, 896
s_mul_i32 s{sCw}, s{sC0}, {64*2688}
s_lshl_b32 s{sMW}, s{sw}, 10
v_lshrrev_b32 v{t0}, 3, v{vLane}
v_mul_u32_u24 v{t0}, 2688, v{t0}
v_bfe_u32 v{t1}, v{vLane}, 4, 1
v_lshlrev_b32 v{t1}, 2, v{t1}
v_xor_b32 v{t1}, v{t1}, v{t2}
v_lshl_add_u32 v{vWd}, v{t1}, 4, v{t0}
s_lshr_b32 s{sNone}, 0x240, s{sh}
s_and_b32 s{sNone}, s{sNone}, 1""")

EARLY = lines(f"""s_lshl_b32 s{sT0}, s{sb}, 8
s_add_u32 s{sT0}, s{sT0}, {EPOCH_OFF}
s_load_dword s{sE}, s[24:25], s{sT0}
v_lshrrev_b32 v{t2}, 5, v{vLane}
v_and_b32 v{t0}, 31, v{vLane}
v_bfe_u32 v{t1}, v{vLane}, 1, 3
v_xor_b32 v{t1}, v{t1}, v{t2}
v_lshlrev_b32 v{t0}, 7, v{t0}
v_add_u32 v{t0}, s{sMXs}, v{t0}""")
for sst in range(4):
    EARLY += lines(f"""v_xor_b32 v{t3}, {2*sst}, v{t1}
    v_lshl_add_u32 v{vXa[sst]}, v{t3}, 4, v{t0}""")
EARLY += lines(f"""v_bfe_u32 v{t1}, v{vLane}, 2, 2
v_lshl_add_u32 v{t0}, v{t2}, 3, v{t1}
v_bfe_u32 v{t3}, v{vLane}, 4, 1
v_and_b32 v{t4}, 3, v{vLane}
v_lshlrev_b32 v{t4}, 3, v{t4}
v_lshl_add_u32 v{t4}, v{t3}, 5, v{t4}
v_lshl_add_u32 v{vWqr}, v{t0}, 6, v{t4}
v_lshl_add_u32 v{t4}, v{t0}, 7, v{t4}
v_lshrrev_b32 v{t1}, 1, v{t1}
v_lshl_add_u32 v{vWr[0]}, v{t1}, 6, v{t4}
v_xor_b32 v{vWr[1]}, 64, v{vWr[0]}
v_mov_b32 v{t0}, {MISC}
v_mov_b32 v{vPd}, 0
v_mov_b32 v{vPd+1}, 0
v_mov_b32 v{vPd+2}, 0
v_mov_b32 v{vPd+3}, 0
ds_write_b128 v{t0}, {v(vPd,4)}""")

MID = lines(f"""s_lshl_b32 s{sT0}, s{sj}, 3
s_add_u32 s{sT0}, s{sT0}, s{sw}
s_mul_i32 s{sT0}, s{sT0}, {7*2688}
s_mul_i32 s{sT1}, s{sh}, 56
s_add_u32 s{sT0}, s{sT0}, s{sT1}
v_lshrrev_b32 v{t0}, 1, v{vLane}
v_mul_u32_u24 v{t0}, 2688, v{t0}
v_and_b32 v{t1}, 1, v{vLane}
v_mad_u32_u24 v{t0}, v{t1}, 52, v{t0}
v_add_u32 v{vPf}, s{sT0}, v{t0}
s_and_b32 s{sT0}, s{sh}, 1
s_lshl_b32 s{sT0}, s{sT0}, 3
s_add_u32 s{sT0}, s{sT0}, {WQ}
v_add_u32 v{vWqr}, s{sT0}, v{vWqr}
s_mul_i32 s{sWq}, s{sh}, 56
s_and_b32 s{sWq}, s{sWq}, 0xfffffff0
s_and_b32 s{sT0}, s{sw}, 3
s_mul_i32 s{sMQ}, s{sT0}, 7168
s_add_u32 s{sMQ}, s{sMQ}, {WQ}
s_mul_i32 s{sT0}, s{sT0}, 7
s_lshl_b32 s{sT1}, s{sC0}, 2
s_add_u32 s{sT0}, s{sT0}, s{sT1}
s_sub_u32 s{sT1}, s{sT0}, 28
s_min_u32 s{sT0}, s{sT0}, s{sT1}
s_mul_i32 s{sCq}, s{sT0}, {16*2688}
v_lshrrev_b32 v{t0}, 2, v{vLane}
v_mul_u32_u24 v{t0}, 2688, v{t0}
v_and_b32 v{t1}, 3, v{vLane}
v_lshl_add_u32 v{vWq}, v{t1}, 4, v{t0}""")
MID += lines(f"""s_mov_b32 s{sWS}, s24
s_mov_b32 s{sWS+1}, s25
s_mov_b32 s{sWS+2}, {WS_BYTES}
s_mov_b32 s{sWS+3}, 0x20000
s_lshl_b32 s{sKVt}, s{sb}, 22
s_lshl_b32 s{sRel}, s{sj}, 15
s_add_u32 s{sRel}, s{sRel}, s{sMX}
s_add_u32 s{sKVt}, s{sKVt}, s{sRel}
s_add_u32 s{sKVt}, s{sKVt}, {KV_OFF}
s_and_b32 s{sT0}, s{sw}, 3
s_lshl_b32 s{sT0}, s{sT0}, 1
s_lshl_b32 s{sT1}, s{sb}, 3
s_add_u32 s{sT1}, s{sT1}, s{sj}
s_lshl_b32 s{sT1}, s{sT1}, 3
s_add_u32 s{sT0}, s{sT0}, s{sT1}
s_lshl_b32 s{sT0}, s{sT0}, 4
s_add_u32 s{sT0}, s{sT0}, s{sh}
s_lshl_b32 s{sOp}, s{sT0}, 11
s_add_u32 s{sOp}, s{sOp}, {O_OFF}
s_lshl_b32 s{sOt}, s{sKap}, 15
s_add_u32 s{sOt}, s{sOt}, s{sOp}
v_mov_b32 v{vOnes}, -1
v_mov_b32 v{vOnes+1}, -1
v_mov_b32 v{vOnes+2}, -1
v_mov_b32 v{vOnes+3}, -1
s_add_u32 s{sFl}, s{sT1}, s{sw}
s_mul_i32 s{sFl}, s{sFl}, {FS}
s_lshl_b32 s{sT0}, s{sh}, {ES}
s_add_u32 s{sFl}, s{sFl}, s{sT0}
s_add_u32 s{sFl}, s{sFl}, {FLAG_OFF}
v_mov_b32 v{vFl+1}, 0""")
LATE = lines(f"""s_lshl_b32 s{sPl}, s{sb}, 6
s_and_b32 s{sT1}, s{sw}, 3
s_add_u32 s{sPl}, s{sPl}, s{sT1}
s_mul_i32 s{sPl}, s{sPl}, {FS}
s_add_u32 s{sPl}, s{sPl}, {FLAG_OFF}
s_add_u32 s{sT0}, s{sj}, s{sKap}
s_and_b32 s{sT0}, s{sT0}, 7
s_lshl_b32 s{sRel}, s{sT0}, 15
s_lshl_b32 s{sT1}, s{sT1}, 12
s_add_u32 s{sRel}, s{sRel}, s{sT1}
s_sub_u32 s{sRel}, s{sRel}, 0x10000
v_bfe_u32 v{t3}, v{vLane}, 2, 2
v_lshl_add_u32 v{t3}, v{t3}, 1, s{sT0}
v_and_b32 v{t3}, 7, v{t3}
v_bfe_u32 v{t1}, v{vLane}, 4, 1
v_lshl_add_u32 v{t3}, v{t3}, 1, v{t1}
v_mul_u32_u24 v{t3}, {4*FS}, v{t3}
s_mul_i32 s{sT0}, s{sh}, 28
s_add_u32 s{sT1}, s{sT0}, 27
s_lshr_b32 s{sT0}, s{sT0}, 6
s_lshr_b32 s{sT1}, s{sT1}, 6
s_sub_u32 s{sT1}, s{sT1}, s{sT0}
v_and_b32 v{t0}, 1, v{vLane}
v_mul_u32_u24 v{t0}, s{sT1}, v{t0}
v_add_u32 v{t0}, s{sT0}, v{t0}
v_bfe_u32 v{t1}, v{vLane}, 1, 1
v_mad_u32_u24 v{t0}, v{t1}, 7, v{t0}
v_add_u32 v{t4}, 10, v{t0}
v_lshrrev_b32 v{t4}, 4, v{t4}
v_lshrrev_b32 v{t2}, 3, v{t0}
v_add3_u32 v{t0}, v{t0}, v{t4}, v{t2}
s_sub_u32 s{sT2}, s{sT1}, 1
s_and_b32 s{sT2}, s{sT2}, 0xaaaaaaaa
s_mov_b32 s{sT3}, s{sT2}
v_mad_u32_u24 v{t1}, v{t1}, 3, 6
v_cndmask_b32 v{t0}, v{t0}, v{t1}, s[{sT2}:{sT3}]
v_lshl_add_u32 v{vPl}, v{t0}, {ES}, v{t3}
v_and_b32 v{t2}, 7, v{vLane}
s_lshl_b32 s{sKV}, s{sHH}, 18
s_add_u32 s{sKV}, s{sKV}, {KV_OFF}
s_mov_b32 s{sDone}, 0""")
NPRE = len(LATE)
LATE += lines(f"""s_mov_b32 s{sWO+2}, {448*896}
s_mov_b32 s{sWO+3}, 0x20000
s_mov_b32 s{sOUT}, s20
s_mov_b32 s{sOUT+1}, s21
s_mov_b32 s{sOUT+2}, {2048*1792}
s_mov_b32 s{sOUT+3}, 0x20000
s_mov_b32 s{sLo}, -1
s_mov_b32 s{sLo+1}, 0
s_mov_b32 s{sCs}, {hex(f2u(CSCALE))}
s_mov_b32 s{sCs+1}, {hex(f2u(CSCALE))}
s_mov_b32 s{sChk}, {0 if OPT['force_slow'] else L_RANGE}
s_and_b32 s{sWoff}, s{sh}, 3
s_mul_i32 s{sWoff}, s{sWoff}, 224""")
LATE += lines(f"""s_lshl_b32 s{sT1}, s{sb}, 3
s_add_u32 s{sT1}, s{sT1}, s{sj}
s_lshl_b32 s{sT1}, s{sT1}, 3
s_lshr_b32 s{sT0}, s{sh}, 2
s_bfe_u32 s{sT2}, s{sw}, 0x10001
s_lshl_b32 s{sPc}, s{sT2}, 2
s_add_u32 s{sPc}, s{sPc}, s{sT0}
s_add_u32 s{sPc}, s{sPc}, s{sT1}
s_mul_i32 s{sPc}, s{sPc}, {FS}
s_add_u32 s{sPc}, s{sPc}, {FLAG_OFF}
s_add_u32 s{sHi}, s{sT0}, s{sT1}
s_mul_i32 s{sHi}, s{sHi}, {FS}
s_add_u32 s{sHi}, s{sHi}, {FLAG_OFF+4*FS}
s_lshl_b32 s{sT3}, s{sT0}, 1
s_add_u32 s{sT3}, s{sT3}, s{sT2}
s_add_u32 s{sT3}, s{sT3}, s{sT1}
s_lshl_b32 s{sOin}, s{sT3}, 15
s_add_u32 s{sOin}, s{sOin}, {O_OFF}
s_and_b32 s{sT3}, s{sw}, 1
s_lshl_b32 s{sT3}, s{sT3}, 8
s_add_u32 s{sOin}, s{sOin}, s{sT3}""")
LATE += lines(f"""s_lshl_b32 s{sT1}, s{sj}, 2
s_add_u32 s{sT0}, s{sT0}, s{sT1}
s_lshl_b32 s{sT0}, s{sT0}, 2
s_and_b32 s{sT1}, s{sw}, 3
s_add_u32 s{sT0}, s{sT0}, s{sT1}
s_mul_i32 s{sOut}, s{sT0}, {16*1792}
s_mul_i32 s{sT0}, s{sb}, 896
s_add_u32 s{sOut}, s{sOut}, s{sT0}
s_add_u32 s{sOut}, s{sOut}, s{sWoff}
v_mov_b32 v{vIdx}, 0xdddddddd
s_lshl_b32 s{sT0}, s{sw}, 11
s_add_u32 s{sT0}, s{sT0}, {QOFF}
v_and_b32 v{t0}, 1, v{vLane}
v_lshlrev_b32 v{t0}, 4, v{t0}
v_bfe_u32 v{t1}, v{vLane}, 4, 1
v_lshl_add_u32 v{t0}, v{t1}, 3, v{t0}
v_bfe_u32 v{t1}, v{vLane}, 3, 1
v_lshl_add_u32 v{t0}, v{t1}, 1, v{t0}
v_bfe_u32 v{t1}, v{vLane}, 1, 1
v_add_u32 v{t0}, v{t0}, v{t1}
v_and_b32 v{t1}, 0x24, v{vLane}
v_add_u32 v{t0}, v{t0}, v{t1}
v_sub_u32 v{t0}, v{t0}, v{vLane}
v_mul_lo_u32 v{t0}, v{t0}, s{sRole}
v_add_u32 v{t0}, v{t0}, v{vLane}
v_lshl_add_u32 v{vQw}, v{t0}, 4, s{sT0}
s_lshl_b32 s{sT2}, s{sT1}, 12
s_add_u32 s{sT2}, s{sT2}, {QOFF}
v_add_u32 v{vQr}, s{sT2}, v{vL16}
s_lshl_b32 s{sT0}, s{sKap}, 14
v_add_u32 v{vBase}, s{sT0}, v{vL16}
v_add_u32 v{vCur}, 0x10000, v{vBase}
v_lshl_add_u32 v{vBk}, v{vLane}, 3, s{sT0}
s_add_u32 s{sT0}, s{sT1}, 5
s_lshl_b32 s{sT0}, s{sT0}, 13
s_and_b32 s{sT0}, s{sT0}, 0xffff
v_add_u32 v{vRw}, s{sT0}, v{vL16}
s_lshl_b32 s{sT0}, s{sT1}, 2
s_add_u32 s{sT0}, s{sT0}, {MISC}
v_mov_b32 v{vMf}, s{sT0}
v_lshrrev_b32 v{t1}, 3, v{vLane}
s_lshl_b32 s{sT0}, s{sT1}, 11
s_add_u32 s{sT0}, s{sT0}, {OT}
v_xor_b32 v{t3}, v{t1}, v{t2}
v_lshlrev_b32 v{t3}, 4, v{t3}
v_lshl_add_u32 v{t3}, v{t1}, 7, v{t3}
v_add_u32 v{vTr}, s{sT0}, v{t3}
v_mul_u32_u24 v{t3}, 1792, v{t1}
v_lshl_add_u32 v{vOs}, v{t2}, 4, v{t3}
v_add_u32 v{t3}, 2, v{t2}
v_lshrrev_b32 v{t3}, 3, v{t3}
v_lshlrev_b32 v{t3}, 30, v{t3}
v_add_u32 v{t3}, 128, v{t3}
v_add_u32 v{vOs2}, v{t3}, v{vOs}
v_and_b32 v{t0}, 15, v{vLane}
v_lshrrev_b32 v{t1}, 4, v{vLane}
v_lshrrev_b32 v{t3}, 1, v{t1}
v_xor_b32 v{t3}, v{t3}, v{t2}
v_lshlrev_b32 v{t3}, 4, v{t3}
v_lshl_add_u32 v{t3}, v{t0}, 7, v{t3}
v_and_b32 v{t4}, 1, v{t1}
v_lshl_add_u32 v{t3}, v{t4}, 3, v{t3}
v_add_u32 v{vTw}, s{sT0}, v{t3}
v_lshlrev_b32 v{vPc}, {ES}, v{t0}
v_lshlrev_b32 v{t2}, 11, v{t0}
v_add_u32 v{vLp}, {3*512+15*16}, v{t2}
v_lshlrev_b32 v{t2}, 9, v{t1}
v_lshl_add_u32 v{vOa}, v{t0}, 4, v{t2}""")
LATE += lines(f"""v_lshrrev_b32 v{t2}, 1, v{t1}
v_lshlrev_b32 v{t2}, 4, v{t2}
v_lshl_add_u32 v{t2}, v{t4}, 2, v{t2}
v_bfe_u32 v{t3}, v{vLane}, 2, 2
v_add_u32 v{t2}, v{t2}, v{t3}
v_mul_u32_u24 v{t2}, 224, v{t2}
v_and_b32 v{t3}, 3, v{vLane}
v_lshl_add_u32 v{t2}, v{t3}, 3, v{t2}
v_add_u32 v{t3}, 1, v{t1}
v_lshrrev_b32 v{t3}, 2, v{t3}
v_mul_u32_u24 v{t3}, {4*224}, v{t3}
v_sub_u32 v{t3}, v{t2}, v{t3}
v_add_u32 v{vW0}, {WOB}, v{t2}
v_add_u32 v{vW1}, {WOB+8*224}, v{t3}
v_add_u32 v{vW0b}, {WOB+8*6272}, v{t2}
v_add_u32 v{vW1b}, {WOB+8*6272+8*224}, v{t3}
v_add_u32 v{vW0c}, {WO15}, v{t2}
v_add_u32 v{vW1c}, {WO15+8*224}, v{t3}""")
LATE += lines(f"""v_mul_u32_u24 v{t2}, 0x4925, v{vLane}
v_lshrrev_b32 v{t2}, 18, v{t2}
v_mul_u32_u24 v{t3}, 14, v{t2}
v_sub_u32 v{t3}, v{vLane}, v{t3}
v_mul_u32_u24 v{t2}, 896, v{t2}
v_lshl_add_u32 v{vWod}, v{t3}, 4, v{t2}
s_mul_i32 s{sWn}, s{sw}, 3584
s_add_u32 s{sWn}, s{sWn}, s{sWoff}
s_mul_i32 s{sWm}, s{sw}, 896
s_add_u32 s{sWm13}, s{sWm}, {WO15-896}
s_max_u32 s{sT0}, s{sw}, 1
s_sub_u32 s{sT0}, s{sT0}, s{sw}
s_mul_i32 s{sT0}, s{sT0}, {WOB+104*896-(WO15-896)}
s_add_u32 s{sWm13}, s{sWm13}, s{sT0}""")
ENDS = lines(f"""s_mul_i32 s{sT2}, s{sLine}, {16*9363}
s_add_u32 s{sT3}, s{sT2}, {16*9363}
s_lshr_b32 s{sT2}, s{sT2}, 16
s_lshr_b32 s{sT3}, s{sT3}, 16
s_sub_u32 s{sT3}, s{sT3}, s{sT2}
s_lshl_b32 s{sT2}, s{sT2}, 18""")
FK = lines(f"""v_and_b32 v{t0}, 15, v{vLane}
v_lshlrev_b32 v{t0}, 4, v{t0}
v_bfe_u32 v{t1}, v{vLane}, 4, 1
v_lshrrev_b32 v{t4}, 5, v{vLane}
v_lshl_add_u32 v{t1}, v{t1}, 1, v{t4}
s_lshl_b32 s{sT0}, s{sLine}, 4
v_add_u32 v{t1}, s{sT0}, v{t1}""")
for i in range(4):
    FK += lines(f"""v_add_u32 v{t2}, {4*i}, v{t1}
    v_mul_u32_u24 v{t3}, 9363, v{t2}
    v_lshrrev_b32 v{t3}, 16, v{t3}
    v_lshl_add_u32 v{vSt[i]}, v{t3}, 18, v{t0}
    v_mul_u32_u24 v{t3}, 7, v{t3}
    v_sub_u32 v{t2}, v{t2}, v{t3}
    v_lshl_add_u32 v{vSt[i]}, v{t2}, 8, v{vSt[i]}""")
FK += ENDS + lines(f"""s_add_u32 s{sT2}, s{sT2}, {7*256}
v_lshrrev_b32 v{t1}, 4, v{vLane}
v_cmp_gt_u32 vcc, s{sT3}, v{t1}
v_lshl_add_u32 v{t0}, v{t1}, 18, v{t0}
v_add_u32 v{t0}, s{sT2}, v{t0}
v_mov_b32 v{t3}, {OOB}
v_cndmask_b32 v{vP[0]}, v{t3}, v{t0}, vcc""")
FV = lines(f"""v_and_b32 v{t0}, 31, v{vLane}
s_lshl_b32 s{sT0}, s{sLine}, 6
v_add_u32 v{t0}, s{sT0}, v{t0}
v_and_b32 v{t4}, 32, v{vLane}""")
for ct in range(2):
    FV += lines(f"""v_add_u32 v{t2}, {32*ct}, v{t0}
    v_mul_u32_u24 v{t3}, 2341, v{t2}
    v_lshrrev_b32 v{t3}, 16, v{t3}
    v_mul_u32_u24 v{t1}, 28, v{t3}
    v_sub_u32 v{t2}, v{t2}, v{t1}
    v_add_u32 v{t2}, v{t2}, v{t4}
    v_lshlrev_b32 v{t2}, 4, v{t2}
    v_lshl_add_u32 v{t2}, v{t3}, 18, v{t2}
    v_add_u32 v{vSt[2*ct]}, 2048, v{t2}
    v_add_u32 v{vSt[2*ct+1]}, 3072, v{t2}""")
FV += ENDS + lines(f"""s_add_u32 s{sT2}, s{sT2}, {2048+28*16}
v_lshrrev_b32 v{t0}, 4, v{vLane}
v_cmp_gt_u32 vcc, s{sT3}, v{t0}
v_bfe_u32 v{t1}, v{vLane}, 2, 2
v_lshlrev_b32 v{t1}, 9, v{t1}
v_lshl_add_u32 v{t1}, v{t0}, 18, v{t1}
v_and_b32 v{t2}, 3, v{vLane}
v_lshl_add_u32 v{t1}, v{t2}, 4, v{t1}
v_add_u32 v{t1}, s{sT2}, v{t1}
v_mov_b32 v{t3}, {OOB}
v_cndmask_b32 v{vP[0]}, v{t3}, v{t1}, vcc
v_cmp_eq_u32 vcc, 0, v{t2}
v_mov_b32 v{t3}, 0x3f803f80
s_nop 0
v_cndmask_b32 v{vPd}, 0, v{t3}, vcc
v_mov_b32 v{vPd+1}, v{vPd}
v_mov_b32 v{vPd+2}, v{vPd}
v_mov_b32 v{vPd+3}, v{vPd}""")


def st16(data, addr, soff, off=0):
    return (f"buffer_store_dwordx4 {v(data,4)}, v{addr}, s[{sWS}:{sWS+3}], s{soff} offen offset:{off} sc1", "ST")


def st8(data, addr, soff):
    return (f"buffer_store_dwordx2 {v(data,2)}, v{addr}, s[{sWS}:{sWS+3}], s{soff} offen sc1", "ST")


def flag_store(vm):
    vm.wait("ST")
    A(f"""s_mov_b64 exec, 1
    buffer_store_dword v{vFl}, v{vFl+1}, s[{sWS}:{sWS+3}], s{sFl} offen sc1
    s_mov_b64 exec, -1""")
    vm.issue("FL")
    ts(4)


def pass1(role):
    vm, lg = Cnt("vmcnt", 63), Cnt("lgkmcnt", 15)
    vm.issue("X0", 4)
    if role != "N":
        for i in range(3):
            vm.issue(f"W{i}")
    vm.issue("X1", 4)
    fill = list(REST) + {"K": list(FK), "V": list(FV), "N": []}[role]

    def dma(p):
        A(p[0])
        vm.issue(p[1])

    def xread(c):
        vm.wait(f"X{c}")
        for st in range(4):
            A(f"ds_read_b128 {v(Xr+16*c+4*st,4)}, v{vXa[st]} offset:{(c % 2) * 32768}")
        lg.issue(f"R{c}", 4)

    def wread(g):
        for ct in range(2):
            for u in range(2):
                A(f"ds_read_b64_tr_b16 {v(Wf+8*(g%3)+4*ct+2*u,2)}, v{vWr[ct]} offset:{g*2048+u*512}")
        lg.issue(f"F{g}", 4)

    xread(0)
    if role == "N":
        emit(fill, len(fill))
        flag_store(vm)
        if OPT["wqpf"]:
            dma(wq_touch())
        for i in range(4):
            A(f"v_mov_b32 v{vSt[i]}, {OOB}")
        for c in range(0, 7):
            if c:
                xread(c)
            lg.wait(f"R{c}")
            if c + 2 <= 6:
                for p in x_pieces(c + 2):
                    dma(p)
        A(f"""s_cmp_eq_u32 s{sKap}, 0
        s_cbranch_scc1 L_nq""")
        for i in range(7):
            dma(wq_piece(i))
        A.label("L_nq")
        return
    slots = {}
    for i, p in enumerate(x_pieces(2)):
        slots[(i // 2, i % 2)] = p
    for i in range(4):
        slots[([2, 2, 5, 5][i], i % 2)] = w_piece(3 + i)
    for c in range(0, 4):
        for i, p in enumerate(x_pieces(c + 3)):
            slots[(4 * c + 3 + i // 2, i % 2)] = p
    slots[(OPT["padg"], 1)] = st16(vPd, vP[0], sKVt)
    if OPT["wqpf"]:
        slots[(OPT["wqpf"], 0)] = wq_touch()
    nf = -(-len(fill) // 32)
    vm.wait("W2")
    ts(3, 2)
    A("s_barrier")
    ts(4, 2)
    wread(0)
    wread(1)

    def step(g):
        c = g // 4
        lg.wait(f"F{g}", f"R{c}")
        if g % 4 == 3:
            lg.wait(f"R{c+1}")
        if g % 4 == 2 and c + 1 <= 6:
            xread(c + 1)
        if g == 10:
            vm.wait("W6")
            A("s_barrier")
        if g % 4 == 0:
            ts(5 + c, 2)
        if g + 2 < 28:
            wread(g + 2)
        for ct in range(2):
            ac = [acc0, acc1][ct]
            wf, xf = v(Wf + 8 * (g % 3) + 4 * ct, 4), v(Xr + 4 * g, 4)
            a_, b_ = (wf, xf) if role == "K" else (xf, wf)
            A(f"v_mfma_f32_32x32x16_bf16 {v(ac,16)}, {a_}, {b_}, {'0' if g == 0 else v(ac,16)}")
            if (g, ct) in slots:
                dma(slots[(g, ct)])
            emit(fill, nf)

    def pack(store):
        for ct in range(2):
            ac = [acc0, acc1][ct]
            pp = Wf + 8 * ct
            for r in range(8):
                A(f"v_cvt_pk_bf16_f32 v{pp+r}, v{ac+2*r}, v{ac+2*r+1}")
                if role == "V" and r % 4 == 3 and store:
                    dma(st16(pp + r - 3, vSt[2 * ct + r // 4], sKVt))
            if role == "K":
                for i in range(2):
                    A(f"v_permlane16_swap_b32 v{pp+4*i}, v{pp+4*i+2}")
                    A(f"v_permlane16_swap_b32 v{pp+4*i+1}, v{pp+4*i+3}")
                    if store:
                        dma(st16(pp + 4 * i, vSt[2 * ct + i], sKVt))

    G0 = 17
    for g in range(G0):
        step(g)
    assert not fill
    A(f"""s_cmp_lg_u32 s{sKap}, 0
    s_cbranch_scc1 L_young{role}""")
    save = (list(vm.q), list(lg.q))
    for g in range(G0, 28):
        step(g)
    ts(2)
    ts(12, 2)
    pack(True)
    ts(1)
    for i in range(4):
        A(f"v_mov_b32 v{vSt[i]}, {OOB}")
    A("s_branch L_q")
    A.label(f"L_young{role}")
    vm.q, lg.q = save
    for i in range(7):
        k = OPT["wq0"] * 2 + OPT["wqs"] * i
        while (k // 2, k % 2) in slots:
            k += 1
        slots[(k // 2, k % 2)] = wq_piece(i)
    for g in range(G0, 28):
        step(g)
    ts(2)
    ts(12, 2)
    pack(False)
    A("s_branch L_q")


A(f"s_cbranch_scc1 L_now")
for i in range(3):
    A(w_piece(i)[0])
A.label("L_now")
ALLS = EARLY + MID + LATE
npro = max(len(EARLY), min(len(ALLS), OPT["npro"]))
PRO, REST = ALLS[:npro], ALLS[npro:]
PRO += lines(f"""s_waitcnt lgkmcnt(0)
s_mul_i32 s{stag}, s{sE}, 0x9e3779b1
s_add_u32 s{stag}, s{stag}, 0x7f4a7c15
v_mov_b32 v{vFl}, s{stag}""")
emit(PRO, 12)
if OPT["ibar"]:
    A("s_barrier")
for p in x_pieces(1):
    A(p[0])
    emit(PRO, 12)
emit(PRO, len(PRO))
ts(2, 2)
A(f"""s_cmp_eq_u32 s{sNone}, 1
s_cbranch_scc1 L_roleN
s_cmp_eq_u32 s{sRole}, 1
s_cbranch_scc1 L_roleV""")
pass1("K")
A.label("L_roleV")
pass1("V")
A.label("L_roleN")
pass1("N")
A.label("L_q")

LATE = []
A(f"""s_waitcnt vmcnt(0)
s_cmp_lg_u32 s{sKap}, 0
s_cbranch_scc1 L_noflag""")
flag_store(Cnt("vmcnt", 63))
A.label("L_noflag")
A("s_barrier")
ts(3)
ts(13, 2)
for r in range(32):
    LATE.append(f"v_mov_b32 v{O[0]+r}, 0")


def poll_text(mask):
    return f"""s_mov_b64 exec, {mask if mask < 64 else hex(mask)}
    buffer_load_dword v{vFl}, v{vPl}, s[{sWS}:{sWS+3}], s{sPl} offen sc1
    s_mov_b64 exec, -1"""


def poll_issue(mask=15):
    A(poll_text(mask))


ntry = [0]


def hook_try(level=2):
    ntry[0] += 1
    A(f"""s_cmp_ge_u32 s{sDone}, {level}
    s_cbranch_scc1 L_skip{ntry[0]}
    s_call_b64 s[{sRet}:{sRet+1}], L_try""")
    A.label(f"L_skip{ntry[0]}")


def spin(level, name):
    A(f"s_mov_b32 s{sSpin}, 0x40000")
    A.label(name)
    A(f"""s_cmp_ge_u32 s{sDone}, {level}
    s_cbranch_scc1 {name}_done
    s_call_b64 s[{sRet}:{sRet+1}], L_try
    s_sub_u32 s{sSpin}, s{sSpin}, 1
    s_cbranch_scc0 {name}""")
    A.label(name + "_done")


accQ = acc0
QD = OPT["qd"]
Wg = acc1 if QD == 3 else Wq8
lg = Cnt("lgkmcnt", 15)


def qread(g):
    for u in range(2):
        A(f"ds_read_b64_tr_b16 {v(Wg+4*(g%(QD+1))+2*u,2)}, v{vWqr} offset:{g*1024+u*256}")
    lg.issue(f"F{g}", 2)


for g in range(QD):
    qread(g)
for g in range(28):
    lg.wait(f"F{g}")
    A(f"v_mfma_f32_32x32x16_bf16 {v(accQ,16)}, {v(Wg+4*(g%(QD+1)),4)}, {v(Xr+4*g,4)}, {'0' if g == 0 else v(accQ,16)}")
    if g + QD < 28:
        qread(g + QD)
    if g >= 9:
        emit(LATE, 2)
    if g == OPT["pq"]:
        poll_issue()
    if g > OPT["pq"] and (g - OPT["pq"]) % OPT["tq"] == 0:
        hook_try(1)
assert not LATE
pqq = Wf + 16
for r in range(8):
    A(f"v_pk_mul_f32 {v(accQ+2*r,2)}, {v(accQ+2*r,2)}, s[{sCs}:{sCs+1}]")
for r in range(8):
    A(f"v_cvt_pk_bf16_f32 v{pqq+r}, v{accQ+2*r}, v{accQ+2*r+1}")
for r in (6, 7):
    A(f"v_cndmask_b32 v{pqq+r}, 0, v{pqq+r}, s[{sLo}:{sLo+1}]")
A(f"""ds_write_b128 v{vQw}, {v(pqq,4)}
ds_write_b128 v{vQw}, {v(pqq+4,4)} offset:1024""")
ts(11)
spin(1, "L_spin0")
A("""s_waitcnt vmcnt(1) lgkmcnt(0)
s_barrier""")
ts(12)

A(f"""ds_read_b128 {v(Q[0],4)}, v{vQr}
ds_read2st64_b64 {v(Kf[0],4)}, v{vBk} offset0:64 offset1:65
ds_read_b128 {v(Q[0]+4,4)}, v{vQr} offset:1024
ds_read2st64_b64 {v(Kf[0]+4,4)}, v{vBk} offset0:66 offset1:67
ds_read_b128 {v(Q[1],4)}, v{vQr} offset:2048
ds_read_b128 {v(Q[1]+4,4)}, v{vQr} offset:3072
ds_read2st64_b64 {v(Kf[1],4)}, v{vBk} offset0:72 offset1:73
ds_read2st64_b64 {v(Kf[1]+4,4)}, v{vBk} offset0:74 offset1:75
ds_read_b128 {v(Vf[0],4)}, v{vBase} offset:34816
ds_read_b128 {v(Vf[0]+4,4)}, v{vBase} offset:35840
s_waitcnt lgkmcnt(6)
v_mfma_f32_32x32x16_bf16 {v(S[0],16)}, {v(Kf[0],4)}, {v(Q[0],4)}, 0
v_mfma_f32_32x32x16_bf16 {v(S[0],16)}, {v(Kf[0]+4,4)}, {v(Q[0]+4,4)}, {v(S[0],16)}
s_waitcnt lgkmcnt(4)""")

POS = [32768, 0, 65536]


def kv_addr(blk, t, off):
    p = POS[blk % 3] + t * 4096 + off
    return (vCur, p - 65536) if POS[blk % 3] >= 65536 else (vBase, p)


def kv_next(st):
    pos = POS[st % 3]
    return f"""s_add_u32 s{sRel}, s{sRel}, {0x14000 if st == 4 else 0x10000}
    s_and_b32 s{sRel}, s{sRel}, 0x3ffff
    s_add_u32 m0, s{sMX}, {pos}
    s_add_u32 s{sD0}, s{sRel}, s{sKV}"""


def kv_piece(i):
    return f"buffer_load_dwordx4 v{vL16}, s[{sWS}:{sWS+3}], s{sD0} offen offset:{1024*i} sc1 lds"


def wo_piece(r):
    m = f"s_mov_b32 m0, s{sWm13}" if r == 13 else f"s_add_u32 m0, s{sWm}, {WOB + 8*r*896}"
    return f"""{m}
    s_add_u32 s{sD1}, s{sWn}, {8*r*3584}
    buffer_load_dwordx4 v{vWod}, s[{sWO}:{sWO+3}], s{sD1} offen lds"""


EXTRA = {}
AFTER = {}


def extra(w_, sl, text):
    EXTRA.setdefault((w_, sl), []).append(text)


def window(W):
    blk, u = divmod(W, 8)
    un, up = u + 1, u - 1
    tn, qn = un // 2, un % 2
    tp, qp = up // 2, up % 2
    Sc, Sn, Sp = S[u % 4], S[un % 4], S[up % 4]
    Kn, Vp = Kf[tn % 2], Vf[tp % 2]
    m = [f"v_mfma_f32_32x32x16_bf16 {v(Sn,16)}, {v(Kn,4)}, {v(Q[qn],4)}, 0",
         f"v_mfma_f32_32x32x16_bf16 {v(Sn,16)}, {v(Kn+4,4)}, {v(Q[qn]+4,4)}, {v(Sn,16)}",
         f"v_smfmac_f32_32x32x32_bf16 {v(O[qp],16)}, {v(Vp,4)}, {v(Sp,8)}, v{vIdx}",
         f"v_smfmac_f32_32x32x32_bf16 {v(O[qp],16)}, {v(Vp+4,4)}, {v(Sp+8,8)}, v{vIdx}"]
    if W == 0:
        m[2] = m[3] = None
    if W == 63:
        m = [m[2], None, m[3], None]
    mem = [[], [], [], []]
    pre = [[], [], [], []]

    def rd(dst, T, off):
        if off < 2048:
            o = (POS[(blk + T // 4) % 3] + (T % 4) * 4096 + off) // 512
            return f"ds_read2st64_b64 {v(dst,4)}, v{vBk} offset0:{o} offset1:{o+1}"
        a, o = kv_addr(blk + T // 4, T % 4, off)
        return f"ds_read_b128 {v(dst,4)}, v{a} offset:{o}"
    if u % 2 == 1:
        if not (u == 5 and blk > 0):
            A("s_waitcnt lgkmcnt(0)")
        tt = tn
        Kd, Vd = Kf[(tt + 1) % 2], Vf[tt % 2]
        rk = [rd(Kd, tt + 1, 0), rd(Kd + 4, tt + 1, 1024)]
        rv = [rd(Vd, tt, 2048), rd(Vd + 4, tt, 3072)]
        if W in (5, 61):
            mem[2].append(rv[0])
            mem[3].append(rv[1])
        elif W == 63:
            pass
        elif W == 7:
            A(rd(Kn, 4, 0))
            A(rd(Kn + 4, 4, 1024))
            m = [m[2], m[3], m[0], m[1]]
            mem[0] += [rk[0], rk[1]]
            mem[1] += [rv[0], rv[1]]
            pre[2].append("s_waitcnt lgkmcnt(4)")
        else:
            mem[0].append(rk[0])
            mem[1].append(rk[1])
            mem[2].append(rv[0])
            mem[3].append(rv[1])
    for q in range(4):
        for x in pre[q]:
            A(x)
        if m[q]:
            A(m[q])
        for x in mem[q] + (EXTRA.get((W, q), []) if not (OPT.get("nodma") and 23 <= W < 53) else []):
            A(x)
        for e in range(4):
            A(f"v_exp_f32 v{Sc+4*q+e}, v{Sc+4*q+e}")
    for hk in AFTER.get(W, []):
        hk()


def hook_bar0():
    spin(2, "L_spin1")
    A("""s_waitcnt vmcnt(0)
    s_barrier""")
    ts(6)


def mk_bar(n):
    def f():
        A(f"""s_waitcnt vmcnt({n}) lgkmcnt(0)""")
        if not OPT.get("nobar"):
            A("s_barrier")
    return f


def hook_pollc():
    A(f"""v_cmp_ne_u32 vcc, s{stag}, v{vQm}
    s_cmp_lg_u64 vcc, 0
    s_cbranch_scc1 L_pollc""")
    A.label("L_pollc_done")


hook_try()
for u in range(0, 6):
    AFTER.setdefault(u, []).append(hook_try)
AFTER.setdefault(6, []).append(hook_bar0)
extra(7, 2, kv_next(2) + "\n" + kv_piece(0))
extra(7, 3, kv_piece(1))
extra(8, 1, kv_piece(2))
extra(8, 3, kv_piece(3))
for i in range(4):
    extra(OPT["pubw"] + i // 2, [1, 3][i % 2], st16(Wf + 4 * i, vSt[i], sKVt)[0])
extra(10, 0, st16(vOnes, vL16, sOt)[0])
extra(10, 2, st16(vOnes, vL16, sOt, 1024)[0])
for ww, off in ((8, 0), (22, 64)):
    extra(ww, 1 if ww == 22 else 0, f"""v_mov_b32 v{t0}, s{stag}
    s_mov_b64 exec, 1
    buffer_store_dword v{t0}, v{vFl+1}, s[{sWS}:{sWS+3}], s{sFl} offen offset:{off} sc1
    s_mov_b64 exec, -1""")
extra(17, 1, poll_text(0x7fff0000).replace("0x7fff0000", "0xffff0000"))


def hook_pollh():
    A(f"""v_cmp_ne_u32 vcc, s{stag}, v{vFl}
    s_and_b32 s{sD1}, vcc_lo, 0xffff0000
    s_cbranch_scc1 L_pollh""")
    A.label("L_pollh_done")


wo_early = list(range(5, 13))
for i in range(1, 8):
    nwo = 2 if i == 1 else 0
    if i >= 2 and wo_early:
        for sl in (0, 2):
            extra(8 * i + 2, sl, wo_piece(wo_early.pop(0)))
            nwo += 1
    AFTER.setdefault(8 * i + 4, []).append(mk_bar(nwo))
    if i <= 5:
        extra(8 * i + 6, 0, kv_next(i + 2) + "\n" + kv_piece(0))
        extra(8 * i + 6, 2, kv_piece(1))
        extra(8 * i + 8, 0, kv_piece(2))
        extra(8 * i + 8, 2, kv_piece(3))
assert not wo_early
for k, r in enumerate([0, 1, 2, 3, 4, 13]):
    extra([54, 54, 55, 56, 56, 57][k], [0, 2, 1, 0, 2, 1][k], wo_piece(r))
extra(53, 1, f"buffer_load_dword v{vQm}, v{vPc}, s[{sWS}:{sWS+3}], s{sPc} offen offset:64 sc1")
AFTER[60].append(hook_pollc)
AFTER[20].append(hook_pollh)
PSEG = {1: [(0, 0, 3), (3, 0, 2), (6, 0, 1), (7, 2, 0)], 2: [(0, 0, 3), (4, 0, 2), (6, 2, 1), (7, 3, 0)],
        3: [(0, 0, 1), (7, 2, 0)], 4: [(0, 0, 3), (2, 0, 2), (4, 0, 1), (6, 0, 0)], 5: [(0, 0, 1), (7, 0, 0)],
        6: [(0, 0, 2), (5, 0, 1), (7, 2, 0)]}
if OPT.get("pseg"):
    for (ww, sl, pr) in [(0, 0, 3), (3, 0, 2), (5, 2, 1), (6, 3, 0), (7, 0, 3), (9, 0, 2), (11, 2, 1), (12, 3, 0)]:
        EXTRA.setdefault((ww, sl), []).insert(0, f"s_setprio {pr}")
    for i in range(1, 7):
        for (dw, sl, pr) in PSEG[OPT["pseg"]]:
            EXTRA.setdefault((8 * i + 5 + dw, sl), []).insert(0, f"s_setprio {pr}")
if OPT.get("prio"):
    A(f"""s_cmp_eq_u32 s{sKap}, {OPT["prio"] & 1}
    s_cbranch_scc0 L_np
    s_setprio 1""")
    A.label("L_np")
for W in range(64):
    if W in (24, 48):
        ts(1 if W == 24 else 2, 4)
    window(W)
A(f"""s_nop 0
v_smfmac_f32_32x32x32_bf16 {v(O[1],16)}, {v(Vf[1],4)}, {v(S[3],8)}, v{vIdx}
v_smfmac_f32_32x32x32_bf16 {v(O[1],16)}, {v(Vf[1]+4,4)}, {v(S[3]+8,8)}, v{vIdx}""")
ts(7)

A(f"""s_waitcnt lgkmcnt(0)
s_cmp_eq_u32 s{sKap}, 0
s_cbranch_scc1 L_p3
s_mov_b32 s{sSpin}, 0x400000""")
A.label("L_mwait")
A(f"""ds_read_b32 v{t2}, v{vMf}
s_sub_u32 s{sSpin}, s{sSpin}, 1
s_cbranch_scc1 L_mgo
s_waitcnt lgkmcnt(0)
v_readfirstlane_b32 s{sT0}, v{t2}
s_cmp_eq_u32 s{sT0}, 0
s_cbranch_scc1 L_mwait""")
A.label("L_mgo")
R = S[0]
for i in range(8):
    A(f"ds_read_b128 {v(R+4*i,4)}, v{vRw} offset:{1024*i}")
for q in range(2):
    A(f"s_waitcnt lgkmcnt({4-4*q})")
    for r in range(0, 16, 2):
        A(f"v_pk_add_f32 {v(O[q]+r,2)}, {v(O[q]+r,2)}, {v(R+16*q+r,2)}")
A.label("L_norm")
rc = [vFl, S[2]]
A(f"""v_mov_b32 v{t0}, v{O[0]+12}
v_mov_b32 v{rc[0]}, v{O[0]+12}
v_mov_b32 v{t1}, v{O[1]+12}
v_mov_b32 v{rc[1]}, v{O[1]+12}
s_add_u32 s{sT0}, s{sOp}, 32768
v_permlane32_swap_b32 v{t0}, v{rc[0]}
v_permlane32_swap_b32 v{t1}, v{rc[1]}
v_subrev_u32 v{t0}, {hex(L_LO)}, v{rc[0]}
v_subrev_u32 v{t1}, {hex(L_LO)}, v{rc[1]}
v_max_u32 v{t0}, v{t0}, v{t1}
v_cmp_lt_u32 vcc, s{sChk}, v{t0}
s_cmp_lg_u64 vcc, 0
s_cbranch_scc1 L_slow
v_rcp_f32 v{rc[0]}, v{rc[0]}
v_rcp_f32 v{rc[1]}, v{rc[1]}""")
for q in range(2):
    po = [pk, pq][q]
    so = [sOp, sT0][q]
    for r in range(0, 16, 2):
        A(f"v_pk_mul_f32 {v(O[q]+r,2)}, {v(O[q]+r,2)}, {v(rc[q],2)} op_sel_hi:[1,0]")
    for r in range(8):
        A(f"v_cvt_pk_bf16_f32 v{po+r}, v{O[q]+2*r}, v{O[q]+2*r+1}")
    for r in (6, 7):
        A(f"v_cndmask_b32 v{po+r}, 0, v{po+r}, s[{sLo}:{sLo+1}]")
    for r in range(8):
        A(f"v_min_u32 v{po+r}, -2, v{po+r}")
    A(f"""buffer_store_dwordx4 {v(po,4)}, v{vL16}, s[{sWS}:{sWS+3}], s{so} offen sc1
    buffer_store_dwordx4 {v(po+4,4)}, v{vL16}, s[{sWS}:{sWS+3}], s{so} offen offset:1024 sc1""")
ts(8)
ts(10, 3)
A("s_branch L_noep")

A.label("L_p3")
Of = S[0]
Wr_ = Kf[0]
acc = O[0]
vLr = vQm
assert Vf[1] == Kf[0] + 24 and S[3] == S[0] + 48 and O[1] == O[0] + 16


def light_poll():
    A(f"""s_mov_b64 exec, 0xffff
    buffer_load_dword v{vLr}, v{vLp}, s[{sWS}:{sWS+3}], s{sOin} offen sc1
    s_mov_b64 exec, -1""")


light_poll()
for i in range(8):
    A(f"ds_write_b128 v{vRw}, {v(O[0]+4*i,4)} offset:{1024*i}")
A(f"""v_mov_b32 v{t0}, 1
s_waitcnt lgkmcnt(0)
ds_write_b32 v{vMf}, v{t0}""")
for r in range(28):
    A(f"v_mov_b32 v{acc+r}, 0")
ts(8)
ts(10, 3)


GROUPS = [[[0, 1, 2, 3], [4, 5, 6, 7], [8, 9, 10, 11], [12, 13, 14, 15]],
          [[0, 1, 3, 5], [7, 8, 10, 12], [14, 15, 2, 4], [6, 9, 11, 13]]][OPT["grp"]]


def o_loads(g):
    for k, hh in enumerate(GROUPS[g]):
        A(f"s_add_u32 s{sT0}, s{sOin}, {hh*2048}")
        A(f"buffer_load_dwordx4 {v(Of+16*g+4*k,4)}, v{vOa}, s[{sWS}:{sWS+3}], s{sT0} offen sc1")


def wo_read(g, i):
    hh, ct = GROUPS[g][i // 7], i % 7
    if hh == 15:
        a0, a1, off = vW0c, vW1c, 0
    elif hh >= 8:
        a0, a1, off = vW0b, vW1b, (hh - 8) * 6272
    else:
        a0, a1, off = vW0, vW1, hh * 6272
    d = Wr_ + 4 * (i % 8)
    A(f"ds_read_b64_tr_b16 {v(d,2)}, v{a0} offset:{off+32*ct}")
    A(f"ds_read_b64_tr_b16 {v(d+2,2)}, v{a1} offset:{off+32*ct}")


A(f"""s_mov_b32 s{sDone}, 0
s_mov_b32 s{sPend}, 0
s_mov_b32 s{sTodo}, 0
s_mov_b32 s{sSpin}, 0x40000""")
A.label("L_round")
A(f"""s_waitcnt vmcnt(0) lgkmcnt(0)
v_cmp_ne_u32 s[{sRdy}:{sRdy+1}], -1, v{vLr}""")
for g in range(4):
    b0 = Of + 16 * g
    A(f"""s_bitcmp0_b32 s{sPend}, {g}
    s_cbranch_scc1 L_chk{g}
    v_max3_u32 v{t0}, v{b0}, v{b0+1}, v{b0+2}""")
    for r in range(3, 15, 2):
        A(f"v_max3_u32 v{t0}, v{b0+r}, v{b0+r+1}, v{t0}")
    A(f"""v_max_u32 v{t0}, v{b0+15}, v{t0}
    v_cmp_eq_u32 vcc, -1, v{t0}
    s_cmp_lg_u64 vcc, 0
    s_cbranch_scc1 L_chk{g}
    s_bitset1_b32 s{sTodo}, {g}
    s_bitset1_b32 s{sDone}, {g}""")
    ts(1 + g, 3)
    A.label(f"L_chk{g}")
A(f"""s_mov_b32 s{sPend}, 0
s_mov_b32 s{sI}, 4
s_xor_b32 s{sRem}, s{sDone}, 15
s_cbranch_scc0 L_issued
s_mov_b32 s{sI}, {OPT['per']}
s_bcnt1_i32_b32 s{sT0}, s{sRem}
s_cmp_le_u32 s{sT0}, {OPT['full']}
s_cselect_b32 s{sRdy}, -1, s{sRdy}""")
for g in range(4):
    mask = sum(1 << hh for hh in GROUPS[g])
    A(f"""s_bitcmp0_b32 s{sRem}, {g}
    s_cbranch_scc1 L_iss{g}
    s_andn2_b32 s{sT0}, {hex(mask)}, s{sRdy}
    s_cbranch_scc1 L_iss{g}
    s_bitset1_b32 s{sPend}, {g}""")
    o_loads(g)
    A.label(f"L_iss{g}")
light_poll()
A.label("L_issued")
for g in range(4):
    A(f"""s_bitcmp0_b32 s{sTodo}, {g}
    s_cbranch_scc1 L_prc{g}
    s_sub_u32 s{sI}, s{sI}, 1
    s_cbranch_scc1 L_round
    s_bitset0_b32 s{sTodo}, {g}""")
    for i in range(6):
        wo_read(g, i)
    for i in range(0, 28, 2):
        A(f"s_waitcnt lgkmcnt({2*(min(28, i+6) - (i+2))})")
        for k in (i, i + 1):
            ct = k % 7
            A(f"v_mfma_f32_16x16x32_bf16 {v(acc+4*ct,4)}, {v(Wr_+4*(k%8),4)}, {v(Of+16*g+4*(k//7),4)}, {v(acc+4*ct,4)}")
            if k + 6 < 28:
                wo_read(g, k + 6)
    ts(5 + g, 3)
    A.label(f"L_prc{g}")
A(f"""s_sub_u32 s{sSpin}, s{sSpin}, 1
s_cbranch_scc1 L_rounds_done
s_cmp_lg_u32 s{sDone}, 15
s_cbranch_scc1 L_round""")
A.label("L_rounds_done")
ts(9)
ts(9, 3)
if OPT["ts"] == 3:
    A(f"""s_sub_u32 s{sT0}, 0x40000, s{sSpin}
    v_writelane_b32 v{vTS}, s{sT0}, 14""")
pk2 = Q[0]
rb = S[0]
A(f"s_add_u32 s{sT1}, s{sOut}, {8*1792}")
for ct in range(1, 4):
    A(f"v_xor_b32 v{vT[ct]}, {32*ct}, v{vTw}")
wa = [vTw, vT[1], vT[2], vT[3]]
for ps in range(2):
    for ct in range(4 * ps, min(7, 4 * ps + 4)):
        A(f"""v_cvt_pk_bf16_f32 v{pk2+2*ct}, v{acc+4*ct}, v{acc+4*ct+1}
        v_cvt_pk_bf16_f32 v{pk2+2*ct+1}, v{acc+4*ct+2}, v{acc+4*ct+3}
        ds_write_b64 v{wa[ct%4]}, {v(pk2+2*ct,2)}""")
    A(f"""ds_read_b128 {v(rb+8*ps,4)}, v{vTr}
    ds_read_b128 {v(rb+8*ps+4,4)}, v{vTr} offset:1024""")
A(f"""s_waitcnt lgkmcnt(5)
buffer_store_dwordx4 {v(rb,4)}, v{vOs}, s[{sOUT}:{sOUT+3}], s{sOut} offen{OSC}
buffer_store_dwordx4 {v(rb+4,4)}, v{vOs}, s[{sOUT}:{sOUT+3}], s{sT1} offen{OSC}
s_waitcnt lgkmcnt(0)
buffer_store_dwordx4 {v(rb+8,4)}, v{vOs2}, s[{sOUT}:{sOUT+3}], s{sOut} offen{OSC}
buffer_store_dwordx4 {v(rb+12,4)}, v{vOs2}, s[{sOUT}:{sOUT+3}], s{sT1} offen{OSC}""")
A(f"""s_or_b32 s{sT0}, s{sh}, s{sj}
s_or_b32 s{sT0}, s{sT0}, s{sw}
s_cmp_lg_u32 s{sT0}, 0
s_cbranch_scc1 L_noep
s_add_u32 s{sE}, s{sE}, 1
s_lshl_b32 s{sT0}, s{sb}, 8
s_add_u32 s{sT0}, s{sT0}, {EPOCH_OFF}
v_mov_b32 v{t0}, 0
v_mov_b32 v{t1}, s{sE}
s_mov_b64 exec, 1
buffer_store_dword v{t1}, v{t0}, s[{sWS}:{sWS+3}], s{sT0} offen sc1
s_mov_b64 exec, -1""")
A.label("L_noep")
if OPT.get("padto"):
    A.label("L_pad")
    A(f"""s_sleep 4
    s_memrealtime s[{sRet}:{sRet+1}]
    s_waitcnt lgkmcnt(0)
    s_sub_u32 s{sT0}, s{sRet}, s{sTS}
    s_cmp_lt_u32 s{sT0}, {OPT["padto"]}
    s_cbranch_scc1 L_pad""")
if OPT["ts"]:
    A("s_waitcnt vmcnt(0)")
    ts(10)
    ts(11, 3)
    A(f"""s_lshl_b32 s{sT0}, s2, 3
    s_add_u32 s{sT0}, s{sT0}, s{sw}
    s_lshl_b32 s{sT0}, s{sT0}, 6
    s_add_u32 s{sT0}, s{sT0}, {TS_OFF}
    s_getreg_b32 s{sT1}, hwreg(HW_REG_XCC_ID)
    v_writelane_b32 v{vTS}, s{sT1}, 15
    v_lshlrev_b32 v{t0}, 2, v{vLane}
    s_mov_b64 exec, 0xffff
    buffer_store_dword v{vTS}, v{t0}, s[{sWS}:{sWS+3}], s{sT0} offen""")
    if OPT.get("dbg"):
        A(f"""v_readlane_b32 s{sT0}, v{vTS}, 0
        s_not_b32 s{sT0}, s{sT0}
        v_writelane_b32 v{vTS}, s{sT0}, 15
        s_mov_b32 s{sX}, s22
        s_mov_b32 s{sX+1}, s23
        s_mov_b32 s{sX+2}, 256
        buffer_atomic_umax v{vTS}, v{t0}, s[{sX}:{sX+3}], 0 offen""")
A.label("L_end")
A("s_endpgm")

A.label("L_try")
A(f"""s_waitcnt vmcnt(0)
v_cmp_ne_u32 vcc, s{stag}, v{vFl}
s_cmp_lg_u32 s{sDone}, 0
s_cbranch_scc1 L_try1
s_and_b32 s{sD1}, vcc_lo, 15
s_cbranch_scc0 L_try0""")
poll_issue(15)
A(f"s_setpc_b64 s[{sRet}:{sRet+1}]")
A.label("L_try0")
ts(5)
A(kv_next(0))
for i in range(4):
    A(kv_piece(i))
A(f"""s_mov_b32 s{sDone}, 1
s_branch L_again""")
A.label("L_try1")
A(f"""s_and_b32 s{sD1}, vcc_lo, 0xffff
s_cbranch_scc1 L_again""")
ts(13)
A(kv_next(1))
for i in range(4):
    A(kv_piece(i))
A(f"""s_mov_b32 s{sDone}, 2
s_setpc_b64 s[{sRet}:{sRet+1}]""")
A.label("L_again")
poll_issue(0xffff)
A(f"s_setpc_b64 s[{sRet}:{sRet+1}]")

A.label("L_pollc")
A(f"s_mov_b32 s{sSpin}, 0x40000")
A.label("L_pollc1")
A(f"""buffer_load_dword v{vQm}, v{vPc}, s[{sWS}:{sWS+3}], s{sPc} offen offset:64 sc1
s_sub_u32 s{sSpin}, s{sSpin}, 1
s_cbranch_scc1 L_pollc_done
s_waitcnt vmcnt(0)
v_cmp_ne_u32 vcc, s{stag}, v{vQm}
s_cmp_lg_u64 vcc, 0
s_cbranch_scc1 L_pollc1
s_branch L_pollc_done""")

A.label("L_pollh")
A(f"s_mov_b32 s{sSpin}, 0x40000")
A.label("L_pollh1")
A(poll_text(0x7fff0000).replace('0x7fff0000', '0xffff0000'))
A(f"""s_sub_u32 s{sSpin}, s{sSpin}, 1
s_cbranch_scc1 L_pollh_done
s_waitcnt vmcnt(0)
v_cmp_ne_u32 vcc, s{stag}, v{vFl}
s_and_b32 s{sD1}, vcc_lo, 0xffff0000
s_cbranch_scc1 L_pollh1
s_branch L_pollh_done""")

A.label("L_slow")
Sx, vMn, vAl = S[2], t2, t3
vM = [t4, t5]
A(f"""s_mov_b32 s{sChk}, -1
v_lshlrev_b32 v{vBk}, 3, v{vLane}
v_mov_b32 v{vM[0]}, 0xff7fffff
v_mov_b32 v{vM[1]}, 0xff7fffff
s_mov_b32 s{sT0}, s{sKV}
s_mov_b32 s{sI}, 0""")
for r in range(32):
    A(f"v_mov_b32 v{O[0]+r}, 0")
A.label("L_slow_t")
for i in range(4):
    A(f"buffer_load_dwordx2 {v(Kf[0]+2*i,2)}, v{vBk}, s[{sWS}:{sWS+3}], s{sT0} offen offset:{512*i} sc1")
A(f"""buffer_load_dwordx4 {v(Vf[0],4)}, v{vL16}, s[{sWS}:{sWS+3}], s{sT0} offen offset:2048 sc1
buffer_load_dwordx4 {v(Vf[0]+4,4)}, v{vL16}, s[{sWS}:{sWS+3}], s{sT0} offen offset:3072 sc1
s_add_u32 s{sT0}, s{sT0}, 4096
s_waitcnt vmcnt(0)""")
for q in range(2):
    A(f"""v_mfma_f32_32x32x16_bf16 {v(Sx,16)}, {v(Kf[0],4)}, {v(Q[q],4)}, 0
    v_mfma_f32_32x32x16_bf16 {v(Sx,16)}, {v(Kf[0]+4,4)}, {v(Q[q]+4,4)}, {v(Sx,16)}
    v_max3_f32 v{t0}, v{Sx}, v{Sx+1}, v{vM[q]}""")
    for r in range(2, 16, 2):
        A(f"v_max3_f32 v{t0}, v{Sx+r}, v{Sx+r+1}, v{t0}")
    A(f"""v_mov_b32 v{t1}, v{t0}
    v_permlane32_swap_b32 v{t0}, v{t1}
    v_max_f32 v{vMn}, v{t0}, v{t1}
    v_sub_f32 v{vAl}, v{vM[q]}, v{vMn}
    v_exp_f32 v{vAl}, v{vAl}
    v_mov_b32 v{vM[q]}, v{vMn}""")
    for r in range(16):
        A(f"v_sub_f32 v{Sx+r}, v{Sx+r}, v{vMn}")
    for r in range(16):
        A(f"v_exp_f32 v{Sx+r}, v{Sx+r}")
    for r in range(16):
        A(f"v_mul_f32 v{O[q]+r}, v{vAl}, v{O[q]+r}")
    A(f"""v_smfmac_f32_32x32x32_bf16 {v(O[q],16)}, {v(Vf[0],4)}, {v(Sx,8)}, v{vIdx}
    v_smfmac_f32_32x32x32_bf16 {v(O[q],16)}, {v(Vf[0]+4,4)}, {v(Sx+8,8)}, v{vIdx}""")
A(f"""s_add_u32 s{sI}, s{sI}, 1
s_cmp_lt_u32 s{sI}, 64
s_cbranch_scc1 L_slow_t
s_nop 11
s_branch L_norm""")

n = A.fix_hazards(verbose=bool(OPT.get("v", 0)))
NV = -(-V.hi // 8) * 8
hdr = open("cdna_kernels/" + NAME + ".s.ref").read().split("; Override launch")[0]
out = hdr + f"""; Fused kernel: QKV projection -> softmax attention -> output projection, one workgroup per
; (branch, head, 256-token block).  Generated by gen/gen.py.
; @launch grid=(256,1,1) block=(512,1,1) lds={LDS_BYTES}
.amdgcn_target "amdgcn-amd-amdhsa--gfx950"
.text
.globl {NAME}_kernel
.p2align 8
.type {NAME}_kernel,@function
""" + A.text().replace("CODE_SPAN", "L_slow-L_nopf") + f""".section .rodata,"a"
.p2align 6
.amdhsa_kernel {NAME}_kernel
  .amdhsa_next_free_vgpr {NV}
  .amdhsa_next_free_sgpr {NSGPR}
  .amdhsa_accum_offset {NV}
  .amdhsa_group_segment_fixed_size 0
  .amdhsa_kernarg_size 72
  .amdhsa_user_sgpr_count 2
  .amdhsa_user_sgpr_kernarg_segment_ptr 1
  .amdhsa_system_sgpr_workgroup_id_x 1
.end_amdhsa_kernel
"""
open(sys.argv[1], "w").write(out)
print(f"wrote {sys.argv[1]}: {len(A.lines)} lines, {n} nops inserted, {NV} vgprs", file=sys.stderr)
```

```python
import sys, struct, math
from asmlib import Asm, Alloc, v, s

NAME = "concat_heads__softmax_full_mha__softmax_full_mha__prompt"

OPT = dict(ts=0, force_slow=0, rot=2, map=1, pf=1, full=1, grp=0, per=2, pq=8, tq=6, wq0=17, wqs=2, padg=20, ibar=1, pubw=1, wqpf=6, pseg=2, npro=170, qd=3, pp=24)
for a in sys.argv[2:]:
    k, val = a.split("=")
    OPT[k] = int(val)

FLAG_OFF = 0xD00000
ES = OPT.get("es", 7)
FS = OPT.get("fs", 16 << ES)
HINT = 0x80000
EPOCH_OFF = 0x10000
TS_OFF = 0x20000
KV_OFF = 0x100000
O_OFF = 0x900000
WS_BYTES = 0x1000000
OOB = 0x40000000

XS = 57344
WQ = 131072
QOFF = 98304
WOB = 66944
WO15 = 32768
MISC = 161280
SND = 16384
LDS_BYTES = 163840

CSCALE = math.log2(math.e) / math.sqrt(28.0)
L_LO = (127 - 60) << 23
L_RANGE = 120 << 23


def f2u(x):
    return struct.unpack("<I", struct.pack("<f", x))[0]


NTX = " nt" if OPT.get("ntx") else ""
NTW = " nt" if OPT.get("ntw") else ""
OSC = ["", " sc1", " nt", " sc0 sc1", " sc1 nt"][OPT.get("osc", 3)]
A = Asm()
sWm, sWm13 = 26, 27
sX, sW, sWS, sWO, sOUT = 28, 32, 36, 40, 44
sw, sb, sh, sj, stag, sE = 48, 49, 50, 51, 52, 53
sCx, sXb, sWb, sMX, sMW, sCw = 54, 55, 56, 57, 58, 59
sT0, sT1, sT2, sT3 = 60, 61, 62, 63
sLo = 64
sLine, sRole = 66, 67
sHo = 10
sWb0, sSp = 12, 13
sLpx = 8
sKV = 68
sMXs, sWq = 69, 70
sI, sRel, sWn, sHH = 71, 72, 73, 74
sSpin = 75
sOt = 76
sWoff = 77
sKap = 78
sFl = 79
sTS = 80
sRet = 82
sDone, sTodo = 84, 85
sOin = 86
sPc = 87
sOut = 88
sChk = 89
sCs = 90
sKVt = 92
sD0, sD1 = 93, 94
sPend, sRem = 95, 96
sOp = 97
sRdy = 98
sHi, sPl, sC0, sMQ = 4, 5, 6, 7
sCq, sNone = 3, 100
NSGPR = 102


def ts(idx, grp=1):
    if OPT.get("padat") == 100 * grp + idx:
        A(f"s_memrealtime s[{sTS}:{sTS+1}]\ns_waitcnt lgkmcnt(0)")
    if not OPT["ts"] or (idx != 0 and OPT["ts"] != grp):
        return
    A(f"""{"s_memtime" if OPT.get("clk") else "s_memrealtime"} s[{sTS}:{sTS+1}]
    s_waitcnt lgkmcnt(0)
    v_writelane_b32 v{vTS}, s{sTS}, {idx}""")


def tsd(code, val=0):
    A(tsdt(code, val))


def tsdt(code, val=0):
    if OPT["ts"] != 5:
        return ""
    return (f"""s_memrealtime s[{sTS}:{sTS+1}]
    s_waitcnt lgkmcnt(0)
    s_lshl_b32 s{sTS}, s{sTS}, 8
    s_or_b32 s{sTS}, s{sTS}, {code << 4}
    s_or_b32 s{sTS}, s{sTS}, {val}
    s_mov_b32 m0, s11
    v_writelane_b32 v{vTS}, s{sTS}, m0
    s_add_u32 s11, s11, 1
    s_min_u32 s11, s11, 63""")


ASR = [20, 22, 54, 56, 58, 68, 66, 72, 90, 26, 6]


def tsa(i):
    if OPT["ts"] == 6:
        A(f"s_memrealtime s[{ASR[i]}:{ASR[i]+1}]")


class Cnt:
    def __init__(self, name, cap):
        self.name, self.cap, self.q = name, cap, []

    def issue(self, tag, n=1):
        self.q += [tag] * n
        assert len(self.q) <= self.cap, (self.name, self.q)

    def wait(self, *tags):
        idx = [i for i, t in enumerate(self.q) if t in tags]
        if idx:
            n = len(self.q) - 1 - idx[-1]
            A(f"s_waitcnt {self.name}({n})")
            self.q = self.q[idx[-1] + 1:]


def lines(text):
    return [x.strip() for x in text.split("\n") if x.strip()]


def emit(lst, n):
    for _ in range(min(n, len(lst))):
        A(lst.pop(0))


V = Alloc(1, 256)
vLane = V()
vTS = V()
vL16 = V()
vIdx = V()
vT = [V() for _ in range(6)]
t0, t1, t2, t3, t4, t5 = vT
vQm = V()
DEAD = V(8)
vQw, vQr, vBase, vCur, vWod, vPl, vPc, vBk = range(DEAD, DEAD + 8)
vOa, vW0, vW1, vSn, vRw, vMf, vTw, vTr, vOs, vOs2, vLp = [V() for _ in range(11)]
vFl = V(2)
m_ph = V.mark()
Xr = V(112)
acc0, acc1 = V(16), V(16)
Wf = V(24)
vXd = [V() for _ in range(4)]
vWd = V()
vWq = V()
vXa = [V() for _ in range(4)]
vWr = [V(), V()]
vWqr = V()
vSt = [V() for _ in range(4)]
vP = [V()]
vPf = V()
vOnes = V(4)
vPd = V(4)
Wq8 = V(24)
V.reset(m_ph)
O = [V(16), V(16)]
Q = [V(8), V(8)]
S = [V(16) for _ in range(4)]
Kf = [V(8), V(8)]
Vf = [V(8), V(8)]
pk, pq = V(8), V(8)
Of = V(32)
acc = V(28)
assert O[0] == Xr

A.label(NAME + "_kernel")
A(f"""s_cmp_ge_u32 s2, 256
s_cbranch_scc1 L_end
s_load_dwordx16 s[8:23], s[0:1], 0
s_load_dwordx2 s[24:25], s[0:1], 64
v_lshrrev_b32 v{t0}, 6, v0
v_and_b32 v{vLane}, 63, v0
v_readfirstlane_b32 s{sw}, v{t0}
v_lshlrev_b32 v{vL16}, 4, v{vLane}""")
if OPT.get("padto"):
    A(f"s_memrealtime s[{sTS}:{sTS+1}]")
if OPT["ts"]:
    A(f"""{"s_memtime" if OPT.get("clk") else "s_memrealtime"} s[{sTS}:{sTS+1}]
    v_mov_b32 v{vTS}, 0""")
if OPT["map"] == 1:
    A(f"""s_and_b32 s{sT0}, s2, 7
    s_lshr_b32 s{sT1}, s2, 3
    s_and_b32 s{sj}, s{sT1}, 7
    s_lshr_b32 s{sT1}, s{sT1}, 3
    s_lshl_b32 s{sT0}, s{sT0}, 2
    s_add_u32 s{sHH}, s{sT0}, s{sT1}""")
elif OPT["map"] == 2:
    A(f"""s_and_b32 s{sT0}, s2, 7
    s_lshr_b32 s{sT1}, s2, 3
    s_and_b32 s{sT2}, s{sT0}, 3
    s_lshl_b32 s{sT2}, s{sT2}, 1
    s_lshr_b32 s{sT3}, s{sT1}, 4
    s_add_u32 s{sj}, s{sT2}, s{sT3}
    s_lshr_b32 s{sT0}, s{sT0}, 2
    s_lshl_b32 s{sT0}, s{sT0}, 4
    s_and_b32 s{sT1}, s{sT1}, 15
    s_add_u32 s{sHH}, s{sT0}, s{sT1}""")
elif OPT["map"] == 3:
    A(f"""s_and_b32 s{sT0}, s2, 7
    s_lshr_b32 s{sT1}, s2, 3
    s_and_b32 s{sT2}, s{sT0}, 1
    s_lshl_b32 s{sT2}, s{sT2}, 2
    s_lshr_b32 s{sT3}, s{sT1}, 3
    s_add_u32 s{sj}, s{sT2}, s{sT3}
    s_lshr_b32 s{sT0}, s{sT0}, 1
    s_lshl_b32 s{sT0}, s{sT0}, 3
    s_and_b32 s{sT1}, s{sT1}, 7
    s_add_u32 s{sHH}, s{sT0}, s{sT1}""")
A(f"""s_lshr_b32 s{sb}, s{sHH}, 4
s_and_b32 s{sh}, s{sHH}, 15
s_lshr_b32 s{sKap}, s{sw}, 2""")
A(f"""s_cmp_gt_u32 s{sh}, 7
s_cselect_b32 s{sRole}, 1, 0
s_cselect_b32 s{sT0}, 16, 1
s_cselect_b32 s{sT1}, 1, 2
s_cselect_b32 s{sT2}, 2, 8
s_cselect_b32 s{sT3}, 8, 16
v_bfe_u32 v{t0}, v{vLane}, 3, 1
v_mul_u32_u24 v{t0}, s{sT0}, v{t0}
v_bfe_u32 v{t1}, v{vLane}, 4, 1
v_mad_u32_u24 v{t0}, v{t1}, s{sT1}, v{t0}
v_lshrrev_b32 v{t1}, 5, v{vLane}
v_lshl_add_u32 v{t0}, v{t1}, 2, v{t0}
v_mul_u32_u24 v{t3}, 896, v{t0}
s_mul_i32 s{sT2}, s{sT2}, 896
s_mul_i32 s{sT3}, s{sT3}, 896
s_sub_u32 s{sT2}, s{sT2}, 1024
s_sub_u32 s{sT3}, s{sT3}, 2048
v_lshrrev_b32 v{t1}, 4, v{vLane}
v_and_b32 v{t2}, 7, v{vLane}
v_xor_b32 v{t1}, v{t1}, v{t2}
v_lshl_add_u32 v{vXd[0]}, v{t1}, 4, v{t3}
v_xor_b32 v{t1}, 4, v{t1}
v_lshl_add_u32 v{t1}, v{t1}, 4, v{t3}
v_add_u32 v{vXd[1]}, s{sT2}, v{t1}
v_add_u32 v{vXd[2]}, s{sT3}, v{vXd[0]}
v_add_u32 v{vXd[3]}, s{sT3}, v{vXd[1]}
s_lshl_b32 s{sT0}, s{sj}, 3
s_add_u32 s{sT0}, s{sT0}, s{sw}
s_mul_i32 s{sXb}, s{sT0}, {32*896}
s_lshl_b32 s{sMX}, s{sw}, 12
s_add_u32 s{sMXs}, s{sMX}, {XS}""")
if OPT["rot"] == 0:
    A(f"s_mov_b32 s{sC0}, 0")
else:
    if OPT["rot"] == 1:
        A(f"s_add_u32 s{sC0}, s{sh}, s{sj}")
    elif OPT["rot"] == 2:
        A(f"""s_mul_i32 s{sC0}, s{sh}, 7
        s_lshr_b32 s{sC0}, s{sC0}, 4
        s_add_u32 s{sC0}, s{sC0}, s{sj}""")
    elif OPT["rot"] == 3:
        A(f"""s_mul_i32 s{sC0}, s{sh}, 7
        s_lshr_b32 s{sC0}, s{sC0}, 4""")
    A(f"""s_mul_i32 s{sT1}, s{sC0}, 37
    s_lshr_b32 s{sT1}, s{sT1}, 8
    s_mul_i32 s{sT1}, s{sT1}, 7
    s_sub_u32 s{sC0}, s{sC0}, s{sT1}""")
if OPT["pf"]:
    A(f"""s_and_b32 s{sT0}, s2, 0xf8
    s_add_u32 s{sT0}, s{sT0}, s{sw}
    s_lshl_b32 s{sT0}, s{sT0}, 7
    s_min_u32 s{sT0}, s{sT0}, CODE_SPAN
    s_getpc_b64 s[{sRet}:{sRet+1}]""")
    A.label("L_nopf")
    A(f"""v_mov_b32 v{t4}, s{sT0}
    global_load_dword v{t5}, v{t4}, s[{sRet}:{sRet+1}]""")
A(f"""s_lshl_b32 s{sCx}, s{sC0}, 7
s_mov_b32 s{sX+2}, {2048*896}
s_mov_b32 s{sX+3}, 0x20000
s_cmp_eq_u32 s{sb}, 0
s_waitcnt lgkmcnt(0)
s_cselect_b32 s{sX}, s8, s14
s_cselect_b32 s{sX+1}, s9, s15
s_cselect_b32 s{sW}, s10, s16
s_cselect_b32 s{sW+1}, s11, s17
s_cselect_b32 s{sWO}, s12, s18
s_cselect_b32 s{sWO+1}, s13, s19""")
if OPT["ts"]:
    A(f"v_writelane_b32 v{vTS}, s{sTS}, 0")
ts(14, 2)


def x_pieces(c):
    p = [f"""s_add_u32 m0, s{sMXs}, {(c % 2) * 32768}
    s_add_u32 s{sD0}, s{sCx}, s{sXb}
    buffer_load_dwordx4 v{vXd[0]}, s[{sX}:{sX+3}], s{sD0} offen{NTX} lds
    s_add_u32 s{sCx}, s{sCx}, 128
    s_cmp_eq_u32 s{sCx}, 896
    s_cselect_b32 s{sCx}, 0, s{sCx}"""]
    for i in range(1, 4):
        p.append(f"buffer_load_dwordx4 v{vXd[i]}, s[{sX}:{sX+3}], s{sD0} offen offset:{1024*i}{NTX} lds")
    return [(x, f"X{c}") for x in p]


def w_piece(it):
    return (f"""s_add_u32 m0, s{sMW}, {it*8192}
    s_add_u32 s{sD1}, s{sCw}, s{sWb}
    buffer_load_dwordx4 v{vWd}, s[{sW}:{sW+3}], s{sD1} offen{NTW} lds
    s_add_u32 s{sCw}, s{sCw}, {64*2688}
    s_cmp_eq_u32 s{sCw}, {448*2688}
    s_cselect_b32 s{sCw}, 0, s{sCw}""", f"W{it}")


def wq_piece(i):
    return (f"""s_add_u32 m0, s{sMQ}, {i*1024}
    s_add_u32 s{sD1}, s{sCq}, s{sWq}
    buffer_load_dwordx4 v{vWq}, s[{sW}:{sW+3}], s{sD1} offen lds
    s_add_u32 s{sCq}, s{sCq}, {16*2688}
    s_cmp_eq_u32 s{sCq}, {448*2688}
    s_cselect_b32 s{sCq}, 0, s{sCq}""", "WQ")


def wq_touch():
    return (f"""s_mov_b64 exec, 0x3fff
    buffer_load_dword v{t5}, v{vPf}, s[{sW}:{sW+3}], 0 offen{NTW}
    s_mov_b64 exec, -1""", "PF")


for p, _ in x_pieces(0):
    A(p)
ts(1, 2)
A(f"""s_mov_b32 s{sW+2}, {448*2688}
s_mov_b32 s{sW+3}, 0x20000
s_cmp_gt_u32 s{sh}, 6
s_subb_u32 s{sLine}, s{sh}, 0
s_cmp_gt_u32 s{sh}, 9
s_subb_u32 s{sLine}, s{sLine}, 0
s_lshl_b32 s{sWb}, s{sLine}, 7
s_cmp_ge_u32 s{sLine}, 7
s_cselect_b32 s{sT0}, 7, 0
s_sub_u32 s{sLine}, s{sLine}, s{sT0}
s_mul_i32 s{sT0}, s{sw}, {8*2688}
s_add_u32 s{sWb}, s{sWb}, s{sT0}
s_add_u32 s{sWb}, s{sWb}, 896
s_mul_i32 s{sCw}, s{sC0}, {64*2688}
s_lshl_b32 s{sMW}, s{sw}, 10
v_lshrrev_b32 v{t0}, 3, v{vLane}
v_mul_u32_u24 v{t0}, 2688, v{t0}
v_bfe_u32 v{t1}, v{vLane}, 4, 1
v_lshlrev_b32 v{t1}, 2, v{t1}
v_xor_b32 v{t1}, v{t1}, v{t2}
v_lshl_add_u32 v{vWd}, v{t1}, 4, v{t0}
s_lshr_b32 s{sNone}, 0x240, s{sh}
s_and_b32 s{sNone}, s{sNone}, 1""")

EARLY = lines(f"""s_lshl_b32 s{sT0}, s{sb}, 8
s_add_u32 s{sT0}, s{sT0}, {EPOCH_OFF}
s_load_dword s{sE}, s[24:25], s{sT0}
v_lshrrev_b32 v{t2}, 5, v{vLane}
v_and_b32 v{t0}, 31, v{vLane}
v_bfe_u32 v{t1}, v{vLane}, 1, 3
v_xor_b32 v{t1}, v{t1}, v{t2}
v_lshlrev_b32 v{t0}, 7, v{t0}
v_add_u32 v{t0}, s{sMXs}, v{t0}""")
for sst in range(4):
    EARLY += lines(f"""v_xor_b32 v{t3}, {2*sst}, v{t1}
    v_lshl_add_u32 v{vXa[sst]}, v{t3}, 4, v{t0}""")
EARLY += lines(f"""v_bfe_u32 v{t1}, v{vLane}, 2, 2
v_lshl_add_u32 v{t0}, v{t2}, 3, v{t1}
v_bfe_u32 v{t3}, v{vLane}, 4, 1
v_and_b32 v{t4}, 3, v{vLane}
v_lshlrev_b32 v{t4}, 3, v{t4}
v_lshl_add_u32 v{t4}, v{t3}, 5, v{t4}
v_lshl_add_u32 v{vWqr}, v{t0}, 6, v{t4}
v_lshl_add_u32 v{t4}, v{t0}, 7, v{t4}
v_lshrrev_b32 v{t1}, 1, v{t1}
v_lshl_add_u32 v{vWr[0]}, v{t1}, 6, v{t4}
v_xor_b32 v{vWr[1]}, 64, v{vWr[0]}
v_and_b32 v{t0}, 48, v{vL16}
v_add_u32 v{t0}, {MISC}, v{t0}
v_mov_b32 v{vPd}, 0
v_mov_b32 v{vPd+1}, 0
v_mov_b32 v{vPd+2}, 0
v_mov_b32 v{vPd+3}, 0
ds_write_b128 v{t0}, {v(vPd,4)}""")

MID = lines(f"""s_lshl_b32 s{sT0}, s{sj}, 3
s_add_u32 s{sT0}, s{sT0}, s{sw}
s_mul_i32 s{sT0}, s{sT0}, {7*2688}
s_mul_i32 s{sT1}, s{sh}, 56
s_add_u32 s{sT0}, s{sT0}, s{sT1}
v_lshrrev_b32 v{t0}, 1, v{vLane}
v_mul_u32_u24 v{t0}, 2688, v{t0}
v_and_b32 v{t1}, 1, v{vLane}
v_mad_u32_u24 v{t0}, v{t1}, 52, v{t0}
v_add_u32 v{vPf}, s{sT0}, v{t0}
s_and_b32 s{sT0}, s{sh}, 1
s_lshl_b32 s{sT0}, s{sT0}, 3
s_add_u32 s{sT0}, s{sT0}, {WQ}
v_add_u32 v{vWqr}, s{sT0}, v{vWqr}
s_mul_i32 s{sWq}, s{sh}, 56
s_and_b32 s{sWq}, s{sWq}, 0xfffffff0
s_and_b32 s{sT0}, s{sw}, 3
s_mul_i32 s{sMQ}, s{sT0}, 7168
s_add_u32 s{sMQ}, s{sMQ}, {WQ}
s_mul_i32 s{sT0}, s{sT0}, 7
s_lshl_b32 s{sT1}, s{sC0}, 2
s_add_u32 s{sT0}, s{sT0}, s{sT1}
s_sub_u32 s{sT1}, s{sT0}, 28
s_min_u32 s{sT0}, s{sT0}, s{sT1}
s_mul_i32 s{sCq}, s{sT0}, {16*2688}
v_lshrrev_b32 v{t0}, 2, v{vLane}
v_mul_u32_u24 v{t0}, 2688, v{t0}
v_and_b32 v{t1}, 3, v{vLane}
v_lshl_add_u32 v{vWq}, v{t1}, 4, v{t0}""")
MID += lines(f"""s_mov_b32 s{sWS}, s24
s_mov_b32 s{sWS+1}, s25
s_mov_b32 s{sWS+2}, {WS_BYTES}
s_mov_b32 s{sWS+3}, 0x20000
s_lshl_b32 s{sKVt}, s{sb}, 22
s_lshl_b32 s{sRel}, s{sj}, 15
s_add_u32 s{sRel}, s{sRel}, s{sMX}
s_add_u32 s{sKVt}, s{sKVt}, s{sRel}
s_add_u32 s{sKVt}, s{sKVt}, {KV_OFF}
s_and_b32 s{sT0}, s{sw}, 3
s_lshl_b32 s{sT0}, s{sT0}, 1
s_lshl_b32 s{sT1}, s{sb}, 3
s_add_u32 s{sT1}, s{sT1}, s{sj}
s_lshl_b32 s{sT1}, s{sT1}, 3
s_add_u32 s{sT0}, s{sT0}, s{sT1}
s_lshl_b32 s{sT0}, s{sT0}, 4
s_add_u32 s{sT0}, s{sT0}, s{sh}
s_lshl_b32 s{sOp}, s{sT0}, 11
s_add_u32 s{sOp}, s{sOp}, {O_OFF}
s_lshl_b32 s{sOt}, s{sKap}, 15
s_add_u32 s{sOt}, s{sOt}, s{sOp}
v_mov_b32 v{vOnes}, -1
v_mov_b32 v{vOnes+1}, -1
v_mov_b32 v{vOnes+2}, -1
v_mov_b32 v{vOnes+3}, -1
s_add_u32 s{sFl}, s{sT1}, s{sw}
s_mul_i32 s{sFl}, s{sFl}, {FS}
s_lshl_b32 s{sT0}, s{sh}, {ES}
s_add_u32 s{sFl}, s{sFl}, s{sT0}
s_add_u32 s{sFl}, s{sFl}, {FLAG_OFF}
v_mov_b32 v{vFl+1}, 0""")
LATE = lines(f"""s_lshl_b32 s{sPl}, s{sb}, 6
s_and_b32 s{sT1}, s{sw}, 3
s_add_u32 s{sPl}, s{sPl}, s{sT1}
s_mul_i32 s{sPl}, s{sPl}, {FS}
s_add_u32 s{sPl}, s{sPl}, {FLAG_OFF}
s_add_u32 s{sT0}, s{sj}, s{sKap}
s_and_b32 s{sT0}, s{sT0}, 7
s_lshl_b32 s{sRel}, s{sT0}, 15
s_lshl_b32 s{sT1}, s{sT1}, 12
s_add_u32 s{sRel}, s{sRel}, s{sT1}
s_sub_u32 s{sRel}, s{sRel}, 0x10000
v_bfe_u32 v{t3}, v{vLane}, 2, 2
v_lshl_add_u32 v{t3}, v{t3}, 1, s{sT0}
v_and_b32 v{t3}, 7, v{t3}
v_bfe_u32 v{t1}, v{vLane}, 4, 1
v_lshl_add_u32 v{t3}, v{t3}, 1, v{t1}
v_mul_u32_u24 v{t3}, {4*FS}, v{t3}
s_mul_i32 s{sT0}, s{sh}, 28
s_add_u32 s{sT1}, s{sT0}, 27
s_lshr_b32 s{sT0}, s{sT0}, 6
s_lshr_b32 s{sT1}, s{sT1}, 6
s_sub_u32 s{sT1}, s{sT1}, s{sT0}
v_and_b32 v{t0}, 1, v{vLane}
v_mul_u32_u24 v{t0}, s{sT1}, v{t0}
v_add_u32 v{t0}, s{sT0}, v{t0}
v_bfe_u32 v{t1}, v{vLane}, 1, 1
v_mad_u32_u24 v{t0}, v{t1}, 7, v{t0}
v_add_u32 v{t4}, 10, v{t0}
v_lshrrev_b32 v{t4}, 4, v{t4}
v_lshrrev_b32 v{t2}, 3, v{t0}
v_add3_u32 v{t0}, v{t0}, v{t4}, v{t2}
s_sub_u32 s{sT2}, s{sT1}, 1
s_and_b32 s{sT2}, s{sT2}, 0xaaaaaaaa
s_mov_b32 s{sT3}, s{sT2}
v_mad_u32_u24 v{t1}, v{t1}, 3, 6
v_cndmask_b32 v{t0}, v{t0}, v{t1}, s[{sT2}:{sT3}]
v_lshl_add_u32 v{vPl}, v{t0}, {ES}, v{t3}
v_and_b32 v{t2}, 7, v{vLane}
s_lshl_b32 s{sKV}, s{sHH}, 18
s_add_u32 s{sKV}, s{sKV}, {KV_OFF}
s_mov_b32 s{sDone}, 0""")
NPRE = len(LATE)
LATE += lines(f"""s_mov_b32 s{sWO+2}, {448*896}
s_mov_b32 s{sWO+3}, 0x20000
s_mov_b32 s{sOUT}, s20
s_mov_b32 s{sOUT+1}, s21
s_mov_b32 s{sOUT+2}, {2048*1792}
s_mov_b32 s{sOUT+3}, 0x20000
s_mov_b32 s{sLo}, -1
s_mov_b32 s{sLo+1}, 0
s_mov_b32 s{sCs}, {hex(f2u(CSCALE))}
s_mov_b32 s{sCs+1}, {hex(f2u(CSCALE))}
s_mov_b32 s{sChk}, {0 if OPT['force_slow'] else L_RANGE}
s_and_b32 s{sWoff}, s{sh}, 3
s_mul_i32 s{sWoff}, s{sWoff}, 224""")
LATE += lines(f"""s_lshl_b32 s{sT1}, s{sb}, 3
s_add_u32 s{sT1}, s{sT1}, s{sj}
s_lshl_b32 s{sT1}, s{sT1}, 3
s_lshr_b32 s{sT0}, s{sh}, 2
s_bfe_u32 s{sT2}, s{sw}, 0x10001
s_lshl_b32 s{sPc}, s{sT2}, 2
s_add_u32 s{sPc}, s{sPc}, s{sT0}
s_add_u32 s{sPc}, s{sPc}, s{sT1}
s_mul_i32 s{sPc}, s{sPc}, {FS}
s_add_u32 s{sPc}, s{sPc}, {FLAG_OFF}
s_lshl_b32 s{sT3}, s{sT0}, 1
s_add_u32 s{sT3}, s{sT3}, s{sT2}
s_add_u32 s{sT3}, s{sT3}, s{sT1}
s_lshl_b32 s{sOin}, s{sT3}, 15
s_add_u32 s{sOin}, s{sOin}, {O_OFF}
s_and_b32 s{sT3}, s{sw}, 1
s_lshl_b32 s{sT3}, s{sT3}, 8
s_add_u32 s{sOin}, s{sOin}, s{sT3}
s_lshl_b32 s{sT3}, s{sKap}, 11
s_add_u32 s{sOin}, s{sOin}, s{sT3}""")
LATE += lines(f"""s_lshl_b32 s{sT1}, s{sj}, 2
s_add_u32 s{sT0}, s{sT0}, s{sT1}
s_lshl_b32 s{sT0}, s{sT0}, 2
s_and_b32 s{sT1}, s{sw}, 3
s_add_u32 s{sT0}, s{sT0}, s{sT1}
s_mul_i32 s{sOut}, s{sT0}, {16*1792}
s_mul_i32 s{sT0}, s{sb}, 896
s_add_u32 s{sOut}, s{sOut}, s{sT0}
s_add_u32 s{sOut}, s{sOut}, s{sWoff}
v_mov_b32 v{vIdx}, 0xdddddddd
s_lshl_b32 s{sT0}, s{sw}, 11
s_add_u32 s{sT0}, s{sT0}, {QOFF}
v_and_b32 v{t0}, 1, v{vLane}
v_lshlrev_b32 v{t0}, 4, v{t0}
v_bfe_u32 v{t1}, v{vLane}, 4, 1
v_lshl_add_u32 v{t0}, v{t1}, 3, v{t0}
v_bfe_u32 v{t1}, v{vLane}, 3, 1
v_lshl_add_u32 v{t0}, v{t1}, 1, v{t0}
v_bfe_u32 v{t1}, v{vLane}, 1, 1
v_add_u32 v{t0}, v{t0}, v{t1}
v_and_b32 v{t1}, 0x24, v{vLane}
v_add_u32 v{t0}, v{t0}, v{t1}
v_sub_u32 v{t0}, v{t0}, v{vLane}
v_mul_lo_u32 v{t0}, v{t0}, s{sRole}
v_add_u32 v{t0}, v{t0}, v{vLane}
v_lshl_add_u32 v{vQw}, v{t0}, 4, s{sT0}
s_lshl_b32 s{sT2}, s{sT1}, 12
s_add_u32 s{sT2}, s{sT2}, {QOFF}
v_add_u32 v{vQr}, s{sT2}, v{vL16}
s_lshl_b32 s{sT0}, s{sKap}, 14
v_add_u32 v{vBase}, s{sT0}, v{vL16}
v_add_u32 v{vCur}, 0x10000, v{vBase}
v_lshl_add_u32 v{vBk}, v{vLane}, 3, s{sT0}
s_add_u32 s{sT0}, s{sT1}, 5
s_lshl_b32 s{sT0}, s{sT0}, 13
s_and_b32 s{sT0}, s{sT0}, 0xffff
v_add_u32 v{vRw}, s{sT0}, v{vL16}
s_lshl_b32 s{sT2}, s{sT1}, 2
s_add_u32 s{sT2}, s{sT2}, {MISC}
v_mov_b32 v{vMf}, s{sT2}
s_mul_i32 s{sT2}, s{sT1}, 3072
s_add_u32 s{sT2}, s{sT2}, {SND}
v_add_u32 v{vSn}, s{sT2}, v{vL16}
v_lshrrev_b32 v{t1}, 3, v{vLane}
s_lshl_b32 s{sT2}, s{sKap}, 11
s_add_u32 s{sT0}, s{sT0}, s{sT2}
s_add_u32 s{sT0}, s{sT0}, 4096
v_xor_b32 v{t3}, v{t1}, v{t2}
v_lshlrev_b32 v{t3}, 4, v{t3}
v_lshl_add_u32 v{t3}, v{t1}, 7, v{t3}
v_add_u32 v{vTr}, s{sT0}, v{t3}
v_mul_u32_u24 v{t3}, 1792, v{t1}
v_lshl_add_u32 v{vOs}, v{t2}, 4, v{t3}
v_add_u32 v{t3}, 2, v{t2}
v_lshrrev_b32 v{t3}, 3, v{t3}
v_lshlrev_b32 v{t3}, 30, v{t3}
v_add_u32 v{t3}, 128, v{t3}
v_add_u32 v{vOs2}, v{t3}, v{vOs}
v_and_b32 v{t0}, 15, v{vLane}
v_lshrrev_b32 v{t1}, 4, v{vLane}
v_lshrrev_b32 v{t3}, 1, v{t1}
v_xor_b32 v{t3}, v{t3}, v{t2}
v_lshlrev_b32 v{t3}, 4, v{t3}
v_lshl_add_u32 v{t3}, v{t0}, 7, v{t3}
v_and_b32 v{t4}, 1, v{t1}
v_lshl_add_u32 v{t3}, v{t4}, 3, v{t3}
v_add_u32 v{vTw}, s{sT0}, v{t3}
v_lshlrev_b32 v{vPc}, {ES}, v{t0}
v_lshlrev_b32 v{t2}, 12, v{t2}
v_add_u32 v{vLp}, {3*512+15*16}, v{t2}
v_lshlrev_b32 v{t2}, 9, v{t1}
v_lshl_add_u32 v{vOa}, v{t0}, 4, v{t2}""")
LATE += lines(f"""v_lshrrev_b32 v{t2}, 1, v{t1}
v_lshlrev_b32 v{t2}, 4, v{t2}
v_lshl_add_u32 v{t2}, v{t4}, 2, v{t2}
v_bfe_u32 v{t3}, v{vLane}, 2, 2
v_add_u32 v{t2}, v{t2}, v{t3}
v_mul_u32_u24 v{t2}, 224, v{t2}
v_and_b32 v{t3}, 3, v{vLane}
v_lshl_add_u32 v{t2}, v{t3}, 3, v{t2}
v_add_u32 v{t3}, 1, v{t1}
v_lshrrev_b32 v{t3}, 2, v{t3}
v_mul_u32_u24 v{t3}, {4*224}, v{t3}
v_sub_u32 v{t3}, v{t2}, v{t3}
s_mul_i32 s{sT0}, s{sKap}, 6272
s_add_u32 s{sT0}, s{sT0}, {WOB}
v_add_u32 v{vW0}, s{sT0}, v{t2}
s_add_u32 s{sT0}, s{sT0}, {8*224}
v_add_u32 v{vW1}, s{sT0}, v{t3}
s_mul_i32 s{sSp}, s{sKap}, {(WO15 - WOB - 6272 - 7*12544) & 0xffffffff}
s_add_u32 s{sSp}, s{sSp}, {7*12544}""")
LATE += lines(f"""v_mul_u32_u24 v{t2}, 0x4925, v{vLane}
v_lshrrev_b32 v{t2}, 18, v{t2}
v_mul_u32_u24 v{t3}, 14, v{t2}
v_sub_u32 v{t3}, v{vLane}, v{t3}
v_mul_u32_u24 v{t2}, 896, v{t2}
v_lshl_add_u32 v{vWod}, v{t3}, 4, v{t2}
s_mul_i32 s{sWn}, s{sw}, 3584
s_add_u32 s{sWn}, s{sWn}, s{sWoff}
s_mul_i32 s{sWm}, s{sw}, 896
s_add_u32 s{sWm13}, s{sWm}, {WO15-896}
s_max_u32 s{sT0}, s{sw}, 1
s_sub_u32 s{sT0}, s{sT0}, s{sw}
s_mul_i32 s{sT0}, s{sT0}, {WOB+104*896-(WO15-896)}
s_add_u32 s{sWm13}, s{sWm13}, s{sT0}""")
ENDS = lines(f"""s_mul_i32 s{sT2}, s{sLine}, {16*9363}
s_add_u32 s{sT3}, s{sT2}, {16*9363}
s_lshr_b32 s{sT2}, s{sT2}, 16
s_lshr_b32 s{sT3}, s{sT3}, 16
s_sub_u32 s{sT3}, s{sT3}, s{sT2}
s_lshl_b32 s{sT2}, s{sT2}, 18""")
FK = lines(f"""v_and_b32 v{t0}, 15, v{vLane}
v_lshlrev_b32 v{t0}, 4, v{t0}
v_bfe_u32 v{t1}, v{vLane}, 4, 1
v_lshrrev_b32 v{t4}, 5, v{vLane}
v_lshl_add_u32 v{t1}, v{t1}, 1, v{t4}
s_lshl_b32 s{sT0}, s{sLine}, 4
v_add_u32 v{t1}, s{sT0}, v{t1}""")
for i in range(4):
    FK += lines(f"""v_add_u32 v{t2}, {4*i}, v{t1}
    v_mul_u32_u24 v{t3}, 9363, v{t2}
    v_lshrrev_b32 v{t3}, 16, v{t3}
    v_lshl_add_u32 v{vSt[i]}, v{t3}, 18, v{t0}
    v_mul_u32_u24 v{t3}, 7, v{t3}
    v_sub_u32 v{t2}, v{t2}, v{t3}
    v_lshl_add_u32 v{vSt[i]}, v{t2}, 8, v{vSt[i]}""")
FK += ENDS + lines(f"""s_add_u32 s{sT2}, s{sT2}, {7*256}
v_lshrrev_b32 v{t1}, 4, v{vLane}
v_cmp_gt_u32 vcc, s{sT3}, v{t1}
v_lshl_add_u32 v{t0}, v{t1}, 18, v{t0}
v_add_u32 v{t0}, s{sT2}, v{t0}
v_mov_b32 v{t3}, {OOB}
v_cndmask_b32 v{vP[0]}, v{t3}, v{t0}, vcc""")
FV = lines(f"""v_and_b32 v{t0}, 31, v{vLane}
s_lshl_b32 s{sT0}, s{sLine}, 6
v_add_u32 v{t0}, s{sT0}, v{t0}
v_and_b32 v{t4}, 32, v{vLane}""")
for ct in range(2):
    FV += lines(f"""v_add_u32 v{t2}, {32*ct}, v{t0}
    v_mul_u32_u24 v{t3}, 2341, v{t2}
    v_lshrrev_b32 v{t3}, 16, v{t3}
    v_mul_u32_u24 v{t1}, 28, v{t3}
    v_sub_u32 v{t2}, v{t2}, v{t1}
    v_add_u32 v{t2}, v{t2}, v{t4}
    v_lshlrev_b32 v{t2}, 4, v{t2}
    v_lshl_add_u32 v{t2}, v{t3}, 18, v{t2}
    v_add_u32 v{vSt[2*ct]}, 2048, v{t2}
    v_add_u32 v{vSt[2*ct+1]}, 3072, v{t2}""")
FV += ENDS + lines(f"""s_add_u32 s{sT2}, s{sT2}, {2048+28*16}
v_lshrrev_b32 v{t0}, 4, v{vLane}
v_cmp_gt_u32 vcc, s{sT3}, v{t0}
v_bfe_u32 v{t1}, v{vLane}, 2, 2
v_lshlrev_b32 v{t1}, 9, v{t1}
v_lshl_add_u32 v{t1}, v{t0}, 18, v{t1}
v_and_b32 v{t2}, 3, v{vLane}
v_lshl_add_u32 v{t1}, v{t2}, 4, v{t1}
v_add_u32 v{t1}, s{sT2}, v{t1}
v_mov_b32 v{t3}, {OOB}
v_cndmask_b32 v{vP[0]}, v{t3}, v{t1}, vcc
v_cmp_eq_u32 vcc, 0, v{t2}
v_mov_b32 v{t3}, 0x3f803f80
s_nop 0
v_cndmask_b32 v{vPd}, 0, v{t3}, vcc
v_mov_b32 v{vPd+1}, v{vPd}
v_mov_b32 v{vPd+2}, v{vPd}
v_mov_b32 v{vPd+3}, v{vPd}""")


def st16(data, addr, soff, off=0):
    return (f"buffer_store_dwordx4 {v(data,4)}, v{addr}, s[{sWS}:{sWS+3}], s{soff} offen offset:{off} sc1", "ST")


def st8(data, addr, soff):
    return (f"buffer_store_dwordx2 {v(data,2)}, v{addr}, s[{sWS}:{sWS+3}], s{soff} offen sc1", "ST")


def flag_store(vm):
    vm.wait("ST")
    A(f"""s_mov_b64 exec, 1
    buffer_store_dword v{vFl}, v{vFl+1}, s[{sWS}:{sWS+3}], s{sFl} offen sc1
    s_mov_b64 exec, -1""")
    vm.issue("FL")
    ts(4)


def pass1(role):
    vm, lg = Cnt("vmcnt", 63), Cnt("lgkmcnt", 15)
    vm.issue("X0", 4)
    if role != "N":
        for i in range(3):
            vm.issue(f"W{i}")
    vm.issue("X1", 4)
    fill = list(REST) + {"K": list(FK), "V": list(FV), "N": []}[role]

    def dma(p):
        A(p[0])
        vm.issue(p[1])

    def xread(c):
        vm.wait(f"X{c}")
        for st in range(4):
            A(f"ds_read_b128 {v(Xr+16*c+4*st,4)}, v{vXa[st]} offset:{(c % 2) * 32768}")
        lg.issue(f"R{c}", 4)

    def wread(g):
        for ct in range(2):
            for u in range(2):
                A(f"ds_read_b64_tr_b16 {v(Wf+8*(g%3)+4*ct+2*u,2)}, v{vWr[ct]} offset:{g*2048+u*512}")
        lg.issue(f"F{g}", 4)

    xread(0)
    if role == "N":
        emit(fill, len(fill))
        flag_store(vm)
        if OPT["wqpf"]:
            dma(wq_touch())
        for i in range(4):
            A(f"v_mov_b32 v{vSt[i]}, {OOB}")
        for c in range(0, 7):
            if c:
                xread(c)
            lg.wait(f"R{c}")
            if c + 2 <= 6:
                for p in x_pieces(c + 2):
                    dma(p)
        A(f"""s_cmp_eq_u32 s{sKap}, 0
        s_cbranch_scc1 L_nq""")
        for i in range(7):
            dma(wq_piece(i))
        A.label("L_nq")
        return
    slots = {}
    for i, p in enumerate(x_pieces(2)):
        slots[(i // 2, i % 2)] = p
    for i in range(4):
        slots[([2, 2, 5, 5][i], i % 2)] = w_piece(3 + i)
    for c in range(0, 4):
        for i, p in enumerate(x_pieces(c + 3)):
            slots[(4 * c + 3 + i // 2, i % 2)] = p
    slots[(OPT["padg"], 1)] = st16(vPd, vP[0], sKVt)
    if OPT["wqpf"]:
        slots[(OPT["wqpf"], 0)] = wq_touch()
    nf = -(-len(fill) // 32)
    vm.wait("W2")
    ts(3, 2)
    A("s_barrier")
    ts(4, 2)
    wread(0)
    wread(1)

    def step(g):
        c = g // 4
        lg.wait(f"F{g}", f"R{c}")
        if g % 4 == 3:
            lg.wait(f"R{c+1}")
        if g % 4 == 2 and c + 1 <= 6:
            xread(c + 1)
        if g == 10:
            vm.wait("W6")
            A("s_barrier")
        if g % 4 == 0:
            ts(5 + c, 2)
        if g + 2 < 28:
            wread(g + 2)
        for ct in range(2):
            ac = [acc0, acc1][ct]
            wf, xf = v(Wf + 8 * (g % 3) + 4 * ct, 4), v(Xr + 4 * g, 4)
            a_, b_ = (wf, xf) if role == "K" else (xf, wf)
            A(f"v_mfma_f32_32x32x16_bf16 {v(ac,16)}, {a_}, {b_}, {'0' if g == 0 else v(ac,16)}")
            if (g, ct) in slots:
                dma(slots[(g, ct)])
            emit(fill, nf)

    def pack(store):
        for ct in range(2):
            ac = [acc0, acc1][ct]
            pp = Wf + 8 * ct
            for r in range(8):
                A(f"v_cvt_pk_bf16_f32 v{pp+r}, v{ac+2*r}, v{ac+2*r+1}")
                if role == "V" and r % 4 == 3 and store:
                    dma(st16(pp + r - 3, vSt[2 * ct + r // 4], sKVt))
            if role == "K":
                for i in range(2):
                    A(f"v_permlane16_swap_b32 v{pp+4*i}, v{pp+4*i+2}")
                    A(f"v_permlane16_swap_b32 v{pp+4*i+1}, v{pp+4*i+3}")
                    if store:
                        dma(st16(pp + 4 * i, vSt[2 * ct + i], sKVt))

    G0 = 17
    for g in range(G0):
        step(g)
    assert not fill
    A(f"""s_cmp_lg_u32 s{sKap}, 0
    s_cbranch_scc1 L_young{role}""")
    save = (list(vm.q), list(lg.q))
    for g in range(G0, 28):
        step(g)
    ts(2)
    ts(12, 2)
    pack(True)
    ts(1)
    for i in range(4):
        A(f"v_mov_b32 v{vSt[i]}, {OOB}")
    A("s_branch L_q")
    A.label(f"L_young{role}")
    vm.q, lg.q = save
    for i in range(7):
        k = OPT["wq0"] * 2 + OPT["wqs"] * i
        while (k // 2, k % 2) in slots:
            k += 1
        slots[(k // 2, k % 2)] = wq_piece(i)
    for g in range(G0, 28):
        step(g)
    ts(2)
    ts(12, 2)
    pack(False)
    A("s_branch L_q")


A(f"s_cbranch_scc1 L_now")
for i in range(3):
    A(w_piece(i)[0])
A.label("L_now")
ALLS = EARLY + MID + LATE
npro = max(len(EARLY), min(len(ALLS), OPT["npro"]))
PRO, REST = ALLS[:npro], ALLS[npro:]
PRO += lines(f"""s_waitcnt lgkmcnt(0)
s_mul_i32 s{stag}, s{sE}, 0x9e3779b1
s_add_u32 s{stag}, s{stag}, 0x7f4a7c15
v_mov_b32 v{vFl}, s{stag}""")
emit(PRO, 12)
if OPT["ibar"]:
    A("s_barrier")
for p in x_pieces(1):
    A(p[0])
    emit(PRO, 12)
emit(PRO, len(PRO))
ts(2, 2)
A(f"""s_cmp_eq_u32 s{sNone}, 1
s_cbranch_scc1 L_roleN
s_cmp_eq_u32 s{sRole}, 1
s_cbranch_scc1 L_roleV""")
pass1("K")
A.label("L_roleV")
pass1("V")
A.label("L_roleN")
pass1("N")
A.label("L_q")

LATE = []
A(f"""s_waitcnt vmcnt(0)
s_cmp_lg_u32 s{sKap}, 0
s_cbranch_scc1 L_noflag""")
flag_store(Cnt("vmcnt", 63))
A.label("L_noflag")
A("s_barrier")
ts(3)
ts(13, 2)
ZACC = []
for r in range(32):
    LATE.append(f"v_mov_b32 v{O[0]+r}, 0")


def poll_text(mask):
    return f"""s_mov_b64 exec, {mask if mask < 64 else hex(mask)}
    buffer_load_dword v{vFl}, v{vPl}, s[{sWS}:{sWS+3}], s{sPl} offen sc1
    s_mov_b64 exec, -1"""


def poll_issue(mask=15):
    A(poll_text(mask))


ntry = [0]


def hook_try(level=2):
    ntry[0] += 1
    A(f"""s_cmp_ge_u32 s{sDone}, {level}
    s_cbranch_scc1 L_skip{ntry[0]}
    s_call_b64 s[{sRet}:{sRet+1}], L_try""")
    A.label(f"L_skip{ntry[0]}")


def spin(level, name):
    A(f"s_mov_b32 s{sSpin}, 0x40000")
    A.label(name)
    A(f"""s_cmp_ge_u32 s{sDone}, {level}
    s_cbranch_scc1 {name}_done
    s_call_b64 s[{sRet}:{sRet+1}], L_try
    s_sub_u32 s{sSpin}, s{sSpin}, 1
    s_cbranch_scc0 {name}""")
    A.label(name + "_done")


accQ = acc0
QD = OPT["qd"]
Wg = acc1 if QD == 3 else Wq8
lg = Cnt("lgkmcnt", 15)


def qread(g):
    for u in range(2):
        A(f"ds_read_b64_tr_b16 {v(Wg+4*(g%(QD+1))+2*u,2)}, v{vWqr} offset:{g*1024+u*256}")
    lg.issue(f"F{g}", 2)


for g in range(QD):
    qread(g)
for g in range(28):
    lg.wait(f"F{g}")
    A(f"v_mfma_f32_32x32x16_bf16 {v(accQ,16)}, {v(Wg+4*(g%(QD+1)),4)}, {v(Xr+4*g,4)}, {'0' if g == 0 else v(accQ,16)}")
    if g + QD < 28:
        qread(g + QD)
    emit(LATE if g >= 9 else ZACC, 2 if g >= 9 else 4)
    if g == OPT["pq"]:
        poll_issue()
    if g > OPT["pq"] and (g - OPT["pq"]) % OPT["tq"] == 0:
        hook_try(1)
assert not LATE
pqq = Wf + 16
for r in range(8):
    A(f"v_pk_mul_f32 {v(accQ+2*r,2)}, {v(accQ+2*r,2)}, s[{sCs}:{sCs+1}]")
for r in range(8):
    A(f"v_cvt_pk_bf16_f32 v{pqq+r}, v{accQ+2*r}, v{accQ+2*r+1}")
for r in (6, 7):
    A(f"v_cndmask_b32 v{pqq+r}, 0, v{pqq+r}, s[{sLo}:{sLo+1}]")
A(f"""ds_write_b128 v{vQw}, {v(pqq,4)}
ds_write_b128 v{vQw}, {v(pqq+4,4)} offset:1024""")
ts(11)
spin(1, "L_spin0")
A("""s_waitcnt vmcnt(1) lgkmcnt(0)
s_barrier""")
ts(12)

A(f"""ds_read_b128 {v(Q[0],4)}, v{vQr}
ds_read2st64_b64 {v(Kf[0],4)}, v{vBk} offset0:64 offset1:65
ds_read_b128 {v(Q[0]+4,4)}, v{vQr} offset:1024
ds_read2st64_b64 {v(Kf[0]+4,4)}, v{vBk} offset0:66 offset1:67
ds_read_b128 {v(Q[1],4)}, v{vQr} offset:2048
ds_read_b128 {v(Q[1]+4,4)}, v{vQr} offset:3072
ds_read2st64_b64 {v(Kf[1],4)}, v{vBk} offset0:72 offset1:73
ds_read2st64_b64 {v(Kf[1]+4,4)}, v{vBk} offset0:74 offset1:75
ds_read_b128 {v(Vf[0],4)}, v{vBase} offset:34816
ds_read_b128 {v(Vf[0]+4,4)}, v{vBase} offset:35840
s_waitcnt lgkmcnt(6)
v_mfma_f32_32x32x16_bf16 {v(S[0],16)}, {v(Kf[0],4)}, {v(Q[0],4)}, 0
v_mfma_f32_32x32x16_bf16 {v(S[0],16)}, {v(Kf[0]+4,4)}, {v(Q[0]+4,4)}, {v(S[0],16)}
s_waitcnt lgkmcnt(4)""")

POS = [32768, 0, 65536]


def kv_addr(blk, t, off):
    p = POS[blk % 3] + t * 4096 + off
    return (vCur, p - 65536) if POS[blk % 3] >= 65536 else (vBase, p)


def kv_next(st):
    pos = POS[st % 3]
    return f"""s_add_u32 s{sRel}, s{sRel}, {0x14000 if st == 4 else 0x10000}
    s_and_b32 s{sRel}, s{sRel}, 0x3ffff
    s_add_u32 m0, s{sMX}, {pos}
    s_add_u32 s{sD0}, s{sRel}, s{sKV}"""


def kv_piece(i):
    return f"buffer_load_dwordx4 v{vL16}, s[{sWS}:{sWS+3}], s{sD0} offen offset:{1024*i} sc1 lds"


def wo_piece(r):
    m = f"s_mov_b32 m0, s{sWm13}" if r == 13 else f"s_add_u32 m0, s{sWm}, {WOB + 8*r*896}"
    return f"""{m}
    s_add_u32 s{sD1}, s{sWn}, {8*r*3584}
    buffer_load_dwordx4 v{vWod}, s[{sWO}:{sWO+3}], s{sD1} offen lds"""


EXTRA = {}
AFTER = {}


def extra(w_, sl, text):
    EXTRA.setdefault((w_, sl), []).append(text)


def window(W):
    blk, u = divmod(W, 8)
    un, up = u + 1, u - 1
    tn, qn = un // 2, un % 2
    tp, qp = up // 2, up % 2
    Sc, Sn, Sp = S[u % 4], S[un % 4], S[up % 4]
    Kn, Vp = Kf[tn % 2], Vf[tp % 2]
    m = [f"v_mfma_f32_32x32x16_bf16 {v(Sn,16)}, {v(Kn,4)}, {v(Q[qn],4)}, 0",
         f"v_mfma_f32_32x32x16_bf16 {v(Sn,16)}, {v(Kn+4,4)}, {v(Q[qn]+4,4)}, {v(Sn,16)}",
         f"v_smfmac_f32_32x32x32_bf16 {v(O[qp],16)}, {v(Vp,4)}, {v(Sp,8)}, v{vIdx}",
         f"v_smfmac_f32_32x32x32_bf16 {v(O[qp],16)}, {v(Vp+4,4)}, {v(Sp+8,8)}, v{vIdx}"]
    if W == 0:
        m[2] = m[3] = None
    if W == 63:
        m = [m[2], None, m[3], None]
    mem = [[], [], [], []]
    pre = [[], [], [], []]

    def rd(dst, T, off):
        if off < 2048:
            o = (POS[(blk + T // 4) % 3] + (T % 4) * 4096 + off) // 512
            return f"ds_read2st64_b64 {v(dst,4)}, v{vBk} offset0:{o} offset1:{o+1}"
        a, o = kv_addr(blk + T // 4, T % 4, off)
        return f"ds_read_b128 {v(dst,4)}, v{a} offset:{o}"
    if u % 2 == 1:
        if not (u == 5 and blk > 0):
            A("s_waitcnt lgkmcnt(0)")
        tt = tn
        Kd, Vd = Kf[(tt + 1) % 2], Vf[tt % 2]
        rk = [rd(Kd, tt + 1, 0), rd(Kd + 4, tt + 1, 1024)]
        rv = [rd(Vd, tt, 2048), rd(Vd + 4, tt, 3072)]
        if W in (5, 61):
            mem[2].append(rv[0])
            mem[3].append(rv[1])
        elif W == 63:
            pass
        elif W == 7:
            A(rd(Kn, 4, 0))
            A(rd(Kn + 4, 4, 1024))
            m = [m[2], m[3], m[0], m[1]]
            mem[0] += [rk[0], rk[1]]
            mem[1] += [rv[0], rv[1]]
            pre[2].append("s_waitcnt lgkmcnt(4)")
        else:
            mem[0].append(rk[0])
            mem[1].append(rk[1])
            mem[2].append(rv[0])
            mem[3].append(rv[1])
    for q in range(4):
        for x in pre[q]:
            A(x)
        if m[q]:
            A(m[q])
        for x in mem[q] + (EXTRA.get((W, q), []) if not (OPT.get("nodma") and 23 <= W < 53) else []):
            A(x)
        for e in range(4):
            A(f"v_exp_f32 v{Sc+4*q+e}, v{Sc+4*q+e}")
    for hk in AFTER.get(W, []):
        hk()


def hook_bar0():
    spin(2, "L_spin1")
    A("""s_waitcnt vmcnt(0)
    s_barrier""")
    ts(6)


def mk_bar(n):
    def f():
        A(f"""s_waitcnt vmcnt({n}) lgkmcnt(0)""")
        if not OPT.get("nobar"):
            A("s_barrier")
    return f


def hook_pollc():
    A(f"""v_cmp_ne_u32 vcc, s{stag}, v{vQm}
    s_cmp_lg_u64 vcc, 0
    s_cbranch_scc1 L_pollc""")
    A.label("L_pollc_done")


hook_try()
for u in range(0, 6):
    AFTER.setdefault(u, []).append(hook_try)
AFTER.setdefault(6, []).append(hook_bar0)
extra(7, 2, kv_next(2) + "\n" + kv_piece(0))
extra(7, 3, kv_piece(1))
extra(8, 1, kv_piece(2))
extra(8, 3, kv_piece(3))
for i in range(4):
    extra(OPT["pubw"] + i // 2, [1, 3][i % 2], st16(Wf + 4 * i, vSt[i], sKVt)[0])
extra(10, 0, st16(vOnes, vL16, sOt)[0])
extra(10, 2, st16(vOnes, vL16, sOt, 1024)[0])
for ww, off in ((8, 0), (22, 64)):
    extra(ww, 1 if ww == 22 else 0, f"""v_mov_b32 v{t0}, s{stag}
    s_mov_b64 exec, 1
    buffer_store_dword v{t0}, v{vFl+1}, s[{sWS}:{sWS+3}], s{sFl} offen offset:{off} sc1
    s_mov_b64 exec, -1""")
extra(17, 1, poll_text(0x7fff0000).replace("0x7fff0000", "0xffff0000"))


def hook_pollh():
    A(f"""v_cmp_ne_u32 vcc, s{stag}, v{vFl}
    s_and_b32 s{sD1}, vcc_lo, 0xffff0000
    s_cbranch_scc1 L_pollh""")
    A.label("L_pollh_done")


wo_early = list(range(5, 13))
for i in range(1, 8):
    nwo = 2 if i == 1 else 0
    if i >= 2 and wo_early:
        for sl in (0, 2):
            extra(8 * i + 2, sl, wo_piece(wo_early.pop(0)))
            nwo += 1
    AFTER.setdefault(8 * i + 4, []).append(mk_bar(nwo))
    if i <= 5:
        extra(8 * i + 6, 0, kv_next(i + 2) + "\n" + kv_piece(0))
        extra(8 * i + 6, 2, kv_piece(1))
        extra(8 * i + 8, 0, kv_piece(2))
        extra(8 * i + 8, 2, kv_piece(3))
assert not wo_early
for k, r in enumerate([0, 1, 2, 3, 4, 13]):
    extra([54, 54, 55, 56, 56, 57][k], [0, 2, 1, 0, 2, 1][k], wo_piece(r))
extra(53, 1, f"buffer_load_dword v{vQm}, v{vPc}, s[{sWS}:{sWS+3}], s{sPc} offen offset:64 sc1")
AFTER[60].append(hook_pollc)
sTk, sAv = sTodo, sRem


def oload(l):
    return f"""s_add_u32 s{sT0}, s{sOin}, {l*4096}
    buffer_load_dwordx4 {v(Of+4*l,4)}, v{vOa}, s[{sWS}:{sWS+3}], s{sT0} offen sc1"""


def cload(l):
    return f"""s_bitcmp1_b32 s{sAv}, {l}
    s_cselect_b64 exec, -1, 0
    {oload(l)}"""


POLL = f"""s_andn2_b32 exec_lo, 0xff, s{sTk}
    s_mov_b32 exec_hi, 0
    buffer_load_dword v{vQm}, v{vLp}, s[{sWS}:{sWS+3}], s{sOin} offen sc1
    s_mov_b64 exec, -1"""
extra(63, 1, f"ds_read_b32 v{t2}, v{vMf}")
for i in range(8):
    extra(63, 1 + i // 3, f"ds_read_b128 {v(S[0]+4*i,4)}, v{vRw} offset:{1024*i}")


def hook_prio():
    A(f"""s_setprio 1
    s_cmp_lg_u32 s{sKap}, 0
    s_cbranch_scc1 L_pr
    s_setprio 2""")
    A.label("L_pr")


AFTER[60].append(hook_prio)
AFTER[20].append(hook_pollh)
PSEG = {1: [(0, 0, 3), (3, 0, 2), (6, 0, 1), (7, 2, 0)], 2: [(0, 0, 3), (4, 0, 2), (6, 2, 1), (7, 3, 0)],
        3: [(0, 0, 1), (7, 2, 0)], 4: [(0, 0, 3), (2, 0, 2), (4, 0, 1), (6, 0, 0)], 5: [(0, 0, 1), (7, 0, 0)],
        6: [(0, 0, 2), (5, 0, 1), (7, 2, 0)]}
if OPT.get("pseg"):
    for (ww, sl, pr) in [(0, 0, 3), (3, 0, 2), (5, 2, 1), (6, 3, 0), (7, 0, 3), (9, 0, 2), (11, 2, 1), (12, 3, 0)]:
        EXTRA.setdefault((ww, sl), []).insert(0, f"s_setprio {pr}")
    for i in range(1, 7):
        for (dw, sl, pr) in PSEG[OPT["pseg"]]:
            EXTRA.setdefault((8 * i + 5 + dw, sl), []).insert(0, f"s_setprio {pr}")
if OPT.get("prio"):
    A(f"""s_cmp_eq_u32 s{sKap}, {OPT["prio"] & 1}
    s_cbranch_scc0 L_np
    s_setprio 1""")
    A.label("L_np")
for W in range(64):
    if W in (24, 48):
        ts(1 if W == 24 else 2, 4)
    window(W)
A(f"""s_nop 0
v_smfmac_f32_32x32x32_bf16 {v(O[1],16)}, {v(Vf[1],4)}, {v(S[3],8)}, v{vIdx}
v_smfmac_f32_32x32x32_bf16 {v(O[1],16)}, {v(Vf[1]+4,4)}, {v(S[3]+8,8)}, v{vIdx}""")
ts(7)

R = S[0]
A(f"""s_cmp_eq_u32 s{sKap}, 0
s_cbranch_scc1 L_p3
s_waitcnt vmcnt(0) lgkmcnt(0)
v_readfirstlane_b32 s{sT0}, v{t2}
s_cmp_eq_u32 s{sT0}, 0
s_cbranch_scc1 L_mwait""")
A.label("L_mgo")
for q in range(2):
    for r in range(0, 16, 2):
        A(f"v_pk_add_f32 {v(O[q]+r,2)}, {v(O[q]+r,2)}, {v(R+16*q+r,2)}")
A.label("L_norm")
rc = [vFl, S[2]]
A(f"""v_mov_b32 v{t0}, v{O[0]+12}
v_mov_b32 v{rc[0]}, v{O[0]+12}
v_mov_b32 v{t1}, v{O[1]+12}
v_mov_b32 v{rc[1]}, v{O[1]+12}
s_add_u32 s{sT0}, s{sOp}, 32768
v_permlane32_swap_b32 v{t0}, v{rc[0]}
v_permlane32_swap_b32 v{t1}, v{rc[1]}
v_subrev_u32 v{t0}, {hex(L_LO)}, v{rc[0]}
v_subrev_u32 v{t1}, {hex(L_LO)}, v{rc[1]}
v_max_u32 v{t0}, v{t0}, v{t1}
v_cmp_lt_u32 vcc, s{sChk}, v{t0}
s_cmp_lg_u64 vcc, 0
s_cbranch_scc1 L_slow
v_rcp_f32 v{rc[0]}, v{rc[0]}
v_rcp_f32 v{rc[1]}, v{rc[1]}""")
for q in range(2):
    po = [pk, pq][q]
    so = [sOp, sT0][q]
    for r in range(0, 16, 2):
        A(f"v_pk_mul_f32 {v(O[q]+r,2)}, {v(O[q]+r,2)}, {v(rc[q],2)} op_sel_hi:[1,0]")
    for r in range(8):
        A(f"v_cvt_pk_bf16_f32 v{po+r}, v{O[q]+2*r}, v{O[q]+2*r+1}")
    for r in (6, 7):
        A(f"v_cndmask_b32 v{po+r}, 0, v{po+r}, s[{sLo}:{sLo+1}]")
    for r in range(8):
        A(f"v_min_u32 v{po+r}, -2, v{po+r}")
    A(f"""buffer_store_dwordx4 {v(po,4)}, v{vL16}, s[{sWS}:{sWS+3}], s{so} offen sc1
    buffer_store_dwordx4 {v(po+4,4)}, v{vL16}, s[{sWS}:{sWS+3}], s{so} offen offset:1024 sc1""")
ts(8)


TILES = list(range(O[0], Of, 4)) + [DEAD, DEAD + 4]
assert len(TILES) >= 42
rx = S[2]
pk2, rb = Q[0], Q[1]
sOk = sDone
OOL = []


def wtile(l, ct):
    return TILES[7 * (l % 6) + ct]


def wtext(l, ct):
    a0, a1, off = (vW0, vW1, l * 12544) if l < 6 else (t1, t2, 0) if l == 6 else (t3, t4, 0)
    d = wtile(l, ct)
    return f"""ds_read_b64_tr_b16 {v(d,2)}, v{a0} offset:{off+32*ct}
    ds_read_b64_tr_b16 {v(d+2,2)}, v{a1} offset:{off+32*ct}"""


A.label("L_p3e")
if OPT["ts"] == 5:
    A("s_mov_b32 s11, 1")
tsd(0)
A(f"s_mov_b32 s{sSpin}, 0x40000")
sSl = 14
vXw = [vTw, vLane, vIdx, t5]
for l in range(8):
    A(f"s_add_u32 s{sSl+l}, s{sOin}, {4096*l}")
A.label("L_p3r")
A(f"""s_mov_b32 s{sTk}, 0
v_add_u32 v{t1}, {6*12544}, v{vW0}
v_add_u32 v{t2}, {6*12544}, v{vW1}
v_add_u32 v{t3}, s{sSp}, v{vW0}
v_add_u32 v{t4}, s{sSp}, v{vW1}
s_waitcnt lgkmcnt(0)""")
for i in range(42):
    if i >= 6 and i % 3 == 0:
        A("s_waitcnt lgkmcnt(8)")
    if i == OPT["pp"]:
        A(POLL)
    A(wtext(i // 7, i % 7))
tsd(1)
A("s_branch L_w1")
A.label("L_w0")
if OPT.get("slp"):
    A(f"s_sleep {OPT['slp']}")
A(POLL)
A.label("L_w1")
A(f"""s_sub_u32 s{sSpin}, s{sSpin}, 1
s_cselect_b32 s{sT0}, 0xff, 0
s_cselect_b32 s{sSpin}, 0, s{sSpin}
s_waitcnt vmcnt(0)
v_cmp_ne_u32 vcc, -1, v{vQm}
s_or_b32 s{sTk}, vcc_lo, s{sT0}
s_andn2_b32 s{sT0}, 0xff, s{sTk}
s_cbranch_scc1 L_w0""")
tsd(9)
for l in range(8):
    A(f"buffer_load_dwordx4 {v(Of+4*l,4)}, v{vOa}, s[{sWS}:{sWS+3}], s{sSl+l} offen sc1")
tsd(7)
A(f"""v_mov_b32 v{vFl}, 1
s_add_u32 s{sT1}, s{sOut}, {8*1792}""")
for ct in range(1, 4):
    A(f"v_xor_b32 v{vXw[ct]}, {32*ct}, v{vTw}")
ORD = [0, 2, 1, 3, 4, 5, 6, 7]
for k, l in enumerate(ORD):
    b0 = Of + 4 * l
    A(f"s_waitcnt vmcnt({7-max(ORD[:k+1])})" + (" lgkmcnt(0)" if l in (0, 1, 6) else ""))
    if k == 0:
        tsd(2)
    for ct in range(7):
        A(f"v_mfma_f32_16x16x32_bf16 {v(acc+4*ct,4)}, {v(wtile(l,ct),4)}, {v(b0,4)}, {'0' if k == 0 else v(acc+4*ct,4)}")
        if l < 2:
            A(wtext(6 + l, ct))
        if ct == 1:
            A(f"v_max3_u32 v{t0}, v{b0}, v{b0+1}, {'0' if k == 0 else f'v{t0}'}")
        if ct == 3:
            A(f"v_max3_u32 v{t0}, v{b0+2}, v{b0+3}, v{t0}")
        if ct == 5 and k == 7:
            A(f"v_cmp_eq_u32 vcc, -1, v{t0}")
A(f"""s_cmp_lg_u64 vcc, 0
s_cbranch_scc1 L_redo""")
A.label("L_good")
OOL.append(f"""L_redo:
s_sub_u32 s{sSpin}, s{sSpin}, 1
s_cbranch_scc0 L_p3r
s_branch L_good""")
tsd(3)
ts(9)
tsa(8)


def p3(kap):
    n = f"k{kap}"
    keep = [0, 1, 2, 3] if kap == 0 else [4, 5, 6]
    send = [4, 5, 6] if kap == 0 else [0, 1, 2, 3]
    wa_, ra_ = (vSn, vRw) if kap == 0 else (vRw, vSn)
    A(f"s_mov_b32 s{sSpin}, 0x400000")
    for i, ct in enumerate(send):
        A(f"ds_write_b128 v{wa_}, {v(acc+4*ct,4)} offset:{1024*i}")
    A(f"ds_write_b32 v{vMf}, v{vFl} offset:{16+16*kap}")
    A.label(f"L_x{n}")
    A(f"ds_read_b32 v{t0}, v{vMf} offset:{32-16*kap}")
    for i in range(len(keep)):
        A(f"ds_read_b128 {v(rx+4*i,4)}, v{ra_} offset:{1024*i}")
    A(f"""s_sub_u32 s{sSpin}, s{sSpin}, 1
    s_cbranch_scc1 L_y{n}
    s_waitcnt lgkmcnt({len(keep)})
    v_readfirstlane_b32 s{sT0}, v{t0}
    s_cmp_eq_u32 s{sT0}, 0
    s_cbranch_scc1 L_xs{n}""")
    OOL.append(f"""L_xs{n}:
    s_sleep {OPT.get("xs", 1)}
    ds_read_b32 v{t0}, v{vMf} offset:{32-16*kap}
    s_sub_u32 s{sSpin}, s{sSpin}, 1
    s_waitcnt lgkmcnt(0)
    s_cbranch_scc1 L_y{n}
    v_readfirstlane_b32 s{sT0}, v{t0}
    s_cmp_eq_u32 s{sT0}, 0
    s_cbranch_scc1 L_xs{n}
    s_branch L_x{n}""")
    A.label(f"L_y{n}")
    tsd(4)
    tsa(9)
    wa = vXw
    for i, ct in enumerate(keep):
        A(f"""s_waitcnt lgkmcnt({len(keep)-1})
        v_pk_add_f32 {v(acc+4*ct,2)}, {v(acc+4*ct,2)}, {v(rx+4*i,2)}
        v_pk_add_f32 {v(acc+4*ct+2,2)}, {v(acc+4*ct+2,2)}, {v(rx+4*i+2,2)}
        v_cvt_pk_bf16_f32 v{pk2+2*i}, v{acc+4*ct}, v{acc+4*ct+1}
        v_cvt_pk_bf16_f32 v{pk2+2*i+1}, v{acc+4*ct+2}, v{acc+4*ct+3}
        ds_write_b64 v{wa[i]}, {v(pk2+2*i,2)}""")
    os_ = vOs if kap == 0 else vOs2
    A(f"""ds_read_b128 {v(rb,4)}, v{vTr}
    ds_read_b128 {v(rb+4,4)}, v{vTr} offset:1024
    s_waitcnt lgkmcnt(1)
    buffer_store_dwordx4 {v(rb,4)}, v{os_}, s[{sOUT}:{sOUT+3}], s{sOut} offen{OSC}
    s_waitcnt lgkmcnt(0)
    buffer_store_dwordx4 {v(rb+4,4)}, v{os_}, s[{sOUT}:{sOUT+3}], s{sT1} offen{OSC}""")


assert Vf[1] == Kf[0] + 24 and O[1] == O[0] + 16
A(f"""s_cmp_eq_u32 s{sKap}, 0
s_cbranch_scc1 L_x0""")
p3(1)
A("s_branch L_noep")
OLDER = "L_p3:\ns_waitcnt lgkmcnt(0)\n" + "\n".join(
    f"ds_write_b128 v{vRw}, {v(O[0]+4*i,4)} offset:{1024*i}" for i in range(8)) + f"""
v_mov_b32 v{t0}, 1
ds_write_b32 v{vMf}, v{t0}
s_setprio {OPT.get("op", 0)}
s_waitcnt vmcnt(0)
s_branch L_p3e"""
OOL.insert(0, OLDER)
A.label("L_x0")
p3(0)
A(f"""s_or_b32 s{sT0}, s{sh}, s{sj}
s_or_b32 s{sT0}, s{sT0}, s{sw}
s_cmp_lg_u32 s{sT0}, 0
s_cbranch_scc1 L_noep
s_add_u32 s{sE}, s{sE}, 1
s_lshl_b32 s{sT0}, s{sb}, 8
s_add_u32 s{sT0}, s{sT0}, {EPOCH_OFF}
v_mov_b32 v{t0}, 0
v_mov_b32 v{t1}, s{sE}
s_mov_b64 exec, 1
buffer_store_dword v{t1}, v{t0}, s[{sWS}:{sWS+3}], s{sT0} offen sc1
s_mov_b64 exec, -1""")
A.label("L_noep")
if OPT.get("padto"):
    A.label("L_pad")
    A(f"""s_sleep 4
    s_memrealtime s[{sRet}:{sRet+1}]
    s_waitcnt lgkmcnt(0)
    s_sub_u32 s{sT0}, s{sRet}, s{sTS}
    s_cmp_lt_u32 s{sT0}, {OPT["padto"]}
    s_cbranch_scc1 L_pad""")
tsd(5)
tsa(10)
if OPT["ts"] == 6:
    A("s_waitcnt lgkmcnt(0)")
    for i, r in enumerate(ASR):
        A(f"v_writelane_b32 v{vTS}, s{r}, {i+1}")
    A(f"""s_sub_u32 s{sRem}, 0x7fffffff, s{sRem}
    v_writelane_b32 v{vTS}, s{sRem}, 13
    v_writelane_b32 v{vTS}, s19, 14""")
if OPT["ts"]:
    A("s_waitcnt vmcnt(0)")
    ts(10)
    tsd(6)
    ts(12, 6)
    A(f"""s_lshl_b32 s{sT0}, s2, 3
    s_add_u32 s{sT0}, s{sT0}, s{sw}
    s_lshl_b32 s{sT0}, s{sT0}, {8 if OPT["ts"] == 5 else 6}
    s_add_u32 s{sT0}, s{sT0}, {TS_OFF}
    s_getreg_b32 s{sT1}, hwreg(HW_REG_XCC_ID)
    {"s_nop 0" if OPT["ts"] == 5 else f"v_writelane_b32 v{vTS}, s{sT1}, 15"}
    v_lshrrev_b32 v{t0}, 2, v{vL16}
    s_mov_b64 exec, {-1 if OPT["ts"] == 5 else "0xffff"}
    buffer_store_dword v{vTS}, v{t0}, s[{sWS}:{sWS+3}], s{sT0} offen""")
    if OPT.get("dbg"):
        A(f"""v_readlane_b32 s{sT0}, v{vTS}, 0
        s_not_b32 s{sT0}, s{sT0}
        v_writelane_b32 v{vTS}, s{sT0}, 15
        s_mov_b32 s{sX}, s22
        s_mov_b32 s{sX+1}, s23
        s_mov_b32 s{sX+2}, 256
        buffer_atomic_umax v{vTS}, v{t0}, s[{sX}:{sX+3}], 0 offen""")
A.label("L_end")
A("s_endpgm")

for x in OOL:
    A(x)
A.label("L_mwait")
A(f"s_mov_b32 s{sSpin}, 0x400000")
A.label("L_mwait1")
A(f"ds_read_b32 v{t2}, v{vMf}")
for i in range(8):
    A(f"ds_read_b128 {v(R+4*i,4)}, v{vRw} offset:{1024*i}")
A(f"""s_sub_u32 s{sSpin}, s{sSpin}, 1
s_waitcnt lgkmcnt(0)
s_cbranch_scc1 L_mgo
v_readfirstlane_b32 s{sT0}, v{t2}
s_cmp_eq_u32 s{sT0}, 0
s_cbranch_scc1 L_mwait1
s_branch L_mgo""")

A.label("L_try")
A(f"""s_waitcnt vmcnt(0)
v_cmp_ne_u32 vcc, s{stag}, v{vFl}
s_cmp_lg_u32 s{sDone}, 0
s_cbranch_scc1 L_try1
s_and_b32 s{sD1}, vcc_lo, 15
s_cbranch_scc0 L_try0""")
poll_issue(15)
A(f"s_setpc_b64 s[{sRet}:{sRet+1}]")
A.label("L_try0")
ts(5)
A(kv_next(0))
for i in range(4):
    A(kv_piece(i))
A(f"""s_mov_b32 s{sDone}, 1
s_branch L_again""")
A.label("L_try1")
A(f"""s_and_b32 s{sD1}, vcc_lo, 0xffff
s_cbranch_scc1 L_again""")
ts(13)
A(kv_next(1))
for i in range(4):
    A(kv_piece(i))
A(f"""s_mov_b32 s{sDone}, 2
s_setpc_b64 s[{sRet}:{sRet+1}]""")
A.label("L_again")
poll_issue(0xffff)
A(f"s_setpc_b64 s[{sRet}:{sRet+1}]")

A.label("L_pollc")
A(f"s_mov_b32 s{sSpin}, 0x40000")
A.label("L_pollc1")
A(f"""buffer_load_dword v{vQm}, v{vPc}, s[{sWS}:{sWS+3}], s{sPc} offen offset:64 sc1
s_sub_u32 s{sSpin}, s{sSpin}, 1
s_cbranch_scc1 L_pollc_done
s_waitcnt vmcnt(0)
v_cmp_ne_u32 vcc, s{stag}, v{vQm}
s_cmp_lg_u64 vcc, 0
s_cbranch_scc1 L_pollc1
s_branch L_pollc_done""")

A.label("L_pollh")
A(f"s_mov_b32 s{sSpin}, 0x40000")
A.label("L_pollh1")
A(poll_text(0x7fff0000).replace('0x7fff0000', '0xffff0000'))
A(f"""s_sub_u32 s{sSpin}, s{sSpin}, 1
s_cbranch_scc1 L_pollh_done
s_waitcnt vmcnt(0)
v_cmp_ne_u32 vcc, s{stag}, v{vFl}
s_and_b32 s{sD1}, vcc_lo, 0xffff0000
s_cbranch_scc1 L_pollh1
s_branch L_pollh_done""")

A.label("L_slow")
Sx, vMn, vAl = S[2], t2, t3
vM = [t4, t5]
A(f"""s_mov_b32 s{sChk}, -1
v_lshlrev_b32 v{vBk}, 3, v{vLane}
v_mov_b32 v{vM[0]}, 0xff7fffff
v_mov_b32 v{vM[1]}, 0xff7fffff
s_mov_b32 s{sT0}, s{sKV}
s_mov_b32 s{sI}, 0""")
for r in range(32):
    A(f"v_mov_b32 v{O[0]+r}, 0")
A.label("L_slow_t")
for i in range(4):
    A(f"buffer_load_dwordx2 {v(Kf[0]+2*i,2)}, v{vBk}, s[{sWS}:{sWS+3}], s{sT0} offen offset:{512*i} sc1")
A(f"""buffer_load_dwordx4 {v(Vf[0],4)}, v{vL16}, s[{sWS}:{sWS+3}], s{sT0} offen offset:2048 sc1
buffer_load_dwordx4 {v(Vf[0]+4,4)}, v{vL16}, s[{sWS}:{sWS+3}], s{sT0} offen offset:3072 sc1
s_add_u32 s{sT0}, s{sT0}, 4096
s_waitcnt vmcnt(0)""")
for q in range(2):
    A(f"""v_mfma_f32_32x32x16_bf16 {v(Sx,16)}, {v(Kf[0],4)}, {v(Q[q],4)}, 0
    v_mfma_f32_32x32x16_bf16 {v(Sx,16)}, {v(Kf[0]+4,4)}, {v(Q[q]+4,4)}, {v(Sx,16)}
    v_max3_f32 v{t0}, v{Sx}, v{Sx+1}, v{vM[q]}""")
    for r in range(2, 16, 2):
        A(f"v_max3_f32 v{t0}, v{Sx+r}, v{Sx+r+1}, v{t0}")
    A(f"""v_mov_b32 v{t1}, v{t0}
    v_permlane32_swap_b32 v{t0}, v{t1}
    v_max_f32 v{vMn}, v{t0}, v{t1}
    v_sub_f32 v{vAl}, v{vM[q]}, v{vMn}
    v_exp_f32 v{vAl}, v{vAl}
    v_mov_b32 v{vM[q]}, v{vMn}""")
    for r in range(16):
        A(f"v_sub_f32 v{Sx+r}, v{Sx+r}, v{vMn}")
    for r in range(16):
        A(f"v_exp_f32 v{Sx+r}, v{Sx+r}")
    for r in range(16):
        A(f"v_mul_f32 v{O[q]+r}, v{vAl}, v{O[q]+r}")
    A(f"""v_smfmac_f32_32x32x32_bf16 {v(O[q],16)}, {v(Vf[0],4)}, {v(Sx,8)}, v{vIdx}
    v_smfmac_f32_32x32x32_bf16 {v(O[q],16)}, {v(Vf[0]+4,4)}, {v(Sx+8,8)}, v{vIdx}""")
A(f"""s_add_u32 s{sI}, s{sI}, 1
s_cmp_lt_u32 s{sI}, 64
s_cbranch_scc1 L_slow_t
s_nop 11
s_branch L_norm""")

n = A.fix_hazards(verbose=bool(OPT.get("v", 0)))
NV = -(-V.hi // 8) * 8
hdr = open("cdna_kernels/" + NAME + ".s.ref").read().split("; Override launch")[0]
out = hdr + f"""; Fused kernel: QKV projection -> softmax attention -> output projection, one workgroup per
; (branch, head, 256-token block).  Generated by gen/gen.py.
; @launch grid=(256,1,1) block=(512,1,1) lds={LDS_BYTES}
.amdgcn_target "amdgcn-amd-amdhsa--gfx950"
.text
.globl {NAME}_kernel
.p2align 8
.type {NAME}_kernel,@function
""" + A.text().replace("CODE_SPAN", "L_slow-L_nopf") + f""".section .rodata,"a"
.p2align 6
.amdhsa_kernel {NAME}_kernel
  .amdhsa_next_free_vgpr {NV}
  .amdhsa_next_free_sgpr {NSGPR}
  .amdhsa_accum_offset {NV}
  .amdhsa_group_segment_fixed_size 0
  .amdhsa_kernarg_size 72
  .amdhsa_user_sgpr_count 2
  .amdhsa_user_sgpr_kernarg_segment_ptr 1
  .amdhsa_system_sgpr_workgroup_id_x 1
.end_amdhsa_kernel
"""
open(sys.argv[1], "w").write(out)
print(f"wrote {sys.argv[1]}: {len(A.lines)} lines, {n} nops inserted, {NV} vgprs", file=sys.stderr)
```

```python
import sys, struct, math
from asmlib import Asm, Alloc, v, s

NAME = "concat_heads__softmax_full_mha__softmax_full_mha__prompt"

OPT = dict(ts=0, force_slow=0, rot=2, map=1, pf=1, full=1, grp=0, per=2, pq=8, tq=6, wq0=17, wqs=2, padg=20, ibar=1, pubw=1, wqpf=6, pseg=2, npro=170, qd=3, pp=24)
for a in sys.argv[2:]:
    k, val = a.split("=")
    OPT[k] = int(val)

FLAG_OFF = 0xD00000
ES = OPT.get("es", 7)
FS = OPT.get("fs", 16 << ES)
HINT = 0x80000
EPOCH_OFF = 0x10000
TS_OFF = 0x20000
KV_OFF = 0x100000
O_OFF = 0x900000
WS_BYTES = 0x1000000
OOB = 0x40000000

XS = 57344
WQ = 131072
QOFF = 98304
WOB = 66944
WO15 = 32768
MISC = 161280
SND = 16384
LDS_BYTES = 163840

CSCALE = math.log2(math.e) / math.sqrt(28.0)
L_LO = (127 - 60) << 23
L_RANGE = 120 << 23


def f2u(x):
    return struct.unpack("<I", struct.pack("<f", x))[0]


NTX = " nt" if OPT.get("ntx") else ""
NTW = " nt" if OPT.get("ntw") else ""
OSC = ["", " sc1", " nt", " sc0 sc1", " sc1 nt"][OPT.get("osc", 3)]
A = Asm()
sWm, sWm13 = 26, 27
sX, sW, sWS, sWO, sOUT = 28, 32, 36, 40, 44
sw, sb, sh, sj, stag, sE = 48, 49, 50, 51, 52, 53
sCx, sXb, sWb, sMX, sMW, sCw = 54, 55, 56, 57, 58, 59
sT0, sT1, sT2, sT3 = 60, 61, 62, 63
sLo = 64
sLine, sRole = 66, 67
sHo = 10
sWb0, sSp = 12, 13
sLpx = 8
sKV = 68
sMXs, sWq = 69, 70
sI, sRel, sWn, sHH = 71, 72, 73, 74
sSpin = 75
sOt = 76
sWoff = 77
sKap = 78
sFl = 79
sTS = 80
sRet = 82
sDone, sTodo = 84, 85
sOin = 86
sPc = 87
sOut = 88
sChk = 89
sCs = 90
sKVt = 92
sD0, sD1 = 93, 94
sPend, sRem = 95, 96
sOp = 97
sRdy = 98
sHi, sPl, sC0, sMQ = 4, 5, 6, 7
sCq, sNone = 3, 100
NSGPR = 102


def ts(idx, grp=1):
    if OPT.get("padat") == 100 * grp + idx:
        A(f"s_memrealtime s[{sTS}:{sTS+1}]\ns_waitcnt lgkmcnt(0)")
    if not OPT["ts"] or (idx != 0 and OPT["ts"] != grp):
        return
    A(f"""{"s_memtime" if OPT.get("clk") else "s_memrealtime"} s[{sTS}:{sTS+1}]
    s_waitcnt lgkmcnt(0)
    v_writelane_b32 v{vTS}, s{sTS}, {idx}""")


def tsd(code, val=0):
    A(tsdt(code, val))


def tsdt(code, val=0):
    if OPT["ts"] != 5:
        return ""
    return (f"""s_memrealtime s[{sTS}:{sTS+1}]
    s_waitcnt lgkmcnt(0)
    s_lshl_b32 s{sTS}, s{sTS}, 8
    s_or_b32 s{sTS}, s{sTS}, {code << 4}
    s_or_b32 s{sTS}, s{sTS}, {val}
    s_mov_b32 m0, s11
    v_writelane_b32 v{vTS}, s{sTS}, m0
    s_add_u32 s11, s11, 1
    s_min_u32 s11, s11, 63""")


ASR = [20, 22, 54, 56, 58, 68, 66, 72, 90, 26, 6]


def tsa(i):
    if OPT["ts"] == 6:
        A(f"s_memrealtime s[{ASR[i]}:{ASR[i]+1}]")


class Cnt:
    def __init__(self, name, cap):
        self.name, self.cap, self.q = name, cap, []

    def issue(self, tag, n=1):
        self.q += [tag] * n
        assert len(self.q) <= self.cap, (self.name, self.q)

    def wait(self, *tags):
        idx = [i for i, t in enumerate(self.q) if t in tags]
        if idx:
            n = len(self.q) - 1 - idx[-1]
            A(f"s_waitcnt {self.name}({n})")
            self.q = self.q[idx[-1] + 1:]


def lines(text):
    return [x.strip() for x in text.split("\n") if x.strip()]


def emit(lst, n):
    for _ in range(min(n, len(lst))):
        A(lst.pop(0))


V = Alloc(1, 256)
vLane = V()
vTS = V()
vL16 = V()
vIdx = V()
vT = [V() for _ in range(6)]
t0, t1, t2, t3, t4, t5 = vT
vQm = V()
DEAD = V(8)
vQw, vQr, vBase, vCur, vWod, vPl, vPc, vBk = range(DEAD, DEAD + 8)
vOa, vW0, vW1, vSn, vRw, vMf, vTw, vTr, vOs, vOs2, vLp = [V() for _ in range(11)]
vFl = V(2)
m_ph = V.mark()
Xr = V(112)
acc0, acc1 = V(16), V(16)
Wf = V(24)
vXd = [V() for _ in range(4)]
vWd = V()
vWq = V()
vXa = [V() for _ in range(4)]
vWr = [V(), V()]
vWqr = V()
vSt = [V() for _ in range(4)]
vP = [V()]
vPf = V()
vOnes = V(4)
vPd = V(4)
Wq8 = V(24)
V.reset(m_ph)
O = [V(16), V(16)]
Q = [V(8), V(8)]
S = [V(16) for _ in range(4)]
Kf = [V(8), V(8)]
Vf = [V(8), V(8)]
pk, pq = V(8), V(8)
Of = V(32)
acc = V(28)
assert O[0] == Xr

A.label(NAME + "_kernel")
A(f"""s_cmp_ge_u32 s2, 256
s_cbranch_scc1 L_end
s_load_dwordx16 s[8:23], s[0:1], 0
s_load_dwordx2 s[24:25], s[0:1], 64
v_lshrrev_b32 v{t0}, 6, v0
v_and_b32 v{vLane}, 63, v0
v_readfirstlane_b32 s{sw}, v{t0}
v_lshlrev_b32 v{vL16}, 4, v{vLane}""")
if OPT.get("padto"):
    A(f"s_memrealtime s[{sTS}:{sTS+1}]")
if OPT["ts"]:
    A(f"""{"s_memtime" if OPT.get("clk") else "s_memrealtime"} s[{sTS}:{sTS+1}]
    v_mov_b32 v{vTS}, 0""")
if OPT["map"] == 1:
    A(f"""s_and_b32 s{sT0}, s2, 7
    s_lshr_b32 s{sT1}, s2, 3
    s_and_b32 s{sj}, s{sT1}, 7
    s_lshr_b32 s{sT1}, s{sT1}, 3
    s_lshl_b32 s{sT0}, s{sT0}, 2
    s_add_u32 s{sHH}, s{sT0}, s{sT1}""")
elif OPT["map"] == 2:
    A(f"""s_and_b32 s{sT0}, s2, 7
    s_lshr_b32 s{sT1}, s2, 3
    s_and_b32 s{sT2}, s{sT0}, 3
    s_lshl_b32 s{sT2}, s{sT2}, 1
    s_lshr_b32 s{sT3}, s{sT1}, 4
    s_add_u32 s{sj}, s{sT2}, s{sT3}
    s_lshr_b32 s{sT0}, s{sT0}, 2
    s_lshl_b32 s{sT0}, s{sT0}, 4
    s_and_b32 s{sT1}, s{sT1}, 15
    s_add_u32 s{sHH}, s{sT0}, s{sT1}""")
elif OPT["map"] == 3:
    A(f"""s_and_b32 s{sT0}, s2, 7
    s_lshr_b32 s{sT1}, s2, 3
    s_and_b32 s{sT2}, s{sT0}, 1
    s_lshl_b32 s{sT2}, s{sT2}, 2
    s_lshr_b32 s{sT3}, s{sT1}, 3
    s_add_u32 s{sj}, s{sT2}, s{sT3}
    s_lshr_b32 s{sT0}, s{sT0}, 1
    s_lshl_b32 s{sT0}, s{sT0}, 3
    s_and_b32 s{sT1}, s{sT1}, 7
    s_add_u32 s{sHH}, s{sT0}, s{sT1}""")
A(f"""s_lshr_b32 s{sb}, s{sHH}, 4
s_and_b32 s{sh}, s{sHH}, 15
s_lshr_b32 s{sKap}, s{sw}, 2""")
A(f"""s_cmp_gt_u32 s{sh}, 7
s_cselect_b32 s{sRole}, 1, 0
s_cselect_b32 s{sT0}, 16, 1
s_cselect_b32 s{sT1}, 1, 2
s_cselect_b32 s{sT2}, 2, 8
s_cselect_b32 s{sT3}, 8, 16
v_bfe_u32 v{t0}, v{vLane}, 3, 1
v_mul_u32_u24 v{t0}, s{sT0}, v{t0}
v_bfe_u32 v{t1}, v{vLane}, 4, 1
v_mad_u32_u24 v{t0}, v{t1}, s{sT1}, v{t0}
v_lshrrev_b32 v{t1}, 5, v{vLane}
v_lshl_add_u32 v{t0}, v{t1}, 2, v{t0}
v_mul_u32_u24 v{t3}, 896, v{t0}
s_mul_i32 s{sT2}, s{sT2}, 896
s_mul_i32 s{sT3}, s{sT3}, 896
s_sub_u32 s{sT2}, s{sT2}, 1024
s_sub_u32 s{sT3}, s{sT3}, 2048
v_lshrrev_b32 v{t1}, 4, v{vLane}
v_and_b32 v{t2}, 7, v{vLane}
v_xor_b32 v{t1}, v{t1}, v{t2}
v_lshl_add_u32 v{vXd[0]}, v{t1}, 4, v{t3}
v_xor_b32 v{t1}, 4, v{t1}
v_lshl_add_u32 v{t1}, v{t1}, 4, v{t3}
v_add_u32 v{vXd[1]}, s{sT2}, v{t1}
v_add_u32 v{vXd[2]}, s{sT3}, v{vXd[0]}
v_add_u32 v{vXd[3]}, s{sT3}, v{vXd[1]}
s_lshl_b32 s{sT0}, s{sj}, 3
s_add_u32 s{sT0}, s{sT0}, s{sw}
s_mul_i32 s{sXb}, s{sT0}, {32*896}
s_lshl_b32 s{sMX}, s{sw}, 12
s_add_u32 s{sMXs}, s{sMX}, {XS}""")
if OPT["rot"] == 0:
    A(f"s_mov_b32 s{sC0}, 0")
else:
    if OPT["rot"] == 1:
        A(f"s_add_u32 s{sC0}, s{sh}, s{sj}")
    elif OPT["rot"] == 2:
        A(f"""s_mul_i32 s{sC0}, s{sh}, 7
        s_lshr_b32 s{sC0}, s{sC0}, 4
        s_add_u32 s{sC0}, s{sC0}, s{sj}""")
    elif OPT["rot"] == 3:
        A(f"""s_mul_i32 s{sC0}, s{sh}, 7
        s_lshr_b32 s{sC0}, s{sC0}, 4""")
    A(f"""s_mul_i32 s{sT1}, s{sC0}, 37
    s_lshr_b32 s{sT1}, s{sT1}, 8
    s_mul_i32 s{sT1}, s{sT1}, 7
    s_sub_u32 s{sC0}, s{sC0}, s{sT1}""")
if OPT["pf"]:
    A(f"""s_and_b32 s{sT0}, s2, 0xf8
    s_add_u32 s{sT0}, s{sT0}, s{sw}
    s_lshl_b32 s{sT0}, s{sT0}, 7
    s_min_u32 s{sT0}, s{sT0}, CODE_SPAN
    s_getpc_b64 s[{sRet}:{sRet+1}]""")
    A.label("L_nopf")
    A(f"""v_mov_b32 v{t4}, s{sT0}
    global_load_dword v{t5}, v{t4}, s[{sRet}:{sRet+1}]""")
A(f"""s_lshl_b32 s{sCx}, s{sC0}, 7
s_mov_b32 s{sX+2}, {2048*896}
s_mov_b32 s{sX+3}, 0x20000
s_cmp_eq_u32 s{sb}, 0
s_waitcnt lgkmcnt(0)
s_cselect_b32 s{sX}, s8, s14
s_cselect_b32 s{sX+1}, s9, s15
s_cselect_b32 s{sW}, s10, s16
s_cselect_b32 s{sW+1}, s11, s17
s_cselect_b32 s{sWO}, s12, s18
s_cselect_b32 s{sWO+1}, s13, s19""")
if OPT["ts"]:
    A(f"v_writelane_b32 v{vTS}, s{sTS}, 0")
ts(14, 2)


def x_pieces(c):
    p = [f"""s_add_u32 m0, s{sMXs}, {(c % 2) * 32768}
    s_add_u32 s{sD0}, s{sCx}, s{sXb}
    buffer_load_dwordx4 v{vXd[0]}, s[{sX}:{sX+3}], s{sD0} offen{NTX} lds
    s_add_u32 s{sCx}, s{sCx}, 128
    s_cmp_eq_u32 s{sCx}, 896
    s_cselect_b32 s{sCx}, 0, s{sCx}"""]
    for i in range(1, 4):
        p.append(f"buffer_load_dwordx4 v{vXd[i]}, s[{sX}:{sX+3}], s{sD0} offen offset:{1024*i}{NTX} lds")
    return [(x, f"X{c}") for x in p]


def w_piece(it):
    return (f"""s_add_u32 m0, s{sMW}, {it*8192}
    s_add_u32 s{sD1}, s{sCw}, s{sWb}
    buffer_load_dwordx4 v{vWd}, s[{sW}:{sW+3}], s{sD1} offen{NTW} lds
    s_add_u32 s{sCw}, s{sCw}, {64*2688}
    s_cmp_eq_u32 s{sCw}, {448*2688}
    s_cselect_b32 s{sCw}, 0, s{sCw}""", f"W{it}")


def wq_piece(i):
    return (f"""s_add_u32 m0, s{sMQ}, {i*1024}
    s_add_u32 s{sD1}, s{sCq}, s{sWq}
    buffer_load_dwordx4 v{vWq}, s[{sW}:{sW+3}], s{sD1} offen lds
    s_add_u32 s{sCq}, s{sCq}, {16*2688}
    s_cmp_eq_u32 s{sCq}, {448*2688}
    s_cselect_b32 s{sCq}, 0, s{sCq}""", "WQ")


def wq_touch():
    return (f"""s_mov_b64 exec, 0x3fff
    buffer_load_dword v{t5}, v{vPf}, s[{sW}:{sW+3}], 0 offen{NTW}
    s_mov_b64 exec, -1""", "PF")


for p, _ in x_pieces(0):
    A(p)
ts(1, 2)
A(f"""s_mov_b32 s{sW+2}, {448*2688}
s_mov_b32 s{sW+3}, 0x20000
s_cmp_gt_u32 s{sh}, 6
s_subb_u32 s{sLine}, s{sh}, 0
s_cmp_gt_u32 s{sh}, 9
s_subb_u32 s{sLine}, s{sLine}, 0
s_lshl_b32 s{sWb}, s{sLine}, 7
s_cmp_ge_u32 s{sLine}, 7
s_cselect_b32 s{sT0}, 7, 0
s_sub_u32 s{sLine}, s{sLine}, s{sT0}
s_mul_i32 s{sT0}, s{sw}, {8*2688}
s_add_u32 s{sWb}, s{sWb}, s{sT0}
s_add_u32 s{sWb}, s{sWb}, 896
s_mul_i32 s{sCw}, s{sC0}, {64*2688}
s_lshl_b32 s{sMW}, s{sw}, 10
v_lshrrev_b32 v{t0}, 3, v{vLane}
v_mul_u32_u24 v{t0}, 2688, v{t0}
v_bfe_u32 v{t1}, v{vLane}, 4, 1
v_lshlrev_b32 v{t1}, 2, v{t1}
v_xor_b32 v{t1}, v{t1}, v{t2}
v_lshl_add_u32 v{vWd}, v{t1}, 4, v{t0}
s_lshr_b32 s{sNone}, 0x240, s{sh}
s_and_b32 s{sNone}, s{sNone}, 1""")

EARLY = lines(f"""s_lshl_b32 s{sT0}, s{sb}, 8
s_add_u32 s{sT0}, s{sT0}, {EPOCH_OFF}
s_load_dword s{sE}, s[24:25], s{sT0}
v_lshrrev_b32 v{t2}, 5, v{vLane}
v_and_b32 v{t0}, 31, v{vLane}
v_bfe_u32 v{t1}, v{vLane}, 1, 3
v_xor_b32 v{t1}, v{t1}, v{t2}
v_lshlrev_b32 v{t0}, 7, v{t0}
v_add_u32 v{t0}, s{sMXs}, v{t0}""")
for sst in range(4):
    EARLY += lines(f"""v_xor_b32 v{t3}, {2*sst}, v{t1}
    v_lshl_add_u32 v{vXa[sst]}, v{t3}, 4, v{t0}""")
EARLY += lines(f"""v_bfe_u32 v{t1}, v{vLane}, 2, 2
v_lshl_add_u32 v{t0}, v{t2}, 3, v{t1}
v_bfe_u32 v{t3}, v{vLane}, 4, 1
v_and_b32 v{t4}, 3, v{vLane}
v_lshlrev_b32 v{t4}, 3, v{t4}
v_lshl_add_u32 v{t4}, v{t3}, 5, v{t4}
v_lshl_add_u32 v{vWqr}, v{t0}, 6, v{t4}
v_lshl_add_u32 v{t4}, v{t0}, 7, v{t4}
v_lshrrev_b32 v{t1}, 1, v{t1}
v_lshl_add_u32 v{vWr[0]}, v{t1}, 6, v{t4}
v_xor_b32 v{vWr[1]}, 64, v{vWr[0]}
v_and_b32 v{t0}, 48, v{vL16}
v_add_u32 v{t0}, {MISC}, v{t0}
v_mov_b32 v{vPd}, 0
v_mov_b32 v{vPd+1}, 0
v_mov_b32 v{vPd+2}, 0
v_mov_b32 v{vPd+3}, 0
ds_write_b128 v{t0}, {v(vPd,4)}""")

MID = lines(f"""s_lshl_b32 s{sT0}, s{sj}, 3
s_add_u32 s{sT0}, s{sT0}, s{sw}
s_mul_i32 s{sT0}, s{sT0}, {7*2688}
s_mul_i32 s{sT1}, s{sh}, 56
s_add_u32 s{sT0}, s{sT0}, s{sT1}
v_lshrrev_b32 v{t0}, 1, v{vLane}
v_mul_u32_u24 v{t0}, 2688, v{t0}
v_and_b32 v{t1}, 1, v{vLane}
v_mad_u32_u24 v{t0}, v{t1}, 52, v{t0}
v_add_u32 v{vPf}, s{sT0}, v{t0}
s_and_b32 s{sT0}, s{sh}, 1
s_lshl_b32 s{sT0}, s{sT0}, 3
s_add_u32 s{sT0}, s{sT0}, {WQ}
v_add_u32 v{vWqr}, s{sT0}, v{vWqr}
s_mul_i32 s{sWq}, s{sh}, 56
s_and_b32 s{sWq}, s{sWq}, 0xfffffff0
s_and_b32 s{sT0}, s{sw}, 3
s_mul_i32 s{sMQ}, s{sT0}, 7168
s_add_u32 s{sMQ}, s{sMQ}, {WQ}
s_mul_i32 s{sT0}, s{sT0}, 7
s_lshl_b32 s{sT1}, s{sC0}, 2
s_add_u32 s{sT0}, s{sT0}, s{sT1}
s_sub_u32 s{sT1}, s{sT0}, 28
s_min_u32 s{sT0}, s{sT0}, s{sT1}
s_mul_i32 s{sCq}, s{sT0}, {16*2688}
v_lshrrev_b32 v{t0}, 2, v{vLane}
v_mul_u32_u24 v{t0}, 2688, v{t0}
v_and_b32 v{t1}, 3, v{vLane}
v_lshl_add_u32 v{vWq}, v{t1}, 4, v{t0}""")
MID += lines(f"""s_mov_b32 s{sWS}, s24
s_mov_b32 s{sWS+1}, s25
s_mov_b32 s{sWS+2}, {WS_BYTES}
s_mov_b32 s{sWS+3}, 0x20000
s_lshl_b32 s{sKVt}, s{sb}, 22
s_lshl_b32 s{sRel}, s{sj}, 15
s_add_u32 s{sRel}, s{sRel}, s{sMX}
s_add_u32 s{sKVt}, s{sKVt}, s{sRel}
s_add_u32 s{sKVt}, s{sKVt}, {KV_OFF}
s_and_b32 s{sT0}, s{sw}, 3
s_lshl_b32 s{sT0}, s{sT0}, 1
s_lshl_b32 s{sT1}, s{sb}, 3
s_add_u32 s{sT1}, s{sT1}, s{sj}
s_lshl_b32 s{sT1}, s{sT1}, 3
s_add_u32 s{sT0}, s{sT0}, s{sT1}
s_lshl_b32 s{sT0}, s{sT0}, 4
s_add_u32 s{sT0}, s{sT0}, s{sh}
s_lshl_b32 s{sOp}, s{sT0}, 11
s_add_u32 s{sOp}, s{sOp}, {O_OFF}
s_lshl_b32 s{sOt}, s{sKap}, 15
s_add_u32 s{sOt}, s{sOt}, s{sOp}
v_mov_b32 v{vOnes}, -1
v_mov_b32 v{vOnes+1}, -1
v_mov_b32 v{vOnes+2}, -1
v_mov_b32 v{vOnes+3}, -1
s_add_u32 s{sFl}, s{sT1}, s{sw}
s_mul_i32 s{sFl}, s{sFl}, {FS}
s_lshl_b32 s{sT0}, s{sh}, {ES}
s_add_u32 s{sFl}, s{sFl}, s{sT0}
s_add_u32 s{sFl}, s{sFl}, {FLAG_OFF}
v_mov_b32 v{vFl+1}, 0""")
LATE = lines(f"""s_lshl_b32 s{sPl}, s{sb}, 6
s_and_b32 s{sT1}, s{sw}, 3
s_add_u32 s{sPl}, s{sPl}, s{sT1}
s_mul_i32 s{sPl}, s{sPl}, {FS}
s_add_u32 s{sPl}, s{sPl}, {FLAG_OFF}
s_add_u32 s{sT0}, s{sj}, s{sKap}
s_and_b32 s{sT0}, s{sT0}, 7
s_lshl_b32 s{sRel}, s{sT0}, 15
s_lshl_b32 s{sT1}, s{sT1}, 12
s_add_u32 s{sRel}, s{sRel}, s{sT1}
s_sub_u32 s{sRel}, s{sRel}, 0x10000
v_bfe_u32 v{t3}, v{vLane}, 2, 2
v_lshl_add_u32 v{t3}, v{t3}, 1, s{sT0}
v_and_b32 v{t3}, 7, v{t3}
v_bfe_u32 v{t1}, v{vLane}, 4, 1
v_lshl_add_u32 v{t3}, v{t3}, 1, v{t1}
v_mul_u32_u24 v{t3}, {4*FS}, v{t3}
s_mul_i32 s{sT0}, s{sh}, 28
s_add_u32 s{sT1}, s{sT0}, 27
s_lshr_b32 s{sT0}, s{sT0}, 6
s_lshr_b32 s{sT1}, s{sT1}, 6
s_sub_u32 s{sT1}, s{sT1}, s{sT0}
v_and_b32 v{t0}, 1, v{vLane}
v_mul_u32_u24 v{t0}, s{sT1}, v{t0}
v_add_u32 v{t0}, s{sT0}, v{t0}
v_bfe_u32 v{t1}, v{vLane}, 1, 1
v_mad_u32_u24 v{t0}, v{t1}, 7, v{t0}
v_add_u32 v{t4}, 10, v{t0}
v_lshrrev_b32 v{t4}, 4, v{t4}
v_lshrrev_b32 v{t2}, 3, v{t0}
v_add3_u32 v{t0}, v{t0}, v{t4}, v{t2}
s_sub_u32 s{sT2}, s{sT1}, 1
s_and_b32 s{sT2}, s{sT2}, 0xaaaaaaaa
s_mov_b32 s{sT3}, s{sT2}
v_mad_u32_u24 v{t1}, v{t1}, 3, 6
v_cndmask_b32 v{t0}, v{t0}, v{t1}, s[{sT2}:{sT3}]
v_lshl_add_u32 v{vPl}, v{t0}, {ES}, v{t3}
v_and_b32 v{t2}, 7, v{vLane}
s_lshl_b32 s{sKV}, s{sHH}, 18
s_add_u32 s{sKV}, s{sKV}, {KV_OFF}
s_mov_b32 s{sDone}, 0""")
NPRE = len(LATE)
LATE += lines(f"""s_mov_b32 s{sWO+2}, {448*896}
s_mov_b32 s{sWO+3}, 0x20000
s_mov_b32 s{sOUT}, s20
s_mov_b32 s{sOUT+1}, s21
s_mov_b32 s{sOUT+2}, {2048*1792}
s_mov_b32 s{sOUT+3}, 0x20000
s_mov_b32 s{sLo}, -1
s_mov_b32 s{sLo+1}, 0
s_mov_b32 s{sCs}, {hex(f2u(CSCALE))}
s_mov_b32 s{sCs+1}, {hex(f2u(CSCALE))}
s_mov_b32 s{sChk}, {0 if OPT['force_slow'] else L_RANGE}
s_and_b32 s{sWoff}, s{sh}, 3
s_mul_i32 s{sWoff}, s{sWoff}, 224""")
LATE += lines(f"""s_lshl_b32 s{sT1}, s{sb}, 3
s_add_u32 s{sT1}, s{sT1}, s{sj}
s_lshl_b32 s{sT1}, s{sT1}, 3
s_lshr_b32 s{sT0}, s{sh}, 2
s_bfe_u32 s{sT2}, s{sw}, 0x10001
s_lshl_b32 s{sPc}, s{sT2}, 2
s_add_u32 s{sPc}, s{sPc}, s{sT0}
s_add_u32 s{sPc}, s{sPc}, s{sT1}
s_mul_i32 s{sPc}, s{sPc}, {FS}
s_add_u32 s{sPc}, s{sPc}, {FLAG_OFF}
s_lshl_b32 s{sT3}, s{sT0}, 1
s_add_u32 s{sT3}, s{sT3}, s{sT2}
s_add_u32 s{sT3}, s{sT3}, s{sT1}
s_lshl_b32 s{sOin}, s{sT3}, 15
s_add_u32 s{sOin}, s{sOin}, {O_OFF}
s_and_b32 s{sT3}, s{sw}, 1
s_lshl_b32 s{sT3}, s{sT3}, 8
s_add_u32 s{sOin}, s{sOin}, s{sT3}
s_lshl_b32 s{sT3}, s{sKap}, 11
s_add_u32 s{sOin}, s{sOin}, s{sT3}""")
LATE += lines(f"""s_lshl_b32 s{sT1}, s{sj}, 2
s_add_u32 s{sT0}, s{sT0}, s{sT1}
s_lshl_b32 s{sT0}, s{sT0}, 2
s_and_b32 s{sT1}, s{sw}, 3
s_add_u32 s{sT0}, s{sT0}, s{sT1}
s_mul_i32 s{sOut}, s{sT0}, {16*1792}
s_mul_i32 s{sT0}, s{sb}, 896
s_add_u32 s{sOut}, s{sOut}, s{sT0}
s_add_u32 s{sOut}, s{sOut}, s{sWoff}
v_mov_b32 v{vIdx}, 0xdddddddd
s_lshl_b32 s{sT0}, s{sw}, 11
s_add_u32 s{sT0}, s{sT0}, {QOFF}
v_and_b32 v{t0}, 1, v{vLane}
v_lshlrev_b32 v{t0}, 4, v{t0}
v_bfe_u32 v{t1}, v{vLane}, 4, 1
v_lshl_add_u32 v{t0}, v{t1}, 3, v{t0}
v_bfe_u32 v{t1}, v{vLane}, 3, 1
v_lshl_add_u32 v{t0}, v{t1}, 1, v{t0}
v_bfe_u32 v{t1}, v{vLane}, 1, 1
v_add_u32 v{t0}, v{t0}, v{t1}
v_and_b32 v{t1}, 0x24, v{vLane}
v_add_u32 v{t0}, v{t0}, v{t1}
v_sub_u32 v{t0}, v{t0}, v{vLane}
v_mul_lo_u32 v{t0}, v{t0}, s{sRole}
v_add_u32 v{t0}, v{t0}, v{vLane}
v_lshl_add_u32 v{vQw}, v{t0}, 4, s{sT0}
s_lshl_b32 s{sT2}, s{sT1}, 12
s_add_u32 s{sT2}, s{sT2}, {QOFF}
v_add_u32 v{vQr}, s{sT2}, v{vL16}
s_lshl_b32 s{sT0}, s{sKap}, 14
v_add_u32 v{vBase}, s{sT0}, v{vL16}
v_add_u32 v{vCur}, 0x10000, v{vBase}
v_lshl_add_u32 v{vBk}, v{vLane}, 3, s{sT0}
s_add_u32 s{sT0}, s{sT1}, 5
s_lshl_b32 s{sT0}, s{sT0}, 13
s_and_b32 s{sT0}, s{sT0}, 0xffff
v_add_u32 v{vRw}, s{sT0}, v{vL16}
s_lshl_b32 s{sT2}, s{sT1}, 2
s_add_u32 s{sT2}, s{sT2}, {MISC}
v_mov_b32 v{vMf}, s{sT2}
s_mul_i32 s{sT2}, s{sT1}, 3072
s_add_u32 s{sT2}, s{sT2}, {SND}
v_add_u32 v{vSn}, s{sT2}, v{vL16}
v_lshrrev_b32 v{t1}, 3, v{vLane}
s_lshl_b32 s{sT2}, s{sKap}, 11
s_add_u32 s{sT0}, s{sT0}, s{sT2}
s_add_u32 s{sT0}, s{sT0}, 4096
v_xor_b32 v{t3}, v{t1}, v{t2}
v_lshlrev_b32 v{t3}, 4, v{t3}
v_lshl_add_u32 v{t3}, v{t1}, 7, v{t3}
v_add_u32 v{vTr}, s{sT0}, v{t3}
v_mul_u32_u24 v{t3}, 1792, v{t1}
v_lshl_add_u32 v{vOs}, v{t2}, 4, v{t3}
v_add_u32 v{t3}, 2, v{t2}
v_lshrrev_b32 v{t3}, 3, v{t3}
v_lshlrev_b32 v{t3}, 30, v{t3}
v_add_u32 v{t3}, 128, v{t3}
v_add_u32 v{vOs2}, v{t3}, v{vOs}
v_and_b32 v{t0}, 15, v{vLane}
v_lshrrev_b32 v{t1}, 4, v{vLane}
v_lshrrev_b32 v{t3}, 1, v{t1}
v_xor_b32 v{t3}, v{t3}, v{t2}
v_lshlrev_b32 v{t3}, 4, v{t3}
v_lshl_add_u32 v{t3}, v{t0}, 7, v{t3}
v_and_b32 v{t4}, 1, v{t1}
v_lshl_add_u32 v{t3}, v{t4}, 3, v{t3}
v_add_u32 v{vTw}, s{sT0}, v{t3}
v_lshlrev_b32 v{vPc}, {ES}, v{t0}
v_lshlrev_b32 v{t2}, 12, v{t2}
v_add_u32 v{vLp}, {3*512+15*16}, v{t2}
v_lshlrev_b32 v{t2}, 9, v{t1}
v_lshl_add_u32 v{vOa}, v{t0}, 4, v{t2}""")
LATE += lines(f"""v_lshrrev_b32 v{t2}, 1, v{t1}
v_lshlrev_b32 v{t2}, 4, v{t2}
v_lshl_add_u32 v{t2}, v{t4}, 2, v{t2}
v_bfe_u32 v{t3}, v{vLane}, 2, 2
v_add_u32 v{t2}, v{t2}, v{t3}
v_mul_u32_u24 v{t2}, 224, v{t2}
v_and_b32 v{t3}, 3, v{vLane}
v_lshl_add_u32 v{t2}, v{t3}, 3, v{t2}
v_add_u32 v{t3}, 1, v{t1}
v_lshrrev_b32 v{t3}, 2, v{t3}
v_mul_u32_u24 v{t3}, {4*224}, v{t3}
v_sub_u32 v{t3}, v{t2}, v{t3}
s_mul_i32 s{sT0}, s{sKap}, 6272
s_add_u32 s{sT0}, s{sT0}, {WOB}
v_add_u32 v{vW0}, s{sT0}, v{t2}
s_add_u32 s{sT0}, s{sT0}, {8*224}
v_add_u32 v{vW1}, s{sT0}, v{t3}
s_mul_i32 s{sSp}, s{sKap}, {(WO15 - WOB - 6272 - 7*12544) & 0xffffffff}
s_add_u32 s{sSp}, s{sSp}, {7*12544}""")
LATE += lines(f"""v_mul_u32_u24 v{t2}, 0x4925, v{vLane}
v_lshrrev_b32 v{t2}, 18, v{t2}
v_mul_u32_u24 v{t3}, 14, v{t2}
v_sub_u32 v{t3}, v{vLane}, v{t3}
v_mul_u32_u24 v{t2}, 896, v{t2}
v_lshl_add_u32 v{vWod}, v{t3}, 4, v{t2}
s_mul_i32 s{sWn}, s{sw}, 3584
s_add_u32 s{sWn}, s{sWn}, s{sWoff}
s_mul_i32 s{sWm}, s{sw}, 896
s_add_u32 s{sWm13}, s{sWm}, {WO15-896}
s_max_u32 s{sT0}, s{sw}, 1
s_sub_u32 s{sT0}, s{sT0}, s{sw}
s_mul_i32 s{sT0}, s{sT0}, {WOB+104*896-(WO15-896)}
s_add_u32 s{sWm13}, s{sWm13}, s{sT0}""")
ENDS = lines(f"""s_mul_i32 s{sT2}, s{sLine}, {16*9363}
s_add_u32 s{sT3}, s{sT2}, {16*9363}
s_lshr_b32 s{sT2}, s{sT2}, 16
s_lshr_b32 s{sT3}, s{sT3}, 16
s_sub_u32 s{sT3}, s{sT3}, s{sT2}
s_lshl_b32 s{sT2}, s{sT2}, 18""")
FK = lines(f"""v_and_b32 v{t0}, 15, v{vLane}
v_lshlrev_b32 v{t0}, 4, v{t0}
v_bfe_u32 v{t1}, v{vLane}, 4, 1
v_lshrrev_b32 v{t4}, 5, v{vLane}
v_lshl_add_u32 v{t1}, v{t1}, 1, v{t4}
s_lshl_b32 s{sT0}, s{sLine}, 4
v_add_u32 v{t1}, s{sT0}, v{t1}""")
for i in range(4):
    FK += lines(f"""v_add_u32 v{t2}, {4*i}, v{t1}
    v_mul_u32_u24 v{t3}, 9363, v{t2}
    v_lshrrev_b32 v{t3}, 16, v{t3}
    v_lshl_add_u32 v{vSt[i]}, v{t3}, 18, v{t0}
    v_mul_u32_u24 v{t3}, 7, v{t3}
    v_sub_u32 v{t2}, v{t2}, v{t3}
    v_lshl_add_u32 v{vSt[i]}, v{t2}, 8, v{vSt[i]}""")
FK += ENDS + lines(f"""s_add_u32 s{sT2}, s{sT2}, {7*256}
v_lshrrev_b32 v{t1}, 4, v{vLane}
v_cmp_gt_u32 vcc, s{sT3}, v{t1}
v_lshl_add_u32 v{t0}, v{t1}, 18, v{t0}
v_add_u32 v{t0}, s{sT2}, v{t0}
v_mov_b32 v{t3}, {OOB}
v_cndmask_b32 v{vP[0]}, v{t3}, v{t0}, vcc""")
FV = lines(f"""v_and_b32 v{t0}, 31, v{vLane}
s_lshl_b32 s{sT0}, s{sLine}, 6
v_add_u32 v{t0}, s{sT0}, v{t0}
v_and_b32 v{t4}, 32, v{vLane}""")
for ct in range(2):
    FV += lines(f"""v_add_u32 v{t2}, {32*ct}, v{t0}
    v_mul_u32_u24 v{t3}, 2341, v{t2}
    v_lshrrev_b32 v{t3}, 16, v{t3}
    v_mul_u32_u24 v{t1}, 28, v{t3}
    v_sub_u32 v{t2}, v{t2}, v{t1}
    v_add_u32 v{t2}, v{t2}, v{t4}
    v_lshlrev_b32 v{t2}, 4, v{t2}
    v_lshl_add_u32 v{t2}, v{t3}, 18, v{t2}
    v_add_u32 v{vSt[2*ct]}, 2048, v{t2}
    v_add_u32 v{vSt[2*ct+1]}, 3072, v{t2}""")
FV += ENDS + lines(f"""s_add_u32 s{sT2}, s{sT2}, {2048+28*16}
v_lshrrev_b32 v{t0}, 4, v{vLane}
v_cmp_gt_u32 vcc, s{sT3}, v{t0}
v_bfe_u32 v{t1}, v{vLane}, 2, 2
v_lshlrev_b32 v{t1}, 9, v{t1}
v_lshl_add_u32 v{t1}, v{t0}, 18, v{t1}
v_and_b32 v{t2}, 3, v{vLane}
v_lshl_add_u32 v{t1}, v{t2}, 4, v{t1}
v_add_u32 v{t1}, s{sT2}, v{t1}
v_mov_b32 v{t3}, {OOB}
v_cndmask_b32 v{vP[0]}, v{t3}, v{t1}, vcc
v_cmp_eq_u32 vcc, 0, v{t2}
v_mov_b32 v{t3}, 0x3f803f80
s_nop 0
v_cndmask_b32 v{vPd}, 0, v{t3}, vcc
v_mov_b32 v{vPd+1}, v{vPd}
v_mov_b32 v{vPd+2}, v{vPd}
v_mov_b32 v{vPd+3}, v{vPd}""")


def st16(data, addr, soff, off=0):
    return (f"buffer_store_dwordx4 {v(data,4)}, v{addr}, s[{sWS}:{sWS+3}], s{soff} offen offset:{off} sc1", "ST")


def st8(data, addr, soff):
    return (f"buffer_store_dwordx2 {v(data,2)}, v{addr}, s[{sWS}:{sWS+3}], s{soff} offen sc1", "ST")


def flag_store(vm):
    vm.wait("ST")
    A(f"""s_mov_b64 exec, 1
    buffer_store_dword v{vFl}, v{vFl+1}, s[{sWS}:{sWS+3}], s{sFl} offen sc1
    s_mov_b64 exec, -1""")
    vm.issue("FL")
    ts(4)


def pass1(role):
    vm, lg = Cnt("vmcnt", 63), Cnt("lgkmcnt", 15)
    vm.issue("X0", 4)
    if role != "N":
        for i in range(3):
            vm.issue(f"W{i}")
    vm.issue("X1", 4)
    fill = list(REST) + {"K": list(FK), "V": list(FV), "N": []}[role]

    def dma(p):
        A(p[0])
        vm.issue(p[1])

    def xread(c):
        vm.wait(f"X{c}")
        for st in range(4):
            A(f"ds_read_b128 {v(Xr+16*c+4*st,4)}, v{vXa[st]} offset:{(c % 2) * 32768}")
        lg.issue(f"R{c}", 4)

    def wread(g):
        for ct in range(2):
            for u in range(2):
                A(f"ds_read_b64_tr_b16 {v(Wf+8*(g%3)+4*ct+2*u,2)}, v{vWr[ct]} offset:{g*2048+u*512}")
        lg.issue(f"F{g}", 4)

    xread(0)
    if role == "N":
        emit(fill, len(fill))
        flag_store(vm)
        if OPT["wqpf"]:
            dma(wq_touch())
        for i in range(4):
            A(f"v_mov_b32 v{vSt[i]}, {OOB}")
        for c in range(0, 7):
            if c:
                xread(c)
            lg.wait(f"R{c}")
            if c + 2 <= 6:
                for p in x_pieces(c + 2):
                    dma(p)
        A(f"""s_cmp_eq_u32 s{sKap}, 0
        s_cbranch_scc1 L_nq""")
        for i in range(7):
            dma(wq_piece(i))
        A.label("L_nq")
        return
    slots = {}
    for i, p in enumerate(x_pieces(2)):
        slots[(i // 2, i % 2)] = p
    for i in range(4):
        slots[([2, 2, 5, 5][i], i % 2)] = w_piece(3 + i)
    for c in range(0, 4):
        for i, p in enumerate(x_pieces(c + 3)):
            slots[(4 * c + 3 + i // 2, i % 2)] = p
    slots[(OPT["padg"], 1)] = st16(vPd, vP[0], sKVt)
    if OPT["wqpf"]:
        slots[(OPT["wqpf"], 0)] = wq_touch()
    nf = -(-len(fill) // 32)
    vm.wait("W2")
    ts(3, 2)
    A("s_barrier")
    ts(4, 2)
    wread(0)
    wread(1)

    def step(g):
        c = g // 4
        lg.wait(f"F{g}", f"R{c}")
        if g % 4 == 3:
            lg.wait(f"R{c+1}")
        if g % 4 == 2 and c + 1 <= 6:
            xread(c + 1)
        if g == 10:
            vm.wait("W6")
            A("s_barrier")
        if g % 4 == 0:
            ts(5 + c, 2)
        if g + 2 < 28:
            wread(g + 2)
        for ct in range(2):
            ac = [acc0, acc1][ct]
            wf, xf = v(Wf + 8 * (g % 3) + 4 * ct, 4), v(Xr + 4 * g, 4)
            a_, b_ = (wf, xf) if role == "K" else (xf, wf)
            A(f"v_mfma_f32_32x32x16_bf16 {v(ac,16)}, {a_}, {b_}, {'0' if g == 0 else v(ac,16)}")
            if (g, ct) in slots:
                dma(slots[(g, ct)])
            emit(fill, nf)

    def pack(store):
        for ct in range(2):
            ac = [acc0, acc1][ct]
            pp = Wf + 8 * ct
            for r in range(8):
                A(f"v_cvt_pk_bf16_f32 v{pp+r}, v{ac+2*r}, v{ac+2*r+1}")
                if role == "V" and r % 4 == 3 and store:
                    dma(st16(pp + r - 3, vSt[2 * ct + r // 4], sKVt))
            if role == "K":
                for i in range(2):
                    A(f"v_permlane16_swap_b32 v{pp+4*i}, v{pp+4*i+2}")
                    A(f"v_permlane16_swap_b32 v{pp+4*i+1}, v{pp+4*i+3}")
                    if store:
                        dma(st16(pp + 4 * i, vSt[2 * ct + i], sKVt))

    G0 = 17
    for g in range(G0):
        step(g)
    assert not fill
    A(f"""s_cmp_lg_u32 s{sKap}, 0
    s_cbranch_scc1 L_young{role}""")
    save = (list(vm.q), list(lg.q))
    for g in range(G0, 28):
        step(g)
    ts(2)
    ts(12, 2)
    pack(True)
    ts(1)
    for i in range(4):
        A(f"v_mov_b32 v{vSt[i]}, {OOB}")
    A("s_branch L_q")
    A.label(f"L_young{role}")
    vm.q, lg.q = save
    for i in range(7):
        k = OPT["wq0"] * 2 + OPT["wqs"] * i
        while (k // 2, k % 2) in slots:
            k += 1
        slots[(k // 2, k % 2)] = wq_piece(i)
    for g in range(G0, 28):
        step(g)
    ts(2)
    ts(12, 2)
    pack(False)
    A("s_branch L_q")


A(f"s_cbranch_scc1 L_now")
for i in range(3):
    A(w_piece(i)[0])
A.label("L_now")
ALLS = EARLY + MID + LATE
npro = max(len(EARLY), min(len(ALLS), OPT["npro"]))
PRO, REST = ALLS[:npro], ALLS[npro:]
PRO += lines(f"""s_waitcnt lgkmcnt(0)
s_mul_i32 s{stag}, s{sE}, 0x9e3779b1
s_add_u32 s{stag}, s{stag}, 0x7f4a7c15
v_mov_b32 v{vFl}, s{stag}""")
emit(PRO, 12)
if OPT["ibar"]:
    A("s_barrier")
for p in x_pieces(1):
    A(p[0])
    emit(PRO, 12)
emit(PRO, len(PRO))
ts(2, 2)
A(f"""s_cmp_eq_u32 s{sNone}, 1
s_cbranch_scc1 L_roleN
s_cmp_eq_u32 s{sRole}, 1
s_cbranch_scc1 L_roleV""")
pass1("K")
A.label("L_roleV")
pass1("V")
A.label("L_roleN")
pass1("N")
A.label("L_q")

LATE = []
A(f"""s_waitcnt vmcnt(0)
s_cmp_lg_u32 s{sKap}, 0
s_cbranch_scc1 L_noflag""")
flag_store(Cnt("vmcnt", 63))
A.label("L_noflag")
A("s_barrier")
ts(3)
ts(13, 2)
ZACC = []
for r in range(32):
    LATE.append(f"v_mov_b32 v{O[0]+r}, 0")


def poll_text(mask):
    return f"""s_mov_b64 exec, {mask if mask < 64 else hex(mask)}
    buffer_load_dword v{vFl}, v{vPl}, s[{sWS}:{sWS+3}], s{sPl} offen sc1
    s_mov_b64 exec, -1"""


def poll_issue(mask=15):
    A(poll_text(mask))


ntry = [0]


def hook_try(level=2):
    ntry[0] += 1
    A(f"""s_cmp_ge_u32 s{sDone}, {level}
    s_cbranch_scc1 L_skip{ntry[0]}
    s_call_b64 s[{sRet}:{sRet+1}], L_try""")
    A.label(f"L_skip{ntry[0]}")


def spin(level, name):
    A(f"s_mov_b32 s{sSpin}, 0x40000")
    A.label(name)
    A(f"""s_cmp_ge_u32 s{sDone}, {level}
    s_cbranch_scc1 {name}_done
    s_call_b64 s[{sRet}:{sRet+1}], L_try
    s_sub_u32 s{sSpin}, s{sSpin}, 1
    s_cbranch_scc0 {name}""")
    A.label(name + "_done")


accQ = acc0
QD = OPT["qd"]
Wg = acc1 if QD == 3 else Wq8
lg = Cnt("lgkmcnt", 15)


def qread(g):
    for u in range(2):
        A(f"ds_read_b64_tr_b16 {v(Wg+4*(g%(QD+1))+2*u,2)}, v{vWqr} offset:{g*1024+u*256}")
    lg.issue(f"F{g}", 2)


for g in range(QD):
    qread(g)
for g in range(28):
    lg.wait(f"F{g}")
    A(f"v_mfma_f32_32x32x16_bf16 {v(accQ,16)}, {v(Wg+4*(g%(QD+1)),4)}, {v(Xr+4*g,4)}, {'0' if g == 0 else v(accQ,16)}")
    if g + QD < 28:
        qread(g + QD)
    emit(LATE if g >= 9 else ZACC, 2 if g >= 9 else 4)
    if g == OPT["pq"]:
        poll_issue()
    if g > OPT["pq"] and (g - OPT["pq"]) % OPT["tq"] == 0:
        hook_try(1)
assert not LATE
pqq = Wf + 16
for r in range(8):
    A(f"v_pk_mul_f32 {v(accQ+2*r,2)}, {v(accQ+2*r,2)}, s[{sCs}:{sCs+1}]")
for r in range(8):
    A(f"v_cvt_pk_bf16_f32 v{pqq+r}, v{accQ+2*r}, v{accQ+2*r+1}")
for r in (6, 7):
    A(f"v_cndmask_b32 v{pqq+r}, 0, v{pqq+r}, s[{sLo}:{sLo+1}]")
A(f"""ds_write_b128 v{vQw}, {v(pqq,4)}
ds_write_b128 v{vQw}, {v(pqq+4,4)} offset:1024""")
ts(11)
spin(1, "L_spin0")
A("""s_waitcnt vmcnt(1) lgkmcnt(0)
s_barrier""")
ts(12)

A(f"""ds_read_b128 {v(Q[0],4)}, v{vQr}
ds_read2st64_b64 {v(Kf[0],4)}, v{vBk} offset0:64 offset1:65
ds_read_b128 {v(Q[0]+4,4)}, v{vQr} offset:1024
ds_read2st64_b64 {v(Kf[0]+4,4)}, v{vBk} offset0:66 offset1:67
ds_read_b128 {v(Q[1],4)}, v{vQr} offset:2048
ds_read_b128 {v(Q[1]+4,4)}, v{vQr} offset:3072
ds_read2st64_b64 {v(Kf[1],4)}, v{vBk} offset0:72 offset1:73
ds_read2st64_b64 {v(Kf[1]+4,4)}, v{vBk} offset0:74 offset1:75
ds_read_b128 {v(Vf[0],4)}, v{vBase} offset:34816
ds_read_b128 {v(Vf[0]+4,4)}, v{vBase} offset:35840
s_waitcnt lgkmcnt(6)
v_mfma_f32_32x32x16_bf16 {v(S[0],16)}, {v(Kf[0],4)}, {v(Q[0],4)}, 0
v_mfma_f32_32x32x16_bf16 {v(S[0],16)}, {v(Kf[0]+4,4)}, {v(Q[0]+4,4)}, {v(S[0],16)}
s_waitcnt lgkmcnt(4)""")

POS = [32768, 0, 65536]


def kv_addr(blk, t, off):
    p = POS[blk % 3] + t * 4096 + off
    return (vCur, p - 65536) if POS[blk % 3] >= 65536 else (vBase, p)


def kv_next(st):
    pos = POS[st % 3]
    return f"""s_add_u32 s{sRel}, s{sRel}, {0x14000 if st == 4 else 0x10000}
    s_and_b32 s{sRel}, s{sRel}, 0x3ffff
    s_add_u32 m0, s{sMX}, {pos}
    s_add_u32 s{sD0}, s{sRel}, s{sKV}"""


def kv_piece(i):
    return f"buffer_load_dwordx4 v{vL16}, s[{sWS}:{sWS+3}], s{sD0} offen offset:{1024*i} sc1 lds"


def wo_piece(r):
    m = f"s_mov_b32 m0, s{sWm13}" if r == 13 else f"s_add_u32 m0, s{sWm}, {WOB + 8*r*896}"
    return f"""{m}
    s_add_u32 s{sD1}, s{sWn}, {8*r*3584}
    buffer_load_dwordx4 v{vWod}, s[{sWO}:{sWO+3}], s{sD1} offen lds"""


EXTRA = {}
AFTER = {}


def extra(w_, sl, text):
    EXTRA.setdefault((w_, sl), []).append(text)


def window(W):
    blk, u = divmod(W, 8)
    un, up = u + 1, u - 1
    tn, qn = un // 2, un % 2
    tp, qp = up // 2, up % 2
    Sc, Sn, Sp = S[u % 4], S[un % 4], S[up % 4]
    Kn, Vp = Kf[tn % 2], Vf[tp % 2]
    m = [f"v_mfma_f32_32x32x16_bf16 {v(Sn,16)}, {v(Kn,4)}, {v(Q[qn],4)}, 0",
         f"v_mfma_f32_32x32x16_bf16 {v(Sn,16)}, {v(Kn+4,4)}, {v(Q[qn]+4,4)}, {v(Sn,16)}",
         f"v_smfmac_f32_32x32x32_bf16 {v(O[qp],16)}, {v(Vp,4)}, {v(Sp,8)}, v{vIdx}",
         f"v_smfmac_f32_32x32x32_bf16 {v(O[qp],16)}, {v(Vp+4,4)}, {v(Sp+8,8)}, v{vIdx}"]
    if W == 0:
        m[2] = m[3] = None
    if W == 63:
        m = [m[2], None, m[3], None]
    mem = [[], [], [], []]
    pre = [[], [], [], []]

    def rd(dst, T, off):
        if off < 2048:
            o = (POS[(blk + T // 4) % 3] + (T % 4) * 4096 + off) // 512
            return f"ds_read2st64_b64 {v(dst,4)}, v{vBk} offset0:{o} offset1:{o+1}"
        a, o = kv_addr(blk + T // 4, T % 4, off)
        return f"ds_read_b128 {v(dst,4)}, v{a} offset:{o}"
    if u % 2 == 1:
        if not (u == 5 and blk > 0):
            A("s_waitcnt lgkmcnt(0)")
        tt = tn
        Kd, Vd = Kf[(tt + 1) % 2], Vf[tt % 2]
        rk = [rd(Kd, tt + 1, 0), rd(Kd + 4, tt + 1, 1024)]
        rv = [rd(Vd, tt, 2048), rd(Vd + 4, tt, 3072)]
        if W in (5, 61):
            mem[2].append(rv[0])
            mem[3].append(rv[1])
        elif W == 63:
            pass
        elif W == 7:
            A(rd(Kn, 4, 0))
            A(rd(Kn + 4, 4, 1024))
            m = [m[2], m[3], m[0], m[1]]
            mem[0] += [rk[0], rk[1]]
            mem[1] += [rv[0], rv[1]]
            pre[2].append("s_waitcnt lgkmcnt(4)")
        else:
            mem[0].append(rk[0])
            mem[1].append(rk[1])
            mem[2].append(rv[0])
            mem[3].append(rv[1])
    for q in range(4):
        for x in pre[q]:
            A(x)
        if m[q]:
            A(m[q])
        for x in mem[q] + (EXTRA.get((W, q), []) if not (OPT.get("nodma") and 23 <= W < 53) else []):
            A(x)
        for e in range(4):
            A(f"v_exp_f32 v{Sc+4*q+e}, v{Sc+4*q+e}")
    for hk in AFTER.get(W, []):
        hk()


def hook_bar0():
    spin(2, "L_spin1")
    A("""s_waitcnt vmcnt(0)
    s_barrier""")
    ts(6)


def mk_bar(n):
    def f():
        A(f"""s_waitcnt vmcnt({n}) lgkmcnt(0)""")
        if not OPT.get("nobar"):
            A("s_barrier")
    return f


def hook_pollc():
    A(f"""v_cmp_ne_u32 vcc, s{stag}, v{vQm}
    s_cmp_lg_u64 vcc, 0
    s_cbranch_scc1 L_pollc""")
    A.label("L_pollc_done")


hook_try()
for u in range(0, 6):
    AFTER.setdefault(u, []).append(hook_try)
AFTER.setdefault(6, []).append(hook_bar0)
extra(7, 2, kv_next(2) + "\n" + kv_piece(0))
extra(7, 3, kv_piece(1))
extra(8, 1, kv_piece(2))
extra(8, 3, kv_piece(3))
for i in range(4):
    extra(OPT["pubw"] + i // 2, [1, 3][i % 2], st16(Wf + 4 * i, vSt[i], sKVt)[0])
extra(10, 0, st16(vOnes, vL16, sOt)[0])
extra(10, 2, st16(vOnes, vL16, sOt, 1024)[0])
for ww, off in ((8, 0), (22, 64)):
    extra(ww, 1 if ww == 22 else 0, f"""v_mov_b32 v{t0}, s{stag}
    s_mov_b64 exec, 1
    buffer_store_dword v{t0}, v{vFl+1}, s[{sWS}:{sWS+3}], s{sFl} offen offset:{off} sc1
    s_mov_b64 exec, -1""")
extra(17, 1, poll_text(0x7fff0000).replace("0x7fff0000", "0xffff0000"))


def hook_pollh():
    A(f"""v_cmp_ne_u32 vcc, s{stag}, v{vFl}
    s_and_b32 s{sD1}, vcc_lo, 0xffff0000
    s_cbranch_scc1 L_pollh""")
    A.label("L_pollh_done")


if OPT.get("tou"):
    sel = f"""v_mov_b32 v{t1}, v{vOs}
    s_cmp_eq_u32 s{sKap}, 0
    s_cbranch_scc1 L_tou
    v_mov_b32 v{t1}, v{vOs2}
    L_tou:
    s_add_u32 s{sT1}, s{sOut}, {8*1792}
    """
    if OPT["tou"] == 1:
        ops = [f"buffer_load_dword v{t2}, v{t1}, s[{sOUT}:{sOUT+3}], s{x} offen" for x in (sOut, sT1)]
    else:
        ops = [f"buffer_store_dwordx4 {v(vOnes,4)}, v{t1}, s[{sOUT}:{sOUT+3}], s{x} offen{OSC}" for x in (sOut, sT1)]
    extra(29, 1, sel + ops[0])
    extra(29, 3, ops[1])
wo_early = list(range(5, 13))
for i in range(1, 8):
    nwo = 2 if i == 1 else 0
    if i >= 2 and wo_early:
        for sl in (0, 2):
            extra(8 * i + 2, sl, wo_piece(wo_early.pop(0)))
            nwo += 1
    AFTER.setdefault(8 * i + 4, []).append(mk_bar(nwo))
    if i <= 5:
        extra(8 * i + 6, 0, kv_next(i + 2) + "\n" + kv_piece(0))
        extra(8 * i + 6, 2, kv_piece(1))
        extra(8 * i + 8, 0, kv_piece(2))
        extra(8 * i + 8, 2, kv_piece(3))
assert not wo_early
for k, r in enumerate([0, 1, 2, 3, 4, 13]):
    extra([54, 54, 55, 56, 56, 57][k], [0, 2, 1, 0, 2, 1][k], wo_piece(r))
extra(53, 1, f"buffer_load_dword v{vQm}, v{vPc}, s[{sWS}:{sWS+3}], s{sPc} offen offset:64 sc1")
AFTER[60].append(hook_pollc)
sTk, sAv = sTodo, sRem


def oload(l):
    return f"""s_add_u32 s{sT0}, s{sOin}, {l*4096}
    buffer_load_dwordx4 {v(Of+4*l,4)}, v{vOa}, s[{sWS}:{sWS+3}], s{sT0} offen sc1"""


def cload(l):
    return f"""s_bitcmp1_b32 s{sAv}, {l}
    s_cselect_b64 exec, -1, 0
    {oload(l)}"""


POLL = f"""s_andn2_b32 exec_lo, 0xff, s{sTk}
    s_mov_b32 exec_hi, 0
    buffer_load_dword v{vQm}, v{vLp}, s[{sWS}:{sWS+3}], s{sOin} offen sc1
    s_mov_b64 exec, -1"""
extra(63, 1, f"ds_read_b32 v{t2}, v{vMf}")
for i in range(8):
    extra(63, 1 + i // 3, f"ds_read_b128 {v(S[0]+4*i,4)}, v{vRw} offset:{1024*i}")


def hook_prio():
    A(f"""s_setprio 1
    s_cmp_lg_u32 s{sKap}, 0
    s_cbranch_scc1 L_pr
    s_setprio 2""")
    A.label("L_pr")


AFTER[60].append(hook_prio)
AFTER[20].append(hook_pollh)
PSEG = {1: [(0, 0, 3), (3, 0, 2), (6, 0, 1), (7, 2, 0)], 2: [(0, 0, 3), (4, 0, 2), (6, 2, 1), (7, 3, 0)],
        3: [(0, 0, 1), (7, 2, 0)], 4: [(0, 0, 3), (2, 0, 2), (4, 0, 1), (6, 0, 0)], 5: [(0, 0, 1), (7, 0, 0)],
        6: [(0, 0, 2), (5, 0, 1), (7, 2, 0)]}
if OPT.get("pseg"):
    for (ww, sl, pr) in [(0, 0, 3), (3, 0, 2), (5, 2, 1), (6, 3, 0), (7, 0, 3), (9, 0, 2), (11, 2, 1), (12, 3, 0)]:
        EXTRA.setdefault((ww, sl), []).insert(0, f"s_setprio {pr}")
    for i in range(1, 7):
        for (dw, sl, pr) in PSEG[OPT["pseg"]]:
            EXTRA.setdefault((8 * i + 5 + dw, sl), []).insert(0, f"s_setprio {pr}")
if OPT.get("prio"):
    A(f"""s_cmp_eq_u32 s{sKap}, {OPT["prio"] & 1}
    s_cbranch_scc0 L_np
    s_setprio 1""")
    A.label("L_np")
for W in range(64):
    if W in (24, 48):
        ts(1 if W == 24 else 2, 4)
    window(W)
A(f"""s_nop 0
v_smfmac_f32_32x32x32_bf16 {v(O[1],16)}, {v(Vf[1],4)}, {v(S[3],8)}, v{vIdx}
v_smfmac_f32_32x32x32_bf16 {v(O[1],16)}, {v(Vf[1]+4,4)}, {v(S[3]+8,8)}, v{vIdx}""")
ts(7)

R = S[0]
A(f"""s_cmp_eq_u32 s{sKap}, 0
s_cbranch_scc1 L_p3
s_waitcnt vmcnt(0) lgkmcnt(0)
v_readfirstlane_b32 s{sT0}, v{t2}
s_cmp_eq_u32 s{sT0}, 0
s_cbranch_scc1 L_mwait""")
A.label("L_mgo")
for q in range(2):
    for r in range(0, 16, 2):
        A(f"v_pk_add_f32 {v(O[q]+r,2)}, {v(O[q]+r,2)}, {v(R+16*q+r,2)}")
A.label("L_norm")
rc = [vFl, S[2]]
A(f"""v_mov_b32 v{t0}, v{O[0]+12}
v_mov_b32 v{rc[0]}, v{O[0]+12}
v_mov_b32 v{t1}, v{O[1]+12}
v_mov_b32 v{rc[1]}, v{O[1]+12}
s_add_u32 s{sT0}, s{sOp}, 32768
v_permlane32_swap_b32 v{t0}, v{rc[0]}
v_permlane32_swap_b32 v{t1}, v{rc[1]}
v_subrev_u32 v{t0}, {hex(L_LO)}, v{rc[0]}
v_subrev_u32 v{t1}, {hex(L_LO)}, v{rc[1]}
v_max_u32 v{t0}, v{t0}, v{t1}
v_cmp_lt_u32 vcc, s{sChk}, v{t0}
s_cmp_lg_u64 vcc, 0
s_cbranch_scc1 L_slow
v_rcp_f32 v{rc[0]}, v{rc[0]}
v_rcp_f32 v{rc[1]}, v{rc[1]}""")
for q in range(2):
    po = [pk, pq][q]
    so = [sOp, sT0][q]
    for r in range(0, 16, 2):
        A(f"v_pk_mul_f32 {v(O[q]+r,2)}, {v(O[q]+r,2)}, {v(rc[q],2)} op_sel_hi:[1,0]")
    for r in range(8):
        A(f"v_cvt_pk_bf16_f32 v{po+r}, v{O[q]+2*r}, v{O[q]+2*r+1}")
    for r in (6, 7):
        A(f"v_cndmask_b32 v{po+r}, 0, v{po+r}, s[{sLo}:{sLo+1}]")
    for r in range(8):
        A(f"v_min_u32 v{po+r}, -2, v{po+r}")
    A(f"""buffer_store_dwordx4 {v(po,4)}, v{vL16}, s[{sWS}:{sWS+3}], s{so} offen sc1
    buffer_store_dwordx4 {v(po+4,4)}, v{vL16}, s[{sWS}:{sWS+3}], s{so} offen offset:1024 sc1""")
ts(8)


TILES = list(range(O[0], Of, 4)) + [DEAD, DEAD + 4]
assert len(TILES) >= 42
rx = S[2]
pk2, rb = Q[0], Q[1]
sOk = sDone
OOL = []


def wtile(l, ct):
    return TILES[7 * (l % 6) + ct]


def wtext(l, ct):
    a0, a1, off = (vW0, vW1, l * 12544) if l < 6 else (t1, t2, 0) if l == 6 else (t3, t4, 0)
    d = wtile(l, ct)
    return f"""ds_read_b64_tr_b16 {v(d,2)}, v{a0} offset:{off+32*ct}
    ds_read_b64_tr_b16 {v(d+2,2)}, v{a1} offset:{off+32*ct}"""


A.label("L_p3e")
if OPT["ts"] == 5:
    A("s_mov_b32 s11, 1")
tsd(0)
A(f"s_mov_b32 s{sSpin}, 0x40000")
sSl = 14
vXw = [vTw, vLane, vIdx, t5]
for l in range(8):
    A(f"s_add_u32 s{sSl+l}, s{sOin}, {4096*l}")
A.label("L_p3r")
A(f"""s_mov_b32 s{sTk}, 0
v_add_u32 v{t1}, {6*12544}, v{vW0}
v_add_u32 v{t2}, {6*12544}, v{vW1}
v_add_u32 v{t3}, s{sSp}, v{vW0}
v_add_u32 v{t4}, s{sSp}, v{vW1}
s_waitcnt lgkmcnt(0)""")
for i in range(42):
    if i >= 6 and i % 3 == 0:
        A("s_waitcnt lgkmcnt(8)")
    if i == OPT["pp"]:
        A(POLL)
    A(wtext(i // 7, i % 7))
tsd(1)
A("s_branch L_w1")
A.label("L_w0")
if OPT.get("slp"):
    A(f"s_sleep {OPT['slp']}")
A(POLL)
A.label("L_w1")
A(f"""s_sub_u32 s{sSpin}, s{sSpin}, 1
s_cselect_b32 s{sT0}, 0xff, 0
s_cselect_b32 s{sSpin}, 0, s{sSpin}
s_waitcnt vmcnt(0)
v_cmp_ne_u32 vcc, -1, v{vQm}
s_or_b32 s{sTk}, vcc_lo, s{sT0}
s_andn2_b32 s{sT0}, 0xff, s{sTk}
s_cbranch_scc1 L_w0""")
tsd(9)
for l in range(8):
    A(f"buffer_load_dwordx4 {v(Of+4*l,4)}, v{vOa}, s[{sWS}:{sWS+3}], s{sSl+l} offen sc1")
tsd(7)
A(f"""v_mov_b32 v{vFl}, 1
s_add_u32 s{sT1}, s{sOut}, {8*1792}""")
for ct in range(1, 4):
    A(f"v_xor_b32 v{vXw[ct]}, {32*ct}, v{vTw}")
ORD = [0, 2, 1, 3, 4, 5, 6, 7]
for k, l in enumerate(ORD):
    b0 = Of + 4 * l
    A(f"s_waitcnt vmcnt({7-max(ORD[:k+1])})" + (" lgkmcnt(0)" if l in (0, 1, 6) else ""))
    if k == 0:
        tsd(2)
    for ct in range(7):
        A(f"v_mfma_f32_16x16x32_bf16 {v(acc+4*ct,4)}, {v(wtile(l,ct),4)}, {v(b0,4)}, {'0' if k == 0 else v(acc+4*ct,4)}")
        if l < 2:
            A(wtext(6 + l, ct))
        if ct == 1:
            A(f"v_max3_u32 v{t0}, v{b0}, v{b0+1}, {'0' if k == 0 else f'v{t0}'}")
        if ct == 3:
            A(f"v_max3_u32 v{t0}, v{b0+2}, v{b0+3}, v{t0}")
        if ct == 5 and k == 7:
            A(f"v_cmp_eq_u32 vcc, -1, v{t0}")
A(f"""s_cmp_lg_u64 vcc, 0
s_cbranch_scc1 L_redo""")
A.label("L_good")
OOL.append(f"""L_redo:
s_sub_u32 s{sSpin}, s{sSpin}, 1
s_cbranch_scc0 L_p3r
s_branch L_good""")
tsd(3)
ts(9)
tsa(8)


def p3(kap):
    n = f"k{kap}"
    keep = [0, 1, 2, 3] if kap == 0 else [4, 5, 6]
    send = [4, 5, 6] if kap == 0 else [0, 1, 2, 3]
    wa_, ra_ = (vSn, vRw) if kap == 0 else (vRw, vSn)
    A(f"s_mov_b32 s{sSpin}, 0x400000")
    for i, ct in enumerate(send):
        A(f"ds_write_b128 v{wa_}, {v(acc+4*ct,4)} offset:{1024*i}")
    A(f"ds_write_b32 v{vMf}, v{vFl} offset:{16+16*kap}")
    A.label(f"L_x{n}")
    A(f"ds_read_b32 v{t0}, v{vMf} offset:{32-16*kap}")
    for i in range(len(keep)):
        A(f"ds_read_b128 {v(rx+4*i,4)}, v{ra_} offset:{1024*i}")
    A(f"""s_sub_u32 s{sSpin}, s{sSpin}, 1
    s_cbranch_scc1 L_y{n}
    s_waitcnt lgkmcnt({len(keep)})
    v_readfirstlane_b32 s{sT0}, v{t0}
    s_cmp_eq_u32 s{sT0}, 0
    s_cbranch_scc1 L_xs{n}""")
    OOL.append(f"""L_xs{n}:
    s_sleep {OPT.get("xs", 1)}
    ds_read_b32 v{t0}, v{vMf} offset:{32-16*kap}
    s_sub_u32 s{sSpin}, s{sSpin}, 1
    s_waitcnt lgkmcnt(0)
    s_cbranch_scc1 L_y{n}
    v_readfirstlane_b32 s{sT0}, v{t0}
    s_cmp_eq_u32 s{sT0}, 0
    s_cbranch_scc1 L_xs{n}
    s_branch L_x{n}""")
    A.label(f"L_y{n}")
    tsd(4)
    tsa(9)
    wa = vXw
    for i, ct in enumerate(keep):
        A(f"""s_waitcnt lgkmcnt({len(keep)-1})
        v_pk_add_f32 {v(acc+4*ct,2)}, {v(acc+4*ct,2)}, {v(rx+4*i,2)}
        v_pk_add_f32 {v(acc+4*ct+2,2)}, {v(acc+4*ct+2,2)}, {v(rx+4*i+2,2)}
        v_cvt_pk_bf16_f32 v{pk2+2*i}, v{acc+4*ct}, v{acc+4*ct+1}
        v_cvt_pk_bf16_f32 v{pk2+2*i+1}, v{acc+4*ct+2}, v{acc+4*ct+3}
        ds_write_b64 v{wa[i]}, {v(pk2+2*i,2)}""")
    os_ = vOs if kap == 0 else vOs2
    A(f"""ds_read_b128 {v(rb,4)}, v{vTr}
    ds_read_b128 {v(rb+4,4)}, v{vTr} offset:1024
    s_waitcnt lgkmcnt(1)
    buffer_store_dwordx4 {v(rb,4)}, v{os_}, s[{sOUT}:{sOUT+3}], s{sOut} offen{OSC}
    s_waitcnt lgkmcnt(0)
    buffer_store_dwordx4 {v(rb+4,4)}, v{os_}, s[{sOUT}:{sOUT+3}], s{sT1} offen{OSC}""")


assert Vf[1] == Kf[0] + 24 and O[1] == O[0] + 16
A(f"""s_cmp_eq_u32 s{sKap}, 0
s_cbranch_scc1 L_x0""")
p3(1)
A("s_branch L_noep")
OLDER = "L_p3:\ns_waitcnt lgkmcnt(0)\n" + "\n".join(
    f"ds_write_b128 v{vRw}, {v(O[0]+4*i,4)} offset:{1024*i}" for i in range(8)) + f"""
v_mov_b32 v{t0}, 1
ds_write_b32 v{vMf}, v{t0}
s_setprio {OPT.get("op", 0)}
s_waitcnt vmcnt(0)
s_branch L_p3e"""
OOL.insert(0, OLDER)
A.label("L_x0")
p3(0)
A(f"""s_or_b32 s{sT0}, s{sh}, s{sj}
s_or_b32 s{sT0}, s{sT0}, s{sw}
s_cmp_lg_u32 s{sT0}, 0
s_cbranch_scc1 L_noep
s_add_u32 s{sE}, s{sE}, 1
s_lshl_b32 s{sT0}, s{sb}, 8
s_add_u32 s{sT0}, s{sT0}, {EPOCH_OFF}
v_mov_b32 v{t0}, 0
v_mov_b32 v{t1}, s{sE}
s_mov_b64 exec, 1
buffer_store_dword v{t1}, v{t0}, s[{sWS}:{sWS+3}], s{sT0} offen sc1
s_mov_b64 exec, -1""")
A.label("L_noep")
if OPT.get("padto"):
    A.label("L_pad")
    A(f"""s_sleep 4
    s_memrealtime s[{sRet}:{sRet+1}]
    s_waitcnt lgkmcnt(0)
    s_sub_u32 s{sT0}, s{sRet}, s{sTS}
    s_cmp_lt_u32 s{sT0}, {OPT["padto"]}
    s_cbranch_scc1 L_pad""")
tsd(5)
tsa(10)
if OPT["ts"] == 6:
    A("s_waitcnt lgkmcnt(0)")
    for i, r in enumerate(ASR):
        A(f"v_writelane_b32 v{vTS}, s{r}, {i+1}")
    A(f"""s_sub_u32 s{sRem}, 0x7fffffff, s{sRem}
    v_writelane_b32 v{vTS}, s{sRem}, 13
    v_writelane_b32 v{vTS}, s19, 14""")
if OPT["ts"]:
    A("s_waitcnt vmcnt(0)")
    ts(10)
    tsd(6)
    ts(12, 6)
    A(f"""s_lshl_b32 s{sT0}, s2, 3
    s_add_u32 s{sT0}, s{sT0}, s{sw}
    s_lshl_b32 s{sT0}, s{sT0}, {8 if OPT["ts"] == 5 else 6}
    s_add_u32 s{sT0}, s{sT0}, {TS_OFF}
    s_getreg_b32 s{sT1}, hwreg(HW_REG_XCC_ID)
    {"s_nop 0" if OPT["ts"] == 5 else f"v_writelane_b32 v{vTS}, s{sT1}, 15"}
    v_lshrrev_b32 v{t0}, 2, v{vL16}
    s_mov_b64 exec, {-1 if OPT["ts"] == 5 else "0xffff"}
    buffer_store_dword v{vTS}, v{t0}, s[{sWS}:{sWS+3}], s{sT0} offen""")
    if OPT.get("dbg"):
        A(f"""v_readlane_b32 s{sT0}, v{vTS}, 0
        s_not_b32 s{sT0}, s{sT0}
        v_writelane_b32 v{vTS}, s{sT0}, 15
        s_mov_b32 s{sX}, s22
        s_mov_b32 s{sX+1}, s23
        s_mov_b32 s{sX+2}, 256
        buffer_atomic_umax v{vTS}, v{t0}, s[{sX}:{sX+3}], 0 offen""")
A.label("L_end")
A("s_endpgm")

for x in OOL:
    A(x)
A.label("L_mwait")
A(f"s_mov_b32 s{sSpin}, 0x400000")
A.label("L_mwait1")
A(f"ds_read_b32 v{t2}, v{vMf}")
for i in range(8):
    A(f"ds_read_b128 {v(R+4*i,4)}, v{vRw} offset:{1024*i}")
A(f"""s_sub_u32 s{sSpin}, s{sSpin}, 1
s_waitcnt lgkmcnt(0)
s_cbranch_scc1 L_mgo
v_readfirstlane_b32 s{sT0}, v{t2}
s_cmp_eq_u32 s{sT0}, 0
s_cbranch_scc1 L_mwait1
s_branch L_mgo""")

A.label("L_try")
A(f"""s_waitcnt vmcnt(0)
v_cmp_ne_u32 vcc, s{stag}, v{vFl}
s_cmp_lg_u32 s{sDone}, 0
s_cbranch_scc1 L_try1
s_and_b32 s{sD1}, vcc_lo, 15
s_cbranch_scc0 L_try0""")
poll_issue(15)
A(f"s_setpc_b64 s[{sRet}:{sRet+1}]")
A.label("L_try0")
ts(5)
A(kv_next(0))
for i in range(4):
    A(kv_piece(i))
A(f"""s_mov_b32 s{sDone}, 1
s_branch L_again""")
A.label("L_try1")
A(f"""s_and_b32 s{sD1}, vcc_lo, 0xffff
s_cbranch_scc1 L_again""")
ts(13)
A(kv_next(1))
for i in range(4):
    A(kv_piece(i))
A(f"""s_mov_b32 s{sDone}, 2
s_setpc_b64 s[{sRet}:{sRet+1}]""")
A.label("L_again")
poll_issue(0xffff)
A(f"s_setpc_b64 s[{sRet}:{sRet+1}]")

A.label("L_pollc")
A(f"s_mov_b32 s{sSpin}, 0x40000")
A.label("L_pollc1")
A(f"""buffer_load_dword v{vQm}, v{vPc}, s[{sWS}:{sWS+3}], s{sPc} offen offset:64 sc1
s_sub_u32 s{sSpin}, s{sSpin}, 1
s_cbranch_scc1 L_pollc_done
s_waitcnt vmcnt(0)
v_cmp_ne_u32 vcc, s{stag}, v{vQm}
s_cmp_lg_u64 vcc, 0
s_cbranch_scc1 L_pollc1
s_branch L_pollc_done""")

A.label("L_pollh")
A(f"s_mov_b32 s{sSpin}, 0x40000")
A.label("L_pollh1")
A(poll_text(0x7fff0000).replace('0x7fff0000', '0xffff0000'))
A(f"""s_sub_u32 s{sSpin}, s{sSpin}, 1
s_cbranch_scc1 L_pollh_done
s_waitcnt vmcnt(0)
v_cmp_ne_u32 vcc, s{stag}, v{vFl}
s_and_b32 s{sD1}, vcc_lo, 0xffff0000
s_cbranch_scc1 L_pollh1
s_branch L_pollh_done""")

A.label("L_slow")
Sx, vMn, vAl = S[2], t2, t3
vM = [t4, t5]
A(f"""s_mov_b32 s{sChk}, -1
v_lshlrev_b32 v{vBk}, 3, v{vLane}
v_mov_b32 v{vM[0]}, 0xff7fffff
v_mov_b32 v{vM[1]}, 0xff7fffff
s_mov_b32 s{sT0}, s{sKV}
s_mov_b32 s{sI}, 0""")
for r in range(32):
    A(f"v_mov_b32 v{O[0]+r}, 0")
A.label("L_slow_t")
for i in range(4):
    A(f"buffer_load_dwordx2 {v(Kf[0]+2*i,2)}, v{vBk}, s[{sWS}:{sWS+3}], s{sT0} offen offset:{512*i} sc1")
A(f"""buffer_load_dwordx4 {v(Vf[0],4)}, v{vL16}, s[{sWS}:{sWS+3}], s{sT0} offen offset:2048 sc1
buffer_load_dwordx4 {v(Vf[0]+4,4)}, v{vL16}, s[{sWS}:{sWS+3}], s{sT0} offen offset:3072 sc1
s_add_u32 s{sT0}, s{sT0}, 4096
s_waitcnt vmcnt(0)""")
for q in range(2):
    A(f"""v_mfma_f32_32x32x16_bf16 {v(Sx,16)}, {v(Kf[0],4)}, {v(Q[q],4)}, 0
    v_mfma_f32_32x32x16_bf16 {v(Sx,16)}, {v(Kf[0]+4,4)}, {v(Q[q]+4,4)}, {v(Sx,16)}
    v_max3_f32 v{t0}, v{Sx}, v{Sx+1}, v{vM[q]}""")
    for r in range(2, 16, 2):
        A(f"v_max3_f32 v{t0}, v{Sx+r}, v{Sx+r+1}, v{t0}")
    A(f"""v_mov_b32 v{t1}, v{t0}
    v_permlane32_swap_b32 v{t0}, v{t1}
    v_max_f32 v{vMn}, v{t0}, v{t1}
    v_sub_f32 v{vAl}, v{vM[q]}, v{vMn}
    v_exp_f32 v{vAl}, v{vAl}
    v_mov_b32 v{vM[q]}, v{vMn}""")
    for r in range(16):
        A(f"v_sub_f32 v{Sx+r}, v{Sx+r}, v{vMn}")
    for r in range(16):
        A(f"v_exp_f32 v{Sx+r}, v{Sx+r}")
    for r in range(16):
        A(f"v_mul_f32 v{O[q]+r}, v{vAl}, v{O[q]+r}")
    A(f"""v_smfmac_f32_32x32x32_bf16 {v(O[q],16)}, {v(Vf[0],4)}, {v(Sx,8)}, v{vIdx}
    v_smfmac_f32_32x32x32_bf16 {v(O[q],16)}, {v(Vf[0]+4,4)}, {v(Sx+8,8)}, v{vIdx}""")
A(f"""s_add_u32 s{sI}, s{sI}, 1
s_cmp_lt_u32 s{sI}, 64
s_cbranch_scc1 L_slow_t
s_nop 11
s_branch L_norm""")

n = A.fix_hazards(verbose=bool(OPT.get("v", 0)))
NV = -(-V.hi // 8) * 8
hdr = open("cdna_kernels/" + NAME + ".s.ref").read().split("; Override launch")[0]
out = hdr + f"""; Fused kernel: QKV projection -> softmax attention -> output projection, one workgroup per
; (branch, head, 256-token block).  Generated by gen/gen.py.
; @launch grid=(256,1,1) block=(512,1,1) lds={LDS_BYTES}
.amdgcn_target "amdgcn-amd-amdhsa--gfx950"
.text
.globl {NAME}_kernel
.p2align 8
.type {NAME}_kernel,@function
""" + A.text().replace("CODE_SPAN", "L_slow-L_nopf") + f""".section .rodata,"a"
.p2align 6
.amdhsa_kernel {NAME}_kernel
  .amdhsa_next_free_vgpr {NV}
  .amdhsa_next_free_sgpr {NSGPR}
  .amdhsa_accum_offset {NV}
  .amdhsa_group_segment_fixed_size 0
  .amdhsa_kernarg_size 72
  .amdhsa_user_sgpr_count 2
  .amdhsa_user_sgpr_kernarg_segment_ptr 1
  .amdhsa_system_sgpr_workgroup_id_x 1
.end_amdhsa_kernel
"""
open(sys.argv[1], "w").write(out)
print(f"wrote {sys.argv[1]}: {len(A.lines)} lines, {n} nops inserted, {NV} vgprs", file=sys.stderr)
```

```python
import sys, struct, math
from asmlib import Asm, Alloc, v, s

NAME = "concat_heads__softmax_full_mha__softmax_full_mha__prompt"

OPT = dict(ts=0, force_slow=0, rot=2, map=1, pf=1, full=1, grp=0, per=2, pq=8, tq=6, wq0=17, wqs=2, padg=20, ibar=1, pubw=1, wqpf=6, pseg=2, npro=170, qd=3, pp=24, fw=4, tou=1)
for a in sys.argv[2:]:
    k, val = a.split("=")
    OPT[k] = int(val)

FLAG_OFF = 0xD00000
ES = OPT.get("es", 7)
FS = OPT.get("fs", 16 << ES)
HINT = 0x80000
EPOCH_OFF = 0x10000
TS_OFF = 0x20000
KV_OFF = 0x100000
O_OFF = 0x900000
WS_BYTES = 0x1000000
OOB = 0x40000000

XS = 57344
WQ = 131072
QOFF = 98304
WOB = 66944
WO15 = 32768
MISC = 161280
SND = 16384
LDS_BYTES = 163840

CSCALE = math.log2(math.e) / math.sqrt(28.0)
L_LO = (127 - 60) << 23
L_RANGE = 120 << 23


def f2u(x):
    return struct.unpack("<I", struct.pack("<f", x))[0]


NTX = " nt" if OPT.get("ntx") else ""
NTW = " nt" if OPT.get("ntw") else ""
OSC = ["", " sc1", " nt", " sc0 sc1", " sc1 nt"][OPT.get("osc", 3)]
A = Asm()
sWm, sWm13 = 26, 27
sX, sW, sWS, sWO, sOUT = 28, 32, 36, 40, 44
sw, sb, sh, sj, stag, sE = 48, 49, 50, 51, 52, 53
sCx, sXb, sWb, sMX, sMW, sCw = 54, 55, 56, 57, 58, 59
sT0, sT1, sT2, sT3 = 60, 61, 62, 63
sLo = 64
sLine, sRole = 66, 67
sHo = 10
sWb0, sSp = 12, 13
sLpx = 8
sKV = 68
sMXs, sWq = 69, 70
sI, sRel, sWn, sHH = 71, 72, 73, 74
sSpin = 75
sOt = 76
sWoff = 77
sKap = 78
sFl = 79
sTS = 80
sRet = 82
sDone, sTodo = 84, 85
sOin = 86
sPc = 87
sOut = 88
sChk = 89
sCs = 90
sKVt = 92
sD0, sD1 = 93, 94
sPend, sRem = 95, 96
sOp = 97
sRdy = 98
sHi, sPl, sC0, sMQ = 4, 5, 6, 7
sCq, sNone = 3, 100
NSGPR = 102


def ts(idx, grp=1):
    if OPT.get("padat") == 100 * grp + idx:
        A(f"s_memrealtime s[{sTS}:{sTS+1}]\ns_waitcnt lgkmcnt(0)")
    if not OPT["ts"] or (idx != 0 and OPT["ts"] != grp):
        return
    A(f"""{"s_memtime" if OPT.get("clk") else "s_memrealtime"} s[{sTS}:{sTS+1}]
    s_waitcnt lgkmcnt(0)
    v_writelane_b32 v{vTS}, s{sTS}, {idx}""")


def tsd(code, val=0):
    A(tsdt(code, val))


def tsdt(code, val=0):
    if OPT["ts"] != 5:
        return ""
    return (f"""s_memrealtime s[{sTS}:{sTS+1}]
    s_waitcnt lgkmcnt(0)
    s_lshl_b32 s{sTS}, s{sTS}, 8
    s_or_b32 s{sTS}, s{sTS}, {code << 4}
    s_or_b32 s{sTS}, s{sTS}, {val}
    s_mov_b32 m0, s11
    v_writelane_b32 v{vTS}, s{sTS}, m0
    s_add_u32 s11, s11, 1
    s_min_u32 s11, s11, 63""")


ASR = [20, 22, 54, 56, 58, 68, 66, 72, 90, 26, 6]


def tsa(i):
    if OPT["ts"] == 6:
        A(f"s_memrealtime s[{ASR[i]}:{ASR[i]+1}]")


class Cnt:
    def __init__(self, name, cap):
        self.name, self.cap, self.q = name, cap, []

    def issue(self, tag, n=1):
        self.q += [tag] * n
        assert len(self.q) <= self.cap, (self.name, self.q)

    def wait(self, *tags):
        idx = [i for i, t in enumerate(self.q) if t in tags]
        if idx:
            n = len(self.q) - 1 - idx[-1]
            A(f"s_waitcnt {self.name}({n})")
            self.q = self.q[idx[-1] + 1:]


def lines(text):
    return [x.strip() for x in text.split("\n") if x.strip()]


def emit(lst, n):
    for _ in range(min(n, len(lst))):
        A(lst.pop(0))


V = Alloc(1, 256)
vLane = V()
vTS = V()
vL16 = V()
vIdx = V()
vT = [V() for _ in range(6)]
t0, t1, t2, t3, t4, t5 = vT
vQm = V()
DEAD = V(8)
vQw, vQr, vBase, vCur, vWod, vPl, vPc, vBk = range(DEAD, DEAD + 8)
vOa, vW0, vW1, vSn, vRw, vMf, vTw, vTr, vOs, vOs2, vLp = [V() for _ in range(11)]
vFl = V(2)
m_ph = V.mark()
Xr = V(112)
acc0, acc1 = V(16), V(16)
Wf = V(24)
vXd = [V() for _ in range(4)]
vWd = V()
vWq = V()
vXa = [V() for _ in range(4)]
vWr = [V(), V()]
vWqr = V()
vSt = [V() for _ in range(4)]
vP = [V()]
vPf = V()
vOnes = V(4)
vPd = V(4)
Wq8 = V(24)
vTag = Wq8
V.reset(m_ph)
O = [V(16), V(16)]
Q = [V(8), V(8)]
S = [V(16) for _ in range(4)]
Kf = [V(8), V(8)]
Vf = [V(8), V(8)]
pk, pq = V(8), V(8)
Of = V(32)
acc = V(28)
assert O[0] == Xr

A.label(NAME + "_kernel")
A(f"""s_cmp_ge_u32 s2, 256
s_cbranch_scc1 L_end
s_load_dwordx16 s[8:23], s[0:1], 0
s_load_dwordx2 s[24:25], s[0:1], 64
v_lshrrev_b32 v{t0}, 6, v0
v_and_b32 v{vLane}, 63, v0
v_readfirstlane_b32 s{sw}, v{t0}
v_lshlrev_b32 v{vL16}, 4, v{vLane}""")
if OPT.get("padto"):
    A(f"s_memrealtime s[{sTS}:{sTS+1}]")
if OPT["ts"]:
    A(f"""{"s_memtime" if OPT.get("clk") else "s_memrealtime"} s[{sTS}:{sTS+1}]
    v_mov_b32 v{vTS}, 0""")
if OPT["map"] == 1:
    A(f"""s_and_b32 s{sT0}, s2, 7
    s_lshr_b32 s{sT1}, s2, 3
    s_and_b32 s{sj}, s{sT1}, 7
    s_lshr_b32 s{sT1}, s{sT1}, 3
    s_lshl_b32 s{sT0}, s{sT0}, 2
    s_add_u32 s{sHH}, s{sT0}, s{sT1}""")
elif OPT["map"] == 2:
    A(f"""s_and_b32 s{sT0}, s2, 7
    s_lshr_b32 s{sT1}, s2, 3
    s_and_b32 s{sT2}, s{sT0}, 3
    s_lshl_b32 s{sT2}, s{sT2}, 1
    s_lshr_b32 s{sT3}, s{sT1}, 4
    s_add_u32 s{sj}, s{sT2}, s{sT3}
    s_lshr_b32 s{sT0}, s{sT0}, 2
    s_lshl_b32 s{sT0}, s{sT0}, 4
    s_and_b32 s{sT1}, s{sT1}, 15
    s_add_u32 s{sHH}, s{sT0}, s{sT1}""")
elif OPT["map"] == 3:
    A(f"""s_and_b32 s{sT0}, s2, 7
    s_lshr_b32 s{sT1}, s2, 3
    s_and_b32 s{sT2}, s{sT0}, 1
    s_lshl_b32 s{sT2}, s{sT2}, 2
    s_lshr_b32 s{sT3}, s{sT1}, 3
    s_add_u32 s{sj}, s{sT2}, s{sT3}
    s_lshr_b32 s{sT0}, s{sT0}, 1
    s_lshl_b32 s{sT0}, s{sT0}, 3
    s_and_b32 s{sT1}, s{sT1}, 7
    s_add_u32 s{sHH}, s{sT0}, s{sT1}""")
A(f"""s_lshr_b32 s{sb}, s{sHH}, 4
s_and_b32 s{sh}, s{sHH}, 15
s_lshr_b32 s{sKap}, s{sw}, 2""")
A(f"""s_cmp_gt_u32 s{sh}, 7
s_cselect_b32 s{sRole}, 1, 0
s_cselect_b32 s{sT0}, 16, 1
s_cselect_b32 s{sT1}, 1, 2
s_cselect_b32 s{sT2}, 2, 8
s_cselect_b32 s{sT3}, 8, 16
v_bfe_u32 v{t0}, v{vLane}, 3, 1
v_mul_u32_u24 v{t0}, s{sT0}, v{t0}
v_bfe_u32 v{t1}, v{vLane}, 4, 1
v_mad_u32_u24 v{t0}, v{t1}, s{sT1}, v{t0}
v_lshrrev_b32 v{t1}, 5, v{vLane}
v_lshl_add_u32 v{t0}, v{t1}, 2, v{t0}
v_mul_u32_u24 v{t3}, 896, v{t0}
s_mul_i32 s{sT2}, s{sT2}, 896
s_mul_i32 s{sT3}, s{sT3}, 896
s_sub_u32 s{sT2}, s{sT2}, 1024
s_sub_u32 s{sT3}, s{sT3}, 2048
v_lshrrev_b32 v{t1}, 4, v{vLane}
v_and_b32 v{t2}, 7, v{vLane}
v_xor_b32 v{t1}, v{t1}, v{t2}
v_lshl_add_u32 v{vXd[0]}, v{t1}, 4, v{t3}
v_xor_b32 v{t1}, 4, v{t1}
v_lshl_add_u32 v{t1}, v{t1}, 4, v{t3}
v_add_u32 v{vXd[1]}, s{sT2}, v{t1}
v_add_u32 v{vXd[2]}, s{sT3}, v{vXd[0]}
v_add_u32 v{vXd[3]}, s{sT3}, v{vXd[1]}
s_lshl_b32 s{sT0}, s{sj}, 3
s_add_u32 s{sT0}, s{sT0}, s{sw}
s_mul_i32 s{sXb}, s{sT0}, {32*896}
s_lshl_b32 s{sMX}, s{sw}, 12
s_add_u32 s{sMXs}, s{sMX}, {XS}""")
if OPT["rot"] == 0:
    A(f"s_mov_b32 s{sC0}, 0")
else:
    if OPT["rot"] == 1:
        A(f"s_add_u32 s{sC0}, s{sh}, s{sj}")
    elif OPT["rot"] == 2:
        A(f"""s_mul_i32 s{sC0}, s{sh}, 7
        s_lshr_b32 s{sC0}, s{sC0}, 4
        s_add_u32 s{sC0}, s{sC0}, s{sj}""")
    elif OPT["rot"] == 3:
        A(f"""s_mul_i32 s{sC0}, s{sh}, 7
        s_lshr_b32 s{sC0}, s{sC0}, 4""")
    A(f"""s_mul_i32 s{sT1}, s{sC0}, 37
    s_lshr_b32 s{sT1}, s{sT1}, 8
    s_mul_i32 s{sT1}, s{sT1}, 7
    s_sub_u32 s{sC0}, s{sC0}, s{sT1}""")
if OPT["pf"]:
    A(f"""s_and_b32 s{sT0}, s2, 0xf8
    s_add_u32 s{sT0}, s{sT0}, s{sw}
    s_lshl_b32 s{sT0}, s{sT0}, 7
    s_min_u32 s{sT0}, s{sT0}, CODE_SPAN
    s_getpc_b64 s[{sRet}:{sRet+1}]""")
    A.label("L_nopf")
    A(f"""v_mov_b32 v{t4}, s{sT0}
    global_load_dword v{t5}, v{t4}, s[{sRet}:{sRet+1}]""")
A(f"""s_lshl_b32 s{sCx}, s{sC0}, 7
s_mov_b32 s{sX+2}, {2048*896}
s_mov_b32 s{sX+3}, 0x20000
s_cmp_eq_u32 s{sb}, 0
s_waitcnt lgkmcnt(0)
s_cselect_b32 s{sX}, s8, s14
s_cselect_b32 s{sX+1}, s9, s15
s_cselect_b32 s{sW}, s10, s16
s_cselect_b32 s{sW+1}, s11, s17
s_cselect_b32 s{sWO}, s12, s18
s_cselect_b32 s{sWO+1}, s13, s19""")
if OPT["ts"]:
    A(f"v_writelane_b32 v{vTS}, s{sTS}, 0")
ts(14, 2)


def x_pieces(c):
    p = [f"""s_add_u32 m0, s{sMXs}, {(c % 2) * 32768}
    s_add_u32 s{sD0}, s{sCx}, s{sXb}
    buffer_load_dwordx4 v{vXd[0]}, s[{sX}:{sX+3}], s{sD0} offen{NTX} lds
    s_add_u32 s{sCx}, s{sCx}, 128
    s_cmp_eq_u32 s{sCx}, 896
    s_cselect_b32 s{sCx}, 0, s{sCx}"""]
    for i in range(1, 4):
        p.append(f"buffer_load_dwordx4 v{vXd[i]}, s[{sX}:{sX+3}], s{sD0} offen offset:{1024*i}{NTX} lds")
    return [(x, f"X{c}") for x in p]


def w_piece(it):
    return (f"""s_add_u32 m0, s{sMW}, {it*8192}
    s_add_u32 s{sD1}, s{sCw}, s{sWb}
    buffer_load_dwordx4 v{vWd}, s[{sW}:{sW+3}], s{sD1} offen{NTW} lds
    s_add_u32 s{sCw}, s{sCw}, {64*2688}
    s_cmp_eq_u32 s{sCw}, {448*2688}
    s_cselect_b32 s{sCw}, 0, s{sCw}""", f"W{it}")


def wq_piece(i):
    return (f"""s_add_u32 m0, s{sMQ}, {i*1024}
    s_add_u32 s{sD1}, s{sCq}, s{sWq}
    buffer_load_dwordx4 v{vWq}, s[{sW}:{sW+3}], s{sD1} offen lds
    s_add_u32 s{sCq}, s{sCq}, {16*2688}
    s_cmp_eq_u32 s{sCq}, {448*2688}
    s_cselect_b32 s{sCq}, 0, s{sCq}""", "WQ")


def wq_touch():
    return (f"""s_mov_b64 exec, 0x3fff
    buffer_load_dword v{t5}, v{vPf}, s[{sW}:{sW+3}], 0 offen{NTW}
    s_mov_b64 exec, -1""", "PF")


for p, _ in x_pieces(0):
    A(p)
ts(1, 2)
A(f"""s_mov_b32 s{sW+2}, {448*2688}
s_mov_b32 s{sW+3}, 0x20000
s_cmp_gt_u32 s{sh}, 6
s_subb_u32 s{sLine}, s{sh}, 0
s_cmp_gt_u32 s{sh}, 9
s_subb_u32 s{sLine}, s{sLine}, 0
s_lshl_b32 s{sWb}, s{sLine}, 7
s_cmp_ge_u32 s{sLine}, 7
s_cselect_b32 s{sT0}, 7, 0
s_sub_u32 s{sLine}, s{sLine}, s{sT0}
s_mul_i32 s{sT0}, s{sw}, {8*2688}
s_add_u32 s{sWb}, s{sWb}, s{sT0}
s_add_u32 s{sWb}, s{sWb}, 896
s_mul_i32 s{sCw}, s{sC0}, {64*2688}
s_lshl_b32 s{sMW}, s{sw}, 10
v_lshrrev_b32 v{t0}, 3, v{vLane}
v_mul_u32_u24 v{t0}, 2688, v{t0}
v_bfe_u32 v{t1}, v{vLane}, 4, 1
v_lshlrev_b32 v{t1}, 2, v{t1}
v_xor_b32 v{t1}, v{t1}, v{t2}
v_lshl_add_u32 v{vWd}, v{t1}, 4, v{t0}
s_lshr_b32 s{sNone}, 0x240, s{sh}
s_and_b32 s{sNone}, s{sNone}, 1""")

EARLY = lines(f"""s_lshl_b32 s{sT0}, s{sb}, 8
s_add_u32 s{sT0}, s{sT0}, {EPOCH_OFF}
s_load_dword s{sE}, s[24:25], s{sT0}
v_lshrrev_b32 v{t2}, 5, v{vLane}
v_and_b32 v{t0}, 31, v{vLane}
v_bfe_u32 v{t1}, v{vLane}, 1, 3
v_xor_b32 v{t1}, v{t1}, v{t2}
v_lshlrev_b32 v{t0}, 7, v{t0}
v_add_u32 v{t0}, s{sMXs}, v{t0}""")
for sst in range(4):
    EARLY += lines(f"""v_xor_b32 v{t3}, {2*sst}, v{t1}
    v_lshl_add_u32 v{vXa[sst]}, v{t3}, 4, v{t0}""")
EARLY += lines(f"""v_bfe_u32 v{t1}, v{vLane}, 2, 2
v_lshl_add_u32 v{t0}, v{t2}, 3, v{t1}
v_bfe_u32 v{t3}, v{vLane}, 4, 1
v_and_b32 v{t4}, 3, v{vLane}
v_lshlrev_b32 v{t4}, 3, v{t4}
v_lshl_add_u32 v{t4}, v{t3}, 5, v{t4}
v_lshl_add_u32 v{vWqr}, v{t0}, 6, v{t4}
v_lshl_add_u32 v{t4}, v{t0}, 7, v{t4}
v_lshrrev_b32 v{t1}, 1, v{t1}
v_lshl_add_u32 v{vWr[0]}, v{t1}, 6, v{t4}
v_xor_b32 v{vWr[1]}, 64, v{vWr[0]}
v_and_b32 v{t0}, 48, v{vL16}
v_add_u32 v{t0}, {MISC}, v{t0}
v_mov_b32 v{vPd}, 0
v_mov_b32 v{vPd+1}, 0
v_mov_b32 v{vPd+2}, 0
v_mov_b32 v{vPd+3}, 0
ds_write_b128 v{t0}, {v(vPd,4)}""")

MID = lines(f"""s_lshl_b32 s{sT0}, s{sj}, 3
s_add_u32 s{sT0}, s{sT0}, s{sw}
s_mul_i32 s{sT0}, s{sT0}, {7*2688}
s_mul_i32 s{sT1}, s{sh}, 56
s_add_u32 s{sT0}, s{sT0}, s{sT1}
v_lshrrev_b32 v{t0}, 1, v{vLane}
v_mul_u32_u24 v{t0}, 2688, v{t0}
v_and_b32 v{t1}, 1, v{vLane}
v_mad_u32_u24 v{t0}, v{t1}, 52, v{t0}
v_add_u32 v{vPf}, s{sT0}, v{t0}
s_and_b32 s{sT0}, s{sh}, 1
s_lshl_b32 s{sT0}, s{sT0}, 3
s_add_u32 s{sT0}, s{sT0}, {WQ}
v_add_u32 v{vWqr}, s{sT0}, v{vWqr}
s_mul_i32 s{sWq}, s{sh}, 56
s_and_b32 s{sWq}, s{sWq}, 0xfffffff0
s_and_b32 s{sT0}, s{sw}, 3
s_mul_i32 s{sMQ}, s{sT0}, 7168
s_add_u32 s{sMQ}, s{sMQ}, {WQ}
s_mul_i32 s{sT0}, s{sT0}, 7
s_lshl_b32 s{sT1}, s{sC0}, 2
s_add_u32 s{sT0}, s{sT0}, s{sT1}
s_sub_u32 s{sT1}, s{sT0}, 28
s_min_u32 s{sT0}, s{sT0}, s{sT1}
s_mul_i32 s{sCq}, s{sT0}, {16*2688}
v_lshrrev_b32 v{t0}, 2, v{vLane}
v_mul_u32_u24 v{t0}, 2688, v{t0}
v_and_b32 v{t1}, 3, v{vLane}
v_lshl_add_u32 v{vWq}, v{t1}, 4, v{t0}""")
MID += lines(f"""s_mov_b32 s{sWS}, s24
s_mov_b32 s{sWS+1}, s25
s_mov_b32 s{sWS+2}, {WS_BYTES}
s_mov_b32 s{sWS+3}, 0x20000
s_lshl_b32 s{sKVt}, s{sb}, 22
s_lshl_b32 s{sRel}, s{sj}, 15
s_add_u32 s{sRel}, s{sRel}, s{sMX}
s_add_u32 s{sKVt}, s{sKVt}, s{sRel}
s_add_u32 s{sKVt}, s{sKVt}, {KV_OFF}
s_and_b32 s{sT0}, s{sw}, 3
s_lshl_b32 s{sT0}, s{sT0}, 1
s_lshl_b32 s{sT1}, s{sb}, 3
s_add_u32 s{sT1}, s{sT1}, s{sj}
s_lshl_b32 s{sT1}, s{sT1}, 3
s_add_u32 s{sT0}, s{sT0}, s{sT1}
s_lshl_b32 s{sT0}, s{sT0}, 4
s_add_u32 s{sT0}, s{sT0}, s{sh}
s_lshl_b32 s{sOp}, s{sT0}, 11
s_add_u32 s{sOp}, s{sOp}, {O_OFF}
s_lshl_b32 s{sOt}, s{sKap}, 15
s_add_u32 s{sOt}, s{sOt}, s{sOp}
v_mov_b32 v{vOnes}, -1
v_mov_b32 v{vOnes+1}, -1
v_mov_b32 v{vOnes+2}, -1
v_mov_b32 v{vOnes+3}, -1
s_add_u32 s{sFl}, s{sT1}, s{sw}
s_mul_i32 s{sFl}, s{sFl}, {FS}
s_lshl_b32 s{sT0}, s{sh}, {ES}
s_add_u32 s{sFl}, s{sFl}, s{sT0}
s_add_u32 s{sFl}, s{sFl}, {FLAG_OFF}
s_add_u32 s{sHo}, s{sFl}, {HINT}""")
LATE = lines(f"""s_lshl_b32 s{sPl}, s{sb}, 6
s_and_b32 s{sT1}, s{sw}, 3
s_add_u32 s{sPl}, s{sPl}, s{sT1}
s_mul_i32 s{sPl}, s{sPl}, {FS}
s_add_u32 s{sPl}, s{sPl}, {FLAG_OFF}
s_add_u32 s{sT0}, s{sj}, s{sKap}
s_and_b32 s{sT0}, s{sT0}, 7
s_lshl_b32 s{sRel}, s{sT0}, 15
s_lshl_b32 s{sT1}, s{sT1}, 12
s_add_u32 s{sRel}, s{sRel}, s{sT1}
s_sub_u32 s{sRel}, s{sRel}, 0x10000
v_bfe_u32 v{t3}, v{vLane}, 2, 2
v_lshl_add_u32 v{t3}, v{t3}, 1, s{sT0}
v_and_b32 v{t3}, 7, v{t3}
v_bfe_u32 v{t1}, v{vLane}, 4, 1
v_lshl_add_u32 v{t3}, v{t3}, 1, v{t1}
v_mul_u32_u24 v{t3}, {4*FS}, v{t3}
s_mul_i32 s{sT0}, s{sh}, 28
s_add_u32 s{sT1}, s{sT0}, 27
s_lshr_b32 s{sT0}, s{sT0}, 6
s_lshr_b32 s{sT1}, s{sT1}, 6
s_sub_u32 s{sT1}, s{sT1}, s{sT0}
v_and_b32 v{t0}, 1, v{vLane}
v_mul_u32_u24 v{t0}, s{sT1}, v{t0}
v_add_u32 v{t0}, s{sT0}, v{t0}
v_bfe_u32 v{t1}, v{vLane}, 1, 1
v_mad_u32_u24 v{t0}, v{t1}, 7, v{t0}
v_add_u32 v{t4}, 10, v{t0}
v_lshrrev_b32 v{t4}, 4, v{t4}
v_lshrrev_b32 v{t2}, 3, v{t0}
v_add3_u32 v{t0}, v{t0}, v{t4}, v{t2}
s_sub_u32 s{sT2}, s{sT1}, 1
s_and_b32 s{sT2}, s{sT2}, 0xaaaaaaaa
s_mov_b32 s{sT3}, s{sT2}
v_mad_u32_u24 v{t1}, v{t1}, 3, 6
v_cndmask_b32 v{t0}, v{t0}, v{t1}, s[{sT2}:{sT3}]
v_lshl_add_u32 v{vPl}, v{t0}, {ES}, v{t3}
v_and_b32 v{t2}, 7, v{vLane}
s_lshl_b32 s{sKV}, s{sHH}, 18
s_add_u32 s{sKV}, s{sKV}, {KV_OFF}
s_mov_b32 s{sDone}, 0""")
NPRE = len(LATE)
LATE += lines(f"""s_mov_b32 s{sWO+2}, {448*896}
s_mov_b32 s{sWO+3}, 0x20000
s_mov_b32 s{sOUT}, s20
s_mov_b32 s{sOUT+1}, s21
s_mov_b32 s{sOUT+2}, {2048*1792}
s_mov_b32 s{sOUT+3}, 0x20000
s_mov_b32 s{sLo}, -1
s_mov_b32 s{sLo+1}, 0
s_mov_b32 s{sCs}, {hex(f2u(CSCALE))}
s_mov_b32 s{sCs+1}, {hex(f2u(CSCALE))}
s_mov_b32 s{sChk}, {0 if OPT['force_slow'] else L_RANGE}
s_and_b32 s{sWoff}, s{sh}, 3
s_mul_i32 s{sWoff}, s{sWoff}, 224""")
LATE += lines(f"""s_lshl_b32 s{sT1}, s{sb}, 3
s_add_u32 s{sT1}, s{sT1}, s{sj}
s_lshl_b32 s{sT1}, s{sT1}, 3
s_lshr_b32 s{sT0}, s{sh}, 2
s_bfe_u32 s{sT2}, s{sw}, 0x10001
s_lshl_b32 s{sPc}, s{sT2}, 2
s_add_u32 s{sPc}, s{sPc}, s{sT0}
s_add_u32 s{sPc}, s{sPc}, s{sT1}
s_mul_i32 s{sPc}, s{sPc}, {FS}
s_add_u32 s{sPc}, s{sPc}, {FLAG_OFF + (HINT if OPT['fw'] == 8 else 64)}
s_lshl_b32 s{sT3}, s{sT0}, 1
s_add_u32 s{sT3}, s{sT3}, s{sT2}
s_add_u32 s{sT3}, s{sT3}, s{sT1}
s_lshl_b32 s{sOin}, s{sT3}, 15
s_add_u32 s{sOin}, s{sOin}, {O_OFF}
s_and_b32 s{sT3}, s{sw}, 1
s_lshl_b32 s{sT3}, s{sT3}, 8
s_add_u32 s{sOin}, s{sOin}, s{sT3}
s_lshl_b32 s{sT3}, s{sKap}, 11
s_add_u32 s{sOin}, s{sOin}, s{sT3}""")
LATE += lines(f"""s_lshl_b32 s{sT1}, s{sj}, 2
s_add_u32 s{sT0}, s{sT0}, s{sT1}
s_lshl_b32 s{sT0}, s{sT0}, 2
s_and_b32 s{sT1}, s{sw}, 3
s_add_u32 s{sT0}, s{sT0}, s{sT1}
s_mul_i32 s{sOut}, s{sT0}, {16*1792}
s_mul_i32 s{sT0}, s{sb}, 896
s_add_u32 s{sOut}, s{sOut}, s{sT0}
s_add_u32 s{sOut}, s{sOut}, s{sWoff}
v_mov_b32 v{vIdx}, 0xdddddddd
s_lshl_b32 s{sT0}, s{sw}, 11
s_add_u32 s{sT0}, s{sT0}, {QOFF}
v_and_b32 v{t0}, 1, v{vLane}
v_lshlrev_b32 v{t0}, 4, v{t0}
v_bfe_u32 v{t1}, v{vLane}, 4, 1
v_lshl_add_u32 v{t0}, v{t1}, 3, v{t0}
v_bfe_u32 v{t1}, v{vLane}, 3, 1
v_lshl_add_u32 v{t0}, v{t1}, 1, v{t0}
v_bfe_u32 v{t1}, v{vLane}, 1, 1
v_add_u32 v{t0}, v{t0}, v{t1}
v_and_b32 v{t1}, 0x24, v{vLane}
v_add_u32 v{t0}, v{t0}, v{t1}
v_sub_u32 v{t0}, v{t0}, v{vLane}
v_mul_lo_u32 v{t0}, v{t0}, s{sRole}
v_add_u32 v{t0}, v{t0}, v{vLane}
v_lshl_add_u32 v{vQw}, v{t0}, 4, s{sT0}
s_lshl_b32 s{sT2}, s{sT1}, 12
s_add_u32 s{sT2}, s{sT2}, {QOFF}
v_add_u32 v{vQr}, s{sT2}, v{vL16}
s_lshl_b32 s{sT0}, s{sKap}, 14
v_add_u32 v{vBase}, s{sT0}, v{vL16}
v_add_u32 v{vCur}, 0x10000, v{vBase}
v_lshl_add_u32 v{vBk}, v{vLane}, 3, s{sT0}
s_add_u32 s{sT0}, s{sT1}, 5
s_lshl_b32 s{sT0}, s{sT0}, 13
s_and_b32 s{sT0}, s{sT0}, 0xffff
v_add_u32 v{vRw}, s{sT0}, v{vL16}
s_lshl_b32 s{sT2}, s{sT1}, 2
s_add_u32 s{sT2}, s{sT2}, {MISC}
v_mov_b32 v{vMf}, s{sT2}
s_mul_i32 s{sT2}, s{sT1}, 3072
s_add_u32 s{sT2}, s{sT2}, {SND}
v_add_u32 v{vSn}, s{sT2}, v{vL16}
v_lshrrev_b32 v{t1}, 3, v{vLane}
s_lshl_b32 s{sT2}, s{sKap}, 11
s_add_u32 s{sT0}, s{sT0}, s{sT2}
s_add_u32 s{sT0}, s{sT0}, 4096
v_xor_b32 v{t3}, v{t1}, v{t2}
v_lshlrev_b32 v{t3}, 4, v{t3}
v_lshl_add_u32 v{t3}, v{t1}, 7, v{t3}
v_add_u32 v{vTr}, s{sT0}, v{t3}
v_mul_u32_u24 v{t3}, 1792, v{t1}
v_lshl_add_u32 v{vOs}, v{t2}, 4, v{t3}
v_add_u32 v{t3}, 2, v{t2}
v_lshrrev_b32 v{t3}, 3, v{t3}
v_lshlrev_b32 v{t3}, 30, v{t3}
v_add_u32 v{t3}, 128, v{t3}
v_add_u32 v{vOs2}, v{t3}, v{vOs}
v_and_b32 v{t0}, 15, v{vLane}
v_lshrrev_b32 v{t1}, 4, v{vLane}
v_lshrrev_b32 v{t3}, 1, v{t1}
v_xor_b32 v{t3}, v{t3}, v{t2}
v_lshlrev_b32 v{t3}, 4, v{t3}
v_lshl_add_u32 v{t3}, v{t0}, 7, v{t3}
v_and_b32 v{t4}, 1, v{t1}
v_lshl_add_u32 v{t3}, v{t4}, 3, v{t3}
v_add_u32 v{vTw}, s{sT0}, v{t3}
v_lshlrev_b32 v{vPc}, {ES}, v{t0}
v_lshlrev_b32 v{t2}, 12, v{t2}
v_add_u32 v{vLp}, {3*512+15*16}, v{t2}
v_lshlrev_b32 v{t2}, 9, v{t1}
v_lshl_add_u32 v{vOa}, v{t0}, 4, v{t2}""")
LATE += lines(f"""v_lshrrev_b32 v{t2}, 1, v{t1}
v_lshlrev_b32 v{t2}, 4, v{t2}
v_lshl_add_u32 v{t2}, v{t4}, 2, v{t2}
v_bfe_u32 v{t3}, v{vLane}, 2, 2
v_add_u32 v{t2}, v{t2}, v{t3}
v_mul_u32_u24 v{t2}, 224, v{t2}
v_and_b32 v{t3}, 3, v{vLane}
v_lshl_add_u32 v{t2}, v{t3}, 3, v{t2}
v_add_u32 v{t3}, 1, v{t1}
v_lshrrev_b32 v{t3}, 2, v{t3}
v_mul_u32_u24 v{t3}, {4*224}, v{t3}
v_sub_u32 v{t3}, v{t2}, v{t3}
s_mul_i32 s{sT0}, s{sKap}, 6272
s_add_u32 s{sT0}, s{sT0}, {WOB}
v_add_u32 v{vW0}, s{sT0}, v{t2}
s_add_u32 s{sT0}, s{sT0}, {8*224}
v_add_u32 v{vW1}, s{sT0}, v{t3}
s_mul_i32 s{sSp}, s{sKap}, {(WO15 - WOB - 6272 - 7*12544) & 0xffffffff}
s_add_u32 s{sSp}, s{sSp}, {7*12544}""")
LATE += lines(f"""v_mul_u32_u24 v{t2}, 0x4925, v{vLane}
v_lshrrev_b32 v{t2}, 18, v{t2}
v_mul_u32_u24 v{t3}, 14, v{t2}
v_sub_u32 v{t3}, v{vLane}, v{t3}
v_mul_u32_u24 v{t2}, 896, v{t2}
v_lshl_add_u32 v{vWod}, v{t3}, 4, v{t2}
s_mul_i32 s{sWn}, s{sw}, 3584
s_add_u32 s{sWn}, s{sWn}, s{sWoff}
s_mul_i32 s{sWm}, s{sw}, 896
s_add_u32 s{sWm13}, s{sWm}, {WO15-896}
s_max_u32 s{sT0}, s{sw}, 1
s_sub_u32 s{sT0}, s{sT0}, s{sw}
s_mul_i32 s{sT0}, s{sT0}, {WOB+104*896-(WO15-896)}
s_add_u32 s{sWm13}, s{sWm13}, s{sT0}""")
ENDS = lines(f"""s_mul_i32 s{sT2}, s{sLine}, {16*9363}
s_add_u32 s{sT3}, s{sT2}, {16*9363}
s_lshr_b32 s{sT2}, s{sT2}, 16
s_lshr_b32 s{sT3}, s{sT3}, 16
s_sub_u32 s{sT3}, s{sT3}, s{sT2}
s_lshl_b32 s{sT2}, s{sT2}, 18""")
FK = lines(f"""v_and_b32 v{t0}, 15, v{vLane}
v_lshlrev_b32 v{t0}, 4, v{t0}
v_bfe_u32 v{t1}, v{vLane}, 4, 1
v_lshrrev_b32 v{t4}, 5, v{vLane}
v_lshl_add_u32 v{t1}, v{t1}, 1, v{t4}
s_lshl_b32 s{sT0}, s{sLine}, 4
v_add_u32 v{t1}, s{sT0}, v{t1}""")
for i in range(4):
    FK += lines(f"""v_add_u32 v{t2}, {4*i}, v{t1}
    v_mul_u32_u24 v{t3}, 9363, v{t2}
    v_lshrrev_b32 v{t3}, 16, v{t3}
    v_lshl_add_u32 v{vSt[i]}, v{t3}, 18, v{t0}
    v_mul_u32_u24 v{t3}, 7, v{t3}
    v_sub_u32 v{t2}, v{t2}, v{t3}
    v_lshl_add_u32 v{vSt[i]}, v{t2}, 8, v{vSt[i]}""")
FK += ENDS + lines(f"""s_add_u32 s{sT2}, s{sT2}, {7*256}
v_lshrrev_b32 v{t1}, 4, v{vLane}
v_cmp_gt_u32 vcc, s{sT3}, v{t1}
v_lshl_add_u32 v{t0}, v{t1}, 18, v{t0}
v_add_u32 v{t0}, s{sT2}, v{t0}
v_mov_b32 v{t3}, {OOB}
v_cndmask_b32 v{vP[0]}, v{t3}, v{t0}, vcc""")
FV = lines(f"""v_and_b32 v{t0}, 31, v{vLane}
s_lshl_b32 s{sT0}, s{sLine}, 6
v_add_u32 v{t0}, s{sT0}, v{t0}
v_and_b32 v{t4}, 32, v{vLane}""")
for ct in range(2):
    FV += lines(f"""v_add_u32 v{t2}, {32*ct}, v{t0}
    v_mul_u32_u24 v{t3}, 2341, v{t2}
    v_lshrrev_b32 v{t3}, 16, v{t3}
    v_mul_u32_u24 v{t1}, 28, v{t3}
    v_sub_u32 v{t2}, v{t2}, v{t1}
    v_add_u32 v{t2}, v{t2}, v{t4}
    v_lshlrev_b32 v{t2}, 4, v{t2}
    v_lshl_add_u32 v{t2}, v{t3}, 18, v{t2}
    v_add_u32 v{vSt[2*ct]}, 2048, v{t2}
    v_add_u32 v{vSt[2*ct+1]}, 3072, v{t2}""")
FV += ENDS + lines(f"""s_add_u32 s{sT2}, s{sT2}, {2048+28*16}
v_lshrrev_b32 v{t0}, 4, v{vLane}
v_cmp_gt_u32 vcc, s{sT3}, v{t0}
v_bfe_u32 v{t1}, v{vLane}, 2, 2
v_lshlrev_b32 v{t1}, 9, v{t1}
v_lshl_add_u32 v{t1}, v{t0}, 18, v{t1}
v_and_b32 v{t2}, 3, v{vLane}
v_lshl_add_u32 v{t1}, v{t2}, 4, v{t1}
v_add_u32 v{t1}, s{sT2}, v{t1}
v_mov_b32 v{t3}, {OOB}
v_cndmask_b32 v{vP[0]}, v{t3}, v{t1}, vcc
v_cmp_eq_u32 vcc, 0, v{t2}
v_mov_b32 v{t3}, 0x3f803f80
s_nop 0
v_cndmask_b32 v{vPd}, 0, v{t3}, vcc
v_mov_b32 v{vPd+1}, v{vPd}
v_mov_b32 v{vPd+2}, v{vPd}
v_mov_b32 v{vPd+3}, v{vPd}""")


def st16(data, addr, soff, off=0):
    return (f"buffer_store_dwordx4 {v(data,4)}, v{addr}, s[{sWS}:{sWS+3}], s{soff} offen offset:{off} sc1", "ST")


def st8(data, addr, soff):
    return (f"buffer_store_dwordx2 {v(data,2)}, v{addr}, s[{sWS}:{sWS+3}], s{soff} offen sc1", "ST")


def flag_text(second=False):
    fw = OPT["fw"]
    if fw == 0:
        return f"""s_mov_b64 exec, 1
        buffer_store_dword v{vTag}, v{vL16}, s[{sWS}:{sWS+3}], s{sFl} offen offset:{64 if second else 0} sc1
        s_mov_b64 exec, -1"""
    return f"""s_mov_b64 exec, {(1 << fw) - 1}
    buffer_store_dwordx4 {v(vTag,4)}, v{vL16}, s[{sWS}:{sWS+3}], s{sHo if second and fw == 8 else sFl} offen offset:{64 if second and fw == 4 else 0} sc1
    s_mov_b64 exec, -1"""


def flag_store(vm):
    vm.wait("ST")
    A(flag_text())
    vm.issue("FL")
    ts(4)


def pass1(role):
    vm, lg = Cnt("vmcnt", 63), Cnt("lgkmcnt", 15)
    vm.issue("X0", 4)
    if role != "N":
        for i in range(3):
            vm.issue(f"W{i}")
    vm.issue("X1", 4)
    fill = list(REST) + {"K": list(FK), "V": list(FV), "N": []}[role]

    def dma(p):
        A(p[0])
        vm.issue(p[1])

    def xread(c):
        vm.wait(f"X{c}")
        for st in range(4):
            A(f"ds_read_b128 {v(Xr+16*c+4*st,4)}, v{vXa[st]} offset:{(c % 2) * 32768}")
        lg.issue(f"R{c}", 4)

    def wread(g):
        for ct in range(2):
            for u in range(2):
                A(f"ds_read_b64_tr_b16 {v(Wf+8*(g%3)+4*ct+2*u,2)}, v{vWr[ct]} offset:{g*2048+u*512}")
        lg.issue(f"F{g}", 4)

    xread(0)
    if role == "N":
        emit(fill, len(fill))
        flag_store(vm)
        if OPT["wqpf"]:
            dma(wq_touch())
        for i in range(4):
            A(f"v_mov_b32 v{vSt[i]}, {OOB}")
        for c in range(0, 7):
            if c:
                xread(c)
            lg.wait(f"R{c}")
            if c + 2 <= 6:
                for p in x_pieces(c + 2):
                    dma(p)
        A(f"""s_cmp_eq_u32 s{sKap}, 0
        s_cbranch_scc1 L_nq""")
        for i in range(7):
            dma(wq_piece(i))
        A.label("L_nq")
        return
    slots = {}
    for i, p in enumerate(x_pieces(2)):
        slots[(i // 2, i % 2)] = p
    for i in range(4):
        slots[([2, 2, 5, 5][i], i % 2)] = w_piece(3 + i)
    for c in range(0, 4):
        for i, p in enumerate(x_pieces(c + 3)):
            slots[(4 * c + 3 + i // 2, i % 2)] = p
    slots[(OPT["padg"], 1)] = st16(vPd, vP[0], sKVt)
    if OPT["wqpf"]:
        slots[(OPT["wqpf"], 0)] = wq_touch()
    nf = -(-len(fill) // 32)
    vm.wait("W2")
    ts(3, 2)
    A("s_barrier")
    ts(4, 2)
    wread(0)
    wread(1)

    def step(g):
        c = g // 4
        lg.wait(f"F{g}", f"R{c}")
        if g % 4 == 3:
            lg.wait(f"R{c+1}")
        if g % 4 == 2 and c + 1 <= 6:
            xread(c + 1)
        if g == 10:
            vm.wait("W6")
            A("s_barrier")
        if g % 4 == 0:
            ts(5 + c, 2)
        if g + 2 < 28:
            wread(g + 2)
        for ct in range(2):
            ac = [acc0, acc1][ct]
            wf, xf = v(Wf + 8 * (g % 3) + 4 * ct, 4), v(Xr + 4 * g, 4)
            a_, b_ = (wf, xf) if role == "K" else (xf, wf)
            A(f"v_mfma_f32_32x32x16_bf16 {v(ac,16)}, {a_}, {b_}, {'0' if g == 0 else v(ac,16)}")
            if (g, ct) in slots:
                dma(slots[(g, ct)])
            emit(fill, nf)

    def pack(store):
        for ct in range(2):
            ac = [acc0, acc1][ct]
            pp = Wf + 8 * ct
            for r in range(8):
                A(f"v_cvt_pk_bf16_f32 v{pp+r}, v{ac+2*r}, v{ac+2*r+1}")
                if role == "V" and r % 4 == 3 and store:
                    dma(st16(pp + r - 3, vSt[2 * ct + r // 4], sKVt))
            if role == "K":
                for i in range(2):
                    A(f"v_permlane16_swap_b32 v{pp+4*i}, v{pp+4*i+2}")
                    A(f"v_permlane16_swap_b32 v{pp+4*i+1}, v{pp+4*i+3}")
                    if store:
                        dma(st16(pp + 4 * i, vSt[2 * ct + i], sKVt))

    G0 = 17
    for g in range(G0):
        step(g)
    assert not fill
    A(f"""s_cmp_lg_u32 s{sKap}, 0
    s_cbranch_scc1 L_young{role}""")
    save = (list(vm.q), list(lg.q))
    for g in range(G0, 28):
        step(g)
    ts(2)
    ts(12, 2)
    pack(True)
    ts(1)
    for i in range(4):
        A(f"v_mov_b32 v{vSt[i]}, {OOB}")
    A("s_branch L_q")
    A.label(f"L_young{role}")
    vm.q, lg.q = save
    for i in range(7):
        k = OPT["wq0"] * 2 + OPT["wqs"] * i
        while (k // 2, k % 2) in slots:
            k += 1
        slots[(k // 2, k % 2)] = wq_piece(i)
    for g in range(G0, 28):
        step(g)
    ts(2)
    ts(12, 2)
    pack(False)
    A("s_branch L_q")


A(f"s_cbranch_scc1 L_now")
for i in range(3):
    A(w_piece(i)[0])
A.label("L_now")
ALLS = EARLY + MID + LATE
npro = max(len(EARLY), min(len(ALLS), OPT["npro"]))
PRO, REST = ALLS[:npro], ALLS[npro:]
PRO += lines(f"""s_waitcnt lgkmcnt(0)
s_mul_i32 s{stag}, s{sE}, 0x9e3779b1
s_add_u32 s{stag}, s{stag}, 0x7f4a7c15
v_mov_b32 v{vTag}, s{stag}
v_mov_b32 v{vTag+1}, s{stag}
v_mov_b32 v{vTag+2}, s{stag}
v_mov_b32 v{vTag+3}, s{stag}""")
emit(PRO, 12)
if OPT["ibar"]:
    A("s_barrier")
for p in x_pieces(1):
    A(p[0])
    emit(PRO, 12)
emit(PRO, len(PRO))
ts(2, 2)
A(f"""s_cmp_eq_u32 s{sNone}, 1
s_cbranch_scc1 L_roleN
s_cmp_eq_u32 s{sRole}, 1
s_cbranch_scc1 L_roleV""")
pass1("K")
A.label("L_roleV")
pass1("V")
A.label("L_roleN")
pass1("N")
A.label("L_q")

LATE = []
A(f"""s_waitcnt vmcnt(0)
s_cmp_lg_u32 s{sKap}, 0
s_cbranch_scc1 L_noflag""")
flag_store(Cnt("vmcnt", 63))
A.label("L_noflag")
A("s_barrier")
ts(3)
ts(13, 2)
ZACC = []
for r in range(32):
    LATE.append(f"v_mov_b32 v{O[0]+r}, 0")


def poll_text(mask):
    return f"""s_mov_b64 exec, {mask if mask < 64 else hex(mask)}
    buffer_load_dword v{vFl}, v{vPl}, s[{sWS}:{sWS+3}], s{sPl} offen sc1
    s_mov_b64 exec, -1"""


def poll_issue(mask=15):
    A(poll_text(mask))


ntry = [0]


def hook_try(level=2):
    ntry[0] += 1
    A(f"""s_cmp_ge_u32 s{sDone}, {level}
    s_cbranch_scc1 L_skip{ntry[0]}
    s_call_b64 s[{sRet}:{sRet+1}], L_try""")
    A.label(f"L_skip{ntry[0]}")


def spin(level, name):
    A(f"s_mov_b32 s{sSpin}, 0x40000")
    A.label(name)
    A(f"""s_cmp_ge_u32 s{sDone}, {level}
    s_cbranch_scc1 {name}_done
    s_call_b64 s[{sRet}:{sRet+1}], L_try
    s_sub_u32 s{sSpin}, s{sSpin}, 1
    s_cbranch_scc0 {name}""")
    A.label(name + "_done")


accQ = acc0
QD = OPT["qd"]
Wg = acc1 if QD == 3 else Wq8
lg = Cnt("lgkmcnt", 15)


def qread(g):
    for u in range(2):
        A(f"ds_read_b64_tr_b16 {v(Wg+4*(g%(QD+1))+2*u,2)}, v{vWqr} offset:{g*1024+u*256}")
    lg.issue(f"F{g}", 2)


for g in range(QD):
    qread(g)
for g in range(28):
    lg.wait(f"F{g}")
    A(f"v_mfma_f32_32x32x16_bf16 {v(accQ,16)}, {v(Wg+4*(g%(QD+1)),4)}, {v(Xr+4*g,4)}, {'0' if g == 0 else v(accQ,16)}")
    if g + QD < 28:
        qread(g + QD)
    emit(LATE if g >= 9 else ZACC, 2 if g >= 9 else 4)
    if g == OPT["pq"]:
        poll_issue()
    if g > OPT["pq"] and (g - OPT["pq"]) % OPT["tq"] == 0:
        hook_try(1)
assert not LATE
pqq = Wf + 16
for r in range(8):
    A(f"v_pk_mul_f32 {v(accQ+2*r,2)}, {v(accQ+2*r,2)}, s[{sCs}:{sCs+1}]")
for r in range(8):
    A(f"v_cvt_pk_bf16_f32 v{pqq+r}, v{accQ+2*r}, v{accQ+2*r+1}")
for r in (6, 7):
    A(f"v_cndmask_b32 v{pqq+r}, 0, v{pqq+r}, s[{sLo}:{sLo+1}]")
A(f"""ds_write_b128 v{vQw}, {v(pqq,4)}
ds_write_b128 v{vQw}, {v(pqq+4,4)} offset:1024""")
ts(11)
spin(1, "L_spin0")
A("""s_waitcnt vmcnt(1) lgkmcnt(0)
s_barrier""")
ts(12)

A(f"""ds_read_b128 {v(Q[0],4)}, v{vQr}
ds_read2st64_b64 {v(Kf[0],4)}, v{vBk} offset0:64 offset1:65
ds_read_b128 {v(Q[0]+4,4)}, v{vQr} offset:1024
ds_read2st64_b64 {v(Kf[0]+4,4)}, v{vBk} offset0:66 offset1:67
ds_read_b128 {v(Q[1],4)}, v{vQr} offset:2048
ds_read_b128 {v(Q[1]+4,4)}, v{vQr} offset:3072
ds_read2st64_b64 {v(Kf[1],4)}, v{vBk} offset0:72 offset1:73
ds_read2st64_b64 {v(Kf[1]+4,4)}, v{vBk} offset0:74 offset1:75
ds_read_b128 {v(Vf[0],4)}, v{vBase} offset:34816
ds_read_b128 {v(Vf[0]+4,4)}, v{vBase} offset:35840
s_waitcnt lgkmcnt(6)
v_mfma_f32_32x32x16_bf16 {v(S[0],16)}, {v(Kf[0],4)}, {v(Q[0],4)}, 0
v_mfma_f32_32x32x16_bf16 {v(S[0],16)}, {v(Kf[0]+4,4)}, {v(Q[0]+4,4)}, {v(S[0],16)}
s_waitcnt lgkmcnt(4)""")

POS = [32768, 0, 65536]


def kv_addr(blk, t, off):
    p = POS[blk % 3] + t * 4096 + off
    return (vCur, p - 65536) if POS[blk % 3] >= 65536 else (vBase, p)


def kv_next(st):
    pos = POS[st % 3]
    return f"""s_add_u32 s{sRel}, s{sRel}, {0x14000 if st == 4 else 0x10000}
    s_and_b32 s{sRel}, s{sRel}, 0x3ffff
    s_add_u32 m0, s{sMX}, {pos}
    s_add_u32 s{sD0}, s{sRel}, s{sKV}"""


def kv_piece(i):
    return f"buffer_load_dwordx4 v{vL16}, s[{sWS}:{sWS+3}], s{sD0} offen offset:{1024*i} sc1 lds"


def wo_piece(r):
    m = f"s_mov_b32 m0, s{sWm13}" if r == 13 else f"s_add_u32 m0, s{sWm}, {WOB + 8*r*896}"
    return f"""{m}
    s_add_u32 s{sD1}, s{sWn}, {8*r*3584}
    buffer_load_dwordx4 v{vWod}, s[{sWO}:{sWO+3}], s{sD1} offen lds"""


EXTRA = {}
AFTER = {}


def extra(w_, sl, text):
    EXTRA.setdefault((w_, sl), []).append(text)


def window(W):
    blk, u = divmod(W, 8)
    un, up = u + 1, u - 1
    tn, qn = un // 2, un % 2
    tp, qp = up // 2, up % 2
    Sc, Sn, Sp = S[u % 4], S[un % 4], S[up % 4]
    Kn, Vp = Kf[tn % 2], Vf[tp % 2]
    m = [f"v_mfma_f32_32x32x16_bf16 {v(Sn,16)}, {v(Kn,4)}, {v(Q[qn],4)}, 0",
         f"v_mfma_f32_32x32x16_bf16 {v(Sn,16)}, {v(Kn+4,4)}, {v(Q[qn]+4,4)}, {v(Sn,16)}",
         f"v_smfmac_f32_32x32x32_bf16 {v(O[qp],16)}, {v(Vp,4)}, {v(Sp,8)}, v{vIdx}",
         f"v_smfmac_f32_32x32x32_bf16 {v(O[qp],16)}, {v(Vp+4,4)}, {v(Sp+8,8)}, v{vIdx}"]
    if W == 0:
        m[2] = m[3] = None
    if W == 63:
        m = [m[2], None, m[3], None]
    mem = [[], [], [], []]
    pre = [[], [], [], []]

    def rd(dst, T, off):
        if off < 2048:
            o = (POS[(blk + T // 4) % 3] + (T % 4) * 4096 + off) // 512
            return f"ds_read2st64_b64 {v(dst,4)}, v{vBk} offset0:{o} offset1:{o+1}"
        a, o = kv_addr(blk + T // 4, T % 4, off)
        return f"ds_read_b128 {v(dst,4)}, v{a} offset:{o}"
    if u % 2 == 1:
        if not (u == 5 and blk > 0):
            A("s_waitcnt lgkmcnt(0)")
        tt = tn
        Kd, Vd = Kf[(tt + 1) % 2], Vf[tt % 2]
        rk = [rd(Kd, tt + 1, 0), rd(Kd + 4, tt + 1, 1024)]
        rv = [rd(Vd, tt, 2048), rd(Vd + 4, tt, 3072)]
        if W in (5, 61):
            mem[2].append(rv[0])
            mem[3].append(rv[1])
        elif W == 63:
            pass
        elif W == 7:
            A(rd(Kn, 4, 0))
            A(rd(Kn + 4, 4, 1024))
            m = [m[2], m[3], m[0], m[1]]
            mem[0] += [rk[0], rk[1]]
            mem[1] += [rv[0], rv[1]]
            pre[2].append("s_waitcnt lgkmcnt(4)")
        else:
            mem[0].append(rk[0])
            mem[1].append(rk[1])
            mem[2].append(rv[0])
            mem[3].append(rv[1])
    for q in range(4):
        for x in pre[q]:
            A(x)
        if m[q]:
            A(m[q])
        for x in mem[q] + (EXTRA.get((W, q), []) if not (OPT.get("nodma") and 23 <= W < 53) else []):
            A(x)
        for e in range(4):
            A(f"v_exp_f32 v{Sc+4*q+e}, v{Sc+4*q+e}")
    for hk in AFTER.get(W, []):
        hk()


def hook_bar0():
    spin(2, "L_spin1")
    A("""s_waitcnt vmcnt(0)
    s_barrier""")
    ts(6)


def mk_bar(n):
    def f():
        A(f"""s_waitcnt vmcnt({n}) lgkmcnt(0)""")
        if not OPT.get("nobar"):
            A("s_barrier")
    return f


def hook_pollc():
    A(f"""v_cmp_ne_u32 vcc, s{stag}, v{vQm}
    s_cmp_lg_u64 vcc, 0
    s_cbranch_scc1 L_pollc""")
    A.label("L_pollc_done")


hook_try()
for u in range(0, 6):
    AFTER.setdefault(u, []).append(hook_try)
AFTER.setdefault(6, []).append(hook_bar0)
extra(7, 2, kv_next(2) + "\n" + kv_piece(0))
extra(7, 3, kv_piece(1))
extra(8, 1, kv_piece(2))
extra(8, 3, kv_piece(3))
for i in range(4):
    extra(OPT["pubw"] + i // 2, [1, 3][i % 2], st16(Wf + 4 * i, vSt[i], sKVt)[0])
extra(10, 0, st16(vOnes, vL16, sOt)[0])
extra(10, 2, st16(vOnes, vL16, sOt, 1024)[0])
extra(8, 0, flag_text())
extra(30, 1, flag_text(True))
extra(17, 1, poll_text(0x7fff0000).replace("0x7fff0000", "0xffff0000"))


def hook_pollh():
    A(f"""v_cmp_ne_u32 vcc, s{stag}, v{vFl}
    s_and_b32 s{sD1}, vcc_lo, 0xffff0000
    s_cbranch_scc1 L_pollh""")
    A.label("L_pollh_done")


if OPT.get("tou"):
    sel = f"""v_mov_b32 v{t1}, v{vOs}
    s_cmp_eq_u32 s{sKap}, 0
    s_cbranch_scc1 L_tou
    v_mov_b32 v{t1}, v{vOs2}
    L_tou:
    s_add_u32 s{sT1}, s{sOut}, {8*1792}
    """
    if OPT["tou"] == 1:
        ops = [f"buffer_load_dword v{t2}, v{t1}, s[{sOUT}:{sOUT+3}], s{x} offen" for x in (sOut, sT1)]
    else:
        ops = [f"buffer_store_dwordx4 {v(vOnes,4)}, v{t1}, s[{sOUT}:{sOUT+3}], s{x} offen{OSC}" for x in (sOut, sT1)]
    extra(29, 1, sel + ops[0])
    extra(29, 3, ops[1])
wo_early = list(range(5, 13))
for i in range(1, 8):
    nwo = 2 if i == 1 else 0
    if i >= 2 and wo_early:
        for sl in (0, 2):
            extra(8 * i + 2, sl, wo_piece(wo_early.pop(0)))
            nwo += 1
    AFTER.setdefault(8 * i + 4, []).append(mk_bar(nwo))
    if i <= 5:
        extra(8 * i + 6, 0, kv_next(i + 2) + "\n" + kv_piece(0))
        extra(8 * i + 6, 2, kv_piece(1))
        extra(8 * i + 8, 0, kv_piece(2))
        extra(8 * i + 8, 2, kv_piece(3))
assert not wo_early
for k, r in enumerate([0, 1, 2, 3, 4, 13]):
    extra([54, 54, 55, 56, 56, 57][k], [0, 2, 1, 0, 2, 1][k], wo_piece(r))
extra(53, 1, f"buffer_load_dword v{vQm}, v{vPc}, s[{sWS}:{sWS+3}], s{sPc} offen sc1")
AFTER[60].append(hook_pollc)
sTk, sAv = sTodo, sRem


def oload(l):
    return f"""s_add_u32 s{sT0}, s{sOin}, {l*4096}
    buffer_load_dwordx4 {v(Of+4*l,4)}, v{vOa}, s[{sWS}:{sWS+3}], s{sT0} offen sc1"""


def cload(l):
    return f"""s_bitcmp1_b32 s{sAv}, {l}
    s_cselect_b64 exec, -1, 0
    {oload(l)}"""


POLL = f"""s_andn2_b32 exec_lo, 0xff, s{sTk}
    s_mov_b32 exec_hi, 0
    buffer_load_dword v{vQm}, v{vLp}, s[{sWS}:{sWS+3}], s{sOin} offen sc1
    s_mov_b64 exec, -1"""
extra(63, 1, f"ds_read_b32 v{t2}, v{vMf}")
for i in range(8):
    extra(63, 1 + i // 3, f"ds_read_b128 {v(S[0]+4*i,4)}, v{vRw} offset:{1024*i}")


def hook_epoch():
    A(f"""s_or_b32 s{sT0}, s{sh}, s{sj}
    s_or_b32 s{sT0}, s{sT0}, s{sw}
    s_cbranch_scc0 L_epoch""")
    A.label("L_epd")


AFTER[60].append(hook_epoch)


def hook_prio():
    A(f"""s_setprio 1
    s_cmp_lg_u32 s{sKap}, 0
    s_cbranch_scc1 L_pr
    s_setprio 2""")
    A.label("L_pr")


AFTER[60].append(hook_prio)
AFTER[20].append(hook_pollh)
PSEG = {1: [(0, 0, 3), (3, 0, 2), (6, 0, 1), (7, 2, 0)], 2: [(0, 0, 3), (4, 0, 2), (6, 2, 1), (7, 3, 0)],
        3: [(0, 0, 1), (7, 2, 0)], 4: [(0, 0, 3), (2, 0, 2), (4, 0, 1), (6, 0, 0)], 5: [(0, 0, 1), (7, 0, 0)],
        6: [(0, 0, 2), (5, 0, 1), (7, 2, 0)]}
if OPT.get("pseg"):
    for (ww, sl, pr) in [(0, 0, 3), (3, 0, 2), (5, 2, 1), (6, 3, 0), (7, 0, 3), (9, 0, 2), (11, 2, 1), (12, 3, 0)]:
        EXTRA.setdefault((ww, sl), []).insert(0, f"s_setprio {pr}")
    for i in range(1, 7):
        for (dw, sl, pr) in PSEG[OPT["pseg"]]:
            EXTRA.setdefault((8 * i + 5 + dw, sl), []).insert(0, f"s_setprio {pr}")
if OPT.get("prio"):
    A(f"""s_cmp_eq_u32 s{sKap}, {OPT["prio"] & 1}
    s_cbranch_scc0 L_np
    s_setprio 1""")
    A.label("L_np")
for W in range(64):
    if W in (24, 48):
        ts(1 if W == 24 else 2, 4)
    window(W)
A(f"""s_nop 0
v_smfmac_f32_32x32x32_bf16 {v(O[1],16)}, {v(Vf[1],4)}, {v(S[3],8)}, v{vIdx}
v_smfmac_f32_32x32x32_bf16 {v(O[1],16)}, {v(Vf[1]+4,4)}, {v(S[3]+8,8)}, v{vIdx}""")
ts(7)

R = S[0]
A(f"""s_cmp_eq_u32 s{sKap}, 0
s_cbranch_scc1 L_p3
s_waitcnt vmcnt(0) lgkmcnt(0)
v_readfirstlane_b32 s{sT0}, v{t2}
s_cmp_eq_u32 s{sT0}, 0
s_cbranch_scc1 L_mwait""")
A.label("L_mgo")
for q in range(2):
    for r in range(0, 16, 2):
        A(f"v_pk_add_f32 {v(O[q]+r,2)}, {v(O[q]+r,2)}, {v(R+16*q+r,2)}")
A.label("L_norm")
rc = [vFl, S[2]]
A(f"""v_mov_b32 v{t0}, v{O[0]+12}
v_mov_b32 v{rc[0]}, v{O[0]+12}
v_mov_b32 v{t1}, v{O[1]+12}
v_mov_b32 v{rc[1]}, v{O[1]+12}
s_add_u32 s{sT0}, s{sOp}, 32768
v_permlane32_swap_b32 v{t0}, v{rc[0]}
v_permlane32_swap_b32 v{t1}, v{rc[1]}
v_subrev_u32 v{t0}, {hex(L_LO)}, v{rc[0]}
v_subrev_u32 v{t1}, {hex(L_LO)}, v{rc[1]}
v_max_u32 v{t0}, v{t0}, v{t1}
v_cmp_lt_u32 vcc, s{sChk}, v{t0}
s_cmp_lg_u64 vcc, 0
s_cbranch_scc1 L_slow
v_rcp_f32 v{rc[0]}, v{rc[0]}
v_rcp_f32 v{rc[1]}, v{rc[1]}""")
for q in range(2):
    po = [pk, pq][q]
    so = [sOp, sT0][q]
    for r in range(0, 16, 2):
        A(f"v_pk_mul_f32 {v(O[q]+r,2)}, {v(O[q]+r,2)}, {v(rc[q],2)} op_sel_hi:[1,0]")
    for r in range(8):
        A(f"v_cvt_pk_bf16_f32 v{po+r}, v{O[q]+2*r}, v{O[q]+2*r+1}")
    for r in (6, 7):
        A(f"v_cndmask_b32 v{po+r}, 0, v{po+r}, s[{sLo}:{sLo+1}]")
    for r in range(8):
        A(f"v_min_u32 v{po+r}, -2, v{po+r}")
    A(f"""buffer_store_dwordx4 {v(po,4)}, v{vL16}, s[{sWS}:{sWS+3}], s{so} offen sc1
    buffer_store_dwordx4 {v(po+4,4)}, v{vL16}, s[{sWS}:{sWS+3}], s{so} offen offset:1024 sc1""")
ts(8)


TILES = list(range(O[0], Of, 4)) + [DEAD, DEAD + 4]
assert len(TILES) >= 42
rx = S[2]
pk2, rb = Q[0], Q[1]
sOk = sDone
OOL = []


def wtile(l, ct):
    return TILES[7 * (l % 6) + ct]


def wtext(l, ct):
    a0, a1, off = (vW0, vW1, l * 12544) if l < 6 else (t1, t2, 0) if l == 6 else (t3, t4, 0)
    d = wtile(l, ct)
    return f"""ds_read_b64_tr_b16 {v(d,2)}, v{a0} offset:{off+32*ct}
    ds_read_b64_tr_b16 {v(d+2,2)}, v{a1} offset:{off+32*ct}"""


A.label("L_p3e")
if OPT["ts"] == 5:
    A("s_mov_b32 s11, 1")
tsd(0)
A(f"s_mov_b32 s{sSpin}, 0x40000")
sSl = 14
vXw = [vTw, vLane, vIdx, t5]
for l in range(8):
    A(f"s_add_u32 s{sSl+l}, s{sOin}, {4096*l}")
A.label("L_p3r")
A(f"""s_mov_b32 s{sTk}, 0
v_add_u32 v{t1}, {6*12544}, v{vW0}
v_add_u32 v{t2}, {6*12544}, v{vW1}
v_add_u32 v{t3}, s{sSp}, v{vW0}
v_add_u32 v{t4}, s{sSp}, v{vW1}
s_waitcnt lgkmcnt(0)""")
for i in range(42):
    if i >= 6 and i % 3 == 0:
        A("s_waitcnt lgkmcnt(8)")
    if i == OPT["pp"]:
        A(POLL)
    A(wtext(i // 7, i % 7))
tsd(1)
A("s_branch L_w1")
A.label("L_w0")
if OPT.get("slp"):
    A(f"s_sleep {OPT['slp']}")
A(POLL)
A.label("L_w1")
A(f"""s_sub_u32 s{sSpin}, s{sSpin}, 1
s_cselect_b32 s{sT0}, 0xff, 0
s_cselect_b32 s{sSpin}, 0, s{sSpin}
s_waitcnt vmcnt(0)
v_cmp_ne_u32 vcc, -1, v{vQm}
s_or_b32 s{sTk}, vcc_lo, s{sT0}
s_andn2_b32 s{sT0}, 0xff, s{sTk}
s_cbranch_scc1 L_w0""")
tsd(9)
for l in range(8):
    A(f"buffer_load_dwordx4 {v(Of+4*l,4)}, v{vOa}, s[{sWS}:{sWS+3}], s{sSl+l} offen sc1")
tsd(7)
A(f"""v_mov_b32 v{vFl}, 1
s_add_u32 s{sT1}, s{sOut}, {8*1792}""")
for ct in range(1, 4):
    A(f"v_xor_b32 v{vXw[ct]}, {32*ct}, v{vTw}")
ORD = [0, 2, 1, 3, 4, 5, 6, 7]
for k, l in enumerate(ORD):
    b0 = Of + 4 * l
    A(f"s_waitcnt vmcnt({7-max(ORD[:k+1])})" + (" lgkmcnt(0)" if l in (0, 1, 6) else ""))
    if k == 0:
        tsd(2)
    for ct in range(7):
        A(f"v_mfma_f32_16x16x32_bf16 {v(acc+4*ct,4)}, {v(wtile(l,ct),4)}, {v(b0,4)}, {'0' if k == 0 else v(acc+4*ct,4)}")
        if l < 2:
            A(wtext(6 + l, ct))
        if ct == 1:
            A(f"v_max3_u32 v{t0}, v{b0}, v{b0+1}, {'0' if k == 0 else f'v{t0}'}")
        if ct == 3:
            A(f"v_max3_u32 v{t0}, v{b0+2}, v{b0+3}, v{t0}")
        if ct == 5 and k == 7:
            A(f"v_cmp_eq_u32 vcc, -1, v{t0}")
A(f"""s_cmp_lg_u64 vcc, 0
s_cbranch_scc1 L_redo""")
A.label("L_good")
OOL.append(f"""L_redo:
s_sub_u32 s{sSpin}, s{sSpin}, 1
s_cbranch_scc0 L_p3r
s_branch L_good""")
tsd(3)
ts(9)
tsa(8)


def p3(kap):
    n = f"k{kap}"
    keep = [0, 1, 2, 3] if kap == 0 else [4, 5, 6]
    send = [4, 5, 6] if kap == 0 else [0, 1, 2, 3]
    wa_, ra_ = (vSn, vRw) if kap == 0 else (vRw, vSn)
    A(f"s_mov_b32 s{sSpin}, 0x400000")
    for i, ct in enumerate(send):
        A(f"ds_write_b128 v{wa_}, {v(acc+4*ct,4)} offset:{1024*i}")
    A(f"ds_write_b32 v{vMf}, v{vFl} offset:{16+16*kap}")
    A.label(f"L_x{n}")
    A(f"ds_read_b32 v{t0}, v{vMf} offset:{32-16*kap}")
    for i in range(len(keep)):
        A(f"ds_read_b128 {v(rx+4*i,4)}, v{ra_} offset:{1024*i}")
    A(f"""s_sub_u32 s{sSpin}, s{sSpin}, 1
    s_cbranch_scc1 L_y{n}
    s_waitcnt lgkmcnt({len(keep)})
    v_readfirstlane_b32 s{sT0}, v{t0}
    s_cmp_eq_u32 s{sT0}, 0
    s_cbranch_scc1 L_xs{n}""")
    OOL.append(f"""L_xs{n}:
    s_sleep {OPT.get("xs", 1)}
    ds_read_b32 v{t0}, v{vMf} offset:{32-16*kap}
    s_sub_u32 s{sSpin}, s{sSpin}, 1
    s_waitcnt lgkmcnt(0)
    s_cbranch_scc1 L_y{n}
    v_readfirstlane_b32 s{sT0}, v{t0}
    s_cmp_eq_u32 s{sT0}, 0
    s_cbranch_scc1 L_xs{n}
    s_branch L_x{n}""")
    A.label(f"L_y{n}")
    tsd(4)
    tsa(9)
    wa = vXw
    for i, ct in enumerate(keep):
        A(f"""s_waitcnt lgkmcnt({len(keep)-1})
        v_pk_add_f32 {v(acc+4*ct,2)}, {v(acc+4*ct,2)}, {v(rx+4*i,2)}
        v_pk_add_f32 {v(acc+4*ct+2,2)}, {v(acc+4*ct+2,2)}, {v(rx+4*i+2,2)}
        v_cvt_pk_bf16_f32 v{pk2+2*i}, v{acc+4*ct}, v{acc+4*ct+1}
        v_cvt_pk_bf16_f32 v{pk2+2*i+1}, v{acc+4*ct+2}, v{acc+4*ct+3}
        ds_write_b64 v{wa[i]}, {v(pk2+2*i,2)}""")
    os_ = vOs if kap == 0 else vOs2
    A(f"""ds_read_b128 {v(rb,4)}, v{vTr}
    ds_read_b128 {v(rb+4,4)}, v{vTr} offset:1024
    s_waitcnt lgkmcnt(1)
    buffer_store_dwordx4 {v(rb,4)}, v{os_}, s[{sOUT}:{sOUT+3}], s{sOut} offen{OSC}
    s_waitcnt lgkmcnt(0)
    buffer_store_dwordx4 {v(rb+4,4)}, v{os_}, s[{sOUT}:{sOUT+3}], s{sT1} offen{OSC}""")


assert Vf[1] == Kf[0] + 24 and O[1] == O[0] + 16
A(f"""s_cmp_eq_u32 s{sKap}, 0
s_cbranch_scc1 L_x0""")
p3(1)
A("s_branch L_noep")
OLDER = "L_p3:\ns_waitcnt lgkmcnt(0)\n" + "\n".join(
    f"ds_write_b128 v{vRw}, {v(O[0]+4*i,4)} offset:{1024*i}" for i in range(8)) + f"""
v_mov_b32 v{t0}, 1
ds_write_b32 v{vMf}, v{t0}
s_setprio {OPT.get("op", 0)}
s_waitcnt vmcnt(0)
s_branch L_p3e"""
OOL.insert(0, OLDER)
A.label("L_x0")
p3(0)
A.label("L_noep")
if OPT.get("padto"):
    A.label("L_pad")
    A(f"""s_sleep 4
    s_memrealtime s[{sRet}:{sRet+1}]
    s_waitcnt lgkmcnt(0)
    s_sub_u32 s{sT0}, s{sRet}, s{sTS}
    s_cmp_lt_u32 s{sT0}, {OPT["padto"]}
    s_cbranch_scc1 L_pad""")
tsd(5)
tsa(10)
if OPT["ts"] == 6:
    A("s_waitcnt lgkmcnt(0)")
    for i, r in enumerate(ASR):
        A(f"v_writelane_b32 v{vTS}, s{r}, {i+1}")
    A(f"""s_sub_u32 s{sRem}, 0x7fffffff, s{sRem}
    v_writelane_b32 v{vTS}, s{sRem}, 13
    v_writelane_b32 v{vTS}, s19, 14""")
if OPT["ts"]:
    A("s_waitcnt vmcnt(0)")
    ts(10)
    tsd(6)
    ts(12, 6)
    A(f"""s_lshl_b32 s{sT0}, s2, 3
    s_add_u32 s{sT0}, s{sT0}, s{sw}
    s_lshl_b32 s{sT0}, s{sT0}, {8 if OPT["ts"] == 5 else 6}
    s_add_u32 s{sT0}, s{sT0}, {TS_OFF}
    s_getreg_b32 s{sT1}, hwreg(HW_REG_XCC_ID)
    {"s_nop 0" if OPT["ts"] == 5 else f"v_writelane_b32 v{vTS}, s{sT1}, 15"}
    v_lshrrev_b32 v{t0}, 2, v{vL16}
    s_mov_b64 exec, {-1 if OPT["ts"] == 5 else "0xffff"}
    buffer_store_dword v{vTS}, v{t0}, s[{sWS}:{sWS+3}], s{sT0} offen""")
    if OPT.get("dbg"):
        A(f"""v_readlane_b32 s{sT0}, v{vTS}, 0
        s_not_b32 s{sT0}, s{sT0}
        v_writelane_b32 v{vTS}, s{sT0}, 15
        s_mov_b32 s{sX}, s22
        s_mov_b32 s{sX+1}, s23
        s_mov_b32 s{sX+2}, 256
        buffer_atomic_umax v{vTS}, v{t0}, s[{sX}:{sX+3}], 0 offen""")
A.label("L_end")
A("s_endpgm")

for x in OOL:
    A(x)
A.label("L_epoch")
A(f"""s_add_u32 s{sE}, s{sE}, 1
s_lshl_b32 s{sT0}, s{sb}, 8
s_add_u32 s{sT0}, s{sT0}, {EPOCH_OFF}
v_mov_b32 v{t1}, s{sE}
s_mov_b64 exec, 1
buffer_store_dword v{t1}, v{vL16}, s[{sWS}:{sWS+3}], s{sT0} offen sc1
s_mov_b64 exec, -1
s_branch L_epd""")
A.label("L_mwait")
A(f"s_mov_b32 s{sSpin}, 0x400000")
A.label("L_mwait1")
A(f"ds_read_b32 v{t2}, v{vMf}")
for i in range(8):
    A(f"ds_read_b128 {v(R+4*i,4)}, v{vRw} offset:{1024*i}")
A(f"""s_sub_u32 s{sSpin}, s{sSpin}, 1
s_waitcnt lgkmcnt(0)
s_cbranch_scc1 L_mgo
v_readfirstlane_b32 s{sT0}, v{t2}
s_cmp_eq_u32 s{sT0}, 0
s_cbranch_scc1 L_mwait1
s_branch L_mgo""")

A.label("L_try")
A(f"""s_waitcnt vmcnt(0)
v_cmp_ne_u32 vcc, s{stag}, v{vFl}
s_cmp_lg_u32 s{sDone}, 0
s_cbranch_scc1 L_try1
s_and_b32 s{sD1}, vcc_lo, 15
s_cbranch_scc0 L_try0""")
poll_issue(15)
A(f"s_setpc_b64 s[{sRet}:{sRet+1}]")
A.label("L_try0")
ts(5)
A(kv_next(0))
for i in range(4):
    A(kv_piece(i))
A(f"""s_mov_b32 s{sDone}, 1
s_branch L_again""")
A.label("L_try1")
A(f"""s_and_b32 s{sD1}, vcc_lo, 0xffff
s_cbranch_scc1 L_again""")
ts(13)
A(kv_next(1))
for i in range(4):
    A(kv_piece(i))
A(f"""s_mov_b32 s{sDone}, 2
s_setpc_b64 s[{sRet}:{sRet+1}]""")
A.label("L_again")
poll_issue(0xffff)
A(f"s_setpc_b64 s[{sRet}:{sRet+1}]")

A.label("L_pollc")
A(f"s_mov_b32 s{sSpin}, 0x40000")
A.label("L_pollc1")
A(f"""buffer_load_dword v{vQm}, v{vPc}, s[{sWS}:{sWS+3}], s{sPc} offen sc1
s_sub_u32 s{sSpin}, s{sSpin}, 1
s_cbranch_scc1 L_pollc_done
s_waitcnt vmcnt(0)
v_cmp_ne_u32 vcc, s{stag}, v{vQm}
s_cmp_lg_u64 vcc, 0
s_cbranch_scc1 L_pollc1
s_branch L_pollc_done""")

A.label("L_pollh")
A(f"s_mov_b32 s{sSpin}, 0x40000")
A.label("L_pollh1")
A(poll_text(0x7fff0000).replace('0x7fff0000', '0xffff0000'))
A(f"""s_sub_u32 s{sSpin}, s{sSpin}, 1
s_cbranch_scc1 L_pollh_done
s_waitcnt vmcnt(0)
v_cmp_ne_u32 vcc, s{stag}, v{vFl}
s_and_b32 s{sD1}, vcc_lo, 0xffff0000
s_cbranch_scc1 L_pollh1
s_branch L_pollh_done""")

A.label("L_slow")
Sx, vMn, vAl = S[2], t2, t3
vM = [t4, t5]
A(f"""s_mov_b32 s{sChk}, -1
v_lshlrev_b32 v{vBk}, 3, v{vLane}
v_mov_b32 v{vM[0]}, 0xff7fffff
v_mov_b32 v{vM[1]}, 0xff7fffff
s_mov_b32 s{sT0}, s{sKV}
s_mov_b32 s{sI}, 0""")
for r in range(32):
    A(f"v_mov_b32 v{O[0]+r}, 0")
A.label("L_slow_t")
for i in range(4):
    A(f"buffer_load_dwordx2 {v(Kf[0]+2*i,2)}, v{vBk}, s[{sWS}:{sWS+3}], s{sT0} offen offset:{512*i} sc1")
A(f"""buffer_load_dwordx4 {v(Vf[0],4)}, v{vL16}, s[{sWS}:{sWS+3}], s{sT0} offen offset:2048 sc1
buffer_load_dwordx4 {v(Vf[0]+4,4)}, v{vL16}, s[{sWS}:{sWS+3}], s{sT0} offen offset:3072 sc1
s_add_u32 s{sT0}, s{sT0}, 4096
s_waitcnt vmcnt(0)""")
for q in range(2):
    A(f"""v_mfma_f32_32x32x16_bf16 {v(Sx,16)}, {v(Kf[0],4)}, {v(Q[q],4)}, 0
    v_mfma_f32_32x32x16_bf16 {v(Sx,16)}, {v(Kf[0]+4,4)}, {v(Q[q]+4,4)}, {v(Sx,16)}
    v_max3_f32 v{t0}, v{Sx}, v{Sx+1}, v{vM[q]}""")
    for r in range(2, 16, 2):
        A(f"v_max3_f32 v{t0}, v{Sx+r}, v{Sx+r+1}, v{t0}")
    A(f"""v_mov_b32 v{t1}, v{t0}
    v_permlane32_swap_b32 v{t0}, v{t1}
    v_max_f32 v{vMn}, v{t0}, v{t1}
    v_sub_f32 v{vAl}, v{vM[q]}, v{vMn}
    v_exp_f32 v{vAl}, v{vAl}
    v_mov_b32 v{vM[q]}, v{vMn}""")
    for r in range(16):
        A(f"v_sub_f32 v{Sx+r}, v{Sx+r}, v{vMn}")
    for r in range(16):
        A(f"v_exp_f32 v{Sx+r}, v{Sx+r}")
    for r in range(16):
        A(f"v_mul_f32 v{O[q]+r}, v{vAl}, v{O[q]+r}")
    A(f"""v_smfmac_f32_32x32x32_bf16 {v(O[q],16)}, {v(Vf[0],4)}, {v(Sx,8)}, v{vIdx}
    v_smfmac_f32_32x32x32_bf16 {v(O[q],16)}, {v(Vf[0]+4,4)}, {v(Sx+8,8)}, v{vIdx}""")
A(f"""s_add_u32 s{sI}, s{sI}, 1
s_cmp_lt_u32 s{sI}, 64
s_cbranch_scc1 L_slow_t
s_nop 11
s_branch L_norm""")

n = A.fix_hazards(verbose=bool(OPT.get("v", 0)))
NV = -(-V.hi // 8) * 8
hdr = open("cdna_kernels/" + NAME + ".s.ref").read().split("; Override launch")[0]
out = hdr + f"""; Fused kernel: QKV projection -> softmax attention -> output projection, one workgroup per
; (branch, head, 256-token block).  Generated by gen/gen.py.
; @launch grid=(256,1,1) block=(512,1,1) lds={LDS_BYTES}
.amdgcn_target "amdgcn-amd-amdhsa--gfx950"
.text
.globl {NAME}_kernel
.p2align 8
.type {NAME}_kernel,@function
""" + A.text().replace("CODE_SPAN", "L_slow-L_nopf") + f""".section .rodata,"a"
.p2align 6
.amdhsa_kernel {NAME}_kernel
  .amdhsa_next_free_vgpr {NV}
  .amdhsa_next_free_sgpr {NSGPR}
  .amdhsa_accum_offset {NV}
  .amdhsa_group_segment_fixed_size 0
  .amdhsa_kernarg_size 72
  .amdhsa_user_sgpr_count 2
  .amdhsa_user_sgpr_kernarg_segment_ptr 1
  .amdhsa_system_sgpr_workgroup_id_x 1
.end_amdhsa_kernel
"""
open(sys.argv[1], "w").write(out)
print(f"wrote {sys.argv[1]}: {len(A.lines)} lines, {n} nops inserted, {NV} vgprs", file=sys.stderr)
```

```python
import sys, struct, math
from asmlib import Asm, Alloc, v, s

NAME = "concat_heads__softmax_full_mha__softmax_full_mha__prompt"

OPT = dict(ts=0, force_slow=0, rot=2, map=1, pf=1, pq=14, tq=6, fq=0, padg=14, pubw=1, pseg=2, npro=0, pp=24, tou=1,
           osc=0, nw0=4, na=2, n1=2, cg=23, xl=4, wqe=0, wqd=2, wqf=0, nb=10, lf=2, yp=0)
for a in sys.argv[2:]:
    k, val = a.split("=")
    OPT[k] = int(val)

FLAG_OFF = 0xD00000
ES = OPT.get("es", 7)
FS = OPT.get("fs", 16 << ES)
HINT = 0x80000
EPOCH_OFF = 0x10000
TS_OFF = 0x20000
KV_OFF = 0x100000
O_OFF = 0x900000
WS_BYTES = 0x1000000
OOB = 0x40000000

XS = 32768
WL = 98304
WQ = 0
QOLD = 155648
WOB = 66944
WO15 = 32768
MISC = 161280
SND = 16384
LDS_BYTES = 163840

CSCALE = math.log2(math.e) / math.sqrt(28.0)
L_LO = (127 - 60) << 23
L_RANGE = 120 << 23


def f2u(x):
    return struct.unpack("<I", struct.pack("<f", x))[0]


NTX = " nt" if OPT.get("ntx") else ""
NTW = " nt" if OPT.get("ntw") else ""
OSC = ["", " sc1", " nt", " sc0 sc1", " sc1 nt"][OPT.get("osc", 3)]
A = Asm()
sWm, sWm13 = 26, 27
sX, sW, sWS, sWO, sOUT = 28, 32, 36, 40, 44
sw, sb, sh, sj, stag, sE = 48, 49, 50, 51, 52, 53
sCx, sXb, sWb, sMX, sMW, sCw = 54, 55, 56, 57, 58, 59
sT0, sT1, sT2, sT3 = 60, 61, 62, 63
sLo = 64
sLine, sRole = 66, 67
sHo = 10
sWb0, sSp = 12, 13
sLpx = 8
sKV = 68
sMXs, sWq = 69, 70
sI, sRel, sWn, sHH = 71, 72, 73, 74
sSpin = 75
sOt = 76
sWoff = 77
sKap = 78
sFl = 79
sTS = 80
sRet = 82
sDone, sTodo = 84, 85
sOin = 86
sPc = 87
sOut = 88
sChk = 89
sCs = 90
sKVt = 92
sD0, sD1 = 93, 94
sPend, sRem = 95, 96
sOp = 97
sRdy = 98
sHi, sPl, sC0, sMQ = 4, 5, 6, 7
sCq, sNone = 3, 100
NSGPR = 102


def ts(idx, grp=1):
    if OPT.get("padat") == 100 * grp + idx:
        A(f"s_memrealtime s[{sTS}:{sTS+1}]\ns_waitcnt lgkmcnt(0)")
    if not OPT["ts"] or (idx != 0 and OPT["ts"] != grp):
        return
    A(f"""{"s_memtime" if OPT.get("clk") else "s_memrealtime"} s[{sTS}:{sTS+1}]
    s_waitcnt lgkmcnt(0)
    v_writelane_b32 v{vTS}, s{sTS}, {idx}""")


def tsd(code, val=0):
    A(tsdt(code, val))


def tsdt(code, val=0):
    if OPT["ts"] != 5:
        return ""
    return (f"""s_memrealtime s[{sTS}:{sTS+1}]
    s_waitcnt lgkmcnt(0)
    s_lshl_b32 s{sTS}, s{sTS}, 8
    s_or_b32 s{sTS}, s{sTS}, {code << 4}
    s_or_b32 s{sTS}, s{sTS}, {val}
    s_mov_b32 m0, s11
    v_writelane_b32 v{vTS}, s{sTS}, m0
    s_add_u32 s11, s11, 1
    s_min_u32 s11, s11, 63""")


ASR = [20, 22, 54, 56, 58, 68, 66, 72, 90, 26, 6]


def tsa(i):
    if OPT["ts"] == 6:
        A(f"s_memrealtime s[{ASR[i]}:{ASR[i]+1}]")


class Cnt:
    def __init__(self, name, cap):
        self.name, self.cap, self.q = name, cap, []

    def room(self):
        if len(self.q) >= self.cap:
            A(f"s_waitcnt {self.name}({self.cap - 4})")
            self.q = self.q[len(self.q) - (self.cap - 4):]

    def issue(self, tag, n=1):
        self.q += [tag] * n
        assert len(self.q) <= self.cap, (self.name, self.q)

    def wait(self, *tags):
        idx = [i for i, t in enumerate(self.q) if t in tags]
        if idx:
            n = len(self.q) - 1 - idx[-1]
            A(f"s_waitcnt {self.name}({n})")
            self.q = self.q[idx[-1] + 1:]


def lines(text):
    return [x.strip() for x in text.split("\n") if x.strip()]


def emit(lst, n):
    for _ in range(min(n, len(lst))):
        A(lst.pop(0))


V = Alloc(1, 256)
vLane = V()
vTS = V()
vL16 = V()
vIdx = V()
vT = [V() for _ in range(6)]
t0, t1, t2, t3, t4, t5 = vT
vQm = V()
DEAD = V(8)
vQw, vQr, vBase, vCur, vWod, vPl, vPc, vBk = range(DEAD, DEAD + 8)
vOa, vW0, vW1, vSn, vRw, vMf, vTw, vTr, vOs, vOs2, vLp = [V() for _ in range(11)]
vTag = V()
vFl = V(2)
m_ph = V.mark()
Xr = V(112)
acc0, acc1 = V(16), V(16)
Wf = V(24)
accQ = V(16)
Wg = V(12)
vXd = [V() for _ in range(4)]
vWd, vWd2 = V(), V()
vWq = V()
vXa = [V() for _ in range(4)]
vWr = [V(), V()]
vWqr = V()
vSt = [V() for _ in range(4)]
vP = [V()]
vPd = V(4)
vOnes = accQ
V.reset(m_ph)
O = [V(16), V(16)]
Q = [V(8), V(8)]
S = [V(16) for _ in range(4)]
Kf = [V(8), V(8)]
Vf = [V(8), V(8)]
pk, pq = V(8), V(8)
Of = V(32)
acc = V(28)
assert O[0] == Xr

A.label(NAME + "_kernel")
A(f"""s_cmp_ge_u32 s2, 256
s_cbranch_scc1 L_end
s_load_dwordx16 s[8:23], s[0:1], 0
s_load_dwordx2 s[24:25], s[0:1], 64
v_lshrrev_b32 v{t0}, 6, v0
v_and_b32 v{vLane}, 63, v0
v_readfirstlane_b32 s{sw}, v{t0}
v_lshlrev_b32 v{vL16}, 4, v{vLane}""")
if OPT.get("padto"):
    A(f"s_memrealtime s[{sTS}:{sTS+1}]")
if OPT["ts"]:
    A(f"""{"s_memtime" if OPT.get("clk") else "s_memrealtime"} s[{sTS}:{sTS+1}]
    v_mov_b32 v{vTS}, 0""")
if OPT["map"] == 1:
    A(f"""s_and_b32 s{sT0}, s2, 7
    s_lshr_b32 s{sT1}, s2, 3
    s_and_b32 s{sj}, s{sT1}, 7
    s_lshr_b32 s{sT1}, s{sT1}, 3
    s_lshl_b32 s{sT0}, s{sT0}, 2
    s_add_u32 s{sHH}, s{sT0}, s{sT1}""")
elif OPT["map"] == 2:
    A(f"""s_and_b32 s{sT0}, s2, 7
    s_lshr_b32 s{sT1}, s2, 3
    s_and_b32 s{sT2}, s{sT0}, 3
    s_lshl_b32 s{sT2}, s{sT2}, 1
    s_lshr_b32 s{sT3}, s{sT1}, 4
    s_add_u32 s{sj}, s{sT2}, s{sT3}
    s_lshr_b32 s{sT0}, s{sT0}, 2
    s_lshl_b32 s{sT0}, s{sT0}, 4
    s_and_b32 s{sT1}, s{sT1}, 15
    s_add_u32 s{sHH}, s{sT0}, s{sT1}""")
elif OPT["map"] == 3:
    A(f"""s_and_b32 s{sT0}, s2, 7
    s_lshr_b32 s{sT1}, s2, 3
    s_and_b32 s{sT2}, s{sT0}, 1
    s_lshl_b32 s{sT2}, s{sT2}, 2
    s_lshr_b32 s{sT3}, s{sT1}, 3
    s_add_u32 s{sj}, s{sT2}, s{sT3}
    s_lshr_b32 s{sT0}, s{sT0}, 1
    s_lshl_b32 s{sT0}, s{sT0}, 3
    s_and_b32 s{sT1}, s{sT1}, 7
    s_add_u32 s{sHH}, s{sT0}, s{sT1}""")
A(f"""s_lshr_b32 s{sb}, s{sHH}, 4
s_and_b32 s{sh}, s{sHH}, 15
s_lshr_b32 s{sKap}, s{sw}, 2""")
A(f"""s_cmp_gt_u32 s{sh}, 7
s_cselect_b32 s{sRole}, 1, 0
s_cselect_b32 s{sT0}, 16, 1
s_cselect_b32 s{sT1}, 1, 2
s_cselect_b32 s{sT2}, 2, 8
s_cselect_b32 s{sT3}, 8, 16
v_bfe_u32 v{t0}, v{vLane}, 3, 1
v_mul_u32_u24 v{t0}, s{sT0}, v{t0}
v_bfe_u32 v{t1}, v{vLane}, 4, 1
v_mad_u32_u24 v{t0}, v{t1}, s{sT1}, v{t0}
v_lshrrev_b32 v{t1}, 5, v{vLane}
v_lshl_add_u32 v{t0}, v{t1}, 2, v{t0}
v_mul_u32_u24 v{t3}, 896, v{t0}
s_mul_i32 s{sT2}, s{sT2}, 896
s_mul_i32 s{sT3}, s{sT3}, 896
s_sub_u32 s{sT2}, s{sT2}, 1024
s_sub_u32 s{sT3}, s{sT3}, 2048
v_lshrrev_b32 v{t1}, 4, v{vLane}
v_and_b32 v{t2}, 7, v{vLane}
v_xor_b32 v{t1}, v{t1}, v{t2}
v_lshl_add_u32 v{vXd[0]}, v{t1}, 4, v{t3}
v_xor_b32 v{t1}, 4, v{t1}
v_lshl_add_u32 v{t1}, v{t1}, 4, v{t3}
v_add_u32 v{vXd[1]}, s{sT2}, v{t1}
v_add_u32 v{vXd[2]}, s{sT3}, v{vXd[0]}
v_add_u32 v{vXd[3]}, s{sT3}, v{vXd[1]}
s_lshl_b32 s{sT0}, s{sj}, 3
s_add_u32 s{sT0}, s{sT0}, s{sw}
s_mul_i32 s{sXb}, s{sT0}, {32*896}
s_lshl_b32 s{sMX}, s{sw}, 12
s_lshl_b32 s{sT0}, s{sKap}, 14
s_add_u32 s{sMXs}, s{sMX}, s{sT0}
s_add_u32 s{sMXs}, s{sMXs}, {XS}""")
if OPT["rot"] == 0:
    A(f"s_mov_b32 s{sC0}, 0")
else:
    if OPT["rot"] == 1:
        A(f"s_add_u32 s{sC0}, s{sh}, s{sj}")
    elif OPT["rot"] == 2:
        A(f"""s_mul_i32 s{sC0}, s{sh}, 7
        s_lshr_b32 s{sC0}, s{sC0}, 4
        s_add_u32 s{sC0}, s{sC0}, s{sj}""")
    elif OPT["rot"] == 3:
        A(f"""s_mul_i32 s{sC0}, s{sh}, 7
        s_lshr_b32 s{sC0}, s{sC0}, 4""")
    A(f"""s_mul_i32 s{sT1}, s{sC0}, 37
    s_lshr_b32 s{sT1}, s{sT1}, 8
    s_mul_i32 s{sT1}, s{sT1}, 7
    s_sub_u32 s{sC0}, s{sC0}, s{sT1}""")
if OPT["pf"]:
    A(f"""s_and_b32 s{sT0}, s2, 0xf8
    s_add_u32 s{sT0}, s{sT0}, s{sw}
    s_lshl_b32 s{sT0}, s{sT0}, 7
    s_min_u32 s{sT0}, s{sT0}, CODE_SPAN
    s_getpc_b64 s[{sRet}:{sRet+1}]""")
    A.label("L_nopf")
    A(f"""v_mov_b32 v{t4}, s{sT0}
    global_load_dword v{t5}, v{t4}, s[{sRet}:{sRet+1}]""")
A(f"""s_lshl_b32 s{sCx}, s{sC0}, 7
s_mov_b32 s{sX+2}, {2048*896}
s_mov_b32 s{sX+3}, 0x20000
s_cmp_eq_u32 s{sb}, 0
s_waitcnt lgkmcnt(0)
s_cselect_b32 s{sX}, s8, s14
s_cselect_b32 s{sX+1}, s9, s15
s_cselect_b32 s{sW}, s10, s16
s_cselect_b32 s{sW+1}, s11, s17
s_cselect_b32 s{sWO}, s12, s18
s_cselect_b32 s{sWO+1}, s13, s19""")
if OPT["ts"]:
    A(f"v_writelane_b32 v{vTS}, s{sTS}, 0")
ts(14, 2)


def x_pieces(c):
    p = [f"""s_add_u32 m0, s{sMXs}, {(c % 2) * 16384}
    s_add_u32 s{sD0}, s{sCx}, s{sXb}
    buffer_load_dwordx4 v{vXd[0]}, s[{sX}:{sX+3}], s{sD0} offen{NTX} lds
    s_add_u32 s{sCx}, s{sCx}, 128
    s_cmp_eq_u32 s{sCx}, 896
    s_cselect_b32 s{sCx}, 0, s{sCx}"""]
    for i in range(1, 4):
        p.append(f"buffer_load_dwordx4 v{vXd[i]}, s[{sX}:{sX+3}], s{sD0} offen offset:{1024*i}{NTX} lds")
    return [(x, f"X{c}") for x in p]


def w_pieces(it):
    return [(f"""s_add_u32 m0, s{sMW}, {it*8192}
    s_add_u32 s{sD1}, s{sCw}, s{sWb}
    buffer_load_dwordx4 v{vWd}, s[{sW}:{sW+3}], s{sD1} offen lds
    s_add_u32 s{sCw}, s{sCw}, {64*2688}
    s_cmp_eq_u32 s{sCw}, {448*2688}
    s_cselect_b32 s{sCw}, 0, s{sCw}""", f"W{it}"),
            (f"buffer_load_dwordx4 v{vWd2}, s[{sW}:{sW+3}], s{sD1} offen offset:1024 lds", f"W{it}")]


def wq_piece(i):
    return (f"""s_add_u32 m0, s{sMQ}, {i*1024}
    s_add_u32 s{sD1}, s{sCq}, s{sWq}
    buffer_load_dwordx4 v{vWq}, s[{sW}:{sW+3}], s{sD1} offen lds
    s_add_u32 s{sCq}, s{sCq}, {16*2688}
    s_cmp_eq_u32 s{sCq}, {448*2688}
    s_cselect_b32 s{sCq}, 0, s{sCq}""", "WQ")


A(f"""s_lshr_b32 s{sNone}, 0x240, s{sh}
s_and_b32 s{sNone}, s{sNone}, 1
s_cmp_gt_u32 s{sKap}, s{sNone}
s_cbranch_scc1 L_nox""")
for p, _ in x_pieces(0) + x_pieces(1):
    A(p)
A.label("L_nox")
ts(1, 2)
A(f"""s_mov_b32 s{sW+2}, {448*2688}
s_mov_b32 s{sW+3}, 0x20000
s_cmp_gt_u32 s{sh}, 6
s_subb_u32 s{sLine}, s{sh}, 0
s_cmp_gt_u32 s{sh}, 9
s_subb_u32 s{sLine}, s{sLine}, 0
s_lshl_b32 s{sWb}, s{sLine}, 7
s_cmp_ge_u32 s{sLine}, 7
s_cselect_b32 s{sT0}, 7, 0
s_sub_u32 s{sLine}, s{sLine}, s{sT0}
s_and_b32 s{sT1}, s{sw}, 3
s_mul_i32 s{sT0}, s{sT1}, {16*2688}
s_add_u32 s{sWb}, s{sWb}, s{sT0}
s_add_u32 s{sWb}, s{sWb}, 896
s_mul_i32 s{sCw}, s{sC0}, {64*2688}
s_lshl_b32 s{sMW}, s{sT1}, 11
s_add_u32 s{sMW}, s{sMW}, {WL}
v_lshrrev_b32 v{t0}, 3, v{vLane}
v_mul_u32_u24 v{t0}, 2688, v{t0}
v_bfe_u32 v{t1}, v{vLane}, 4, 1
v_lshlrev_b32 v{t1}, 2, v{t1}
v_xor_b32 v{t1}, v{t1}, v{t2}
v_lshl_add_u32 v{vWd}, v{t1}, 4, v{t0}
v_add_u32 v{vWd2}, {8*2688-1024}, v{vWd}
s_cmp_le_u32 s{sKap}, s{sNone}
s_cbranch_scc1 L_now""")
NW0 = OPT["nw0"]
for it in range(NW0):
    for p, _ in w_pieces(it):
        A(p)
A.label("L_now")

EARLY = lines(f"""s_lshl_b32 s{sT0}, s{sb}, 8
s_add_u32 s{sT0}, s{sT0}, {EPOCH_OFF}
s_load_dword s{sE}, s[24:25], s{sT0}
v_lshrrev_b32 v{t2}, 5, v{vLane}
v_and_b32 v{t0}, 31, v{vLane}
v_bfe_u32 v{t1}, v{vLane}, 1, 3
v_xor_b32 v{t1}, v{t1}, v{t2}
v_lshlrev_b32 v{t0}, 7, v{t0}
v_add_u32 v{t0}, s{sMXs}, v{t0}""")
for sst in range(4):
    EARLY += lines(f"""v_xor_b32 v{t3}, {2*sst}, v{t1}
    v_lshl_add_u32 v{vXa[sst]}, v{t3}, 4, v{t0}""")
EARLY += lines(f"""v_bfe_u32 v{t1}, v{vLane}, 2, 2
v_lshl_add_u32 v{t0}, v{t2}, 3, v{t1}
v_bfe_u32 v{t3}, v{vLane}, 4, 1
v_and_b32 v{t4}, 3, v{vLane}
v_lshlrev_b32 v{t4}, 3, v{t4}
v_lshl_add_u32 v{t4}, v{t3}, 5, v{t4}
v_lshl_add_u32 v{vWqr}, v{t0}, 6, v{t4}
v_lshl_add_u32 v{t4}, v{t0}, 7, v{t4}
v_lshrrev_b32 v{t1}, 1, v{t1}
v_lshl_add_u32 v{t4}, v{t1}, 6, v{t4}
v_add_u32 v{vWr[0]}, {WL}, v{t4}
v_xor_b32 v{vWr[1]}, 64, v{vWr[0]}""")

MID = lines(f"""s_and_b32 s{sT0}, s{sh}, 1
s_lshl_b32 s{sT0}, s{sT0}, 3
s_add_u32 s{sT0}, s{sT0}, {WQ}
v_add_u32 v{vWqr}, s{sT0}, v{vWqr}
s_mul_i32 s{sWq}, s{sh}, 56
s_and_b32 s{sWq}, s{sWq}, 0xfffffff0
s_and_b32 s{sT0}, s{sw}, 3
s_mul_i32 s{sMQ}, s{sT0}, 7168
s_add_u32 s{sMQ}, s{sMQ}, {WQ}
s_mul_i32 s{sT0}, s{sT0}, 7
s_lshl_b32 s{sT1}, s{sC0}, 2
s_add_u32 s{sT0}, s{sT0}, s{sT1}
s_sub_u32 s{sT1}, s{sT0}, 28
s_min_u32 s{sT0}, s{sT0}, s{sT1}
s_mul_i32 s{sCq}, s{sT0}, {16*2688}
v_lshrrev_b32 v{t0}, 2, v{vLane}
v_mul_u32_u24 v{t0}, 2688, v{t0}
v_and_b32 v{t1}, 3, v{vLane}
v_lshl_add_u32 v{vWq}, v{t1}, 4, v{t0}""")
MID += lines(f"""s_mov_b32 s{sWS}, s24
s_mov_b32 s{sWS+1}, s25
s_mov_b32 s{sWS+2}, {WS_BYTES}
s_mov_b32 s{sWS+3}, 0x20000
s_lshl_b32 s{sKVt}, s{sb}, 22
s_lshl_b32 s{sRel}, s{sj}, 15
s_add_u32 s{sRel}, s{sRel}, s{sMX}
s_add_u32 s{sKVt}, s{sKVt}, s{sRel}
s_add_u32 s{sKVt}, s{sKVt}, {KV_OFF}
s_and_b32 s{sT0}, s{sw}, 3
s_lshl_b32 s{sT0}, s{sT0}, 1
s_lshl_b32 s{sT1}, s{sb}, 3
s_add_u32 s{sT1}, s{sT1}, s{sj}
s_lshl_b32 s{sT1}, s{sT1}, 3
s_add_u32 s{sT0}, s{sT0}, s{sT1}
s_lshl_b32 s{sT0}, s{sT0}, 4
s_add_u32 s{sT0}, s{sT0}, s{sh}
s_lshl_b32 s{sOp}, s{sT0}, 11
s_add_u32 s{sOp}, s{sOp}, {O_OFF}
s_lshl_b32 s{sOt}, s{sKap}, 15
s_add_u32 s{sOt}, s{sOt}, s{sOp}
v_mov_b32 v{vPd}, 0
v_mov_b32 v{vPd+1}, 0
v_mov_b32 v{vPd+2}, 0
v_mov_b32 v{vPd+3}, 0
s_add_u32 s{sFl}, s{sT1}, s{sw}
s_mul_i32 s{sFl}, s{sFl}, {FS}
s_lshl_b32 s{sT0}, s{sh}, {ES}
s_add_u32 s{sFl}, s{sFl}, s{sT0}
s_add_u32 s{sFl}, s{sFl}, {FLAG_OFF}
s_add_u32 s{sHo}, s{sFl}, {HINT}""")
LATE = lines(f"""s_lshl_b32 s{sPl}, s{sb}, 6
s_and_b32 s{sT1}, s{sw}, 3
s_add_u32 s{sPl}, s{sPl}, s{sT1}
s_mul_i32 s{sPl}, s{sPl}, {FS}
s_add_u32 s{sPl}, s{sPl}, {FLAG_OFF}
s_add_u32 s{sT0}, s{sj}, s{sKap}
s_and_b32 s{sT0}, s{sT0}, 7
s_lshl_b32 s{sRel}, s{sT0}, 15
s_lshl_b32 s{sT1}, s{sT1}, 12
s_add_u32 s{sRel}, s{sRel}, s{sT1}
v_bfe_u32 v{t3}, v{vLane}, 2, 2
v_lshl_add_u32 v{t3}, v{t3}, 1, s{sT0}
v_lshrrev_b32 v{t1}, 5, v{vLane}
v_add_u32 v{t3}, v{t3}, v{t1}
v_and_b32 v{t3}, 7, v{t3}
v_bfe_u32 v{t1}, v{vLane}, 4, 1
v_lshl_add_u32 v{t3}, v{t3}, 1, v{t1}
v_mul_u32_u24 v{t3}, {4*FS}, v{t3}
s_mul_i32 s{sT0}, s{sh}, 28
s_add_u32 s{sT1}, s{sT0}, 27
s_lshr_b32 s{sT0}, s{sT0}, 6
s_lshr_b32 s{sT1}, s{sT1}, 6
s_sub_u32 s{sT1}, s{sT1}, s{sT0}
v_and_b32 v{t0}, 1, v{vLane}
v_mul_u32_u24 v{t0}, s{sT1}, v{t0}
v_add_u32 v{t0}, s{sT0}, v{t0}
v_bfe_u32 v{t1}, v{vLane}, 1, 1
v_mad_u32_u24 v{t0}, v{t1}, 7, v{t0}
v_add_u32 v{t4}, 10, v{t0}
v_lshrrev_b32 v{t4}, 4, v{t4}
v_lshrrev_b32 v{t2}, 3, v{t0}
v_add3_u32 v{t0}, v{t0}, v{t4}, v{t2}
s_sub_u32 s{sT2}, s{sT1}, 1
s_and_b32 s{sT2}, s{sT2}, 0xaaaaaaaa
s_mov_b32 s{sT3}, s{sT2}
v_mad_u32_u24 v{t1}, v{t1}, 3, 6
v_cndmask_b32 v{t0}, v{t0}, v{t1}, s[{sT2}:{sT3}]
v_lshl_add_u32 v{vPl}, v{t0}, {ES}, v{t3}
s_lshl_b32 s{sKV}, s{sHH}, 18
s_add_u32 s{sKV}, s{sKV}, {KV_OFF}
s_mov_b32 s{sDone}, s{sKap}""")
LATE += lines(f"""s_mov_b32 s{sLo}, -1
s_mov_b32 s{sLo+1}, 0
s_mov_b32 s{sCs}, {hex(f2u(CSCALE))}
s_mov_b32 s{sCs+1}, {hex(f2u(CSCALE))}
s_and_b32 s{sT1}, s{sw}, 3
v_mov_b32 v{vIdx}, 0xdddddddd
s_or_b32 s{sT2}, s{sT1}, 1
s_add_u32 s{sT0}, s{sT1}, s{sT2}
s_lshl_b32 s{sT0}, s{sT0}, 11
s_add_u32 s{sT0}, s{sT0}, {XS+32768}
s_lshl_b32 s{sT2}, s{sT1}, 11
s_add_u32 s{sT2}, s{sT2}, {QOLD}
s_sub_u32 s{sT0}, s{sT0}, s{sT2}
s_mul_i32 s{sT0}, s{sT0}, s{sKap}
s_add_u32 s{sT0}, s{sT0}, s{sT2}
v_and_b32 v{t0}, 1, v{vLane}
v_lshlrev_b32 v{t0}, 4, v{t0}
v_bfe_u32 v{t1}, v{vLane}, 4, 1
v_lshl_add_u32 v{t0}, v{t1}, 3, v{t0}
v_bfe_u32 v{t1}, v{vLane}, 3, 1
v_lshl_add_u32 v{t0}, v{t1}, 1, v{t0}
v_bfe_u32 v{t1}, v{vLane}, 1, 1
v_add_u32 v{t0}, v{t0}, v{t1}
v_and_b32 v{t1}, 0x24, v{vLane}
v_add_u32 v{t0}, v{t0}, v{t1}
v_sub_u32 v{t0}, v{t0}, v{vLane}
v_mul_lo_u32 v{t0}, v{t0}, s{sRole}
v_add_u32 v{t0}, v{t0}, v{vLane}
v_lshl_add_u32 v{vQw}, v{t0}, 4, s{sT0}
s_lshr_b32 s{sT3}, s{sT1}, 1
s_and_b32 s{sT2}, s{sT1}, 1
s_add_u32 s{sT0}, s{sT3}, 12
s_lshl_b32 s{sT2}, s{sT2}, s{sT0}
s_mul_i32 s{sT3}, s{sT3}, {(XS+32768+2048-QOLD) & 0xffffffff}
s_add_u32 s{sT2}, s{sT2}, s{sT3}
s_add_u32 s{sT2}, s{sT2}, {QOLD}
v_add_u32 v{vQr}, s{sT2}, v{vL16}
s_lshl_b32 s{sT0}, s{sKap}, 14
v_add_u32 v{vBase}, s{sT0}, v{vL16}
v_add_u32 v{vCur}, 0x10000, v{vBase}
v_lshl_add_u32 v{vBk}, v{vLane}, 3, s{sT0}""")
L1, LATE = LATE, []
LATE += lines(f"""s_mov_b32 s{sWO+2}, {448*896}
s_mov_b32 s{sWO+3}, 0x20000
s_mov_b32 s{sOUT}, s20
s_mov_b32 s{sOUT+1}, s21
s_mov_b32 s{sOUT+2}, {2048*1792}
s_mov_b32 s{sOUT+3}, 0x20000
s_mov_b32 s{sChk}, {0 if OPT['force_slow'] else L_RANGE}
s_and_b32 s{sWoff}, s{sh}, 3
s_mul_i32 s{sWoff}, s{sWoff}, 224""")
LATE += lines(f"""s_lshl_b32 s{sT1}, s{sb}, 3
s_add_u32 s{sT1}, s{sT1}, s{sj}
s_lshl_b32 s{sT1}, s{sT1}, 3
s_lshr_b32 s{sT0}, s{sh}, 2
s_bfe_u32 s{sT2}, s{sw}, 0x10001
s_lshl_b32 s{sPc}, s{sT2}, 2
s_add_u32 s{sPc}, s{sPc}, s{sT0}
s_add_u32 s{sPc}, s{sPc}, s{sT1}
s_mul_i32 s{sPc}, s{sPc}, {FS}
s_add_u32 s{sPc}, s{sPc}, {FLAG_OFF + 64}
s_lshl_b32 s{sT3}, s{sT0}, 1
s_add_u32 s{sT3}, s{sT3}, s{sT2}
s_add_u32 s{sT3}, s{sT3}, s{sT1}
s_lshl_b32 s{sOin}, s{sT3}, 15
s_add_u32 s{sOin}, s{sOin}, {O_OFF}
s_and_b32 s{sT3}, s{sw}, 1
s_lshl_b32 s{sT3}, s{sT3}, 8
s_add_u32 s{sOin}, s{sOin}, s{sT3}
s_lshl_b32 s{sT3}, s{sKap}, 11
s_add_u32 s{sOin}, s{sOin}, s{sT3}""")
LATE += lines(f"""s_lshl_b32 s{sT1}, s{sj}, 2
s_add_u32 s{sT0}, s{sT0}, s{sT1}
s_lshl_b32 s{sT0}, s{sT0}, 2
s_and_b32 s{sT1}, s{sw}, 3
s_add_u32 s{sT0}, s{sT0}, s{sT1}
s_mul_i32 s{sOut}, s{sT0}, {16*1792}
s_mul_i32 s{sT0}, s{sb}, 896
s_add_u32 s{sOut}, s{sOut}, s{sT0}
s_add_u32 s{sOut}, s{sOut}, s{sWoff}
v_and_b32 v{t2}, 7, v{vLane}
s_add_u32 s{sT0}, s{sT1}, 5
s_lshl_b32 s{sT0}, s{sT0}, 13
s_and_b32 s{sT0}, s{sT0}, 0xffff
v_add_u32 v{vRw}, s{sT0}, v{vL16}
s_lshl_b32 s{sT2}, s{sT1}, 2
s_add_u32 s{sT2}, s{sT2}, {MISC}
v_mov_b32 v{vMf}, s{sT2}
s_mul_i32 s{sT2}, s{sT1}, 3072
s_add_u32 s{sT2}, s{sT2}, {SND}
v_add_u32 v{vSn}, s{sT2}, v{vL16}
v_lshrrev_b32 v{t1}, 3, v{vLane}
s_lshl_b32 s{sT2}, s{sKap}, 11
s_add_u32 s{sT0}, s{sT0}, s{sT2}
s_add_u32 s{sT0}, s{sT0}, 4096
v_xor_b32 v{t3}, v{t1}, v{t2}
v_lshlrev_b32 v{t3}, 4, v{t3}
v_lshl_add_u32 v{t3}, v{t1}, 7, v{t3}
v_add_u32 v{vTr}, s{sT0}, v{t3}
v_mul_u32_u24 v{t3}, 1792, v{t1}
v_lshl_add_u32 v{vOs}, v{t2}, 4, v{t3}
v_add_u32 v{t3}, 2, v{t2}
v_lshrrev_b32 v{t3}, 3, v{t3}
v_lshlrev_b32 v{t3}, 30, v{t3}
v_add_u32 v{t3}, 128, v{t3}
v_add_u32 v{vOs2}, v{t3}, v{vOs}
v_and_b32 v{t0}, 15, v{vLane}
v_lshrrev_b32 v{t1}, 4, v{vLane}
v_lshrrev_b32 v{t3}, 1, v{t1}
v_xor_b32 v{t3}, v{t3}, v{t2}
v_lshlrev_b32 v{t3}, 4, v{t3}
v_lshl_add_u32 v{t3}, v{t0}, 7, v{t3}
v_and_b32 v{t4}, 1, v{t1}
v_lshl_add_u32 v{t3}, v{t4}, 3, v{t3}
v_add_u32 v{vTw}, s{sT0}, v{t3}
v_lshlrev_b32 v{vPc}, {ES}, v{t0}
v_lshlrev_b32 v{t2}, 12, v{t2}
v_add_u32 v{vLp}, {3*512+15*16}, v{t2}
v_lshlrev_b32 v{t2}, 9, v{t1}
v_lshl_add_u32 v{vOa}, v{t0}, 4, v{t2}""")
LATE += lines(f"""v_lshrrev_b32 v{t2}, 1, v{t1}
v_lshlrev_b32 v{t2}, 4, v{t2}
v_lshl_add_u32 v{t2}, v{t4}, 2, v{t2}
v_bfe_u32 v{t3}, v{vLane}, 2, 2
v_add_u32 v{t2}, v{t2}, v{t3}
v_mul_u32_u24 v{t2}, 224, v{t2}
v_and_b32 v{t3}, 3, v{vLane}
v_lshl_add_u32 v{t2}, v{t3}, 3, v{t2}
v_add_u32 v{t3}, 1, v{t1}
v_lshrrev_b32 v{t3}, 2, v{t3}
v_mul_u32_u24 v{t3}, {4*224}, v{t3}
v_sub_u32 v{t3}, v{t2}, v{t3}
s_mul_i32 s{sT0}, s{sKap}, 6272
s_add_u32 s{sT0}, s{sT0}, {WOB}
v_add_u32 v{vW0}, s{sT0}, v{t2}
s_add_u32 s{sT0}, s{sT0}, {8*224}
v_add_u32 v{vW1}, s{sT0}, v{t3}
s_mul_i32 s{sSp}, s{sKap}, {(WO15 - WOB - 6272 - 7*12544) & 0xffffffff}
s_add_u32 s{sSp}, s{sSp}, {7*12544}""")
LATE += lines(f"""v_mul_u32_u24 v{t2}, 0x4925, v{vLane}
v_lshrrev_b32 v{t2}, 18, v{t2}
v_mul_u32_u24 v{t3}, 14, v{t2}
v_sub_u32 v{t3}, v{vLane}, v{t3}
v_mul_u32_u24 v{t2}, 896, v{t2}
v_lshl_add_u32 v{vWod}, v{t3}, 4, v{t2}
s_mul_i32 s{sWn}, s{sw}, 3584
s_add_u32 s{sWn}, s{sWn}, s{sWoff}
s_mul_i32 s{sWm}, s{sw}, 896
s_add_u32 s{sWm13}, s{sWm}, {WO15-896}
s_max_u32 s{sT0}, s{sw}, 1
s_sub_u32 s{sT0}, s{sT0}, s{sw}
s_mul_i32 s{sT0}, s{sT0}, {WOB+104*896-(WO15-896)}
s_add_u32 s{sWm13}, s{sWm13}, s{sT0}""")
L2 = LATE
ENDS = lines(f"""s_mul_i32 s{sT2}, s{sLine}, {16*9363}
s_add_u32 s{sT3}, s{sT2}, {16*9363}
s_lshr_b32 s{sT2}, s{sT2}, 16
s_lshr_b32 s{sT3}, s{sT3}, 16
s_sub_u32 s{sT3}, s{sT3}, s{sT2}
s_lshl_b32 s{sT2}, s{sT2}, 18""")
FK = lines(f"""v_and_b32 v{t0}, 15, v{vLane}
v_lshlrev_b32 v{t0}, 4, v{t0}
v_bfe_u32 v{t1}, v{vLane}, 4, 1
v_lshrrev_b32 v{t4}, 5, v{vLane}
v_lshl_add_u32 v{t1}, v{t1}, 1, v{t4}
s_lshl_b32 s{sT0}, s{sLine}, 4
v_add_u32 v{t1}, s{sT0}, v{t1}""")
for i in range(4):
    FK += lines(f"""v_add_u32 v{t2}, {4*i}, v{t1}
    v_mul_u32_u24 v{t3}, 9363, v{t2}
    v_lshrrev_b32 v{t3}, 16, v{t3}
    v_lshl_add_u32 v{vSt[i]}, v{t3}, 18, v{t0}
    v_mul_u32_u24 v{t3}, 7, v{t3}
    v_sub_u32 v{t2}, v{t2}, v{t3}
    v_lshl_add_u32 v{vSt[i]}, v{t2}, 8, v{vSt[i]}""")
FK += ENDS + lines(f"""s_add_u32 s{sT2}, s{sT2}, {7*256}
v_lshrrev_b32 v{t1}, 4, v{vLane}
v_cmp_gt_u32 vcc, s{sT3}, v{t1}
v_lshl_add_u32 v{t0}, v{t1}, 18, v{t0}
v_add_u32 v{t0}, s{sT2}, v{t0}
v_mov_b32 v{t3}, {OOB}
v_cndmask_b32 v{vP[0]}, v{t3}, v{t0}, vcc""")
FV = lines(f"""v_and_b32 v{t0}, 31, v{vLane}
s_lshl_b32 s{sT0}, s{sLine}, 6
v_add_u32 v{t0}, s{sT0}, v{t0}
v_and_b32 v{t4}, 32, v{vLane}""")
for ct in range(2):
    FV += lines(f"""v_add_u32 v{t2}, {32*ct}, v{t0}
    v_mul_u32_u24 v{t3}, 2341, v{t2}
    v_lshrrev_b32 v{t3}, 16, v{t3}
    v_mul_u32_u24 v{t1}, 28, v{t3}
    v_sub_u32 v{t2}, v{t2}, v{t1}
    v_add_u32 v{t2}, v{t2}, v{t4}
    v_lshlrev_b32 v{t2}, 4, v{t2}
    v_lshl_add_u32 v{t2}, v{t3}, 18, v{t2}
    v_add_u32 v{vSt[2*ct]}, 2048, v{t2}
    v_add_u32 v{vSt[2*ct+1]}, 3072, v{t2}""")
FV += ENDS + lines(f"""s_add_u32 s{sT2}, s{sT2}, {2048+28*16}
v_lshrrev_b32 v{t0}, 4, v{vLane}
v_cmp_gt_u32 vcc, s{sT3}, v{t0}
v_bfe_u32 v{t1}, v{vLane}, 2, 2
v_lshlrev_b32 v{t1}, 9, v{t1}
v_lshl_add_u32 v{t1}, v{t0}, 18, v{t1}
v_and_b32 v{t2}, 3, v{vLane}
v_lshl_add_u32 v{t1}, v{t2}, 4, v{t1}
v_add_u32 v{t1}, s{sT2}, v{t1}
v_mov_b32 v{t3}, {OOB}
v_cndmask_b32 v{vP[0]}, v{t3}, v{t1}, vcc
v_cmp_eq_u32 vcc, 0, v{t2}
v_mov_b32 v{t3}, 0x3f803f80
s_nop 0
v_cndmask_b32 v{vPd}, 0, v{t3}, vcc
v_mov_b32 v{vPd+1}, v{vPd}
v_mov_b32 v{vPd+2}, v{vPd}
v_mov_b32 v{vPd+3}, v{vPd}""")


def st16(data, addr, soff, off=0):
    return (f"buffer_store_dwordx4 {v(data,4)}, v{addr}, s[{sWS}:{sWS+3}], s{soff} offen offset:{off} sc1", "ST")


def st8(data, addr, soff):
    return (f"buffer_store_dwordx2 {v(data,2)}, v{addr}, s[{sWS}:{sWS+3}], s{soff} offen sc1", "ST")


def flag_text(second=False):
    return f"""s_mov_b64 exec, 1
    buffer_store_dword v{vTag}, v{vL16}, s[{sWS}:{sWS+3}], s{sFl} offen offset:{64 if second else 0} sc1
    s_mov_b64 exec, -1"""


def poll_text(mask):
    return f"""s_mov_b64 exec, {mask if mask < 64 else hex(mask)}
    buffer_load_dword v{vFl}, v{vPl}, s[{sWS}:{sWS+3}], s{sPl} offen sc1
    s_mov_b64 exec, -1"""


def poll_issue(mask=15):
    A(poll_text(mask))


ntry = [0]


def hook_try(level=2):
    ntry[0] += 1
    A(f"""s_cmp_ge_u32 s{sDone}, {level}
    s_cbranch_scc1 L_skip{ntry[0]}
    s_call_b64 s[{sRet}:{sRet+1}], L_try""")
    A.label(f"L_skip{ntry[0]}")


def spin(level, name):
    A(f"s_mov_b32 s{sSpin}, 0x40000")
    A.label(name)
    A(f"""s_cmp_ge_u32 s{sDone}, {level}
    s_cbranch_scc1 {name}_done
    s_call_b64 s[{sRet}:{sRet+1}], L_try
    s_sub_u32 s{sSpin}, s{sSpin}, 1
    s_cbranch_scc0 {name}""")
    A.label(name + "_done")


POLL0 = f"""s_mov_b32 exec_lo, 15
    s_mov_b32 exec_hi, 15
    buffer_load_dword v{vFl}, v{vPl}, s[{sWS}:{sWS+3}], s{sPl} offen sc1
    s_mov_b64 exec, -1"""
CALL_REST = f"s_call_b64 s[{sRet}:{sRet+1}], L_rest"
pqq = Wf + 16


class Stream:
    def __init__(self, role):
        self.role = role
        self.vm, self.lg = Cnt("vmcnt", 63), Cnt("lgkmcnt", 15)
        self.nkv = self.nq = 0

    def dma(self, p):
        A(p[0])
        self.vm.issue(p[1])

    def ds(self, text, tag):
        self.lg.room()
        A(text)
        self.lg.issue(tag)

    def xreads(self, c):
        return [(f"ds_read_b128 {v(Xr+16*c+4*st,4)}, v{vXa[st]} offset:{(c % 2) * 16384}", f"R{c}") for st in range(4)]

    def mk(self, kv=None, q=None):
        rd, mm, need = [], [], []
        tag = f"F{kv}_{q}"
        if kv is not None:
            b = Wf + 8 * (self.nkv % 3)
            self.nkv += 1
            for ct in range(2):
                for u in range(2):
                    rd.append((f"ds_read_b64_tr_b16 {v(b+4*ct+2*u,2)}, v{vWr[ct]} offset:{kv*2048+u*512}", tag))
                ac = [acc0, acc1][ct]
                wf, xf = v(b + 4 * ct, 4), v(Xr + 4 * kv, 4)
                a_, b_ = (wf, xf) if self.role == "K" else (xf, wf)
                mm.append(f"v_mfma_f32_32x32x16_bf16 {v(ac,16)}, {a_}, {b_}, {'0' if kv == 0 else v(ac,16)}")
            need.append(f"R{kv//4}")
        if q is not None:
            b = Wg + 4 * (self.nq % 3)
            self.nq += 1
            for u in range(2):
                rd.append((f"ds_read_b64_tr_b16 {v(b+2*u,2)}, v{vWqr} offset:{q*1024+u*256}", tag))
            mm.append(f"v_mfma_f32_32x32x16_bf16 {v(accQ,16)}, {v(b,4)}, {v(Xr+4*q,4)}, {'0' if q == 0 else v(accQ,16)}")
            need.append(f"R{q//4}")
        return dict(rd=rd, mm=mm, need=need + [tag], pre=[], xr=None, dma=[], post=[])

    def run(self, steps, fill=(), nf=0):
        fill = list(fill)
        for st in steps[:2]:
            for r in st["rd"]:
                self.ds(*r)
        for i, st in enumerate(steps):
            self.lg.wait(*st["need"])
            for f in st["pre"]:
                f()
            side = []
            if st["xr"] is not None:
                self.vm.wait(f"X{st['xr']}")
                side += self.xreads(st["xr"])
            if i + 2 < len(steps):
                side += steps[i + 2]["rd"]
            n = len(st["mm"])
            for k, m in enumerate(st["mm"]):
                A(m)
                for r in side[k * len(side) // n:(k + 1) * len(side) // n]:
                    self.ds(*r)
                for p in st["dma"][k * len(st["dma"]) // n:(k + 1) * len(st["dma"]) // n]:
                    self.dma(p)
                emit(fill, nf)
            for f in st["post"]:
                f()
        assert not fill

    def xplan(self, steps, first, c0, c1, lead):
        for c in range(c0, c1):
            i = first + 4 * (c - c0) - lead
            steps[i]["xr"] = c
            if c + 2 <= 6:
                steps[i + 1]["need"].append(f"R{c}")
                xp = x_pieces(c + 2)
                steps[i + 1]["dma"] += xp[:2]
                steps[i + 2]["dma"] += xp[2:]

    def pack(self, store):
        for ct in range(2):
            ac = [acc0, acc1][ct]
            pp = Wf + 8 * ct
            for r in range(8):
                A(f"v_cvt_pk_bf16_f32 v{pp+r}, v{ac+2*r}, v{ac+2*r+1}")
                if self.role == "V" and r % 4 == 3 and store:
                    self.dma(st16(pp + r - 3, vSt[2 * ct + r // 4], sKVt))
            if self.role == "K":
                for i in range(2):
                    A(f"v_permlane16_swap_b32 v{pp+4*i}, v{pp+4*i+2}")
                    A(f"v_permlane16_swap_b32 v{pp+4*i+1}, v{pp+4*i+3}")
                    if store:
                        self.dma(st16(pp + 4 * i, vSt[2 * ct + i], sKVt))

    def xonly(self):
        for c in range(7):
            self.vm.wait(f"X{c}")
            for r in self.xreads(c):
                self.ds(*r)
            self.lg.wait(f"R{c}")
            if c + 2 <= 6:
                for p in x_pieces(c + 2):
                    self.dma(p)


def bar():
    A("s_barrier")


def q_epilogue():
    for r in range(8):
        A(f"v_pk_mul_f32 {v(accQ+2*r,2)}, {v(accQ+2*r,2)}, s[{sCs}:{sCs+1}]")
    for r in range(8):
        A(f"v_cvt_pk_bf16_f32 v{pqq+r}, v{accQ+2*r}, v{accQ+2*r+1}")
    for r in (6, 7):
        A(f"v_cndmask_b32 v{pqq+r}, 0, v{pqq+r}, s[{sLo}:{sLo+1}]")
    A(f"""ds_write_b128 v{vQw}, {v(pqq,4)}
    ds_write_b128 v{vQw}, {v(pqq+4,4)} offset:1024""")


NOST = [f"v_mov_b32 v{vSt[i]}, {OOB}" for i in range(4)]
ZO = [f"v_mov_b32 v{O[0]+r}, 0" for r in range(32)]
NA, N1, CG = OPT["na"], OPT["n1"], OPT["cg"]


def older(role):
    S_ = Stream(role)
    S_.vm.issue("X0", 4)
    S_.vm.issue("X1", 4)
    if role == "N":
        A(flag_text())
        S_.vm.issue("FL")
        S_.xonly()
        bar()
        return
    if OPT["yp"]:
        A("s_setprio 2")
    S_.vm.wait("X0")
    for r in S_.xreads(0):
        S_.ds(*r)
    S_.lg.wait("R0")
    for p in x_pieces(2):
        S_.dma(p)
    ts(3, 2)
    bar()
    ts(4, 2)
    steps = [S_.mk(kv=g) for g in range(28)]
    S_.xplan(steps, 4, 1, 7, OPT["xl"])
    steps[4 * NA - 2]["pre"].append(bar)
    steps[OPT["padg"]]["dma"].append(st16(vPd, vP[0], sKVt))
    if CG < 28:
        steps[CG]["need"].append("R6")
        steps[CG]["pre"].append(bar)
    for c in range(7):
        steps[4 * c]["pre"].append(lambda c=c: ts(5 + c, 2))
    fill = {"K": FK, "V": FV}[role]
    S_.run(steps, fill, -(-len(fill) // 24))
    ts(2)
    ts(12, 2)
    S_.pack(True)
    ts(1)
    if CG == 28:
        bar()
    A("s_branch L_oq")


def younger(role):
    S_ = Stream(role)
    if role == "N":
        S_.vm.issue("X0", 4)
        S_.vm.issue("X1", 4)
        A(flag_text())
        S_.vm.issue("FL")
        for i in range(7):
            S_.dma(wq_piece(i))
        emit(list(REST), len(REST))
        emit(list(NOST), 4)
        S_.xonly()
        bar()
        steps = [S_.mk(q=g) for g in range(28)]
        first = 0
    else:
        S_.vm.q = list(LOADER_Q)
        wq = [wq_piece(i) for i in range(OPT["wqe"] + OPT["wqf"], 7)]
        S_.vm.wait("X0")
        for r in S_.xreads(0):
            S_.ds(*r)
        ts(6, 2)
        steps = [S_.mk(kv=g) for g in range(4 * N1)]
        for c in range(1, N1):
            steps[4 * c - 2]["xr"] = c
        k = 0
        for p in wq:
            steps[k // OPT["wqd"]]["dma"].append(p)
            k += 1
        fill = {"K": FK, "V": FV}[role]
        late = []
        for c in range(2, N1 + 2):
            if c < N1:
                steps[4 * (c - 2) + 1]["need"].append(f"R{c-2}")
                steps[4 * (c - 2) + 1]["dma"] = x_pieces(c) + steps[4 * (c - 2) + 1]["dma"]
            else:
                late += x_pieces(c)
        S_.run(steps, fill, -(-len(fill) // (8 * N1)))
        for p in late:
            S_.dma(p)
        ts(7, 2)
        S_.vm.wait("WQ")
        bar()
        ts(8, 2)
        if OPT["yp"]:
            A("s_setprio 1")
        steps = [S_.mk(q=g) for g in range(4 * N1)] + [S_.mk(kv=g, q=g) for g in range(4 * N1, 28)]
        S_.xplan(steps, 4 * N1, N1, 7, 2)
        steps[20]["dma"].append(st16(vPd, vP[0], sKVt))
    ts(3)
    steps[25]["post"].append(lambda: (poll_issue(0xffff), S_.vm.issue("PL")))
    fill = [] if role == "N" else [L1 + L2, list(L2), []][OPT['lf']]
    S_.run(steps, fill, -(-len(fill) // (3 * (24 - 4 * N1) + 4 * N1)))
    ts(2)
    ts(12, 2)
    q_epilogue()
    if role != "N":
        S_.pack(False)
    ts(11)
    A("""s_waitcnt lgkmcnt(0)
    s_branch L_b0""")


def loader():
    S_ = Stream("N")
    for it in range(NW0):
        S_.vm.issue(f"W{it}", 2)
    S_.vm.wait(f"W{NA-1}")
    ts(3, 2)
    bar()
    ts(4, 2)
    fill = [[], list(L1), L1 + L2][OPT['lf']]
    wq = [wq_piece(i) for i in range(7)]
    p1 = [p for it in range(NW0, 7) for p in w_pieces(it)] + wq[:OPT["wqe"]] + x_pieces(0) + x_pieces(1)
    p2 = wq[OPT["wqe"]:OPT["wqe"] + OPT["wqf"]]
    nb = OPT["nb"]
    ps = p1 + p2
    nf = -(-len(fill) // len(ps))
    for k, p in enumerate(ps):
        if k == nb:
            S_.vm.wait("W6")
            bar()
        S_.dma(p)
        emit(fill, nf)
    if nb >= len(ps):
        S_.vm.wait("W6")
        bar()
    ts(5, 2)
    return S_.vm.q


PRO, REST = EARLY + MID, L1 + L2
PRO += lines(f"""s_waitcnt lgkmcnt(0)
s_mul_i32 s{stag}, s{sE}, 0x9e3779b1
s_add_u32 s{stag}, s{stag}, 0x7f4a7c15
v_mov_b32 v{vTag}, s{stag}""")
emit(PRO, len(PRO))
ts(2, 2)
A(f"""s_cmp_eq_u32 s{sKap}, 0
s_cbranch_scc1 L_old
s_cmp_eq_u32 s{sNone}, 1
s_cbranch_scc1 L_yN""")
LOADER_Q = loader()
A(f"""s_cmp_eq_u32 s{sRole}, 1
s_cbranch_scc1 L_yV""")
younger("K")
A.label("L_yV")
younger("V")
A.label("L_yN")
younger("N")
A.label("L_old")
A(f"""s_cmp_eq_u32 s{sNone}, 1
s_cbranch_scc1 L_oN
s_cmp_eq_u32 s{sRole}, 1
s_cbranch_scc1 L_oV""")
older("K")
A.label("L_oV")
older("V")
A.label("L_oN")
older("N")
A.label("L_oq")
ts(3)
ts(13, 2)
emit(list(L1), len(L1))
emit(list(NOST), 4)
S_ = Stream("N")
steps = [S_.mk(q=g) for g in range(28)]


def oflag():
    A("s_waitcnt vmcnt(0)")
    A(flag_text())
    if OPT["yp"]:
        A("s_setprio 0")
    ts(4)


steps[OPT["fq"]]["pre"].append(oflag)
steps[OPT["pq"]]["post"].append(lambda: A(POLL0))
for g in range(OPT["pq"] + OPT["tq"], 28, OPT["tq"]):
    steps[g]["post"].append(lambda: hook_try(1))
S_.run(steps, L2, -(-len(L2) // 27))
q_epilogue()
ts(11)
spin(1, "L_spin0")
A("s_waitcnt vmcnt(1) lgkmcnt(0)")
A.label("L_b0")
A("s_barrier")
ts(12)

A(f"""ds_read_b128 {v(Q[0],4)}, v{vQr}
ds_read2st64_b64 {v(Kf[0],4)}, v{vBk} offset0:64 offset1:65
ds_read_b128 {v(Q[0]+4,4)}, v{vQr} offset:1024
ds_read2st64_b64 {v(Kf[0]+4,4)}, v{vBk} offset0:66 offset1:67
ds_read_b128 {v(Q[1],4)}, v{vQr} offset:2048
ds_read_b128 {v(Q[1]+4,4)}, v{vQr} offset:3072
ds_read2st64_b64 {v(Kf[1],4)}, v{vBk} offset0:72 offset1:73
ds_read2st64_b64 {v(Kf[1]+4,4)}, v{vBk} offset0:74 offset1:75
ds_read_b128 {v(Vf[0],4)}, v{vBase} offset:34816
ds_read_b128 {v(Vf[0]+4,4)}, v{vBase} offset:35840
{chr(10).join(ZO[:20])}
s_waitcnt lgkmcnt(6)
v_mfma_f32_32x32x16_bf16 {v(S[0],16)}, {v(Kf[0],4)}, {v(Q[0],4)}, 0
v_mfma_f32_32x32x16_bf16 {v(S[0],16)}, {v(Kf[0]+4,4)}, {v(Q[0]+4,4)}, {v(S[0],16)}
{chr(10).join(ZO[20:])}
s_waitcnt lgkmcnt(4)""")

POS = [32768, 0, 65536]


def kv_addr(blk, t, off):
    p = POS[blk % 3] + t * 4096 + off
    return (vCur, p - 65536) if POS[blk % 3] >= 65536 else (vBase, p)


def kv_next(st):
    pos = POS[st % 3]
    return f"""s_add_u32 s{sRel}, s{sRel}, {0x14000 if st == 4 else 0x10000}
    s_and_b32 s{sRel}, s{sRel}, 0x3ffff
    s_add_u32 m0, s{sMX}, {pos}
    s_add_u32 s{sD0}, s{sRel}, s{sKV}"""


def kv_piece(i):
    return f"buffer_load_dwordx4 v{vL16}, s[{sWS}:{sWS+3}], s{sD0} offen offset:{1024*i} sc1 lds"


def wo_piece(r):
    m = f"s_mov_b32 m0, s{sWm13}" if r == 13 else f"s_add_u32 m0, s{sWm}, {WOB + 8*r*896}"
    return f"""{m}
    s_add_u32 s{sD1}, s{sWn}, {8*r*3584}
    buffer_load_dwordx4 v{vWod}, s[{sWO}:{sWO+3}], s{sD1} offen lds"""


EXTRA = {}
AFTER = {}


def extra(w_, sl, text):
    EXTRA.setdefault((w_, sl), []).append(text)


def window(W):
    blk, u = divmod(W, 8)
    un, up = u + 1, u - 1
    tn, qn = un // 2, un % 2
    tp, qp = up // 2, up % 2
    Sc, Sn, Sp = S[u % 4], S[un % 4], S[up % 4]
    Kn, Vp = Kf[tn % 2], Vf[tp % 2]
    m = [f"v_mfma_f32_32x32x16_bf16 {v(Sn,16)}, {v(Kn,4)}, {v(Q[qn],4)}, 0",
         f"v_mfma_f32_32x32x16_bf16 {v(Sn,16)}, {v(Kn+4,4)}, {v(Q[qn]+4,4)}, {v(Sn,16)}",
         f"v_smfmac_f32_32x32x32_bf16 {v(O[qp],16)}, {v(Vp,4)}, {v(Sp,8)}, v{vIdx}",
         f"v_smfmac_f32_32x32x32_bf16 {v(O[qp],16)}, {v(Vp+4,4)}, {v(Sp+8,8)}, v{vIdx}"]
    if W == 0:
        m[2] = m[3] = None
    if W == 63:
        m = [m[2], None, m[3], None]
    mem = [[], [], [], []]
    pre = [[], [], [], []]

    def rd(dst, T, off):
        if off < 2048:
            o = (POS[(blk + T // 4) % 3] + (T % 4) * 4096 + off) // 512
            return f"ds_read2st64_b64 {v(dst,4)}, v{vBk} offset0:{o} offset1:{o+1}"
        a, o = kv_addr(blk + T // 4, T % 4, off)
        return f"ds_read_b128 {v(dst,4)}, v{a} offset:{o}"
    if u % 2 == 1:
        if not (u == 5 and blk > 0):
            A("s_waitcnt lgkmcnt(0)")
        tt = tn
        Kd, Vd = Kf[(tt + 1) % 2], Vf[tt % 2]
        rk = [rd(Kd, tt + 1, 0), rd(Kd + 4, tt + 1, 1024)]
        rv = [rd(Vd, tt, 2048), rd(Vd + 4, tt, 3072)]
        if W in (5, 61):
            mem[2].append(rv[0])
            mem[3].append(rv[1])
        elif W == 63:
            pass
        elif W == 7:
            A(rd(Kn, 4, 0))
            A(rd(Kn + 4, 4, 1024))
            m = [m[2], m[3], m[0], m[1]]
            mem[0] += [rk[0], rk[1]]
            mem[1] += [rv[0], rv[1]]
            pre[2].append("s_waitcnt lgkmcnt(4)")
        else:
            mem[0].append(rk[0])
            mem[1].append(rk[1])
            mem[2].append(rv[0])
            mem[3].append(rv[1])
    for q in range(4):
        for x in pre[q]:
            A(x)
        if m[q]:
            A(m[q])
        for x in mem[q] + (EXTRA.get((W, q), []) if not (OPT.get("nodma") and 23 <= W < 53) else []):
            A(x)
        for e in range(4):
            A(f"v_exp_f32 v{Sc+4*q+e}, v{Sc+4*q+e}")
    for hk in AFTER.get(W, []):
        hk()


def hook_bar0():
    spin(2, "L_spin1")
    A("""s_waitcnt vmcnt(0)
    s_barrier""")
    ts(6)


def mk_bar(n):
    def f():
        A(f"""s_waitcnt vmcnt({n}) lgkmcnt(0)""")
        if not OPT.get("nobar"):
            A("s_barrier")
    return f


def hook_pollc():
    A(f"""v_cmp_ne_u32 vcc, s{stag}, v{vQm}
    s_cmp_lg_u64 vcc, 0
    s_cbranch_scc1 L_pollc""")
    A.label("L_pollc_done")


hook_try()
for u in range(0, 6):
    AFTER.setdefault(u, []).append(hook_try)
AFTER.setdefault(6, []).append(hook_bar0)
extra(7, 2, kv_next(2) + "\n" + kv_piece(0))
extra(7, 3, kv_piece(1))
extra(8, 1, kv_piece(2))
extra(8, 3, kv_piece(3))
for i in range(4):
    extra(OPT["pubw"] + i // 2, [1, 3][i % 2], st16(Wf + 4 * i, vSt[i], sKVt)[0])
extra(9, 1, "\n".join(f"v_mov_b32 v{vOnes+r}, -1" for r in range(4)))
extra(40, 1, f"""v_lshrrev_b32 v{t0}, 2, v{vL16}
v_and_b32 v{t0}, 60, v{t0}
v_add_u32 v{t0}, {MISC}, v{t0}
v_mov_b32 v{t1}, 0
ds_write_b32 v{t0}, v{t1}""")
extra(10, 0, st16(vOnes, vL16, sOt)[0])
extra(10, 2, st16(vOnes, vL16, sOt, 1024)[0])
extra(8, 0, flag_text())
extra(30, 1, flag_text(True))
extra(17, 1, poll_text(0x7fff0000).replace("0x7fff0000", "0xffff0000"))


def hook_pollh():
    A(f"""v_cmp_ne_u32 vcc, s{stag}, v{vFl}
    s_and_b32 s{sD1}, vcc_lo, 0xffff0000
    s_cbranch_scc1 L_pollh""")
    A.label("L_pollh_done")


if OPT.get("tou"):
    sel = f"""v_mov_b32 v{t1}, v{vOs}
    s_cmp_eq_u32 s{sKap}, 0
    s_cbranch_scc1 L_tou
    v_mov_b32 v{t1}, v{vOs2}
    L_tou:
    s_add_u32 s{sT1}, s{sOut}, {8*1792}
    """
    if OPT["tou"] == 1:
        ops = [f"buffer_load_dword v{t2}, v{t1}, s[{sOUT}:{sOUT+3}], s{x} offen" for x in (sOut, sT1)]
    else:
        ops = [f"buffer_store_dwordx4 {v(vOnes,4)}, v{t1}, s[{sOUT}:{sOUT+3}], s{x} offen{OSC}" for x in (sOut, sT1)]
    extra(29, 1, sel + ops[0])
    extra(29, 3, ops[1])
wo_early = list(range(5, 13))
for i in range(1, 8):
    nwo = 2 if i == 1 else 0
    if i >= 2 and wo_early:
        for sl in (0, 2):
            extra(8 * i + 2, sl, wo_piece(wo_early.pop(0)))
            nwo += 1
    AFTER.setdefault(8 * i + 4, []).append(mk_bar(nwo))
    if i <= 5:
        extra(8 * i + 6, 0, kv_next(i + 2) + "\n" + kv_piece(0))
        extra(8 * i + 6, 2, kv_piece(1))
        extra(8 * i + 8, 0, kv_piece(2))
        extra(8 * i + 8, 2, kv_piece(3))
assert not wo_early
for k, r in enumerate([0, 1, 2, 3, 4, 13]):
    extra([54, 54, 55, 56, 56, 57][k], [0, 2, 1, 0, 2, 1][k], wo_piece(r))
extra(53, 1, f"buffer_load_dword v{vQm}, v{vPc}, s[{sWS}:{sWS+3}], s{sPc} offen sc1")
AFTER[60].append(hook_pollc)
sTk, sAv = sTodo, sRem


def oload(l):
    return f"""s_add_u32 s{sT0}, s{sOin}, {l*4096}
    buffer_load_dwordx4 {v(Of+4*l,4)}, v{vOa}, s[{sWS}:{sWS+3}], s{sT0} offen sc1"""


def cload(l):
    return f"""s_bitcmp1_b32 s{sAv}, {l}
    s_cselect_b64 exec, -1, 0
    {oload(l)}"""


POLL = f"""s_andn2_b32 exec_lo, 0xff, s{sTk}
    s_mov_b32 exec_hi, 0
    buffer_load_dword v{vQm}, v{vLp}, s[{sWS}:{sWS+3}], s{sOin} offen sc1
    s_mov_b64 exec, -1"""
extra(63, 1, f"ds_read_b32 v{t2}, v{vMf}")
for i in range(8):
    extra(63, 1 + i // 3, f"ds_read_b128 {v(S[0]+4*i,4)}, v{vRw} offset:{1024*i}")


def hook_epoch():
    A(f"""s_or_b32 s{sT0}, s{sh}, s{sj}
    s_or_b32 s{sT0}, s{sT0}, s{sw}
    s_cbranch_scc0 L_epoch""")
    A.label("L_epd")


AFTER[60].append(hook_epoch)


def hook_prio():
    A(f"""s_setprio 1
    s_cmp_lg_u32 s{sKap}, 0
    s_cbranch_scc1 L_pr
    s_setprio 2""")
    A.label("L_pr")


AFTER[60].append(hook_prio)
AFTER[20].append(hook_pollh)
PSEG = {1: [(0, 0, 3), (3, 0, 2), (6, 0, 1), (7, 2, 0)], 2: [(0, 0, 3), (4, 0, 2), (6, 2, 1), (7, 3, 0)],
        3: [(0, 0, 1), (7, 2, 0)], 4: [(0, 0, 3), (2, 0, 2), (4, 0, 1), (6, 0, 0)], 5: [(0, 0, 1), (7, 0, 0)],
        6: [(0, 0, 2), (5, 0, 1), (7, 2, 0)]}
if OPT.get("pseg"):
    for (ww, sl, pr) in [(0, 0, 3), (3, 0, 2), (5, 2, 1), (6, 3, 0), (7, 0, 3), (9, 0, 2), (11, 2, 1), (12, 3, 0)]:
        EXTRA.setdefault((ww, sl), []).insert(0, f"s_setprio {pr}")
    for i in range(1, 7):
        for (dw, sl, pr) in PSEG[OPT["pseg"]]:
            EXTRA.setdefault((8 * i + 5 + dw, sl), []).insert(0, f"s_setprio {pr}")
if OPT.get("prio"):
    A(f"""s_cmp_eq_u32 s{sKap}, {OPT["prio"] & 1}
    s_cbranch_scc0 L_np
    s_setprio 1""")
    A.label("L_np")
for W in range(64):
    if W in (24, 48):
        ts(1 if W == 24 else 2, 4)
    window(W)
A(f"""s_nop 0
v_smfmac_f32_32x32x32_bf16 {v(O[1],16)}, {v(Vf[1],4)}, {v(S[3],8)}, v{vIdx}
v_smfmac_f32_32x32x32_bf16 {v(O[1],16)}, {v(Vf[1]+4,4)}, {v(S[3]+8,8)}, v{vIdx}""")
ts(7)

R = S[0]
A(f"""s_cmp_eq_u32 s{sKap}, 0
s_cbranch_scc1 L_p3
s_waitcnt vmcnt(0) lgkmcnt(0)
v_readfirstlane_b32 s{sT0}, v{t2}
s_cmp_eq_u32 s{sT0}, 0
s_cbranch_scc1 L_mwait""")
A.label("L_mgo")
for q in range(2):
    for r in range(0, 16, 2):
        A(f"v_pk_add_f32 {v(O[q]+r,2)}, {v(O[q]+r,2)}, {v(R+16*q+r,2)}")
A.label("L_norm")
rc = [vFl, S[2]]
A(f"""v_mov_b32 v{t0}, v{O[0]+12}
v_mov_b32 v{rc[0]}, v{O[0]+12}
v_mov_b32 v{t1}, v{O[1]+12}
v_mov_b32 v{rc[1]}, v{O[1]+12}
s_add_u32 s{sT0}, s{sOp}, 32768
v_permlane32_swap_b32 v{t0}, v{rc[0]}
v_permlane32_swap_b32 v{t1}, v{rc[1]}
v_subrev_u32 v{t0}, {hex(L_LO)}, v{rc[0]}
v_subrev_u32 v{t1}, {hex(L_LO)}, v{rc[1]}
v_max_u32 v{t0}, v{t0}, v{t1}
v_cmp_lt_u32 vcc, s{sChk}, v{t0}
s_cmp_lg_u64 vcc, 0
s_cbranch_scc1 L_slow
v_rcp_f32 v{rc[0]}, v{rc[0]}
v_rcp_f32 v{rc[1]}, v{rc[1]}""")
for q in range(2):
    po = [pk, pq][q]
    so = [sOp, sT0][q]
    for r in range(0, 16, 2):
        A(f"v_pk_mul_f32 {v(O[q]+r,2)}, {v(O[q]+r,2)}, {v(rc[q],2)} op_sel_hi:[1,0]")
    for r in range(8):
        A(f"v_cvt_pk_bf16_f32 v{po+r}, v{O[q]+2*r}, v{O[q]+2*r+1}")
    for r in (6, 7):
        A(f"v_cndmask_b32 v{po+r}, 0, v{po+r}, s[{sLo}:{sLo+1}]")
    for r in range(8):
        A(f"v_min_u32 v{po+r}, -2, v{po+r}")
    A(f"""buffer_store_dwordx4 {v(po,4)}, v{vL16}, s[{sWS}:{sWS+3}], s{so} offen sc1
    buffer_store_dwordx4 {v(po+4,4)}, v{vL16}, s[{sWS}:{sWS+3}], s{so} offen offset:1024 sc1""")
ts(8)


TILES = list(range(O[0], Of, 4)) + [DEAD, DEAD + 4]
assert len(TILES) >= 42
rx = S[2]
pk2, rb = Q[0], Q[1]
sOk = sDone
OOL = []


def wtile(l, ct):
    return TILES[7 * (l % 6) + ct]


def wtext(l, ct):
    a0, a1, off = (vW0, vW1, l * 12544) if l < 6 else (t1, t2, 0) if l == 6 else (t3, t4, 0)
    d = wtile(l, ct)
    return f"""ds_read_b64_tr_b16 {v(d,2)}, v{a0} offset:{off+32*ct}
    ds_read_b64_tr_b16 {v(d+2,2)}, v{a1} offset:{off+32*ct}"""


A.label("L_p3e")
if OPT["ts"] == 5:
    A("s_mov_b32 s11, 1")
tsd(0)
A(f"s_mov_b32 s{sSpin}, 0x40000")
sSl = 14
vXw = [vTw, vLane, vIdx, t5]
for l in range(8):
    A(f"s_add_u32 s{sSl+l}, s{sOin}, {4096*l}")
A.label("L_p3r")
A(f"""s_mov_b32 s{sTk}, 0
v_add_u32 v{t1}, {6*12544}, v{vW0}
v_add_u32 v{t2}, {6*12544}, v{vW1}
v_add_u32 v{t3}, s{sSp}, v{vW0}
v_add_u32 v{t4}, s{sSp}, v{vW1}
s_waitcnt lgkmcnt(0)""")
for i in range(42):
    if i >= 6 and i % 3 == 0:
        A("s_waitcnt lgkmcnt(8)")
    if i == OPT["pp"]:
        A(POLL)
    A(wtext(i // 7, i % 7))
tsd(1)
A("s_branch L_w1")
A.label("L_w0")
if OPT.get("slp"):
    A(f"s_sleep {OPT['slp']}")
A(POLL)
A.label("L_w1")
A(f"""s_sub_u32 s{sSpin}, s{sSpin}, 1
s_cselect_b32 s{sT0}, 0xff, 0
s_cselect_b32 s{sSpin}, 0, s{sSpin}
s_waitcnt vmcnt(0)
v_cmp_ne_u32 vcc, -1, v{vQm}
s_or_b32 s{sTk}, vcc_lo, s{sT0}
s_andn2_b32 s{sT0}, 0xff, s{sTk}
s_cbranch_scc1 L_w0""")
tsd(9)
for l in range(8):
    A(f"buffer_load_dwordx4 {v(Of+4*l,4)}, v{vOa}, s[{sWS}:{sWS+3}], s{sSl+l} offen sc1")
tsd(7)
A(f"""v_mov_b32 v{vFl}, 1
s_add_u32 s{sT1}, s{sOut}, {8*1792}""")
for ct in range(1, 4):
    A(f"v_xor_b32 v{vXw[ct]}, {32*ct}, v{vTw}")
ORD = [0, 2, 1, 3, 4, 5, 6, 7]
for k, l in enumerate(ORD):
    b0 = Of + 4 * l
    A(f"s_waitcnt vmcnt({7-max(ORD[:k+1])})" + (" lgkmcnt(0)" if l in (0, 1, 6) else ""))
    if k == 0:
        tsd(2)
    for ct in range(7):
        A(f"v_mfma_f32_16x16x32_bf16 {v(acc+4*ct,4)}, {v(wtile(l,ct),4)}, {v(b0,4)}, {'0' if k == 0 else v(acc+4*ct,4)}")
        if l < 2:
            A(wtext(6 + l, ct))
        if ct == 1:
            A(f"v_max3_u32 v{t0}, v{b0}, v{b0+1}, {'0' if k == 0 else f'v{t0}'}")
        if ct == 3:
            A(f"v_max3_u32 v{t0}, v{b0+2}, v{b0+3}, v{t0}")
        if ct == 5 and k == 7:
            A(f"v_cmp_eq_u32 vcc, -1, v{t0}")
A(f"""s_cmp_lg_u64 vcc, 0
s_cbranch_scc1 L_redo""")
A.label("L_good")
OOL.append(f"""L_redo:
s_sub_u32 s{sSpin}, s{sSpin}, 1
s_cbranch_scc0 L_p3r
s_branch L_good""")
tsd(3)
ts(9)
tsa(8)


def p3(kap):
    n = f"k{kap}"
    keep = [0, 1, 2, 3] if kap == 0 else [4, 5, 6]
    send = [4, 5, 6] if kap == 0 else [0, 1, 2, 3]
    wa_, ra_ = (vSn, vRw) if kap == 0 else (vRw, vSn)
    A(f"s_mov_b32 s{sSpin}, 0x400000")
    for i, ct in enumerate(send):
        A(f"ds_write_b128 v{wa_}, {v(acc+4*ct,4)} offset:{1024*i}")
    A(f"ds_write_b32 v{vMf}, v{vFl} offset:{16+16*kap}")
    A.label(f"L_x{n}")
    A(f"ds_read_b32 v{t0}, v{vMf} offset:{32-16*kap}")
    for i in range(len(keep)):
        A(f"ds_read_b128 {v(rx+4*i,4)}, v{ra_} offset:{1024*i}")
    A(f"""s_sub_u32 s{sSpin}, s{sSpin}, 1
    s_cbranch_scc1 L_y{n}
    s_waitcnt lgkmcnt({len(keep)})
    v_readfirstlane_b32 s{sT0}, v{t0}
    s_cmp_eq_u32 s{sT0}, 0
    s_cbranch_scc1 L_xs{n}""")
    OOL.append(f"""L_xs{n}:
    s_sleep {OPT.get("xs", 1)}
    ds_read_b32 v{t0}, v{vMf} offset:{32-16*kap}
    s_sub_u32 s{sSpin}, s{sSpin}, 1
    s_waitcnt lgkmcnt(0)
    s_cbranch_scc1 L_y{n}
    v_readfirstlane_b32 s{sT0}, v{t0}
    s_cmp_eq_u32 s{sT0}, 0
    s_cbranch_scc1 L_xs{n}
    s_branch L_x{n}""")
    A.label(f"L_y{n}")
    tsd(4)
    tsa(9)
    wa = vXw
    for i, ct in enumerate(keep):
        A(f"""s_waitcnt lgkmcnt({len(keep)-1})
        v_pk_add_f32 {v(acc+4*ct,2)}, {v(acc+4*ct,2)}, {v(rx+4*i,2)}
        v_pk_add_f32 {v(acc+4*ct+2,2)}, {v(acc+4*ct+2,2)}, {v(rx+4*i+2,2)}
        v_cvt_pk_bf16_f32 v{pk2+2*i}, v{acc+4*ct}, v{acc+4*ct+1}
        v_cvt_pk_bf16_f32 v{pk2+2*i+1}, v{acc+4*ct+2}, v{acc+4*ct+3}
        ds_write_b64 v{wa[i]}, {v(pk2+2*i,2)}""")
    os_ = vOs if kap == 0 else vOs2
    A(f"""ds_read_b128 {v(rb,4)}, v{vTr}
    ds_read_b128 {v(rb+4,4)}, v{vTr} offset:1024
    s_waitcnt lgkmcnt(1)
    buffer_store_dwordx4 {v(rb,4)}, v{os_}, s[{sOUT}:{sOUT+3}], s{sOut} offen{OSC}
    s_waitcnt lgkmcnt(0)
    buffer_store_dwordx4 {v(rb+4,4)}, v{os_}, s[{sOUT}:{sOUT+3}], s{sT1} offen{OSC}""")


assert Vf[1] == Kf[0] + 24 and O[1] == O[0] + 16
A(f"""s_cmp_eq_u32 s{sKap}, 0
s_cbranch_scc1 L_x0""")
p3(1)
A("s_branch L_noep")
OLDER = "L_p3:\ns_waitcnt lgkmcnt(0)\n" + "\n".join(
    f"ds_write_b128 v{vRw}, {v(O[0]+4*i,4)} offset:{1024*i}" for i in range(8)) + f"""
v_mov_b32 v{t0}, 1
ds_write_b32 v{vMf}, v{t0}
s_setprio {OPT.get("op", 0)}
s_waitcnt vmcnt(0)
s_branch L_p3e"""
OOL.insert(0, OLDER)
A.label("L_x0")
p3(0)
A.label("L_noep")
if OPT.get("padto"):
    A.label("L_pad")
    A(f"""s_sleep 4
    s_memrealtime s[{sRet}:{sRet+1}]
    s_waitcnt lgkmcnt(0)
    s_sub_u32 s{sT0}, s{sRet}, s{sTS}
    s_cmp_lt_u32 s{sT0}, {OPT["padto"]}
    s_cbranch_scc1 L_pad""")
tsd(5)
tsa(10)
if OPT["ts"] == 6:
    A("s_waitcnt lgkmcnt(0)")
    for i, r in enumerate(ASR):
        A(f"v_writelane_b32 v{vTS}, s{r}, {i+1}")
    A(f"""s_sub_u32 s{sRem}, 0x7fffffff, s{sRem}
    v_writelane_b32 v{vTS}, s{sRem}, 13
    v_writelane_b32 v{vTS}, s19, 14""")
if OPT["ts"]:
    A("s_waitcnt vmcnt(0)")
    ts(10)
    tsd(6)
    ts(12, 6)
    A(f"""s_lshl_b32 s{sT0}, s2, 3
    s_add_u32 s{sT0}, s{sT0}, s{sw}
    s_lshl_b32 s{sT0}, s{sT0}, {8 if OPT["ts"] == 5 else 6}
    s_add_u32 s{sT0}, s{sT0}, {TS_OFF}
    s_getreg_b32 s{sT1}, hwreg(HW_REG_XCC_ID)
    {"s_nop 0" if OPT["ts"] == 5 else f"v_writelane_b32 v{vTS}, s{sT1}, 15"}
    v_lshrrev_b32 v{t0}, 2, v{vL16}
    s_mov_b64 exec, {-1 if OPT["ts"] == 5 else "0xffff"}
    buffer_store_dword v{vTS}, v{t0}, s[{sWS}:{sWS+3}], s{sT0} offen""")
    if OPT.get("dbg"):
        A(f"""v_readlane_b32 s{sT0}, v{vTS}, 0
        s_not_b32 s{sT0}, s{sT0}
        v_writelane_b32 v{vTS}, s{sT0}, 15
        s_mov_b32 s{sX}, s22
        s_mov_b32 s{sX+1}, s23
        s_mov_b32 s{sX+2}, 256
        buffer_atomic_umax v{vTS}, v{t0}, s[{sX}:{sX+3}], 0 offen""")
A.label("L_end")
A("s_endpgm")

for x in OOL:
    A(x)
A.label("L_epoch")
A(f"""s_add_u32 s{sE}, s{sE}, 1
s_lshl_b32 s{sT0}, s{sb}, 8
s_add_u32 s{sT0}, s{sT0}, {EPOCH_OFF}
v_mov_b32 v{t1}, s{sE}
s_mov_b64 exec, 1
buffer_store_dword v{t1}, v{vL16}, s[{sWS}:{sWS+3}], s{sT0} offen sc1
s_mov_b64 exec, -1
s_branch L_epd""")
A.label("L_mwait")
A(f"s_mov_b32 s{sSpin}, 0x400000")
A.label("L_mwait1")
A(f"ds_read_b32 v{t2}, v{vMf}")
for i in range(8):
    A(f"ds_read_b128 {v(R+4*i,4)}, v{vRw} offset:{1024*i}")
A(f"""s_sub_u32 s{sSpin}, s{sSpin}, 1
s_waitcnt lgkmcnt(0)
s_cbranch_scc1 L_mgo
v_readfirstlane_b32 s{sT0}, v{t2}
s_cmp_eq_u32 s{sT0}, 0
s_cbranch_scc1 L_mwait1
s_branch L_mgo""")

A.label("L_try")
A(f"""s_waitcnt vmcnt(0)
v_cmp_ne_u32 vcc, s{stag}, v{vFl}
s_cmp_lg_u32 s{sDone}, 0
s_cbranch_scc1 L_try1
s_or_b32 s{sD1}, vcc_lo, vcc_hi
s_and_b32 s{sD1}, s{sD1}, 15
s_cbranch_scc0 L_try0""")
A(POLL0)
A(f"s_setpc_b64 s[{sRet}:{sRet+1}]")
A.label("L_try0")
ts(5)
A(f"""s_add_u32 m0, s{sMX}, {POS[0]}
s_add_u32 s{sD0}, s{sRel}, s{sKV}""")
for i in range(4):
    A(kv_piece(i))
A(f"""s_add_u32 s{sD0}, s{sRel}, 0x8000
s_and_b32 s{sD0}, s{sD0}, 0x3ffff
s_add_u32 m0, s{sMX}, {POS[0]+16384}
s_add_u32 s{sD0}, s{sD0}, s{sKV}""")
for i in range(4):
    A(kv_piece(i))
A(f"""s_mov_b32 s{sDone}, 1
s_branch L_again""")
A.label("L_try1")
A(f"""s_and_b32 s{sD1}, vcc_lo, 0xffff
s_cbranch_scc1 L_again""")
ts(13)
A(kv_next(1))
for i in range(4):
    A(kv_piece(i))
A(f"""s_mov_b32 s{sDone}, 2
s_setpc_b64 s[{sRet}:{sRet+1}]""")
A.label("L_again")
poll_issue(0xffff)
A(f"s_setpc_b64 s[{sRet}:{sRet+1}]")

A.label("L_pollc")
A(f"s_mov_b32 s{sSpin}, 0x40000")
A.label("L_pollc1")
A(f"""buffer_load_dword v{vQm}, v{vPc}, s[{sWS}:{sWS+3}], s{sPc} offen sc1
s_sub_u32 s{sSpin}, s{sSpin}, 1
s_cbranch_scc1 L_pollc_done
s_waitcnt vmcnt(0)
v_cmp_ne_u32 vcc, s{stag}, v{vQm}
s_cmp_lg_u64 vcc, 0
s_cbranch_scc1 L_pollc1
s_branch L_pollc_done""")

A.label("L_pollh")
A(f"s_mov_b32 s{sSpin}, 0x40000")
A.label("L_pollh1")
A(poll_text(0x7fff0000).replace('0x7fff0000', '0xffff0000'))
A(f"""s_sub_u32 s{sSpin}, s{sSpin}, 1
s_cbranch_scc1 L_pollh_done
s_waitcnt vmcnt(0)
v_cmp_ne_u32 vcc, s{stag}, v{vFl}
s_and_b32 s{sD1}, vcc_lo, 0xffff0000
s_cbranch_scc1 L_pollh1
s_branch L_pollh_done""")

A.label("L_slow")
Sx, vMn, vAl = S[2], t2, t3
vM = [t4, t5]
A(f"""s_mov_b32 s{sChk}, -1
v_lshlrev_b32 v{vBk}, 3, v{vLane}
v_mov_b32 v{vM[0]}, 0xff7fffff
v_mov_b32 v{vM[1]}, 0xff7fffff
s_mov_b32 s{sT0}, s{sKV}
s_mov_b32 s{sI}, 0""")
for r in range(32):
    A(f"v_mov_b32 v{O[0]+r}, 0")
A.label("L_slow_t")
for i in range(4):
    A(f"buffer_load_dwordx2 {v(Kf[0]+2*i,2)}, v{vBk}, s[{sWS}:{sWS+3}], s{sT0} offen offset:{512*i} sc1")
A(f"""buffer_load_dwordx4 {v(Vf[0],4)}, v{vL16}, s[{sWS}:{sWS+3}], s{sT0} offen offset:2048 sc1
buffer_load_dwordx4 {v(Vf[0]+4,4)}, v{vL16}, s[{sWS}:{sWS+3}], s{sT0} offen offset:3072 sc1
s_add_u32 s{sT0}, s{sT0}, 4096
s_waitcnt vmcnt(0)""")
for q in range(2):
    A(f"""v_mfma_f32_32x32x16_bf16 {v(Sx,16)}, {v(Kf[0],4)}, {v(Q[q],4)}, 0
    v_mfma_f32_32x32x16_bf16 {v(Sx,16)}, {v(Kf[0]+4,4)}, {v(Q[q]+4,4)}, {v(Sx,16)}
    v_max3_f32 v{t0}, v{Sx}, v{Sx+1}, v{vM[q]}""")
    for r in range(2, 16, 2):
        A(f"v_max3_f32 v{t0}, v{Sx+r}, v{Sx+r+1}, v{t0}")
    A(f"""v_mov_b32 v{t1}, v{t0}
    v_permlane32_swap_b32 v{t0}, v{t1}
    v_max_f32 v{vMn}, v{t0}, v{t1}
    v_sub_f32 v{vAl}, v{vM[q]}, v{vMn}
    v_exp_f32 v{vAl}, v{vAl}
    v_mov_b32 v{vM[q]}, v{vMn}""")
    for r in range(16):
        A(f"v_sub_f32 v{Sx+r}, v{Sx+r}, v{vMn}")
    for r in range(16):
        A(f"v_exp_f32 v{Sx+r}, v{Sx+r}")
    for r in range(16):
        A(f"v_mul_f32 v{O[q]+r}, v{vAl}, v{O[q]+r}")
    A(f"""v_smfmac_f32_32x32x32_bf16 {v(O[q],16)}, {v(Vf[0],4)}, {v(Sx,8)}, v{vIdx}
    v_smfmac_f32_32x32x32_bf16 {v(O[q],16)}, {v(Vf[0]+4,4)}, {v(Sx+8,8)}, v{vIdx}""")
A(f"""s_add_u32 s{sI}, s{sI}, 1
s_cmp_lt_u32 s{sI}, 64
s_cbranch_scc1 L_slow_t
s_nop 11
s_branch L_norm""")

n = A.fix_hazards(verbose=bool(OPT.get("v", 0)))
NV = -(-V.hi // 8) * 8
hdr = open("cdna_kernels/" + NAME + ".s.ref").read().split("; Override launch")[0]
out = hdr + f"""; Fused kernel: QKV projection -> softmax attention -> output projection, one workgroup per
; (branch, head, 256-token block).  Generated by gen/gen.py.
; @launch grid=(256,1,1) block=(512,1,1) lds={LDS_BYTES}
.amdgcn_target "amdgcn-amd-amdhsa--gfx950"
.text
.globl {NAME}_kernel
.p2align 8
.type {NAME}_kernel,@function
""" + A.text().replace("CODE_SPAN", "L_slow-L_nopf") + f""".section .rodata,"a"
.p2align 6
.amdhsa_kernel {NAME}_kernel
  .amdhsa_next_free_vgpr {NV}
  .amdhsa_next_free_sgpr {NSGPR}
  .amdhsa_accum_offset {NV}
  .amdhsa_group_segment_fixed_size 0
  .amdhsa_kernarg_size 72
  .amdhsa_user_sgpr_count 2
  .amdhsa_user_sgpr_kernarg_segment_ptr 1
  .amdhsa_system_sgpr_workgroup_id_x 1
.end_amdhsa_kernel
"""
open(sys.argv[1], "w").write(out)
print(f"wrote {sys.argv[1]}: {len(A.lines)} lines, {n} nops inserted, {NV} vgprs", file=sys.stderr)
```

```python
import sys, struct, math
from asmlib import Asm, Alloc, v, s

NAME = "concat_heads__softmax_full_mha__softmax_full_mha__prompt"

OPT = dict(ts=0, force_slow=0, rot=2, map=1, pf=1, pq=14, tq=6, fq=0, padg=14, pubw=1, pseg=2, npro=0, pp=24, tou=1,
           osc=0, nw0=4, na=2, n1=2, cg=23, xl=4, wqe=0, wqd=2, wqf=0, nb=10, lf=2, yp=0, tch=0)
for a in sys.argv[2:]:
    k, val = a.split("=")
    OPT[k] = int(val)

FLAG_OFF = 0xD00000
ES = OPT.get("es", 7)
FS = OPT.get("fs", 16 << ES)
HINT = 0x80000
EPOCH_OFF = 0x10000
TS_OFF = 0x20000
KV_OFF = 0x100000
O_OFF = 0x900000
WS_BYTES = 0x1000000
OOB = 0x40000000

XS = 32768
WL = 98304
WQ = 0
QOLD = 155648
WOB = 66944
WO15 = 32768
MISC = 161280
SND = 16384
LDS_BYTES = 163840

CSCALE = math.log2(math.e) / math.sqrt(28.0)
L_LO = (127 - 60) << 23
L_RANGE = 120 << 23


def f2u(x):
    return struct.unpack("<I", struct.pack("<f", x))[0]


NTX = " nt" if OPT.get("ntx") else ""
NTW = " nt" if OPT.get("ntw") else ""
OSC = ["", " sc1", " nt", " sc0 sc1", " sc1 nt"][OPT.get("osc", 3)]
A = Asm()
sWm, sWm13 = 26, 27
sX, sW, sWS, sWO, sOUT = 28, 32, 36, 40, 44
sw, sb, sh, sj, stag, sE = 48, 49, 50, 51, 52, 53
sCx, sXb, sWb, sMX, sMW, sCw = 54, 55, 56, 57, 58, 59
sT0, sT1, sT2, sT3 = 60, 61, 62, 63
sLo = 64
sLine, sRole = 66, 67
sHo = 10
sWb0, sSp = 12, 13
sLpx = 8
sKV = 68
sMXs, sWq = 69, 70
sI, sRel, sWn, sHH = 71, 72, 73, 74
sSpin = 75
sOt = 76
sWoff = 77
sKap = 78
sFl = 79
sTS = 80
sRet = 82
sDone, sTodo = 84, 85
sOin = 86
sPc = 87
sOut = 88
sChk = 89
sCs = 90
sKVt = 92
sD0, sD1 = 93, 94
sPend, sRem = 95, 96
sOp = 97
sRdy = 98
sHi, sPl, sC0, sMQ = 4, 5, 6, 7
sCq, sNone = 3, 100
NSGPR = 102


def ts(idx, grp=1):
    if OPT.get("padat") == 100 * grp + idx:
        A(f"s_memrealtime s[{sTS}:{sTS+1}]\ns_waitcnt lgkmcnt(0)")
    if not OPT["ts"] or (idx != 0 and OPT["ts"] != grp):
        return
    A(f"""{"s_memtime" if OPT.get("clk") else "s_memrealtime"} s[{sTS}:{sTS+1}]
    s_waitcnt lgkmcnt(0)
    v_writelane_b32 v{vTS}, s{sTS}, {idx}""")


def tsd(code, val=0):
    A(tsdt(code, val))


def tsdt(code, val=0):
    if OPT["ts"] != 5:
        return ""
    return (f"""s_memrealtime s[{sTS}:{sTS+1}]
    s_waitcnt lgkmcnt(0)
    s_lshl_b32 s{sTS}, s{sTS}, 8
    s_or_b32 s{sTS}, s{sTS}, {code << 4}
    s_or_b32 s{sTS}, s{sTS}, {val}
    s_mov_b32 m0, s11
    v_writelane_b32 v{vTS}, s{sTS}, m0
    s_add_u32 s11, s11, 1
    s_min_u32 s11, s11, 63""")


ASR = [20, 22, 54, 56, 58, 68, 66, 72, 90, 26, 6]


def tsa(i):
    if OPT["ts"] == 6:
        A(f"s_memrealtime s[{ASR[i]}:{ASR[i]+1}]")


class Cnt:
    def __init__(self, name, cap):
        self.name, self.cap, self.q = name, cap, []

    def room(self):
        if len(self.q) >= self.cap:
            A(f"s_waitcnt {self.name}({self.cap - 4})")
            self.q = self.q[len(self.q) - (self.cap - 4):]

    def issue(self, tag, n=1):
        self.q += [tag] * n
        assert len(self.q) <= self.cap, (self.name, self.q)

    def wait(self, *tags):
        idx = [i for i, t in enumerate(self.q) if t in tags]
        if idx:
            n = len(self.q) - 1 - idx[-1]
            A(f"s_waitcnt {self.name}({n})")
            self.q = self.q[idx[-1] + 1:]


def lines(text):
    return [x.strip() for x in text.split("\n") if x.strip()]


def emit(lst, n):
    for _ in range(min(n, len(lst))):
        A(lst.pop(0))


V = Alloc(1, 256)
vLane = V()
vTS = V()
vL16 = V()
vIdx = V()
vT = [V() for _ in range(6)]
t0, t1, t2, t3, t4, t5 = vT
vQm = V()
DEAD = V(8)
vQw, vQr, vBase, vCur, vWod, vPl, vPc, vBk = range(DEAD, DEAD + 8)
vOa, vW0, vW1, vSn, vRw, vMf, vTw, vTr, vOs, vOs2, vLp = [V() for _ in range(11)]
vTag = V()
vFl = V(2)
m_ph = V.mark()
Xr = V(112)
acc0, acc1 = V(16), V(16)
Wf = V(24)
accQ = V(16)
Wg = V(12)
vXd = [V() for _ in range(4)]
vWd, vWd2 = V(), V()
vWq = V()
vXa = [V() for _ in range(4)]
vWr = [V(), V()]
vWqr = V()
vSt = [V() for _ in range(4)]
vP = [V()]
vPd = V(4)
vOnes = accQ
V.reset(m_ph)
O = [V(16), V(16)]
Q = [V(8), V(8)]
S = [V(16) for _ in range(4)]
Kf = [V(8), V(8)]
Vf = [V(8), V(8)]
pk, pq = V(8), V(8)
Of = V(32)
acc = V(28)
assert O[0] == Xr

A.label(NAME + "_kernel")
A(f"""s_cmp_ge_u32 s2, 256
s_cbranch_scc1 L_end
s_load_dwordx16 s[8:23], s[0:1], 0
s_load_dwordx2 s[24:25], s[0:1], 64
v_lshrrev_b32 v{t0}, 6, v0
v_and_b32 v{vLane}, 63, v0
v_readfirstlane_b32 s{sw}, v{t0}
v_lshlrev_b32 v{vL16}, 4, v{vLane}""")
if OPT.get("padto"):
    A(f"s_memrealtime s[{sTS}:{sTS+1}]")
if OPT["ts"]:
    A(f"""{"s_memtime" if OPT.get("clk") else "s_memrealtime"} s[{sTS}:{sTS+1}]
    v_mov_b32 v{vTS}, 0""")
if OPT["map"] == 1:
    A(f"""s_and_b32 s{sT0}, s2, 7
    s_lshr_b32 s{sT1}, s2, 3
    s_and_b32 s{sj}, s{sT1}, 7
    s_lshr_b32 s{sT1}, s{sT1}, 3
    s_lshl_b32 s{sT0}, s{sT0}, 2
    s_add_u32 s{sHH}, s{sT0}, s{sT1}""")
elif OPT["map"] == 2:
    A(f"""s_and_b32 s{sT0}, s2, 7
    s_lshr_b32 s{sT1}, s2, 3
    s_and_b32 s{sT2}, s{sT0}, 3
    s_lshl_b32 s{sT2}, s{sT2}, 1
    s_lshr_b32 s{sT3}, s{sT1}, 4
    s_add_u32 s{sj}, s{sT2}, s{sT3}
    s_lshr_b32 s{sT0}, s{sT0}, 2
    s_lshl_b32 s{sT0}, s{sT0}, 4
    s_and_b32 s{sT1}, s{sT1}, 15
    s_add_u32 s{sHH}, s{sT0}, s{sT1}""")
elif OPT["map"] == 3:
    A(f"""s_and_b32 s{sT0}, s2, 7
    s_lshr_b32 s{sT1}, s2, 3
    s_and_b32 s{sT2}, s{sT0}, 1
    s_lshl_b32 s{sT2}, s{sT2}, 2
    s_lshr_b32 s{sT3}, s{sT1}, 3
    s_add_u32 s{sj}, s{sT2}, s{sT3}
    s_lshr_b32 s{sT0}, s{sT0}, 1
    s_lshl_b32 s{sT0}, s{sT0}, 3
    s_and_b32 s{sT1}, s{sT1}, 7
    s_add_u32 s{sHH}, s{sT0}, s{sT1}""")
A(f"""s_lshr_b32 s{sb}, s{sHH}, 4
s_and_b32 s{sh}, s{sHH}, 15
s_lshr_b32 s{sKap}, s{sw}, 2""")
A(f"""s_cmp_gt_u32 s{sh}, 7
s_cselect_b32 s{sRole}, 1, 0
s_cselect_b32 s{sT0}, 16, 1
s_cselect_b32 s{sT1}, 1, 2
s_cselect_b32 s{sT2}, 2, 8
s_cselect_b32 s{sT3}, 8, 16
v_bfe_u32 v{t0}, v{vLane}, 3, 1
v_mul_u32_u24 v{t0}, s{sT0}, v{t0}
v_bfe_u32 v{t1}, v{vLane}, 4, 1
v_mad_u32_u24 v{t0}, v{t1}, s{sT1}, v{t0}
v_lshrrev_b32 v{t1}, 5, v{vLane}
v_lshl_add_u32 v{t0}, v{t1}, 2, v{t0}
v_mul_u32_u24 v{t3}, 896, v{t0}
s_mul_i32 s{sT2}, s{sT2}, 896
s_mul_i32 s{sT3}, s{sT3}, 896
s_sub_u32 s{sT2}, s{sT2}, 1024
s_sub_u32 s{sT3}, s{sT3}, 2048
v_lshrrev_b32 v{t1}, 4, v{vLane}
v_and_b32 v{t2}, 7, v{vLane}
v_xor_b32 v{t1}, v{t1}, v{t2}
v_lshl_add_u32 v{vXd[0]}, v{t1}, 4, v{t3}
v_xor_b32 v{t1}, 4, v{t1}
v_lshl_add_u32 v{t1}, v{t1}, 4, v{t3}
v_add_u32 v{vXd[1]}, s{sT2}, v{t1}
v_add_u32 v{vXd[2]}, s{sT3}, v{vXd[0]}
v_add_u32 v{vXd[3]}, s{sT3}, v{vXd[1]}
s_lshl_b32 s{sT0}, s{sj}, 3
s_add_u32 s{sT0}, s{sT0}, s{sw}
s_mul_i32 s{sXb}, s{sT0}, {32*896}
s_lshl_b32 s{sMX}, s{sw}, 12
s_lshl_b32 s{sT0}, s{sKap}, 14
s_add_u32 s{sMXs}, s{sMX}, s{sT0}
s_add_u32 s{sMXs}, s{sMXs}, {XS}""")
if OPT["rot"] == 0:
    A(f"s_mov_b32 s{sC0}, 0")
else:
    if OPT["rot"] == 1:
        A(f"s_add_u32 s{sC0}, s{sh}, s{sj}")
    elif OPT["rot"] == 2:
        A(f"""s_mul_i32 s{sC0}, s{sh}, 7
        s_lshr_b32 s{sC0}, s{sC0}, 4
        s_add_u32 s{sC0}, s{sC0}, s{sj}""")
    elif OPT["rot"] == 3:
        A(f"""s_mul_i32 s{sC0}, s{sh}, 7
        s_lshr_b32 s{sC0}, s{sC0}, 4""")
    A(f"""s_mul_i32 s{sT1}, s{sC0}, 37
    s_lshr_b32 s{sT1}, s{sT1}, 8
    s_mul_i32 s{sT1}, s{sT1}, 7
    s_sub_u32 s{sC0}, s{sC0}, s{sT1}""")
if OPT["pf"]:
    A(f"""s_and_b32 s{sT0}, s2, 0xf8
    s_add_u32 s{sT0}, s{sT0}, s{sw}
    s_mul_i32 s{sT0}, s{sT0}, 192
    s_getpc_b64 s[{sRet}:{sRet+1}]""")
    A.label("L_nopf")
    A(f"""v_and_b32 v{t4}, 0x80, v{vL16}
    v_add_u32 v{t4}, s{sT0}, v{t4}
    v_min_u32 v{t4}, CODE_SPAN, v{t4}
    global_load_dword v{t5}, v{t4}, s[{sRet}:{sRet+1}]""")
A(f"""s_lshl_b32 s{sCx}, s{sC0}, 7
s_mov_b32 s{sX+2}, {2048*896}
s_mov_b32 s{sX+3}, 0x20000
s_cmp_eq_u32 s{sb}, 0
s_waitcnt lgkmcnt(0)
s_cselect_b32 s{sX}, s8, s14
s_cselect_b32 s{sX+1}, s9, s15
s_cselect_b32 s{sW}, s10, s16
s_cselect_b32 s{sW+1}, s11, s17
s_cselect_b32 s{sWO}, s12, s18
s_cselect_b32 s{sWO+1}, s13, s19""")
if OPT["ts"]:
    A(f"v_writelane_b32 v{vTS}, s{sTS}, 0")
ts(14, 2)


def x_pieces(c):
    p = [f"""s_add_u32 m0, s{sMXs}, {(c % 2) * 16384}
    s_add_u32 s{sD0}, s{sCx}, s{sXb}
    buffer_load_dwordx4 v{vXd[0]}, s[{sX}:{sX+3}], s{sD0} offen{NTX} lds
    s_add_u32 s{sCx}, s{sCx}, 128
    s_cmp_eq_u32 s{sCx}, 896
    s_cselect_b32 s{sCx}, 0, s{sCx}"""]
    for i in range(1, 4):
        p.append(f"buffer_load_dwordx4 v{vXd[i]}, s[{sX}:{sX+3}], s{sD0} offen offset:{1024*i}{NTX} lds")
    return [(x, f"X{c}") for x in p]


def w_pieces(it):
    return [(f"""s_add_u32 m0, s{sMW}, {it*8192}
    s_add_u32 s{sD1}, s{sCw}, s{sWb}
    buffer_load_dwordx4 v{vWd}, s[{sW}:{sW+3}], s{sD1} offen lds
    s_add_u32 s{sCw}, s{sCw}, {64*2688}
    s_cmp_eq_u32 s{sCw}, {448*2688}
    s_cselect_b32 s{sCw}, 0, s{sCw}""", f"W{it}"),
            (f"buffer_load_dwordx4 v{vWd2}, s[{sW}:{sW+3}], s{sD1} offen offset:1024 lds", f"W{it}")]


def wq_piece(i):
    return (f"""s_add_u32 m0, s{sMQ}, {i*1024}
    s_add_u32 s{sD1}, s{sCq}, s{sWq}
    buffer_load_dwordx4 v{vWq}, s[{sW}:{sW+3}], s{sD1} offen lds
    s_add_u32 s{sCq}, s{sCq}, {16*2688}
    s_cmp_eq_u32 s{sCq}, {448*2688}
    s_cselect_b32 s{sCq}, 0, s{sCq}""", "WQ")


A(f"""s_lshr_b32 s{sNone}, 0x240, s{sh}
s_and_b32 s{sNone}, s{sNone}, 1
s_cmp_gt_u32 s{sKap}, s{sNone}
s_cbranch_scc1 L_nox""")
for p, _ in x_pieces(0) + x_pieces(1):
    A(p)
A.label("L_nox")
ts(1, 2)
A(f"""s_mov_b32 s{sW+2}, {448*2688}
s_mov_b32 s{sW+3}, 0x20000
s_cmp_gt_u32 s{sh}, 6
s_subb_u32 s{sLine}, s{sh}, 0
s_cmp_gt_u32 s{sh}, 9
s_subb_u32 s{sLine}, s{sLine}, 0
s_lshl_b32 s{sWb}, s{sLine}, 7
s_cmp_ge_u32 s{sLine}, 7
s_cselect_b32 s{sT0}, 7, 0
s_sub_u32 s{sLine}, s{sLine}, s{sT0}
s_and_b32 s{sT1}, s{sw}, 3
s_mul_i32 s{sT0}, s{sT1}, {16*2688}
s_add_u32 s{sWb}, s{sWb}, s{sT0}
s_add_u32 s{sWb}, s{sWb}, 896
s_mul_i32 s{sCw}, s{sC0}, {64*2688}
s_lshl_b32 s{sMW}, s{sT1}, 11
s_add_u32 s{sMW}, s{sMW}, {WL}
v_lshrrev_b32 v{t0}, 3, v{vLane}
v_mul_u32_u24 v{t0}, 2688, v{t0}
v_bfe_u32 v{t1}, v{vLane}, 4, 1
v_lshlrev_b32 v{t1}, 2, v{t1}
v_xor_b32 v{t1}, v{t1}, v{t2}
v_lshl_add_u32 v{vWd}, v{t1}, 4, v{t0}
v_add_u32 v{vWd2}, {8*2688-1024}, v{vWd}
s_cmp_le_u32 s{sKap}, s{sNone}
s_cbranch_scc1 L_now""")
NW0 = OPT["nw0"]
for it in range(NW0):
    for p, _ in w_pieces(it):
        A(p)
TOUCH = f"""v_lshrrev_b32 v{t0}, 3, v{vLane}
v_and_b32 v{t1}, 7, v{vLane}
v_min_u32 v{t1}, 6, v{t1}
v_lshlrev_b32 v{t1}, 7, v{t1}
s_and_b32 s{sT1}, s{sw}, 3
s_lshl_b32 s{sT0}, s{sh}, 2
s_add_u32 s{sT0}, s{sT0}, s{sT1}
s_lshl_b32 s{sT2}, s{sj}, 7
s_add_u32 s{sT2}, s{sT2}, s{sT0}
s_add_u32 s{sT2}, s{sT2}, 64
s_mul_i32 s{sT2}, s{sT2}, {2*896}
s_movk_i32 s{sT3}, 896
v_mad_u32_u24 v{t3}, v{t0}, s{sT3}, v{t1}
s_lshl_b32 s{sT0}, s{sT0}, 3
s_add_u32 s{sT0}, s{sT0}, s{sj}
s_mul_i32 s{sT0}, s{sT0}, 2688
s_mov_b64 exec, 0xffff
buffer_load_dword v{t5}, v{t3}, s[{sX}:{sX+3}], s{sT2} offen
s_mov_b64 exec, 0xff
buffer_load_dword v{t5}, v{t1}, s[{sW}:{sW+3}], s{sT0} offen
s_mov_b64 exec, -1"""
if OPT["tch"] == 1:
    A(TOUCH)
A.label("L_now")

EARLY = lines(f"""s_lshl_b32 s{sT0}, s{sb}, 8
s_add_u32 s{sT0}, s{sT0}, {EPOCH_OFF}
s_load_dword s{sE}, s[24:25], s{sT0}
v_lshrrev_b32 v{t2}, 5, v{vLane}
v_and_b32 v{t0}, 31, v{vLane}
v_bfe_u32 v{t1}, v{vLane}, 1, 3
v_xor_b32 v{t1}, v{t1}, v{t2}
v_lshlrev_b32 v{t0}, 7, v{t0}
v_add_u32 v{t0}, s{sMXs}, v{t0}""")
for sst in range(4):
    EARLY += lines(f"""v_xor_b32 v{t3}, {2*sst}, v{t1}
    v_lshl_add_u32 v{vXa[sst]}, v{t3}, 4, v{t0}""")
EARLY += lines(f"""v_bfe_u32 v{t1}, v{vLane}, 2, 2
v_lshl_add_u32 v{t0}, v{t2}, 3, v{t1}
v_bfe_u32 v{t3}, v{vLane}, 4, 1
v_and_b32 v{t4}, 3, v{vLane}
v_lshlrev_b32 v{t4}, 3, v{t4}
v_lshl_add_u32 v{t4}, v{t3}, 5, v{t4}
v_lshl_add_u32 v{vWqr}, v{t0}, 6, v{t4}
v_lshl_add_u32 v{t4}, v{t0}, 7, v{t4}
v_lshrrev_b32 v{t1}, 1, v{t1}
v_lshl_add_u32 v{t4}, v{t1}, 6, v{t4}
v_add_u32 v{vWr[0]}, {WL}, v{t4}
v_xor_b32 v{vWr[1]}, 64, v{vWr[0]}""")

MID = lines(f"""s_and_b32 s{sT0}, s{sh}, 1
s_lshl_b32 s{sT0}, s{sT0}, 3
s_add_u32 s{sT0}, s{sT0}, {WQ}
v_add_u32 v{vWqr}, s{sT0}, v{vWqr}
s_mul_i32 s{sWq}, s{sh}, 56
s_and_b32 s{sWq}, s{sWq}, 0xfffffff0
s_and_b32 s{sT0}, s{sw}, 3
s_mul_i32 s{sMQ}, s{sT0}, 7168
s_add_u32 s{sMQ}, s{sMQ}, {WQ}
s_mul_i32 s{sT0}, s{sT0}, 7
s_lshl_b32 s{sT1}, s{sC0}, 2
s_add_u32 s{sT0}, s{sT0}, s{sT1}
s_sub_u32 s{sT1}, s{sT0}, 28
s_min_u32 s{sT0}, s{sT0}, s{sT1}
s_mul_i32 s{sCq}, s{sT0}, {16*2688}
v_lshrrev_b32 v{t0}, 2, v{vLane}
v_mul_u32_u24 v{t0}, 2688, v{t0}
v_and_b32 v{t1}, 3, v{vLane}
v_lshl_add_u32 v{vWq}, v{t1}, 4, v{t0}""")
MID += lines(f"""s_mov_b32 s{sWS}, s24
s_mov_b32 s{sWS+1}, s25
s_mov_b32 s{sWS+2}, {WS_BYTES}
s_mov_b32 s{sWS+3}, 0x20000
s_lshl_b32 s{sKVt}, s{sb}, 22
s_lshl_b32 s{sRel}, s{sj}, 15
s_add_u32 s{sRel}, s{sRel}, s{sMX}
s_add_u32 s{sKVt}, s{sKVt}, s{sRel}
s_add_u32 s{sKVt}, s{sKVt}, {KV_OFF}
s_and_b32 s{sT0}, s{sw}, 3
s_lshl_b32 s{sT0}, s{sT0}, 1
s_lshl_b32 s{sT1}, s{sb}, 3
s_add_u32 s{sT1}, s{sT1}, s{sj}
s_lshl_b32 s{sT1}, s{sT1}, 3
s_add_u32 s{sT0}, s{sT0}, s{sT1}
s_lshl_b32 s{sT0}, s{sT0}, 4
s_add_u32 s{sT0}, s{sT0}, s{sh}
s_lshl_b32 s{sOp}, s{sT0}, 11
s_add_u32 s{sOp}, s{sOp}, {O_OFF}
s_lshl_b32 s{sOt}, s{sKap}, 15
s_add_u32 s{sOt}, s{sOt}, s{sOp}
v_mov_b32 v{vPd}, 0
v_mov_b32 v{vPd+1}, 0
v_mov_b32 v{vPd+2}, 0
v_mov_b32 v{vPd+3}, 0
s_add_u32 s{sFl}, s{sT1}, s{sw}
s_mul_i32 s{sFl}, s{sFl}, {FS}
s_lshl_b32 s{sT0}, s{sh}, {ES}
s_add_u32 s{sFl}, s{sFl}, s{sT0}
s_add_u32 s{sFl}, s{sFl}, {FLAG_OFF}
s_add_u32 s{sHo}, s{sFl}, {HINT}""")
LATE = lines(f"""s_lshl_b32 s{sPl}, s{sb}, 6
s_and_b32 s{sT1}, s{sw}, 3
s_add_u32 s{sPl}, s{sPl}, s{sT1}
s_mul_i32 s{sPl}, s{sPl}, {FS}
s_add_u32 s{sPl}, s{sPl}, {FLAG_OFF}
s_add_u32 s{sT0}, s{sj}, s{sKap}
s_and_b32 s{sT0}, s{sT0}, 7
s_lshl_b32 s{sRel}, s{sT0}, 15
s_lshl_b32 s{sT1}, s{sT1}, 12
s_add_u32 s{sRel}, s{sRel}, s{sT1}
v_bfe_u32 v{t3}, v{vLane}, 2, 2
v_lshl_add_u32 v{t3}, v{t3}, 1, s{sT0}
v_lshrrev_b32 v{t1}, 5, v{vLane}
v_add_u32 v{t3}, v{t3}, v{t1}
v_and_b32 v{t3}, 7, v{t3}
v_bfe_u32 v{t1}, v{vLane}, 4, 1
v_lshl_add_u32 v{t3}, v{t3}, 1, v{t1}
v_mul_u32_u24 v{t3}, {4*FS}, v{t3}
s_mul_i32 s{sT0}, s{sh}, 28
s_add_u32 s{sT1}, s{sT0}, 27
s_lshr_b32 s{sT0}, s{sT0}, 6
s_lshr_b32 s{sT1}, s{sT1}, 6
s_sub_u32 s{sT1}, s{sT1}, s{sT0}
v_and_b32 v{t0}, 1, v{vLane}
v_mul_u32_u24 v{t0}, s{sT1}, v{t0}
v_add_u32 v{t0}, s{sT0}, v{t0}
v_bfe_u32 v{t1}, v{vLane}, 1, 1
v_mad_u32_u24 v{t0}, v{t1}, 7, v{t0}
v_add_u32 v{t4}, 10, v{t0}
v_lshrrev_b32 v{t4}, 4, v{t4}
v_lshrrev_b32 v{t2}, 3, v{t0}
v_add3_u32 v{t0}, v{t0}, v{t4}, v{t2}
s_sub_u32 s{sT2}, s{sT1}, 1
s_and_b32 s{sT2}, s{sT2}, 0xaaaaaaaa
s_mov_b32 s{sT3}, s{sT2}
v_mad_u32_u24 v{t1}, v{t1}, 3, 6
v_cndmask_b32 v{t0}, v{t0}, v{t1}, s[{sT2}:{sT3}]
v_lshl_add_u32 v{vPl}, v{t0}, {ES}, v{t3}
s_lshl_b32 s{sKV}, s{sHH}, 18
s_add_u32 s{sKV}, s{sKV}, {KV_OFF}
s_mov_b32 s{sDone}, s{sKap}""")
LATE += lines(f"""s_mov_b32 s{sLo}, -1
s_mov_b32 s{sLo+1}, 0
s_mov_b32 s{sCs}, {hex(f2u(CSCALE))}
s_mov_b32 s{sCs+1}, {hex(f2u(CSCALE))}
s_and_b32 s{sT1}, s{sw}, 3
v_mov_b32 v{vIdx}, 0xdddddddd
s_or_b32 s{sT2}, s{sT1}, 1
s_add_u32 s{sT0}, s{sT1}, s{sT2}
s_lshl_b32 s{sT0}, s{sT0}, 11
s_add_u32 s{sT0}, s{sT0}, {XS+32768}
s_lshl_b32 s{sT2}, s{sT1}, 11
s_add_u32 s{sT2}, s{sT2}, {QOLD}
s_sub_u32 s{sT0}, s{sT0}, s{sT2}
s_mul_i32 s{sT0}, s{sT0}, s{sKap}
s_add_u32 s{sT0}, s{sT0}, s{sT2}
v_and_b32 v{t0}, 1, v{vLane}
v_lshlrev_b32 v{t0}, 4, v{t0}
v_bfe_u32 v{t1}, v{vLane}, 4, 1
v_lshl_add_u32 v{t0}, v{t1}, 3, v{t0}
v_bfe_u32 v{t1}, v{vLane}, 3, 1
v_lshl_add_u32 v{t0}, v{t1}, 1, v{t0}
v_bfe_u32 v{t1}, v{vLane}, 1, 1
v_add_u32 v{t0}, v{t0}, v{t1}
v_and_b32 v{t1}, 0x24, v{vLane}
v_add_u32 v{t0}, v{t0}, v{t1}
v_sub_u32 v{t0}, v{t0}, v{vLane}
v_mul_lo_u32 v{t0}, v{t0}, s{sRole}
v_add_u32 v{t0}, v{t0}, v{vLane}
v_lshl_add_u32 v{vQw}, v{t0}, 4, s{sT0}
s_lshr_b32 s{sT3}, s{sT1}, 1
s_and_b32 s{sT2}, s{sT1}, 1
s_add_u32 s{sT0}, s{sT3}, 12
s_lshl_b32 s{sT2}, s{sT2}, s{sT0}
s_mul_i32 s{sT3}, s{sT3}, {(XS+32768+2048-QOLD) & 0xffffffff}
s_add_u32 s{sT2}, s{sT2}, s{sT3}
s_add_u32 s{sT2}, s{sT2}, {QOLD}
v_add_u32 v{vQr}, s{sT2}, v{vL16}
s_lshl_b32 s{sT0}, s{sKap}, 14
v_add_u32 v{vBase}, s{sT0}, v{vL16}
v_add_u32 v{vCur}, 0x10000, v{vBase}
v_lshl_add_u32 v{vBk}, v{vLane}, 3, s{sT0}""")
L1, LATE = LATE, []
LATE += lines(f"""s_mov_b32 s{sWO+2}, {448*896}
s_mov_b32 s{sWO+3}, 0x20000
s_mov_b32 s{sOUT}, s20
s_mov_b32 s{sOUT+1}, s21
s_mov_b32 s{sOUT+2}, {2048*1792}
s_mov_b32 s{sOUT+3}, 0x20000
s_mov_b32 s{sChk}, {0 if OPT['force_slow'] else L_RANGE}
s_and_b32 s{sWoff}, s{sh}, 3
s_mul_i32 s{sWoff}, s{sWoff}, 224""")
LATE += lines(f"""s_lshl_b32 s{sT1}, s{sb}, 3
s_add_u32 s{sT1}, s{sT1}, s{sj}
s_lshl_b32 s{sT1}, s{sT1}, 3
s_lshr_b32 s{sT0}, s{sh}, 2
s_bfe_u32 s{sT2}, s{sw}, 0x10001
s_lshl_b32 s{sPc}, s{sT2}, 2
s_add_u32 s{sPc}, s{sPc}, s{sT0}
s_add_u32 s{sPc}, s{sPc}, s{sT1}
s_mul_i32 s{sPc}, s{sPc}, {FS}
s_add_u32 s{sPc}, s{sPc}, {FLAG_OFF + 64}
s_lshl_b32 s{sT3}, s{sT0}, 1
s_add_u32 s{sT3}, s{sT3}, s{sT2}
s_add_u32 s{sT3}, s{sT3}, s{sT1}
s_lshl_b32 s{sOin}, s{sT3}, 15
s_add_u32 s{sOin}, s{sOin}, {O_OFF}
s_and_b32 s{sT3}, s{sw}, 1
s_lshl_b32 s{sT3}, s{sT3}, 8
s_add_u32 s{sOin}, s{sOin}, s{sT3}
s_lshl_b32 s{sT3}, s{sKap}, 11
s_add_u32 s{sOin}, s{sOin}, s{sT3}""")
LATE += lines(f"""s_lshl_b32 s{sT1}, s{sj}, 2
s_add_u32 s{sT0}, s{sT0}, s{sT1}
s_lshl_b32 s{sT0}, s{sT0}, 2
s_and_b32 s{sT1}, s{sw}, 3
s_add_u32 s{sT0}, s{sT0}, s{sT1}
s_mul_i32 s{sOut}, s{sT0}, {16*1792}
s_mul_i32 s{sT0}, s{sb}, 896
s_add_u32 s{sOut}, s{sOut}, s{sT0}
s_add_u32 s{sOut}, s{sOut}, s{sWoff}
v_and_b32 v{t2}, 7, v{vLane}
s_add_u32 s{sT0}, s{sT1}, 5
s_lshl_b32 s{sT0}, s{sT0}, 13
s_and_b32 s{sT0}, s{sT0}, 0xffff
v_add_u32 v{vRw}, s{sT0}, v{vL16}
s_lshl_b32 s{sT2}, s{sT1}, 2
s_add_u32 s{sT2}, s{sT2}, {MISC}
v_mov_b32 v{vMf}, s{sT2}
s_mul_i32 s{sT2}, s{sT1}, 3072
s_add_u32 s{sT2}, s{sT2}, {SND}
v_add_u32 v{vSn}, s{sT2}, v{vL16}
v_lshrrev_b32 v{t1}, 3, v{vLane}
s_lshl_b32 s{sT2}, s{sKap}, 11
s_add_u32 s{sT0}, s{sT0}, s{sT2}
s_add_u32 s{sT0}, s{sT0}, 4096
v_xor_b32 v{t3}, v{t1}, v{t2}
v_lshlrev_b32 v{t3}, 4, v{t3}
v_lshl_add_u32 v{t3}, v{t1}, 7, v{t3}
v_add_u32 v{vTr}, s{sT0}, v{t3}
v_mul_u32_u24 v{t3}, 1792, v{t1}
v_lshl_add_u32 v{vOs}, v{t2}, 4, v{t3}
v_add_u32 v{t3}, 2, v{t2}
v_lshrrev_b32 v{t3}, 3, v{t3}
v_lshlrev_b32 v{t3}, 30, v{t3}
v_add_u32 v{t3}, 128, v{t3}
v_add_u32 v{vOs2}, v{t3}, v{vOs}
v_and_b32 v{t0}, 15, v{vLane}
v_lshrrev_b32 v{t1}, 4, v{vLane}
v_lshrrev_b32 v{t3}, 1, v{t1}
v_xor_b32 v{t3}, v{t3}, v{t2}
v_lshlrev_b32 v{t3}, 4, v{t3}
v_lshl_add_u32 v{t3}, v{t0}, 7, v{t3}
v_and_b32 v{t4}, 1, v{t1}
v_lshl_add_u32 v{t3}, v{t4}, 3, v{t3}
v_add_u32 v{vTw}, s{sT0}, v{t3}
v_lshlrev_b32 v{vPc}, {ES}, v{t0}
v_lshlrev_b32 v{t2}, 12, v{t2}
v_add_u32 v{vLp}, {3*512+15*16}, v{t2}
v_lshlrev_b32 v{t2}, 9, v{t1}
v_lshl_add_u32 v{vOa}, v{t0}, 4, v{t2}""")
LATE += lines(f"""v_lshrrev_b32 v{t2}, 1, v{t1}
v_lshlrev_b32 v{t2}, 4, v{t2}
v_lshl_add_u32 v{t2}, v{t4}, 2, v{t2}
v_bfe_u32 v{t3}, v{vLane}, 2, 2
v_add_u32 v{t2}, v{t2}, v{t3}
v_mul_u32_u24 v{t2}, 224, v{t2}
v_and_b32 v{t3}, 3, v{vLane}
v_lshl_add_u32 v{t2}, v{t3}, 3, v{t2}
v_add_u32 v{t3}, 1, v{t1}
v_lshrrev_b32 v{t3}, 2, v{t3}
v_mul_u32_u24 v{t3}, {4*224}, v{t3}
v_sub_u32 v{t3}, v{t2}, v{t3}
s_mul_i32 s{sT0}, s{sKap}, 6272
s_add_u32 s{sT0}, s{sT0}, {WOB}
v_add_u32 v{vW0}, s{sT0}, v{t2}
s_add_u32 s{sT0}, s{sT0}, {8*224}
v_add_u32 v{vW1}, s{sT0}, v{t3}
s_mul_i32 s{sSp}, s{sKap}, {(WO15 - WOB - 6272 - 7*12544) & 0xffffffff}
s_add_u32 s{sSp}, s{sSp}, {7*12544}""")
LATE += lines(f"""v_mul_u32_u24 v{t2}, 0x4925, v{vLane}
v_lshrrev_b32 v{t2}, 18, v{t2}
v_mul_u32_u24 v{t3}, 14, v{t2}
v_sub_u32 v{t3}, v{vLane}, v{t3}
v_mul_u32_u24 v{t2}, 896, v{t2}
v_lshl_add_u32 v{vWod}, v{t3}, 4, v{t2}
s_mul_i32 s{sWn}, s{sw}, 3584
s_add_u32 s{sWn}, s{sWn}, s{sWoff}
s_mul_i32 s{sWm}, s{sw}, 896
s_add_u32 s{sWm13}, s{sWm}, {WO15-896}
s_max_u32 s{sT0}, s{sw}, 1
s_sub_u32 s{sT0}, s{sT0}, s{sw}
s_mul_i32 s{sT0}, s{sT0}, {WOB+104*896-(WO15-896)}
s_add_u32 s{sWm13}, s{sWm13}, s{sT0}""")
L2 = LATE
ENDS = lines(f"""s_mul_i32 s{sT2}, s{sLine}, {16*9363}
s_add_u32 s{sT3}, s{sT2}, {16*9363}
s_lshr_b32 s{sT2}, s{sT2}, 16
s_lshr_b32 s{sT3}, s{sT3}, 16
s_sub_u32 s{sT3}, s{sT3}, s{sT2}
s_lshl_b32 s{sT2}, s{sT2}, 18""")
FK = lines(f"""v_and_b32 v{t0}, 15, v{vLane}
v_lshlrev_b32 v{t0}, 4, v{t0}
v_bfe_u32 v{t1}, v{vLane}, 4, 1
v_lshrrev_b32 v{t4}, 5, v{vLane}
v_lshl_add_u32 v{t1}, v{t1}, 1, v{t4}
s_lshl_b32 s{sT0}, s{sLine}, 4
v_add_u32 v{t1}, s{sT0}, v{t1}""")
for i in range(4):
    FK += lines(f"""v_add_u32 v{t2}, {4*i}, v{t1}
    v_mul_u32_u24 v{t3}, 9363, v{t2}
    v_lshrrev_b32 v{t3}, 16, v{t3}
    v_lshl_add_u32 v{vSt[i]}, v{t3}, 18, v{t0}
    v_mul_u32_u24 v{t3}, 7, v{t3}
    v_sub_u32 v{t2}, v{t2}, v{t3}
    v_lshl_add_u32 v{vSt[i]}, v{t2}, 8, v{vSt[i]}""")
FK += ENDS + lines(f"""s_add_u32 s{sT2}, s{sT2}, {7*256}
v_lshrrev_b32 v{t1}, 4, v{vLane}
v_cmp_gt_u32 vcc, s{sT3}, v{t1}
v_lshl_add_u32 v{t0}, v{t1}, 18, v{t0}
v_add_u32 v{t0}, s{sT2}, v{t0}
v_mov_b32 v{t3}, {OOB}
v_cndmask_b32 v{vP[0]}, v{t3}, v{t0}, vcc""")
FV = lines(f"""v_and_b32 v{t0}, 31, v{vLane}
s_lshl_b32 s{sT0}, s{sLine}, 6
v_add_u32 v{t0}, s{sT0}, v{t0}
v_and_b32 v{t4}, 32, v{vLane}""")
for ct in range(2):
    FV += lines(f"""v_add_u32 v{t2}, {32*ct}, v{t0}
    v_mul_u32_u24 v{t3}, 2341, v{t2}
    v_lshrrev_b32 v{t3}, 16, v{t3}
    v_mul_u32_u24 v{t1}, 28, v{t3}
    v_sub_u32 v{t2}, v{t2}, v{t1}
    v_add_u32 v{t2}, v{t2}, v{t4}
    v_lshlrev_b32 v{t2}, 4, v{t2}
    v_lshl_add_u32 v{t2}, v{t3}, 18, v{t2}
    v_add_u32 v{vSt[2*ct]}, 2048, v{t2}
    v_add_u32 v{vSt[2*ct+1]}, 3072, v{t2}""")
FV += ENDS + lines(f"""s_add_u32 s{sT2}, s{sT2}, {2048+28*16}
v_lshrrev_b32 v{t0}, 4, v{vLane}
v_cmp_gt_u32 vcc, s{sT3}, v{t0}
v_bfe_u32 v{t1}, v{vLane}, 2, 2
v_lshlrev_b32 v{t1}, 9, v{t1}
v_lshl_add_u32 v{t1}, v{t0}, 18, v{t1}
v_and_b32 v{t2}, 3, v{vLane}
v_lshl_add_u32 v{t1}, v{t2}, 4, v{t1}
v_add_u32 v{t1}, s{sT2}, v{t1}
v_mov_b32 v{t3}, {OOB}
v_cndmask_b32 v{vP[0]}, v{t3}, v{t1}, vcc
v_cmp_eq_u32 vcc, 0, v{t2}
v_mov_b32 v{t3}, 0x3f803f80
s_nop 0
v_cndmask_b32 v{vPd}, 0, v{t3}, vcc
v_mov_b32 v{vPd+1}, v{vPd}
v_mov_b32 v{vPd+2}, v{vPd}
v_mov_b32 v{vPd+3}, v{vPd}""")


def st16(data, addr, soff, off=0):
    return (f"buffer_store_dwordx4 {v(data,4)}, v{addr}, s[{sWS}:{sWS+3}], s{soff} offen offset:{off} sc1", "ST")


def st8(data, addr, soff):
    return (f"buffer_store_dwordx2 {v(data,2)}, v{addr}, s[{sWS}:{sWS+3}], s{soff} offen sc1", "ST")


POS = [32768, 0, 65536]


def kv_addr(blk, t, off):
    p = POS[blk % 3] + t * 4096 + off
    return (vCur, p - 65536) if POS[blk % 3] >= 65536 else (vBase, p)


def kv_next(st):
    pos = POS[st % 3]
    return f"""s_add_u32 s{sRel}, s{sRel}, {0x14000 if st == 4 else 0x10000}
    s_and_b32 s{sRel}, s{sRel}, 0x3ffff
    s_add_u32 m0, s{sMX}, {pos}
    s_add_u32 s{sD0}, s{sRel}, s{sKV}"""


def kv_piece(i):
    return f"buffer_load_dwordx4 v{vL16}, s[{sWS}:{sWS+3}], s{sD0} offen offset:{1024*i} sc1 lds"


def flag_text(second=False):
    return f"""s_mov_b64 exec, 1
    buffer_store_dword v{vTag}, v{vL16}, s[{sWS}:{sWS+3}], s{sFl} offen offset:{64 if second else 0} sc1
    s_mov_b64 exec, -1"""


def poll_text(mask):
    return f"""s_mov_b64 exec, {mask if mask < 64 else hex(mask)}
    buffer_load_dword v{vFl}, v{vPl}, s[{sWS}:{sWS+3}], s{sPl} offen sc1
    s_mov_b64 exec, -1"""


def poll_issue(mask=15):
    A(poll_text(mask))


ntry = [0]


def hook_try(level=2):
    ntry[0] += 1
    A(f"""s_cmp_ge_u32 s{sDone}, {level}
    s_cbranch_scc1 L_skip{ntry[0]}
    s_call_b64 s[{sRet}:{sRet+1}], L_try""")
    A.label(f"L_skip{ntry[0]}")


def spin(level, name):
    A(f"s_mov_b32 s{sSpin}, 0x40000")
    A.label(name)
    A(f"""s_cmp_ge_u32 s{sDone}, {level}
    s_cbranch_scc1 {name}_done
    s_call_b64 s[{sRet}:{sRet+1}], L_try
    s_sub_u32 s{sSpin}, s{sSpin}, 1
    s_cbranch_scc0 {name}""")
    A.label(name + "_done")


POLL0 = f"""s_mov_b32 exec_lo, 15
    s_mov_b32 exec_hi, 15
    buffer_load_dword v{vFl}, v{vPl}, s[{sWS}:{sWS+3}], s{sPl} offen sc1
    s_mov_b64 exec, -1"""
CALL_REST = f"s_call_b64 s[{sRet}:{sRet+1}], L_rest"
pqq = Wf + 16


class Stream:
    def __init__(self, role):
        self.role = role
        self.vm, self.lg = Cnt("vmcnt", 63), Cnt("lgkmcnt", 15)
        self.nkv = self.nq = 0

    def dma(self, p):
        A(p[0])
        self.vm.issue(p[1])

    def ds(self, text, tag):
        self.lg.room()
        A(text)
        self.lg.issue(tag)

    def xreads(self, c):
        return [(f"ds_read_b128 {v(Xr+16*c+4*st,4)}, v{vXa[st]} offset:{(c % 2) * 16384}", f"R{c}") for st in range(4)]

    def mk(self, kv=None, q=None):
        rd, mm, need = [], [], []
        tag = f"F{kv}_{q}"
        if kv is not None:
            b = Wf + 8 * (self.nkv % 3)
            self.nkv += 1
            for ct in range(2):
                for u in range(2):
                    rd.append((f"ds_read_b64_tr_b16 {v(b+4*ct+2*u,2)}, v{vWr[ct]} offset:{kv*2048+u*512}", tag))
                ac = [acc0, acc1][ct]
                wf, xf = v(b + 4 * ct, 4), v(Xr + 4 * kv, 4)
                a_, b_ = (wf, xf) if self.role == "K" else (xf, wf)
                mm.append(f"v_mfma_f32_32x32x16_bf16 {v(ac,16)}, {a_}, {b_}, {'0' if kv == 0 else v(ac,16)}")
            need.append(f"R{kv//4}")
        if q is not None:
            b = Wg + 4 * (self.nq % 3)
            self.nq += 1
            for u in range(2):
                rd.append((f"ds_read_b64_tr_b16 {v(b+2*u,2)}, v{vWqr} offset:{q*1024+u*256}", tag))
            mm.append(f"v_mfma_f32_32x32x16_bf16 {v(accQ,16)}, {v(b,4)}, {v(Xr+4*q,4)}, {'0' if q == 0 else v(accQ,16)}")
            need.append(f"R{q//4}")
        return dict(rd=rd, mm=mm, need=need + [tag], pre=[], xr=None, dma=[], post=[])

    def run(self, steps, fill=(), nf=0):
        fill = list(fill)
        for st in steps[:2]:
            for r in st["rd"]:
                self.ds(*r)
        for i, st in enumerate(steps):
            self.lg.wait(*st["need"])
            for f in st["pre"]:
                f()
            side = []
            if st["xr"] is not None:
                self.vm.wait(f"X{st['xr']}")
                side += self.xreads(st["xr"])
            if i + 2 < len(steps):
                side += steps[i + 2]["rd"]
            n = len(st["mm"])
            for k, m in enumerate(st["mm"]):
                A(m)
                for r in side[k * len(side) // n:(k + 1) * len(side) // n]:
                    self.ds(*r)
                for p in st["dma"][k * len(st["dma"]) // n:(k + 1) * len(st["dma"]) // n]:
                    self.dma(p)
                emit(fill, nf)
            for f in st["post"]:
                f()
        assert not fill

    def xplan(self, steps, first, c0, c1, lead):
        for c in range(c0, c1):
            i = first + 4 * (c - c0) - lead
            steps[i]["xr"] = c
            if c + 2 <= 6:
                steps[i + 1]["need"].append(f"R{c}")
                xp = x_pieces(c + 2)
                steps[i + 1]["dma"] += xp[:2]
                steps[i + 2]["dma"] += xp[2:]

    def pack(self, store):
        for ct in range(2):
            ac = [acc0, acc1][ct]
            pp = Wf + 8 * ct
            for r in range(8):
                A(f"v_cvt_pk_bf16_f32 v{pp+r}, v{ac+2*r}, v{ac+2*r+1}")
                if self.role == "V" and r % 4 == 3 and store:
                    self.dma(st16(pp + r - 3, vSt[2 * ct + r // 4], sKVt))
            if self.role == "K":
                for i in range(2):
                    A(f"v_permlane16_swap_b32 v{pp+4*i}, v{pp+4*i+2}")
                    A(f"v_permlane16_swap_b32 v{pp+4*i+1}, v{pp+4*i+3}")
                    if store:
                        self.dma(st16(pp + 4 * i, vSt[2 * ct + i], sKVt))

    def xonly(self):
        for c in range(7):
            self.vm.wait(f"X{c}")
            for r in self.xreads(c):
                self.ds(*r)
            self.lg.wait(f"R{c}")
            if c + 2 <= 6:
                for p in x_pieces(c + 2):
                    self.dma(p)


def bar():
    A("s_barrier")


def q_epilogue():
    for r in range(8):
        A(f"v_pk_mul_f32 {v(accQ+2*r,2)}, {v(accQ+2*r,2)}, s[{sCs}:{sCs+1}]")
    for r in range(8):
        A(f"v_cvt_pk_bf16_f32 v{pqq+r}, v{accQ+2*r}, v{accQ+2*r+1}")
    for r in (6, 7):
        A(f"v_cndmask_b32 v{pqq+r}, 0, v{pqq+r}, s[{sLo}:{sLo+1}]")
    A(f"""ds_write_b128 v{vQw}, {v(pqq,4)}
    ds_write_b128 v{vQw}, {v(pqq+4,4)} offset:1024""")


NOST = [f"v_mov_b32 v{vSt[i]}, {OOB}" for i in range(4)]
ZO = [f"v_mov_b32 v{O[0]+r}, 0" for r in range(32)]
NA, N1, CG = OPT["na"], OPT["n1"], OPT["cg"]


def older(role):
    S_ = Stream(role)
    S_.vm.issue("X0", 4)
    S_.vm.issue("X1", 4)
    if role == "N":
        A(flag_text())
        S_.vm.issue("FL")
        S_.xonly()
        bar()
        return
    if OPT["yp"]:
        A("s_setprio 2")
    S_.vm.wait("X0")
    for r in S_.xreads(0):
        S_.ds(*r)
    S_.lg.wait("R0")
    for p in x_pieces(2):
        S_.dma(p)
    ts(3, 2)
    bar()
    ts(4, 2)
    steps = [S_.mk(kv=g) for g in range(28)]
    S_.xplan(steps, 4, 1, 7, OPT["xl"])
    steps[4 * NA - 2]["pre"].append(bar)
    steps[OPT["padg"]]["dma"].append(st16(vPd, vP[0], sKVt))
    if CG < 28:
        steps[CG]["need"].append("R6")
        steps[CG]["pre"].append(bar)
    for c in range(7):
        steps[4 * c]["pre"].append(lambda c=c: ts(5 + c, 2))
    fill = {"K": FK, "V": FV}[role]
    S_.run(steps, fill, -(-len(fill) // 24))
    ts(2)
    ts(12, 2)
    S_.pack(True)
    ts(1)
    if CG == 28:
        bar()
    A("s_branch L_oq")


def younger(role):
    S_ = Stream(role)
    if role == "N":
        S_.vm.issue("X0", 4)
        S_.vm.issue("X1", 4)
        A(flag_text())
        S_.vm.issue("FL")
        for i in range(7):
            S_.dma(wq_piece(i))
        emit(list(REST), len(REST))
        emit(list(NOST), 4)
        S_.xonly()
        bar()
        steps = [S_.mk(q=g) for g in range(28)]
        first = 0
    else:
        S_.vm.q = list(LOADER_Q)
        wq = [wq_piece(i) for i in range(OPT["wqe"] + OPT["wqf"], 7)]
        S_.vm.wait("X0")
        for r in S_.xreads(0):
            S_.ds(*r)
        ts(6, 2)
        steps = [S_.mk(kv=g) for g in range(4 * N1)]
        for c in range(1, N1):
            steps[4 * c - 2]["xr"] = c
        k = 0
        for p in wq:
            steps[k // OPT["wqd"]]["dma"].append(p)
            k += 1
        fill = {"K": FK, "V": FV}[role]
        late = []
        for c in range(2, N1 + 2):
            if c < N1:
                steps[4 * (c - 2) + 1]["need"].append(f"R{c-2}")
                steps[4 * (c - 2) + 1]["dma"] = x_pieces(c) + steps[4 * (c - 2) + 1]["dma"]
            else:
                late += x_pieces(c)
        S_.run(steps, fill, -(-len(fill) // (8 * N1)))
        for p in late:
            S_.dma(p)
        ts(7, 2)
        S_.vm.wait("WQ")
        bar()
        ts(8, 2)
        if OPT["yp"]:
            A("s_setprio 1")
        steps = [S_.mk(q=g) for g in range(4 * N1)] + [S_.mk(kv=g, q=g) for g in range(4 * N1, 28)]
        S_.xplan(steps, 4 * N1, N1, 7, 2)
        steps[20]["dma"].append(st16(vPd, vP[0], sKVt))
    ts(3)
    steps[25]["post"].append(lambda: (poll_issue(0xffff), S_.vm.issue("PL")))
    fill = [] if role == "N" else [L1 + L2, list(L2), []][OPT['lf']]
    S_.run(steps, fill, -(-len(fill) // (3 * (24 - 4 * N1) + 4 * N1)))
    ts(2)
    ts(12, 2)
    q_epilogue()
    if role != "N":
        S_.pack(False)
    ts(11)
    A("""s_waitcnt lgkmcnt(0)
    s_branch L_b0""")


def loader():
    S_ = Stream("N")
    for it in range(NW0):
        S_.vm.issue(f"W{it}", 2)
    if OPT["tch"] == 2:
        A(TOUCH)
    if OPT["tch"]:
        S_.vm.issue("PF", 2)
    S_.vm.wait(f"W{NA-1}")
    ts(3, 2)
    bar()
    ts(4, 2)
    fill = [[], list(L1), L1 + L2][OPT['lf']]
    wq = [wq_piece(i) for i in range(7)]
    p1 = [p for it in range(NW0, 7) for p in w_pieces(it)] + wq[:OPT["wqe"]] + x_pieces(0) + x_pieces(1)
    p2 = wq[OPT["wqe"]:OPT["wqe"] + OPT["wqf"]]
    nb = OPT["nb"]
    ps = p1 + p2
    nf = -(-len(fill) // len(ps))
    for k, p in enumerate(ps):
        if k == nb:
            S_.vm.wait("W6")
            bar()
        S_.dma(p)
        emit(fill, nf)
    if nb >= len(ps):
        S_.vm.wait("W6")
        bar()
    ts(5, 2)
    return S_.vm.q


PRO, REST = EARLY + MID, L1 + L2
PRO += lines(f"""s_waitcnt lgkmcnt(0)
s_mul_i32 s{stag}, s{sE}, 0x9e3779b1
s_add_u32 s{stag}, s{stag}, 0x7f4a7c15
v_mov_b32 v{vTag}, s{stag}""")
emit(PRO, len(PRO))
ts(2, 2)
A(f"""s_cmp_eq_u32 s{sKap}, 0
s_cbranch_scc1 L_old
s_cmp_eq_u32 s{sNone}, 1
s_cbranch_scc1 L_yN""")
LOADER_Q = loader()
A(f"""s_cmp_eq_u32 s{sRole}, 1
s_cbranch_scc1 L_yV""")
younger("K")
A.label("L_yV")
younger("V")
A.label("L_yN")
younger("N")
A.label("L_old")
A(f"""s_cmp_eq_u32 s{sNone}, 1
s_cbranch_scc1 L_oN
s_cmp_eq_u32 s{sRole}, 1
s_cbranch_scc1 L_oV""")
older("K")
A.label("L_oV")
older("V")
A.label("L_oN")
older("N")
A.label("L_oq")
ts(3)
ts(13, 2)
emit(list(L1), len(L1))
emit(list(NOST), 4)
S_ = Stream("N")
steps = [S_.mk(q=g) for g in range(28)]


def oflag():
    A("s_waitcnt vmcnt(0)")
    A(flag_text())
    if OPT["yp"]:
        A("s_setprio 0")
    ts(4)


steps[OPT["fq"]]["pre"].append(oflag)
steps[OPT["pq"]]["post"].append(lambda: A(POLL0))
for g in range(OPT["pq"] + OPT["tq"], 28, OPT["tq"]):
    steps[g]["post"].append(lambda: hook_try(1))
S_.run(steps, L2, -(-len(L2) // 27))
q_epilogue()
ts(11)
spin(1, "L_spin0")
A("""s_waitcnt vmcnt(1) lgkmcnt(0)
s_branch L_b0""")
A.label("L_try")
A(f"""s_waitcnt vmcnt(0)
v_cmp_ne_u32 vcc, s{stag}, v{vFl}
s_cmp_lg_u32 s{sDone}, 0
s_cbranch_scc1 L_try1
s_or_b32 s{sD1}, vcc_lo, vcc_hi
s_and_b32 s{sD1}, s{sD1}, 15
s_cbranch_scc0 L_try0""")
A(POLL0)
A(f"s_setpc_b64 s[{sRet}:{sRet+1}]")
A.label("L_try0")
ts(5)
A(f"""s_add_u32 m0, s{sMX}, {POS[0]}
s_add_u32 s{sD0}, s{sRel}, s{sKV}""")
for i in range(4):
    A(kv_piece(i))
A(f"""s_add_u32 s{sD0}, s{sRel}, 0x8000
s_and_b32 s{sD0}, s{sD0}, 0x3ffff
s_add_u32 m0, s{sMX}, {POS[0]+16384}
s_add_u32 s{sD0}, s{sD0}, s{sKV}""")
for i in range(4):
    A(kv_piece(i))
A(f"""s_mov_b32 s{sDone}, 1
s_branch L_again""")
A.label("L_try1")
A(f"""s_and_b32 s{sD1}, vcc_lo, 0xffff
s_cbranch_scc1 L_again""")
ts(13)
A(kv_next(1))
for i in range(4):
    A(kv_piece(i))
A(f"""s_mov_b32 s{sDone}, 2
s_setpc_b64 s[{sRet}:{sRet+1}]""")
A.label("L_again")
poll_issue(0xffff)
A(f"s_setpc_b64 s[{sRet}:{sRet+1}]")

A.label("L_b0")
A("s_barrier")
ts(12)

A(f"""ds_read_b128 {v(Q[0],4)}, v{vQr}
ds_read2st64_b64 {v(Kf[0],4)}, v{vBk} offset0:64 offset1:65
ds_read_b128 {v(Q[0]+4,4)}, v{vQr} offset:1024
ds_read2st64_b64 {v(Kf[0]+4,4)}, v{vBk} offset0:66 offset1:67
ds_read_b128 {v(Q[1],4)}, v{vQr} offset:2048
ds_read_b128 {v(Q[1]+4,4)}, v{vQr} offset:3072
ds_read2st64_b64 {v(Kf[1],4)}, v{vBk} offset0:72 offset1:73
ds_read2st64_b64 {v(Kf[1]+4,4)}, v{vBk} offset0:74 offset1:75
ds_read_b128 {v(Vf[0],4)}, v{vBase} offset:34816
ds_read_b128 {v(Vf[0]+4,4)}, v{vBase} offset:35840
{chr(10).join(ZO[:20])}
s_waitcnt lgkmcnt(6)
v_mfma_f32_32x32x16_bf16 {v(S[0],16)}, {v(Kf[0],4)}, {v(Q[0],4)}, 0
v_mfma_f32_32x32x16_bf16 {v(S[0],16)}, {v(Kf[0]+4,4)}, {v(Q[0]+4,4)}, {v(S[0],16)}
{chr(10).join(ZO[20:])}
s_waitcnt lgkmcnt(4)""")

def wo_piece(r):
    m = f"s_mov_b32 m0, s{sWm13}" if r == 13 else f"s_add_u32 m0, s{sWm}, {WOB + 8*r*896}"
    return f"""{m}
    s_add_u32 s{sD1}, s{sWn}, {8*r*3584}
    buffer_load_dwordx4 v{vWod}, s[{sWO}:{sWO+3}], s{sD1} offen lds"""


EXTRA = {}
AFTER = {}


def extra(w_, sl, text):
    EXTRA.setdefault((w_, sl), []).append(text)


def window(W):
    blk, u = divmod(W, 8)
    un, up = u + 1, u - 1
    tn, qn = un // 2, un % 2
    tp, qp = up // 2, up % 2
    Sc, Sn, Sp = S[u % 4], S[un % 4], S[up % 4]
    Kn, Vp = Kf[tn % 2], Vf[tp % 2]
    m = [f"v_mfma_f32_32x32x16_bf16 {v(Sn,16)}, {v(Kn,4)}, {v(Q[qn],4)}, 0",
         f"v_mfma_f32_32x32x16_bf16 {v(Sn,16)}, {v(Kn+4,4)}, {v(Q[qn]+4,4)}, {v(Sn,16)}",
         f"v_smfmac_f32_32x32x32_bf16 {v(O[qp],16)}, {v(Vp,4)}, {v(Sp,8)}, v{vIdx}",
         f"v_smfmac_f32_32x32x32_bf16 {v(O[qp],16)}, {v(Vp+4,4)}, {v(Sp+8,8)}, v{vIdx}"]
    if W == 0:
        m[2] = m[3] = None
    if W == 63:
        m = [m[2], None, m[3], None]
    mem = [[], [], [], []]
    pre = [[], [], [], []]

    def rd(dst, T, off):
        if off < 2048:
            o = (POS[(blk + T // 4) % 3] + (T % 4) * 4096 + off) // 512
            return f"ds_read2st64_b64 {v(dst,4)}, v{vBk} offset0:{o} offset1:{o+1}"
        a, o = kv_addr(blk + T // 4, T % 4, off)
        return f"ds_read_b128 {v(dst,4)}, v{a} offset:{o}"
    if u % 2 == 1:
        if not (u == 5 and blk > 0):
            A("s_waitcnt lgkmcnt(0)")
        tt = tn
        Kd, Vd = Kf[(tt + 1) % 2], Vf[tt % 2]
        rk = [rd(Kd, tt + 1, 0), rd(Kd + 4, tt + 1, 1024)]
        rv = [rd(Vd, tt, 2048), rd(Vd + 4, tt, 3072)]
        if W in (5, 61):
            mem[2].append(rv[0])
            mem[3].append(rv[1])
        elif W == 63:
            pass
        elif W == 7:
            A(rd(Kn, 4, 0))
            A(rd(Kn + 4, 4, 1024))
            m = [m[2], m[3], m[0], m[1]]
            mem[0] += [rk[0], rk[1]]
            mem[1] += [rv[0], rv[1]]
            pre[2].append("s_waitcnt lgkmcnt(4)")
        else:
            mem[0].append(rk[0])
            mem[1].append(rk[1])
            mem[2].append(rv[0])
            mem[3].append(rv[1])
    for q in range(4):
        for x in pre[q]:
            A(x)
        if m[q]:
            A(m[q])
        for x in mem[q] + (EXTRA.get((W, q), []) if not (OPT.get("nodma") and 23 <= W < 53) else []):
            A(x)
        for e in range(4):
            A(f"v_exp_f32 v{Sc+4*q+e}, v{Sc+4*q+e}")
    for hk in AFTER.get(W, []):
        hk()


def hook_bar0():
    spin(2, "L_spin1")
    A("""s_waitcnt vmcnt(0)
    s_barrier""")
    ts(6)


def mk_bar(n):
    def f():
        A(f"""s_waitcnt vmcnt({n}) lgkmcnt(0)""")
        if not OPT.get("nobar"):
            A("s_barrier")
    return f


def hook_pollc():
    A(f"""v_cmp_ne_u32 vcc, s{stag}, v{vQm}
    s_cmp_lg_u64 vcc, 0
    s_cbranch_scc1 L_pollc""")
    A.label("L_pollc_done")


hook_try()
for u in range(0, 6):
    AFTER.setdefault(u, []).append(hook_try)
AFTER.setdefault(6, []).append(hook_bar0)
extra(7, 2, kv_next(2) + "\n" + kv_piece(0))
extra(7, 3, kv_piece(1))
extra(8, 1, kv_piece(2))
extra(8, 3, kv_piece(3))
for i in range(4):
    extra(OPT["pubw"] + i // 2, [1, 3][i % 2], st16(Wf + 4 * i, vSt[i], sKVt)[0])
extra(9, 1, "\n".join(f"v_mov_b32 v{vOnes+r}, -1" for r in range(4)))
extra(40, 1, f"""v_lshrrev_b32 v{t0}, 2, v{vL16}
v_and_b32 v{t0}, 60, v{t0}
v_add_u32 v{t0}, {MISC}, v{t0}
v_mov_b32 v{t1}, 0
ds_write_b32 v{t0}, v{t1}""")
extra(10, 0, st16(vOnes, vL16, sOt)[0])
extra(10, 2, st16(vOnes, vL16, sOt, 1024)[0])
extra(8, 0, flag_text())
extra(30, 1, flag_text(True))
extra(17, 1, poll_text(0x7fff0000).replace("0x7fff0000", "0xffff0000"))


def hook_pollh():
    A(f"""v_cmp_ne_u32 vcc, s{stag}, v{vFl}
    s_and_b32 s{sD1}, vcc_lo, 0xffff0000
    s_cbranch_scc1 L_pollh""")
    A.label("L_pollh_done")


if OPT.get("tou"):
    sel = f"""v_mov_b32 v{t1}, v{vOs}
    s_cmp_eq_u32 s{sKap}, 0
    s_cbranch_scc1 L_tou
    v_mov_b32 v{t1}, v{vOs2}
    L_tou:
    s_add_u32 s{sT1}, s{sOut}, {8*1792}
    """
    if OPT["tou"] == 1:
        ops = [f"buffer_load_dword v{t2}, v{t1}, s[{sOUT}:{sOUT+3}], s{x} offen" for x in (sOut, sT1)]
    else:
        ops = [f"buffer_store_dwordx4 {v(vOnes,4)}, v{t1}, s[{sOUT}:{sOUT+3}], s{x} offen{OSC}" for x in (sOut, sT1)]
    extra(29, 1, sel + ops[0])
    extra(29, 3, ops[1])
wo_early = list(range(5, 13))
for i in range(1, 8):
    nwo = 2 if i == 1 else 0
    if i >= 2 and wo_early:
        for sl in (0, 2):
            extra(8 * i + 2, sl, wo_piece(wo_early.pop(0)))
            nwo += 1
    AFTER.setdefault(8 * i + 4, []).append(mk_bar(nwo))
    if i <= 5:
        extra(8 * i + 6, 0, kv_next(i + 2) + "\n" + kv_piece(0))
        extra(8 * i + 6, 2, kv_piece(1))
        extra(8 * i + 8, 0, kv_piece(2))
        extra(8 * i + 8, 2, kv_piece(3))
assert not wo_early
for k, r in enumerate([0, 1, 2, 3, 4, 13]):
    extra([54, 54, 55, 56, 56, 57][k], [0, 2, 1, 0, 2, 1][k], wo_piece(r))
extra(53, 1, f"buffer_load_dword v{vQm}, v{vPc}, s[{sWS}:{sWS+3}], s{sPc} offen sc1")
AFTER[60].append(hook_pollc)
sTk, sAv = sTodo, sRem


def oload(l):
    return f"""s_add_u32 s{sT0}, s{sOin}, {l*4096}
    buffer_load_dwordx4 {v(Of+4*l,4)}, v{vOa}, s[{sWS}:{sWS+3}], s{sT0} offen sc1"""


def cload(l):
    return f"""s_bitcmp1_b32 s{sAv}, {l}
    s_cselect_b64 exec, -1, 0
    {oload(l)}"""


POLL = f"""s_andn2_b32 exec_lo, 0xff, s{sTk}
    s_mov_b32 exec_hi, 0
    buffer_load_dword v{vQm}, v{vLp}, s[{sWS}:{sWS+3}], s{sOin} offen sc1
    s_mov_b64 exec, -1"""
extra(63, 1, f"ds_read_b32 v{t2}, v{vMf}")
for i in range(8):
    extra(63, 1 + i // 3, f"ds_read_b128 {v(S[0]+4*i,4)}, v{vRw} offset:{1024*i}")


def hook_epoch():
    A(f"""s_or_b32 s{sT0}, s{sh}, s{sj}
    s_or_b32 s{sT0}, s{sT0}, s{sw}
    s_cbranch_scc0 L_epoch""")
    A.label("L_epd")


AFTER[60].append(hook_epoch)


def hook_prio():
    A(f"""s_setprio 1
    s_cmp_lg_u32 s{sKap}, 0
    s_cbranch_scc1 L_pr
    s_setprio 2""")
    A.label("L_pr")


AFTER[60].append(hook_prio)
AFTER[20].append(hook_pollh)
PSEG = {1: [(0, 0, 3), (3, 0, 2), (6, 0, 1), (7, 2, 0)], 2: [(0, 0, 3), (4, 0, 2), (6, 2, 1), (7, 3, 0)],
        3: [(0, 0, 1), (7, 2, 0)], 4: [(0, 0, 3), (2, 0, 2), (4, 0, 1), (6, 0, 0)], 5: [(0, 0, 1), (7, 0, 0)],
        6: [(0, 0, 2), (5, 0, 1), (7, 2, 0)]}
if OPT.get("pseg"):
    for (ww, sl, pr) in [(0, 0, 3), (3, 0, 2), (5, 2, 1), (6, 3, 0), (7, 0, 3), (9, 0, 2), (11, 2, 1), (12, 3, 0)]:
        EXTRA.setdefault((ww, sl), []).insert(0, f"s_setprio {pr}")
    for i in range(1, 7):
        for (dw, sl, pr) in PSEG[OPT["pseg"]]:
            EXTRA.setdefault((8 * i + 5 + dw, sl), []).insert(0, f"s_setprio {pr}")
if OPT.get("prio"):
    A(f"""s_cmp_eq_u32 s{sKap}, {OPT["prio"] & 1}
    s_cbranch_scc0 L_np
    s_setprio 1""")
    A.label("L_np")
for W in range(64):
    if W in (24, 48):
        ts(1 if W == 24 else 2, 4)
    window(W)
A(f"""s_nop 0
v_smfmac_f32_32x32x32_bf16 {v(O[1],16)}, {v(Vf[1],4)}, {v(S[3],8)}, v{vIdx}
v_smfmac_f32_32x32x32_bf16 {v(O[1],16)}, {v(Vf[1]+4,4)}, {v(S[3]+8,8)}, v{vIdx}""")
ts(7)

R = S[0]
A(f"""s_cmp_lg_u32 s{sKap}, 0
s_cbranch_scc1 L_ym""")
OLDER = "s_waitcnt lgkmcnt(0)\n" + "\n".join(
    f"ds_write_b128 v{vRw}, {v(O[0]+4*i,4)} offset:{1024*i}" for i in range(8)) + f"""
v_mov_b32 v{t0}, 1
ds_write_b32 v{vMf}, v{t0}
s_setprio {OPT.get("op", 0)}
s_waitcnt vmcnt(0)
s_branch L_p3e"""
A(OLDER)
A.label("L_mwait")
A(f"s_mov_b32 s{sSpin}, 0x400000")
A.label("L_mwait1")
A(f"ds_read_b32 v{t2}, v{vMf}")
for i in range(8):
    A(f"ds_read_b128 {v(R+4*i,4)}, v{vRw} offset:{1024*i}")
A(f"""s_sub_u32 s{sSpin}, s{sSpin}, 1
s_waitcnt lgkmcnt(0)
s_cbranch_scc1 L_mgo
v_readfirstlane_b32 s{sT0}, v{t2}
s_cmp_eq_u32 s{sT0}, 0
s_cbranch_scc1 L_mwait1
s_branch L_mgo""")

A.label("L_ym")
A(f"""s_waitcnt vmcnt(0) lgkmcnt(0)
v_readfirstlane_b32 s{sT0}, v{t2}
s_cmp_eq_u32 s{sT0}, 0
s_cbranch_scc1 L_mwait""")
A.label("L_mgo")
for q in range(2):
    for r in range(0, 16, 2):
        A(f"v_pk_add_f32 {v(O[q]+r,2)}, {v(O[q]+r,2)}, {v(R+16*q+r,2)}")
A.label("L_norm")
rc = [vFl, S[2]]
A(f"""v_mov_b32 v{t0}, v{O[0]+12}
v_mov_b32 v{rc[0]}, v{O[0]+12}
v_mov_b32 v{t1}, v{O[1]+12}
v_mov_b32 v{rc[1]}, v{O[1]+12}
s_add_u32 s{sT0}, s{sOp}, 32768
v_permlane32_swap_b32 v{t0}, v{rc[0]}
v_permlane32_swap_b32 v{t1}, v{rc[1]}
v_subrev_u32 v{t0}, {hex(L_LO)}, v{rc[0]}
v_subrev_u32 v{t1}, {hex(L_LO)}, v{rc[1]}
v_max_u32 v{t0}, v{t0}, v{t1}
v_cmp_lt_u32 vcc, s{sChk}, v{t0}
s_cmp_lg_u64 vcc, 0
s_cbranch_scc1 L_slow
v_rcp_f32 v{rc[0]}, v{rc[0]}
v_rcp_f32 v{rc[1]}, v{rc[1]}""")
for q in range(2):
    po = [pk, pq][q]
    so = [sOp, sT0][q]
    for r in range(0, 16, 2):
        A(f"v_pk_mul_f32 {v(O[q]+r,2)}, {v(O[q]+r,2)}, {v(rc[q],2)} op_sel_hi:[1,0]")
    for r in range(8):
        A(f"v_cvt_pk_bf16_f32 v{po+r}, v{O[q]+2*r}, v{O[q]+2*r+1}")
    for r in (6, 7):
        A(f"v_cndmask_b32 v{po+r}, 0, v{po+r}, s[{sLo}:{sLo+1}]")
    for r in range(8):
        A(f"v_min_u32 v{po+r}, -2, v{po+r}")
    A(f"""buffer_store_dwordx4 {v(po,4)}, v{vL16}, s[{sWS}:{sWS+3}], s{so} offen sc1
    buffer_store_dwordx4 {v(po+4,4)}, v{vL16}, s[{sWS}:{sWS+3}], s{so} offen offset:1024 sc1""")
ts(8)


TILES = list(range(O[0], Of, 4)) + [DEAD, DEAD + 4]
assert len(TILES) >= 42
rx = S[2]
pk2, rb = Q[0], Q[1]
sOk = sDone
OOL = []


def wtile(l, ct):
    return TILES[7 * (l % 6) + ct]


def wtext(l, ct):
    a0, a1, off = (vW0, vW1, l * 12544) if l < 6 else (t1, t2, 0) if l == 6 else (t3, t4, 0)
    d = wtile(l, ct)
    return f"""ds_read_b64_tr_b16 {v(d,2)}, v{a0} offset:{off+32*ct}
    ds_read_b64_tr_b16 {v(d+2,2)}, v{a1} offset:{off+32*ct}"""


A.label("L_p3e")
if OPT["ts"] == 5:
    A("s_mov_b32 s11, 1")
tsd(0)
A(f"s_mov_b32 s{sSpin}, 0x40000")
sSl = 14
vXw = [vTw, vLane, vIdx, t5]
for l in range(8):
    A(f"s_add_u32 s{sSl+l}, s{sOin}, {4096*l}")
A.label("L_p3r")
A(f"""s_mov_b32 s{sTk}, 0
v_add_u32 v{t1}, {6*12544}, v{vW0}
v_add_u32 v{t2}, {6*12544}, v{vW1}
v_add_u32 v{t3}, s{sSp}, v{vW0}
v_add_u32 v{t4}, s{sSp}, v{vW1}
s_waitcnt lgkmcnt(0)""")
for i in range(42):
    if i >= 6 and i % 3 == 0:
        A("s_waitcnt lgkmcnt(8)")
    if i == OPT["pp"]:
        A(POLL)
    A(wtext(i // 7, i % 7))
tsd(1)
A("s_branch L_w1")
A.label("L_w0")
if OPT.get("slp"):
    A(f"s_sleep {OPT['slp']}")
A(POLL)
A.label("L_w1")
A(f"""s_sub_u32 s{sSpin}, s{sSpin}, 1
s_cselect_b32 s{sT0}, 0xff, 0
s_cselect_b32 s{sSpin}, 0, s{sSpin}
s_waitcnt vmcnt(0)
v_cmp_ne_u32 vcc, -1, v{vQm}
s_or_b32 s{sTk}, vcc_lo, s{sT0}
s_andn2_b32 s{sT0}, 0xff, s{sTk}
s_cbranch_scc1 L_w0""")
tsd(9)
for l in range(8):
    A(f"buffer_load_dwordx4 {v(Of+4*l,4)}, v{vOa}, s[{sWS}:{sWS+3}], s{sSl+l} offen sc1")
tsd(7)
A(f"""v_mov_b32 v{vFl}, 1
s_add_u32 s{sT1}, s{sOut}, {8*1792}""")
for ct in range(1, 4):
    A(f"v_xor_b32 v{vXw[ct]}, {32*ct}, v{vTw}")
ORD = [0, 2, 1, 3, 4, 5, 6, 7]
for k, l in enumerate(ORD):
    b0 = Of + 4 * l
    A(f"s_waitcnt vmcnt({7-max(ORD[:k+1])})" + (" lgkmcnt(0)" if l in (0, 1, 6) else ""))
    if k == 0:
        tsd(2)
    for ct in range(7):
        A(f"v_mfma_f32_16x16x32_bf16 {v(acc+4*ct,4)}, {v(wtile(l,ct),4)}, {v(b0,4)}, {'0' if k == 0 else v(acc+4*ct,4)}")
        if l < 2:
            A(wtext(6 + l, ct))
        if ct == 1:
            A(f"v_max3_u32 v{t0}, v{b0}, v{b0+1}, {'0' if k == 0 else f'v{t0}'}")
        if ct == 3:
            A(f"v_max3_u32 v{t0}, v{b0+2}, v{b0+3}, v{t0}")
        if ct == 5 and k == 7:
            A(f"v_cmp_eq_u32 vcc, -1, v{t0}")
A(f"""s_cmp_lg_u64 vcc, 0
s_cbranch_scc1 L_redo""")
A.label("L_good")
OOL.append(f"""L_redo:
s_sub_u32 s{sSpin}, s{sSpin}, 1
s_cbranch_scc0 L_p3r
s_branch L_good""")
tsd(3)
ts(9)
tsa(8)


XS_ = [f"""L_xsk{kap}:
    s_sleep {OPT.get("xs", 1)}
    ds_read_b32 v{t0}, v{vMf} offset:{32-16*kap}
    s_sub_u32 s{sSpin}, s{sSpin}, 1
    s_waitcnt lgkmcnt(0)
    s_cbranch_scc1 L_yk{kap}
    v_readfirstlane_b32 s{sT0}, v{t0}
    s_cmp_eq_u32 s{sT0}, 0
    s_cbranch_scc1 L_xsk{kap}
    s_branch L_xk{kap}""" for kap in (1, 0)]


def p3(kap):
    n = f"k{kap}"
    keep = [0, 1, 2, 3] if kap == 0 else [4, 5, 6]
    send = [4, 5, 6] if kap == 0 else [0, 1, 2, 3]
    wa_, ra_ = (vSn, vRw) if kap == 0 else (vRw, vSn)
    A(f"s_mov_b32 s{sSpin}, 0x400000")
    for i, ct in enumerate(send):
        A(f"ds_write_b128 v{wa_}, {v(acc+4*ct,4)} offset:{1024*i}")
    A(f"ds_write_b32 v{vMf}, v{vFl} offset:{16+16*kap}")
    A.label(f"L_x{n}")
    A(f"ds_read_b32 v{t0}, v{vMf} offset:{32-16*kap}")
    for i in range(len(keep)):
        A(f"ds_read_b128 {v(rx+4*i,4)}, v{ra_} offset:{1024*i}")
    A(f"""s_sub_u32 s{sSpin}, s{sSpin}, 1
    s_cbranch_scc1 L_y{n}
    s_waitcnt lgkmcnt({len(keep)})
    v_readfirstlane_b32 s{sT0}, v{t0}
    s_cmp_eq_u32 s{sT0}, 0
    s_cbranch_scc1 L_xs{n}""")
    A.label(f"L_y{n}")
    tsd(4)
    tsa(9)
    wa = vXw
    for i, ct in enumerate(keep):
        A(f"""s_waitcnt lgkmcnt({len(keep)-1})
        v_pk_add_f32 {v(acc+4*ct,2)}, {v(acc+4*ct,2)}, {v(rx+4*i,2)}
        v_pk_add_f32 {v(acc+4*ct+2,2)}, {v(acc+4*ct+2,2)}, {v(rx+4*i+2,2)}
        v_cvt_pk_bf16_f32 v{pk2+2*i}, v{acc+4*ct}, v{acc+4*ct+1}
        v_cvt_pk_bf16_f32 v{pk2+2*i+1}, v{acc+4*ct+2}, v{acc+4*ct+3}
        ds_write_b64 v{wa[i]}, {v(pk2+2*i,2)}""")
    os_ = vOs if kap == 0 else vOs2
    A(f"""ds_read_b128 {v(rb,4)}, v{vTr}
    ds_read_b128 {v(rb+4,4)}, v{vTr} offset:1024
    s_waitcnt lgkmcnt(1)
    buffer_store_dwordx4 {v(rb,4)}, v{os_}, s[{sOUT}:{sOUT+3}], s{sOut} offen{OSC}
    s_waitcnt lgkmcnt(0)
    buffer_store_dwordx4 {v(rb+4,4)}, v{os_}, s[{sOUT}:{sOUT+3}], s{sT1} offen{OSC}""")


assert Vf[1] == Kf[0] + 24 and O[1] == O[0] + 16
A(f"""s_cmp_eq_u32 s{sKap}, 0
s_cbranch_scc1 L_x0""")
p3(1)
A("s_branch L_noep" if OPT["ts"] or OPT.get("padto") else "s_endpgm")
for x in XS_:
    A(x)
A.label("L_x0")
p3(0)
A.label("L_noep")
if OPT.get("padto"):
    A.label("L_pad")
    A(f"""s_sleep 4
    s_memrealtime s[{sRet}:{sRet+1}]
    s_waitcnt lgkmcnt(0)
    s_sub_u32 s{sT0}, s{sRet}, s{sTS}
    s_cmp_lt_u32 s{sT0}, {OPT["padto"]}
    s_cbranch_scc1 L_pad""")
tsd(5)
tsa(10)
if OPT["ts"] == 6:
    A("s_waitcnt lgkmcnt(0)")
    for i, r in enumerate(ASR):
        A(f"v_writelane_b32 v{vTS}, s{r}, {i+1}")
    A(f"""s_sub_u32 s{sRem}, 0x7fffffff, s{sRem}
    v_writelane_b32 v{vTS}, s{sRem}, 13
    v_writelane_b32 v{vTS}, s19, 14""")
if OPT["ts"]:
    A("s_waitcnt vmcnt(0)")
    ts(10)
    tsd(6)
    ts(12, 6)
    A(f"""s_lshl_b32 s{sT0}, s2, 3
    s_add_u32 s{sT0}, s{sT0}, s{sw}
    s_lshl_b32 s{sT0}, s{sT0}, {8 if OPT["ts"] == 5 else 6}
    s_add_u32 s{sT0}, s{sT0}, {TS_OFF}
    s_getreg_b32 s{sT1}, hwreg(HW_REG_XCC_ID)
    {"s_nop 0" if OPT["ts"] == 5 else f"v_writelane_b32 v{vTS}, s{sT1}, 15"}
    v_lshrrev_b32 v{t0}, 2, v{vL16}
    s_mov_b64 exec, {-1 if OPT["ts"] == 5 else "0xffff"}
    buffer_store_dword v{vTS}, v{t0}, s[{sWS}:{sWS+3}], s{sT0} offen""")
    if OPT.get("dbg"):
        A(f"""v_readlane_b32 s{sT0}, v{vTS}, 0
        s_not_b32 s{sT0}, s{sT0}
        v_writelane_b32 v{vTS}, s{sT0}, 15
        s_mov_b32 s{sX}, s22
        s_mov_b32 s{sX+1}, s23
        s_mov_b32 s{sX+2}, 256
        buffer_atomic_umax v{vTS}, v{t0}, s[{sX}:{sX+3}], 0 offen""")
A.label("L_end")
A("s_endpgm")

for x in OOL:
    A(x)
A.label("L_epoch")
A(f"""s_add_u32 s{sE}, s{sE}, 1
s_lshl_b32 s{sT0}, s{sb}, 8
s_add_u32 s{sT0}, s{sT0}, {EPOCH_OFF}
v_mov_b32 v{t1}, s{sE}
s_mov_b64 exec, 1
buffer_store_dword v{t1}, v{vL16}, s[{sWS}:{sWS+3}], s{sT0} offen sc1
s_mov_b64 exec, -1
s_branch L_epd""")

A.label("L_pollc")
A(f"s_mov_b32 s{sSpin}, 0x40000")
A.label("L_pollc1")
A(f"""buffer_load_dword v{vQm}, v{vPc}, s[{sWS}:{sWS+3}], s{sPc} offen sc1
s_sub_u32 s{sSpin}, s{sSpin}, 1
s_cbranch_scc1 L_pollc_done
s_waitcnt vmcnt(0)
v_cmp_ne_u32 vcc, s{stag}, v{vQm}
s_cmp_lg_u64 vcc, 0
s_cbranch_scc1 L_pollc1
s_branch L_pollc_done""")

A.label("L_pollh")
A(f"s_mov_b32 s{sSpin}, 0x40000")
A.label("L_pollh1")
A(poll_text(0x7fff0000).replace('0x7fff0000', '0xffff0000'))
A(f"""s_sub_u32 s{sSpin}, s{sSpin}, 1
s_cbranch_scc1 L_pollh_done
s_waitcnt vmcnt(0)
v_cmp_ne_u32 vcc, s{stag}, v{vFl}
s_and_b32 s{sD1}, vcc_lo, 0xffff0000
s_cbranch_scc1 L_pollh1
s_branch L_pollh_done""")

A.label("L_slow")
Sx, vMn, vAl = S[2], t2, t3
vM = [t4, t5]
A(f"""s_mov_b32 s{sChk}, -1
v_lshlrev_b32 v{vBk}, 3, v{vLane}
v_mov_b32 v{vM[0]}, 0xff7fffff
v_mov_b32 v{vM[1]}, 0xff7fffff
s_mov_b32 s{sT0}, s{sKV}
s_mov_b32 s{sI}, 0""")
for r in range(32):
    A(f"v_mov_b32 v{O[0]+r}, 0")
A.label("L_slow_t")
for i in range(4):
    A(f"buffer_load_dwordx2 {v(Kf[0]+2*i,2)}, v{vBk}, s[{sWS}:{sWS+3}], s{sT0} offen offset:{512*i} sc1")
A(f"""buffer_load_dwordx4 {v(Vf[0],4)}, v{vL16}, s[{sWS}:{sWS+3}], s{sT0} offen offset:2048 sc1
buffer_load_dwordx4 {v(Vf[0]+4,4)}, v{vL16}, s[{sWS}:{sWS+3}], s{sT0} offen offset:3072 sc1
s_add_u32 s{sT0}, s{sT0}, 4096
s_waitcnt vmcnt(0)""")
for q in range(2):
    A(f"""v_mfma_f32_32x32x16_bf16 {v(Sx,16)}, {v(Kf[0],4)}, {v(Q[q],4)}, 0
    v_mfma_f32_32x32x16_bf16 {v(Sx,16)}, {v(Kf[0]+4,4)}, {v(Q[q]+4,4)}, {v(Sx,16)}
    v_max3_f32 v{t0}, v{Sx}, v{Sx+1}, v{vM[q]}""")
    for r in range(2, 16, 2):
        A(f"v_max3_f32 v{t0}, v{Sx+r}, v{Sx+r+1}, v{t0}")
    A(f"""v_mov_b32 v{t1}, v{t0}
    v_permlane32_swap_b32 v{t0}, v{t1}
    v_max_f32 v{vMn}, v{t0}, v{t1}
    v_sub_f32 v{vAl}, v{vM[q]}, v{vMn}
    v_exp_f32 v{vAl}, v{vAl}
    v_mov_b32 v{vM[q]}, v{vMn}""")
    for r in range(16):
        A(f"v_sub_f32 v{Sx+r}, v{Sx+r}, v{vMn}")
    for r in range(16):
        A(f"v_exp_f32 v{Sx+r}, v{Sx+r}")
    for r in range(16):
        A(f"v_mul_f32 v{O[q]+r}, v{vAl}, v{O[q]+r}")
    A(f"""v_smfmac_f32_32x32x32_bf16 {v(O[q],16)}, {v(Vf[0],4)}, {v(Sx,8)}, v{vIdx}
    v_smfmac_f32_32x32x32_bf16 {v(O[q],16)}, {v(Vf[0]+4,4)}, {v(Sx+8,8)}, v{vIdx}""")
A(f"""s_add_u32 s{sI}, s{sI}, 1
s_cmp_lt_u32 s{sI}, 64
s_cbranch_scc1 L_slow_t
s_nop 11
s_branch L_norm""")

n = A.fix_hazards(verbose=bool(OPT.get("v", 0)))
NV = -(-V.hi // 8) * 8
hdr = open("cdna_kernels/" + NAME + ".s.ref").read().split("; Override launch")[0]
out = hdr + f"""; Fused kernel: QKV projection -> softmax attention -> output projection, one workgroup per
; (branch, head, 256-token block).  Generated by gen/gen.py.
; @launch grid=(256,1,1) block=(512,1,1) lds={LDS_BYTES}
.amdgcn_target "amdgcn-amd-amdhsa--gfx950"
.text
.globl {NAME}_kernel
.p2align 8
.type {NAME}_kernel,@function
""" + A.text().replace("CODE_SPAN", "L_slow-L_nopf") + f""".section .rodata,"a"
.p2align 6
.amdhsa_kernel {NAME}_kernel
  .amdhsa_next_free_vgpr {NV}
  .amdhsa_next_free_sgpr {NSGPR}
  .amdhsa_accum_offset {NV}
  .amdhsa_group_segment_fixed_size 0
  .amdhsa_kernarg_size 72
  .amdhsa_user_sgpr_count 2
  .amdhsa_user_sgpr_kernarg_segment_ptr 1
  .amdhsa_system_sgpr_workgroup_id_x 1
.end_amdhsa_kernel
"""
open(sys.argv[1], "w").write(out)
print(f"wrote {sys.argv[1]}: {len(A.lines)} lines, {n} nops inserted, {NV} vgprs", file=sys.stderr)
```

```python
import sys, struct, math
from asmlib import Asm, Alloc, v, s

NAME = "concat_heads__softmax_full_mha__softmax_full_mha__prompt"

OPT = dict(ts=0, force_slow=0, rot=2, map=1, pf=1, pq=14, tq=6, fq=0, padg=14, pubw=1, pseg=2, npro=0, pp=24, tou=0,
           osc=0, nw0=4, na=2, n1=2, cg=23, xl=4, wqe=0, wqd=2, wqf=0, nb=10, lf=2, yp=0, tch=0, b0=1, lseg=1, reo=1, z0=24, dsl=1, c0=1, off=8, hf=1)
for a in sys.argv[2:]:
    k, val = a.split("=")
    OPT[k] = int(val)

FLAG_OFF = 0xD00000
ES = OPT.get("es", 7)
FS = OPT.get("fs", 16 << ES)
HINT = 0x80000
EPOCH_OFF = 0x10000
TS_OFF = 0x20000
KV_OFF = 0x100000
O_OFF = 0x900000
WS_BYTES = 0x1000000
OOB = 0x40000000

XS = 32768
WL = 98304
WQ = 0
QOLD = 155648
WOB = 66944
WO15 = 32768
MISC = 161280
SND = 16384
LDS_BYTES = 163840

CSCALE = math.log2(math.e) / math.sqrt(28.0)
SHIFT = OPT['off'] + [0, 4, 2, -4, 1][OPT['c0']]
L_LO = (127 - 60 + SHIFT) << 23
L_RANGE = 120 << 23


def f2u(x):
    return struct.unpack("<I", struct.pack("<f", x))[0]


NTX = " nt" if OPT.get("ntx") else ""
NTW = " nt" if OPT.get("ntw") else ""
OSC = ["", " sc1", " nt", " sc0 sc1", " sc1 nt"][OPT.get("osc", 3)]
C0 = ["0", "4.0", "2.0", "-4.0", "1.0"][OPT.get("c0", 0)]
A = Asm()
sWm, sWm13 = 26, 27
sX, sW, sWS, sWO, sOUT = 28, 32, 36, 40, 44
sw, sb, sh, sj, stag, sE = 48, 49, 50, 51, 52, 53
sCx, sXb, sWb, sMX, sMW, sCw = 54, 55, 56, 57, 58, 59
sT0, sT1, sT2, sT3 = 60, 61, 62, 63
sLo = 64
sLine, sRole = 66, 67
sHo = 10
sWb0, sSp = 12, 13
sLpx = 8
sKV = 68
sMXs, sWq = 69, 70
sI, sRel, sWn, sHH = 71, 72, 73, 74
sSpin = 75
sOt = 76
sWoff = 77
sKap = 78
sFl = 79
sTS = 80
sRet = 82
sDone, sTodo = 84, 85
sOin = 86
sPc = 87
sOut = 88
sChk = 89
sCs = 90
sKVt = 92
sD0, sD1 = 93, 94
sPend, sRem = 95, 96
sOp = 97
sRdy = 98
sHi, sPl, sC0, sMQ = 4, 5, 6, 7
sCq, sNone = 3, 100
NSGPR = 102


def ts(idx, grp=1):
    if OPT.get("padat") == 100 * grp + idx:
        A(f"s_memrealtime s[{sTS}:{sTS+1}]\ns_waitcnt lgkmcnt(0)")
    if not OPT["ts"] or (idx != 0 and OPT["ts"] != grp):
        return
    A(f"""{"s_memtime" if OPT.get("clk") else "s_memrealtime"} s[{sTS}:{sTS+1}]
    s_waitcnt lgkmcnt(0)
    v_writelane_b32 v{vTS}, s{sTS}, {idx}""")


def tsd(code, val=0):
    A(tsdt(code, val))


def tsdt(code, val=0):
    if OPT["ts"] != 5:
        return ""
    return (f"""s_memrealtime s[{sTS}:{sTS+1}]
    s_waitcnt lgkmcnt(0)
    s_lshl_b32 s{sTS}, s{sTS}, 8
    s_or_b32 s{sTS}, s{sTS}, {code << 4}
    s_or_b32 s{sTS}, s{sTS}, {val}
    s_mov_b32 m0, s11
    v_writelane_b32 v{vTS}, s{sTS}, m0
    s_add_u32 s11, s11, 1
    s_min_u32 s11, s11, 63""")


ASR = [20, 22, 54, 56, 58, 68, 66, 72, 90, 26, 6]


def tsa(i):
    if OPT["ts"] == 6:
        A(f"s_memrealtime s[{ASR[i]}:{ASR[i]+1}]")


class Cnt:
    def __init__(self, name, cap):
        self.name, self.cap, self.q = name, cap, []

    def room(self):
        if len(self.q) >= self.cap:
            A(f"s_waitcnt {self.name}({self.cap - 4})")
            self.q = self.q[len(self.q) - (self.cap - 4):]

    def issue(self, tag, n=1):
        self.q += [tag] * n
        assert len(self.q) <= self.cap, (self.name, self.q)

    def wait(self, *tags):
        idx = [i for i, t in enumerate(self.q) if t in tags]
        if idx:
            n = len(self.q) - 1 - idx[-1]
            A(f"s_waitcnt {self.name}({n})")
            self.q = self.q[idx[-1] + 1:]


def lines(text):
    return [x.strip() for x in text.split("\n") if x.strip()]


def emit(lst, n):
    for _ in range(min(n, len(lst))):
        A(lst.pop(0))


V = Alloc(1, 256)
vLane = V()
vTS = V()
vL16 = V()
vIdx = V()
vT = [V() for _ in range(6)]
t0, t1, t2, t3, t4, t5 = vT
vQm = V()
DEAD = V(8)
vQw, vQr, vBase, vCur, vWod, vPl, vPc, vBk = range(DEAD, DEAD + 8)
vOa, vW0, vW1, vSn, vRw, vMf, vTw, vTr, vOs, vOs2, vLp = [V() for _ in range(11)]
vTag = V()
vFl = V(2)
m_ph = V.mark()
Xr = V(112)
acc0, acc1 = V(16), V(16)
Wf = V(24)
accQ = V(16)
Wg = V(12)
vXd = [V() for _ in range(4)]
vWd, vWd2 = V(), V()
vWq = V()
vXa = [V() for _ in range(4)]
vWr = [V(), V()]
vWqr = V()
vSt = [V() for _ in range(4)]
vP = [V()]
vPd = V(4)
vOnes = accQ
V.reset(m_ph)
O = [V(16), V(16)]
Q = [V(8), V(8)]
S = [V(16) for _ in range(4)]
Kf = [V(8), V(8)]
Vf = [V(8), V(8)]
pk, pq = V(8), V(8)
Of = V(32)
acc = V(28)
assert O[0] == Xr

A.label(NAME + "_kernel")
A(f"""s_cmp_ge_u32 s2, 256
s_cbranch_scc1 L_end
s_load_dwordx16 s[8:23], s[0:1], 0
s_load_dwordx2 s[24:25], s[0:1], 64
v_lshrrev_b32 v{t0}, 6, v0
v_and_b32 v{vLane}, 63, v0
v_readfirstlane_b32 s{sw}, v{t0}
v_lshlrev_b32 v{vL16}, 4, v{vLane}""")
if OPT.get("padto"):
    A(f"s_memrealtime s[{sTS}:{sTS+1}]")
if OPT["ts"]:
    A(f"""{"s_memtime" if OPT.get("clk") else "s_memrealtime"} s[{sTS}:{sTS+1}]
    v_mov_b32 v{vTS}, 0""")
if OPT["map"] == 1:
    A(f"""s_and_b32 s{sT0}, s2, 7
    s_lshr_b32 s{sT1}, s2, 3
    s_and_b32 s{sj}, s{sT1}, 7
    s_lshr_b32 s{sT1}, s{sT1}, 3
    s_lshl_b32 s{sT0}, s{sT0}, 2
    s_add_u32 s{sHH}, s{sT0}, s{sT1}""")
elif OPT["map"] == 2:
    A(f"""s_and_b32 s{sT0}, s2, 7
    s_lshr_b32 s{sT1}, s2, 3
    s_and_b32 s{sT2}, s{sT0}, 3
    s_lshl_b32 s{sT2}, s{sT2}, 1
    s_lshr_b32 s{sT3}, s{sT1}, 4
    s_add_u32 s{sj}, s{sT2}, s{sT3}
    s_lshr_b32 s{sT0}, s{sT0}, 2
    s_lshl_b32 s{sT0}, s{sT0}, 4
    s_and_b32 s{sT1}, s{sT1}, 15
    s_add_u32 s{sHH}, s{sT0}, s{sT1}""")
elif OPT["map"] == 3:
    A(f"""s_and_b32 s{sT0}, s2, 7
    s_lshr_b32 s{sT1}, s2, 3
    s_and_b32 s{sT2}, s{sT0}, 1
    s_lshl_b32 s{sT2}, s{sT2}, 2
    s_lshr_b32 s{sT3}, s{sT1}, 3
    s_add_u32 s{sj}, s{sT2}, s{sT3}
    s_lshr_b32 s{sT0}, s{sT0}, 1
    s_lshl_b32 s{sT0}, s{sT0}, 3
    s_and_b32 s{sT1}, s{sT1}, 7
    s_add_u32 s{sHH}, s{sT0}, s{sT1}""")
A(f"""s_lshr_b32 s{sb}, s{sHH}, 4
s_and_b32 s{sh}, s{sHH}, 15
s_lshr_b32 s{sKap}, s{sw}, 2""")
A(f"""s_cmp_gt_u32 s{sh}, 7
s_cselect_b32 s{sRole}, 1, 0
s_cselect_b32 s{sT0}, 16, 1
s_cselect_b32 s{sT1}, 1, 2
s_cselect_b32 s{sT2}, 2, 8
s_cselect_b32 s{sT3}, 8, 16
v_bfe_u32 v{t0}, v{vLane}, 3, 1
v_mul_u32_u24 v{t0}, s{sT0}, v{t0}
v_bfe_u32 v{t1}, v{vLane}, 4, 1
v_mad_u32_u24 v{t0}, v{t1}, s{sT1}, v{t0}
v_lshrrev_b32 v{t1}, 5, v{vLane}
v_lshl_add_u32 v{t0}, v{t1}, 2, v{t0}
v_mul_u32_u24 v{t3}, 896, v{t0}
s_mul_i32 s{sT2}, s{sT2}, 896
s_mul_i32 s{sT3}, s{sT3}, 896
s_sub_u32 s{sT2}, s{sT2}, 1024
s_sub_u32 s{sT3}, s{sT3}, 2048
v_lshrrev_b32 v{t1}, 4, v{vLane}
v_and_b32 v{t2}, 7, v{vLane}
v_xor_b32 v{t1}, v{t1}, v{t2}
v_lshl_add_u32 v{vXd[0]}, v{t1}, 4, v{t3}
v_xor_b32 v{t1}, 4, v{t1}
v_lshl_add_u32 v{t1}, v{t1}, 4, v{t3}
v_add_u32 v{vXd[1]}, s{sT2}, v{t1}
v_add_u32 v{vXd[2]}, s{sT3}, v{vXd[0]}
v_add_u32 v{vXd[3]}, s{sT3}, v{vXd[1]}
s_lshl_b32 s{sT0}, s{sj}, 3
s_add_u32 s{sT0}, s{sT0}, s{sw}
s_mul_i32 s{sXb}, s{sT0}, {32*896}
s_lshl_b32 s{sMX}, s{sw}, 12
s_lshl_b32 s{sT0}, s{sKap}, 14
s_add_u32 s{sMXs}, s{sMX}, s{sT0}
s_add_u32 s{sMXs}, s{sMXs}, {XS}""")
if OPT["rot"] == 0:
    A(f"s_mov_b32 s{sC0}, 0")
else:
    if OPT["rot"] == 1:
        A(f"s_add_u32 s{sC0}, s{sh}, s{sj}")
    elif OPT["rot"] == 2:
        A(f"""s_mul_i32 s{sC0}, s{sh}, 7
        s_lshr_b32 s{sC0}, s{sC0}, 4
        s_add_u32 s{sC0}, s{sC0}, s{sj}""")
    elif OPT["rot"] == 3:
        A(f"""s_mul_i32 s{sC0}, s{sh}, 7
        s_lshr_b32 s{sC0}, s{sC0}, 4""")
    A(f"""s_mul_i32 s{sT1}, s{sC0}, 37
    s_lshr_b32 s{sT1}, s{sT1}, 8
    s_mul_i32 s{sT1}, s{sT1}, 7
    s_sub_u32 s{sC0}, s{sC0}, s{sT1}""")
if OPT["pf"]:
    A(f"""s_and_b32 s{sT0}, s2, 0xf8
    s_add_u32 s{sT0}, s{sT0}, s{sw}
    s_mul_i32 s{sT0}, s{sT0}, 192
    s_getpc_b64 s[{sRet}:{sRet+1}]""")
    A.label("L_nopf")
    A(f"""v_and_b32 v{t4}, 0x80, v{vL16}
    v_add_u32 v{t4}, s{sT0}, v{t4}
    v_min_u32 v{t4}, CODE_SPAN, v{t4}
    global_load_dword v{t5}, v{t4}, s[{sRet}:{sRet+1}]""")
A(f"""s_lshl_b32 s{sCx}, s{sC0}, 7
s_mov_b32 s{sX+2}, {2048*896}
s_mov_b32 s{sX+3}, 0x20000
s_cmp_eq_u32 s{sb}, 0
s_waitcnt lgkmcnt(0)
s_cselect_b32 s{sX}, s8, s14
s_cselect_b32 s{sX+1}, s9, s15
s_cselect_b32 s{sW}, s10, s16
s_cselect_b32 s{sW+1}, s11, s17
s_cselect_b32 s{sWO}, s12, s18
s_cselect_b32 s{sWO+1}, s13, s19""")
if OPT["ts"]:
    A(f"v_writelane_b32 v{vTS}, s{sTS}, 0")
ts(14, 2)


def x_pieces(c):
    p = [f"""s_add_u32 m0, s{sMXs}, {(c % 2) * 16384}
    s_add_u32 s{sD0}, s{sCx}, s{sXb}
    buffer_load_dwordx4 v{vXd[0]}, s[{sX}:{sX+3}], s{sD0} offen{NTX} lds
    s_add_u32 s{sCx}, s{sCx}, 128
    s_cmp_eq_u32 s{sCx}, 896
    s_cselect_b32 s{sCx}, 0, s{sCx}"""]
    for i in range(1, 4):
        p.append(f"buffer_load_dwordx4 v{vXd[i]}, s[{sX}:{sX+3}], s{sD0} offen offset:{1024*i}{NTX} lds")
    return [(x, f"X{c}") for x in p]


def w_pieces(it):
    return [(f"""s_add_u32 m0, s{sMW}, {it*8192}
    s_add_u32 s{sD1}, s{sCw}, s{sWb}
    buffer_load_dwordx4 v{vWd}, s[{sW}:{sW+3}], s{sD1} offen lds
    s_add_u32 s{sCw}, s{sCw}, {64*2688}
    s_cmp_eq_u32 s{sCw}, {448*2688}
    s_cselect_b32 s{sCw}, 0, s{sCw}""", f"W{it}"),
            (f"buffer_load_dwordx4 v{vWd2}, s[{sW}:{sW+3}], s{sD1} offen offset:1024 lds", f"W{it}")]


def wq_piece(i):
    return (f"""s_add_u32 m0, s{sMQ}, {i*1024}
    s_add_u32 s{sD1}, s{sCq}, s{sWq}
    buffer_load_dwordx4 v{vWq}, s[{sW}:{sW+3}], s{sD1} offen lds
    s_add_u32 s{sCq}, s{sCq}, {16*2688}
    s_cmp_eq_u32 s{sCq}, {448*2688}
    s_cselect_b32 s{sCq}, 0, s{sCq}""", "WQ")


A(f"""s_lshr_b32 s{sNone}, 0x240, s{sh}
s_and_b32 s{sNone}, s{sNone}, 1
s_cmp_gt_u32 s{sKap}, s{sNone}
s_cbranch_scc1 L_nox""")
for p, _ in x_pieces(0) + x_pieces(1):
    A(p)
A.label("L_nox")
ts(1, 2)
A(f"""s_mov_b32 s{sW+2}, {448*2688}
s_mov_b32 s{sW+3}, 0x20000
s_cmp_gt_u32 s{sh}, 6
s_subb_u32 s{sLine}, s{sh}, 0
s_cmp_gt_u32 s{sh}, 9
s_subb_u32 s{sLine}, s{sLine}, 0
s_lshl_b32 s{sWb}, s{sLine}, 7
s_cmp_ge_u32 s{sLine}, 7
s_cselect_b32 s{sT0}, 7, 0
s_sub_u32 s{sLine}, s{sLine}, s{sT0}
s_and_b32 s{sT1}, s{sw}, 3
s_mul_i32 s{sT0}, s{sT1}, {16*2688}
s_add_u32 s{sWb}, s{sWb}, s{sT0}
s_add_u32 s{sWb}, s{sWb}, 896
s_mul_i32 s{sCw}, s{sC0}, {64*2688}
s_lshl_b32 s{sMW}, s{sT1}, 11
s_add_u32 s{sMW}, s{sMW}, {WL}
v_lshrrev_b32 v{t0}, 3, v{vLane}
v_mul_u32_u24 v{t0}, 2688, v{t0}
v_bfe_u32 v{t1}, v{vLane}, 4, 1
v_lshlrev_b32 v{t1}, 2, v{t1}
v_xor_b32 v{t1}, v{t1}, v{t2}
v_lshl_add_u32 v{vWd}, v{t1}, 4, v{t0}
v_add_u32 v{vWd2}, {8*2688-1024}, v{vWd}
s_cmp_le_u32 s{sKap}, s{sNone}
s_cbranch_scc1 L_now""")
NW0 = OPT["nw0"]
for it in range(NW0):
    for p, _ in w_pieces(it):
        A(p)
TOUCH = f"""v_lshrrev_b32 v{t0}, 3, v{vLane}
v_and_b32 v{t1}, 7, v{vLane}
v_min_u32 v{t1}, 6, v{t1}
v_lshlrev_b32 v{t1}, 7, v{t1}
s_and_b32 s{sT1}, s{sw}, 3
s_lshl_b32 s{sT0}, s{sh}, 2
s_add_u32 s{sT0}, s{sT0}, s{sT1}
s_lshl_b32 s{sT2}, s{sj}, 7
s_add_u32 s{sT2}, s{sT2}, s{sT0}
s_add_u32 s{sT2}, s{sT2}, 64
s_mul_i32 s{sT2}, s{sT2}, {2*896}
s_movk_i32 s{sT3}, 896
v_mad_u32_u24 v{t3}, v{t0}, s{sT3}, v{t1}
s_lshl_b32 s{sT0}, s{sT0}, 3
s_add_u32 s{sT0}, s{sT0}, s{sj}
s_mul_i32 s{sT0}, s{sT0}, 2688
s_mov_b64 exec, 0xffff
buffer_load_dword v{t5}, v{t3}, s[{sX}:{sX+3}], s{sT2} offen
s_mov_b64 exec, 0xff
buffer_load_dword v{t5}, v{t1}, s[{sW}:{sW+3}], s{sT0} offen
s_mov_b64 exec, -1"""
if OPT["tch"] == 1:
    A(TOUCH)
A.label("L_now")

EARLY = lines(f"""s_lshl_b32 s{sT0}, s{sb}, 8
s_add_u32 s{sT0}, s{sT0}, {EPOCH_OFF}
s_load_dword s{sE}, s[24:25], s{sT0}
v_lshrrev_b32 v{t2}, 5, v{vLane}
v_and_b32 v{t0}, 31, v{vLane}
v_bfe_u32 v{t1}, v{vLane}, 1, 3
v_xor_b32 v{t1}, v{t1}, v{t2}
v_lshlrev_b32 v{t0}, 7, v{t0}
v_add_u32 v{t0}, s{sMXs}, v{t0}""")
for sst in range(4):
    EARLY += lines(f"""v_xor_b32 v{t3}, {2*sst}, v{t1}
    v_lshl_add_u32 v{vXa[sst]}, v{t3}, 4, v{t0}""")
EARLY += lines(f"""v_bfe_u32 v{t1}, v{vLane}, 2, 2
v_lshl_add_u32 v{t0}, v{t2}, 3, v{t1}
v_bfe_u32 v{t3}, v{vLane}, 4, 1
v_and_b32 v{t4}, 3, v{vLane}
v_lshlrev_b32 v{t4}, 3, v{t4}
v_lshl_add_u32 v{t4}, v{t3}, 5, v{t4}
v_lshl_add_u32 v{vWqr}, v{t0}, 6, v{t4}
v_lshl_add_u32 v{t4}, v{t0}, 7, v{t4}
v_lshrrev_b32 v{t1}, 1, v{t1}
v_lshl_add_u32 v{t4}, v{t1}, 6, v{t4}
v_add_u32 v{vWr[0]}, {WL}, v{t4}
v_xor_b32 v{vWr[1]}, 64, v{vWr[0]}""")

MID = lines(f"""s_and_b32 s{sT0}, s{sh}, 1
s_lshl_b32 s{sT0}, s{sT0}, 3
s_add_u32 s{sT0}, s{sT0}, {WQ}
v_add_u32 v{vWqr}, s{sT0}, v{vWqr}
s_mul_i32 s{sWq}, s{sh}, 56
s_and_b32 s{sWq}, s{sWq}, 0xfffffff0
s_and_b32 s{sT0}, s{sw}, 3
s_mul_i32 s{sMQ}, s{sT0}, 7168
s_add_u32 s{sMQ}, s{sMQ}, {WQ}
s_mul_i32 s{sT0}, s{sT0}, 7
s_lshl_b32 s{sT1}, s{sC0}, 2
s_add_u32 s{sT0}, s{sT0}, s{sT1}
s_sub_u32 s{sT1}, s{sT0}, 28
s_min_u32 s{sT0}, s{sT0}, s{sT1}
s_mul_i32 s{sCq}, s{sT0}, {16*2688}
v_lshrrev_b32 v{t0}, 2, v{vLane}
v_mul_u32_u24 v{t0}, 2688, v{t0}
v_and_b32 v{t1}, 3, v{vLane}
v_lshl_add_u32 v{vWq}, v{t1}, 4, v{t0}""")
MID += lines(f"""s_mov_b32 s{sWS}, s24
s_mov_b32 s{sWS+1}, s25
s_mov_b32 s{sWS+2}, {WS_BYTES}
s_mov_b32 s{sWS+3}, 0x20000
s_lshl_b32 s{sKVt}, s{sb}, 22
s_lshl_b32 s{sRel}, s{sj}, 15
s_add_u32 s{sRel}, s{sRel}, s{sMX}
s_add_u32 s{sKVt}, s{sKVt}, s{sRel}
s_add_u32 s{sKVt}, s{sKVt}, {KV_OFF}
s_and_b32 s{sT0}, s{sw}, 3
s_lshl_b32 s{sT0}, s{sT0}, 1
s_lshl_b32 s{sT1}, s{sb}, 3
s_add_u32 s{sT1}, s{sT1}, s{sj}
s_lshl_b32 s{sT1}, s{sT1}, 3
s_add_u32 s{sT0}, s{sT0}, s{sT1}
s_lshl_b32 s{sT0}, s{sT0}, 4
s_add_u32 s{sT0}, s{sT0}, s{sh}
s_lshl_b32 s{sOp}, s{sT0}, 11
s_add_u32 s{sOp}, s{sOp}, {O_OFF}
s_lshl_b32 s{sOt}, s{sKap}, 15
s_add_u32 s{sOt}, s{sOt}, s{sOp}
v_mov_b32 v{vPd}, {0x3f80 if OPT["off"] else 0}
v_mov_b32 v{vPd+1}, 0
v_mov_b32 v{vPd+2}, {0x3f80 if OPT["off"] else 0}
v_mov_b32 v{vPd+3}, 0
s_add_u32 s{sFl}, s{sT1}, s{sw}
s_mul_i32 s{sFl}, s{sFl}, {FS}
s_lshl_b32 s{sT0}, s{sh}, {ES}
s_add_u32 s{sFl}, s{sFl}, s{sT0}
s_add_u32 s{sFl}, s{sFl}, {FLAG_OFF}
s_add_u32 s{sHo}, s{sFl}, {HINT}""")
LATE = lines(f"""s_lshl_b32 s{sPl}, s{sb}, 6
s_and_b32 s{sT1}, s{sw}, 3
s_add_u32 s{sPl}, s{sPl}, s{sT1}
s_mul_i32 s{sPl}, s{sPl}, {FS}
s_add_u32 s{sPl}, s{sPl}, {FLAG_OFF}
s_add_u32 s{sT0}, s{sj}, s{sKap}
s_and_b32 s{sT0}, s{sT0}, 7
s_lshl_b32 s{sRel}, s{sT0}, 15
s_lshl_b32 s{sT1}, s{sT1}, 12
s_add_u32 s{sRel}, s{sRel}, s{sT1}
v_bfe_u32 v{t3}, v{vLane}, 2, 2
v_lshl_add_u32 v{t3}, v{t3}, 1, s{sT0}
v_lshrrev_b32 v{t1}, 5, v{vLane}
v_add_u32 v{t3}, v{t3}, v{t1}
v_and_b32 v{t3}, 7, v{t3}
v_bfe_u32 v{t1}, v{vLane}, 4, 1
v_lshl_add_u32 v{t3}, v{t3}, 1, v{t1}
v_mul_u32_u24 v{t3}, {4*FS}, v{t3}
s_mul_i32 s{sT0}, s{sh}, 28
s_add_u32 s{sT1}, s{sT0}, 27
s_lshr_b32 s{sT0}, s{sT0}, 6
s_lshr_b32 s{sT1}, s{sT1}, 6
s_sub_u32 s{sT1}, s{sT1}, s{sT0}
v_and_b32 v{t0}, 1, v{vLane}
v_mul_u32_u24 v{t0}, s{sT1}, v{t0}
v_add_u32 v{t0}, s{sT0}, v{t0}
v_bfe_u32 v{t1}, v{vLane}, 1, 1
v_mad_u32_u24 v{t0}, v{t1}, 7, v{t0}
v_add_u32 v{t4}, 10, v{t0}
v_lshrrev_b32 v{t4}, 4, v{t4}
v_lshrrev_b32 v{t2}, 3, v{t0}
v_add3_u32 v{t0}, v{t0}, v{t4}, v{t2}
s_sub_u32 s{sT2}, s{sT1}, 1
s_and_b32 s{sT2}, s{sT2}, 0xaaaaaaaa
s_mov_b32 s{sT3}, s{sT2}
v_mad_u32_u24 v{t1}, v{t1}, 3, 6
v_cndmask_b32 v{t0}, v{t0}, v{t1}, s[{sT2}:{sT3}]
v_lshl_add_u32 v{vPl}, v{t0}, {ES}, v{t3}
s_lshl_b32 s{sKV}, s{sHH}, 18
s_add_u32 s{sKV}, s{sKV}, {KV_OFF}
s_mov_b32 s{sDone}, s{sKap}""")
LATE += lines(f"""s_mov_b32 s{sLo}, -1
s_mov_b32 s{sLo+1}, 0
s_mov_b32 s{sCs}, {hex(f2u(CSCALE))}
s_mov_b32 s{sCs+1}, {hex(f2u(CSCALE))}
s_and_b32 s{sT1}, s{sw}, 3
v_mov_b32 v{vIdx}, 0xdddddddd
s_or_b32 s{sT2}, s{sT1}, 1
s_add_u32 s{sT0}, s{sT1}, s{sT2}
s_lshl_b32 s{sT0}, s{sT0}, 11
s_add_u32 s{sT0}, s{sT0}, {XS+32768}
s_lshl_b32 s{sT2}, s{sT1}, 11
s_add_u32 s{sT2}, s{sT2}, {QOLD}
s_sub_u32 s{sT0}, s{sT0}, s{sT2}
s_mul_i32 s{sT0}, s{sT0}, s{sKap}
s_add_u32 s{sT0}, s{sT0}, s{sT2}
v_and_b32 v{t0}, 1, v{vLane}
v_lshlrev_b32 v{t0}, 4, v{t0}
v_bfe_u32 v{t1}, v{vLane}, 4, 1
v_lshl_add_u32 v{t0}, v{t1}, 3, v{t0}
v_bfe_u32 v{t1}, v{vLane}, 3, 1
v_lshl_add_u32 v{t0}, v{t1}, 1, v{t0}
v_bfe_u32 v{t1}, v{vLane}, 1, 1
v_add_u32 v{t0}, v{t0}, v{t1}
v_and_b32 v{t1}, 0x24, v{vLane}
v_add_u32 v{t0}, v{t0}, v{t1}
v_sub_u32 v{t0}, v{t0}, v{vLane}
v_mul_lo_u32 v{t0}, v{t0}, s{sRole}
v_add_u32 v{t0}, v{t0}, v{vLane}
v_lshl_add_u32 v{vQw}, v{t0}, 4, s{sT0}
s_lshr_b32 s{sT3}, s{sT1}, 1
s_and_b32 s{sT2}, s{sT1}, 1
s_add_u32 s{sT0}, s{sT3}, 12
s_lshl_b32 s{sT2}, s{sT2}, s{sT0}
s_mul_i32 s{sT3}, s{sT3}, {(XS+32768+2048-QOLD) & 0xffffffff}
s_add_u32 s{sT2}, s{sT2}, s{sT3}
s_add_u32 s{sT2}, s{sT2}, {QOLD}
s_lshl_b32 s{sT0}, s{sKap}, 11
s_sub_u32 s{sT3}, s{sT2}, s{sT0}
s_add_u32 s{sT2}, s{sT2}, s{sT0}
v_add_u32 v{vQr}, s{sT3}, v{vL16}
v_add_u32 v{vOs2}, s{sT2}, v{vL16}
s_lshl_b32 s{sT0}, s{sKap}, 14
v_add_u32 v{vBase}, s{sT0}, v{vL16}
v_add_u32 v{vCur}, 0x10000, v{vBase}
v_lshl_add_u32 v{vBk}, v{vLane}, 3, s{sT0}""")
L1, LATE = LATE, []
LATE += lines(f"""s_mov_b32 s{sWO+2}, {448*896}
s_mov_b32 s{sWO+3}, 0x20000
s_mov_b32 s{sOUT}, s20
s_mov_b32 s{sOUT+1}, s21
s_mov_b32 s{sOUT+2}, {2048*1792}
s_mov_b32 s{sOUT+3}, 0x20000
s_mov_b32 s{sChk}, {0 if OPT['force_slow'] else L_RANGE}
s_and_b32 s{sWoff}, s{sh}, 3
s_mul_i32 s{sWoff}, s{sWoff}, 224""")
LATE += lines(f"""s_lshl_b32 s{sT1}, s{sb}, 3
s_add_u32 s{sT1}, s{sT1}, s{sj}
s_lshl_b32 s{sT1}, s{sT1}, 3
s_lshr_b32 s{sT0}, s{sh}, 2
s_bfe_u32 s{sT2}, s{sw}, 0x10001
s_lshl_b32 s{sPc}, s{sT2}, 2
s_add_u32 s{sPc}, s{sPc}, s{sT0}
s_add_u32 s{sPc}, s{sPc}, s{sT1}
s_mul_i32 s{sPc}, s{sPc}, {FS}
s_add_u32 s{sPc}, s{sPc}, {FLAG_OFF + 64}
s_lshl_b32 s{sT3}, s{sT0}, 1
s_add_u32 s{sT3}, s{sT3}, s{sT2}
s_add_u32 s{sT3}, s{sT3}, s{sT1}
s_lshl_b32 s{sOin}, s{sT3}, 15
s_add_u32 s{sOin}, s{sOin}, {O_OFF}
s_and_b32 s{sT3}, s{sw}, 1
s_lshl_b32 s{sT3}, s{sT3}, 8
s_add_u32 s{sOin}, s{sOin}, s{sT3}
s_lshl_b32 s{sT3}, s{sKap}, 11
s_add_u32 s{sOin}, s{sOin}, s{sT3}""")
LATE += lines(f"""s_lshl_b32 s{sT1}, s{sj}, 2
s_add_u32 s{sT0}, s{sT0}, s{sT1}
s_lshl_b32 s{sT0}, s{sT0}, 2
s_and_b32 s{sT1}, s{sw}, 3
s_add_u32 s{sT0}, s{sT0}, s{sT1}
s_mul_i32 s{sOut}, s{sT0}, {16*1792}
s_mul_i32 s{sT0}, s{sb}, 896
s_add_u32 s{sOut}, s{sOut}, s{sT0}
s_add_u32 s{sOut}, s{sOut}, s{sWoff}
v_and_b32 v{t2}, 7, v{vLane}
s_add_u32 s{sT0}, s{sT1}, 5
s_lshl_b32 s{sT0}, s{sT0}, 13
s_and_b32 s{sT0}, s{sT0}, 0xffff
v_add_u32 v{vRw}, s{sT0}, v{vL16}
s_lshl_b32 s{sT2}, s{sT1}, 2
s_add_u32 s{sT2}, s{sT2}, {MISC}
v_mov_b32 v{vMf}, s{sT2}
s_mul_i32 s{sT2}, s{sT1}, 3072
s_add_u32 s{sT2}, s{sT2}, {SND}
v_add_u32 v{vSn}, s{sT2}, v{vL16}
v_lshrrev_b32 v{t1}, 3, v{vLane}
s_lshl_b32 s{sT2}, s{sKap}, 11
s_add_u32 s{sT0}, s{sT0}, s{sT2}
s_add_u32 s{sT0}, s{sT0}, 4096
v_xor_b32 v{t3}, v{t1}, v{t2}
v_lshlrev_b32 v{t3}, 4, v{t3}
v_lshl_add_u32 v{t3}, v{t1}, 7, v{t3}
v_add_u32 v{vTr}, s{sT0}, v{t3}
v_mul_u32_u24 v{t3}, 1792, v{t1}
v_lshl_add_u32 v{vOs}, v{t2}, 4, v{t3}
v_add_u32 v{t3}, 2, v{t2}
v_lshrrev_b32 v{t3}, 3, v{t3}
v_lshlrev_b32 v{t3}, 30, v{t3}
v_add_u32 v{t3}, 128, v{t3}
v_mul_lo_u32 v{t3}, v{t3}, s{sKap}
v_add_u32 v{vOs}, v{t3}, v{vOs}
v_and_b32 v{t0}, 15, v{vLane}
v_lshrrev_b32 v{t1}, 4, v{vLane}
v_lshrrev_b32 v{t3}, 1, v{t1}
v_xor_b32 v{t3}, v{t3}, v{t2}
v_lshlrev_b32 v{t3}, 4, v{t3}
v_lshl_add_u32 v{t3}, v{t0}, 7, v{t3}
v_and_b32 v{t4}, 1, v{t1}
v_lshl_add_u32 v{t3}, v{t4}, 3, v{t3}
v_add_u32 v{vTw}, s{sT0}, v{t3}
v_lshlrev_b32 v{vPc}, {ES}, v{t0}
v_lshlrev_b32 v{t2}, 12, v{t2}
v_add_u32 v{vLp}, {3*512+15*16}, v{t2}
v_lshlrev_b32 v{t2}, 9, v{t1}
v_lshl_add_u32 v{vOa}, v{t0}, 4, v{t2}""")
LATE += lines(f"""v_lshrrev_b32 v{t2}, 1, v{t1}
v_lshlrev_b32 v{t2}, 4, v{t2}
v_lshl_add_u32 v{t2}, v{t4}, 2, v{t2}
v_bfe_u32 v{t3}, v{vLane}, 2, 2
v_add_u32 v{t2}, v{t2}, v{t3}
v_mul_u32_u24 v{t2}, 224, v{t2}
v_and_b32 v{t3}, 3, v{vLane}
v_lshl_add_u32 v{t2}, v{t3}, 3, v{t2}
v_add_u32 v{t3}, 1, v{t1}
v_lshrrev_b32 v{t3}, 2, v{t3}
v_mul_u32_u24 v{t3}, {4*224}, v{t3}
v_sub_u32 v{t3}, v{t2}, v{t3}
s_mul_i32 s{sT0}, s{sKap}, 6272
s_add_u32 s{sT0}, s{sT0}, {WOB}
v_add_u32 v{vW0}, s{sT0}, v{t2}
s_add_u32 s{sT0}, s{sT0}, {8*224}
v_add_u32 v{vW1}, s{sT0}, v{t3}
s_mul_i32 s{sSp}, s{sKap}, {(WO15 - WOB - 6272 - 7*12544) & 0xffffffff}
s_add_u32 s{sSp}, s{sSp}, {7*12544}""")
LATE += lines(f"""v_mul_u32_u24 v{t2}, 0x4925, v{vLane}
v_lshrrev_b32 v{t2}, 18, v{t2}
v_mul_u32_u24 v{t3}, 14, v{t2}
v_sub_u32 v{t3}, v{vLane}, v{t3}
v_mul_u32_u24 v{t2}, 896, v{t2}
v_lshl_add_u32 v{vWod}, v{t3}, 4, v{t2}
s_mul_i32 s{sWn}, s{sw}, 3584
s_add_u32 s{sWn}, s{sWn}, s{sWoff}
s_mul_i32 s{sWm}, s{sw}, 896
s_add_u32 s{sWm13}, s{sWm}, {WO15-896}
s_max_u32 s{sT0}, s{sw}, 1
s_sub_u32 s{sT0}, s{sT0}, s{sw}
s_mul_i32 s{sT0}, s{sT0}, {WOB+104*896-(WO15-896)}
s_add_u32 s{sWm13}, s{sWm13}, s{sT0}""")
L2 = LATE
ENDS = lines(f"""s_mul_i32 s{sT2}, s{sLine}, {16*9363}
s_add_u32 s{sT3}, s{sT2}, {16*9363}
s_lshr_b32 s{sT2}, s{sT2}, 16
s_lshr_b32 s{sT3}, s{sT3}, 16
s_sub_u32 s{sT3}, s{sT3}, s{sT2}
s_lshl_b32 s{sT2}, s{sT2}, 18""")
FK = lines(f"""v_and_b32 v{t0}, 15, v{vLane}
v_lshlrev_b32 v{t0}, 4, v{t0}
v_bfe_u32 v{t1}, v{vLane}, 4, 1
v_lshrrev_b32 v{t4}, 5, v{vLane}
v_lshl_add_u32 v{t1}, v{t1}, 1, v{t4}
s_lshl_b32 s{sT0}, s{sLine}, 4
v_add_u32 v{t1}, s{sT0}, v{t1}""")
for i in range(4):
    FK += lines(f"""v_add_u32 v{t2}, {4*i}, v{t1}
    v_mul_u32_u24 v{t3}, 9363, v{t2}
    v_lshrrev_b32 v{t3}, 16, v{t3}
    v_lshl_add_u32 v{vSt[i]}, v{t3}, 18, v{t0}
    v_mul_u32_u24 v{t3}, 7, v{t3}
    v_sub_u32 v{t2}, v{t2}, v{t3}
    v_lshl_add_u32 v{vSt[i]}, v{t2}, 8, v{vSt[i]}""")
FK += ENDS + lines(f"""s_add_u32 s{sT2}, s{sT2}, {7*256}
v_lshrrev_b32 v{t1}, 4, v{vLane}
v_cmp_gt_u32 vcc, s{sT3}, v{t1}
v_lshl_add_u32 v{t0}, v{t1}, 18, v{t0}
v_add_u32 v{t0}, s{sT2}, v{t0}
v_mov_b32 v{t3}, {OOB}
v_cndmask_b32 v{vP[0]}, v{t3}, v{t0}, vcc""")
FV = lines(f"""v_and_b32 v{t0}, 31, v{vLane}
s_lshl_b32 s{sT0}, s{sLine}, 6
v_add_u32 v{t0}, s{sT0}, v{t0}
v_and_b32 v{t4}, 32, v{vLane}""")
for ct in range(2):
    FV += lines(f"""v_add_u32 v{t2}, {32*ct}, v{t0}
    v_mul_u32_u24 v{t3}, 2341, v{t2}
    v_lshrrev_b32 v{t3}, 16, v{t3}
    v_mul_u32_u24 v{t1}, 28, v{t3}
    v_sub_u32 v{t2}, v{t2}, v{t1}
    v_add_u32 v{t2}, v{t2}, v{t4}
    v_lshlrev_b32 v{t2}, 4, v{t2}
    v_lshl_add_u32 v{t2}, v{t3}, 18, v{t2}
    v_add_u32 v{vSt[2*ct]}, 2048, v{t2}
    v_add_u32 v{vSt[2*ct+1]}, 3072, v{t2}""")
FV += ENDS + lines(f"""s_add_u32 s{sT2}, s{sT2}, {2048+28*16}
v_lshrrev_b32 v{t0}, 4, v{vLane}
v_cmp_gt_u32 vcc, s{sT3}, v{t0}
v_bfe_u32 v{t1}, v{vLane}, 2, 2
v_lshlrev_b32 v{t1}, 9, v{t1}
v_lshl_add_u32 v{t1}, v{t0}, 18, v{t1}
v_and_b32 v{t2}, 3, v{vLane}
v_lshl_add_u32 v{t1}, v{t2}, 4, v{t1}
v_add_u32 v{t1}, s{sT2}, v{t1}
v_mov_b32 v{t3}, {OOB}
v_cndmask_b32 v{vP[0]}, v{t3}, v{t1}, vcc
v_cmp_eq_u32 vcc, 0, v{t2}
v_mov_b32 v{t3}, 0x3f803f80
s_nop 0
v_cndmask_b32 v{vPd}, 0, v{t3}, vcc
v_mov_b32 v{vPd+1}, v{vPd}
v_mov_b32 v{vPd+2}, v{vPd}
v_mov_b32 v{vPd+3}, v{vPd}""")


def st16(data, addr, soff, off=0):
    return (f"buffer_store_dwordx4 {v(data,4)}, v{addr}, s[{sWS}:{sWS+3}], s{soff} offen offset:{off} sc1", "ST")


def st8(data, addr, soff):
    return (f"buffer_store_dwordx2 {v(data,2)}, v{addr}, s[{sWS}:{sWS+3}], s{soff} offen sc1", "ST")


POS = [32768, 0, 65536]


def kv_addr(blk, t, off):
    p = POS[blk % 3] + t * 4096 + off
    return (vCur, p - 65536) if POS[blk % 3] >= 65536 else (vBase, p)


def kv_next(st):
    pos = POS[st % 3]
    return f"""s_add_u32 s{sRel}, s{sRel}, {0x14000 if st == 4 else 0x10000}
    s_and_b32 s{sRel}, s{sRel}, 0x3ffff
    s_add_u32 m0, s{sMX}, {pos}
    s_add_u32 s{sD0}, s{sRel}, s{sKV}"""


def kv_piece(i):
    return f"buffer_load_dwordx4 v{vL16}, s[{sWS}:{sWS+3}], s{sD0} offen offset:{1024*i}{['', ' sc1', ' nt', ' sc1 nt'][OPT.get('kvs', 1)]} lds"


def flag_text(second=False):
    return f"""s_mov_b64 exec, 1
    buffer_store_dword v{vTag}, v{vL16}, s[{sWS}:{sWS+3}], s{sFl} offen offset:{64 if second else 0} sc1
    s_mov_b64 exec, -1"""


def poll_text(mask):
    return f"""s_mov_b64 exec, {mask if mask < 64 else hex(mask)}
    buffer_load_dword v{vFl}, v{vPl}, s[{sWS}:{sWS+3}], s{sPl} offen sc1
    s_mov_b64 exec, -1"""


def poll_issue(mask=15):
    A(poll_text(mask))


ntry = [0]


def hook_try(level=2):
    ntry[0] += 1
    A(f"""s_cmp_ge_u32 s{sDone}, {level}
    s_cbranch_scc1 L_skip{ntry[0]}
    s_call_b64 s[{sRet}:{sRet+1}], L_try""")
    A.label(f"L_skip{ntry[0]}")


def spin(level, name):
    A(f"s_mov_b32 s{sSpin}, 0x40000")
    A.label(name)
    A(f"""s_cmp_ge_u32 s{sDone}, {level}
    s_cbranch_scc1 {name}_done
    s_call_b64 s[{sRet}:{sRet+1}], L_try
    s_sub_u32 s{sSpin}, s{sSpin}, 1
    s_cbranch_scc0 {name}""")
    A.label(name + "_done")


POLL0 = f"""s_mov_b32 exec_lo, 15
    s_mov_b32 exec_hi, 15
    buffer_load_dword v{vFl}, v{vPl}, s[{sWS}:{sWS+3}], s{sPl} offen sc1
    s_mov_b64 exec, -1"""
CALL_REST = f"s_call_b64 s[{sRet}:{sRet+1}], L_rest"
pqq = Wf + 16


class Stream:
    def __init__(self, role):
        self.role = role
        self.vm, self.lg = Cnt("vmcnt", 63), Cnt("lgkmcnt", 15)
        self.nkv = self.nq = 0

    def dma(self, p):
        A(p[0])
        self.vm.issue(p[1])

    def ds(self, text, tag):
        self.lg.room()
        A(text)
        self.lg.issue(tag)

    def xreads(self, c):
        return [(f"ds_read_b128 {v(Xr+16*c+4*st,4)}, v{vXa[st]} offset:{(c % 2) * 16384}", f"R{c}") for st in range(4)]

    def mk(self, kv=None, q=None):
        rd, mm, need = [], [], []
        tag = f"F{kv}_{q}"
        if kv is not None:
            b = Wf + 8 * (self.nkv % 3)
            self.nkv += 1
            for ct in range(2):
                for u in range(2):
                    rd.append((f"ds_read_b64_tr_b16 {v(b+4*ct+2*u,2)}, v{vWr[ct]} offset:{kv*2048+u*512}", tag))
                ac = [acc0, acc1][ct]
                wf, xf = v(b + 4 * ct, 4), v(Xr + 4 * kv, 4)
                a_, b_ = (wf, xf) if self.role == "K" else (xf, wf)
                mm.append(f"v_mfma_f32_32x32x16_bf16 {v(ac,16)}, {a_}, {b_}, {'0' if kv == 0 else v(ac,16)}")
            need.append(f"R{kv//4}")
        if q is not None:
            b = Wg + 4 * (self.nq % 3)
            self.nq += 1
            for u in range(2):
                rd.append((f"ds_read_b64_tr_b16 {v(b+2*u,2)}, v{vWqr} offset:{q*1024+u*256}", tag))
            mm.append(f"v_mfma_f32_32x32x16_bf16 {v(accQ,16)}, {v(b,4)}, {v(Xr+4*q,4)}, {'0' if q == 0 else v(accQ,16)}")
            need.append(f"R{q//4}")
        return dict(rd=rd, mm=mm, need=need + [tag], pre=[], xr=None, dma=[], post=[])

    def run(self, steps, fill=(), nf=0):
        fill = list(fill)
        for st in steps[:2]:
            for r in st["rd"]:
                self.ds(*r)
        for i, st in enumerate(steps):
            self.lg.wait(*st["need"])
            for f in st["pre"]:
                f()
            side = []
            if st["xr"] is not None:
                self.vm.wait(f"X{st['xr']}")
                side += self.xreads(st["xr"])
            if i + 2 < len(steps):
                side += steps[i + 2]["rd"]
            n = len(st["mm"])
            for k, m in enumerate(st["mm"]):
                A(m)
                for r in side[k * len(side) // n:(k + 1) * len(side) // n]:
                    self.ds(*r)
                for p in st["dma"][k * len(st["dma"]) // n:(k + 1) * len(st["dma"]) // n]:
                    self.dma(p)
                emit(fill, nf)
            for f in st["post"]:
                f()
        assert not fill

    def xplan(self, steps, first, c0, c1, lead):
        for c in range(c0, c1):
            i = first + 4 * (c - c0) - lead
            steps[i]["xr"] = c
            if c + 2 <= 6:
                steps[i + 1]["need"].append(f"R{c}")
                xp = x_pieces(c + 2)
                steps[i + 1]["dma"] += xp[:2]
                steps[i + 2]["dma"] += xp[2:]

    def pack(self, store):
        for ct in range(2):
            ac = [acc0, acc1][ct]
            pp = Wf + 8 * ct
            for r in range(8):
                A(f"v_cvt_pk_bf16_f32 v{pp+r}, v{ac+2*r}, v{ac+2*r+1}")
                if self.role == "V" and r % 4 == 3 and store:
                    self.dma(st16(pp + r - 3, vSt[2 * ct + r // 4], sKVt))
            if self.role == "K":
                for i in range(2):
                    A(f"v_permlane16_swap_b32 v{pp+4*i}, v{pp+4*i+2}")
                    A(f"v_permlane16_swap_b32 v{pp+4*i+1}, v{pp+4*i+3}")
                    if store:
                        self.dma(st16(pp + 4 * i, vSt[2 * ct + i], sKVt))

    def xonly(self):
        for c in range(7):
            self.vm.wait(f"X{c}")
            for r in self.xreads(c):
                self.ds(*r)
            self.lg.wait(f"R{c}")
            if c + 2 <= 6:
                for p in x_pieces(c + 2):
                    self.dma(p)


def bar():
    A("s_barrier")


def q_epilogue():
    for r in range(8):
        A(f"v_pk_mul_f32 {v(accQ+2*r,2)}, {v(accQ+2*r,2)}, s[{sCs}:{sCs+1}]")
    for r in range(8):
        A(f"v_cvt_pk_bf16_f32 v{pqq+r}, v{accQ+2*r}, v{accQ+2*r+1}")
    A(f"""v_mov_b32 v{t5}, {f2u(float(OPT["off"])) >> 16}
    v_cndmask_b32 v{pqq+7}, 0, v{pqq+7}, s[{sLo}:{sLo+1}]
    v_cndmask_b32 v{pqq+6}, v{t5}, v{pqq+6}, s[{sLo}:{sLo+1}]""")
    A(f"""ds_write_b128 v{vQw}, {v(pqq,4)}
    ds_write_b128 v{vQw}, {v(pqq+4,4)} offset:1024""")


NOST = [f"v_mov_b32 v{vSt[i]}, {OOB}" for i in range(4)]
ZO = [f"v_mov_b32 v{O[0]+r}, 0" for r in range(32)]
NA, N1, CG = OPT["na"], OPT["n1"], OPT["cg"]


def older(role):
    S_ = Stream(role)
    S_.vm.issue("X0", 4)
    S_.vm.issue("X1", 4)
    if role == "N":
        A(flag_text())
        S_.vm.issue("FL")
        S_.xonly()
        bar()
        return
    if OPT["yp"]:
        A("s_setprio 2")
    S_.vm.wait("X0")
    for r in S_.xreads(0):
        S_.ds(*r)
    S_.lg.wait("R0")
    for p in x_pieces(2):
        S_.dma(p)
    ts(3, 2)
    bar()
    ts(4, 2)
    steps = [S_.mk(kv=g) for g in range(28)]
    S_.xplan(steps, 4, 1, 7, OPT["xl"])
    steps[4 * NA - 2]["pre"].append(bar)
    steps[OPT["padg"]]["dma"].append(st16(vPd, vP[0], sKVt))
    if CG < 28:
        steps[CG]["need"].append("R6")
        steps[CG]["pre"].append(bar)
    for c in range(7):
        steps[4 * c]["pre"].append(lambda c=c: ts(5 + c, 2))
    fill = {"K": FK, "V": FV}[role]
    S_.run(steps, fill, -(-len(fill) // 24))
    ts(2)
    ts(12, 2)
    S_.pack(True)
    ts(1)
    if CG == 28:
        bar()
    A("s_branch L_oq")


def younger(role):
    S_ = Stream(role)
    if role == "N":
        S_.vm.issue("X0", 4)
        S_.vm.issue("X1", 4)
        A(flag_text())
        S_.vm.issue("FL")
        for i in range(7):
            S_.dma(wq_piece(i))
        emit(list(REST), len(REST))
        emit(list(NOST), 4)
        S_.xonly()
        bar()
        steps = [S_.mk(q=g) for g in range(28)]
        first = 0
    else:
        S_.vm.q = list(LOADER_Q)
        wq = [wq_piece(i) for i in range(OPT["wqe"] + OPT["wqf"], 7)]
        S_.vm.wait("X0")
        for r in S_.xreads(0):
            S_.ds(*r)
        ts(6, 2)
        steps = [S_.mk(kv=g) for g in range(4 * N1)]
        for c in range(1, N1):
            steps[4 * c - 2]["xr"] = c
        k = 0
        for p in wq:
            steps[k // OPT["wqd"]]["dma"].append(p)
            k += 1
        fill = {"K": FK, "V": FV}[role]
        late = []
        for c in range(2, N1 + 2):
            if c < N1:
                steps[4 * (c - 2) + 1]["need"].append(f"R{c-2}")
                steps[4 * (c - 2) + 1]["dma"] = x_pieces(c) + steps[4 * (c - 2) + 1]["dma"]
            else:
                late += x_pieces(c)
        S_.run(steps, fill, -(-len(fill) // (8 * N1)))
        for p in late:
            S_.dma(p)
        ts(7, 2)
        S_.vm.wait("WQ")
        bar()
        ts(8, 2)
        if OPT["yp"]:
            A("s_setprio 1")
        steps = [S_.mk(q=g) for g in range(4 * N1)] + [S_.mk(kv=g, q=g) for g in range(4 * N1, 28)]
        S_.xplan(steps, 4 * N1, N1, 7, 2)
        steps[20]["dma"].append(st16(vPd, vP[0], sKVt))
    ts(3)
    steps[25]["post"].append(lambda: (poll_issue(0xffff), S_.vm.issue("PL")))
    fill = [] if role == "N" else [L1 + L2, list(L2), []][OPT['lf']]
    S_.run(steps, fill, -(-len(fill) // (3 * (24 - 4 * N1) + 4 * N1)))
    ts(2)
    ts(12, 2)
    q_epilogue()
    if role != "N":
        S_.pack(False)
    ts(11)
    A("""s_waitcnt lgkmcnt(0)
    s_branch L_b0""")


def loader():
    S_ = Stream("N")
    for it in range(NW0):
        S_.vm.issue(f"W{it}", 2)
    if OPT["tch"] == 2:
        A(TOUCH)
    if OPT["tch"]:
        S_.vm.issue("PF", 2)
    S_.vm.wait(f"W{NA-1}")
    ts(3, 2)
    bar()
    ts(4, 2)
    fill = [[], list(L1), L1 + L2][OPT['lf']]
    wq = [wq_piece(i) for i in range(7)]
    p1 = [p for it in range(NW0, 7) for p in w_pieces(it)] + wq[:OPT["wqe"]] + x_pieces(0) + x_pieces(1)
    p2 = wq[OPT["wqe"]:OPT["wqe"] + OPT["wqf"]]
    nb = OPT["nb"]
    ps = p1 + p2
    nf = -(-len(fill) // len(ps))
    for k, p in enumerate(ps):
        if k == nb:
            S_.vm.wait("W6")
            bar()
        S_.dma(p)
        emit(fill, nf)
    if nb >= len(ps):
        S_.vm.wait("W6")
        bar()
    ts(5, 2)
    return S_.vm.q


PRO, REST = EARLY + MID, L1 + L2
PRO += lines(f"""s_waitcnt lgkmcnt(0)
s_mul_i32 s{stag}, s{sE}, 0x9e3779b1
s_add_u32 s{stag}, s{stag}, 0x7f4a7c15
v_mov_b32 v{vTag}, s{stag}""")
emit(PRO, len(PRO))
ts(2, 2)
A(f"""s_cmp_eq_u32 s{sKap}, 0
s_cbranch_scc1 L_old
s_cmp_eq_u32 s{sNone}, 1
s_cbranch_scc1 L_yN""")
LOADER_Q = loader()
A(f"""s_cmp_eq_u32 s{sRole}, 1
s_cbranch_scc1 L_yV""")
younger("K")
A.label("L_yV")
younger("V")
A.label("L_yN")
younger("N")
A.label("L_old")
A(f"""s_cmp_eq_u32 s{sNone}, 1
s_cbranch_scc1 L_oN
s_cmp_eq_u32 s{sRole}, 1
s_cbranch_scc1 L_oV""")
older("K")
A.label("L_oV")
older("V")
A.label("L_oN")
older("N")
A.label("L_oq")
ts(3)
ts(13, 2)
emit(list(L1), len(L1))
emit(list(NOST), 4)
S_ = Stream("N")
steps = [S_.mk(q=g) for g in range(28)]


def oflag():
    A("s_waitcnt vmcnt(0)")
    A(flag_text())
    if OPT["yp"]:
        A("s_setprio 0")
    ts(4)


steps[OPT["fq"]]["pre"].append(oflag)
steps[OPT["pq"]]["post"].append(lambda: A(POLL0))
for g in range(OPT["pq"] + OPT["tq"], 28, OPT["tq"]):
    steps[g]["post"].append(lambda: hook_try(1))
S_.run(steps, L2, -(-len(L2) // 27))
q_epilogue()
ts(11)
spin(1, "L_spin0")
A("""s_waitcnt vmcnt(1) lgkmcnt(0)
s_branch L_b0""")
A.label("L_try")
A(f"""s_waitcnt vmcnt(0)
v_cmp_ne_u32 vcc, s{stag}, v{vFl}
s_or_b32 s{sD1}, vcc_lo, vcc_hi
s_and_b32 s{sD1}, s{sD1}, 15
s_cbranch_scc0 L_try0""")
A(POLL0)
A(f"s_setpc_b64 s[{sRet}:{sRet+1}]")
A.label("L_try0")
ts(5)
A(f"""s_add_u32 m0, s{sMX}, {POS[0]}
s_add_u32 s{sD0}, s{sRel}, s{sKV}""")
for i in range(4):
    A(kv_piece(i))
A(f"""s_add_u32 s{sD0}, s{sRel}, 0x8000
s_and_b32 s{sD0}, s{sD0}, 0x3ffff
s_add_u32 m0, s{sMX}, {POS[0]+16384}
s_add_u32 s{sD0}, s{sD0}, s{sKV}""")
for i in range(4):
    A(kv_piece(i))
A(f"s_mov_b32 s{sDone}, 1")
poll_issue(0xffff)
A(f"s_setpc_b64 s[{sRet}:{sRet+1}]")

A.label("L_b0")
for _ in range(OPT.get("idle", 0)):
    A("s_sleep 36")
A("s_barrier")
ts(12)
ts(1, 4)

A(f"""ds_read_b128 {v(Q[0],4)}, v{vQr} offset:2048
ds_read2st64_b64 {v(Kf[0],4)}, v{vBk} offset0:64 offset1:65
ds_read_b128 {v(Q[0]+4,4)}, v{vQr} offset:3072
ds_read2st64_b64 {v(Kf[0]+4,4)}, v{vBk} offset0:66 offset1:67
{chr(10).join(ZO[:OPT["z0"]])}
ds_read_b128 {v(Q[1],4)}, v{vOs2}
ds_read_b128 {v(Q[1]+4,4)}, v{vOs2} offset:1024
s_waitcnt lgkmcnt(4)
v_mfma_f32_32x32x16_bf16 {v(S[0],16)}, {v(Kf[0],4)}, {v(Q[0],4)}, {C0}
s_waitcnt lgkmcnt(2)
v_mfma_f32_32x32x16_bf16 {v(S[0],16)}, {v(Kf[0]+4,4)}, {v(Q[0]+4,4)}, {v(S[0],16)}
ds_read2st64_b64 {v(Kf[1],4)}, v{vBk} offset0:72 offset1:73
ds_read2st64_b64 {v(Kf[1]+4,4)}, v{vBk} offset0:74 offset1:75
ds_read_b128 {v(Vf[0],4)}, v{vBase} offset:34816
ds_read_b128 {v(Vf[0]+4,4)}, v{vBase} offset:35840
{chr(10).join(ZO[OPT["z0"]:])}
s_waitcnt lgkmcnt(4)""")

def wo_piece(r):
    m = f"s_mov_b32 m0, s{sWm13}" if r == 13 else f"s_add_u32 m0, s{sWm}, {WOB + 8*r*896}"
    return f"""{m}
    s_add_u32 s{sD1}, s{sWn}, {8*r*3584}
    buffer_load_dwordx4 v{vWod}, s[{sWO}:{sWO+3}], s{sD1} offen lds"""


EXTRA = {}
AFTER = {}


def extra(w_, sl, text):
    EXTRA.setdefault((w_, sl), []).append(text)


def window(W):
    blk, u = divmod(W, 8)
    un, up = u + 1, u - 1
    tn, qn = un // 2, un % 2
    tp, qp = up // 2, up % 2
    Sc, Sn, Sp = S[u % 4], S[un % 4], S[up % 4]
    Kn, Vp = Kf[tn % 2], Vf[tp % 2]
    if blk == 7 and OPT["reo"]:
        UN = {5: (3, 0), 6: (2, 1)}
        if un in UN:
            Kn, qn = Kf[UN[un][0] % 2], UN[un][1]
        if up in UN:
            Vp, qp = Vf[UN[up][0] % 2], UN[up][1]
        if u in (4, 6):
            A("s_waitcnt lgkmcnt(2)" if u == 4 else "s_waitcnt lgkmcnt(0)")
    h0, h1 = (4, 0) if OPT["hf"] else (0, 4)
    m = [f"v_mfma_f32_32x32x16_bf16 {v(Sn,16)}, {v(Kn+h0,4)}, {v(Q[qn]+h0,4)}, {C0}",
         f"v_mfma_f32_32x32x16_bf16 {v(Sn,16)}, {v(Kn+h1,4)}, {v(Q[qn]+h1,4)}, {v(Sn,16)}",
         f"v_smfmac_f32_32x32x32_bf16 {v(O[qp],16)}, {v(Vp,4)}, {v(Sp,8)}, v{vIdx}",
         f"v_smfmac_f32_32x32x32_bf16 {v(O[qp],16)}, {v(Vp+4,4)}, {v(Sp+8,8)}, v{vIdx}"]
    if W == 0:
        m[2] = m[3] = None
    if W == 63:
        m = [m[2], None, m[3], None]
    if W == 62 and OPT["reo"] == 2:
        m = [m[0], m[2], m[1], m[3]]
    mem = [[], [], [], []]
    pre = [[], [], [], []]

    def rd(dst, T, off):
        if off < 2048 and not OPT.get('kb128'):
            o = (POS[(blk + T // 4) % 3] + (T % 4) * 4096 + off) // 512
            return f"ds_read2st64_b64 {v(dst,4)}, v{vBk} offset0:{o} offset1:{o+1}"
        a, o = kv_addr(blk + T // 4, T % 4, off)
        return f"ds_read_b128 {v(dst,4)}, v{a} offset:{o}"
    if u % 2 == 1:
        if not (u == 5 and (blk > 0 or OPT["b0"])):
            A("s_waitcnt lgkmcnt(0)")
        tt = tn
        Kd, Vd = Kf[(tt + 1) % 2], Vf[tt % 2]
        rk = [rd(Kd, tt + 1, 0), rd(Kd + 4, tt + 1, 1024)]
        rv = [rd(Vd, tt, 2048), rd(Vd + 4, tt, 3072)]
        if W == 61 or (W == 5 and not OPT['b0']):
            mem[0 if W == 61 else 2].append(rv[0])
            mem[1 if W == 61 else 3].append(rv[1])
        elif W == 63:
            pass
        elif W == 7 and not OPT['b0']:
            A(rd(Kn, 4, 0))
            A(rd(Kn + 4, 4, 1024))
            m = [m[2], m[3], m[0], m[1]]
            mem[0] += [rk[0], rk[1]]
            mem[1] += [rv[0], rv[1]]
            pre[2].append("s_waitcnt lgkmcnt(4)")
        else:
            RS_ = [[0, 1, 2, 3], [2, 2, 3, 3], [0, 0, 1, 1], [2, 3, 0, 1]][OPT.get("rsl", 0)]
            order = sorted(range(4), key=lambda k: RS_[k])
            for k in range(4):
                mem[RS_[k]].append((rk + rv)[k])
    for q in range(4):
        for x in pre[q]:
            A(x)
        if m[q]:
            A(m[q])
        for x in mem[q] + (EXTRA.get((W, q), []) if not (OPT.get("nodma") and 23 <= W < 53) else []):
            A(x)
        for e in range(4):
            A(f"v_exp_f32 v{Sc+4*q+e}, v{Sc+4*q+e}")
    for hk in AFTER.get(W, []):
        hk()


def mk_bar(n):
    def f():
        A(f"""s_waitcnt vmcnt({n}) lgkmcnt(0)""")
        if not OPT.get("nobar"):
            A("s_barrier")
    return f


def check_text(reg, mask, name):
    return f"""v_cmp_ne_u32 vcc, s{stag}, v{reg}
    s_and_b32 s{sD1}, vcc_lo, {mask}
    s_cbranch_scc1 {name}
    {name}_done:"""


PUB = [st16(Wf + 4 * i, vSt[i], sKVt)[0] for i in range(4)]
if OPT["b0"]:
    extra(0, 2, "s_waitcnt vmcnt(0)\n" + check_text(vFl, "0xffff", "L_polll"))
    extra(0, 3, kv_next(1) + "\n" + kv_piece(0))
    for i in range(1, 4):
        extra(1, i - 1, kv_piece(i))
    for i in range(4):
        extra(2, i, PUB[i])
    AFTER.setdefault(4, []).append(mk_bar(4))
    AFTER[4].append(lambda: ts(6))
    extra(6, 0, "s_waitcnt vmcnt(0)\n" + flag_text())
    extra(6, 1, kv_next(2) + "\n" + kv_piece(0))
    extra(6, 3, kv_piece(1))
    extra(8, 0, kv_piece(2))
    extra(8, 2, kv_piece(3))
else:
    for i in range(4):
        extra(i // 2, [1, 3][i % 2], PUB[i])
    extra(2, 0, "s_waitcnt vmcnt(4)\n" + check_text(vFl, "0xffff", "L_polll"))
    extra(2, 1, kv_next(1) + "\n" + kv_piece(0))
    extra(2, 3, kv_piece(1))
    extra(3, 1, kv_piece(2))
    extra(3, 3, kv_piece(3))
    AFTER.setdefault(6, []).append(lambda: (A("s_waitcnt vmcnt(0)\ns_barrier"), ts(6)))
    extra(7, 2, kv_next(2) + "\n" + kv_piece(0))
    extra(7, 3, kv_piece(1))
    extra(8, 1, kv_piece(2))
    extra(8, 3, kv_piece(3))
    extra(8, 0, flag_text())
extra(9, 1, "\n".join(f"v_mov_b32 v{vOnes+r}, -1" for r in range(4)))
extra(40, 1, f"""v_lshrrev_b32 v{t0}, 2, v{vL16}
v_and_b32 v{t0}, 60, v{t0}
v_add_u32 v{t0}, {MISC}, v{t0}
v_mov_b32 v{t1}, 0
ds_write_b32 v{t0}, v{t1}""")
extra(10, 0, st16(vOnes, vL16, sOt)[0])
extra(10, 2, st16(vOnes, vL16, sOt, 1024)[0])
extra(30, 1, flag_text(True))
extra(17, 1, poll_text(0x7fff0000).replace("0x7fff0000", "0xffff0000"))


extra(21, 2, check_text(vFl, "0xffff0000", "L_pollh"))
if OPT.get("tou"):
    extra(36, 1, f"buffer_load_dword v{t2}, v{vOs}, s[{sOUT}:{sOUT+3}], s{sOut} offen")
    extra(28, 1, f"s_add_u32 s{sT1}, s{sOut}, {8*1792}\nbuffer_load_dword v{t2}, v{vOs}, s[{sOUT}:{sOUT+3}], s{sT1} offen")
wo_early = list(range(5, 13))
for i in range(1, 8):
    nwo = 2 if i == 1 else 0
    if i >= 2 and wo_early:
        for sl in (0, 2):
            extra(8 * i + 2, sl, wo_piece(wo_early.pop(0)))
            nwo += 1
    if OPT.get("tou") and i in (3, 4):
        nwo += 1
    AFTER.setdefault(8 * i + 4, []).append(mk_bar(nwo))
    if i <= 5:
        DS_ = [[(6, 0), (6, 2), (8, 0), (8, 2)], [(6, 2), (6, 3), (8, 2), (8, 3)], [(6, 0), (6, 1), (8, 0), (8, 1)],
               [(6, 1), (6, 3), (8, 1), (8, 3)], [(6, 0), (6, 1), (6, 2), (6, 3)]][OPT.get("dsl", 0)]
        extra(8 * i + DS_[0][0], DS_[0][1], kv_next(i + 2) + "\n" + kv_piece(0))
        for k in range(1, 4):
            extra(8 * i + DS_[k][0], DS_[k][1], kv_piece(k))
assert not wo_early
for k, r in enumerate([0, 1, 2, 3, 4, 13]):
    extra([54, 54, 55, 56, 56, 57][k], [0, 2, 1, 0, 2, 1][k], wo_piece(r))
extra(50, 0, f"buffer_load_dword v{vQm}, v{vPc}, s[{sWS}:{sWS+3}], s{sPc} offen sc1")
extra(58, 0, check_text(vQm, "0xffff", "L_pollc"))
extra(58, 2, f"""s_or_b32 s{sT0}, s{sh}, s{sj}
    s_or_b32 s{sT0}, s{sT0}, s{sw}
    s_cbranch_scc0 L_epoch
    L_epd:""")
sTk, sAv = sTodo, sRem


def oload(l):
    return f"""s_add_u32 s{sT0}, s{sOin}, {l*4096}
    buffer_load_dwordx4 {v(Of+4*l,4)}, v{vOa}, s[{sWS}:{sWS+3}], s{sT0} offen sc1"""


def cload(l):
    return f"""s_bitcmp1_b32 s{sAv}, {l}
    s_cselect_b64 exec, -1, 0
    {oload(l)}"""


POLL = f"""s_andn2_b32 exec_lo, 0xff, s{sTk}
    s_mov_b32 exec_hi, 0
    buffer_load_dword v{vQm}, v{vLp}, s[{sWS}:{sWS+3}], s{sOin} offen sc1
    s_mov_b64 exec, -1"""
SENDL = [f"ds_write_b128 v{vQw}, {v(O[0]+4*i,4)} offset:{1024*i}" for i in range(4)] + [f"ds_write_b32 v{vOs2}, v{t4}"]
SEND = "\n".join(SENDL)
if OPT["reo"]:
    extra(63, 2, SEND)
extra(44, 1, f"""s_lshl_b32 s{sT0}, s{sKap}, 12
    v_add_u32 v{vQw}, s{sT0}, v{vRw}
    v_xor_b32 v{vQr}, 0x1000, v{vQw}
    s_mul_i32 s{sT0}, s{sKap}, 48
    v_add_u32 v{vOs2}, s{sT0}, v{vMf}
    v_xor_b32 v{vPl}, 48, v{vOs2}
    v_mov_b32 v{t4}, 1""")
for (ww, sl, pr) in [[(61, 0, 3), (62, 0, 2), (63, 0, 1), (63, 2, 0)], [(61, 0, 3), (62, 2, 2), (63, 2, 1)],
                     [(61, 0, 1), (63, 0, 0)]][OPT["lseg"]]:
    extra(ww, sl, f"s_setprio {pr}")
PSEG = {1: [(0, 0, 3), (3, 0, 2), (6, 0, 1), (7, 2, 0)], 2: [(0, 0, 3), (4, 0, 2), (6, 2, 1), (7, 3, 0)],
        3: [(0, 0, 1), (7, 2, 0)], 4: [(0, 0, 3), (2, 0, 2), (4, 0, 1), (6, 0, 0)], 5: [(0, 0, 1), (7, 0, 0)],
        6: [(0, 0, 2), (5, 0, 1), (7, 2, 0)]}
if OPT.get("pseg"):
    for (ww, sl, pr) in ([(0, 0, 3), (2, 0, 2), (3, 2, 1), (4, 3, 0)] if OPT["b0"] else
                         [(0, 0, 3), (3, 0, 2), (5, 2, 1), (6, 3, 0), (7, 0, 3), (9, 0, 2), (11, 2, 1), (12, 3, 0)]):
        EXTRA.setdefault((ww, sl), []).insert(0, f"s_setprio {pr}")
    for i in range(0 if OPT["b0"] else 1, 7):
        for (dw, sl, pr) in PSEG[OPT["pseg"]]:
            EXTRA.setdefault((8 * i + 5 + dw, sl), []).insert(0, f"s_setprio {pr}")
if OPT.get("prio"):
    A(f"""s_cmp_eq_u32 s{sKap}, {OPT["prio"] & 1}
    s_cbranch_scc0 L_np
    s_setprio 1""")
    A.label("L_np")
for W in range(64):
    TW = [0, 1, 3, 5, 7, 13, 21, 29, 37, 45, 53, 61] if not OPT.get("tw") else [16, 56]
    if OPT.get("al") and W % OPT["al"] == 0:
        A(".p2align 3")
    if W in TW:
        ts(2 + TW.index(W), 4)
    window(W)
A(f"""s_nop 0
v_smfmac_f32_32x32x32_bf16 {v(O[1],16)}, {v(Vf[1],4)}, {v(S[3],8)}, v{vIdx}
v_smfmac_f32_32x32x32_bf16 {v(O[1],16)}, {v(Vf[1]+4,4)}, {v(S[3]+8,8)}, v{vIdx}""")
ts(7)
ts(14, 4)

R = S[0]
if not OPT["reo"]:
    A(SEND)
A(f"s_mov_b32 s{sSpin}, 0x400000")
A.label("L_mwait")
A(f"ds_read_b32 v{t2}, v{vPl}")
for i in (3, 0, 1, 2):
    A(f"ds_read_b128 {v(R+4*i,4)}, v{vQr} offset:{1024*i}")
A(f"""s_sub_u32 s{sSpin}, s{sSpin}, 1
s_cbranch_scc1 L_mgo
s_waitcnt lgkmcnt(4)
v_readfirstlane_b32 s{sT0}, v{t2}
s_cmp_eq_u32 s{sT0}, 0
s_cbranch_scc1 L_mspin""")
A.label("L_mgo")
Ob = O[1]
rc = vFl
A(f"""s_waitcnt lgkmcnt(3)
v_pk_add_f32 {v(Ob+12,2)}, {v(Ob+12,2)}, {v(R+12,2)}
v_pk_add_f32 {v(Ob+14,2)}, {v(Ob+14,2)}, {v(R+14,2)}""")
A.label("L_norm")
A(f"""v_mov_b32 v{t0}, v{Ob+12}
v_mov_b32 v{rc}, v{Ob+12}
s_waitcnt lgkmcnt(0)
v_pk_add_f32 {v(Ob,2)}, {v(Ob,2)}, {v(R,2)}
v_permlane32_swap_b32 v{t0}, v{rc}
v_pk_add_f32 {v(Ob+2,2)}, {v(Ob+2,2)}, {v(R+2,2)}
v_subrev_u32 v{t0}, {hex(L_LO)}, v{rc}
v_rcp_f32 v{rc}, v{rc}
v_cmp_lt_u32 vcc, s{sChk}, v{t0}""")
for r in range(4, 12, 2):
    A(f"v_pk_add_f32 {v(Ob+r,2)}, {v(Ob+r,2)}, {v(R+r,2)}")
A("""s_cmp_lg_u64 vcc, 0
s_cbranch_scc1 L_slow""")
for f in range(2):
    for r in range(8 * f, 8 * f + 8, 2):
        A(f"v_pk_mul_f32 {v(Ob+r,2)}, {v(Ob+r,2)}, {v(rc,2)} op_sel_hi:[1,0]")
    for r in range(4 * f, 4 * f + 4):
        A(f"v_cvt_pk_bf16_f32 v{pk+r}, v{Ob+2*r}, v{Ob+2*r+1}")
    if f:
        for r in (6, 7):
            A(f"v_cndmask_b32 v{pk+r}, 0, v{pk+r}, s[{sLo}:{sLo+1}]")
    for r in range(4 * f, 4 * f + 4):
        A(f"v_min_u32 v{pk+r}, -2, v{pk+r}")
    A(f"buffer_store_dwordx4 {v(pk+4*f,4)}, v{vL16}, s[{sWS}:{sWS+3}], s{sOt} offen offset:{1024*f} sc1")
A("s_setprio 0")
ts(8)

TILES = list(range(O[0], Of, 4)) + [DEAD, DEAD + 4]
assert len(TILES) >= 42
rx = S[2]
pk2, rb = Q[0], Q[1]
sOk = sDone
OOL = []


def wtile(l, ct):
    return TILES[7 * (l % 6) + ct]


def wtext(l, ct):
    a0, a1, off = (vW0, vW1, l * 12544) if l < 6 else (t1, t2, 0) if l == 6 else (t3, t4, 0)
    d = wtile(l, ct)
    return f"""ds_read_b64_tr_b16 {v(d,2)}, v{a0} offset:{off+32*ct}
    ds_read_b64_tr_b16 {v(d+2,2)}, v{a1} offset:{off+32*ct}"""


A.label("L_p3e")
if OPT["ts"] == 5:
    A("s_mov_b32 s11, 1")
tsd(0)
A(f"s_mov_b32 s{sSpin}, 0x40000")
sSl = 14
vXw = [vTw, vLane, vIdx, t5]
for l in range(8):
    A(f"s_add_u32 s{sSl+l}, s{sOin}, {4096*l}")
A.label("L_p3r")
A(f"""s_mov_b32 s{sTk}, 0
v_add_u32 v{t1}, {6*12544}, v{vW0}
v_add_u32 v{t2}, {6*12544}, v{vW1}
v_add_u32 v{t3}, s{sSp}, v{vW0}
v_add_u32 v{t4}, s{sSp}, v{vW1}
s_waitcnt lgkmcnt(0)""")
for i in range(42):
    if i >= 6 and i % 3 == 0:
        A("s_waitcnt lgkmcnt(8)")
    if i == OPT["pp"]:
        A(POLL)
    A(wtext(i // 7, i % 7))
tsd(1)
A("s_branch L_w1")
A.label("L_w0")
if OPT.get("slp"):
    A(f"s_sleep {OPT['slp']}")
A(POLL)
A.label("L_w1")
A(f"""s_sub_u32 s{sSpin}, s{sSpin}, 1
s_cselect_b32 s{sT0}, 0xff, 0
s_cselect_b32 s{sSpin}, 0, s{sSpin}
s_waitcnt vmcnt(0)
v_cmp_ne_u32 vcc, -1, v{vQm}
s_or_b32 s{sTk}, vcc_lo, s{sT0}
s_andn2_b32 s{sT0}, 0xff, s{sTk}
s_cbranch_scc1 L_w0""")
tsd(9)
for l in range(8):
    A(f"buffer_load_dwordx4 {v(Of+4*l,4)}, v{vOa}, s[{sWS}:{sWS+3}], s{sSl+l} offen sc1")
tsd(7)
A(f"""v_mov_b32 v{vFl}, 1
s_add_u32 s{sT1}, s{sOut}, {8*1792}""")
for ct in range(1, 4):
    A(f"v_xor_b32 v{vXw[ct]}, {32*ct}, v{vTw}")
ORD = [0, 2, 1, 3, 4, 5, 6, 7]
for k, l in enumerate(ORD):
    b0 = Of + 4 * l
    A(f"s_waitcnt vmcnt({7-max(ORD[:k+1])})" + (" lgkmcnt(0)" if l in (0, 1, 6) else ""))
    if k == 0:
        tsd(2)
    for ct in range(7):
        A(f"v_mfma_f32_16x16x32_bf16 {v(acc+4*ct,4)}, {v(wtile(l,ct),4)}, {v(b0,4)}, {'0' if k == 0 else v(acc+4*ct,4)}")
        if l < 2:
            A(wtext(6 + l, ct))
        if ct == 1:
            A(f"v_max3_u32 v{t0}, v{b0}, v{b0+1}, {'0' if k == 0 else f'v{t0}'}")
        if ct == 3:
            A(f"v_max3_u32 v{t0}, v{b0+2}, v{b0+3}, v{t0}")
        if ct == 5 and k == 7:
            A(f"v_cmp_eq_u32 vcc, -1, v{t0}")
A(f"""s_cmp_lg_u64 vcc, 0
s_cbranch_scc1 L_redo""")
A.label("L_good")
OOL.append(f"""L_redo:
s_sub_u32 s{sSpin}, s{sSpin}, 1
s_cbranch_scc0 L_p3r
s_branch L_good""")
tsd(3)
ts(9)
tsa(8)


XS_ = [f"""L_xsk{kap}:
    s_sleep {OPT.get("xs", 1)}
    ds_read_b32 v{t0}, v{vMf} offset:{32-16*kap}
    s_sub_u32 s{sSpin}, s{sSpin}, 1
    s_waitcnt lgkmcnt(0)
    s_cbranch_scc1 L_yk{kap}
    v_readfirstlane_b32 s{sT0}, v{t0}
    s_cmp_eq_u32 s{sT0}, 0
    s_cbranch_scc1 L_xsk{kap}
    s_branch L_xk{kap}""" for kap in (1, 0)]


def p3(kap):
    n = f"k{kap}"
    keep = [0, 1, 2, 3] if kap == 0 else [4, 5, 6]
    send = [4, 5, 6] if kap == 0 else [0, 1, 2, 3]
    wa_, ra_ = (vSn, vRw) if kap == 0 else (vRw, vSn)
    A(f"s_mov_b32 s{sSpin}, 0x400000")
    for i, ct in enumerate(send):
        A(f"ds_write_b128 v{wa_}, {v(acc+4*ct,4)} offset:{1024*i}")
    A(f"ds_write_b32 v{vMf}, v{vFl} offset:{16+16*kap}")
    A.label(f"L_x{n}")
    A(f"ds_read_b32 v{t0}, v{vMf} offset:{32-16*kap}")
    for i in range(len(keep)):
        A(f"ds_read_b128 {v(rx+4*i,4)}, v{ra_} offset:{1024*i}")
    A(f"""s_sub_u32 s{sSpin}, s{sSpin}, 1
    s_cbranch_scc1 L_y{n}
    s_waitcnt lgkmcnt({len(keep)})
    v_readfirstlane_b32 s{sT0}, v{t0}
    s_cmp_eq_u32 s{sT0}, 0
    s_cbranch_scc1 L_xs{n}""")
    A.label(f"L_y{n}")
    tsd(4)
    tsa(9)
    wa = vXw
    for i, ct in enumerate(keep):
        A(f"""s_waitcnt lgkmcnt({len(keep)-1})
        v_pk_add_f32 {v(acc+4*ct,2)}, {v(acc+4*ct,2)}, {v(rx+4*i,2)}
        v_pk_add_f32 {v(acc+4*ct+2,2)}, {v(acc+4*ct+2,2)}, {v(rx+4*i+2,2)}
        v_cvt_pk_bf16_f32 v{pk2+2*i}, v{acc+4*ct}, v{acc+4*ct+1}
        v_cvt_pk_bf16_f32 v{pk2+2*i+1}, v{acc+4*ct+2}, v{acc+4*ct+3}
        ds_write_b64 v{wa[i]}, {v(pk2+2*i,2)}""")
    os_ = vOs
    A(f"""ds_read_b128 {v(rb,4)}, v{vTr}
    ds_read_b128 {v(rb+4,4)}, v{vTr} offset:1024
    s_waitcnt lgkmcnt(1)
    buffer_store_dwordx4 {v(rb,4)}, v{os_}, s[{sOUT}:{sOUT+3}], s{sOut} offen{OSC}
    s_waitcnt lgkmcnt(0)
    buffer_store_dwordx4 {v(rb+4,4)}, v{os_}, s[{sOUT}:{sOUT+3}], s{sT1} offen{OSC}""")


assert Vf[1] == Kf[0] + 24 and O[1] == O[0] + 16
A(f"""s_cmp_eq_u32 s{sKap}, 0
s_cbranch_scc1 L_x0""")
p3(1)
A("s_branch L_noep" if OPT["ts"] or OPT.get("padto") else "s_endpgm")
for x in XS_:
    A(x)
A(f"""L_mspin:
ds_read_b32 v{t2}, v{vPl}
s_sub_u32 s{sSpin}, s{sSpin}, 1
s_waitcnt lgkmcnt(0)
s_cbranch_scc1 L_mgo
v_readfirstlane_b32 s{sT0}, v{t2}
s_cmp_eq_u32 s{sT0}, 0
s_cbranch_scc1 L_mspin
s_branch L_mwait""")
A.label("L_x0")
p3(0)
A.label("L_noep")
if OPT.get("padto"):
    A.label("L_pad")
    A(f"""s_sleep 4
    s_memrealtime s[{sRet}:{sRet+1}]
    s_waitcnt lgkmcnt(0)
    s_sub_u32 s{sT0}, s{sRet}, s{sTS}
    s_cmp_lt_u32 s{sT0}, {OPT["padto"]}
    s_cbranch_scc1 L_pad""")
tsd(5)
tsa(10)
if OPT["ts"] == 6:
    A("s_waitcnt lgkmcnt(0)")
    for i, r in enumerate(ASR):
        A(f"v_writelane_b32 v{vTS}, s{r}, {i+1}")
    A(f"""s_sub_u32 s{sRem}, 0x7fffffff, s{sRem}
    v_writelane_b32 v{vTS}, s{sRem}, 13
    v_writelane_b32 v{vTS}, s19, 14""")
if OPT["ts"]:
    A("s_waitcnt vmcnt(0)")
    ts(10)
    tsd(6)
    ts(12, 6)
    A(f"""s_lshl_b32 s{sT0}, s2, 3
    s_add_u32 s{sT0}, s{sT0}, s{sw}
    s_lshl_b32 s{sT0}, s{sT0}, {8 if OPT["ts"] == 5 else 6}
    s_add_u32 s{sT0}, s{sT0}, {TS_OFF}
    s_getreg_b32 s{sT1}, hwreg(HW_REG_XCC_ID)
    {"s_nop 0" if OPT["ts"] == 5 else f"v_writelane_b32 v{vTS}, s{sT1}, 15"}
    v_lshrrev_b32 v{t0}, 2, v{vL16}
    s_mov_b64 exec, {-1 if OPT["ts"] == 5 else "0xffff"}
    buffer_store_dword v{vTS}, v{t0}, s[{sWS}:{sWS+3}], s{sT0} offen""")
    if OPT.get("dbg"):
        A(f"""v_readlane_b32 s{sT0}, v{vTS}, 0
        s_not_b32 s{sT0}, s{sT0}
        v_writelane_b32 v{vTS}, s{sT0}, 15
        s_mov_b32 s{sX}, s22
        s_mov_b32 s{sX+1}, s23
        s_mov_b32 s{sX+2}, 256
        buffer_atomic_umax v{vTS}, v{t0}, s[{sX}:{sX+3}], 0 offen""")
A.label("L_end")
A("s_endpgm")

for x in OOL:
    A(x)
A.label("L_epoch")
A(f"""s_add_u32 s{sE}, s{sE}, 1
s_lshl_b32 s{sT0}, s{sb}, 8
s_add_u32 s{sT0}, s{sT0}, {EPOCH_OFF}
v_mov_b32 v{t1}, s{sE}
s_mov_b64 exec, 1
buffer_store_dword v{t1}, v{vL16}, s[{sWS}:{sWS+3}], s{sT0} offen sc1
s_mov_b64 exec, -1
s_branch L_epd""")

for name, load, reg, mask in (
        ("L_pollc", f"buffer_load_dword v{vQm}, v{vPc}, s[{sWS}:{sWS+3}], s{sPc} offen sc1", vQm, "0xffff"),
        ("L_polll", poll_text(0xffff), vFl, "0xffff"),
        ("L_pollh", poll_text(0x7fff0000).replace('0x7fff0000', '0xffff0000'), vFl, "0xffff0000")):
    A(f"""{name}:
    s_mov_b32 s{sSpin}, 0x40000
    {name}1:
    {load}
    s_sub_u32 s{sSpin}, s{sSpin}, 1
    s_cbranch_scc1 {name}_done
    s_waitcnt vmcnt(0)
    v_cmp_ne_u32 vcc, s{stag}, v{reg}
    s_and_b32 s{sD1}, vcc_lo, {mask}
    s_cbranch_scc1 {name}1
    s_branch {name}_done""")

A.label("L_slow")
Sx, vMn, vAl, vM = S[2], t2, t3, t4
A(f"""s_mov_b32 s{sChk}, -1
v_lshlrev_b32 v{vBk}, 3, v{vLane}
v_mov_b32 v{vM}, 0xff7fffff
s_mov_b32 s{sT0}, s{sKV}
s_mov_b32 s{sI}, 0""")
for r in range(16):
    A(f"v_mov_b32 v{Ob+r}, 0")
    A(f"v_mov_b32 v{R+r}, 0")
A.label("L_slow_t")
for i in range(4):
    A(f"buffer_load_dwordx2 {v(Kf[0]+2*i,2)}, v{vBk}, s[{sWS}:{sWS+3}], s{sT0} offen offset:{512*i} sc1")
A(f"""buffer_load_dwordx4 {v(Vf[0],4)}, v{vL16}, s[{sWS}:{sWS+3}], s{sT0} offen offset:2048 sc1
buffer_load_dwordx4 {v(Vf[0]+4,4)}, v{vL16}, s[{sWS}:{sWS+3}], s{sT0} offen offset:3072 sc1
s_add_u32 s{sT0}, s{sT0}, 4096
s_waitcnt vmcnt(0)
v_mfma_f32_32x32x16_bf16 {v(Sx,16)}, {v(Kf[0],4)}, {v(Q[1],4)}, 0
v_mfma_f32_32x32x16_bf16 {v(Sx,16)}, {v(Kf[0]+4,4)}, {v(Q[1]+4,4)}, {v(Sx,16)}
v_max3_f32 v{t0}, v{Sx}, v{Sx+1}, v{vM}""")
for r in range(2, 16, 2):
    A(f"v_max3_f32 v{t0}, v{Sx+r}, v{Sx+r+1}, v{t0}")
A(f"""v_mov_b32 v{t1}, v{t0}
v_permlane32_swap_b32 v{t0}, v{t1}
v_max_f32 v{vMn}, v{t0}, v{t1}
v_sub_f32 v{vAl}, v{vM}, v{vMn}
v_exp_f32 v{vAl}, v{vAl}
v_mov_b32 v{vM}, v{vMn}""")
for r in range(16):
    A(f"v_sub_f32 v{Sx+r}, v{Sx+r}, v{vMn}")
for r in range(16):
    A(f"v_exp_f32 v{Sx+r}, v{Sx+r}")
for r in range(16):
    A(f"v_mul_f32 v{Ob+r}, v{vAl}, v{Ob+r}")
A(f"""v_smfmac_f32_32x32x32_bf16 {v(Ob,16)}, {v(Vf[0],4)}, {v(Sx,8)}, v{vIdx}
v_smfmac_f32_32x32x32_bf16 {v(Ob,16)}, {v(Vf[0]+4,4)}, {v(Sx+8,8)}, v{vIdx}
s_add_u32 s{sI}, s{sI}, 1
s_cmp_lt_u32 s{sI}, 64
s_cbranch_scc1 L_slow_t
s_nop 11
s_branch L_norm""")

n = A.fix_hazards(verbose=bool(OPT.get("v", 0)))
NV = -(-V.hi // 8) * 8
hdr = open("cdna_kernels/" + NAME + ".s.ref").read().split("; Override launch")[0]
out = hdr + f"""; Fused kernel: QKV projection -> softmax attention -> output projection, one workgroup per
; (branch, head, 256-token block).  Generated by gen/gen.py.
; @launch grid=(256,1,1) block=(512,1,1) lds={LDS_BYTES}
.amdgcn_target "amdgcn-amd-amdhsa--gfx950"
.text
.globl {NAME}_kernel
.p2align 8
.type {NAME}_kernel,@function
""" + A.text().replace("CODE_SPAN", "L_slow-L_nopf") + f""".section .rodata,"a"
.p2align 6
.amdhsa_kernel {NAME}_kernel
  .amdhsa_next_free_vgpr {NV}
  .amdhsa_next_free_sgpr {NSGPR}
  .amdhsa_accum_offset {NV}
  .amdhsa_group_segment_fixed_size 0
  .amdhsa_kernarg_size 72
  .amdhsa_user_sgpr_count 2
  .amdhsa_user_sgpr_kernarg_segment_ptr 1
  .amdhsa_system_sgpr_workgroup_id_x 1
.end_amdhsa_kernel
"""
open(sys.argv[1], "w").write(out)
print(f"wrote {sys.argv[1]}: {len(A.lines)} lines, {n} nops inserted, {NV} vgprs", file=sys.stderr)
```

```python
import sys, struct, math
from asmlib import Asm, Alloc, v, s

NAME = "concat_heads__softmax_full_mha__softmax_full_mha__prompt"

OPT = dict(ts=0, force_slow=0, rot=2, map=1, pf=1, pq=14, tq=6, fq=0, padg=14, pubw=1, pseg=2, npro=0, pp=24, tou=0,
           osc=0, nw0=4, na=2, n1=2, cg=23, xl=4, wqe=0, wqd=2, wqf=0, nb=10, lf=2, yp=0, tch=0, b0=1, lseg=1, reo=1, z0=24, dsl=1, c0=1, off=8, hf=1)
for a in sys.argv[2:]:
    k, val = a.split("=")
    OPT[k] = int(val)

FLAG_OFF = 0xD00000
ES = OPT.get("es", 7)
FS = OPT.get("fs", 16 << ES)
HINT = 0x80000
EPOCH_OFF = 0x10000
TS_OFF = 0x20000
KV_OFF = 0x100000
O_OFF = 0x900000
WS_BYTES = 0x1000000
OOB = 0x40000000

XS = 32768
WL = 98304
WQ = 0
QOLD = 155648
WOB = 66944
WO15 = 32768
MISC = 161280
SND = 16384
LDS_BYTES = 163840

CSCALE = math.log2(math.e) / math.sqrt(28.0)
SHIFT = OPT['off'] + [0, 4, 2, -4, 1][OPT['c0']]
L_LO = (127 - 60 + SHIFT) << 23
L_RANGE = 120 << 23


def f2u(x):
    return struct.unpack("<I", struct.pack("<f", x))[0]


NTX = " nt" if OPT.get("ntx") else ""
NTW = " nt" if OPT.get("ntw") else ""
OSC = ["", " sc1", " nt", " sc0 sc1", " sc1 nt"][OPT.get("osc", 3)]
C0 = ["0", "4.0", "2.0", "-4.0", "1.0"][OPT.get("c0", 0)]
A = Asm()
sWm, sWm13 = 26, 27
sX, sW, sWS, sWO, sOUT = 28, 32, 36, 40, 44
sw, sb, sh, sj, stag, sE = 48, 49, 50, 51, 52, 53
sCx, sXb, sWb, sMX, sMW, sCw = 54, 55, 56, 57, 58, 59
sT0, sT1, sT2, sT3 = 60, 61, 62, 63
sLo = 64
sLine, sRole = 66, 67
sHo = 10
sWb0, sSp = 12, 13
sLpx = 8
sKV = 68
sMXs, sWq = 69, 70
sI, sRel, sWn, sHH = 71, 72, 73, 74
sSpin = 75
sOt = 76
sWoff = 77
sKap = 78
sFl = 79
sTS = 80
sRet = 82
sDone, sTodo = 84, 85
sOin = 86
sPc = 87
sOut = 88
sChk = 89
sCs = 90
sKVt = 92
sD0, sD1 = 93, 94
sPend, sRem = 95, 96
sOp = 97
sRdy = 98
sHi, sPl, sC0, sMQ = 4, 5, 6, 7
sCq, sNone = 3, 100
NSGPR = 102


def ts(idx, grp=1):
    if OPT.get("padat") == 100 * grp + idx:
        A(f"s_memrealtime s[{sTS}:{sTS+1}]\ns_waitcnt lgkmcnt(0)")
    if not OPT["ts"] or (idx != 0 and OPT["ts"] != grp):
        return
    A(f"""{"s_memtime" if OPT.get("clk") else "s_memrealtime"} s[{sTS}:{sTS+1}]
    s_waitcnt lgkmcnt(0)
    v_writelane_b32 v{vTS}, s{sTS}, {idx}""")


def tsd(code, val=0):
    A(tsdt(code, val))


def tsdt(code, val=0):
    if OPT["ts"] != 5:
        return ""
    return (f"""s_memrealtime s[{sTS}:{sTS+1}]
    s_waitcnt lgkmcnt(0)
    s_lshl_b32 s{sTS}, s{sTS}, 8
    s_or_b32 s{sTS}, s{sTS}, {code << 4}
    s_or_b32 s{sTS}, s{sTS}, {val}
    s_mov_b32 m0, s11
    v_writelane_b32 v{vTS}, s{sTS}, m0
    s_add_u32 s11, s11, 1
    s_min_u32 s11, s11, 63""")


ASR = [20, 22, 54, 56, 58, 68, 66, 72, 90, 26, 6]


def tsa(i):
    if OPT["ts"] == 6:
        A(f"s_memrealtime s[{ASR[i]}:{ASR[i]+1}]")


class Cnt:
    def __init__(self, name, cap):
        self.name, self.cap, self.q = name, cap, []

    def room(self):
        if len(self.q) >= self.cap:
            A(f"s_waitcnt {self.name}({self.cap - 4})")
            self.q = self.q[len(self.q) - (self.cap - 4):]

    def issue(self, tag, n=1):
        self.q += [tag] * n
        assert len(self.q) <= self.cap, (self.name, self.q)

    def wait(self, *tags):
        idx = [i for i, t in enumerate(self.q) if t in tags]
        if idx:
            n = len(self.q) - 1 - idx[-1]
            A(f"s_waitcnt {self.name}({n})")
            self.q = self.q[idx[-1] + 1:]


def lines(text):
    return [x.strip() for x in text.split("\n") if x.strip()]


def emit(lst, n):
    for _ in range(min(n, len(lst))):
        A(lst.pop(0))


V = Alloc(1, 256)
vLane = V()
vTS = V()
vL16 = V()
vIdx = V()
vT = [V() for _ in range(6)]
t0, t1, t2, t3, t4, t5 = vT
vQm = V()
DEAD = V(8)
vQw, vQr, vBase, vCur, vWod, vPl, vPc, vBk = range(DEAD, DEAD + 8)
vOa, vW0, vW1, vSn, vRw, vMf, vTw, vTr, vOs, vOs2, vLp = [V() for _ in range(11)]
vTag = V()
vTag2 = V()
vFl = V(2)
m_ph = V.mark()
Xr = V(112)
acc0, acc1 = V(16), V(16)
Wf = V(24)
accQ = V(16)
Wg = V(12)
vXd = [V() for _ in range(4)]
vWd, vWd2 = V(), V()
vWq = V()
vXa = [V() for _ in range(4)]
vWr = [V(), V()]
vWqr = V()
vSt = [V() for _ in range(4)]
vP = [V()]
vPd = V(4)
vOnes = accQ
V.reset(m_ph)
O = [V(16), V(16)]
Q = [V(8), V(8)]
S = [V(16) for _ in range(4)]
Kf = [V(8), V(8)]
Vf = [V(8), V(8)]
pk, pq = V(8), V(8)
Of = V(32)
acc = V(28)
assert O[0] == Xr

A.label(NAME + "_kernel")
A(f"""s_cmp_ge_u32 s2, 256
s_cbranch_scc1 L_end
s_load_dwordx16 s[8:23], s[0:1], 0
s_load_dwordx2 s[24:25], s[0:1], 64
v_lshrrev_b32 v{t0}, 6, v0
v_and_b32 v{vLane}, 63, v0
v_readfirstlane_b32 s{sw}, v{t0}
v_lshlrev_b32 v{vL16}, 4, v{vLane}""")
if OPT.get("padto"):
    A(f"s_memrealtime s[{sTS}:{sTS+1}]")
if OPT["ts"]:
    A(f"""{"s_memtime" if OPT.get("clk") else "s_memrealtime"} s[{sTS}:{sTS+1}]
    v_mov_b32 v{vTS}, 0""")
if OPT["map"] == 1:
    A(f"""s_and_b32 s{sT0}, s2, 7
    s_lshr_b32 s{sT1}, s2, 3
    s_and_b32 s{sj}, s{sT1}, 7
    s_lshr_b32 s{sT1}, s{sT1}, 3
    s_lshl_b32 s{sT0}, s{sT0}, 2
    s_add_u32 s{sHH}, s{sT0}, s{sT1}""")
elif OPT["map"] == 2:
    A(f"""s_and_b32 s{sT0}, s2, 7
    s_lshr_b32 s{sT1}, s2, 3
    s_and_b32 s{sT2}, s{sT0}, 3
    s_lshl_b32 s{sT2}, s{sT2}, 1
    s_lshr_b32 s{sT3}, s{sT1}, 4
    s_add_u32 s{sj}, s{sT2}, s{sT3}
    s_lshr_b32 s{sT0}, s{sT0}, 2
    s_lshl_b32 s{sT0}, s{sT0}, 4
    s_and_b32 s{sT1}, s{sT1}, 15
    s_add_u32 s{sHH}, s{sT0}, s{sT1}""")
elif OPT["map"] == 3:
    A(f"""s_and_b32 s{sT0}, s2, 7
    s_lshr_b32 s{sT1}, s2, 3
    s_and_b32 s{sT2}, s{sT0}, 1
    s_lshl_b32 s{sT2}, s{sT2}, 2
    s_lshr_b32 s{sT3}, s{sT1}, 3
    s_add_u32 s{sj}, s{sT2}, s{sT3}
    s_lshr_b32 s{sT0}, s{sT0}, 1
    s_lshl_b32 s{sT0}, s{sT0}, 3
    s_and_b32 s{sT1}, s{sT1}, 7
    s_add_u32 s{sHH}, s{sT0}, s{sT1}""")
A(f"""s_lshr_b32 s{sb}, s{sHH}, 4
s_and_b32 s{sh}, s{sHH}, 15
s_lshr_b32 s{sKap}, s{sw}, 2""")
A(f"""s_cmp_gt_u32 s{sh}, 7
s_cselect_b32 s{sRole}, 1, 0
s_cselect_b32 s{sT0}, 16, 1
s_cselect_b32 s{sT1}, 1, 2
s_cselect_b32 s{sT2}, 2, 8
s_cselect_b32 s{sT3}, 8, 16
v_bfe_u32 v{t0}, v{vLane}, 3, 1
v_mul_u32_u24 v{t0}, s{sT0}, v{t0}
v_bfe_u32 v{t1}, v{vLane}, 4, 1
v_mad_u32_u24 v{t0}, v{t1}, s{sT1}, v{t0}
v_lshrrev_b32 v{t1}, 5, v{vLane}
v_lshl_add_u32 v{t0}, v{t1}, 2, v{t0}
v_mul_u32_u24 v{t3}, 896, v{t0}
s_mul_i32 s{sT2}, s{sT2}, 896
s_mul_i32 s{sT3}, s{sT3}, 896
s_sub_u32 s{sT2}, s{sT2}, 1024
s_sub_u32 s{sT3}, s{sT3}, 2048
v_lshrrev_b32 v{t1}, 4, v{vLane}
v_and_b32 v{t2}, 7, v{vLane}
v_xor_b32 v{t1}, v{t1}, v{t2}
v_lshl_add_u32 v{vXd[0]}, v{t1}, 4, v{t3}
v_xor_b32 v{t1}, 4, v{t1}
v_lshl_add_u32 v{t1}, v{t1}, 4, v{t3}
v_add_u32 v{vXd[1]}, s{sT2}, v{t1}
v_add_u32 v{vXd[2]}, s{sT3}, v{vXd[0]}
v_add_u32 v{vXd[3]}, s{sT3}, v{vXd[1]}
s_lshl_b32 s{sT0}, s{sj}, 3
s_add_u32 s{sT0}, s{sT0}, s{sw}
s_mul_i32 s{sXb}, s{sT0}, {32*896}
s_lshl_b32 s{sMX}, s{sw}, 12
s_lshl_b32 s{sT0}, s{sKap}, 14
s_add_u32 s{sMXs}, s{sMX}, s{sT0}
s_add_u32 s{sMXs}, s{sMXs}, {XS}""")
if OPT["rot"] == 0:
    A(f"s_mov_b32 s{sC0}, 0")
else:
    if OPT["rot"] == 1:
        A(f"s_add_u32 s{sC0}, s{sh}, s{sj}")
    elif OPT["rot"] == 2:
        A(f"""s_mul_i32 s{sC0}, s{sh}, 7
        s_lshr_b32 s{sC0}, s{sC0}, 4
        s_add_u32 s{sC0}, s{sC0}, s{sj}""")
    elif OPT["rot"] == 3:
        A(f"""s_mul_i32 s{sC0}, s{sh}, 7
        s_lshr_b32 s{sC0}, s{sC0}, 4""")
    A(f"""s_mul_i32 s{sT1}, s{sC0}, 37
    s_lshr_b32 s{sT1}, s{sT1}, 8
    s_mul_i32 s{sT1}, s{sT1}, 7
    s_sub_u32 s{sC0}, s{sC0}, s{sT1}""")
if OPT["pf"]:
    A(f"""s_and_b32 s{sT0}, s2, 0xf8
    s_add_u32 s{sT0}, s{sT0}, s{sw}
    s_mul_i32 s{sT0}, s{sT0}, 192
    s_getpc_b64 s[{sRet}:{sRet+1}]""")
    A.label("L_nopf")
    A(f"""v_and_b32 v{t4}, 0x80, v{vL16}
    v_add_u32 v{t4}, s{sT0}, v{t4}
    v_min_u32 v{t4}, CODE_SPAN, v{t4}
    global_load_dword v{t5}, v{t4}, s[{sRet}:{sRet+1}]""")
A(f"""s_lshl_b32 s{sCx}, s{sC0}, 7
s_mov_b32 s{sX+2}, {2048*896}
s_mov_b32 s{sX+3}, 0x20000
s_cmp_eq_u32 s{sb}, 0
s_waitcnt lgkmcnt(0)
s_cselect_b32 s{sX}, s8, s14
s_cselect_b32 s{sX+1}, s9, s15
s_cselect_b32 s{sW}, s10, s16
s_cselect_b32 s{sW+1}, s11, s17
s_cselect_b32 s{sWO}, s12, s18
s_cselect_b32 s{sWO+1}, s13, s19""")
if OPT["ts"]:
    A(f"v_writelane_b32 v{vTS}, s{sTS}, 0")
ts(14, 2)


def x_pieces(c):
    p = [f"""s_add_u32 m0, s{sMXs}, {(c % 2) * 16384}
    s_add_u32 s{sD0}, s{sCx}, s{sXb}
    buffer_load_dwordx4 v{vXd[0]}, s[{sX}:{sX+3}], s{sD0} offen{NTX} lds
    s_add_u32 s{sCx}, s{sCx}, 128
    s_cmp_eq_u32 s{sCx}, 896
    s_cselect_b32 s{sCx}, 0, s{sCx}"""]
    for i in range(1, 4):
        p.append(f"buffer_load_dwordx4 v{vXd[i]}, s[{sX}:{sX+3}], s{sD0} offen offset:{1024*i}{NTX} lds")
    return [(x, f"X{c}") for x in p]


def w_pieces(it):
    return [(f"""s_add_u32 m0, s{sMW}, {it*8192}
    s_add_u32 s{sD1}, s{sCw}, s{sWb}
    buffer_load_dwordx4 v{vWd}, s[{sW}:{sW+3}], s{sD1} offen lds
    s_add_u32 s{sCw}, s{sCw}, {64*2688}
    s_cmp_eq_u32 s{sCw}, {448*2688}
    s_cselect_b32 s{sCw}, 0, s{sCw}""", f"W{it}"),
            (f"buffer_load_dwordx4 v{vWd2}, s[{sW}:{sW+3}], s{sD1} offen offset:1024 lds", f"W{it}")]


def wq_piece(i):
    return (f"""s_add_u32 m0, s{sMQ}, {i*1024}
    s_add_u32 s{sD1}, s{sCq}, s{sWq}
    buffer_load_dwordx4 v{vWq}, s[{sW}:{sW+3}], s{sD1} offen lds
    s_add_u32 s{sCq}, s{sCq}, {16*2688}
    s_cmp_eq_u32 s{sCq}, {448*2688}
    s_cselect_b32 s{sCq}, 0, s{sCq}""", "WQ")


A(f"""s_lshr_b32 s{sNone}, 0x240, s{sh}
s_and_b32 s{sNone}, s{sNone}, 1
s_cmp_gt_u32 s{sKap}, s{sNone}
s_cbranch_scc1 L_nox""")
for p, _ in x_pieces(0) + x_pieces(1):
    A(p)
A.label("L_nox")
ts(1, 2)
A(f"""s_mov_b32 s{sW+2}, {448*2688}
s_mov_b32 s{sW+3}, 0x20000
s_cmp_gt_u32 s{sh}, 6
s_subb_u32 s{sLine}, s{sh}, 0
s_cmp_gt_u32 s{sh}, 9
s_subb_u32 s{sLine}, s{sLine}, 0
s_lshl_b32 s{sWb}, s{sLine}, 7
s_cmp_ge_u32 s{sLine}, 7
s_cselect_b32 s{sT0}, 7, 0
s_sub_u32 s{sLine}, s{sLine}, s{sT0}
s_and_b32 s{sT1}, s{sw}, 3
s_mul_i32 s{sT0}, s{sT1}, {16*2688}
s_add_u32 s{sWb}, s{sWb}, s{sT0}
s_add_u32 s{sWb}, s{sWb}, 896
s_mul_i32 s{sCw}, s{sC0}, {64*2688}
s_lshl_b32 s{sMW}, s{sT1}, 11
s_add_u32 s{sMW}, s{sMW}, {WL}
v_lshrrev_b32 v{t0}, 3, v{vLane}
v_mul_u32_u24 v{t0}, 2688, v{t0}
v_bfe_u32 v{t1}, v{vLane}, 4, 1
v_lshlrev_b32 v{t1}, 2, v{t1}
v_xor_b32 v{t1}, v{t1}, v{t2}
v_lshl_add_u32 v{vWd}, v{t1}, 4, v{t0}
v_add_u32 v{vWd2}, {8*2688-1024}, v{vWd}
s_cmp_le_u32 s{sKap}, s{sNone}
s_cbranch_scc1 L_now""")
NW0 = OPT["nw0"]
for it in range(NW0):
    for p, _ in w_pieces(it):
        A(p)
TOUCH = f"""v_lshrrev_b32 v{t0}, 3, v{vLane}
v_and_b32 v{t1}, 7, v{vLane}
v_min_u32 v{t1}, 6, v{t1}
v_lshlrev_b32 v{t1}, 7, v{t1}
s_and_b32 s{sT1}, s{sw}, 3
s_lshl_b32 s{sT0}, s{sh}, 2
s_add_u32 s{sT0}, s{sT0}, s{sT1}
s_lshl_b32 s{sT2}, s{sj}, 7
s_add_u32 s{sT2}, s{sT2}, s{sT0}
s_add_u32 s{sT2}, s{sT2}, 64
s_mul_i32 s{sT2}, s{sT2}, {2*896}
s_movk_i32 s{sT3}, 896
v_mad_u32_u24 v{t3}, v{t0}, s{sT3}, v{t1}
s_lshl_b32 s{sT0}, s{sT0}, 3
s_add_u32 s{sT0}, s{sT0}, s{sj}
s_mul_i32 s{sT0}, s{sT0}, 2688
s_mov_b64 exec, 0xffff
buffer_load_dword v{t5}, v{t3}, s[{sX}:{sX+3}], s{sT2} offen
s_mov_b64 exec, 0xff
buffer_load_dword v{t5}, v{t1}, s[{sW}:{sW+3}], s{sT0} offen
s_mov_b64 exec, -1"""
if OPT["tch"] == 1:
    A(TOUCH)
A.label("L_now")

EARLY = lines(f"""s_lshl_b32 s{sT0}, s{sb}, 8
s_add_u32 s{sT0}, s{sT0}, {EPOCH_OFF}
s_load_dword s{sE}, s[24:25], s{sT0}
v_lshrrev_b32 v{t2}, 5, v{vLane}
v_and_b32 v{t0}, 31, v{vLane}
v_bfe_u32 v{t1}, v{vLane}, 1, 3
v_xor_b32 v{t1}, v{t1}, v{t2}
v_lshlrev_b32 v{t0}, 7, v{t0}
v_add_u32 v{t0}, s{sMXs}, v{t0}""")
for sst in range(4):
    EARLY += lines(f"""v_xor_b32 v{t3}, {2*sst}, v{t1}
    v_lshl_add_u32 v{vXa[sst]}, v{t3}, 4, v{t0}""")
EARLY += lines(f"""v_bfe_u32 v{t1}, v{vLane}, 2, 2
v_lshl_add_u32 v{t0}, v{t2}, 3, v{t1}
v_bfe_u32 v{t3}, v{vLane}, 4, 1
v_and_b32 v{t4}, 3, v{vLane}
v_lshlrev_b32 v{t4}, 3, v{t4}
v_lshl_add_u32 v{t4}, v{t3}, 5, v{t4}
v_lshl_add_u32 v{vWqr}, v{t0}, 6, v{t4}
v_lshl_add_u32 v{t4}, v{t0}, 7, v{t4}
v_lshrrev_b32 v{t1}, 1, v{t1}
v_lshl_add_u32 v{t4}, v{t1}, 6, v{t4}
v_add_u32 v{vWr[0]}, {WL}, v{t4}
v_xor_b32 v{vWr[1]}, 64, v{vWr[0]}""")

MID = lines(f"""s_and_b32 s{sT0}, s{sh}, 1
s_lshl_b32 s{sT0}, s{sT0}, 3
s_add_u32 s{sT0}, s{sT0}, {WQ}
v_add_u32 v{vWqr}, s{sT0}, v{vWqr}
s_mul_i32 s{sWq}, s{sh}, 56
s_and_b32 s{sWq}, s{sWq}, 0xfffffff0
s_and_b32 s{sT0}, s{sw}, 3
s_mul_i32 s{sMQ}, s{sT0}, 7168
s_add_u32 s{sMQ}, s{sMQ}, {WQ}
s_mul_i32 s{sT0}, s{sT0}, 7
s_lshl_b32 s{sT1}, s{sC0}, 2
s_add_u32 s{sT0}, s{sT0}, s{sT1}
s_sub_u32 s{sT1}, s{sT0}, 28
s_min_u32 s{sT0}, s{sT0}, s{sT1}
s_mul_i32 s{sCq}, s{sT0}, {16*2688}
v_lshrrev_b32 v{t0}, 2, v{vLane}
v_mul_u32_u24 v{t0}, 2688, v{t0}
v_and_b32 v{t1}, 3, v{vLane}
v_lshl_add_u32 v{vWq}, v{t1}, 4, v{t0}""")
MID += lines(f"""s_mov_b32 s{sWS}, s24
s_mov_b32 s{sWS+1}, s25
s_mov_b32 s{sWS+2}, {WS_BYTES}
s_mov_b32 s{sWS+3}, 0x20000
s_lshl_b32 s{sKVt}, s{sb}, 22
s_lshl_b32 s{sRel}, s{sj}, 15
s_add_u32 s{sRel}, s{sRel}, s{sMX}
s_add_u32 s{sKVt}, s{sKVt}, s{sRel}
s_add_u32 s{sKVt}, s{sKVt}, {KV_OFF}
s_and_b32 s{sT0}, s{sw}, 3
s_lshl_b32 s{sT0}, s{sT0}, 1
s_lshl_b32 s{sT1}, s{sb}, 3
s_add_u32 s{sT1}, s{sT1}, s{sj}
s_lshl_b32 s{sT1}, s{sT1}, 3
s_add_u32 s{sT0}, s{sT0}, s{sT1}
s_lshl_b32 s{sT0}, s{sT0}, 4
s_add_u32 s{sT0}, s{sT0}, s{sh}
s_lshl_b32 s{sOp}, s{sT0}, 11
s_add_u32 s{sOp}, s{sOp}, {O_OFF}
s_lshl_b32 s{sOt}, s{sKap}, 15
s_add_u32 s{sOt}, s{sOt}, s{sOp}
v_mov_b32 v{vPd}, {0x3f80 if OPT["off"] else 0}
v_mov_b32 v{vPd+1}, 0
v_mov_b32 v{vPd+2}, {0x3f80 if OPT["off"] else 0}
v_mov_b32 v{vPd+3}, 0
s_add_u32 s{sFl}, s{sT1}, s{sw}
s_mul_i32 s{sFl}, s{sFl}, {FS}
s_lshl_b32 s{sT0}, s{sh}, {ES}
s_add_u32 s{sFl}, s{sFl}, s{sT0}
s_add_u32 s{sFl}, s{sFl}, {FLAG_OFF}
s_add_u32 s{sHo}, s{sFl}, {HINT}""")
LATE = lines(f"""s_lshl_b32 s{sPl}, s{sb}, 6
s_and_b32 s{sT1}, s{sw}, 3
s_add_u32 s{sPl}, s{sPl}, s{sT1}
s_mul_i32 s{sPl}, s{sPl}, {FS}
s_add_u32 s{sPl}, s{sPl}, {FLAG_OFF}
s_add_u32 s{sT0}, s{sj}, s{sKap}
s_and_b32 s{sT0}, s{sT0}, 7
s_lshl_b32 s{sRel}, s{sT0}, 15
s_lshl_b32 s{sT1}, s{sT1}, 12
s_add_u32 s{sRel}, s{sRel}, s{sT1}
v_bfe_u32 v{t3}, v{vLane}, 2, 2
v_lshl_add_u32 v{t3}, v{t3}, 1, s{sT0}
v_lshrrev_b32 v{t1}, 5, v{vLane}
v_add_u32 v{t3}, v{t3}, v{t1}
v_and_b32 v{t3}, 7, v{t3}
v_bfe_u32 v{t1}, v{vLane}, 4, 1
v_lshl_add_u32 v{t3}, v{t3}, 1, v{t1}
v_mul_u32_u24 v{t3}, {4*FS}, v{t3}
s_mul_i32 s{sT0}, s{sh}, 28
s_add_u32 s{sT1}, s{sT0}, 27
s_lshr_b32 s{sT0}, s{sT0}, 6
s_lshr_b32 s{sT1}, s{sT1}, 6
s_sub_u32 s{sT1}, s{sT1}, s{sT0}
v_and_b32 v{t0}, 1, v{vLane}
v_mul_u32_u24 v{t0}, s{sT1}, v{t0}
v_add_u32 v{t0}, s{sT0}, v{t0}
v_bfe_u32 v{t1}, v{vLane}, 1, 1
v_mad_u32_u24 v{t0}, v{t1}, 7, v{t0}
v_add_u32 v{t4}, 10, v{t0}
v_lshrrev_b32 v{t4}, 4, v{t4}
v_lshrrev_b32 v{t2}, 3, v{t0}
v_add3_u32 v{t0}, v{t0}, v{t4}, v{t2}
s_sub_u32 s{sT2}, s{sT1}, 1
s_and_b32 s{sT2}, s{sT2}, 0xaaaaaaaa
s_mov_b32 s{sT3}, s{sT2}
v_mad_u32_u24 v{t1}, v{t1}, 3, 6
v_cndmask_b32 v{t0}, v{t0}, v{t1}, s[{sT2}:{sT3}]
v_lshl_add_u32 v{vPl}, v{t0}, {ES}, v{t3}
s_lshl_b32 s{sKV}, s{sHH}, 18
s_add_u32 s{sKV}, s{sKV}, {KV_OFF}
s_mov_b32 s{sDone}, s{sKap}""")
LATE += lines(f"""s_mov_b32 s{sLo}, -1
s_mov_b32 s{sLo+1}, 0
s_mov_b32 s{sCs}, {hex(f2u(CSCALE))}
s_mov_b32 s{sCs+1}, {hex(f2u(CSCALE))}
s_and_b32 s{sT1}, s{sw}, 3
v_mov_b32 v{vIdx}, 0xdddddddd
s_or_b32 s{sT2}, s{sT1}, 1
s_add_u32 s{sT0}, s{sT1}, s{sT2}
s_lshl_b32 s{sT0}, s{sT0}, 11
s_add_u32 s{sT0}, s{sT0}, {XS+32768}
s_lshl_b32 s{sT2}, s{sT1}, 11
s_add_u32 s{sT2}, s{sT2}, {QOLD}
s_sub_u32 s{sT0}, s{sT0}, s{sT2}
s_mul_i32 s{sT0}, s{sT0}, s{sKap}
s_add_u32 s{sT0}, s{sT0}, s{sT2}
v_and_b32 v{t0}, 1, v{vLane}
v_lshlrev_b32 v{t0}, 4, v{t0}
v_bfe_u32 v{t1}, v{vLane}, 4, 1
v_lshl_add_u32 v{t0}, v{t1}, 3, v{t0}
v_bfe_u32 v{t1}, v{vLane}, 3, 1
v_lshl_add_u32 v{t0}, v{t1}, 1, v{t0}
v_bfe_u32 v{t1}, v{vLane}, 1, 1
v_add_u32 v{t0}, v{t0}, v{t1}
v_and_b32 v{t1}, 0x24, v{vLane}
v_add_u32 v{t0}, v{t0}, v{t1}
v_sub_u32 v{t0}, v{t0}, v{vLane}
v_mul_lo_u32 v{t0}, v{t0}, s{sRole}
v_add_u32 v{t0}, v{t0}, v{vLane}
v_lshl_add_u32 v{vQw}, v{t0}, 4, s{sT0}
s_lshr_b32 s{sT3}, s{sT1}, 1
s_and_b32 s{sT2}, s{sT1}, 1
s_add_u32 s{sT0}, s{sT3}, 12
s_lshl_b32 s{sT2}, s{sT2}, s{sT0}
s_mul_i32 s{sT3}, s{sT3}, {(XS+32768+2048-QOLD) & 0xffffffff}
s_add_u32 s{sT2}, s{sT2}, s{sT3}
s_add_u32 s{sT2}, s{sT2}, {QOLD}
s_lshl_b32 s{sT0}, s{sKap}, 11
s_sub_u32 s{sT3}, s{sT2}, s{sT0}
s_add_u32 s{sT2}, s{sT2}, s{sT0}
v_add_u32 v{vQr}, s{sT3}, v{vL16}
v_add_u32 v{vOs2}, s{sT2}, v{vL16}
s_lshl_b32 s{sT0}, s{sKap}, 14
v_add_u32 v{vBase}, s{sT0}, v{vL16}
v_add_u32 v{vCur}, 0x10000, v{vBase}
v_lshl_add_u32 v{vBk}, v{vLane}, 3, s{sT0}
v_add_u32 v{vTag2}, 0x10000, v{vBk}""")
L1, LATE = LATE, []
LATE += lines(f"""s_mov_b32 s{sWO+2}, {448*896}
s_mov_b32 s{sWO+3}, 0x20000
s_mov_b32 s{sOUT}, s20
s_mov_b32 s{sOUT+1}, s21
s_mov_b32 s{sOUT+2}, {2048*1792}
s_mov_b32 s{sOUT+3}, 0x20000
s_mov_b32 s{sChk}, {0 if OPT['force_slow'] else L_RANGE}
s_and_b32 s{sWoff}, s{sh}, 3
s_mul_i32 s{sWoff}, s{sWoff}, 224""")
LATE += lines(f"""s_lshl_b32 s{sT1}, s{sb}, 3
s_add_u32 s{sT1}, s{sT1}, s{sj}
s_lshl_b32 s{sT1}, s{sT1}, 3
s_lshr_b32 s{sT0}, s{sh}, 2
s_bfe_u32 s{sT2}, s{sw}, 0x10001
s_lshl_b32 s{sPc}, s{sT2}, 2
s_add_u32 s{sPc}, s{sPc}, s{sT0}
s_add_u32 s{sPc}, s{sPc}, s{sT1}
s_mul_i32 s{sPc}, s{sPc}, {FS}
s_add_u32 s{sPc}, s{sPc}, {FLAG_OFF + 64}
s_lshl_b32 s{sT3}, s{sT0}, 1
s_add_u32 s{sT3}, s{sT3}, s{sT2}
s_add_u32 s{sT3}, s{sT3}, s{sT1}
s_lshl_b32 s{sOin}, s{sT3}, 15
s_add_u32 s{sOin}, s{sOin}, {O_OFF}
s_and_b32 s{sT3}, s{sw}, 1
s_lshl_b32 s{sT3}, s{sT3}, 8
s_add_u32 s{sOin}, s{sOin}, s{sT3}
s_lshl_b32 s{sT3}, s{sKap}, 11
s_add_u32 s{sOin}, s{sOin}, s{sT3}""")
LATE += lines(f"""s_lshl_b32 s{sT1}, s{sj}, 2
s_add_u32 s{sT0}, s{sT0}, s{sT1}
s_lshl_b32 s{sT0}, s{sT0}, 2
s_and_b32 s{sT1}, s{sw}, 3
s_add_u32 s{sT0}, s{sT0}, s{sT1}
s_mul_i32 s{sOut}, s{sT0}, {16*1792}
s_mul_i32 s{sT0}, s{sb}, 896
s_add_u32 s{sOut}, s{sOut}, s{sT0}
s_add_u32 s{sOut}, s{sOut}, s{sWoff}
v_and_b32 v{t2}, 7, v{vLane}
s_add_u32 s{sT0}, s{sT1}, 5
s_lshl_b32 s{sT0}, s{sT0}, 13
s_and_b32 s{sT0}, s{sT0}, 0xffff
v_add_u32 v{vRw}, s{sT0}, v{vL16}
s_lshl_b32 s{sT2}, s{sT1}, 2
s_add_u32 s{sT2}, s{sT2}, {MISC}
v_mov_b32 v{vMf}, s{sT2}
s_mul_i32 s{sT2}, s{sT1}, 3072
s_add_u32 s{sT2}, s{sT2}, {SND}
v_add_u32 v{vSn}, s{sT2}, v{vL16}
v_lshrrev_b32 v{t1}, 3, v{vLane}
s_lshl_b32 s{sT2}, s{sKap}, 11
s_add_u32 s{sT0}, s{sT0}, s{sT2}
s_add_u32 s{sT0}, s{sT0}, 4096
v_xor_b32 v{t3}, v{t1}, v{t2}
v_lshlrev_b32 v{t3}, 4, v{t3}
v_lshl_add_u32 v{t3}, v{t1}, 7, v{t3}
v_add_u32 v{vTr}, s{sT0}, v{t3}
v_mul_u32_u24 v{t3}, 1792, v{t1}
v_lshl_add_u32 v{vOs}, v{t2}, 4, v{t3}
v_add_u32 v{t3}, 2, v{t2}
v_lshrrev_b32 v{t3}, 3, v{t3}
v_lshlrev_b32 v{t3}, 30, v{t3}
v_add_u32 v{t3}, 128, v{t3}
v_mul_lo_u32 v{t3}, v{t3}, s{sKap}
v_add_u32 v{vOs}, v{t3}, v{vOs}
v_and_b32 v{t0}, 15, v{vLane}
v_lshrrev_b32 v{t1}, 4, v{vLane}
v_lshrrev_b32 v{t3}, 1, v{t1}
v_xor_b32 v{t3}, v{t3}, v{t2}
v_lshlrev_b32 v{t3}, 4, v{t3}
v_lshl_add_u32 v{t3}, v{t0}, 7, v{t3}
v_and_b32 v{t4}, 1, v{t1}
v_lshl_add_u32 v{t3}, v{t4}, 3, v{t3}
v_add_u32 v{vTw}, s{sT0}, v{t3}
v_lshlrev_b32 v{vPc}, {ES}, v{t0}
v_lshlrev_b32 v{t2}, 12, v{t2}
v_add_u32 v{vLp}, {3*512+15*16}, v{t2}
v_lshlrev_b32 v{t2}, 9, v{t1}
v_lshl_add_u32 v{vOa}, v{t0}, 4, v{t2}""")
LATE += lines(f"""v_lshrrev_b32 v{t2}, 1, v{t1}
v_lshlrev_b32 v{t2}, 4, v{t2}
v_lshl_add_u32 v{t2}, v{t4}, 2, v{t2}
v_bfe_u32 v{t3}, v{vLane}, 2, 2
v_add_u32 v{t2}, v{t2}, v{t3}
v_mul_u32_u24 v{t2}, 224, v{t2}
v_and_b32 v{t3}, 3, v{vLane}
v_lshl_add_u32 v{t2}, v{t3}, 3, v{t2}
v_add_u32 v{t3}, 1, v{t1}
v_lshrrev_b32 v{t3}, 2, v{t3}
v_mul_u32_u24 v{t3}, {4*224}, v{t3}
v_sub_u32 v{t3}, v{t2}, v{t3}
s_mul_i32 s{sT0}, s{sKap}, 6272
s_add_u32 s{sT0}, s{sT0}, {WOB}
v_add_u32 v{vW0}, s{sT0}, v{t2}
s_add_u32 s{sT0}, s{sT0}, {8*224}
v_add_u32 v{vW1}, s{sT0}, v{t3}
s_mul_i32 s{sSp}, s{sKap}, {(WO15 - WOB - 6272 - 7*12544) & 0xffffffff}
s_add_u32 s{sSp}, s{sSp}, {7*12544}""")
LATE += lines(f"""v_mul_u32_u24 v{t2}, 0x4925, v{vLane}
v_lshrrev_b32 v{t2}, 18, v{t2}
v_mul_u32_u24 v{t3}, 14, v{t2}
v_sub_u32 v{t3}, v{vLane}, v{t3}
v_mul_u32_u24 v{t2}, 896, v{t2}
v_lshl_add_u32 v{vWod}, v{t3}, 4, v{t2}
s_mul_i32 s{sWn}, s{sw}, 3584
s_add_u32 s{sWn}, s{sWn}, s{sWoff}
s_mul_i32 s{sWm}, s{sw}, 896
s_add_u32 s{sWm13}, s{sWm}, {WO15-896}
s_max_u32 s{sT0}, s{sw}, 1
s_sub_u32 s{sT0}, s{sT0}, s{sw}
s_mul_i32 s{sT0}, s{sT0}, {WOB+104*896-(WO15-896)}
s_add_u32 s{sWm13}, s{sWm13}, s{sT0}""")
L2 = LATE
ENDS = lines(f"""s_mul_i32 s{sT2}, s{sLine}, {16*9363}
s_add_u32 s{sT3}, s{sT2}, {16*9363}
s_lshr_b32 s{sT2}, s{sT2}, 16
s_lshr_b32 s{sT3}, s{sT3}, 16
s_sub_u32 s{sT3}, s{sT3}, s{sT2}
s_lshl_b32 s{sT2}, s{sT2}, 18""")
FK = lines(f"""v_and_b32 v{t0}, 15, v{vLane}
v_lshlrev_b32 v{t0}, 4, v{t0}
v_bfe_u32 v{t1}, v{vLane}, 4, 1
v_lshrrev_b32 v{t4}, 5, v{vLane}
v_lshl_add_u32 v{t1}, v{t1}, 1, v{t4}
s_lshl_b32 s{sT0}, s{sLine}, 4
v_add_u32 v{t1}, s{sT0}, v{t1}""")
for i in range(4):
    FK += lines(f"""v_add_u32 v{t2}, {4*i}, v{t1}
    v_mul_u32_u24 v{t3}, 9363, v{t2}
    v_lshrrev_b32 v{t3}, 16, v{t3}
    v_lshl_add_u32 v{vSt[i]}, v{t3}, 18, v{t0}
    v_mul_u32_u24 v{t3}, 7, v{t3}
    v_sub_u32 v{t2}, v{t2}, v{t3}
    v_lshl_add_u32 v{vSt[i]}, v{t2}, 8, v{vSt[i]}""")
FK += ENDS + lines(f"""s_add_u32 s{sT2}, s{sT2}, {7*256}
v_lshrrev_b32 v{t1}, 4, v{vLane}
v_cmp_gt_u32 vcc, s{sT3}, v{t1}
v_lshl_add_u32 v{t0}, v{t1}, 18, v{t0}
v_add_u32 v{t0}, s{sT2}, v{t0}
v_mov_b32 v{t3}, {OOB}
v_cndmask_b32 v{vP[0]}, v{t3}, v{t0}, vcc""")
FV = lines(f"""v_and_b32 v{t0}, 31, v{vLane}
s_lshl_b32 s{sT0}, s{sLine}, 6
v_add_u32 v{t0}, s{sT0}, v{t0}
v_and_b32 v{t4}, 32, v{vLane}""")
for ct in range(2):
    FV += lines(f"""v_add_u32 v{t2}, {32*ct}, v{t0}
    v_mul_u32_u24 v{t3}, 2341, v{t2}
    v_lshrrev_b32 v{t3}, 16, v{t3}
    v_mul_u32_u24 v{t1}, 28, v{t3}
    v_sub_u32 v{t2}, v{t2}, v{t1}
    v_add_u32 v{t2}, v{t2}, v{t4}
    v_lshlrev_b32 v{t2}, 4, v{t2}
    v_lshl_add_u32 v{t2}, v{t3}, 18, v{t2}
    v_add_u32 v{vSt[2*ct]}, 2048, v{t2}
    v_add_u32 v{vSt[2*ct+1]}, 3072, v{t2}""")
FV += ENDS + lines(f"""s_add_u32 s{sT2}, s{sT2}, {2048+28*16}
v_lshrrev_b32 v{t0}, 4, v{vLane}
v_cmp_gt_u32 vcc, s{sT3}, v{t0}
v_bfe_u32 v{t1}, v{vLane}, 2, 2
v_lshlrev_b32 v{t1}, 9, v{t1}
v_lshl_add_u32 v{t1}, v{t0}, 18, v{t1}
v_and_b32 v{t2}, 3, v{vLane}
v_lshl_add_u32 v{t1}, v{t2}, 4, v{t1}
v_add_u32 v{t1}, s{sT2}, v{t1}
v_mov_b32 v{t3}, {OOB}
v_cndmask_b32 v{vP[0]}, v{t3}, v{t1}, vcc
v_cmp_eq_u32 vcc, 0, v{t2}
v_mov_b32 v{t3}, 0x3f803f80
s_nop 0
v_cndmask_b32 v{vPd}, 0, v{t3}, vcc
v_mov_b32 v{vPd+1}, v{vPd}
v_mov_b32 v{vPd+2}, v{vPd}
v_mov_b32 v{vPd+3}, v{vPd}""")


def st16(data, addr, soff, off=0):
    return (f"buffer_store_dwordx4 {v(data,4)}, v{addr}, s[{sWS}:{sWS+3}], s{soff} offen offset:{off} sc1", "ST")


def st8(data, addr, soff):
    return (f"buffer_store_dwordx2 {v(data,2)}, v{addr}, s[{sWS}:{sWS+3}], s{soff} offen sc1", "ST")


POS = [32768, 0, 65536]


def kv_addr(blk, t, off):
    p = POS[blk % 3] + t * 4096 + off
    return (vCur, p - 65536) if POS[blk % 3] >= 65536 else (vBase, p)


def kv_next(st):
    pos = POS[st % 3]
    return f"""s_add_u32 s{sRel}, s{sRel}, {0x14000 if st == 4 else 0x10000}
    s_and_b32 s{sRel}, s{sRel}, 0x3ffff
    s_add_u32 m0, s{sMX}, {pos}
    s_add_u32 s{sD0}, s{sRel}, s{sKV}"""


def kv_piece(i):
    return f"buffer_load_dwordx4 v{vL16}, s[{sWS}:{sWS+3}], s{sD0} offen offset:{1024*i}{['', ' sc1', ' nt', ' sc1 nt'][OPT.get('kvs', 1)]} lds"


def flag_text(second=False):
    return f"""s_mov_b64 exec, 1
    buffer_store_dword v{vTag}, v{vL16}, s[{sWS}:{sWS+3}], s{sFl} offen offset:{64 if second else 0} sc1
    s_mov_b64 exec, -1"""


def poll_text(mask):
    return f"""s_mov_b64 exec, {mask if mask < 64 else hex(mask)}
    buffer_load_dword v{vFl}, v{vPl}, s[{sWS}:{sWS+3}], s{sPl} offen sc1
    s_mov_b64 exec, -1"""


def poll_issue(mask=15):
    A(poll_text(mask))


ntry = [0]


def hook_try(level=2):
    ntry[0] += 1
    A(f"""s_cmp_ge_u32 s{sDone}, {level}
    s_cbranch_scc1 L_skip{ntry[0]}
    s_call_b64 s[{sRet}:{sRet+1}], L_try""")
    A.label(f"L_skip{ntry[0]}")


def spin(level, name):
    A(f"s_mov_b32 s{sSpin}, 0x40000")
    A.label(name)
    A(f"""s_cmp_ge_u32 s{sDone}, {level}
    s_cbranch_scc1 {name}_done
    s_call_b64 s[{sRet}:{sRet+1}], L_try
    s_sub_u32 s{sSpin}, s{sSpin}, 1
    s_cbranch_scc0 {name}""")
    A.label(name + "_done")


POLL0 = f"""s_mov_b32 exec_lo, 15
    s_mov_b32 exec_hi, 15
    buffer_load_dword v{vFl}, v{vPl}, s[{sWS}:{sWS+3}], s{sPl} offen sc1
    s_mov_b64 exec, -1"""
CALL_REST = f"s_call_b64 s[{sRet}:{sRet+1}], L_rest"
pqq = Wf + 16


class Stream:
    def __init__(self, role):
        self.role = role
        self.vm, self.lg = Cnt("vmcnt", 63), Cnt("lgkmcnt", 15)
        self.nkv = self.nq = 0

    def dma(self, p):
        A(p[0])
        self.vm.issue(p[1])

    def ds(self, text, tag):
        self.lg.room()
        A(text)
        self.lg.issue(tag)

    def xreads(self, c):
        return [(f"ds_read_b128 {v(Xr+16*c+4*st,4)}, v{vXa[st]} offset:{(c % 2) * 16384}", f"R{c}") for st in range(4)]

    def mk(self, kv=None, q=None):
        rd, mm, need = [], [], []
        tag = f"F{kv}_{q}"
        if kv is not None:
            b = Wf + 8 * (self.nkv % 3)
            self.nkv += 1
            for ct in range(2):
                for u in range(2):
                    rd.append((f"ds_read_b64_tr_b16 {v(b+4*ct+2*u,2)}, v{vWr[ct]} offset:{kv*2048+u*512}", tag))
                ac = [acc0, acc1][ct]
                wf, xf = v(b + 4 * ct, 4), v(Xr + 4 * kv, 4)
                a_, b_ = (wf, xf) if self.role == "K" else (xf, wf)
                mm.append(f"v_mfma_f32_32x32x16_bf16 {v(ac,16)}, {a_}, {b_}, {'0' if kv == 0 else v(ac,16)}")
            need.append(f"R{kv//4}")
        if q is not None:
            b = Wg + 4 * (self.nq % 3)
            self.nq += 1
            for u in range(2):
                rd.append((f"ds_read_b64_tr_b16 {v(b+2*u,2)}, v{vWqr} offset:{q*1024+u*256}", tag))
            mm.append(f"v_mfma_f32_32x32x16_bf16 {v(accQ,16)}, {v(b,4)}, {v(Xr+4*q,4)}, {'0' if q == 0 else v(accQ,16)}")
            need.append(f"R{q//4}")
        return dict(rd=rd, mm=mm, need=need + [tag], pre=[], xr=None, dma=[], post=[])

    def run(self, steps, fill=(), nf=0):
        fill = list(fill)
        for st in steps[:2]:
            for r in st["rd"]:
                self.ds(*r)
        for i, st in enumerate(steps):
            self.lg.wait(*st["need"])
            for f in st["pre"]:
                f()
            side = []
            if st["xr"] is not None:
                self.vm.wait(f"X{st['xr']}")
                side += self.xreads(st["xr"])
            if i + 2 < len(steps):
                side += steps[i + 2]["rd"]
            n = len(st["mm"])
            for k, m in enumerate(st["mm"]):
                A(m)
                for r in side[k * len(side) // n:(k + 1) * len(side) // n]:
                    self.ds(*r)
                for p in st["dma"][k * len(st["dma"]) // n:(k + 1) * len(st["dma"]) // n]:
                    self.dma(p)
                emit(fill, nf)
            for f in st["post"]:
                f()
        assert not fill

    def xplan(self, steps, first, c0, c1, lead):
        for c in range(c0, c1):
            i = first + 4 * (c - c0) - lead
            steps[i]["xr"] = c
            if c + 2 <= 6:
                steps[i + 1]["need"].append(f"R{c}")
                xp = x_pieces(c + 2)
                steps[i + 1]["dma"] += xp[:2]
                steps[i + 2]["dma"] += xp[2:]

    def pack(self, store):
        for ct in range(2):
            ac = [acc0, acc1][ct]
            pp = Wf + 8 * ct
            for r in range(8):
                A(f"v_cvt_pk_bf16_f32 v{pp+r}, v{ac+2*r}, v{ac+2*r+1}")
                if self.role == "V" and r % 4 == 3 and store:
                    self.dma(st16(pp + r - 3, vSt[2 * ct + r // 4], sKVt))
            if self.role == "K":
                for i in range(2):
                    A(f"v_permlane16_swap_b32 v{pp+4*i}, v{pp+4*i+2}")
                    A(f"v_permlane16_swap_b32 v{pp+4*i+1}, v{pp+4*i+3}")
                    if store:
                        self.dma(st16(pp + 4 * i, vSt[2 * ct + i], sKVt))

    def xonly(self):
        for c in range(7):
            self.vm.wait(f"X{c}")
            for r in self.xreads(c):
                self.ds(*r)
            self.lg.wait(f"R{c}")
            if c + 2 <= 6:
                for p in x_pieces(c + 2):
                    self.dma(p)


def bar():
    A("s_barrier")


def q_epilogue():
    for r in range(8):
        A(f"v_pk_mul_f32 {v(accQ+2*r,2)}, {v(accQ+2*r,2)}, s[{sCs}:{sCs+1}]")
    for r in range(8):
        A(f"v_cvt_pk_bf16_f32 v{pqq+r}, v{accQ+2*r}, v{accQ+2*r+1}")
    A(f"""v_mov_b32 v{t5}, {f2u(float(OPT["off"])) >> 16}
    v_cndmask_b32 v{pqq+7}, 0, v{pqq+7}, s[{sLo}:{sLo+1}]
    v_cndmask_b32 v{pqq+6}, v{t5}, v{pqq+6}, s[{sLo}:{sLo+1}]""")
    A(f"""ds_write_b128 v{vQw}, {v(pqq,4)}
    ds_write_b128 v{vQw}, {v(pqq+4,4)} offset:1024""")


NOST = [f"v_mov_b32 v{vSt[i]}, {OOB}" for i in range(4)]
ZO = [f"v_mov_b32 v{O[0]+r}, {hex(f2u(1.5 * 2.0 ** OPT['oz'])) if OPT.get('oz') else 0}" for r in range(32)]
NA, N1, CG = OPT["na"], OPT["n1"], OPT["cg"]


def older(role):
    S_ = Stream(role)
    S_.vm.issue("X0", 4)
    S_.vm.issue("X1", 4)
    if role == "N":
        A(flag_text())
        S_.vm.issue("FL")
        S_.xonly()
        bar()
        return
    if OPT["yp"]:
        A("s_setprio 2")
    S_.vm.wait("X0")
    for r in S_.xreads(0):
        S_.ds(*r)
    S_.lg.wait("R0")
    for p in x_pieces(2):
        S_.dma(p)
    ts(3, 2)
    bar()
    ts(4, 2)
    steps = [S_.mk(kv=g) for g in range(28)]
    S_.xplan(steps, 4, 1, 7, OPT["xl"])
    steps[4 * NA - 2]["pre"].append(bar)
    steps[OPT["padg"]]["dma"].append(st16(vPd, vP[0], sKVt))
    if CG < 28:
        steps[CG]["need"].append("R6")
        steps[CG]["pre"].append(bar)
    for c in range(7):
        steps[4 * c]["pre"].append(lambda c=c: ts(5 + c, 2))
    fill = {"K": FK, "V": FV}[role]
    S_.run(steps, fill, -(-len(fill) // 24))
    ts(2)
    ts(12, 2)
    S_.pack(True)
    ts(1)
    if CG == 28:
        bar()
    A("s_branch L_oq")


def younger(role):
    S_ = Stream(role)
    if role == "N":
        S_.vm.issue("X0", 4)
        S_.vm.issue("X1", 4)
        A(flag_text())
        S_.vm.issue("FL")
        for i in range(7):
            S_.dma(wq_piece(i))
        emit(list(REST), len(REST))
        emit(list(NOST), 4)
        S_.xonly()
        bar()
        steps = [S_.mk(q=g) for g in range(28)]
        first = 0
    else:
        S_.vm.q = list(LOADER_Q)
        wq = [wq_piece(i) for i in range(OPT["wqe"] + OPT["wqf"], 7)]
        S_.vm.wait("X0")
        for r in S_.xreads(0):
            S_.ds(*r)
        ts(6, 2)
        steps = [S_.mk(kv=g) for g in range(4 * N1)]
        for c in range(1, N1):
            steps[4 * c - 2]["xr"] = c
        k = 0
        for p in wq:
            steps[k // OPT["wqd"]]["dma"].append(p)
            k += 1
        fill = {"K": FK, "V": FV}[role]
        late = []
        for c in range(2, N1 + 2):
            if c < N1:
                steps[4 * (c - 2) + 1]["need"].append(f"R{c-2}")
                steps[4 * (c - 2) + 1]["dma"] = x_pieces(c) + steps[4 * (c - 2) + 1]["dma"]
            else:
                late += x_pieces(c)
        S_.run(steps, fill, -(-len(fill) // (8 * N1)))
        for p in late:
            S_.dma(p)
        ts(7, 2)
        S_.vm.wait("WQ")
        bar()
        ts(8, 2)
        if OPT["yp"]:
            A("s_setprio 1")
        steps = [S_.mk(q=g) for g in range(4 * N1)] + [S_.mk(kv=g, q=g) for g in range(4 * N1, 28)]
        S_.xplan(steps, 4 * N1, N1, 7, 2)
        steps[20]["dma"].append(st16(vPd, vP[0], sKVt))
    ts(3)
    steps[25]["post"].append(lambda: (poll_issue(0xffff), S_.vm.issue("PL")))
    fill = [] if role == "N" else [L1 + L2, list(L2), []][OPT['lf']]
    S_.run(steps, fill, -(-len(fill) // (3 * (24 - 4 * N1) + 4 * N1)))
    ts(2)
    ts(12, 2)
    q_epilogue()
    if role != "N":
        S_.pack(False)
    ts(11)
    A("""s_waitcnt lgkmcnt(0)
    s_branch L_b0""")


def loader():
    S_ = Stream("N")
    for it in range(NW0):
        S_.vm.issue(f"W{it}", 2)
    if OPT["tch"] == 2:
        A(TOUCH)
    if OPT["tch"]:
        S_.vm.issue("PF", 2)
    S_.vm.wait(f"W{NA-1}")
    ts(3, 2)
    bar()
    ts(4, 2)
    fill = [[], list(L1), L1 + L2][OPT['lf']]
    wq = [wq_piece(i) for i in range(7)]
    p1 = [p for it in range(NW0, 7) for p in w_pieces(it)] + wq[:OPT["wqe"]] + x_pieces(0) + x_pieces(1)
    p2 = wq[OPT["wqe"]:OPT["wqe"] + OPT["wqf"]]
    nb = OPT["nb"]
    ps = p1 + p2
    nf = -(-len(fill) // len(ps))
    for k, p in enumerate(ps):
        if k == nb:
            S_.vm.wait("W6")
            bar()
        S_.dma(p)
        emit(fill, nf)
    if nb >= len(ps):
        S_.vm.wait("W6")
        bar()
    ts(5, 2)
    return S_.vm.q


PRO, REST = EARLY + MID, L1 + L2
PRO += lines(f"""s_waitcnt lgkmcnt(0)
s_mul_i32 s{stag}, s{sE}, 0x9e3779b1
s_add_u32 s{stag}, s{stag}, 0x7f4a7c15
v_mov_b32 v{vTag}, s{stag}""")
emit(PRO, len(PRO))
ts(2, 2)
A(f"""s_cmp_eq_u32 s{sKap}, 0
s_cbranch_scc1 L_old
s_cmp_eq_u32 s{sNone}, 1
s_cbranch_scc1 L_yN""")
LOADER_Q = loader()
A(f"""s_cmp_eq_u32 s{sRole}, 1
s_cbranch_scc1 L_yV""")
younger("K")
A.label("L_yV")
younger("V")
A.label("L_yN")
younger("N")
A.label("L_old")
A(f"""s_cmp_eq_u32 s{sNone}, 1
s_cbranch_scc1 L_oN
s_cmp_eq_u32 s{sRole}, 1
s_cbranch_scc1 L_oV""")
older("K")
A.label("L_oV")
older("V")
A.label("L_oN")
older("N")
A.label("L_oq")
ts(3)
ts(13, 2)
emit(list(L1), len(L1))
emit(list(NOST), 4)
S_ = Stream("N")
steps = [S_.mk(q=g) for g in range(28)]


def oflag():
    A("s_waitcnt vmcnt(0)")
    A(flag_text())
    if OPT["yp"]:
        A("s_setprio 0")
    ts(4)


steps[OPT["fq"]]["pre"].append(oflag)
steps[OPT["pq"]]["post"].append(lambda: A(POLL0))
for g in range(OPT["pq"] + OPT["tq"], 28, OPT["tq"]):
    steps[g]["post"].append(lambda: hook_try(1))
S_.run(steps, L2, -(-len(L2) // 27))
q_epilogue()
ts(11)
spin(1, "L_spin0")
A("""s_waitcnt vmcnt(1) lgkmcnt(0)
s_branch L_b0""")
A.label("L_try")
A(f"""s_waitcnt vmcnt(0)
v_cmp_ne_u32 vcc, s{stag}, v{vFl}
s_or_b32 s{sD1}, vcc_lo, vcc_hi
s_and_b32 s{sD1}, s{sD1}, 15
s_cbranch_scc0 L_try0""")
A(POLL0)
A(f"s_setpc_b64 s[{sRet}:{sRet+1}]")
A.label("L_try0")
ts(5)
A(f"""s_add_u32 m0, s{sMX}, {POS[0]}
s_add_u32 s{sD0}, s{sRel}, s{sKV}""")
for i in range(4):
    A(kv_piece(i))
A(f"""s_add_u32 s{sD0}, s{sRel}, 0x8000
s_and_b32 s{sD0}, s{sD0}, 0x3ffff
s_add_u32 m0, s{sMX}, {POS[0]+16384}
s_add_u32 s{sD0}, s{sD0}, s{sKV}""")
for i in range(4):
    A(kv_piece(i))
A(f"s_mov_b32 s{sDone}, 1")
poll_issue(0xffff)
A(f"s_setpc_b64 s[{sRet}:{sRet+1}]")

A.label("L_b0")
for _ in range(OPT.get("idle", 0)):
    A("s_sleep 36")
A("s_barrier")
ts(12)
ts(1, 4)

A(f"""ds_read_b128 {v(Q[0],4)}, v{vQr} offset:2048
ds_read2st64_b64 {v(Kf[0],4)}, v{vBk} offset0:64 offset1:65
ds_read_b128 {v(Q[0]+4,4)}, v{vQr} offset:3072
ds_read2st64_b64 {v(Kf[0]+4,4)}, v{vBk} offset0:66 offset1:67
{chr(10).join(ZO[:OPT["z0"]])}
ds_read_b128 {v(Q[1],4)}, v{vOs2}
ds_read_b128 {v(Q[1]+4,4)}, v{vOs2} offset:1024
s_waitcnt lgkmcnt(4)
v_mfma_f32_32x32x16_bf16 {v(S[0],16)}, {v(Kf[0],4)}, {v(Q[0],4)}, {C0}
s_waitcnt lgkmcnt(2)
v_mfma_f32_32x32x16_bf16 {v(S[0],16)}, {v(Kf[0]+4,4)}, {v(Q[0]+4,4)}, {v(S[0],16)}
ds_read2st64_b64 {v(Kf[1],4)}, v{vBk} offset0:72 offset1:73
ds_read2st64_b64 {v(Kf[1]+4,4)}, v{vBk} offset0:74 offset1:75
ds_read_b128 {v(Vf[0],4)}, v{vBase} offset:34816
ds_read_b128 {v(Vf[0]+4,4)}, v{vBase} offset:35840
{chr(10).join(ZO[OPT["z0"]:])}
s_waitcnt lgkmcnt(4)""")

def wo_piece(r):
    m = f"s_mov_b32 m0, s{sWm13}" if r == 13 else f"s_add_u32 m0, s{sWm}, {WOB + 8*r*896}"
    return f"""{m}
    s_add_u32 s{sD1}, s{sWn}, {8*r*3584}
    buffer_load_dwordx4 v{vWod}, s[{sWO}:{sWO+3}], s{sD1} offen lds"""


EXTRA = {}
AFTER = {}


def extra(w_, sl, text):
    EXTRA.setdefault((w_, sl), []).append(text)


def window(W):
    blk, u = divmod(W, 8)
    un, up = u + 1, u - 1
    tn, qn = un // 2, un % 2
    tp, qp = up // 2, up % 2
    Sc, Sn, Sp = S[u % 4], S[un % 4], S[up % 4]
    Kn, Vp = Kf[tn % 2], Vf[tp % 2]
    if blk == 7 and OPT["reo"]:
        UN = {5: (3, 0), 6: (2, 1)}
        if un in UN:
            Kn, qn = Kf[UN[un][0] % 2], UN[un][1]
        if up in UN:
            Vp, qp = Vf[UN[up][0] % 2], UN[up][1]
        if u in (4, 6):
            A("s_waitcnt lgkmcnt(2)" if u == 4 else "s_waitcnt lgkmcnt(0)")
    h0, h1 = (4, 0) if OPT["hf"] else (0, 4)
    m = [f"v_mfma_f32_32x32x16_bf16 {v(Sn,16)}, {v(Kn+h0,4)}, {v(Q[qn]+h0,4)}, {C0}",
         f"v_mfma_f32_32x32x16_bf16 {v(Sn,16)}, {v(Kn+h1,4)}, {v(Q[qn]+h1,4)}, {v(Sn,16)}",
         f"v_smfmac_f32_32x32x32_bf16 {v(O[qp],16)}, {v(Vp,4)}, {v(Sp,8)}, v{vIdx}",
         f"v_smfmac_f32_32x32x32_bf16 {v(O[qp],16)}, {v(Vp+4,4)}, {v(Sp+8,8)}, v{vIdx}"]
    if W == 0:
        m[2] = m[3] = None
    if W == 63:
        m = [m[2], None, m[3], None]
    if W == 62 and OPT["reo"] == 2:
        m = [m[0], m[2], m[1], m[3]]
    mem = [[], [], [], []]
    pre = [[], [], [], []]

    def rd(dst, T, off):
        if off < 2048 and not OPT.get('kb128'):
            o = (POS[(blk + T // 4) % 3] + (T % 4) * 4096 + off) // 512
            if OPT.get("k64"):
                a, oo = (vBk, o * 512) if o < 128 else (vTag2, o * 512 - 65536)
                return f"ds_read_b64 {v(dst,2)}, v{a} offset:{oo}\nds_read_b64 {v(dst+2,2)}, v{a} offset:{oo+512}"
            return f"ds_read2st64_b64 {v(dst,4)}, v{vBk} offset0:{o} offset1:{o+1}"
        a, o = kv_addr(blk + T // 4, T % 4, off)
        return f"ds_read_b128 {v(dst,4)}, v{a} offset:{o}"
    if u % 2 == 1:
        if not (u == 5 and (blk > 0 or OPT["b0"])):
            A("s_waitcnt lgkmcnt(0)")
        tt = tn
        Kd, Vd = Kf[(tt + 1) % 2], Vf[tt % 2]
        rk = [rd(Kd, tt + 1, 0), rd(Kd + 4, tt + 1, 1024)]
        rv = [rd(Vd, tt, 2048), rd(Vd + 4, tt, 3072)]
        if W == 61 or (W == 5 and not OPT['b0']):
            mem[0 if W == 61 else 2].append(rv[0])
            mem[1 if W == 61 else 3].append(rv[1])
        elif W == 63:
            pass
        elif W == 7 and not OPT['b0']:
            A(rd(Kn, 4, 0))
            A(rd(Kn + 4, 4, 1024))
            m = [m[2], m[3], m[0], m[1]]
            mem[0] += [rk[0], rk[1]]
            mem[1] += [rv[0], rv[1]]
            pre[2].append("s_waitcnt lgkmcnt(4)")
        else:
            RS_ = [[0, 1, 2, 3], [2, 2, 3, 3], [0, 0, 1, 1], [2, 3, 0, 1]][OPT.get("rsl", 0)]
            order = sorted(range(4), key=lambda k: RS_[k])
            for k in range(4):
                mem[RS_[k]].append((rk + rv)[k])
    for q in range(4):
        for x in pre[q]:
            A(x)
        if m[q]:
            A(m[q])
        for x in mem[q] + (EXTRA.get((W, q), []) if not (OPT.get("nodma") and 23 <= W < 53) else []):
            A(x)
        for e in range(4):
            A(f"v_exp_f32 v{Sc+4*q+e}, v{Sc+4*q+e}")
    for hk in AFTER.get(W, []):
        hk()


def mk_bar(n):
    def f():
        A(f"""s_waitcnt vmcnt({n}) lgkmcnt(0)""")
        if not OPT.get("nobar"):
            A("s_barrier")
    return f


def check_text(reg, mask, name):
    return f"""v_cmp_ne_u32 vcc, s{stag}, v{reg}
    s_and_b32 s{sD1}, vcc_lo, {mask}
    s_cbranch_scc1 {name}
    {name}_done:"""


PUB = [st16(Wf + 4 * i, vSt[i], sKVt)[0] for i in range(4)]
if OPT["b0"]:
    extra(0, 2, "s_waitcnt vmcnt(0)\n" + check_text(vFl, "0xffff", "L_polll"))
    extra(0, 3, kv_next(1) + "\n" + kv_piece(0))
    for i in range(1, 4):
        extra(1, i - 1, kv_piece(i))
    for i in range(4):
        extra(2, i, PUB[i])
    AFTER.setdefault(4, []).append(mk_bar(4))
    AFTER[4].append(lambda: ts(6))
    extra(6, 0, "s_waitcnt vmcnt(0)\n" + flag_text())
    extra(6, 1, kv_next(2) + "\n" + kv_piece(0))
    extra(6, 3, kv_piece(1))
    extra(8, 0, kv_piece(2))
    extra(8, 2, kv_piece(3))
else:
    for i in range(4):
        extra(i // 2, [1, 3][i % 2], PUB[i])
    extra(2, 0, "s_waitcnt vmcnt(4)\n" + check_text(vFl, "0xffff", "L_polll"))
    extra(2, 1, kv_next(1) + "\n" + kv_piece(0))
    extra(2, 3, kv_piece(1))
    extra(3, 1, kv_piece(2))
    extra(3, 3, kv_piece(3))
    AFTER.setdefault(6, []).append(lambda: (A("s_waitcnt vmcnt(0)\ns_barrier"), ts(6)))
    extra(7, 2, kv_next(2) + "\n" + kv_piece(0))
    extra(7, 3, kv_piece(1))
    extra(8, 1, kv_piece(2))
    extra(8, 3, kv_piece(3))
    extra(8, 0, flag_text())
extra(9, 1, "\n".join(f"v_mov_b32 v{vOnes+r}, -1" for r in range(4)))
extra(40, 1, f"""v_lshrrev_b32 v{t0}, 2, v{vL16}
v_and_b32 v{t0}, 60, v{t0}
v_add_u32 v{t0}, {MISC}, v{t0}
v_mov_b32 v{t1}, 0
ds_write_b32 v{t0}, v{t1}""")
extra(10, 0, st16(vOnes, vL16, sOt)[0])
extra(10, 2, st16(vOnes, vL16, sOt, 1024)[0])
extra(30, 1, flag_text(True))
extra(17, 1, poll_text(0x7fff0000).replace("0x7fff0000", "0xffff0000"))


extra(21, 2, check_text(vFl, "0xffff0000", "L_pollh"))
if OPT.get("tou"):
    extra(36, 1, f"buffer_load_dword v{t2}, v{vOs}, s[{sOUT}:{sOUT+3}], s{sOut} offen")
    extra(28, 1, f"s_add_u32 s{sT1}, s{sOut}, {8*1792}\nbuffer_load_dword v{t2}, v{vOs}, s[{sOUT}:{sOUT+3}], s{sT1} offen")
wo_early = list(range(5, 13))
for i in range(1, 8):
    nwo = 2 if i == 1 else 0
    if i >= 2 and wo_early:
        for sl in (0, 2):
            extra(8 * i + 2, sl, wo_piece(wo_early.pop(0)))
            nwo += 1
    if OPT.get("tou") and i in (3, 4):
        nwo += 1
    AFTER.setdefault(8 * i + 4, []).append(mk_bar(nwo))
    if i <= 5:
        DS_ = [[(6, 0), (6, 2), (8, 0), (8, 2)], [(6, 2), (6, 3), (8, 2), (8, 3)], [(6, 0), (6, 1), (8, 0), (8, 1)],
               [(6, 1), (6, 3), (8, 1), (8, 3)], [(6, 0), (6, 1), (6, 2), (6, 3)]][OPT.get("dsl", 0)]
        extra(8 * i + DS_[0][0], DS_[0][1], kv_next(i + 2) + "\n" + kv_piece(0))
        for k in range(1, 4):
            extra(8 * i + DS_[k][0], DS_[k][1], kv_piece(k))
assert not wo_early
for k, r in enumerate([0, 1, 2, 3, 4, 13]):
    extra([54, 54, 55, 56, 56, 57][k], [0, 2, 1, 0, 2, 1][k], wo_piece(r))
extra(50, 0, f"buffer_load_dword v{vQm}, v{vPc}, s[{sWS}:{sWS+3}], s{sPc} offen sc1")
extra(58, 0, check_text(vQm, "0xffff", "L_pollc"))
extra(58, 2, f"""s_or_b32 s{sT0}, s{sh}, s{sj}
    s_or_b32 s{sT0}, s{sT0}, s{sw}
    s_cbranch_scc0 L_epoch
    L_epd:""")
sTk, sAv = sTodo, sRem


def oload(l):
    return f"""s_add_u32 s{sT0}, s{sOin}, {l*4096}
    buffer_load_dwordx4 {v(Of+4*l,4)}, v{vOa}, s[{sWS}:{sWS+3}], s{sT0} offen sc1"""


def cload(l):
    return f"""s_bitcmp1_b32 s{sAv}, {l}
    s_cselect_b64 exec, -1, 0
    {oload(l)}"""


POLL = f"""s_andn2_b32 exec_lo, 0xff, s{sTk}
    s_mov_b32 exec_hi, 0
    buffer_load_dword v{vQm}, v{vLp}, s[{sWS}:{sWS+3}], s{sOin} offen sc1
    s_mov_b64 exec, -1"""
SENDL = [f"ds_write_b128 v{vQw}, {v(O[0]+4*i,4)} offset:{1024*i}" for i in range(4)] + [f"ds_write_b32 v{vOs2}, v{t4}"]
SEND = "\n".join(SENDL)
if OPT["reo"]:
    extra(63, 2, SEND)
extra(44, 1, f"""s_lshl_b32 s{sT0}, s{sKap}, 12
    v_add_u32 v{vQw}, s{sT0}, v{vRw}
    v_xor_b32 v{vQr}, 0x1000, v{vQw}
    s_mul_i32 s{sT0}, s{sKap}, 48
    v_add_u32 v{vOs2}, s{sT0}, v{vMf}
    v_xor_b32 v{vPl}, 48, v{vOs2}
    v_mov_b32 v{t4}, 1""")
for (ww, sl, pr) in [[(61, 0, 3), (62, 0, 2), (63, 0, 1), (63, 2, 0)], [(61, 0, 3), (62, 2, 2), (63, 2, 1)],
                     [(61, 0, 1), (63, 0, 0)]][OPT["lseg"]]:
    extra(ww, sl, f"s_setprio {pr}")
PSEG = {1: [(0, 0, 3), (3, 0, 2), (6, 0, 1), (7, 2, 0)], 2: [(0, 0, 3), (4, 0, 2), (6, 2, 1), (7, 3, 0)],
        3: [(0, 0, 1), (7, 2, 0)], 4: [(0, 0, 3), (2, 0, 2), (4, 0, 1), (6, 0, 0)], 5: [(0, 0, 1), (7, 0, 0)],
        6: [(0, 0, 2), (5, 0, 1), (7, 2, 0)]}
if OPT.get("pseg"):
    for (ww, sl, pr) in ([(0, 0, 3), (2, 0, 2), (3, 2, 1), (4, 3, 0)] if OPT["b0"] else
                         [(0, 0, 3), (3, 0, 2), (5, 2, 1), (6, 3, 0), (7, 0, 3), (9, 0, 2), (11, 2, 1), (12, 3, 0)]):
        EXTRA.setdefault((ww, sl), []).insert(0, f"s_setprio {pr}")
    for i in range(0 if OPT["b0"] else 1, 7):
        for (dw, sl, pr) in PSEG[OPT["pseg"]]:
            EXTRA.setdefault((8 * i + 5 + dw, sl), []).insert(0, f"s_setprio {pr}")
if OPT.get("prio"):
    A(f"""s_cmp_eq_u32 s{sKap}, {OPT["prio"] & 1}
    s_cbranch_scc0 L_np
    s_setprio 1""")
    A.label("L_np")
for W in range(64):
    TW = [0, 1, 3, 5, 7, 13, 21, 29, 37, 45, 53, 61] if not OPT.get("tw") else [16, 56]
    if OPT.get("al") and W % OPT["al"] == 0:
        A(".p2align 3")
    if W in TW:
        ts(2 + TW.index(W), 4)
    window(W)
A(f"""s_nop 0
v_smfmac_f32_32x32x32_bf16 {v(O[1],16)}, {v(Vf[1],4)}, {v(S[3],8)}, v{vIdx}
v_smfmac_f32_32x32x32_bf16 {v(O[1],16)}, {v(Vf[1]+4,4)}, {v(S[3]+8,8)}, v{vIdx}""")
ts(7)
ts(14, 4)

R = S[0]
if not OPT["reo"]:
    A(SEND)
A(f"s_mov_b32 s{sSpin}, 0x400000")
A.label("L_mwait")
A(f"ds_read_b32 v{t2}, v{vPl}")
for i in (3, 0, 1, 2):
    A(f"ds_read_b128 {v(R+4*i,4)}, v{vQr} offset:{1024*i}")
A(f"""s_sub_u32 s{sSpin}, s{sSpin}, 1
s_cbranch_scc1 L_mgo
s_waitcnt lgkmcnt(4)
v_readfirstlane_b32 s{sT0}, v{t2}
s_cmp_eq_u32 s{sT0}, 0
s_cbranch_scc1 L_mspin""")
A.label("L_mgo")
Ob = O[1]
rc = vFl
A(f"""s_waitcnt lgkmcnt(3)
v_pk_add_f32 {v(Ob+12,2)}, {v(Ob+12,2)}, {v(R+12,2)}
v_pk_add_f32 {v(Ob+14,2)}, {v(Ob+14,2)}, {v(R+14,2)}""")
A.label("L_norm")
A(f"""v_mov_b32 v{t0}, v{Ob+12}
v_mov_b32 v{rc}, v{Ob+12}
s_waitcnt lgkmcnt(0)
v_pk_add_f32 {v(Ob,2)}, {v(Ob,2)}, {v(R,2)}
v_permlane32_swap_b32 v{t0}, v{rc}
v_pk_add_f32 {v(Ob+2,2)}, {v(Ob+2,2)}, {v(R+2,2)}
v_subrev_u32 v{t0}, {hex(L_LO)}, v{rc}
v_rcp_f32 v{rc}, v{rc}
v_cmp_lt_u32 vcc, s{sChk}, v{t0}""")
for r in range(4, 12, 2):
    A(f"v_pk_add_f32 {v(Ob+r,2)}, {v(Ob+r,2)}, {v(R+r,2)}")
A("""s_cmp_lg_u64 vcc, 0
s_cbranch_scc1 L_slow""")
for f in range(2):
    for r in range(8 * f, 8 * f + 8, 2):
        A(f"v_pk_mul_f32 {v(Ob+r,2)}, {v(Ob+r,2)}, {v(rc,2)} op_sel_hi:[1,0]")
    for r in range(4 * f, 4 * f + 4):
        A(f"v_cvt_pk_bf16_f32 v{pk+r}, v{Ob+2*r}, v{Ob+2*r+1}")
    if f:
        for r in (6, 7):
            A(f"v_cndmask_b32 v{pk+r}, 0, v{pk+r}, s[{sLo}:{sLo+1}]")
    for r in range(4 * f, 4 * f + 4):
        A(f"v_min_u32 v{pk+r}, -2, v{pk+r}")
    A(f"buffer_store_dwordx4 {v(pk+4*f,4)}, v{vL16}, s[{sWS}:{sWS+3}], s{sOt} offen offset:{1024*f} sc1")
A("s_setprio 0")
ts(8)

TILES = list(range(O[0], Of, 4)) + [DEAD, DEAD + 4]
assert len(TILES) >= 42
rx = S[2]
pk2, rb = Q[0], Q[1]
sOk = sDone
OOL = []


def wtile(l, ct):
    return TILES[7 * (l % 6) + ct]


def wtext(l, ct):
    a0, a1, off = (vW0, vW1, l * 12544) if l < 6 else (t1, t2, 0) if l == 6 else (t3, t4, 0)
    d = wtile(l, ct)
    return f"""ds_read_b64_tr_b16 {v(d,2)}, v{a0} offset:{off+32*ct}
    ds_read_b64_tr_b16 {v(d+2,2)}, v{a1} offset:{off+32*ct}"""


A.label("L_p3e")
if OPT["ts"] == 5:
    A("s_mov_b32 s11, 1")
tsd(0)
A(f"s_mov_b32 s{sSpin}, 0x40000")
sSl = 14
vXw = [vTw, vLane, vIdx, t5]
for l in range(8):
    A(f"s_add_u32 s{sSl+l}, s{sOin}, {4096*l}")
A.label("L_p3r")
A(f"""s_mov_b32 s{sTk}, 0
v_add_u32 v{t1}, {6*12544}, v{vW0}
v_add_u32 v{t2}, {6*12544}, v{vW1}
v_add_u32 v{t3}, s{sSp}, v{vW0}
v_add_u32 v{t4}, s{sSp}, v{vW1}
s_waitcnt lgkmcnt(0)""")
for i in range(42):
    if i >= 6 and i % 3 == 0:
        A("s_waitcnt lgkmcnt(8)")
    if i == OPT["pp"]:
        A(POLL)
    A(wtext(i // 7, i % 7))
tsd(1)
A("s_branch L_w1")
A.label("L_w0")
if OPT.get("slp"):
    A(f"s_sleep {OPT['slp']}")
A(POLL)
A.label("L_w1")
A(f"""s_sub_u32 s{sSpin}, s{sSpin}, 1
s_cselect_b32 s{sT0}, 0xff, 0
s_cselect_b32 s{sSpin}, 0, s{sSpin}
s_waitcnt vmcnt(0)
v_cmp_ne_u32 vcc, -1, v{vQm}
s_or_b32 s{sTk}, vcc_lo, s{sT0}
s_andn2_b32 s{sT0}, 0xff, s{sTk}
s_cbranch_scc1 L_w0""")
tsd(9)
for l in range(8):
    A(f"buffer_load_dwordx4 {v(Of+4*l,4)}, v{vOa}, s[{sWS}:{sWS+3}], s{sSl+l} offen sc1")
tsd(7)
A(f"""v_mov_b32 v{vFl}, 1
s_add_u32 s{sT1}, s{sOut}, {8*1792}""")
for ct in range(1, 4):
    A(f"v_xor_b32 v{vXw[ct]}, {32*ct}, v{vTw}")
ORD = [0, 2, 1, 3, 4, 5, 6, 7]
for k, l in enumerate(ORD):
    b0 = Of + 4 * l
    A(f"s_waitcnt vmcnt({7-max(ORD[:k+1])})" + (" lgkmcnt(0)" if l in (0, 1, 6) else ""))
    if k == 0:
        tsd(2)
    for ct in range(7):
        A(f"v_mfma_f32_16x16x32_bf16 {v(acc+4*ct,4)}, {v(wtile(l,ct),4)}, {v(b0,4)}, {'0' if k == 0 else v(acc+4*ct,4)}")
        if l < 2:
            A(wtext(6 + l, ct))
        if ct == 1:
            A(f"v_max3_u32 v{t0}, v{b0}, v{b0+1}, {'0' if k == 0 else f'v{t0}'}")
        if ct == 3:
            A(f"v_max3_u32 v{t0}, v{b0+2}, v{b0+3}, v{t0}")
        if ct == 5 and k == 7:
            A(f"v_cmp_eq_u32 vcc, -1, v{t0}")
A(f"""s_cmp_lg_u64 vcc, 0
s_cbranch_scc1 L_redo""")
A.label("L_good")
OOL.append(f"""L_redo:
s_sub_u32 s{sSpin}, s{sSpin}, 1
s_cbranch_scc0 L_p3r
s_branch L_good""")
tsd(3)
ts(9)
tsa(8)


XS_ = [f"""L_xsk{kap}:
    s_sleep {OPT.get("xs", 1)}
    ds_read_b32 v{t0}, v{vMf} offset:{32-16*kap}
    s_sub_u32 s{sSpin}, s{sSpin}, 1
    s_waitcnt lgkmcnt(0)
    s_cbranch_scc1 L_yk{kap}
    v_readfirstlane_b32 s{sT0}, v{t0}
    s_cmp_eq_u32 s{sT0}, 0
    s_cbranch_scc1 L_xsk{kap}
    s_branch L_xk{kap}""" for kap in (1, 0)]


def p3(kap):
    n = f"k{kap}"
    keep = [0, 1, 2, 3] if kap == 0 else [4, 5, 6]
    send = [4, 5, 6] if kap == 0 else [0, 1, 2, 3]
    wa_, ra_ = (vSn, vRw) if kap == 0 else (vRw, vSn)
    A(f"s_mov_b32 s{sSpin}, 0x400000")
    for i, ct in enumerate(send):
        A(f"ds_write_b128 v{wa_}, {v(acc+4*ct,4)} offset:{1024*i}")
    A(f"ds_write_b32 v{vMf}, v{vFl} offset:{16+16*kap}")
    A.label(f"L_x{n}")
    A(f"ds_read_b32 v{t0}, v{vMf} offset:{32-16*kap}")
    for i in range(len(keep)):
        A(f"ds_read_b128 {v(rx+4*i,4)}, v{ra_} offset:{1024*i}")
    A(f"""s_sub_u32 s{sSpin}, s{sSpin}, 1
    s_cbranch_scc1 L_y{n}
    s_waitcnt lgkmcnt({len(keep)})
    v_readfirstlane_b32 s{sT0}, v{t0}
    s_cmp_eq_u32 s{sT0}, 0
    s_cbranch_scc1 L_xs{n}""")
    A.label(f"L_y{n}")
    tsd(4)
    tsa(9)
    wa = vXw
    for i, ct in enumerate(keep):
        A(f"""s_waitcnt lgkmcnt({len(keep)-1})
        v_pk_add_f32 {v(acc+4*ct,2)}, {v(acc+4*ct,2)}, {v(rx+4*i,2)}
        v_pk_add_f32 {v(acc+4*ct+2,2)}, {v(acc+4*ct+2,2)}, {v(rx+4*i+2,2)}
        v_cvt_pk_bf16_f32 v{pk2+2*i}, v{acc+4*ct}, v{acc+4*ct+1}
        v_cvt_pk_bf16_f32 v{pk2+2*i+1}, v{acc+4*ct+2}, v{acc+4*ct+3}
        ds_write_b64 v{wa[i]}, {v(pk2+2*i,2)}""")
    os_ = vOs
    A(f"""ds_read_b128 {v(rb,4)}, v{vTr}
    ds_read_b128 {v(rb+4,4)}, v{vTr} offset:1024
    s_waitcnt lgkmcnt(1)
    buffer_store_dwordx4 {v(rb,4)}, v{os_}, s[{sOUT}:{sOUT+3}], s{sOut} offen{OSC}
    s_waitcnt lgkmcnt(0)
    buffer_store_dwordx4 {v(rb+4,4)}, v{os_}, s[{sOUT}:{sOUT+3}], s{sT1} offen{OSC}""")


assert Vf[1] == Kf[0] + 24 and O[1] == O[0] + 16
A(f"""s_cmp_eq_u32 s{sKap}, 0
s_cbranch_scc1 L_x0""")
p3(1)
A("s_branch L_noep" if OPT["ts"] or OPT.get("padto") else "s_endpgm")
for x in XS_:
    A(x)
A(f"""L_mspin:
ds_read_b32 v{t2}, v{vPl}
s_sub_u32 s{sSpin}, s{sSpin}, 1
s_waitcnt lgkmcnt(0)
s_cbranch_scc1 L_mgo
v_readfirstlane_b32 s{sT0}, v{t2}
s_cmp_eq_u32 s{sT0}, 0
s_cbranch_scc1 L_mspin
s_branch L_mwait""")
A.label("L_x0")
p3(0)
A.label("L_noep")
if OPT.get("padto"):
    A.label("L_pad")
    A(f"""s_sleep 4
    s_memrealtime s[{sRet}:{sRet+1}]
    s_waitcnt lgkmcnt(0)
    s_sub_u32 s{sT0}, s{sRet}, s{sTS}
    s_cmp_lt_u32 s{sT0}, {OPT["padto"]}
    s_cbranch_scc1 L_pad""")
tsd(5)
tsa(10)
if OPT["ts"] == 6:
    A("s_waitcnt lgkmcnt(0)")
    for i, r in enumerate(ASR):
        A(f"v_writelane_b32 v{vTS}, s{r}, {i+1}")
    A(f"""s_sub_u32 s{sRem}, 0x7fffffff, s{sRem}
    v_writelane_b32 v{vTS}, s{sRem}, 13
    v_writelane_b32 v{vTS}, s19, 14""")
if OPT["ts"]:
    A("s_waitcnt vmcnt(0)")
    ts(10)
    tsd(6)
    ts(12, 6)
    A(f"""s_lshl_b32 s{sT0}, s2, 3
    s_add_u32 s{sT0}, s{sT0}, s{sw}
    s_lshl_b32 s{sT0}, s{sT0}, {8 if OPT["ts"] == 5 else 6}
    s_add_u32 s{sT0}, s{sT0}, {TS_OFF}
    s_getreg_b32 s{sT1}, hwreg(HW_REG_XCC_ID)
    {"s_nop 0" if OPT["ts"] == 5 else f"v_writelane_b32 v{vTS}, s{sT1}, 15"}
    v_lshrrev_b32 v{t0}, 2, v{vL16}
    s_mov_b64 exec, {-1 if OPT["ts"] == 5 else "0xffff"}
    buffer_store_dword v{vTS}, v{t0}, s[{sWS}:{sWS+3}], s{sT0} offen""")
    if OPT.get("dbg"):
        A(f"""v_readlane_b32 s{sT0}, v{vTS}, 0
        s_not_b32 s{sT0}, s{sT0}
        v_writelane_b32 v{vTS}, s{sT0}, 15
        s_mov_b32 s{sX}, s22
        s_mov_b32 s{sX+1}, s23
        s_mov_b32 s{sX+2}, 256
        buffer_atomic_umax v{vTS}, v{t0}, s[{sX}:{sX+3}], 0 offen""")
A.label("L_end")
A("s_endpgm")

for x in OOL:
    A(x)
A.label("L_epoch")
A(f"""s_add_u32 s{sE}, s{sE}, 1
s_lshl_b32 s{sT0}, s{sb}, 8
s_add_u32 s{sT0}, s{sT0}, {EPOCH_OFF}
v_mov_b32 v{t1}, s{sE}
s_mov_b64 exec, 1
buffer_store_dword v{t1}, v{vL16}, s[{sWS}:{sWS+3}], s{sT0} offen sc1
s_mov_b64 exec, -1
s_branch L_epd""")

for name, load, reg, mask in (
        ("L_pollc", f"buffer_load_dword v{vQm}, v{vPc}, s[{sWS}:{sWS+3}], s{sPc} offen sc1", vQm, "0xffff"),
        ("L_polll", poll_text(0xffff), vFl, "0xffff"),
        ("L_pollh", poll_text(0x7fff0000).replace('0x7fff0000', '0xffff0000'), vFl, "0xffff0000")):
    A(f"""{name}:
    s_mov_b32 s{sSpin}, 0x40000
    {name}1:
    {load}
    s_sub_u32 s{sSpin}, s{sSpin}, 1
    s_cbranch_scc1 {name}_done
    s_waitcnt vmcnt(0)
    v_cmp_ne_u32 vcc, s{stag}, v{reg}
    s_and_b32 s{sD1}, vcc_lo, {mask}
    s_cbranch_scc1 {name}1
    s_branch {name}_done""")

A.label("L_slow")
Sx, vMn, vAl, vM = S[2], t2, t3, t4
A(f"""s_mov_b32 s{sChk}, -1
v_lshlrev_b32 v{vBk}, 3, v{vLane}
v_mov_b32 v{vM}, 0xff7fffff
s_mov_b32 s{sT0}, s{sKV}
s_mov_b32 s{sI}, 0""")
for r in range(16):
    A(f"v_mov_b32 v{Ob+r}, 0")
    A(f"v_mov_b32 v{R+r}, 0")
A.label("L_slow_t")
for i in range(4):
    A(f"buffer_load_dwordx2 {v(Kf[0]+2*i,2)}, v{vBk}, s[{sWS}:{sWS+3}], s{sT0} offen offset:{512*i} sc1")
A(f"""buffer_load_dwordx4 {v(Vf[0],4)}, v{vL16}, s[{sWS}:{sWS+3}], s{sT0} offen offset:2048 sc1
buffer_load_dwordx4 {v(Vf[0]+4,4)}, v{vL16}, s[{sWS}:{sWS+3}], s{sT0} offen offset:3072 sc1
s_add_u32 s{sT0}, s{sT0}, 4096
s_waitcnt vmcnt(0)
v_mfma_f32_32x32x16_bf16 {v(Sx,16)}, {v(Kf[0],4)}, {v(Q[1],4)}, 0
v_mfma_f32_32x32x16_bf16 {v(Sx,16)}, {v(Kf[0]+4,4)}, {v(Q[1]+4,4)}, {v(Sx,16)}
v_max3_f32 v{t0}, v{Sx}, v{Sx+1}, v{vM}""")
for r in range(2, 16, 2):
    A(f"v_max3_f32 v{t0}, v{Sx+r}, v{Sx+r+1}, v{t0}")
A(f"""v_mov_b32 v{t1}, v{t0}
v_permlane32_swap_b32 v{t0}, v{t1}
v_max_f32 v{vMn}, v{t0}, v{t1}
v_sub_f32 v{vAl}, v{vM}, v{vMn}
v_exp_f32 v{vAl}, v{vAl}
v_mov_b32 v{vM}, v{vMn}""")
for r in range(16):
    A(f"v_sub_f32 v{Sx+r}, v{Sx+r}, v{vMn}")
for r in range(16):
    A(f"v_exp_f32 v{Sx+r}, v{Sx+r}")
for r in range(16):
    A(f"v_mul_f32 v{Ob+r}, v{vAl}, v{Ob+r}")
A(f"""v_smfmac_f32_32x32x32_bf16 {v(Ob,16)}, {v(Vf[0],4)}, {v(Sx,8)}, v{vIdx}
v_smfmac_f32_32x32x32_bf16 {v(Ob,16)}, {v(Vf[0]+4,4)}, {v(Sx+8,8)}, v{vIdx}
s_add_u32 s{sI}, s{sI}, 1
s_cmp_lt_u32 s{sI}, 64
s_cbranch_scc1 L_slow_t
s_nop 11
s_branch L_norm""")

n = A.fix_hazards(verbose=bool(OPT.get("v", 0)))
NV = -(-V.hi // 8) * 8
hdr = open("cdna_kernels/" + NAME + ".s.ref").read().split("; Override launch")[0]
out = hdr + f"""; Fused kernel: QKV projection -> softmax attention -> output projection, one workgroup per
; (branch, head, 256-token block).  Generated by gen/gen.py.
; @launch grid=(256,1,1) block=(512,1,1) lds={LDS_BYTES}
.amdgcn_target "amdgcn-amd-amdhsa--gfx950"
.text
.globl {NAME}_kernel
.p2align 8
.type {NAME}_kernel,@function
""" + A.text().replace("CODE_SPAN", "L_slow-L_nopf") + f""".section .rodata,"a"
.p2align 6
.amdhsa_kernel {NAME}_kernel
  .amdhsa_next_free_vgpr {NV}
  .amdhsa_next_free_sgpr {NSGPR}
  .amdhsa_accum_offset {NV}
  .amdhsa_group_segment_fixed_size 0
  .amdhsa_kernarg_size 72
  .amdhsa_user_sgpr_count 2
  .amdhsa_user_sgpr_kernarg_segment_ptr 1
  .amdhsa_system_sgpr_workgroup_id_x 1
.end_amdhsa_kernel
"""
open(sys.argv[1], "w").write(out)
print(f"wrote {sys.argv[1]}: {len(A.lines)} lines, {n} nops inserted, {NV} vgprs", file=sys.stderr)
```

```python
import sys, struct, math
from asmlib import Asm, Alloc, v, s

NAME = "concat_heads__softmax_full_mha__softmax_full_mha__prompt"

OPT = dict(ts=0, force_slow=0, rot=2, map=1, pf=1, pq=18, tq=5, fq=0, padg=14, pubw=1, pseg=2, npro=0, pp=24, tou=0,
           osc=0, nw0=4, na=2, n1=2, cg=23, xl=4, wqe=0, wqd=2, wqf=0, nb=10, lf=2, yp=0, tch=0, b0=1, lseg=1, reo=1, z0=24, dsl=1, c0=1, off=8, hf=1, gb=12, qo=0, x3=0, yl=2, xe=0, ql=4, nw1=0)
for a in sys.argv[2:]:
    k, val = a.split("=")
    OPT[k] = int(val)

FLAG_OFF = 0xD00000
ES = OPT.get("es", 7)
FS = OPT.get("fs", 16 << ES)
HINT = 0x80000
EPOCH_OFF = 0x10000
TS_OFF = 0x20000
KV_OFF = 0x100000
O_OFF = 0x900000
WS_BYTES = 0x1000000
OOB = 0x40000000

XS = 32768
WL = 98304
WQ = 0
QOLD = 155648
WOB = 66944
WO15 = 32768
MISC = 161280
SND = 16384
LDS_BYTES = 163840

CSCALE = math.log2(math.e) / math.sqrt(28.0)
SHIFT = OPT['off'] + [0, 4, 2, -4, 1][OPT['c0']]
L_LO = (127 - 60 + SHIFT) << 23
L_RANGE = 120 << 23


def f2u(x):
    return struct.unpack("<I", struct.pack("<f", x))[0]


NTX = " nt" if OPT.get("ntx") else ""
NTW = " nt" if OPT.get("ntw") else ""
OSC = ["", " sc1", " nt", " sc0 sc1", " sc1 nt"][OPT.get("osc", 3)]
C0 = ["0", "4.0", "2.0", "-4.0", "1.0"][OPT.get("c0", 0)]
A = Asm()
sWm, sWm13 = 26, 27
sX, sW, sWS, sWO, sOUT = 28, 32, 36, 40, 44
sw, sb, sh, sj, stag, sE = 48, 49, 50, 51, 52, 53
sCx, sXb, sWb, sMX, sMW, sCw = 54, 55, 56, 57, 58, 59
sT0, sT1, sT2, sT3 = 60, 61, 62, 63
sLo = 64
sLine, sRole = 66, 67
sHo = 10
sWb0, sSp = 12, 13
sLpx = 8
sKV = 68
sMXs, sWq = 69, 70
sI, sRel, sWn, sHH = 71, 72, 73, 74
sSpin = 75
sOt = 76
sWoff = 77
sKap = 78
sFl = 79
sTS = 80
sRet = 82
sDone, sTodo = 84, 85
sOin = 86
sPc = 87
sOut = 88
sChk = 89
sCs = 90
sKVt = 92
sD0, sD1 = 93, 94
sPend, sRem = 95, 96
sOp = 97
sRdy = 98
sHi, sPl, sC0, sMQ = 4, 5, 6, 7
sCq, sNone = 3, 100
NSGPR = 102


def ts(idx, grp=1):
    if OPT.get("padat") == 100 * grp + idx:
        A(f"s_memrealtime s[{sTS}:{sTS+1}]\ns_waitcnt lgkmcnt(0)")
    if not OPT["ts"] or (idx != 0 and OPT["ts"] != grp):
        return
    A(f"""{"s_memtime" if OPT.get("clk") else "s_memrealtime"} s[{sTS}:{sTS+1}]
    s_waitcnt lgkmcnt(0)
    v_writelane_b32 v{vTS}, s{sTS}, {idx}""")


def tsd(code, val=0):
    A(tsdt(code, val))


def tsdt(code, val=0):
    if OPT["ts"] != 5:
        return ""
    return (f"""s_memrealtime s[{sTS}:{sTS+1}]
    s_waitcnt lgkmcnt(0)
    s_lshl_b32 s{sTS}, s{sTS}, 8
    s_or_b32 s{sTS}, s{sTS}, {code << 4}
    s_or_b32 s{sTS}, s{sTS}, {val}
    s_mov_b32 m0, s11
    v_writelane_b32 v{vTS}, s{sTS}, m0
    s_add_u32 s11, s11, 1
    s_min_u32 s11, s11, 63""")


ASR = [20, 22, 54, 56, 58, 68, 66, 72, 90, 26, 6]


def tsa(i):
    if OPT["ts"] == 6:
        A(f"s_memrealtime s[{ASR[i]}:{ASR[i]+1}]")


class Cnt:
    def __init__(self, name, cap):
        self.name, self.cap, self.q = name, cap, []

    def room(self):
        if len(self.q) >= self.cap:
            A(f"s_waitcnt {self.name}({self.cap - 4})")
            self.q = self.q[len(self.q) - (self.cap - 4):]

    def issue(self, tag, n=1):
        self.q += [tag] * n
        assert len(self.q) <= self.cap, (self.name, self.q)

    def wait(self, *tags):
        idx = [i for i, t in enumerate(self.q) if t in tags]
        if idx:
            n = len(self.q) - 1 - idx[-1]
            A(f"s_waitcnt {self.name}({n})")
            self.q = self.q[idx[-1] + 1:]


def lines(text):
    return [x.strip() for x in text.split("\n") if x.strip()]


def emit(lst, n):
    for _ in range(min(n, len(lst))):
        A(lst.pop(0))


V = Alloc(1, 256)
vLane = V()
vTS = V()
vL16 = V()
vIdx = V()
vT = [V() for _ in range(6)]
t0, t1, t2, t3, t4, t5 = vT
vQm = V()
DEAD = V(8)
vQw, vQr, vBase, vCur, vWod, vPl, vPc, vBk = range(DEAD, DEAD + 8)
vOa, vW0, vW1, vSn, vRw, vMf, vTw, vTr, vOs, vOs2, vLp = [V() for _ in range(11)]
vTag = V()
vTag2 = V()
vFl = V(2)
m_ph = V.mark()
Xr = V(112)
acc0, acc1 = V(16), V(16)
Wf = V(24)
accQ = V(16)
Wg = V(12)
vXd = [V() for _ in range(4)]
vWd, vWd2 = V(), V()
vWq = V()
vXa = [V() for _ in range(4)]
vWr = [V(), V()]
vWqr = V()
vSt = [V() for _ in range(4)]
vP = [V()]
vPd = V(4)
vOnes = accQ
V.reset(m_ph)
O = [V(16), V(16)]
Q = [V(8), V(8)]
S = [V(16) for _ in range(4)]
Kf = [V(8), V(8)]
Vf = [V(8), V(8)]
pk, pq = V(8), V(8)
Of = V(32)
acc = V(28)
assert O[0] == Xr and WQ == 0

A.label(NAME + "_kernel")
A(f"""s_cmp_ge_u32 s2, 256
s_cbranch_scc1 L_end
s_load_dwordx16 s[8:23], s[0:1], 0
s_load_dwordx2 s[24:25], s[0:1], 64
v_lshrrev_b32 v{t0}, 6, v0
v_and_b32 v{vLane}, 63, v0
v_readfirstlane_b32 s{sw}, v{t0}
v_lshlrev_b32 v{vL16}, 4, v{vLane}""")
if OPT.get("padto"):
    A(f"s_memrealtime s[{sTS}:{sTS+1}]")
if OPT["ts"]:
    A(f"""{"s_memtime" if OPT.get("clk") else "s_memrealtime"} s[{sTS}:{sTS+1}]
    v_mov_b32 v{vTS}, 0""")
if OPT["map"] == 1:
    A(f"""s_and_b32 s{sT0}, s2, 7
    s_lshr_b32 s{sT1}, s2, 3
    s_and_b32 s{sj}, s{sT1}, 7
    s_lshr_b32 s{sT1}, s{sT1}, 3
    s_lshl_b32 s{sT0}, s{sT0}, 2
    s_add_u32 s{sHH}, s{sT0}, s{sT1}""")
elif OPT["map"] == 2:
    A(f"""s_and_b32 s{sT0}, s2, 7
    s_lshr_b32 s{sT1}, s2, 3
    s_and_b32 s{sT2}, s{sT0}, 3
    s_lshl_b32 s{sT2}, s{sT2}, 1
    s_lshr_b32 s{sT3}, s{sT1}, 4
    s_add_u32 s{sj}, s{sT2}, s{sT3}
    s_lshr_b32 s{sT0}, s{sT0}, 2
    s_lshl_b32 s{sT0}, s{sT0}, 4
    s_and_b32 s{sT1}, s{sT1}, 15
    s_add_u32 s{sHH}, s{sT0}, s{sT1}""")
elif OPT["map"] == 3:
    A(f"""s_and_b32 s{sT0}, s2, 7
    s_lshr_b32 s{sT1}, s2, 3
    s_and_b32 s{sT2}, s{sT0}, 1
    s_lshl_b32 s{sT2}, s{sT2}, 2
    s_lshr_b32 s{sT3}, s{sT1}, 3
    s_add_u32 s{sj}, s{sT2}, s{sT3}
    s_lshr_b32 s{sT0}, s{sT0}, 1
    s_lshl_b32 s{sT0}, s{sT0}, 3
    s_and_b32 s{sT1}, s{sT1}, 7
    s_add_u32 s{sHH}, s{sT0}, s{sT1}""")
A(f"""s_lshr_b32 s{sb}, s{sHH}, 4
s_and_b32 s{sh}, s{sHH}, 15
s_lshr_b32 s{sKap}, s{sw}, 2""")
XCALC = (f"""s_cmp_gt_u32 s{sh}, 7
s_cselect_b32 s{sRole}, 1, 0
s_cselect_b32 s{sT0}, 16, 1
s_cselect_b32 s{sT1}, 1, 2
s_cselect_b32 s{sT2}, 2, 8
s_cselect_b32 s{sT3}, 8, 16
v_bfe_u32 v{t0}, v{vLane}, 3, 1
v_mul_u32_u24 v{t0}, s{sT0}, v{t0}
v_bfe_u32 v{t1}, v{vLane}, 4, 1
v_mad_u32_u24 v{t0}, v{t1}, s{sT1}, v{t0}
v_lshrrev_b32 v{t1}, 5, v{vLane}
v_lshl_add_u32 v{t0}, v{t1}, 2, v{t0}
v_mul_u32_u24 v{t3}, 896, v{t0}
s_mul_i32 s{sT2}, s{sT2}, 896
s_mul_i32 s{sT3}, s{sT3}, 896
s_sub_u32 s{sT2}, s{sT2}, 1024
s_sub_u32 s{sT3}, s{sT3}, 2048
v_lshrrev_b32 v{t1}, 4, v{vLane}
v_and_b32 v{t2}, 7, v{vLane}
v_xor_b32 v{t1}, v{t1}, v{t2}
v_lshl_add_u32 v{vXd[0]}, v{t1}, 4, v{t3}
v_xor_b32 v{t1}, 4, v{t1}
v_lshl_add_u32 v{t1}, v{t1}, 4, v{t3}
v_add_u32 v{vXd[1]}, s{sT2}, v{t1}
v_add_u32 v{vXd[2]}, s{sT3}, v{vXd[0]}
v_add_u32 v{vXd[3]}, s{sT3}, v{vXd[1]}
s_lshl_b32 s{sT0}, s{sj}, 3
s_add_u32 s{sT0}, s{sT0}, s{sw}
s_mul_i32 s{sXb}, s{sT0}, {32*896}
s_lshl_b32 s{sMX}, s{sw}, 12
s_lshl_b32 s{sT0}, s{sKap}, 14
s_add_u32 s{sMXs}, s{sMX}, s{sT0}
s_add_u32 s{sMXs}, s{sMXs}, {XS}
s_lshl_b32 s{sCx}, s{sC0}, 7
s_mov_b32 s{sX+2}, {2048*896}
s_mov_b32 s{sX+3}, 0x20000""")
if OPT["rot"] == 0:
    A(f"s_mov_b32 s{sC0}, 0")
else:
    if OPT["rot"] == 1:
        A(f"s_add_u32 s{sC0}, s{sh}, s{sj}")
    elif OPT["rot"] == 2:
        A(f"""s_mul_i32 s{sC0}, s{sh}, 7
        s_lshr_b32 s{sC0}, s{sC0}, 4
        s_add_u32 s{sC0}, s{sC0}, s{sj}""")
    elif OPT["rot"] == 4:
        A(f"""s_lshr_b32 s{sC0}, s{sh}, 2
        s_lshl_b32 s{sC0}, s{sC0}, 1
        s_add_u32 s{sC0}, s{sC0}, s{sj}""")
    elif OPT["rot"] == 5:
        A(f"""s_lshr_b32 s{sC0}, s{sh}, 2
        s_lshl_b32 s{sC0}, s{sC0}, 1
        s_and_b32 s{sT1}, s{sj}, 1
        s_lshl_b32 s{sT1}, s{sT1}, 2
        s_add_u32 s{sC0}, s{sC0}, s{sT1}""")
    elif OPT["rot"] == 3:
        A(f"""s_mul_i32 s{sC0}, s{sh}, 7
        s_lshr_b32 s{sC0}, s{sC0}, 4""")
    A(f"""s_mul_i32 s{sT1}, s{sC0}, 37
    s_lshr_b32 s{sT1}, s{sT1}, 8
    s_mul_i32 s{sT1}, s{sT1}, 7
    s_sub_u32 s{sC0}, s{sC0}, s{sT1}""")
PF = f"""s_and_b32 s{sT0}, s2, 0xf8
s_add_u32 s{sT0}, s{sT0}, s{sw}
s_mul_i32 s{sT0}, s{sT0}, 192
s_getpc_b64 s[{sRet}:{sRet+1}]
L_nopf:
v_and_b32 v{t4}, 0x80, v{vL16}
v_add_u32 v{t4}, s{sT0}, v{t4}
v_min_u32 v{t4}, CODE_SPAN, v{t4}
global_load_dword v{t5}, v{t4}, s[{sRet}:{sRet+1}]"""
if OPT["pf"] == 1:
    A(PF)
SEL = f"""s_cmp_eq_u32 s{sb}, 0
s_waitcnt lgkmcnt(0)
s_cselect_b32 s{sX}, s8, s14
s_cselect_b32 s{sX+1}, s9, s15
s_cselect_b32 s{sW}, s10, s16
s_cselect_b32 s{sW+1}, s11, s17
s_cselect_b32 s{sWO}, s12, s18
s_cselect_b32 s{sWO+1}, s13, s19
{f"v_writelane_b32 v{vTS}, s{sTS}, 0" if OPT["ts"] else ""}"""


def x_pieces(c, slot=None):
    p = [f"""s_add_u32 m0, s{sMXs}, {(c % 2 if slot is None else slot) * 16384}
    s_add_u32 s{sD0}, s{sCx}, s{sXb}
    buffer_load_dwordx4 v{vXd[0]}, s[{sX}:{sX+3}], s{sD0} offen{NTX} lds
    s_add_u32 s{sCx}, s{sCx}, 128
    s_cmp_eq_u32 s{sCx}, 896
    s_cselect_b32 s{sCx}, 0, s{sCx}"""]
    for i in range(1, 4):
        p.append(f"buffer_load_dwordx4 v{vXd[i]}, s[{sX}:{sX+3}], s{sD0} offen offset:{1024*i}{NTX} lds")
    return [(x, f"X{c}") for x in p]


def w_pieces(it):
    return [(f"""s_add_u32 m0, s{sMW}, {it*8192}
    s_add_u32 s{sD1}, s{sCw}, s{sWb}
    buffer_load_dwordx4 v{vWd}, s[{sW}:{sW+3}], s{sD1} offen lds
    s_add_u32 s{sCw}, s{sCw}, {64*2688}
    s_cmp_eq_u32 s{sCw}, {448*2688}
    s_cselect_b32 s{sCw}, 0, s{sCw}""", f"W{it}"),
            (f"buffer_load_dwordx4 v{vWd2}, s[{sW}:{sW+3}], s{sD1} offen offset:1024 lds", f"W{it}")]


def wq_piece(i):
    return (f"""s_add_u32 m0, s{sMQ}, {i*4096}
    s_add_u32 s{sD1}, s{sCq}, s{sWq}
    buffer_load_dwordx4 v{vWq}, s[{sW}:{sW+3}], s{sD1} offen lds
    s_add_u32 s{sCq}, s{sCq}, {64*2688}
    s_cmp_eq_u32 s{sCq}, {448*2688}
    s_cselect_b32 s{sCq}, 0, s{sCq}""", "WQ")


WCALC = f"""s_mov_b32 s{sW+2}, {448*2688}
s_mov_b32 s{sW+3}, 0x20000
s_cmp_gt_u32 s{sh}, 6
s_subb_u32 s{sLine}, s{sh}, 0
s_cmp_gt_u32 s{sh}, 9
s_subb_u32 s{sLine}, s{sLine}, 0
s_lshl_b32 s{sWb}, s{sLine}, 7
s_cmp_ge_u32 s{sLine}, 7
s_cselect_b32 s{sT0}, 7, 0
s_sub_u32 s{sLine}, s{sLine}, s{sT0}
s_and_b32 s{sT1}, s{sw}, 3
s_mul_i32 s{sT0}, s{sT1}, {16*2688}
s_add_u32 s{sWb}, s{sWb}, s{sT0}
s_add_u32 s{sWb}, s{sWb}, 896
s_mul_i32 s{sCw}, s{sC0}, {64*2688}
s_lshl_b32 s{sMW}, s{sT1}, 11
s_add_u32 s{sMW}, s{sMW}, {WL}
v_lshrrev_b32 v{t0}, 3, v{vLane}
v_mul_u32_u24 v{t0}, 2688, v{t0}
v_bfe_u32 v{t1}, v{vLane}, 4, 1
v_lshlrev_b32 v{t1}, 2, v{t1}
v_and_b32 v{t2}, 7, v{vLane}
v_xor_b32 v{t1}, v{t1}, v{t2}
v_lshl_add_u32 v{vWd}, v{t1}, 4, v{t0}
v_add_u32 v{vWd2}, {8*2688-1024}, v{vWd}"""
NW0 = OPT["nw0"]
A(f"""s_lshr_b32 s{sNone}, 0x240, s{sh}
s_and_b32 s{sNone}, s{sNone}, 1
s_cmp_gt_u32 s{sKap}, s{sNone}
s_cbranch_scc1 L_wfirst""")
A(XCALC)
A(SEL)
for p, _ in x_pieces(0) + x_pieces(1):
    A(p)
ts(1, 2)
A(WCALC)
A("s_branch L_now")
A.label("L_wfirst")
A(WCALC)
A(SEL)
for it in range(NW0):
    for p, _ in w_pieces(it):
        A(p)
ts(1, 2)
A(XCALC)
TOUCH = f"""v_lshrrev_b32 v{t0}, 3, v{vLane}
v_and_b32 v{t1}, 7, v{vLane}
v_min_u32 v{t1}, 6, v{t1}
v_lshlrev_b32 v{t1}, 7, v{t1}
s_and_b32 s{sT1}, s{sw}, 3
s_lshl_b32 s{sT0}, s{sh}, 2
s_add_u32 s{sT0}, s{sT0}, s{sT1}
s_lshl_b32 s{sT2}, s{sj}, 7
s_add_u32 s{sT2}, s{sT2}, s{sT0}
s_add_u32 s{sT2}, s{sT2}, 64
s_mul_i32 s{sT2}, s{sT2}, {2*896}
s_movk_i32 s{sT3}, 896
v_mad_u32_u24 v{t3}, v{t0}, s{sT3}, v{t1}
s_lshl_b32 s{sT0}, s{sT0}, 3
s_add_u32 s{sT0}, s{sT0}, s{sj}
s_mul_i32 s{sT0}, s{sT0}, 2688
s_mov_b64 exec, 0xffff
buffer_load_dword v{t5}, v{t3}, s[{sX}:{sX+3}], s{sT2} offen
s_mov_b64 exec, 0xff
buffer_load_dword v{t5}, v{t1}, s[{sW}:{sW+3}], s{sT0} offen
s_mov_b64 exec, -1"""
if OPT["tch"] == 1:
    A(TOUCH)
A.label("L_now")

EARLY = lines(f"""s_lshl_b32 s{sT0}, s{sb}, 8
s_add_u32 s{sT0}, s{sT0}, {EPOCH_OFF}
s_load_dword s{sE}, s[24:25], s{sT0}
v_lshrrev_b32 v{t2}, 5, v{vLane}
v_and_b32 v{t0}, 31, v{vLane}
v_bfe_u32 v{t1}, v{vLane}, 1, 3
v_xor_b32 v{t1}, v{t1}, v{t2}
v_lshlrev_b32 v{t0}, 7, v{t0}
v_add_u32 v{t0}, s{sMXs}, v{t0}""")
for sst in range(4):
    EARLY += lines(f"""v_xor_b32 v{t3}, {2*sst}, v{t1}
    v_lshl_add_u32 v{vXa[sst]}, v{t3}, 4, v{t0}""")
EARLY += lines(f"""v_bfe_u32 v{t1}, v{vLane}, 2, 2
v_lshl_add_u32 v{t0}, v{t2}, 3, v{t1}
v_bfe_u32 v{t3}, v{vLane}, 4, 1
v_and_b32 v{t4}, 3, v{vLane}
v_lshlrev_b32 v{t4}, 3, v{t4}
v_lshl_add_u32 v{t4}, v{t3}, 5, v{t4}
v_lshl_add_u32 v{vWqr}, v{t0}, 6, v{t4}
v_lshl_add_u32 v{t4}, v{t0}, 7, v{t4}
v_lshrrev_b32 v{t1}, 1, v{t1}
v_lshl_add_u32 v{t4}, v{t1}, 6, v{t4}
v_add_u32 v{vWr[0]}, {WL}, v{t4}
v_xor_b32 v{vWr[1]}, 64, v{vWr[0]}""")

MID = lines(f"""s_and_b32 s{sT0}, s{sh}, 1
s_lshl_b32 s{sT0}, s{sT0}, 3
s_add_u32 s{sT0}, s{sT0}, {WQ}
v_add_u32 v{vWqr}, s{sT0}, v{vWqr}
s_mul_i32 s{sWq}, s{sh}, 56
s_and_b32 s{sWq}, s{sWq}, 0xfffffff0
s_and_b32 s{sT0}, s{sw}, 3
s_lshl_b32 s{sMQ}, s{sT0}, 10
s_mul_i32 s{sT0}, s{sT0}, {16*2688}
s_add_u32 s{sWq}, s{sWq}, s{sT0}
s_mul_i32 s{sCq}, s{sC0}, {64*2688}
v_lshrrev_b32 v{t0}, 2, v{vLane}
v_mul_u32_u24 v{t0}, 2688, v{t0}
v_and_b32 v{t1}, 3, v{vLane}
v_lshl_add_u32 v{vWq}, v{t1}, 4, v{t0}""")
MID += lines(f"""s_mov_b32 s{sWS}, s24
s_mov_b32 s{sWS+1}, s25
s_mov_b32 s{sWS+2}, {WS_BYTES}
s_mov_b32 s{sWS+3}, 0x20000
s_lshl_b32 s{sKVt}, s{sb}, 22
s_lshl_b32 s{sRel}, s{sj}, 15
s_add_u32 s{sRel}, s{sRel}, s{sMX}
s_add_u32 s{sKVt}, s{sKVt}, s{sRel}
s_add_u32 s{sKVt}, s{sKVt}, {KV_OFF}
s_and_b32 s{sT0}, s{sw}, 3
s_lshl_b32 s{sT0}, s{sT0}, 1
s_lshl_b32 s{sT1}, s{sb}, 3
s_add_u32 s{sT1}, s{sT1}, s{sj}
s_lshl_b32 s{sT1}, s{sT1}, 3
s_add_u32 s{sT0}, s{sT0}, s{sT1}
s_lshl_b32 s{sT0}, s{sT0}, 4
s_add_u32 s{sT0}, s{sT0}, s{sh}
s_lshl_b32 s{sOp}, s{sT0}, 11
s_add_u32 s{sOp}, s{sOp}, {O_OFF}
s_lshl_b32 s{sOt}, s{sKap}, 15
s_add_u32 s{sOt}, s{sOt}, s{sOp}
v_mov_b32 v{vPd}, {0x3f80 if OPT["off"] else 0}
v_mov_b32 v{vPd+1}, 0
v_mov_b32 v{vPd+2}, {0x3f80 if OPT["off"] else 0}
v_mov_b32 v{vPd+3}, 0
s_add_u32 s{sFl}, s{sT1}, s{sw}
s_mul_i32 s{sFl}, s{sFl}, {FS}
s_lshl_b32 s{sT0}, s{sh}, {ES}
s_add_u32 s{sFl}, s{sFl}, s{sT0}
s_add_u32 s{sFl}, s{sFl}, {FLAG_OFF}
s_add_u32 s{sHo}, s{sFl}, {HINT}""")
LATE = lines(f"""s_lshl_b32 s{sPl}, s{sb}, 6
s_and_b32 s{sT1}, s{sw}, 3
s_add_u32 s{sPl}, s{sPl}, s{sT1}
s_mul_i32 s{sPl}, s{sPl}, {FS}
s_add_u32 s{sPl}, s{sPl}, {FLAG_OFF}
s_add_u32 s{sT0}, s{sj}, s{sKap}
s_and_b32 s{sT0}, s{sT0}, 7
s_lshl_b32 s{sRel}, s{sT0}, 15
s_lshl_b32 s{sT1}, s{sT1}, 12
s_add_u32 s{sRel}, s{sRel}, s{sT1}
v_bfe_u32 v{t3}, v{vLane}, 2, 2
v_lshl_add_u32 v{t3}, v{t3}, 1, s{sT0}
v_lshrrev_b32 v{t1}, 5, v{vLane}
v_add_u32 v{t3}, v{t3}, v{t1}
v_and_b32 v{t3}, 7, v{t3}
v_bfe_u32 v{t1}, v{vLane}, 4, 1
v_lshl_add_u32 v{t3}, v{t3}, 1, v{t1}
v_mul_u32_u24 v{t3}, {4*FS}, v{t3}
s_mul_i32 s{sT0}, s{sh}, 28
s_add_u32 s{sT1}, s{sT0}, 27
s_lshr_b32 s{sT0}, s{sT0}, 6
s_lshr_b32 s{sT1}, s{sT1}, 6
s_sub_u32 s{sT1}, s{sT1}, s{sT0}
v_and_b32 v{t0}, 1, v{vLane}
v_mul_u32_u24 v{t0}, s{sT1}, v{t0}
v_add_u32 v{t0}, s{sT0}, v{t0}
v_bfe_u32 v{t1}, v{vLane}, 1, 1
v_mad_u32_u24 v{t0}, v{t1}, 7, v{t0}
v_add_u32 v{t4}, 10, v{t0}
v_lshrrev_b32 v{t4}, 4, v{t4}
v_lshrrev_b32 v{t2}, 3, v{t0}
v_add3_u32 v{t0}, v{t0}, v{t4}, v{t2}
s_sub_u32 s{sT2}, s{sT1}, 1
s_and_b32 s{sT2}, s{sT2}, 0xaaaaaaaa
s_mov_b32 s{sT3}, s{sT2}
v_mad_u32_u24 v{t1}, v{t1}, 3, 6
v_cndmask_b32 v{t0}, v{t0}, v{t1}, s[{sT2}:{sT3}]
v_lshl_add_u32 v{vPl}, v{t0}, {ES}, v{t3}
s_lshl_b32 s{sKV}, s{sHH}, 18
s_add_u32 s{sKV}, s{sKV}, {KV_OFF}
s_mov_b32 s{sDone}, s{sKap}""")
LATE += lines(f"""s_mov_b32 s{sLo}, -1
s_mov_b32 s{sLo+1}, 0
s_mov_b32 s{sCs}, {hex(f2u(CSCALE))}
s_mov_b32 s{sCs+1}, {hex(f2u(CSCALE))}
s_and_b32 s{sT1}, s{sw}, 3
v_mov_b32 v{vIdx}, 0xdddddddd
s_or_b32 s{sT2}, s{sT1}, 1
s_add_u32 s{sT0}, s{sT1}, s{sT2}
s_lshl_b32 s{sT0}, s{sT0}, 11
s_add_u32 s{sT0}, s{sT0}, {XS+32768}
s_lshl_b32 s{sT2}, s{sT1}, 11
s_add_u32 s{sT2}, s{sT2}, {QOLD}
s_sub_u32 s{sT0}, s{sT0}, s{sT2}
s_mul_i32 s{sT0}, s{sT0}, s{sKap}
s_add_u32 s{sT0}, s{sT0}, s{sT2}
v_and_b32 v{t0}, 1, v{vLane}
v_lshlrev_b32 v{t0}, 4, v{t0}
v_bfe_u32 v{t1}, v{vLane}, 4, 1
v_lshl_add_u32 v{t0}, v{t1}, 3, v{t0}
v_bfe_u32 v{t1}, v{vLane}, 3, 1
v_lshl_add_u32 v{t0}, v{t1}, 1, v{t0}
v_bfe_u32 v{t1}, v{vLane}, 1, 1
v_add_u32 v{t0}, v{t0}, v{t1}
v_and_b32 v{t1}, 0x24, v{vLane}
v_add_u32 v{t0}, v{t0}, v{t1}
v_sub_u32 v{t0}, v{t0}, v{vLane}
v_mul_lo_u32 v{t0}, v{t0}, s{sRole}
v_add_u32 v{t0}, v{t0}, v{vLane}
v_lshl_add_u32 v{vQw}, v{t0}, 4, s{sT0}
s_lshr_b32 s{sT3}, s{sT1}, 1
s_and_b32 s{sT2}, s{sT1}, 1
s_add_u32 s{sT0}, s{sT3}, 12
s_lshl_b32 s{sT2}, s{sT2}, s{sT0}
s_mul_i32 s{sT3}, s{sT3}, {(XS+32768+2048-QOLD) & 0xffffffff}
s_add_u32 s{sT2}, s{sT2}, s{sT3}
s_add_u32 s{sT2}, s{sT2}, {QOLD}
s_lshl_b32 s{sT0}, s{sKap}, 11
s_sub_u32 s{sT3}, s{sT2}, s{sT0}
s_add_u32 s{sT2}, s{sT2}, s{sT0}
v_add_u32 v{vQr}, s{sT3}, v{vL16}
v_add_u32 v{vOs2}, s{sT2}, v{vL16}
s_lshl_b32 s{sT0}, s{sKap}, 14
v_add_u32 v{vBase}, s{sT0}, v{vL16}
v_add_u32 v{vCur}, 0x10000, v{vBase}
v_lshl_add_u32 v{vBk}, v{vLane}, 3, s{sT0}
v_add_u32 v{vTag2}, 0x10000, v{vBk}""")
L1, LATE = LATE, []
LATE += lines(f"""s_mov_b32 s{sWO+2}, {448*896}
s_mov_b32 s{sWO+3}, 0x20000
s_mov_b32 s{sOUT}, s20
s_mov_b32 s{sOUT+1}, s21
s_mov_b32 s{sOUT+2}, {2048*1792}
s_mov_b32 s{sOUT+3}, 0x20000
s_mov_b32 s{sChk}, {0 if OPT['force_slow'] else L_RANGE}
s_and_b32 s{sWoff}, s{sh}, 3
s_mul_i32 s{sWoff}, s{sWoff}, 224""")
LATE += lines(f"""s_lshl_b32 s{sT1}, s{sb}, 3
s_add_u32 s{sT1}, s{sT1}, s{sj}
s_lshl_b32 s{sT1}, s{sT1}, 3
s_lshr_b32 s{sT0}, s{sh}, 2
s_bfe_u32 s{sT2}, s{sw}, 0x10001
s_lshl_b32 s{sPc}, s{sT2}, 2
s_add_u32 s{sPc}, s{sPc}, s{sT0}
s_add_u32 s{sPc}, s{sPc}, s{sT1}
s_mul_i32 s{sPc}, s{sPc}, {FS}
s_add_u32 s{sPc}, s{sPc}, {FLAG_OFF + 64}
s_lshl_b32 s{sT3}, s{sT0}, 1
s_add_u32 s{sT3}, s{sT3}, s{sT2}
s_add_u32 s{sT3}, s{sT3}, s{sT1}
s_lshl_b32 s{sOin}, s{sT3}, 15
s_add_u32 s{sOin}, s{sOin}, {O_OFF}
s_and_b32 s{sT3}, s{sw}, 1
s_lshl_b32 s{sT3}, s{sT3}, 8
s_add_u32 s{sOin}, s{sOin}, s{sT3}
s_lshl_b32 s{sT3}, s{sKap}, 11
s_add_u32 s{sOin}, s{sOin}, s{sT3}""")
LATE += lines(f"""s_lshl_b32 s{sT1}, s{sj}, 2
s_add_u32 s{sT0}, s{sT0}, s{sT1}
s_lshl_b32 s{sT0}, s{sT0}, 2
s_and_b32 s{sT1}, s{sw}, 3
s_add_u32 s{sT0}, s{sT0}, s{sT1}
s_mul_i32 s{sOut}, s{sT0}, {16*1792}
s_mul_i32 s{sT0}, s{sb}, 896
s_add_u32 s{sOut}, s{sOut}, s{sT0}
s_add_u32 s{sOut}, s{sOut}, s{sWoff}
v_and_b32 v{t2}, 7, v{vLane}
s_add_u32 s{sT0}, s{sT1}, 5
s_lshl_b32 s{sT0}, s{sT0}, 13
s_and_b32 s{sT0}, s{sT0}, 0xffff
v_add_u32 v{vRw}, s{sT0}, v{vL16}
s_lshl_b32 s{sT2}, s{sT1}, 2
s_add_u32 s{sT2}, s{sT2}, {MISC}
v_mov_b32 v{vMf}, s{sT2}
s_mul_i32 s{sT2}, s{sT1}, 3072
s_add_u32 s{sT2}, s{sT2}, {SND}
v_add_u32 v{vSn}, s{sT2}, v{vL16}
v_lshrrev_b32 v{t1}, 3, v{vLane}
s_lshl_b32 s{sT2}, s{sKap}, 11
s_add_u32 s{sT0}, s{sT0}, s{sT2}
s_add_u32 s{sT0}, s{sT0}, 4096
v_xor_b32 v{t3}, v{t1}, v{t2}
v_lshlrev_b32 v{t3}, 4, v{t3}
v_lshl_add_u32 v{t3}, v{t1}, 7, v{t3}
v_add_u32 v{vTr}, s{sT0}, v{t3}
v_mul_u32_u24 v{t3}, 1792, v{t1}
v_lshl_add_u32 v{vOs}, v{t2}, 4, v{t3}
v_add_u32 v{t3}, 2, v{t2}
v_lshrrev_b32 v{t3}, 3, v{t3}
v_lshlrev_b32 v{t3}, 30, v{t3}
v_add_u32 v{t3}, 128, v{t3}
v_mul_lo_u32 v{t3}, v{t3}, s{sKap}
v_add_u32 v{vOs}, v{t3}, v{vOs}
v_and_b32 v{t0}, 15, v{vLane}
v_lshrrev_b32 v{t1}, 4, v{vLane}
v_lshrrev_b32 v{t3}, 1, v{t1}
v_xor_b32 v{t3}, v{t3}, v{t2}
v_lshlrev_b32 v{t3}, 4, v{t3}
v_lshl_add_u32 v{t3}, v{t0}, 7, v{t3}
v_and_b32 v{t4}, 1, v{t1}
v_lshl_add_u32 v{t3}, v{t4}, 3, v{t3}
v_add_u32 v{vTw}, s{sT0}, v{t3}
v_lshlrev_b32 v{vPc}, {ES}, v{t0}
v_lshlrev_b32 v{t2}, 12, v{t2}
v_add_u32 v{vLp}, {3*512+15*16}, v{t2}
v_lshlrev_b32 v{t2}, 9, v{t1}
v_lshl_add_u32 v{vOa}, v{t0}, 4, v{t2}""")
LATE += lines(f"""v_lshrrev_b32 v{t2}, 1, v{t1}
v_lshlrev_b32 v{t2}, 4, v{t2}
v_lshl_add_u32 v{t2}, v{t4}, 2, v{t2}
v_bfe_u32 v{t3}, v{vLane}, 2, 2
v_add_u32 v{t2}, v{t2}, v{t3}
v_mul_u32_u24 v{t2}, 224, v{t2}
v_and_b32 v{t3}, 3, v{vLane}
v_lshl_add_u32 v{t2}, v{t3}, 3, v{t2}
v_add_u32 v{t3}, 1, v{t1}
v_lshrrev_b32 v{t3}, 2, v{t3}
v_mul_u32_u24 v{t3}, {4*224}, v{t3}
v_sub_u32 v{t3}, v{t2}, v{t3}
s_mul_i32 s{sT0}, s{sKap}, 6272
s_add_u32 s{sT0}, s{sT0}, {WOB}
v_add_u32 v{vW0}, s{sT0}, v{t2}
s_add_u32 s{sT0}, s{sT0}, {8*224}
v_add_u32 v{vW1}, s{sT0}, v{t3}
s_mul_i32 s{sSp}, s{sKap}, {(WO15 - WOB - 6272 - 7*12544) & 0xffffffff}
s_add_u32 s{sSp}, s{sSp}, {7*12544}""")
LATE += lines(f"""v_mul_u32_u24 v{t2}, 0x4925, v{vLane}
v_lshrrev_b32 v{t2}, 18, v{t2}
v_mul_u32_u24 v{t3}, 14, v{t2}
v_sub_u32 v{t3}, v{vLane}, v{t3}
v_mul_u32_u24 v{t2}, 896, v{t2}
v_lshl_add_u32 v{vWod}, v{t3}, 4, v{t2}
s_mul_i32 s{sWn}, s{sw}, 3584
s_add_u32 s{sWn}, s{sWn}, s{sWoff}
s_mul_i32 s{sWm}, s{sw}, 896
s_add_u32 s{sWm13}, s{sWm}, {WO15-896}
s_max_u32 s{sT0}, s{sw}, 1
s_sub_u32 s{sT0}, s{sT0}, s{sw}
s_mul_i32 s{sT0}, s{sT0}, {WOB+104*896-(WO15-896)}
s_add_u32 s{sWm13}, s{sWm13}, s{sT0}""")
L2 = LATE
ENDS = lines(f"""s_mul_i32 s{sT2}, s{sLine}, {16*9363}
s_add_u32 s{sT3}, s{sT2}, {16*9363}
s_lshr_b32 s{sT2}, s{sT2}, 16
s_lshr_b32 s{sT3}, s{sT3}, 16
s_sub_u32 s{sT3}, s{sT3}, s{sT2}
s_lshl_b32 s{sT2}, s{sT2}, 18""")
FK = lines(f"""v_and_b32 v{t0}, 15, v{vLane}
v_lshlrev_b32 v{t0}, 4, v{t0}
v_bfe_u32 v{t1}, v{vLane}, 4, 1
v_lshrrev_b32 v{t4}, 5, v{vLane}
v_lshl_add_u32 v{t1}, v{t1}, 1, v{t4}
s_lshl_b32 s{sT0}, s{sLine}, 4
v_add_u32 v{t1}, s{sT0}, v{t1}""")
for i in range(4):
    FK += lines(f"""v_add_u32 v{t2}, {4*i}, v{t1}
    v_mul_u32_u24 v{t3}, 9363, v{t2}
    v_lshrrev_b32 v{t3}, 16, v{t3}
    v_lshl_add_u32 v{vSt[i]}, v{t3}, 18, v{t0}
    v_mul_u32_u24 v{t3}, 7, v{t3}
    v_sub_u32 v{t2}, v{t2}, v{t3}
    v_lshl_add_u32 v{vSt[i]}, v{t2}, 8, v{vSt[i]}""")
FK += ENDS + lines(f"""s_add_u32 s{sT2}, s{sT2}, {7*256}
v_lshrrev_b32 v{t1}, 4, v{vLane}
v_cmp_gt_u32 vcc, s{sT3}, v{t1}
v_lshl_add_u32 v{t0}, v{t1}, 18, v{t0}
v_add_u32 v{t0}, s{sT2}, v{t0}
v_mov_b32 v{t3}, {OOB}
v_cndmask_b32 v{vP[0]}, v{t3}, v{t0}, vcc""")
FV = lines(f"""v_and_b32 v{t0}, 31, v{vLane}
s_lshl_b32 s{sT0}, s{sLine}, 6
v_add_u32 v{t0}, s{sT0}, v{t0}
v_and_b32 v{t4}, 32, v{vLane}""")
for ct in range(2):
    FV += lines(f"""v_add_u32 v{t2}, {32*ct}, v{t0}
    v_mul_u32_u24 v{t3}, 2341, v{t2}
    v_lshrrev_b32 v{t3}, 16, v{t3}
    v_mul_u32_u24 v{t1}, 28, v{t3}
    v_sub_u32 v{t2}, v{t2}, v{t1}
    v_add_u32 v{t2}, v{t2}, v{t4}
    v_lshlrev_b32 v{t2}, 4, v{t2}
    v_lshl_add_u32 v{t2}, v{t3}, 18, v{t2}
    v_add_u32 v{vSt[2*ct]}, 2048, v{t2}
    v_add_u32 v{vSt[2*ct+1]}, 3072, v{t2}""")
FV += ENDS + lines(f"""s_add_u32 s{sT2}, s{sT2}, {2048+28*16}
v_lshrrev_b32 v{t0}, 4, v{vLane}
v_cmp_gt_u32 vcc, s{sT3}, v{t0}
v_bfe_u32 v{t1}, v{vLane}, 2, 2
v_lshlrev_b32 v{t1}, 9, v{t1}
v_lshl_add_u32 v{t1}, v{t0}, 18, v{t1}
v_and_b32 v{t2}, 3, v{vLane}
v_lshl_add_u32 v{t1}, v{t2}, 4, v{t1}
v_add_u32 v{t1}, s{sT2}, v{t1}
v_mov_b32 v{t3}, {OOB}
v_cndmask_b32 v{vP[0]}, v{t3}, v{t1}, vcc
v_cmp_eq_u32 vcc, 0, v{t2}
v_mov_b32 v{t3}, 0x3f803f80
s_nop 0
v_cndmask_b32 v{vPd}, 0, v{t3}, vcc
v_mov_b32 v{vPd+1}, v{vPd}
v_mov_b32 v{vPd+2}, v{vPd}
v_mov_b32 v{vPd+3}, v{vPd}""")


def st16(data, addr, soff, off=0):
    return (f"buffer_store_dwordx4 {v(data,4)}, v{addr}, s[{sWS}:{sWS+3}], s{soff} offen offset:{off} sc1", "ST")


def st8(data, addr, soff):
    return (f"buffer_store_dwordx2 {v(data,2)}, v{addr}, s[{sWS}:{sWS+3}], s{soff} offen sc1", "ST")


POS = [32768, 0, 65536]


def kv_addr(blk, t, off):
    p = POS[blk % 3] + t * 4096 + off
    return (vCur, p - 65536) if POS[blk % 3] >= 65536 else (vBase, p)


def kv_next(st):
    pos = POS[st % 3]
    return f"""s_add_u32 s{sRel}, s{sRel}, {0x14000 if st == 4 else 0x10000}
    s_and_b32 s{sRel}, s{sRel}, 0x3ffff
    s_add_u32 m0, s{sMX}, {pos}
    s_add_u32 s{sD0}, s{sRel}, s{sKV}"""


def kv_piece(i):
    return f"buffer_load_dwordx4 v{vL16}, s[{sWS}:{sWS+3}], s{sD0} offen offset:{1024*i}{['', ' sc1', ' nt', ' sc1 nt'][OPT.get('kvs', 1)]} lds"


def flag_text(second=False):
    return f"""s_mov_b64 exec, 1
    buffer_store_dword v{vTag}, v{vL16}, s[{sWS}:{sWS+3}], s{sFl} offen offset:{64 if second else 0} sc1
    s_mov_b64 exec, -1"""


def poll_text(mask):
    return f"""s_mov_b64 exec, {mask if mask < 64 else hex(mask)}
    buffer_load_dword v{vFl}, v{vPl}, s[{sWS}:{sWS+3}], s{sPl} offen sc1
    s_mov_b64 exec, -1"""


def poll_issue(mask=15):
    A(poll_text(mask))


ntry = [0]


def hook_try(level=2):
    ntry[0] += 1
    A(f"""s_cmp_ge_u32 s{sDone}, {level}
    s_cbranch_scc1 L_skip{ntry[0]}
    s_call_b64 s[{sRet}:{sRet+1}], L_try""")
    A.label(f"L_skip{ntry[0]}")


def spin(level, name):
    A(f"s_mov_b32 s{sSpin}, 0x40000")
    A.label(name)
    A(f"""s_cmp_ge_u32 s{sDone}, {level}
    s_cbranch_scc1 {name}_done
    s_call_b64 s[{sRet}:{sRet+1}], L_try
    s_sub_u32 s{sSpin}, s{sSpin}, 1
    s_cbranch_scc0 {name}""")
    A.label(name + "_done")


POLL0 = f"""s_mov_b32 exec_lo, 15
    s_mov_b32 exec_hi, 15
    buffer_load_dword v{vFl}, v{vPl}, s[{sWS}:{sWS+3}], s{sPl} offen sc1
    s_mov_b64 exec, -1"""
CALL_REST = f"s_call_b64 s[{sRet}:{sRet+1}], L_rest"
pqq = Wf + 16


class Stream:
    def __init__(self, role):
        self.role = role
        self.vm, self.lg = Cnt("vmcnt", 63), Cnt("lgkmcnt", 15)
        self.slot = [c % 2 for c in range(7)]
        self.nkv = self.nq = 0

    def dma(self, p):
        A(p[0])
        self.vm.issue(p[1])

    def ds(self, text, tag):
        self.lg.room()
        A(text)
        self.lg.issue(tag)

    def xreads(self, c):
        return [(f"ds_read_b128 {v(Xr+16*c+4*st,4)}, v{vXa[st]} offset:{self.slot[c] * 16384}", f"R{c}") for st in range(4)]

    def mk(self, kv=None, q=None):
        rd, mm, need = [], [], []
        tag = f"F{kv}_{q}"
        if kv is not None:
            b = Wf + 8 * (self.nkv % 3)
            self.nkv += 1
            for ct in range(2):
                for u in range(2):
                    rd.append((f"ds_read_b64_tr_b16 {v(b+4*ct+2*u,2)}, v{vWr[ct]} offset:{kv*2048+u*512}", tag))
                ac = [acc0, acc1][ct]
                wf, xf = v(b + 4 * ct, 4), v(Xr + 4 * kv, 4)
                a_, b_ = (wf, xf) if self.role == "K" else (xf, wf)
                mm.append(f"v_mfma_f32_32x32x16_bf16 {v(ac,16)}, {a_}, {b_}, {'0' if kv == 0 else v(ac,16)}")
            need.append(f"R{kv//4}")
        if q is not None:
            b = Wg + 4 * (self.nq % 3)
            self.nq += 1
            for u in range(2):
                rd.append((f"ds_read_b64_tr_b16 {v(b+2*u,2)}, v{vWqr} offset:{q*1024+u*256}", tag))
            mm.append(f"v_mfma_f32_32x32x16_bf16 {v(accQ,16)}, {v(b,4)}, {v(Xr+4*q,4)}, {'0' if q == 0 else v(accQ,16)}")
            need.append(f"R{q//4}")
        return dict(rd=rd, mm=mm, need=need + [tag], pre=[], xr=None, dma=[], post=[])

    def run(self, steps, fill=(), nf=0):
        fill = list(fill)
        for st in steps[:2]:
            for r in st["rd"]:
                self.ds(*r)
        for i, st in enumerate(steps):
            self.lg.wait(*st["need"])
            for f in st["pre"]:
                f()
            side = []
            if st["xr"] is not None:
                self.vm.wait(f"X{st['xr']}")
                side += self.xreads(st["xr"])
            if i + 2 < len(steps):
                side += steps[i + 2]["rd"]
            n = len(st["mm"])
            for k, m in enumerate(st["mm"]):
                A(m)
                for r in side[k * len(side) // n:(k + 1) * len(side) // n]:
                    self.ds(*r)
                for p in st["dma"][k * len(st["dma"]) // n:(k + 1) * len(st["dma"]) // n]:
                    self.dma(p)
                emit(fill, nf)
            for f in st["post"]:
                f()
        assert not fill

    def xplan(self, steps, first, c0, c1, lead, ahead=2):
        for c in range(c0, c1):
            i = first + 4 * (c - c0) - lead
            steps[i]["xr"] = c
            if c + ahead <= 6:
                steps[i + 1]["need"].append(f"R{c}")
                xp = x_pieces(c + ahead, self.slot[c + ahead])
                steps[i + 1]["dma"] += xp[:2]
                steps[i + 2]["dma"] += xp[2:]

    def pack(self, store):
        for ct in range(2):
            ac = [acc0, acc1][ct]
            pp = Wf + 8 * ct
            for r in range(8):
                A(f"v_cvt_pk_bf16_f32 v{pp+r}, v{ac+2*r}, v{ac+2*r+1}")
                if self.role == "V" and r % 4 == 3 and store:
                    self.dma(st16(pp + r - 3, vSt[2 * ct + r // 4], sKVt))
            if self.role == "K":
                for i in range(2):
                    A(f"v_permlane16_swap_b32 v{pp+4*i}, v{pp+4*i+2}")
                    A(f"v_permlane16_swap_b32 v{pp+4*i+1}, v{pp+4*i+3}")
                    if store:
                        self.dma(st16(pp + 4 * i, vSt[2 * ct + i], sKVt))

    def xonly(self):
        for c in range(7):
            self.vm.wait(f"X{c}")
            for r in self.xreads(c):
                self.ds(*r)
            self.lg.wait(f"R{c}")
            if c + 2 <= 6:
                for p in x_pieces(c + 2):
                    self.dma(p)


def bar():
    A("s_barrier")


def q_epilogue():
    for r in range(8):
        A(f"v_pk_mul_f32 {v(accQ+2*r,2)}, {v(accQ+2*r,2)}, s[{sCs}:{sCs+1}]")
    for r in range(8):
        A(f"v_cvt_pk_bf16_f32 v{pqq+r}, v{accQ+2*r}, v{accQ+2*r+1}")
    A(f"""v_mov_b32 v{t5}, {f2u(float(OPT["off"])) >> 16}
    v_cndmask_b32 v{pqq+7}, 0, v{pqq+7}, s[{sLo}:{sLo+1}]
    v_cndmask_b32 v{pqq+6}, v{t5}, v{pqq+6}, s[{sLo}:{sLo+1}]""")
    A(f"""ds_write_b128 v{vQw}, {v(pqq,4)}
    ds_write_b128 v{vQw}, {v(pqq+4,4)} offset:1024""")


NOST = [f"v_mov_b32 v{vSt[i]}, {OOB}" for i in range(4)]
ZO = [f"v_mov_b32 v{O[0]+r}, {hex(f2u(1.5 * 2.0 ** OPT['oz'])) if OPT.get('oz') else 0}" for r in range(32)]
NA, N1, CG = OPT["na"], OPT["n1"], OPT["cg"]
GB = OPT["gb"]
QO = min(4 * OPT["wqe"], 26 - GB, OPT["qo"])
QY = min(4 * OPT["wqe"], 4 * N1) if QO else 0


def older(role):
    S_ = Stream(role)
    S_.vm.issue("X0", 4)
    S_.vm.issue("X1", 4)
    if role == "N":
        A(flag_text())
        S_.vm.issue("FL")
        S_.xonly()
        bar()
        if QO:
            S_.run([S_.mk(q=g) for g in range(QO)])
        return
    if OPT["yp"]:
        A("s_setprio 2")
    S_.vm.wait("X0")
    for r in S_.xreads(0):
        S_.ds(*r)
    S_.lg.wait("R0")
    for p in x_pieces(2):
        S_.dma(p)
    ts(3, 2)
    bar()
    ts(4, 2)
    steps = [S_.mk(kv=g, q=(g - GB - 2 if 0 <= g - GB - 2 < QO else None)) for g in range(28)]
    if QO:
        steps[GB]["pre"].append(bar)
    S_.xplan(steps, 4, 1, 7, OPT["xl"])
    steps[4 * NA - 2]["pre"].append(bar)
    steps[OPT["padg"]]["dma"].append(st16(vPd, vP[0], sKVt))
    if CG < 28:
        steps[CG]["need"].append("R6")
        steps[CG]["pre"].append(bar)
    for c in range(7):
        steps[4 * c]["pre"].append(lambda c=c: ts(5 + c, 2))
    fill = {"K": FK, "V": FV}[role]
    S_.run(steps, fill, -(-len(fill) // 24))
    ts(2)
    ts(12, 2)
    S_.pack(True)
    ts(1)
    if CG == 28:
        bar()
    A("s_branch L_oq")


def younger(role):
    S_ = Stream(role)
    if role == "N":
        S_.vm.issue("X0", 4)
        S_.vm.issue("X1", 4)
        A(flag_text())
        S_.vm.issue("FL")
        for i in range(7):
            S_.dma(wq_piece(i))
        emit(list(REST), len(REST))
        emit(list(NOST), 4)
        S_.xonly()
        bar()
        steps = [S_.mk(q=g) for g in range(28)]
        first = 0
    else:
        S_.vm.q = list(LOADER_Q)
        wq = [wq_piece(i) for i in range(OPT["wqe"] + OPT["wqf"], 7)]
        S_.vm.wait("X0")
        for r in S_.xreads(0):
            S_.ds(*r)
        ts(6, 2)
        steps = [S_.mk(kv=g, q=(g if g < QY else None)) for g in range(4 * N1)]
        for c in range(1, N1):
            steps[4 * c - 2]["xr"] = c
        k = 0
        for p in wq:
            steps[k // OPT["wqd"]]["dma"].append(p)
            k += 1
        fill = {"K": FK, "V": FV}[role]
        late = []
        for c in range(2, N1 + 2):
            if c < N1 + OPT["xe"]:
                steps[4 * (c - 2) + 1]["need"].append(f"R{c-2}")
                steps[4 * (c - 2) + 1]["dma"] = x_pieces(c) + steps[4 * (c - 2) + 1]["dma"]
            else:
                late += x_pieces(c)
        S_.run(steps, fill, -(-len(fill) // (8 * N1)))
        for p in late:
            S_.dma(p)
        ts(7, 2)
        S_.vm.wait("WQ")
        bar()
        ts(8, 2)
        if OPT["yp"]:
            A("s_setprio 1")
        QL = OPT["ql"]
        steps = ([S_.mk(q=g) for g in range(QY, 4 * N1 - QL)] + [S_.mk(kv=g, q=g - QL) for g in range(4 * N1, 28)]
                 + [S_.mk(q=g) for g in range(28 - QL, 28)])
        if QL:
            n0 = len(A.lines)
            S_.pack(False)
            pk_ = A.lines[n0:]
            del A.lines[n0:]
            for i in range(-QL + 1, 0):
                steps[i]["post"].append(lambda d=-i: emit(pk_, -(-len(pk_) // d)))
        if QY >= 4 * N1 - 1:
            S_.vm.wait(f"X{N1}")
            for r in S_.xreads(N1):
                S_.ds(*r)
            xp = x_pieces(N1 + 2)
            steps[0]["dma"] += xp[:2]
            steps[1]["dma"] += xp[2:]
            S_.xplan(steps, 4 * N1 - QY + 4, N1 + 1, 7, 2)
        elif OPT["x3"]:
            assert N1 == 2 and WL == XS + 65536
            S_.slot = [0, 1, 0, 1, 2, 0, 1]
            for k, p in enumerate(x_pieces(4, 2)):
                steps[k // 2]["dma"].append(p)
            S_.xplan(steps, 4 * N1 - QY, N1, 7, OPT["yl"], 3)
        else:
            S_.xplan(steps, 4 * N1 - QY - QL, N1, 7, OPT["yl"])
        steps[-8]["dma"].append(st16(vPd, vP[0], sKVt))
    ts(3)
    steps[-3]["post"].append(lambda: (poll_issue(0xffff), S_.vm.issue("PL")))
    fill = [] if role == "N" else [L1 + L2, list(L2), []][OPT['lf']]
    S_.run(steps, fill, -(-len(fill) // (3 * (24 - 4 * N1) + 4 * N1)))
    ts(2)
    ts(12, 2)
    q_epilogue()
    if role != "N" and not OPT["ql"]:
        S_.pack(False)
    ts(11)
    A("""s_waitcnt lgkmcnt(0)
    s_branch L_b0""")


def loader():
    S_ = Stream("N")
    for it in range(NW0):
        S_.vm.issue(f"W{it}", 2)
    if OPT["tch"] == 2:
        A(TOUCH)
    if OPT["tch"]:
        S_.vm.issue("PF", 2)
    NW1 = max(NW0, OPT["nw1"])
    for it in range(NW0, NW1):
        for p in w_pieces(it):
            S_.dma(p)
    S_.vm.wait(f"W{NA-1}")
    ts(3, 2)
    bar()
    ts(4, 2)
    fill = [[], list(L1), L1 + L2][OPT['lf']]
    wq = [wq_piece(i) for i in range(7)]
    p1 = [p for it in range(NW1, 7) for p in w_pieces(it)] + wq[:OPT["wqe"]] + x_pieces(0) + x_pieces(1)
    p2 = wq[OPT["wqe"]:OPT["wqe"] + OPT["wqf"]]
    nb = OPT["nb"]
    ps = p1 + p2
    nf = -(-len(fill) // len(ps))
    for k, p in enumerate(ps):
        if k == nb:
            S_.vm.wait("W6")
            bar()
        S_.dma(p)
        emit(fill, nf)
    if nb >= len(ps):
        S_.vm.wait("W6")
        bar()
    if QO:
        assert OPT["wqf"] == 0
        S_.vm.wait("WQ")
        bar()
    ts(5, 2)
    return S_.vm.q


PRO, REST = EARLY + MID, L1 + L2
PRO += lines(f"""s_waitcnt lgkmcnt(0)
s_mul_i32 s{stag}, s{sE}, 0x9e3779b1
s_add_u32 s{stag}, s{stag}, 0x7f4a7c15
v_mov_b32 v{vTag}, s{stag}""")
emit(PRO, len(PRO))
ts(2, 2)
A(f"""s_cmp_eq_u32 s{sKap}, 0
s_cbranch_scc1 L_old
s_cmp_eq_u32 s{sNone}, 1
s_cbranch_scc1 L_yN""")
LOADER_Q = loader()
A(f"""s_cmp_eq_u32 s{sRole}, 1
s_cbranch_scc1 L_yV""")
younger("K")
A.label("L_yV")
younger("V")
A.label("L_yN")
younger("N")
A.label("L_old")
A(f"""s_cmp_eq_u32 s{sNone}, 1
s_cbranch_scc1 L_oN
s_cmp_eq_u32 s{sRole}, 1
s_cbranch_scc1 L_oV""")
older("K")
A.label("L_oV")
older("V")
A.label("L_oN")
older("N")
A.label("L_oq")
ts(3)
ts(13, 2)
emit(list(L1), len(L1))
emit(list(NOST), 4)
S_ = Stream("N")
steps = [S_.mk(q=g) for g in range(QO, 28)]


def oflag():
    A("s_waitcnt vmcnt(0)")
    A(flag_text())
    if OPT["yp"]:
        A("s_setprio 0")
    ts(4)


steps[OPT["fq"]]["pre"].append(oflag)
PQ = min(OPT["pq"], len(steps) - 1)
steps[PQ]["post"].append(lambda: A(POLL0))
for g in range(PQ + OPT["tq"], len(steps), OPT["tq"]):
    steps[g]["post"].append(lambda: hook_try(1))
S_.run(steps, L2, -(-len(L2) // (len(steps) - 1)))
q_epilogue()
ts(11)
spin(1, "L_spin0")
A("""s_waitcnt vmcnt(1) lgkmcnt(0)
s_branch L_b0""")
A.label("L_try")
A(f"""s_waitcnt vmcnt(0)
v_cmp_ne_u32 vcc, s{stag}, v{vFl}
s_or_b32 s{sD1}, vcc_lo, vcc_hi
s_and_b32 s{sD1}, s{sD1}, 15
s_cbranch_scc0 L_try0""")
A(POLL0)
A(f"s_setpc_b64 s[{sRet}:{sRet+1}]")
A.label("L_try0")
ts(5)
A(f"""s_add_u32 m0, s{sMX}, {POS[0]}
s_add_u32 s{sD0}, s{sRel}, s{sKV}""")
for i in range(4):
    A(kv_piece(i))
A(f"""s_add_u32 s{sD0}, s{sRel}, 0x8000
s_and_b32 s{sD0}, s{sD0}, 0x3ffff
s_add_u32 m0, s{sMX}, {POS[0]+16384}
s_add_u32 s{sD0}, s{sD0}, s{sKV}""")
for i in range(4):
    A(kv_piece(i))
A(f"s_mov_b32 s{sDone}, 1")
poll_issue(0xffff)
A(f"s_setpc_b64 s[{sRet}:{sRet+1}]")

A.label("L_b0")
for _ in range(OPT.get("idle", 0)):
    A("s_sleep 36")
A("s_barrier")
ts(12)
ts(1, 4)

A(f"""ds_read_b128 {v(Q[0],4)}, v{vQr} offset:2048
ds_read2st64_b64 {v(Kf[0],4)}, v{vBk} offset0:64 offset1:65
ds_read_b128 {v(Q[0]+4,4)}, v{vQr} offset:3072
ds_read2st64_b64 {v(Kf[0]+4,4)}, v{vBk} offset0:66 offset1:67
{chr(10).join(ZO[:OPT["z0"]])}
ds_read_b128 {v(Q[1],4)}, v{vOs2}
ds_read_b128 {v(Q[1]+4,4)}, v{vOs2} offset:1024
s_waitcnt lgkmcnt(4)
v_mfma_f32_32x32x16_bf16 {v(S[0],16)}, {v(Kf[0],4)}, {v(Q[0],4)}, {C0}
s_waitcnt lgkmcnt(2)
v_mfma_f32_32x32x16_bf16 {v(S[0],16)}, {v(Kf[0]+4,4)}, {v(Q[0]+4,4)}, {v(S[0],16)}
ds_read2st64_b64 {v(Kf[1],4)}, v{vBk} offset0:72 offset1:73
ds_read2st64_b64 {v(Kf[1]+4,4)}, v{vBk} offset0:74 offset1:75
ds_read_b128 {v(Vf[0],4)}, v{vBase} offset:34816
ds_read_b128 {v(Vf[0]+4,4)}, v{vBase} offset:35840
{chr(10).join(ZO[OPT["z0"]:])}
s_waitcnt lgkmcnt(4)""")

def wo_piece(r):
    m = f"s_mov_b32 m0, s{sWm13}" if r == 13 else f"s_add_u32 m0, s{sWm}, {WOB + 8*r*896}"
    return f"""{m}
    s_add_u32 s{sD1}, s{sWn}, {8*r*3584}
    buffer_load_dwordx4 v{vWod}, s[{sWO}:{sWO+3}], s{sD1} offen lds"""


EXTRA = {}
AFTER = {}


def extra(w_, sl, text):
    EXTRA.setdefault((w_, sl), []).append(text)


def window(W):
    blk, u = divmod(W, 8)
    un, up = u + 1, u - 1
    tn, qn = un // 2, un % 2
    tp, qp = up // 2, up % 2
    Sc, Sn, Sp = S[u % 4], S[un % 4], S[up % 4]
    Kn, Vp = Kf[tn % 2], Vf[tp % 2]
    if blk == 7 and OPT["reo"]:
        UN = {5: (3, 0), 6: (2, 1)}
        if un in UN:
            Kn, qn = Kf[UN[un][0] % 2], UN[un][1]
        if up in UN:
            Vp, qp = Vf[UN[up][0] % 2], UN[up][1]
        if u in (4, 6):
            A("s_waitcnt lgkmcnt(2)" if u == 4 else "s_waitcnt lgkmcnt(0)")
    h0, h1 = (4, 0) if OPT["hf"] else (0, 4)
    m = [f"v_mfma_f32_32x32x16_bf16 {v(Sn,16)}, {v(Kn+h0,4)}, {v(Q[qn]+h0,4)}, {C0}",
         f"v_mfma_f32_32x32x16_bf16 {v(Sn,16)}, {v(Kn+h1,4)}, {v(Q[qn]+h1,4)}, {v(Sn,16)}",
         f"v_smfmac_f32_32x32x32_bf16 {v(O[qp],16)}, {v(Vp,4)}, {v(Sp,8)}, v{vIdx}",
         f"v_smfmac_f32_32x32x32_bf16 {v(O[qp],16)}, {v(Vp+4,4)}, {v(Sp+8,8)}, v{vIdx}"]
    if W == 0:
        m[2] = m[3] = None
    if W == 63:
        m = [m[2], None, m[3], None]
    if W == 62 and OPT["reo"] == 2:
        m = [m[0], m[2], m[1], m[3]]
    mem = [[], [], [], []]
    pre = [[], [], [], []]

    def rd(dst, T, off):
        if off < 2048 and not OPT.get('kb128'):
            o = (POS[(blk + T // 4) % 3] + (T % 4) * 4096 + off) // 512
            if OPT.get("k64"):
                a, oo = (vBk, o * 512) if o < 128 else (vTag2, o * 512 - 65536)
                return f"ds_read_b64 {v(dst,2)}, v{a} offset:{oo}\nds_read_b64 {v(dst+2,2)}, v{a} offset:{oo+512}"
            return f"ds_read2st64_b64 {v(dst,4)}, v{vBk} offset0:{o} offset1:{o+1}"
        a, o = kv_addr(blk + T // 4, T % 4, off)
        return f"ds_read_b128 {v(dst,4)}, v{a} offset:{o}"
    if u % 2 == 1:
        if not (u == 5 and (blk > 0 or OPT["b0"])):
            A("s_waitcnt lgkmcnt(0)")
        tt = tn
        Kd, Vd = Kf[(tt + 1) % 2], Vf[tt % 2]
        rk = [rd(Kd, tt + 1, 0), rd(Kd + 4, tt + 1, 1024)]
        rv = [rd(Vd, tt, 2048), rd(Vd + 4, tt, 3072)]
        if W == 61 or (W == 5 and not OPT['b0']):
            mem[0 if W == 61 else 2].append(rv[0])
            mem[1 if W == 61 else 3].append(rv[1])
        elif W == 63:
            pass
        elif W == 7 and not OPT['b0']:
            A(rd(Kn, 4, 0))
            A(rd(Kn + 4, 4, 1024))
            m = [m[2], m[3], m[0], m[1]]
            mem[0] += [rk[0], rk[1]]
            mem[1] += [rv[0], rv[1]]
            pre[2].append("s_waitcnt lgkmcnt(4)")
        else:
            RS_ = [[0, 1, 2, 3], [2, 2, 3, 3], [0, 0, 1, 1], [2, 3, 0, 1]][OPT.get("rsl", 0)]
            order = sorted(range(4), key=lambda k: RS_[k])
            for k in range(4):
                mem[RS_[k]].append((rk + rv)[k])
    for q in range(4):
        for x in pre[q]:
            A(x)
        if m[q]:
            A(m[q])
        for x in mem[q] + (EXTRA.get((W, q), []) if not (OPT.get("nodma") and 23 <= W < 53) else []):
            A(x)
        for e in range(4):
            A(f"v_exp_f32 v{Sc+4*q+e}, v{Sc+4*q+e}")
    for hk in AFTER.get(W, []):
        hk()


def mk_bar(n):
    def f():
        A(f"""s_waitcnt vmcnt({n}) lgkmcnt(0)""")
        if not OPT.get("nobar"):
            A("s_barrier")
    return f


def check_text(reg, mask, name):
    return f"""v_cmp_ne_u32 vcc, s{stag}, v{reg}
    s_and_b32 s{sD1}, vcc_lo, {mask}
    s_cbranch_scc1 {name}
    {name}_done:"""


PUB = [st16(Wf + 4 * i, vSt[i], sKVt)[0] for i in range(4)]
if OPT["b0"]:
    extra(0, 2, "s_waitcnt vmcnt(0)\n" + check_text(vFl, "0xffff", "L_polll"))
    extra(0, 3, kv_next(1) + "\n" + kv_piece(0))
    for i in range(1, 4):
        extra(1, i - 1, kv_piece(i))
    for i in range(4):
        extra(2, i, PUB[i])
    AFTER.setdefault(4, []).append(mk_bar(4))
    AFTER[4].append(lambda: ts(6))
    extra(6, 0, "s_waitcnt vmcnt(0)\n" + flag_text())
    extra(6, 1, kv_next(2) + "\n" + kv_piece(0))
    extra(6, 3, kv_piece(1))
    extra(8, 0, kv_piece(2))
    extra(8, 2, kv_piece(3))
else:
    for i in range(4):
        extra(i // 2, [1, 3][i % 2], PUB[i])
    extra(2, 0, "s_waitcnt vmcnt(4)\n" + check_text(vFl, "0xffff", "L_polll"))
    extra(2, 1, kv_next(1) + "\n" + kv_piece(0))
    extra(2, 3, kv_piece(1))
    extra(3, 1, kv_piece(2))
    extra(3, 3, kv_piece(3))
    AFTER.setdefault(6, []).append(lambda: (A("s_waitcnt vmcnt(0)\ns_barrier"), ts(6)))
    extra(7, 2, kv_next(2) + "\n" + kv_piece(0))
    extra(7, 3, kv_piece(1))
    extra(8, 1, kv_piece(2))
    extra(8, 3, kv_piece(3))
    extra(8, 0, flag_text())
extra(9, 1, "\n".join(f"v_mov_b32 v{vOnes+r}, -1" for r in range(4)))
extra(40, 1, f"""v_lshrrev_b32 v{t0}, 2, v{vL16}
v_and_b32 v{t0}, 60, v{t0}
v_add_u32 v{t0}, {MISC}, v{t0}
v_mov_b32 v{t1}, 0
ds_write_b32 v{t0}, v{t1}""")
extra(10, 0, st16(vOnes, vL16, sOt)[0])
extra(10, 2, st16(vOnes, vL16, sOt, 1024)[0])
extra(30, 1, flag_text(True))
extra(17, 1, poll_text(0x7fff0000).replace("0x7fff0000", "0xffff0000"))


extra(21, 2, check_text(vFl, "0xffff0000", "L_pollh"))
if OPT.get("tou"):
    e0, e1 = ("s_mov_b64 exec, 1\n", "\ns_mov_b64 exec, -1") if OPT["tou"] == 2 else ("", "")
    extra(36, 1, f"{e0}buffer_load_dword v{t2}, v{vOs}, s[{sOUT}:{sOUT+3}], s{sOut} offen{e1}")
    extra(28, 1, f"s_add_u32 s{sT1}, s{sOut}, {8*1792}\n{e0}buffer_load_dword v{t2}, v{vOs}, s[{sOUT}:{sOUT+3}], s{sT1} offen{e1}")
wo_early = list(range(5, 13))
for i in range(1, 8):
    nwo = 2 if i == 1 else 0
    if i >= 2 and wo_early:
        for sl in (0, 2):
            extra(8 * i + 2, sl, wo_piece(wo_early.pop(0)))
            nwo += 1
    if OPT.get("tou") and i in (3, 4):
        nwo += 1
    AFTER.setdefault(8 * i + 4, []).append(mk_bar(nwo))
    if i <= 5:
        DS_ = [[(6, 0), (6, 2), (8, 0), (8, 2)], [(6, 2), (6, 3), (8, 2), (8, 3)], [(6, 0), (6, 1), (8, 0), (8, 1)],
               [(6, 1), (6, 3), (8, 1), (8, 3)], [(6, 0), (6, 1), (6, 2), (6, 3)]][OPT.get("dsl", 0)]
        extra(8 * i + DS_[0][0], DS_[0][1], kv_next(i + 2) + "\n" + kv_piece(0))
        for k in range(1, 4):
            extra(8 * i + DS_[k][0], DS_[k][1], kv_piece(k))
assert not wo_early
for k, r in enumerate([0, 1, 2, 3, 4, 13]):
    extra([54, 54, 55, 56, 56, 57][k], [0, 2, 1, 0, 2, 1][k], wo_piece(r))
extra(50, 0, f"buffer_load_dword v{vQm}, v{vPc}, s[{sWS}:{sWS+3}], s{sPc} offen sc1")
extra(58, 0, check_text(vQm, "0xffff", "L_pollc"))
extra(58, 2, f"""s_or_b32 s{sT0}, s{sh}, s{sj}
    s_or_b32 s{sT0}, s{sT0}, s{sw}
    s_cbranch_scc0 L_epoch
    L_epd:""")
sTk, sAv = sTodo, sRem


def oload(l):
    return f"""s_add_u32 s{sT0}, s{sOin}, {l*4096}
    buffer_load_dwordx4 {v(Of+4*l,4)}, v{vOa}, s[{sWS}:{sWS+3}], s{sT0} offen sc1"""


def cload(l):
    return f"""s_bitcmp1_b32 s{sAv}, {l}
    s_cselect_b64 exec, -1, 0
    {oload(l)}"""


POLL = f"""s_andn2_b32 exec_lo, 0xff, s{sTk}
    s_mov_b32 exec_hi, 0
    buffer_load_dword v{vQm}, v{vLp}, s[{sWS}:{sWS+3}], s{sOin} offen sc1
    s_mov_b64 exec, -1"""
SENDL = [f"ds_write_b128 v{vQw}, {v(O[0]+4*i,4)} offset:{1024*i}" for i in range(4)] + [f"ds_write_b32 v{vOs2}, v{t4}"]
SEND = "\n".join(SENDL)
if OPT["reo"]:
    extra(63, 2, SEND)
extra(44, 1, f"""s_lshl_b32 s{sT0}, s{sKap}, 12
    v_add_u32 v{vQw}, s{sT0}, v{vRw}
    v_xor_b32 v{vQr}, 0x1000, v{vQw}
    s_mul_i32 s{sT0}, s{sKap}, 48
    v_add_u32 v{vOs2}, s{sT0}, v{vMf}
    v_xor_b32 v{vPl}, 48, v{vOs2}
    v_mov_b32 v{t4}, 1""")
for (ww, sl, pr) in [[(61, 0, 3), (62, 0, 2), (63, 0, 1), (63, 2, 0)], [(61, 0, 3), (62, 2, 2), (63, 2, 1)],
                     [(61, 0, 1), (63, 0, 0)]][OPT["lseg"]]:
    extra(ww, sl, f"s_setprio {pr}")
PSEG = {1: [(0, 0, 3), (3, 0, 2), (6, 0, 1), (7, 2, 0)], 2: [(0, 0, 3), (4, 0, 2), (6, 2, 1), (7, 3, 0)],
        3: [(0, 0, 1), (7, 2, 0)], 4: [(0, 0, 3), (2, 0, 2), (4, 0, 1), (6, 0, 0)], 5: [(0, 0, 1), (7, 0, 0)],
        6: [(0, 0, 2), (5, 0, 1), (7, 2, 0)]}
if OPT.get("pseg"):
    for (ww, sl, pr) in ([(0, 0, 3), (2, 0, 2), (3, 2, 1), (4, 3, 0)] if OPT["b0"] else
                         [(0, 0, 3), (3, 0, 2), (5, 2, 1), (6, 3, 0), (7, 0, 3), (9, 0, 2), (11, 2, 1), (12, 3, 0)]):
        EXTRA.setdefault((ww, sl), []).insert(0, f"s_setprio {pr}")
    for i in range(0 if OPT["b0"] else 1, 7):
        for (dw, sl, pr) in PSEG[OPT["pseg"]]:
            EXTRA.setdefault((8 * i + 5 + dw, sl), []).insert(0, f"s_setprio {pr}")
if OPT.get("prio"):
    A(f"""s_cmp_eq_u32 s{sKap}, {OPT["prio"] & 1}
    s_cbranch_scc0 L_np
    s_setprio 1""")
    A.label("L_np")
for W in range(64):
    TW = [0, 1, 3, 5, 7, 13, 21, 29, 37, 45, 53, 61] if not OPT.get("tw") else [16, 56]
    if OPT.get("al") and W % OPT["al"] == 0:
        A(".p2align 3")
    if W in TW:
        ts(2 + TW.index(W), 4)
    window(W)
A(f"""s_nop 0
v_smfmac_f32_32x32x32_bf16 {v(O[1],16)}, {v(Vf[1],4)}, {v(S[3],8)}, v{vIdx}
v_smfmac_f32_32x32x32_bf16 {v(O[1],16)}, {v(Vf[1]+4,4)}, {v(S[3]+8,8)}, v{vIdx}""")
ts(7)
ts(14, 4)

R = S[0]
if not OPT["reo"]:
    A(SEND)
A(f"s_mov_b32 s{sSpin}, 0x400000")
A.label("L_mwait")
A(f"ds_read_b32 v{t2}, v{vPl}")
for i in (3, 0, 1, 2):
    A(f"ds_read_b128 {v(R+4*i,4)}, v{vQr} offset:{1024*i}")
A(f"""s_sub_u32 s{sSpin}, s{sSpin}, 1
s_cbranch_scc1 L_mgo
s_waitcnt lgkmcnt(4)
v_readfirstlane_b32 s{sT0}, v{t2}
s_cmp_eq_u32 s{sT0}, 0
s_cbranch_scc1 L_mspin""")
A.label("L_mgo")
Ob = O[1]
rc = vFl
A(f"""s_waitcnt lgkmcnt(3)
v_pk_add_f32 {v(Ob+12,2)}, {v(Ob+12,2)}, {v(R+12,2)}
v_pk_add_f32 {v(Ob+14,2)}, {v(Ob+14,2)}, {v(R+14,2)}""")
A.label("L_norm")
A(f"""v_mov_b32 v{t0}, v{Ob+12}
v_mov_b32 v{rc}, v{Ob+12}
s_waitcnt lgkmcnt(0)
v_pk_add_f32 {v(Ob,2)}, {v(Ob,2)}, {v(R,2)}
v_permlane32_swap_b32 v{t0}, v{rc}
v_pk_add_f32 {v(Ob+2,2)}, {v(Ob+2,2)}, {v(R+2,2)}
v_subrev_u32 v{t0}, {hex(L_LO)}, v{rc}
v_rcp_f32 v{rc}, v{rc}
v_cmp_lt_u32 vcc, s{sChk}, v{t0}""")
for r in range(4, 12, 2):
    A(f"v_pk_add_f32 {v(Ob+r,2)}, {v(Ob+r,2)}, {v(R+r,2)}")
A("""s_cmp_lg_u64 vcc, 0
s_cbranch_scc1 L_slow""")
for f in range(2):
    for r in range(8 * f, 8 * f + 8, 2):
        A(f"v_pk_mul_f32 {v(Ob+r,2)}, {v(Ob+r,2)}, {v(rc,2)} op_sel_hi:[1,0]")
    for r in range(4 * f, 4 * f + 4):
        A(f"v_cvt_pk_bf16_f32 v{pk+r}, v{Ob+2*r}, v{Ob+2*r+1}")
    if f:
        for r in (6, 7):
            A(f"v_cndmask_b32 v{pk+r}, 0, v{pk+r}, s[{sLo}:{sLo+1}]")
    for r in range(4 * f, 4 * f + 4):
        A(f"v_min_u32 v{pk+r}, -2, v{pk+r}")
    A(f"buffer_store_dwordx4 {v(pk+4*f,4)}, v{vL16}, s[{sWS}:{sWS+3}], s{sOt} offen offset:{1024*f} sc1")
A("s_setprio 0")
ts(8)

TILES = list(range(O[0], Of, 4)) + [DEAD, DEAD + 4]
assert len(TILES) >= 42
rx = S[2]
pk2, rb = Q[0], Q[1]
sOk = sDone
OOL = []


def wtile(l, ct):
    return TILES[7 * (l % 6) + ct]


def wtext(l, ct):
    a0, a1, off = (vW0, vW1, l * 12544) if l < 6 else (t1, t2, 0) if l == 6 else (t3, t4, 0)
    d = wtile(l, ct)
    return f"""ds_read_b64_tr_b16 {v(d,2)}, v{a0} offset:{off+32*ct}
    ds_read_b64_tr_b16 {v(d+2,2)}, v{a1} offset:{off+32*ct}"""


A.label("L_p3e")
if OPT["ts"] == 5:
    A("s_mov_b32 s11, 1")
tsd(0)
A(f"s_mov_b32 s{sSpin}, 0x40000")
sSl = 14
vXw = [vTw, vLane, vIdx, t5]
for l in range(8):
    A(f"s_add_u32 s{sSl+l}, s{sOin}, {4096*l}")
A.label("L_p3r")
A(f"""s_mov_b32 s{sTk}, 0
v_add_u32 v{t1}, {6*12544}, v{vW0}
v_add_u32 v{t2}, {6*12544}, v{vW1}
v_add_u32 v{t3}, s{sSp}, v{vW0}
v_add_u32 v{t4}, s{sSp}, v{vW1}
s_waitcnt lgkmcnt(0)""")
for i in range(42):
    if i >= 6 and i % 3 == 0:
        A("s_waitcnt lgkmcnt(8)")
    if i == OPT["pp"]:
        A(POLL)
    A(wtext(i // 7, i % 7))
tsd(1)
A("s_branch L_w1")
A.label("L_w0")
if OPT.get("slp"):
    A(f"s_sleep {OPT['slp']}")
A(POLL)
A.label("L_w1")
A(f"""s_sub_u32 s{sSpin}, s{sSpin}, 1
s_cselect_b32 s{sT0}, 0xff, 0
s_cselect_b32 s{sSpin}, 0, s{sSpin}
s_waitcnt vmcnt(0)
v_cmp_ne_u32 vcc, -1, v{vQm}
s_or_b32 s{sTk}, vcc_lo, s{sT0}
s_andn2_b32 s{sT0}, 0xff, s{sTk}
s_cbranch_scc1 L_w0""")
tsd(9)
for l in range(8):
    A(f"buffer_load_dwordx4 {v(Of+4*l,4)}, v{vOa}, s[{sWS}:{sWS+3}], s{sSl+l} offen sc1")
tsd(7)
A(f"""v_mov_b32 v{vFl}, 1
s_add_u32 s{sT1}, s{sOut}, {8*1792}""")
for ct in range(1, 4):
    A(f"v_xor_b32 v{vXw[ct]}, {32*ct}, v{vTw}")
ORD = [0, 2, 1, 3, 4, 5, 6, 7]
for k, l in enumerate(ORD):
    b0 = Of + 4 * l
    A(f"s_waitcnt vmcnt({7-max(ORD[:k+1])})" + (" lgkmcnt(0)" if l in (0, 1, 6) else ""))
    if k == 0:
        tsd(2)
    for ct in range(7):
        A(f"v_mfma_f32_16x16x32_bf16 {v(acc+4*ct,4)}, {v(wtile(l,ct),4)}, {v(b0,4)}, {'0' if k == 0 else v(acc+4*ct,4)}")
        if l < 2:
            A(wtext(6 + l, ct))
        if ct == 1:
            A(f"v_max3_u32 v{t0}, v{b0}, v{b0+1}, {'0' if k == 0 else f'v{t0}'}")
        if ct == 3:
            A(f"v_max3_u32 v{t0}, v{b0+2}, v{b0+3}, v{t0}")
        if ct == 5 and k == 7:
            A(f"v_cmp_eq_u32 vcc, -1, v{t0}")
A(f"""s_cmp_lg_u64 vcc, 0
s_cbranch_scc1 L_redo""")
A.label("L_good")
OOL.append(f"""L_redo:
s_sub_u32 s{sSpin}, s{sSpin}, 1
s_cbranch_scc0 L_p3r
s_branch L_good""")
tsd(3)
ts(9)
tsa(8)


XS_ = [f"""L_xsk{kap}:
    s_sleep {OPT.get("xs", 1)}
    ds_read_b32 v{t0}, v{vMf} offset:{32-16*kap}
    s_sub_u32 s{sSpin}, s{sSpin}, 1
    s_waitcnt lgkmcnt(0)
    s_cbranch_scc1 L_yk{kap}
    v_readfirstlane_b32 s{sT0}, v{t0}
    s_cmp_eq_u32 s{sT0}, 0
    s_cbranch_scc1 L_xsk{kap}
    s_branch L_xk{kap}""" for kap in (1, 0)]


def p3(kap):
    n = f"k{kap}"
    keep = [0, 1, 2, 3] if kap == 0 else [4, 5, 6]
    send = [4, 5, 6] if kap == 0 else [0, 1, 2, 3]
    wa_, ra_ = (vSn, vRw) if kap == 0 else (vRw, vSn)
    A(f"s_mov_b32 s{sSpin}, 0x400000")
    for i, ct in enumerate(send):
        A(f"ds_write_b128 v{wa_}, {v(acc+4*ct,4)} offset:{1024*i}")
    A(f"ds_write_b32 v{vMf}, v{vFl} offset:{16+16*kap}")
    A.label(f"L_x{n}")
    A(f"ds_read_b32 v{t0}, v{vMf} offset:{32-16*kap}")
    for i in range(len(keep)):
        A(f"ds_read_b128 {v(rx+4*i,4)}, v{ra_} offset:{1024*i}")
    A(f"""s_sub_u32 s{sSpin}, s{sSpin}, 1
    s_cbranch_scc1 L_y{n}
    s_waitcnt lgkmcnt({len(keep)})
    v_readfirstlane_b32 s{sT0}, v{t0}
    s_cmp_eq_u32 s{sT0}, 0
    s_cbranch_scc1 L_xs{n}""")
    A.label(f"L_y{n}")
    tsd(4)
    tsa(9)
    wa = vXw
    for i, ct in enumerate(keep):
        A(f"""s_waitcnt lgkmcnt({len(keep)-1})
        v_pk_add_f32 {v(acc+4*ct,2)}, {v(acc+4*ct,2)}, {v(rx+4*i,2)}
        v_pk_add_f32 {v(acc+4*ct+2,2)}, {v(acc+4*ct+2,2)}, {v(rx+4*i+2,2)}
        v_cvt_pk_bf16_f32 v{pk2+2*i}, v{acc+4*ct}, v{acc+4*ct+1}
        v_cvt_pk_bf16_f32 v{pk2+2*i+1}, v{acc+4*ct+2}, v{acc+4*ct+3}
        ds_write_b64 v{wa[i]}, {v(pk2+2*i,2)}""")
    os_ = vOs
    A(f"""ds_read_b128 {v(rb,4)}, v{vTr}
    ds_read_b128 {v(rb+4,4)}, v{vTr} offset:1024
    s_waitcnt lgkmcnt(1)
    buffer_store_dwordx4 {v(rb,4)}, v{os_}, s[{sOUT}:{sOUT+3}], s{sOut} offen{OSC}
    s_waitcnt lgkmcnt(0)
    buffer_store_dwordx4 {v(rb+4,4)}, v{os_}, s[{sOUT}:{sOUT+3}], s{sT1} offen{OSC}""")


assert Vf[1] == Kf[0] + 24 and O[1] == O[0] + 16
A(f"""s_cmp_eq_u32 s{sKap}, 0
s_cbranch_scc1 L_x0""")
p3(1)
A("s_branch L_noep" if OPT["ts"] or OPT.get("padto") else "s_endpgm")
for x in XS_:
    A(x)
A(f"""L_mspin:
ds_read_b32 v{t2}, v{vPl}
s_sub_u32 s{sSpin}, s{sSpin}, 1
s_waitcnt lgkmcnt(0)
s_cbranch_scc1 L_mgo
v_readfirstlane_b32 s{sT0}, v{t2}
s_cmp_eq_u32 s{sT0}, 0
s_cbranch_scc1 L_mspin
s_branch L_mwait""")
A.label("L_x0")
p3(0)
if OPT.get("wb"):
    A(f"""s_cmp_lg_u32 s{sw}, 0
    s_cbranch_scc1 L_noep
    s_waitcnt vmcnt(0)
    buffer_wbl2 sc1""")
A.label("L_noep")
if OPT.get("padto"):
    A.label("L_pad")
    A(f"""s_sleep 4
    s_memrealtime s[{sRet}:{sRet+1}]
    s_waitcnt lgkmcnt(0)
    s_sub_u32 s{sT0}, s{sRet}, s{sTS}
    s_cmp_lt_u32 s{sT0}, {OPT["padto"]}
    s_cbranch_scc1 L_pad""")
tsd(5)
tsa(10)
if OPT["ts"] == 6:
    A("s_waitcnt lgkmcnt(0)")
    for i, r in enumerate(ASR):
        A(f"v_writelane_b32 v{vTS}, s{r}, {i+1}")
    A(f"""s_sub_u32 s{sRem}, 0x7fffffff, s{sRem}
    v_writelane_b32 v{vTS}, s{sRem}, 13
    v_writelane_b32 v{vTS}, s19, 14""")
if OPT["ts"]:
    A("s_waitcnt vmcnt(0)")
    ts(10)
    tsd(6)
    ts(12, 6)
    A(f"""s_lshl_b32 s{sT0}, s2, 3
    s_add_u32 s{sT0}, s{sT0}, s{sw}
    s_lshl_b32 s{sT0}, s{sT0}, {8 if OPT["ts"] == 5 else 6}
    s_add_u32 s{sT0}, s{sT0}, {TS_OFF}
    s_getreg_b32 s{sT1}, hwreg(HW_REG_XCC_ID)
    {"s_nop 0" if OPT["ts"] == 5 else f"v_writelane_b32 v{vTS}, s{sT1}, 15"}
    v_lshrrev_b32 v{t0}, 2, v{vL16}
    s_mov_b64 exec, {-1 if OPT["ts"] == 5 else "0xffff"}
    buffer_store_dword v{vTS}, v{t0}, s[{sWS}:{sWS+3}], s{sT0} offen""")
    if OPT.get("dbg"):
        A(f"""v_readlane_b32 s{sT0}, v{vTS}, 0
        s_not_b32 s{sT0}, s{sT0}
        v_writelane_b32 v{vTS}, s{sT0}, 15
        s_mov_b32 s{sX}, s22
        s_mov_b32 s{sX+1}, s23
        s_mov_b32 s{sX+2}, 256
        buffer_atomic_umax v{vTS}, v{t0}, s[{sX}:{sX+3}], 0 offen""")
A.label("L_end")
A("s_endpgm")

for x in OOL:
    A(x)
A.label("L_epoch")
A(f"""s_add_u32 s{sE}, s{sE}, 1
s_lshl_b32 s{sT0}, s{sb}, 8
s_add_u32 s{sT0}, s{sT0}, {EPOCH_OFF}
v_mov_b32 v{t1}, s{sE}
s_mov_b64 exec, 1
buffer_store_dword v{t1}, v{vL16}, s[{sWS}:{sWS+3}], s{sT0} offen sc1
s_mov_b64 exec, -1
s_branch L_epd""")

for name, load, reg, mask in (
        ("L_pollc", f"buffer_load_dword v{vQm}, v{vPc}, s[{sWS}:{sWS+3}], s{sPc} offen sc1", vQm, "0xffff"),
        ("L_polll", poll_text(0xffff), vFl, "0xffff"),
        ("L_pollh", poll_text(0x7fff0000).replace('0x7fff0000', '0xffff0000'), vFl, "0xffff0000")):
    A(f"""{name}:
    s_mov_b32 s{sSpin}, 0x40000
    {name}1:
    {load}
    s_sub_u32 s{sSpin}, s{sSpin}, 1
    s_cbranch_scc1 {name}_done
    s_waitcnt vmcnt(0)
    v_cmp_ne_u32 vcc, s{stag}, v{reg}
    s_and_b32 s{sD1}, vcc_lo, {mask}
    s_cbranch_scc1 {name}1
    s_branch {name}_done""")

A.label("L_slow")
Sx, vMn, vAl, vM = S[2], t2, t3, t4
A(f"""s_mov_b32 s{sChk}, -1
v_lshlrev_b32 v{vBk}, 3, v{vLane}
v_mov_b32 v{vM}, 0xff7fffff
s_mov_b32 s{sT0}, s{sKV}
s_mov_b32 s{sI}, 0""")
for r in range(16):
    A(f"v_mov_b32 v{Ob+r}, 0")
    A(f"v_mov_b32 v{R+r}, 0")
A.label("L_slow_t")
for i in range(4):
    A(f"buffer_load_dwordx2 {v(Kf[0]+2*i,2)}, v{vBk}, s[{sWS}:{sWS+3}], s{sT0} offen offset:{512*i} sc1")
A(f"""buffer_load_dwordx4 {v(Vf[0],4)}, v{vL16}, s[{sWS}:{sWS+3}], s{sT0} offen offset:2048 sc1
buffer_load_dwordx4 {v(Vf[0]+4,4)}, v{vL16}, s[{sWS}:{sWS+3}], s{sT0} offen offset:3072 sc1
s_add_u32 s{sT0}, s{sT0}, 4096
s_waitcnt vmcnt(0)
v_mfma_f32_32x32x16_bf16 {v(Sx,16)}, {v(Kf[0],4)}, {v(Q[1],4)}, 0
v_mfma_f32_32x32x16_bf16 {v(Sx,16)}, {v(Kf[0]+4,4)}, {v(Q[1]+4,4)}, {v(Sx,16)}
v_max3_f32 v{t0}, v{Sx}, v{Sx+1}, v{vM}""")
for r in range(2, 16, 2):
    A(f"v_max3_f32 v{t0}, v{Sx+r}, v{Sx+r+1}, v{t0}")
A(f"""v_mov_b32 v{t1}, v{t0}
v_permlane32_swap_b32 v{t0}, v{t1}
v_max_f32 v{vMn}, v{t0}, v{t1}
v_sub_f32 v{vAl}, v{vM}, v{vMn}
v_exp_f32 v{vAl}, v{vAl}
v_mov_b32 v{vM}, v{vMn}""")
for r in range(16):
    A(f"v_sub_f32 v{Sx+r}, v{Sx+r}, v{vMn}")
for r in range(16):
    A(f"v_exp_f32 v{Sx+r}, v{Sx+r}")
for r in range(16):
    A(f"v_mul_f32 v{Ob+r}, v{vAl}, v{Ob+r}")
A(f"""v_smfmac_f32_32x32x32_bf16 {v(Ob,16)}, {v(Vf[0],4)}, {v(Sx,8)}, v{vIdx}
v_smfmac_f32_32x32x32_bf16 {v(Ob,16)}, {v(Vf[0]+4,4)}, {v(Sx+8,8)}, v{vIdx}
s_add_u32 s{sI}, s{sI}, 1
s_cmp_lt_u32 s{sI}, 64
s_cbranch_scc1 L_slow_t
s_nop 11
s_branch L_norm""")

n = A.fix_hazards(verbose=bool(OPT.get("v", 0)))
NV = -(-V.hi // 8) * 8
hdr = open("cdna_kernels/" + NAME + ".s.ref").read().split("; Override launch")[0]
out = hdr + f"""; Fused kernel: QKV projection -> softmax attention -> output projection, one workgroup per
; (branch, head, 256-token block).  Generated by gen/gen.py.
; @launch grid=(256,1,1) block=(512,1,1) lds={LDS_BYTES}
.amdgcn_target "amdgcn-amd-amdhsa--gfx950"
.text
.globl {NAME}_kernel
.p2align 8
.type {NAME}_kernel,@function
""" + A.text().replace("CODE_SPAN", "L_slow-L_nopf") + f""".section .rodata,"a"
.p2align 6
.amdhsa_kernel {NAME}_kernel
  .amdhsa_next_free_vgpr {NV}
  .amdhsa_next_free_sgpr {NSGPR}
  .amdhsa_accum_offset {NV}
  .amdhsa_group_segment_fixed_size 0
  .amdhsa_kernarg_size 72
  .amdhsa_user_sgpr_count 2
  .amdhsa_user_sgpr_kernarg_segment_ptr 1
  .amdhsa_system_sgpr_workgroup_id_x 1
.end_amdhsa_kernel
"""
open(sys.argv[1], "w").write(out)
print(f"wrote {sys.argv[1]}: {len(A.lines)} lines, {n} nops inserted, {NV} vgprs", file=sys.stderr)
```

```python
import sys, struct, math
from asmlib import Asm, Alloc, v, s

NAME = "concat_heads__softmax_full_mha__softmax_full_mha__prompt"

OPT = dict(ts=0, force_slow=0, rot=2, map=1, pf=1, pq=18, tq=5, fq=0, padg=14, pubw=1, pseg=2, npro=0, pp=24, tou=0,
           osc=1, nw0=4, na=2, n1=2, cg=23, xl=4, wqe=0, wqd=2, wqf=0, nb=10, lf=2, yp=0, tch=0, b0=1, lseg=1, reo=1, z0=24, dsl=1, c0=1, off=8, hf=1, gb=12, qo=0, x3=0, yl=2, xe=0, ql=4, nw1=0, rotc=1, osc0=1)
for a in sys.argv[2:]:
    k, val = a.split("=")
    OPT[k] = int(val)

FLAG_OFF = 0xD00000
ES = OPT.get("es", 7)
FS = OPT.get("fs", 16 << ES)
HINT = 0x80000
EPOCH_OFF = 0x10000
TS_OFF = 0x20000
KV_OFF = 0x100000
O_OFF = 0x900000
WS_BYTES = 0x1000000
OOB = 0x40000000

XS = 32768
WL = 98304
WQ = 0
QOLD = 155648
WOB = 66944
WO15 = 32768
MISC = 161280
SND = 16384
LDS_BYTES = 163840

CSCALE = math.log2(math.e) / math.sqrt(28.0)
SHIFT = OPT['off'] + [0, 4, 2, -4, 1][OPT['c0']]
L_LO = (127 - 60 + SHIFT) << 23
L_RANGE = 120 << 23


def f2u(x):
    return struct.unpack("<I", struct.pack("<f", x))[0]


NTX = " nt" if OPT.get("ntx") else ""
NTW = " nt" if OPT.get("ntw") else ""
OSC = ["", " sc1", " nt", " sc0 sc1", " sc1 nt"][OPT.get("osc", 3)]
C0 = ["0", "4.0", "2.0", "-4.0", "1.0"][OPT.get("c0", 0)]
A = Asm()
sWm, sWm13 = 26, 27
sX, sW, sWS, sWO, sOUT = 28, 32, 36, 40, 44
sw, sb, sh, sj, stag, sE = 48, 49, 50, 51, 52, 53
sCx, sXb, sWb, sMX, sMW, sCw = 54, 55, 56, 57, 58, 59
sT0, sT1, sT2, sT3 = 60, 61, 62, 63
sLo = 64
sLine, sRole = 66, 67
sHo = 10
sCg = 9
sWb0, sSp = 12, 13
sLpx = 8
sKV = 68
sMXs, sWq = 69, 70
sI, sRel, sWn, sHH = 71, 72, 73, 74
sSpin = 75
sOt = 76
sWoff = 77
sKap = 78
sFl = 79
sTS = 80
sRet = 82
sDone, sTodo = 84, 85
sOin = 86
sPc = 87
sOut = 88
sChk = 89
sCs = 90
sKVt = 92
sD0, sD1 = 93, 94
sPend, sRem = 95, 96
sOp = 97
sRdy = 98
sHi, sPl, sC0, sMQ = 4, 5, 6, 7
sCq, sNone = 3, 100
NSGPR = 102


def ts(idx, grp=1):
    if OPT.get("padat") == 100 * grp + idx:
        A(f"s_memrealtime s[{sTS}:{sTS+1}]\ns_waitcnt lgkmcnt(0)")
    if not OPT["ts"] or (idx != 0 and OPT["ts"] != grp):
        return
    A(f"""{"s_memtime" if OPT.get("clk") else "s_memrealtime"} s[{sTS}:{sTS+1}]
    s_waitcnt lgkmcnt(0)
    v_writelane_b32 v{vTS}, s{sTS}, {idx}""")


def tsd(code, val=0):
    A(tsdt(code, val))


def tsdt(code, val=0):
    if OPT["ts"] != 5:
        return ""
    return (f"""s_memrealtime s[{sTS}:{sTS+1}]
    s_waitcnt lgkmcnt(0)
    s_lshl_b32 s{sTS}, s{sTS}, 8
    s_or_b32 s{sTS}, s{sTS}, {code << 4}
    s_or_b32 s{sTS}, s{sTS}, {val}
    s_mov_b32 m0, s11
    v_writelane_b32 v{vTS}, s{sTS}, m0
    s_add_u32 s11, s11, 1
    s_min_u32 s11, s11, 63""")


ASR = [20, 22, 54, 56, 58, 68, 66, 72, 90, 26, 6]


def tsa(i):
    if OPT["ts"] == 6:
        A(f"s_memrealtime s[{ASR[i]}:{ASR[i]+1}]")


class Cnt:
    def __init__(self, name, cap):
        self.name, self.cap, self.q = name, cap, []

    def room(self):
        if len(self.q) >= self.cap:
            A(f"s_waitcnt {self.name}({self.cap - 4})")
            self.q = self.q[len(self.q) - (self.cap - 4):]

    def issue(self, tag, n=1):
        self.q += [tag] * n
        assert len(self.q) <= self.cap, (self.name, self.q)

    def wait(self, *tags):
        idx = [i for i, t in enumerate(self.q) if t in tags]
        if idx:
            n = len(self.q) - 1 - idx[-1]
            A(f"s_waitcnt {self.name}({n})")
            self.q = self.q[idx[-1] + 1:]


def lines(text):
    return [x.strip() for x in text.split("\n") if x.strip()]


def emit(lst, n):
    for _ in range(min(n, len(lst))):
        A(lst.pop(0))


V = Alloc(1, 256)
vLane = V()
vTS = V()
vL16 = V()
vIdx = V()
vT = [V() for _ in range(6)]
t0, t1, t2, t3, t4, t5 = vT
vQm = V()
DEAD = V(8)
vQw, vQr, vBase, vCur, vWod, vPl, vPc, vBk = range(DEAD, DEAD + 8)
vOa, vW0, vW1, vSn, vRw, vMf, vTw, vTr, vOs, vOs2, vLp = [V() for _ in range(11)]
vTag = V()
vTag2 = V()
vFl = V(2)
m_ph = V.mark()
Xr = V(112)
acc0, acc1 = V(16), V(16)
Wf = V(24)
accQ = V(16)
Wg = V(12)
vXd = [V() for _ in range(4)]
vWd, vWd2 = V(), V()
vWq = V()
vXa = [V() for _ in range(4)]
vWr = [V(), V()]
vWqr = V()
vSt = [V() for _ in range(4)]
vP = [V()]
vPd = V(4)
vOnes = accQ
V.reset(m_ph)
O = [V(16), V(16)]
Q = [V(8), V(8)]
S = [V(16) for _ in range(4)]
Kf = [V(8), V(8)]
Vf = [V(8), V(8)]
pk, pq = V(8), V(8)
Of = V(32)
acc = V(28)
assert O[0] == Xr and WQ == 0

A.label(NAME + "_kernel")
A(f"""s_cmp_ge_u32 s2, 256
s_cbranch_scc1 L_end
s_load_dwordx16 s[8:23], s[0:1], 0
s_load_dwordx2 s[24:25], s[0:1], 64
v_lshrrev_b32 v{t0}, 6, v0
v_and_b32 v{vLane}, 63, v0
v_readfirstlane_b32 s{sw}, v{t0}
v_lshlrev_b32 v{vL16}, 4, v{vLane}""")
if OPT.get("padto"):
    A(f"s_memrealtime s[{sTS}:{sTS+1}]")
if OPT["ts"]:
    A(f"""{"s_memtime" if OPT.get("clk") else "s_memrealtime"} s[{sTS}:{sTS+1}]
    v_mov_b32 v{vTS}, 0""")
if OPT["map"] == 1:
    A(f"""s_and_b32 s{sT0}, s2, 7
    s_lshr_b32 s{sT1}, s2, 3
    s_and_b32 s{sj}, s{sT1}, 7
    s_lshr_b32 s{sT1}, s{sT1}, 3
    s_lshl_b32 s{sT0}, s{sT0}, 2
    s_add_u32 s{sHH}, s{sT0}, s{sT1}""")
elif OPT["map"] == 2:
    A(f"""s_and_b32 s{sT0}, s2, 7
    s_lshr_b32 s{sT1}, s2, 3
    s_and_b32 s{sT2}, s{sT0}, 3
    s_lshl_b32 s{sT2}, s{sT2}, 1
    s_lshr_b32 s{sT3}, s{sT1}, 4
    s_add_u32 s{sj}, s{sT2}, s{sT3}
    s_lshr_b32 s{sT0}, s{sT0}, 2
    s_lshl_b32 s{sT0}, s{sT0}, 4
    s_and_b32 s{sT1}, s{sT1}, 15
    s_add_u32 s{sHH}, s{sT0}, s{sT1}""")
elif OPT["map"] == 3:
    A(f"""s_and_b32 s{sT0}, s2, 7
    s_lshr_b32 s{sT1}, s2, 3
    s_and_b32 s{sT2}, s{sT0}, 1
    s_lshl_b32 s{sT2}, s{sT2}, 2
    s_lshr_b32 s{sT3}, s{sT1}, 3
    s_add_u32 s{sj}, s{sT2}, s{sT3}
    s_lshr_b32 s{sT0}, s{sT0}, 1
    s_lshl_b32 s{sT0}, s{sT0}, 3
    s_and_b32 s{sT1}, s{sT1}, 7
    s_add_u32 s{sHH}, s{sT0}, s{sT1}""")
A(f"""s_lshr_b32 s{sb}, s{sHH}, 4
s_and_b32 s{sh}, s{sHH}, 15
s_lshr_b32 s{sKap}, s{sw}, 2""")
XCALC = (f"""s_cmp_gt_u32 s{sh}, 7
s_cselect_b32 s{sRole}, 1, 0
s_cselect_b32 s{sT0}, 16, 1
s_cselect_b32 s{sT1}, 1, 2
s_cselect_b32 s{sT2}, 2, 8
s_cselect_b32 s{sT3}, 8, 16
v_bfe_u32 v{t0}, v{vLane}, 3, 1
v_mul_u32_u24 v{t0}, s{sT0}, v{t0}
v_bfe_u32 v{t1}, v{vLane}, 4, 1
v_mad_u32_u24 v{t0}, v{t1}, s{sT1}, v{t0}
v_lshrrev_b32 v{t1}, 5, v{vLane}
v_lshl_add_u32 v{t0}, v{t1}, 2, v{t0}
v_mul_u32_u24 v{t3}, 896, v{t0}
s_mul_i32 s{sT2}, s{sT2}, 896
s_mul_i32 s{sT3}, s{sT3}, 896
s_sub_u32 s{sT2}, s{sT2}, 1024
s_sub_u32 s{sT3}, s{sT3}, 2048
v_lshrrev_b32 v{t1}, 4, v{vLane}
v_and_b32 v{t2}, 7, v{vLane}
v_xor_b32 v{t1}, v{t1}, v{t2}
v_lshl_add_u32 v{vXd[0]}, v{t1}, 4, v{t3}
v_xor_b32 v{t1}, 4, v{t1}
v_lshl_add_u32 v{t1}, v{t1}, 4, v{t3}
v_add_u32 v{vXd[1]}, s{sT2}, v{t1}
v_add_u32 v{vXd[2]}, s{sT3}, v{vXd[0]}
v_add_u32 v{vXd[3]}, s{sT3}, v{vXd[1]}
s_lshl_b32 s{sT0}, s{sj}, 3
s_add_u32 s{sT0}, s{sT0}, s{sw}
s_mul_i32 s{sXb}, s{sT0}, {32*896}
s_lshl_b32 s{sMX}, s{sw}, 12
s_lshl_b32 s{sT0}, s{sKap}, 14
s_add_u32 s{sMXs}, s{sMX}, s{sT0}
s_add_u32 s{sMXs}, s{sMXs}, {XS}
s_lshl_b32 s{sCx}, s{sC0}, 7
s_mov_b32 s{sX+2}, {2048*896}
s_mov_b32 s{sX+3}, 0x20000""")
if OPT["rot"] == 0:
    A(f"s_mov_b32 s{sC0}, 0")
else:
    if OPT["rot"] == 1:
        A(f"s_add_u32 s{sC0}, s{sh}, s{sj}")
    elif OPT["rot"] == 2:
        A(f"""s_mul_i32 s{sC0}, s{sh}, 7
        s_lshr_b32 s{sC0}, s{sC0}, 4
        s_add_u32 s{sC0}, s{sC0}, s{sj}""")
    elif OPT["rot"] == 4:
        A(f"""s_lshr_b32 s{sC0}, s{sh}, 2
        s_lshl_b32 s{sC0}, s{sC0}, 1
        s_add_u32 s{sC0}, s{sC0}, s{sj}""")
    elif OPT["rot"] == 5:
        A(f"""s_lshr_b32 s{sC0}, s{sh}, 2
        s_lshl_b32 s{sC0}, s{sC0}, 1
        s_and_b32 s{sT1}, s{sj}, 1
        s_lshl_b32 s{sT1}, s{sT1}, 2
        s_add_u32 s{sC0}, s{sC0}, s{sT1}""")
    elif OPT["rot"] == 3:
        A(f"""s_mul_i32 s{sC0}, s{sh}, 7
        s_lshr_b32 s{sC0}, s{sC0}, 4""")
    A(f"""s_mul_i32 s{sT1}, s{sC0}, 37
    s_lshr_b32 s{sT1}, s{sT1}, 8
    s_mul_i32 s{sT1}, s{sT1}, 7
    s_sub_u32 s{sC0}, s{sC0}, s{sT1}""")
PF = f"""s_and_b32 s{sT0}, s2, 0xf8
s_add_u32 s{sT0}, s{sT0}, s{sw}
s_mul_i32 s{sT0}, s{sT0}, 192
s_getpc_b64 s[{sRet}:{sRet+1}]
L_nopf:
v_and_b32 v{t4}, 0x80, v{vL16}
v_add_u32 v{t4}, s{sT0}, v{t4}
v_min_u32 v{t4}, CODE_SPAN, v{t4}
global_load_dword v{t5}, v{t4}, s[{sRet}:{sRet+1}]"""
if OPT["pf"] == 1:
    A(PF)
SEL = f"""s_cmp_eq_u32 s{sb}, 0
s_waitcnt lgkmcnt(0)
s_cselect_b32 s{sX}, s8, s14
s_cselect_b32 s{sX+1}, s9, s15
s_cselect_b32 s{sW}, s10, s16
s_cselect_b32 s{sW+1}, s11, s17
s_cselect_b32 s{sWO}, s12, s18
s_cselect_b32 s{sWO+1}, s13, s19
{f"v_writelane_b32 v{vTS}, s{sTS}, 0" if OPT["ts"] else ""}"""


def x_pieces(c, slot=None):
    p = [f"""s_add_u32 m0, s{sMXs}, {(c % 2 if slot is None else slot) * 16384}
    s_add_u32 s{sD0}, s{sCx}, s{sXb}
    buffer_load_dwordx4 v{vXd[0]}, s[{sX}:{sX+3}], s{sD0} offen{NTX} lds
    s_add_u32 s{sCx}, s{sCx}, 128
    s_cmp_eq_u32 s{sCx}, 896
    s_cselect_b32 s{sCx}, 0, s{sCx}"""]
    for i in range(1, 4):
        p.append(f"buffer_load_dwordx4 v{vXd[i]}, s[{sX}:{sX+3}], s{sD0} offen offset:{1024*i}{NTX} lds")
    return [(x, f"X{c}") for x in p]


def w_pieces(it):
    return [(f"""s_add_u32 m0, s{sMW}, {it*8192}
    s_add_u32 s{sD1}, s{sCw}, s{sWb}
    buffer_load_dwordx4 v{vWd}, s[{sW}:{sW+3}], s{sD1} offen lds
    s_add_u32 s{sCw}, s{sCw}, {64*2688}
    s_cmp_eq_u32 s{sCw}, {448*2688}
    s_cselect_b32 s{sCw}, 0, s{sCw}""", f"W{it}"),
            (f"buffer_load_dwordx4 v{vWd2}, s[{sW}:{sW+3}], s{sD1} offen offset:1024 lds", f"W{it}")]


def wq_piece(i):
    return (f"""s_add_u32 m0, s{sMQ}, {i*4096}
    s_add_u32 s{sD1}, s{sCq}, s{sWq}
    buffer_load_dwordx4 v{vWq}, s[{sW}:{sW+3}], s{sD1} offen lds
    s_add_u32 s{sCq}, s{sCq}, {64*2688}
    s_cmp_eq_u32 s{sCq}, {448*2688}
    s_cselect_b32 s{sCq}, 0, s{sCq}""", "WQ")


WCALC = f"""s_mov_b32 s{sW+2}, {448*2688}
s_mov_b32 s{sW+3}, 0x20000
s_cmp_gt_u32 s{sh}, 6
s_subb_u32 s{sLine}, s{sh}, 0
s_cmp_gt_u32 s{sh}, 9
s_subb_u32 s{sLine}, s{sLine}, 0
s_lshl_b32 s{sWb}, s{sLine}, 7
s_cmp_ge_u32 s{sLine}, 7
s_cselect_b32 s{sT0}, 7, 0
s_sub_u32 s{sLine}, s{sLine}, s{sT0}
s_and_b32 s{sT1}, s{sw}, 3
s_mul_i32 s{sT0}, s{sT1}, {16*2688}
s_add_u32 s{sWb}, s{sWb}, s{sT0}
s_add_u32 s{sWb}, s{sWb}, 896
s_mul_i32 s{sCw}, s{sC0}, {64*2688}
s_lshl_b32 s{sMW}, s{sT1}, 11
s_add_u32 s{sMW}, s{sMW}, {WL}
v_lshrrev_b32 v{t0}, 3, v{vLane}
v_mul_u32_u24 v{t0}, 2688, v{t0}
v_bfe_u32 v{t1}, v{vLane}, 4, 1
v_lshlrev_b32 v{t1}, 2, v{t1}
v_and_b32 v{t2}, 7, v{vLane}
v_xor_b32 v{t1}, v{t1}, v{t2}
v_lshl_add_u32 v{vWd}, v{t1}, 4, v{t0}
v_add_u32 v{vWd2}, {8*2688-1024}, v{vWd}"""
NW0 = OPT["nw0"]
A(f"""s_lshr_b32 s{sNone}, 0x240, s{sh}
s_and_b32 s{sNone}, s{sNone}, 1
s_cmp_gt_u32 s{sKap}, s{sNone}
s_cbranch_scc1 L_wfirst""")
A(XCALC)
A(SEL)
for p, _ in x_pieces(0) + x_pieces(1):
    A(p)
ts(1, 2)
A(WCALC)
A("s_branch L_now")
A.label("L_wfirst")
A(WCALC)
A(SEL)
for it in range(NW0):
    for p, _ in w_pieces(it):
        A(p)
ts(1, 2)
A(XCALC)
TOUCH = f"""v_lshrrev_b32 v{t0}, 3, v{vLane}
v_and_b32 v{t1}, 7, v{vLane}
v_min_u32 v{t1}, 6, v{t1}
v_lshlrev_b32 v{t1}, 7, v{t1}
s_and_b32 s{sT1}, s{sw}, 3
s_lshl_b32 s{sT0}, s{sh}, 2
s_add_u32 s{sT0}, s{sT0}, s{sT1}
s_lshl_b32 s{sT2}, s{sj}, 7
s_add_u32 s{sT2}, s{sT2}, s{sT0}
s_add_u32 s{sT2}, s{sT2}, 64
s_mul_i32 s{sT2}, s{sT2}, {2*896}
s_movk_i32 s{sT3}, 896
v_mad_u32_u24 v{t3}, v{t0}, s{sT3}, v{t1}
s_lshl_b32 s{sT0}, s{sT0}, 3
s_add_u32 s{sT0}, s{sT0}, s{sj}
s_mul_i32 s{sT0}, s{sT0}, 2688
s_mov_b64 exec, 0xffff
buffer_load_dword v{t5}, v{t3}, s[{sX}:{sX+3}], s{sT2} offen
s_mov_b64 exec, 0xff
buffer_load_dword v{t5}, v{t1}, s[{sW}:{sW+3}], s{sT0} offen
s_mov_b64 exec, -1"""
if OPT["tch"] == 1:
    A(TOUCH)
A.label("L_now")

EARLY = lines(f"""s_lshl_b32 s{sT0}, s{sb}, 8
s_add_u32 s{sT0}, s{sT0}, {EPOCH_OFF}
s_load_dword s{sE}, s[24:25], s{sT0}
v_lshrrev_b32 v{t2}, 5, v{vLane}
v_and_b32 v{t0}, 31, v{vLane}
v_bfe_u32 v{t1}, v{vLane}, 1, 3
v_xor_b32 v{t1}, v{t1}, v{t2}
v_lshlrev_b32 v{t0}, 7, v{t0}
v_add_u32 v{t0}, s{sMXs}, v{t0}""")
for sst in range(4):
    EARLY += lines(f"""v_xor_b32 v{t3}, {2*sst}, v{t1}
    v_lshl_add_u32 v{vXa[sst]}, v{t3}, 4, v{t0}""")
EARLY += lines(f"""v_bfe_u32 v{t1}, v{vLane}, 2, 2
v_lshl_add_u32 v{t0}, v{t2}, 3, v{t1}
v_bfe_u32 v{t3}, v{vLane}, 4, 1
v_and_b32 v{t4}, 3, v{vLane}
v_lshlrev_b32 v{t4}, 3, v{t4}
v_lshl_add_u32 v{t4}, v{t3}, 5, v{t4}
v_lshl_add_u32 v{vWqr}, v{t0}, 6, v{t4}
v_lshl_add_u32 v{t4}, v{t0}, 7, v{t4}
v_lshrrev_b32 v{t1}, 1, v{t1}
v_lshl_add_u32 v{t4}, v{t1}, 6, v{t4}
v_add_u32 v{vWr[0]}, {WL}, v{t4}
v_xor_b32 v{vWr[1]}, 64, v{vWr[0]}""")

MID = lines(f"""s_and_b32 s{sT0}, s{sh}, 1
s_lshl_b32 s{sT0}, s{sT0}, 3
s_add_u32 s{sT0}, s{sT0}, {WQ}
v_add_u32 v{vWqr}, s{sT0}, v{vWqr}
s_mul_i32 s{sWq}, s{sh}, 56
s_and_b32 s{sWq}, s{sWq}, 0xfffffff0
s_and_b32 s{sT0}, s{sw}, 3
s_lshl_b32 s{sMQ}, s{sT0}, 10
s_mul_i32 s{sT0}, s{sT0}, {16*2688}
s_add_u32 s{sWq}, s{sWq}, s{sT0}
s_mul_i32 s{sCq}, s{sC0}, {64*2688}
v_lshrrev_b32 v{t0}, 2, v{vLane}
v_mul_u32_u24 v{t0}, 2688, v{t0}
v_and_b32 v{t1}, 3, v{vLane}
v_lshl_add_u32 v{vWq}, v{t1}, 4, v{t0}""")
MID += lines(f"""s_mov_b32 s{sWS}, s24
s_mov_b32 s{sWS+1}, s25
s_mov_b32 s{sWS+2}, {WS_BYTES}
s_mov_b32 s{sWS+3}, 0x20000
s_lshl_b32 s{sKVt}, s{sb}, 22
s_lshl_b32 s{sRel}, s{sj}, 15
s_add_u32 s{sRel}, s{sRel}, s{sMX}
s_add_u32 s{sKVt}, s{sKVt}, s{sRel}
s_add_u32 s{sKVt}, s{sKVt}, {KV_OFF}
s_and_b32 s{sT0}, s{sw}, 3
s_lshl_b32 s{sT0}, s{sT0}, 1
s_lshl_b32 s{sT1}, s{sb}, 3
s_add_u32 s{sT1}, s{sT1}, s{sj}
s_lshl_b32 s{sT1}, s{sT1}, 3
s_add_u32 s{sT0}, s{sT0}, s{sT1}
s_lshl_b32 s{sT0}, s{sT0}, 4
s_add_u32 s{sT0}, s{sT0}, s{sh}
s_lshl_b32 s{sOp}, s{sT0}, 11
s_add_u32 s{sOp}, s{sOp}, {O_OFF}
s_lshl_b32 s{sOt}, s{sKap}, 15
s_add_u32 s{sOt}, s{sOt}, s{sOp}
v_mov_b32 v{vPd}, {0x3f80 if OPT["off"] else 0}
v_mov_b32 v{vPd+1}, 0
v_mov_b32 v{vPd+2}, {0x3f80 if OPT["off"] else 0}
v_mov_b32 v{vPd+3}, 0
s_add_u32 s{sFl}, s{sT1}, s{sw}
s_mul_i32 s{sFl}, s{sFl}, {FS}
s_lshl_b32 s{sT0}, s{sh}, {ES}
s_add_u32 s{sFl}, s{sFl}, s{sT0}
s_add_u32 s{sFl}, s{sFl}, {FLAG_OFF}
s_add_u32 s{sHo}, s{sFl}, {HINT}""")
LATE = lines(f"""s_lshl_b32 s{sPl}, s{sb}, 6
s_and_b32 s{sT1}, s{sw}, 3
s_add_u32 s{sPl}, s{sPl}, s{sT1}
s_mul_i32 s{sPl}, s{sPl}, {FS}
s_add_u32 s{sPl}, s{sPl}, {FLAG_OFF}
s_add_u32 s{sT0}, s{sj}, s{sKap}
s_and_b32 s{sT0}, s{sT0}, 7
s_lshl_b32 s{sRel}, s{sT0}, 15
s_lshl_b32 s{sT1}, s{sT1}, 12
s_add_u32 s{sRel}, s{sRel}, s{sT1}
v_bfe_u32 v{t3}, v{vLane}, 2, 2
v_lshl_add_u32 v{t3}, v{t3}, 1, s{sT0}
v_lshrrev_b32 v{t1}, 5, v{vLane}
v_add_u32 v{t3}, v{t3}, v{t1}
v_and_b32 v{t3}, 7, v{t3}
v_bfe_u32 v{t1}, v{vLane}, 4, 1
v_lshl_add_u32 v{t3}, v{t3}, 1, v{t1}
v_mul_u32_u24 v{t3}, {4*FS}, v{t3}
s_mul_i32 s{sT0}, s{sh}, 28
s_add_u32 s{sT1}, s{sT0}, 27
s_lshr_b32 s{sT0}, s{sT0}, 6
s_lshr_b32 s{sT1}, s{sT1}, 6
s_sub_u32 s{sT1}, s{sT1}, s{sT0}
v_and_b32 v{t0}, 1, v{vLane}
v_mul_u32_u24 v{t0}, s{sT1}, v{t0}
v_add_u32 v{t0}, s{sT0}, v{t0}
v_bfe_u32 v{t1}, v{vLane}, 1, 1
v_mad_u32_u24 v{t0}, v{t1}, 7, v{t0}
v_add_u32 v{t4}, 10, v{t0}
v_lshrrev_b32 v{t4}, 4, v{t4}
v_lshrrev_b32 v{t2}, 3, v{t0}
v_add3_u32 v{t0}, v{t0}, v{t4}, v{t2}
s_sub_u32 s{sT2}, s{sT1}, 1
s_and_b32 s{sT2}, s{sT2}, 0xaaaaaaaa
s_mov_b32 s{sT3}, s{sT2}
v_mad_u32_u24 v{t1}, v{t1}, 3, 6
v_cndmask_b32 v{t0}, v{t0}, v{t1}, s[{sT2}:{sT3}]
v_lshl_add_u32 v{vPl}, v{t0}, {ES}, v{t3}
s_lshl_b32 s{sKV}, s{sHH}, 18
s_add_u32 s{sKV}, s{sKV}, {KV_OFF}
s_mov_b32 s{sDone}, s{sKap}""")
LATE += lines(f"""s_mov_b32 s{sLo}, -1
s_mov_b32 s{sLo+1}, 0
s_mov_b32 s{sCs}, {hex(f2u(CSCALE))}
s_mov_b32 s{sCs+1}, {hex(f2u(CSCALE))}
s_and_b32 s{sT1}, s{sw}, 3
v_mov_b32 v{vIdx}, 0xdddddddd
s_or_b32 s{sT2}, s{sT1}, 1
s_add_u32 s{sT0}, s{sT1}, s{sT2}
s_lshl_b32 s{sT0}, s{sT0}, 11
s_add_u32 s{sT0}, s{sT0}, {XS+32768}
s_lshl_b32 s{sT2}, s{sT1}, 11
s_add_u32 s{sT2}, s{sT2}, {QOLD}
s_sub_u32 s{sT0}, s{sT0}, s{sT2}
s_mul_i32 s{sT0}, s{sT0}, s{sKap}
s_add_u32 s{sT0}, s{sT0}, s{sT2}
v_and_b32 v{t0}, 1, v{vLane}
v_lshlrev_b32 v{t0}, 4, v{t0}
v_bfe_u32 v{t1}, v{vLane}, 4, 1
v_lshl_add_u32 v{t0}, v{t1}, 3, v{t0}
v_bfe_u32 v{t1}, v{vLane}, 3, 1
v_lshl_add_u32 v{t0}, v{t1}, 1, v{t0}
v_bfe_u32 v{t1}, v{vLane}, 1, 1
v_add_u32 v{t0}, v{t0}, v{t1}
v_and_b32 v{t1}, 0x24, v{vLane}
v_add_u32 v{t0}, v{t0}, v{t1}
v_sub_u32 v{t0}, v{t0}, v{vLane}
v_mul_lo_u32 v{t0}, v{t0}, s{sRole}
v_add_u32 v{t0}, v{t0}, v{vLane}
v_lshl_add_u32 v{vQw}, v{t0}, 4, s{sT0}
s_lshr_b32 s{sT3}, s{sT1}, 1
s_and_b32 s{sT2}, s{sT1}, 1
s_add_u32 s{sT0}, s{sT3}, 12
s_lshl_b32 s{sT2}, s{sT2}, s{sT0}
s_mul_i32 s{sT3}, s{sT3}, {(XS+32768+2048-QOLD) & 0xffffffff}
s_add_u32 s{sT2}, s{sT2}, s{sT3}
s_add_u32 s{sT2}, s{sT2}, {QOLD}
s_lshl_b32 s{sT0}, s{sKap}, 11
s_sub_u32 s{sT3}, s{sT2}, s{sT0}
s_add_u32 s{sT2}, s{sT2}, s{sT0}
v_add_u32 v{vQr}, s{sT3}, v{vL16}
v_add_u32 v{vOs2}, s{sT2}, v{vL16}
s_lshl_b32 s{sT0}, s{sKap}, 14
v_add_u32 v{vBase}, s{sT0}, v{vL16}
v_add_u32 v{vCur}, 0x10000, v{vBase}
v_lshl_add_u32 v{vBk}, v{vLane}, 3, s{sT0}
v_add_u32 v{vTag2}, 0x10000, v{vBk}""")
L1, LATE = LATE, []
LATE += lines(f"""s_mov_b32 s{sWO+2}, {448*896}
s_mov_b32 s{sWO+3}, 0x20000
s_mov_b32 s{sOUT}, s20
s_mov_b32 s{sOUT+1}, s21
s_mov_b32 s{sOUT+2}, {2048*1792}
s_mov_b32 s{sOUT+3}, 0x20000
s_mov_b32 s{sChk}, {0 if OPT['force_slow'] else L_RANGE}
s_and_b32 s{sWoff}, s{sh}, 3
s_mul_i32 s{sWoff}, s{sWoff}, 224""")
LATE += lines(f"""s_lshl_b32 s{sT1}, s{sb}, 3
s_add_u32 s{sT1}, s{sT1}, s{sj}
s_lshl_b32 s{sT1}, s{sT1}, 3
s_lshr_b32 s{sT0}, s{sh}, 2
s_bfe_u32 s{sT2}, s{sw}, 0x10001
s_lshl_b32 s{sPc}, s{sT2}, 2
s_add_u32 s{sPc}, s{sPc}, s{sT0}
s_add_u32 s{sPc}, s{sPc}, s{sT1}
s_mul_i32 s{sPc}, s{sPc}, {FS}
s_add_u32 s{sPc}, s{sPc}, {FLAG_OFF + 64}
s_lshl_b32 s{sT3}, s{sT0}, 1
s_add_u32 s{sT3}, s{sT3}, s{sT2}
s_add_u32 s{sT3}, s{sT3}, s{sT1}
s_lshl_b32 s{sOin}, s{sT3}, 15
s_add_u32 s{sOin}, s{sOin}, {O_OFF}
s_and_b32 s{sT3}, s{sw}, 1
s_lshl_b32 s{sT3}, s{sT3}, 8
s_add_u32 s{sOin}, s{sOin}, s{sT3}
s_lshl_b32 s{sT3}, s{sKap}, 11
s_add_u32 s{sOin}, s{sOin}, s{sT3}""")
LATE += lines(f"""s_lshl_b32 s{sT1}, s{sj}, 2
s_add_u32 s{sT0}, s{sT0}, s{sT1}
s_lshl_b32 s{sT0}, s{sT0}, 2
s_and_b32 s{sT1}, s{sw}, 3
s_add_u32 s{sT0}, s{sT0}, s{sT1}
s_mul_i32 s{sOut}, s{sT0}, {16*1792}
s_mul_i32 s{sT0}, s{sb}, 896
s_add_u32 s{sOut}, s{sOut}, s{sT0}
s_add_u32 s{sOut}, s{sOut}, s{sWoff}
v_and_b32 v{t2}, 7, v{vLane}
s_add_u32 s{sT0}, s{sT1}, 5
s_lshl_b32 s{sT0}, s{sT0}, 13
s_and_b32 s{sT0}, s{sT0}, 0xffff
v_add_u32 v{vRw}, s{sT0}, v{vL16}
s_lshl_b32 s{sT2}, s{sT1}, 2
s_add_u32 s{sT2}, s{sT2}, {MISC}
v_mov_b32 v{vMf}, s{sT2}
s_mul_i32 s{sT2}, s{sT1}, 3072
s_add_u32 s{sT2}, s{sT2}, {SND}
v_add_u32 v{vSn}, s{sT2}, v{vL16}
v_lshrrev_b32 v{t1}, 3, v{vLane}
s_lshl_b32 s{sT2}, s{sKap}, 11
s_add_u32 s{sT0}, s{sT0}, s{sT2}
s_add_u32 s{sT0}, s{sT0}, 4096
v_xor_b32 v{t3}, v{t1}, v{t2}
v_lshlrev_b32 v{t3}, 4, v{t3}
v_lshl_add_u32 v{t3}, v{t1}, 7, v{t3}
v_add_u32 v{vTr}, s{sT0}, v{t3}
s_and_b32 s{sCg}, s{sh}, {3 if OPT["rotc"] else 0}
s_lshl_b32 s{sCg}, s{sCg}, 1
s_lshl_b32 s{sT2}, s{sKap}, 3
s_add_u32 s{sT2}, s{sT2}, s{sCg}
v_add_u32 v{t4}, s{sT2}, v{t2}
v_subrev_u32 v{t3}, 14, v{t4}
v_min_u32 v{t4}, v{t4}, v{t3}
v_mul_u32_u24 v{t3}, 1792, v{t1}
v_lshl_add_u32 v{vOs}, v{t4}, 4, v{t3}
v_add_u32 v{t3}, 2, v{t2}
v_lshrrev_b32 v{t3}, 3, v{t3}
v_mul_u32_u24 v{t3}, s{sKap}, v{t3}
v_lshl_add_u32 v{vOs}, v{t3}, 30, v{vOs}
v_and_b32 v{t0}, 15, v{vLane}
v_lshrrev_b32 v{t1}, 4, v{vLane}
v_lshrrev_b32 v{t3}, 1, v{t1}
v_xor_b32 v{t3}, v{t3}, v{t2}
v_lshlrev_b32 v{t3}, 4, v{t3}
v_lshl_add_u32 v{t3}, v{t0}, 7, v{t3}
v_and_b32 v{t4}, 1, v{t1}
v_lshl_add_u32 v{t3}, v{t4}, 3, v{t3}
v_add_u32 v{vTw}, s{sT0}, v{t3}
v_lshlrev_b32 v{vPc}, {ES}, v{t0}
v_lshlrev_b32 v{t2}, 12, v{t2}
v_add_u32 v{vLp}, {3*512+15*16}, v{t2}
v_lshlrev_b32 v{t2}, 9, v{t1}
v_lshl_add_u32 v{vOa}, v{t0}, 4, v{t2}""")
LATE += lines(f"""v_lshrrev_b32 v{t2}, 1, v{t1}
v_lshlrev_b32 v{t2}, 4, v{t2}
v_lshl_add_u32 v{t2}, v{t4}, 2, v{t2}
v_bfe_u32 v{t3}, v{vLane}, 2, 2
v_add_u32 v{t2}, v{t2}, v{t3}
v_mul_u32_u24 v{t2}, 224, v{t2}
v_and_b32 v{t3}, 3, v{vLane}
v_lshl_add_u32 v{t2}, v{t3}, 3, v{t2}
v_add_u32 v{t3}, 1, v{t1}
v_lshrrev_b32 v{t3}, 2, v{t3}
v_mul_u32_u24 v{t3}, {4*224}, v{t3}
v_sub_u32 v{t3}, v{t2}, v{t3}
s_mul_i32 s{sT0}, s{sKap}, 6272
s_add_u32 s{sT0}, s{sT0}, {WOB}
v_add_u32 v{vW0}, s{sT0}, v{t2}
s_add_u32 s{sT0}, s{sT0}, {8*224}
v_add_u32 v{vW1}, s{sT0}, v{t3}
s_mul_i32 s{sSp}, s{sKap}, {(WO15 - WOB - 6272 - 7*12544) & 0xffffffff}
s_add_u32 s{sSp}, s{sSp}, {7*12544}""")
LATE += lines(f"""v_mul_u32_u24 v{t2}, 0x4925, v{vLane}
v_lshrrev_b32 v{t2}, 18, v{t2}
v_mul_u32_u24 v{t3}, 14, v{t2}
v_sub_u32 v{t3}, v{vLane}, v{t3}
v_add_u32 v{t3}, s{sCg}, v{t3}
v_subrev_u32 v{t4}, 14, v{t3}
v_min_u32 v{t3}, v{t3}, v{t4}
v_mul_u32_u24 v{t2}, 896, v{t2}
v_lshl_add_u32 v{vWod}, v{t3}, 4, v{t2}
s_mul_i32 s{sWn}, s{sw}, 3584
s_add_u32 s{sWn}, s{sWn}, s{sWoff}
s_mul_i32 s{sWm}, s{sw}, 896
s_add_u32 s{sWm13}, s{sWm}, {WO15-896}
s_max_u32 s{sT0}, s{sw}, 1
s_sub_u32 s{sT0}, s{sT0}, s{sw}
s_mul_i32 s{sT0}, s{sT0}, {WOB+104*896-(WO15-896)}
s_add_u32 s{sWm13}, s{sWm13}, s{sT0}""")
L2 = LATE
ENDS = lines(f"""s_mul_i32 s{sT2}, s{sLine}, {16*9363}
s_add_u32 s{sT3}, s{sT2}, {16*9363}
s_lshr_b32 s{sT2}, s{sT2}, 16
s_lshr_b32 s{sT3}, s{sT3}, 16
s_sub_u32 s{sT3}, s{sT3}, s{sT2}
s_lshl_b32 s{sT2}, s{sT2}, 18""")
FK = lines(f"""v_and_b32 v{t0}, 15, v{vLane}
v_lshlrev_b32 v{t0}, 4, v{t0}
v_bfe_u32 v{t1}, v{vLane}, 4, 1
v_lshrrev_b32 v{t4}, 5, v{vLane}
v_lshl_add_u32 v{t1}, v{t1}, 1, v{t4}
s_lshl_b32 s{sT0}, s{sLine}, 4
v_add_u32 v{t1}, s{sT0}, v{t1}""")
for i in range(4):
    FK += lines(f"""v_add_u32 v{t2}, {4*i}, v{t1}
    v_mul_u32_u24 v{t3}, 9363, v{t2}
    v_lshrrev_b32 v{t3}, 16, v{t3}
    v_lshl_add_u32 v{vSt[i]}, v{t3}, 18, v{t0}
    v_mul_u32_u24 v{t3}, 7, v{t3}
    v_sub_u32 v{t2}, v{t2}, v{t3}
    v_lshl_add_u32 v{vSt[i]}, v{t2}, 8, v{vSt[i]}""")
FK += ENDS + lines(f"""s_add_u32 s{sT2}, s{sT2}, {7*256}
v_lshrrev_b32 v{t1}, 4, v{vLane}
v_cmp_gt_u32 vcc, s{sT3}, v{t1}
v_lshl_add_u32 v{t0}, v{t1}, 18, v{t0}
v_add_u32 v{t0}, s{sT2}, v{t0}
v_mov_b32 v{t3}, {OOB}
v_cndmask_b32 v{vP[0]}, v{t3}, v{t0}, vcc""")
FV = lines(f"""v_and_b32 v{t0}, 31, v{vLane}
s_lshl_b32 s{sT0}, s{sLine}, 6
v_add_u32 v{t0}, s{sT0}, v{t0}
v_and_b32 v{t4}, 32, v{vLane}""")
for ct in range(2):
    FV += lines(f"""v_add_u32 v{t2}, {32*ct}, v{t0}
    v_mul_u32_u24 v{t3}, 2341, v{t2}
    v_lshrrev_b32 v{t3}, 16, v{t3}
    v_mul_u32_u24 v{t1}, 28, v{t3}
    v_sub_u32 v{t2}, v{t2}, v{t1}
    v_add_u32 v{t2}, v{t2}, v{t4}
    v_lshlrev_b32 v{t2}, 4, v{t2}
    v_lshl_add_u32 v{t2}, v{t3}, 18, v{t2}
    v_add_u32 v{vSt[2*ct]}, 2048, v{t2}
    v_add_u32 v{vSt[2*ct+1]}, 3072, v{t2}""")
FV += ENDS + lines(f"""s_add_u32 s{sT2}, s{sT2}, {2048+28*16}
v_lshrrev_b32 v{t0}, 4, v{vLane}
v_cmp_gt_u32 vcc, s{sT3}, v{t0}
v_bfe_u32 v{t1}, v{vLane}, 2, 2
v_lshlrev_b32 v{t1}, 9, v{t1}
v_lshl_add_u32 v{t1}, v{t0}, 18, v{t1}
v_and_b32 v{t2}, 3, v{vLane}
v_lshl_add_u32 v{t1}, v{t2}, 4, v{t1}
v_add_u32 v{t1}, s{sT2}, v{t1}
v_mov_b32 v{t3}, {OOB}
v_cndmask_b32 v{vP[0]}, v{t3}, v{t1}, vcc
v_cmp_eq_u32 vcc, 0, v{t2}
v_mov_b32 v{t3}, 0x3f803f80
s_nop 0
v_cndmask_b32 v{vPd}, 0, v{t3}, vcc
v_mov_b32 v{vPd+1}, v{vPd}
v_mov_b32 v{vPd+2}, v{vPd}
v_mov_b32 v{vPd+3}, v{vPd}""")


def st16(data, addr, soff, off=0):
    return (f"buffer_store_dwordx4 {v(data,4)}, v{addr}, s[{sWS}:{sWS+3}], s{soff} offen offset:{off} sc1", "ST")


def st8(data, addr, soff):
    return (f"buffer_store_dwordx2 {v(data,2)}, v{addr}, s[{sWS}:{sWS+3}], s{soff} offen sc1", "ST")


POS = [32768, 0, 65536]


def kv_addr(blk, t, off):
    p = POS[blk % 3] + t * 4096 + off
    return (vCur, p - 65536) if POS[blk % 3] >= 65536 else (vBase, p)


def kv_next(st):
    pos = POS[st % 3]
    return f"""s_add_u32 s{sRel}, s{sRel}, {0x14000 if st == 4 else 0x10000}
    s_and_b32 s{sRel}, s{sRel}, 0x3ffff
    s_add_u32 m0, s{sMX}, {pos}
    s_add_u32 s{sD0}, s{sRel}, s{sKV}"""


def kv_piece(i):
    return f"buffer_load_dwordx4 v{vL16}, s[{sWS}:{sWS+3}], s{sD0} offen offset:{1024*i}{['', ' sc1', ' nt', ' sc1 nt'][OPT.get('kvs', 1)]} lds"


def flag_text(second=False):
    return f"""s_mov_b64 exec, 1
    buffer_store_dword v{vTag}, v{vL16}, s[{sWS}:{sWS+3}], s{sFl} offen offset:{64 if second else 0} sc1
    s_mov_b64 exec, -1"""


def poll_text(mask):
    return f"""s_mov_b64 exec, {mask if mask < 64 else hex(mask)}
    buffer_load_dword v{vFl}, v{vPl}, s[{sWS}:{sWS+3}], s{sPl} offen sc1
    s_mov_b64 exec, -1"""


def poll_issue(mask=15):
    A(poll_text(mask))


ntry = [0]


def hook_try(level=2):
    ntry[0] += 1
    A(f"""s_cmp_ge_u32 s{sDone}, {level}
    s_cbranch_scc1 L_skip{ntry[0]}
    s_call_b64 s[{sRet}:{sRet+1}], L_try""")
    A.label(f"L_skip{ntry[0]}")


def spin(level, name):
    A(f"s_mov_b32 s{sSpin}, 0x40000")
    A.label(name)
    A(f"""s_cmp_ge_u32 s{sDone}, {level}
    s_cbranch_scc1 {name}_done
    s_call_b64 s[{sRet}:{sRet+1}], L_try
    s_sub_u32 s{sSpin}, s{sSpin}, 1
    s_cbranch_scc0 {name}""")
    A.label(name + "_done")


POLL0 = f"""s_mov_b32 exec_lo, 15
    s_mov_b32 exec_hi, 15
    buffer_load_dword v{vFl}, v{vPl}, s[{sWS}:{sWS+3}], s{sPl} offen sc1
    s_mov_b64 exec, -1"""
CALL_REST = f"s_call_b64 s[{sRet}:{sRet+1}], L_rest"
pqq = Wf + 16


class Stream:
    def __init__(self, role):
        self.role = role
        self.vm, self.lg = Cnt("vmcnt", 63), Cnt("lgkmcnt", 15)
        self.slot = [c % 2 for c in range(7)]
        self.nkv = self.nq = 0

    def dma(self, p):
        A(p[0])
        self.vm.issue(p[1])

    def ds(self, text, tag):
        self.lg.room()
        A(text)
        self.lg.issue(tag)

    def xreads(self, c):
        return [(f"ds_read_b128 {v(Xr+16*c+4*st,4)}, v{vXa[st]} offset:{self.slot[c] * 16384}", f"R{c}") for st in range(4)]

    def mk(self, kv=None, q=None):
        rd, mm, need = [], [], []
        tag = f"F{kv}_{q}"
        if kv is not None:
            b = Wf + 8 * (self.nkv % 3)
            self.nkv += 1
            for ct in range(2):
                for u in range(2):
                    rd.append((f"ds_read_b64_tr_b16 {v(b+4*ct+2*u,2)}, v{vWr[ct]} offset:{kv*2048+u*512}", tag))
                ac = [acc0, acc1][ct]
                wf, xf = v(b + 4 * ct, 4), v(Xr + 4 * kv, 4)
                a_, b_ = (wf, xf) if self.role == "K" else (xf, wf)
                mm.append(f"v_mfma_f32_32x32x16_bf16 {v(ac,16)}, {a_}, {b_}, {'0' if kv == 0 else v(ac,16)}")
            need.append(f"R{kv//4}")
        if q is not None:
            b = Wg + 4 * (self.nq % 3)
            self.nq += 1
            for u in range(2):
                rd.append((f"ds_read_b64_tr_b16 {v(b+2*u,2)}, v{vWqr} offset:{q*1024+u*256}", tag))
            mm.append(f"v_mfma_f32_32x32x16_bf16 {v(accQ,16)}, {v(b,4)}, {v(Xr+4*q,4)}, {'0' if q == 0 else v(accQ,16)}")
            need.append(f"R{q//4}")
        return dict(rd=rd, mm=mm, need=need + [tag], pre=[], xr=None, dma=[], post=[])

    def run(self, steps, fill=(), nf=0):
        fill = list(fill)
        for st in steps[:2]:
            for r in st["rd"]:
                self.ds(*r)
        for i, st in enumerate(steps):
            self.lg.wait(*st["need"])
            for f in st["pre"]:
                f()
            side = []
            if st["xr"] is not None:
                self.vm.wait(f"X{st['xr']}")
                side += self.xreads(st["xr"])
            if i + 2 < len(steps):
                side += steps[i + 2]["rd"]
            n = len(st["mm"])
            for k, m in enumerate(st["mm"]):
                A(m)
                for r in side[k * len(side) // n:(k + 1) * len(side) // n]:
                    self.ds(*r)
                for p in st["dma"][k * len(st["dma"]) // n:(k + 1) * len(st["dma"]) // n]:
                    self.dma(p)
                emit(fill, nf)
            for f in st["post"]:
                f()
        assert not fill

    def xplan(self, steps, first, c0, c1, lead, ahead=2):
        for c in range(c0, c1):
            i = first + 4 * (c - c0) - lead
            steps[i]["xr"] = c
            if c + ahead <= 6:
                steps[i + 1]["need"].append(f"R{c}")
                xp = x_pieces(c + ahead, self.slot[c + ahead])
                steps[i + 1]["dma"] += xp[:2]
                steps[i + 2]["dma"] += xp[2:]

    def pack(self, store):
        for ct in range(2):
            ac = [acc0, acc1][ct]
            pp = Wf + 8 * ct
            for r in range(8):
                A(f"v_cvt_pk_bf16_f32 v{pp+r}, v{ac+2*r}, v{ac+2*r+1}")
                if self.role == "V" and r % 4 == 3 and store:
                    self.dma(st16(pp + r - 3, vSt[2 * ct + r // 4], sKVt))
            if self.role == "K":
                for i in range(2):
                    A(f"v_permlane16_swap_b32 v{pp+4*i}, v{pp+4*i+2}")
                    A(f"v_permlane16_swap_b32 v{pp+4*i+1}, v{pp+4*i+3}")
                    if store:
                        self.dma(st16(pp + 4 * i, vSt[2 * ct + i], sKVt))

    def xonly(self):
        for c in range(7):
            self.vm.wait(f"X{c}")
            for r in self.xreads(c):
                self.ds(*r)
            self.lg.wait(f"R{c}")
            if c + 2 <= 6:
                for p in x_pieces(c + 2):
                    self.dma(p)


def bar():
    A("s_barrier")


def q_epilogue():
    for r in range(8):
        A(f"v_pk_mul_f32 {v(accQ+2*r,2)}, {v(accQ+2*r,2)}, s[{sCs}:{sCs+1}]")
    for r in range(8):
        A(f"v_cvt_pk_bf16_f32 v{pqq+r}, v{accQ+2*r}, v{accQ+2*r+1}")
    A(f"""v_mov_b32 v{t5}, {f2u(float(OPT["off"])) >> 16}
    v_cndmask_b32 v{pqq+7}, 0, v{pqq+7}, s[{sLo}:{sLo+1}]
    v_cndmask_b32 v{pqq+6}, v{t5}, v{pqq+6}, s[{sLo}:{sLo+1}]""")
    A(f"""ds_write_b128 v{vQw}, {v(pqq,4)}
    ds_write_b128 v{vQw}, {v(pqq+4,4)} offset:1024""")


NOST = [f"v_mov_b32 v{vSt[i]}, {OOB}" for i in range(4)]
ZO = [f"v_mov_b32 v{O[0]+r}, {hex(f2u(1.5 * 2.0 ** OPT['oz'])) if OPT.get('oz') else 0}" for r in range(32)]
NA, N1, CG = OPT["na"], OPT["n1"], OPT["cg"]
GB = OPT["gb"]
QO = min(4 * OPT["wqe"], 26 - GB, OPT["qo"])
QY = min(4 * OPT["wqe"], 4 * N1) if QO else 0


def older(role):
    S_ = Stream(role)
    S_.vm.issue("X0", 4)
    S_.vm.issue("X1", 4)
    if role == "N":
        A(flag_text())
        S_.vm.issue("FL")
        S_.xonly()
        bar()
        if QO:
            S_.run([S_.mk(q=g) for g in range(QO)])
        return
    if OPT["yp"]:
        A("s_setprio 2")
    S_.vm.wait("X0")
    for r in S_.xreads(0):
        S_.ds(*r)
    S_.lg.wait("R0")
    for p in x_pieces(2):
        S_.dma(p)
    ts(3, 2)
    bar()
    ts(4, 2)
    steps = [S_.mk(kv=g, q=(g - GB - 2 if 0 <= g - GB - 2 < QO else None)) for g in range(28)]
    if QO:
        steps[GB]["pre"].append(bar)
    S_.xplan(steps, 4, 1, 7, OPT["xl"])
    steps[4 * NA - 2]["pre"].append(bar)
    steps[OPT["padg"]]["dma"].append(st16(vPd, vP[0], sKVt))
    if CG < 28:
        steps[CG]["need"].append("R6")
        steps[CG]["pre"].append(bar)
    for c in range(7):
        steps[4 * c]["pre"].append(lambda c=c: ts(5 + c, 2))
    fill = {"K": FK, "V": FV}[role]
    S_.run(steps, fill, -(-len(fill) // 24))
    ts(2)
    ts(12, 2)
    S_.pack(True)
    ts(1)
    if CG == 28:
        bar()
    A("s_branch L_oq")


def younger(role):
    S_ = Stream(role)
    if role == "N":
        S_.vm.issue("X0", 4)
        S_.vm.issue("X1", 4)
        A(flag_text())
        S_.vm.issue("FL")
        for i in range(7):
            S_.dma(wq_piece(i))
        emit(list(REST), len(REST))
        emit(list(NOST), 4)
        S_.xonly()
        bar()
        steps = [S_.mk(q=g) for g in range(28)]
        first = 0
    else:
        S_.vm.q = list(LOADER_Q)
        wq = [wq_piece(i) for i in range(OPT["wqe"] + OPT["wqf"], 7)]
        S_.vm.wait("X0")
        for r in S_.xreads(0):
            S_.ds(*r)
        ts(6, 2)
        steps = [S_.mk(kv=g, q=(g if g < QY else None)) for g in range(4 * N1)]
        for c in range(1, N1):
            steps[4 * c - 2]["xr"] = c
        k = 0
        for p in wq:
            steps[k // OPT["wqd"]]["dma"].append(p)
            k += 1
        fill = {"K": FK, "V": FV}[role]
        late = []
        for c in range(2, N1 + 2):
            if c < N1 + OPT["xe"]:
                steps[4 * (c - 2) + 1]["need"].append(f"R{c-2}")
                steps[4 * (c - 2) + 1]["dma"] = x_pieces(c) + steps[4 * (c - 2) + 1]["dma"]
            else:
                late += x_pieces(c)
        S_.run(steps, fill, -(-len(fill) // (8 * N1)))
        for p in late:
            S_.dma(p)
        ts(7, 2)
        S_.vm.wait("WQ")
        bar()
        ts(8, 2)
        if OPT["yp"]:
            A("s_setprio 1")
        QL = OPT["ql"]
        steps = ([S_.mk(q=g) for g in range(QY, 4 * N1 - QL)] + [S_.mk(kv=g, q=g - QL) for g in range(4 * N1, 28)]
                 + [S_.mk(q=g) for g in range(28 - QL, 28)])
        if QL:
            n0 = len(A.lines)
            S_.pack(False)
            pk_ = A.lines[n0:]
            del A.lines[n0:]
            for i in range(-QL + 1, 0):
                steps[i]["post"].append(lambda d=-i: emit(pk_, -(-len(pk_) // d)))
        if QY >= 4 * N1 - 1:
            S_.vm.wait(f"X{N1}")
            for r in S_.xreads(N1):
                S_.ds(*r)
            xp = x_pieces(N1 + 2)
            steps[0]["dma"] += xp[:2]
            steps[1]["dma"] += xp[2:]
            S_.xplan(steps, 4 * N1 - QY + 4, N1 + 1, 7, 2)
        elif OPT["x3"]:
            assert N1 == 2 and WL == XS + 65536
            S_.slot = [0, 1, 0, 1, 2, 0, 1]
            for k, p in enumerate(x_pieces(4, 2)):
                steps[k // 2]["dma"].append(p)
            S_.xplan(steps, 4 * N1 - QY, N1, 7, OPT["yl"], 3)
        else:
            S_.xplan(steps, 4 * N1 - QY - QL, N1, 7, OPT["yl"])
        steps[-8]["dma"].append(st16(vPd, vP[0], sKVt))
    ts(3)
    steps[-3]["post"].append(lambda: (poll_issue(0xffff), S_.vm.issue("PL")))
    fill = [] if role == "N" else [L1 + L2, list(L2), []][OPT['lf']]
    S_.run(steps, fill, -(-len(fill) // (3 * (24 - 4 * N1) + 4 * N1)))
    ts(2)
    ts(12, 2)
    q_epilogue()
    if role != "N" and not OPT["ql"]:
        S_.pack(False)
    ts(11)
    A("""s_waitcnt lgkmcnt(0)
    s_branch L_b0""")


def loader():
    S_ = Stream("N")
    for it in range(NW0):
        S_.vm.issue(f"W{it}", 2)
    if OPT["tch"] == 2:
        A(TOUCH)
    if OPT["tch"]:
        S_.vm.issue("PF", 2)
    NW1 = max(NW0, OPT["nw1"])
    for it in range(NW0, NW1):
        for p in w_pieces(it):
            S_.dma(p)
    S_.vm.wait(f"W{NA-1}")
    ts(3, 2)
    bar()
    ts(4, 2)
    fill = [[], list(L1), L1 + L2][OPT['lf']]
    wq = [wq_piece(i) for i in range(7)]
    p1 = [p for it in range(NW1, 7) for p in w_pieces(it)] + wq[:OPT["wqe"]] + x_pieces(0) + x_pieces(1)
    p2 = wq[OPT["wqe"]:OPT["wqe"] + OPT["wqf"]]
    nb = OPT["nb"]
    ps = p1 + p2
    nf = -(-len(fill) // len(ps))
    for k, p in enumerate(ps):
        if k == nb:
            S_.vm.wait("W6")
            bar()
        S_.dma(p)
        emit(fill, nf)
    if nb >= len(ps):
        S_.vm.wait("W6")
        bar()
    if QO:
        assert OPT["wqf"] == 0
        S_.vm.wait("WQ")
        bar()
    ts(5, 2)
    return S_.vm.q


PRO, REST = EARLY + MID, L1 + L2
PRO += lines(f"""s_waitcnt lgkmcnt(0)
s_mul_i32 s{stag}, s{sE}, 0x9e3779b1
s_add_u32 s{stag}, s{stag}, 0x7f4a7c15
v_mov_b32 v{vTag}, s{stag}""")
emit(PRO, len(PRO))
ts(2, 2)
A(f"""s_cmp_eq_u32 s{sKap}, 0
s_cbranch_scc1 L_old
s_cmp_eq_u32 s{sNone}, 1
s_cbranch_scc1 L_yN""")
LOADER_Q = loader()
A(f"""s_cmp_eq_u32 s{sRole}, 1
s_cbranch_scc1 L_yV""")
younger("K")
A.label("L_yV")
younger("V")
A.label("L_yN")
younger("N")
A.label("L_old")
A(f"""s_cmp_eq_u32 s{sNone}, 1
s_cbranch_scc1 L_oN
s_cmp_eq_u32 s{sRole}, 1
s_cbranch_scc1 L_oV""")
older("K")
A.label("L_oV")
older("V")
A.label("L_oN")
older("N")
A.label("L_oq")
ts(3)
ts(13, 2)
emit(list(L1), len(L1))
emit(list(NOST), 4)
S_ = Stream("N")
steps = [S_.mk(q=g) for g in range(QO, 28)]


def oflag():
    A("s_waitcnt vmcnt(0)")
    A(flag_text())
    if OPT["yp"]:
        A("s_setprio 0")
    ts(4)


steps[OPT["fq"]]["pre"].append(oflag)
PQ = min(OPT["pq"], len(steps) - 1)
steps[PQ]["post"].append(lambda: A(POLL0))
for g in range(PQ + OPT["tq"], len(steps), OPT["tq"]):
    steps[g]["post"].append(lambda: hook_try(1))
S_.run(steps, L2, -(-len(L2) // (len(steps) - 1)))
q_epilogue()
ts(11)
spin(1, "L_spin0")
A("""s_waitcnt vmcnt(1) lgkmcnt(0)
s_branch L_b0""")
A.label("L_try")
A(f"""s_waitcnt vmcnt(0)
v_cmp_ne_u32 vcc, s{stag}, v{vFl}
s_or_b32 s{sD1}, vcc_lo, vcc_hi
s_and_b32 s{sD1}, s{sD1}, 15
s_cbranch_scc0 L_try0""")
A(POLL0)
A(f"s_setpc_b64 s[{sRet}:{sRet+1}]")
A.label("L_try0")
ts(5)
A(f"""s_add_u32 m0, s{sMX}, {POS[0]}
s_add_u32 s{sD0}, s{sRel}, s{sKV}""")
for i in range(4):
    A(kv_piece(i))
A(f"""s_add_u32 s{sD0}, s{sRel}, 0x8000
s_and_b32 s{sD0}, s{sD0}, 0x3ffff
s_add_u32 m0, s{sMX}, {POS[0]+16384}
s_add_u32 s{sD0}, s{sD0}, s{sKV}""")
for i in range(4):
    A(kv_piece(i))
A(f"s_mov_b32 s{sDone}, 1")
poll_issue(0xffff)
A(f"s_setpc_b64 s[{sRet}:{sRet+1}]")

A.label("L_b0")
for _ in range(OPT.get("idle", 0)):
    A("s_sleep 36")
A("s_barrier")
ts(12)
ts(1, 4)

A(f"""ds_read_b128 {v(Q[0],4)}, v{vQr} offset:2048
ds_read2st64_b64 {v(Kf[0],4)}, v{vBk} offset0:64 offset1:65
ds_read_b128 {v(Q[0]+4,4)}, v{vQr} offset:3072
ds_read2st64_b64 {v(Kf[0]+4,4)}, v{vBk} offset0:66 offset1:67
{chr(10).join(ZO[:OPT["z0"]])}
ds_read_b128 {v(Q[1],4)}, v{vOs2}
ds_read_b128 {v(Q[1]+4,4)}, v{vOs2} offset:1024
s_waitcnt lgkmcnt(4)
v_mfma_f32_32x32x16_bf16 {v(S[0],16)}, {v(Kf[0],4)}, {v(Q[0],4)}, {C0}
s_waitcnt lgkmcnt(2)
v_mfma_f32_32x32x16_bf16 {v(S[0],16)}, {v(Kf[0]+4,4)}, {v(Q[0]+4,4)}, {v(S[0],16)}
ds_read2st64_b64 {v(Kf[1],4)}, v{vBk} offset0:72 offset1:73
ds_read2st64_b64 {v(Kf[1]+4,4)}, v{vBk} offset0:74 offset1:75
ds_read_b128 {v(Vf[0],4)}, v{vBase} offset:34816
ds_read_b128 {v(Vf[0]+4,4)}, v{vBase} offset:35840
{chr(10).join(ZO[OPT["z0"]:])}
s_waitcnt lgkmcnt(4)""")

def wo_piece(r):
    m = f"s_mov_b32 m0, s{sWm13}" if r == 13 else f"s_add_u32 m0, s{sWm}, {WOB + 8*r*896}"
    return f"""{m}
    s_add_u32 s{sD1}, s{sWn}, {8*r*3584}
    buffer_load_dwordx4 v{vWod}, s[{sWO}:{sWO+3}], s{sD1} offen lds"""


EXTRA = {}
AFTER = {}


def extra(w_, sl, text):
    EXTRA.setdefault((w_, sl), []).append(text)


def window(W):
    blk, u = divmod(W, 8)
    un, up = u + 1, u - 1
    tn, qn = un // 2, un % 2
    tp, qp = up // 2, up % 2
    Sc, Sn, Sp = S[u % 4], S[un % 4], S[up % 4]
    Kn, Vp = Kf[tn % 2], Vf[tp % 2]
    if blk == 7 and OPT["reo"]:
        UN = {5: (3, 0), 6: (2, 1)}
        if un in UN:
            Kn, qn = Kf[UN[un][0] % 2], UN[un][1]
        if up in UN:
            Vp, qp = Vf[UN[up][0] % 2], UN[up][1]
        if u in (4, 6):
            A("s_waitcnt lgkmcnt(2)" if u == 4 else "s_waitcnt lgkmcnt(0)")
    h0, h1 = (4, 0) if OPT["hf"] else (0, 4)
    m = [f"v_mfma_f32_32x32x16_bf16 {v(Sn,16)}, {v(Kn+h0,4)}, {v(Q[qn]+h0,4)}, {C0}",
         f"v_mfma_f32_32x32x16_bf16 {v(Sn,16)}, {v(Kn+h1,4)}, {v(Q[qn]+h1,4)}, {v(Sn,16)}",
         f"v_smfmac_f32_32x32x32_bf16 {v(O[qp],16)}, {v(Vp,4)}, {v(Sp,8)}, v{vIdx}",
         f"v_smfmac_f32_32x32x32_bf16 {v(O[qp],16)}, {v(Vp+4,4)}, {v(Sp+8,8)}, v{vIdx}"]
    if W == 0:
        m[2] = m[3] = None
    if W == 63:
        m = [m[2], None, m[3], None]
    if W == 62 and OPT["reo"] == 2:
        m = [m[0], m[2], m[1], m[3]]
    mem = [[], [], [], []]
    pre = [[], [], [], []]

    def rd(dst, T, off):
        if off < 2048 and not OPT.get('kb128'):
            o = (POS[(blk + T // 4) % 3] + (T % 4) * 4096 + off) // 512
            if OPT.get("k64"):
                a, oo = (vBk, o * 512) if o < 128 else (vTag2, o * 512 - 65536)
                return f"ds_read_b64 {v(dst,2)}, v{a} offset:{oo}\nds_read_b64 {v(dst+2,2)}, v{a} offset:{oo+512}"
            return f"ds_read2st64_b64 {v(dst,4)}, v{vBk} offset0:{o} offset1:{o+1}"
        a, o = kv_addr(blk + T // 4, T % 4, off)
        return f"ds_read_b128 {v(dst,4)}, v{a} offset:{o}"
    if u % 2 == 1:
        if not (u == 5 and (blk > 0 or OPT["b0"])):
            A("s_waitcnt lgkmcnt(0)")
        tt = tn
        Kd, Vd = Kf[(tt + 1) % 2], Vf[tt % 2]
        rk = [rd(Kd, tt + 1, 0), rd(Kd + 4, tt + 1, 1024)]
        rv = [rd(Vd, tt, 2048), rd(Vd + 4, tt, 3072)]
        if W == 61 or (W == 5 and not OPT['b0']):
            mem[0 if W == 61 else 2].append(rv[0])
            mem[1 if W == 61 else 3].append(rv[1])
        elif W == 63:
            pass
        elif W == 7 and not OPT['b0']:
            A(rd(Kn, 4, 0))
            A(rd(Kn + 4, 4, 1024))
            m = [m[2], m[3], m[0], m[1]]
            mem[0] += [rk[0], rk[1]]
            mem[1] += [rv[0], rv[1]]
            pre[2].append("s_waitcnt lgkmcnt(4)")
        else:
            RS_ = [[0, 1, 2, 3], [2, 2, 3, 3], [0, 0, 1, 1], [2, 3, 0, 1]][OPT.get("rsl", 0)]
            order = sorted(range(4), key=lambda k: RS_[k])
            for k in range(4):
                mem[RS_[k]].append((rk + rv)[k])
    for q in range(4):
        for x in pre[q]:
            A(x)
        if m[q]:
            A(m[q])
        for x in mem[q] + (EXTRA.get((W, q), []) if not (OPT.get("nodma") and 23 <= W < 53) else []):
            A(x)
        for e in range(4):
            A(f"v_exp_f32 v{Sc+4*q+e}, v{Sc+4*q+e}")
    for hk in AFTER.get(W, []):
        hk()


def mk_bar(n):
    def f():
        A(f"""s_waitcnt vmcnt({n}) lgkmcnt(0)""")
        if not OPT.get("nobar"):
            A("s_barrier")
    return f


def check_text(reg, mask, name):
    return f"""v_cmp_ne_u32 vcc, s{stag}, v{reg}
    s_and_b32 s{sD1}, vcc_lo, {mask}
    s_cbranch_scc1 {name}
    {name}_done:"""


PUB = [st16(Wf + 4 * i, vSt[i], sKVt)[0] for i in range(4)]
if OPT["b0"]:
    extra(0, 2, "s_waitcnt vmcnt(0)\n" + check_text(vFl, "0xffff", "L_polll"))
    extra(0, 3, kv_next(1) + "\n" + kv_piece(0))
    for i in range(1, 4):
        extra(1, i - 1, kv_piece(i))
    for i in range(4):
        extra(2, i, PUB[i])
    AFTER.setdefault(4, []).append(mk_bar(4))
    AFTER[4].append(lambda: ts(6))
    extra(6, 0, "s_waitcnt vmcnt(0)\n" + flag_text())
    extra(6, 1, kv_next(2) + "\n" + kv_piece(0))
    extra(6, 3, kv_piece(1))
    extra(8, 0, kv_piece(2))
    extra(8, 2, kv_piece(3))
else:
    for i in range(4):
        extra(i // 2, [1, 3][i % 2], PUB[i])
    extra(2, 0, "s_waitcnt vmcnt(4)\n" + check_text(vFl, "0xffff", "L_polll"))
    extra(2, 1, kv_next(1) + "\n" + kv_piece(0))
    extra(2, 3, kv_piece(1))
    extra(3, 1, kv_piece(2))
    extra(3, 3, kv_piece(3))
    AFTER.setdefault(6, []).append(lambda: (A("s_waitcnt vmcnt(0)\ns_barrier"), ts(6)))
    extra(7, 2, kv_next(2) + "\n" + kv_piece(0))
    extra(7, 3, kv_piece(1))
    extra(8, 1, kv_piece(2))
    extra(8, 3, kv_piece(3))
    extra(8, 0, flag_text())
extra(9, 1, "\n".join(f"v_mov_b32 v{vOnes+r}, -1" for r in range(4)))
extra(40, 1, f"""v_lshrrev_b32 v{t0}, 2, v{vL16}
v_and_b32 v{t0}, 60, v{t0}
v_add_u32 v{t0}, {MISC}, v{t0}
v_mov_b32 v{t1}, 0
ds_write_b32 v{t0}, v{t1}""")
extra(10, 0, st16(vOnes, vL16, sOt)[0])
extra(10, 2, st16(vOnes, vL16, sOt, 1024)[0])
extra(30, 1, flag_text(True))
extra(17, 1, poll_text(0x7fff0000).replace("0x7fff0000", "0xffff0000"))


extra(21, 2, check_text(vFl, "0xffff0000", "L_pollh"))
if OPT.get("tou"):
    e0, e1 = ("s_mov_b64 exec, 1\n", "\ns_mov_b64 exec, -1") if OPT["tou"] == 2 else ("", "")
    extra(36, 1, f"{e0}buffer_load_dword v{t2}, v{vOs}, s[{sOUT}:{sOUT+3}], s{sOut} offen{e1}")
    extra(28, 1, f"s_add_u32 s{sT1}, s{sOut}, {8*1792}\n{e0}buffer_load_dword v{t2}, v{vOs}, s[{sOUT}:{sOUT+3}], s{sT1} offen{e1}")
wo_early = list(range(5, 13))
for i in range(1, 8):
    nwo = 2 if i == 1 else 0
    if i >= 2 and wo_early:
        for sl in (0, 2):
            extra(8 * i + 2, sl, wo_piece(wo_early.pop(0)))
            nwo += 1
    if OPT.get("tou") and i in (3, 4):
        nwo += 1
    AFTER.setdefault(8 * i + 4, []).append(mk_bar(nwo))
    if i <= 5:
        DS_ = [[(6, 0), (6, 2), (8, 0), (8, 2)], [(6, 2), (6, 3), (8, 2), (8, 3)], [(6, 0), (6, 1), (8, 0), (8, 1)],
               [(6, 1), (6, 3), (8, 1), (8, 3)], [(6, 0), (6, 1), (6, 2), (6, 3)]][OPT.get("dsl", 0)]
        extra(8 * i + DS_[0][0], DS_[0][1], kv_next(i + 2) + "\n" + kv_piece(0))
        for k in range(1, 4):
            extra(8 * i + DS_[k][0], DS_[k][1], kv_piece(k))
assert not wo_early
for k, r in enumerate([0, 1, 2, 3, 4, 13]):
    extra([54, 54, 55, 56, 56, 57][k], [0, 2, 1, 0, 2, 1][k], wo_piece(r))
extra(50, 0, f"buffer_load_dword v{vQm}, v{vPc}, s[{sWS}:{sWS+3}], s{sPc} offen sc1")
extra(58, 0, check_text(vQm, "0xffff", "L_pollc"))
extra(58, 2, f"""s_or_b32 s{sT0}, s{sh}, s{sj}
    s_or_b32 s{sT0}, s{sT0}, s{sw}
    s_cbranch_scc0 L_epoch
    L_epd:""")
sTk, sAv = sTodo, sRem


def oload(l):
    return f"""s_add_u32 s{sT0}, s{sOin}, {l*4096}
    buffer_load_dwordx4 {v(Of+4*l,4)}, v{vOa}, s[{sWS}:{sWS+3}], s{sT0} offen sc1"""


def cload(l):
    return f"""s_bitcmp1_b32 s{sAv}, {l}
    s_cselect_b64 exec, -1, 0
    {oload(l)}"""


POLL = f"""s_andn2_b32 exec_lo, 0xff, s{sTk}
    s_mov_b32 exec_hi, 0
    buffer_load_dword v{vQm}, v{vLp}, s[{sWS}:{sWS+3}], s{sOin} offen sc1
    s_mov_b64 exec, -1"""
SENDL = [f"ds_write_b128 v{vQw}, {v(O[0]+4*i,4)} offset:{1024*i}" for i in range(4)] + [f"ds_write_b32 v{vOs2}, v{t4}"]
SEND = "\n".join(SENDL)
if OPT["reo"]:
    extra(63, 2, SEND)
extra(44, 1, f"""s_lshl_b32 s{sT0}, s{sKap}, 12
    v_add_u32 v{vQw}, s{sT0}, v{vRw}
    v_xor_b32 v{vQr}, 0x1000, v{vQw}
    s_mul_i32 s{sT0}, s{sKap}, 48
    v_add_u32 v{vOs2}, s{sT0}, v{vMf}
    v_xor_b32 v{vPl}, 48, v{vOs2}
    v_mov_b32 v{t4}, 1""")
for (ww, sl, pr) in [[(61, 0, 3), (62, 0, 2), (63, 0, 1), (63, 2, 0)], [(61, 0, 3), (62, 2, 2), (63, 2, 1)],
                     [(61, 0, 1), (63, 0, 0)]][OPT["lseg"]]:
    extra(ww, sl, f"s_setprio {pr}")
PSEG = {1: [(0, 0, 3), (3, 0, 2), (6, 0, 1), (7, 2, 0)], 2: [(0, 0, 3), (4, 0, 2), (6, 2, 1), (7, 3, 0)],
        3: [(0, 0, 1), (7, 2, 0)], 4: [(0, 0, 3), (2, 0, 2), (4, 0, 1), (6, 0, 0)], 5: [(0, 0, 1), (7, 0, 0)],
        6: [(0, 0, 2), (5, 0, 1), (7, 2, 0)]}
if OPT.get("pseg"):
    for (ww, sl, pr) in ([(0, 0, 3), (2, 0, 2), (3, 2, 1), (4, 3, 0)] if OPT["b0"] else
                         [(0, 0, 3), (3, 0, 2), (5, 2, 1), (6, 3, 0), (7, 0, 3), (9, 0, 2), (11, 2, 1), (12, 3, 0)]):
        EXTRA.setdefault((ww, sl), []).insert(0, f"s_setprio {pr}")
    for i in range(0 if OPT["b0"] else 1, 7):
        for (dw, sl, pr) in PSEG[OPT["pseg"]]:
            EXTRA.setdefault((8 * i + 5 + dw, sl), []).insert(0, f"s_setprio {pr}")
if OPT.get("prio"):
    A(f"""s_cmp_eq_u32 s{sKap}, {OPT["prio"] & 1}
    s_cbranch_scc0 L_np
    s_setprio 1""")
    A.label("L_np")
for W in range(64):
    TW = [0, 1, 3, 5, 7, 13, 21, 29, 37, 45, 53, 61] if not OPT.get("tw") else [16, 56]
    if OPT.get("al") and W % OPT["al"] == 0:
        A(".p2align 3")
    if W in TW:
        ts(2 + TW.index(W), 4)
    window(W)
A(f"""s_nop 0
v_smfmac_f32_32x32x32_bf16 {v(O[1],16)}, {v(Vf[1],4)}, {v(S[3],8)}, v{vIdx}
v_smfmac_f32_32x32x32_bf16 {v(O[1],16)}, {v(Vf[1]+4,4)}, {v(S[3]+8,8)}, v{vIdx}""")
ts(7)
ts(14, 4)

R = S[0]
if not OPT["reo"]:
    A(SEND)
A(f"s_mov_b32 s{sSpin}, 0x400000")
A.label("L_mwait")
A(f"ds_read_b32 v{t2}, v{vPl}")
for i in (3, 0, 1, 2):
    A(f"ds_read_b128 {v(R+4*i,4)}, v{vQr} offset:{1024*i}")
A(f"""s_sub_u32 s{sSpin}, s{sSpin}, 1
s_cbranch_scc1 L_mgo
s_waitcnt lgkmcnt(4)
v_readfirstlane_b32 s{sT0}, v{t2}
s_cmp_eq_u32 s{sT0}, 0
s_cbranch_scc1 L_mspin""")
A.label("L_mgo")
Ob = O[1]
rc = vFl
A(f"""s_waitcnt lgkmcnt(3)
v_pk_add_f32 {v(Ob+12,2)}, {v(Ob+12,2)}, {v(R+12,2)}
v_pk_add_f32 {v(Ob+14,2)}, {v(Ob+14,2)}, {v(R+14,2)}""")
A.label("L_norm")
A(f"""v_mov_b32 v{t0}, v{Ob+12}
v_mov_b32 v{rc}, v{Ob+12}
s_waitcnt lgkmcnt(0)
v_pk_add_f32 {v(Ob,2)}, {v(Ob,2)}, {v(R,2)}
v_permlane32_swap_b32 v{t0}, v{rc}
v_pk_add_f32 {v(Ob+2,2)}, {v(Ob+2,2)}, {v(R+2,2)}
v_subrev_u32 v{t0}, {hex(L_LO)}, v{rc}
v_rcp_f32 v{rc}, v{rc}
v_cmp_lt_u32 vcc, s{sChk}, v{t0}""")
for r in range(4, 12, 2):
    A(f"v_pk_add_f32 {v(Ob+r,2)}, {v(Ob+r,2)}, {v(R+r,2)}")
A("""s_cmp_lg_u64 vcc, 0
s_cbranch_scc1 L_slow""")
for f in range(2):
    for r in range(8 * f, 8 * f + 8, 2):
        A(f"v_pk_mul_f32 {v(Ob+r,2)}, {v(Ob+r,2)}, {v(rc,2)} op_sel_hi:[1,0]")
    for r in range(4 * f, 4 * f + 4):
        A(f"v_cvt_pk_bf16_f32 v{pk+r}, v{Ob+2*r}, v{Ob+2*r+1}")
    if f:
        for r in (6, 7):
            A(f"v_cndmask_b32 v{pk+r}, 0, v{pk+r}, s[{sLo}:{sLo+1}]")
    for r in range(4 * f, 4 * f + 4):
        A(f"v_min_u32 v{pk+r}, -2, v{pk+r}")
    A(f"buffer_store_dwordx4 {v(pk+4*f,4)}, v{vL16}, s[{sWS}:{sWS+3}], s{sOt} offen offset:{1024*f} sc1")
A("s_setprio 0")
ts(8)

TILES = list(range(O[0], Of, 4)) + [DEAD, DEAD + 4]
assert len(TILES) >= 42
rx = S[2]
pk2, rb = Q[0], Q[1]
sOk = sDone
OOL = []


def wtile(l, ct):
    return TILES[7 * (l % 6) + ct]


def wtext(l, ct):
    a0, a1, off = (vW0, vW1, l * 12544) if l < 6 else (t1, t2, 0) if l == 6 else (t3, t4, 0)
    d = wtile(l, ct)
    return f"""ds_read_b64_tr_b16 {v(d,2)}, v{a0} offset:{off+32*ct}
    ds_read_b64_tr_b16 {v(d+2,2)}, v{a1} offset:{off+32*ct}"""


A.label("L_p3e")
if OPT["ts"] == 5:
    A("s_mov_b32 s11, 1")
tsd(0)
A(f"s_mov_b32 s{sSpin}, 0x40000")
sSl = 14
vXw = [vTw, vLane, vIdx, t5]
for l in range(8):
    A(f"s_add_u32 s{sSl+l}, s{sOin}, {4096*l}")
A.label("L_p3r")
A(f"""s_mov_b32 s{sTk}, 0
v_add_u32 v{t1}, {6*12544}, v{vW0}
v_add_u32 v{t2}, {6*12544}, v{vW1}
v_add_u32 v{t3}, s{sSp}, v{vW0}
v_add_u32 v{t4}, s{sSp}, v{vW1}
s_waitcnt lgkmcnt(0)""")
for i in range(42):
    if i >= 6 and i % 3 == 0:
        A("s_waitcnt lgkmcnt(8)")
    if i == OPT["pp"]:
        A(POLL)
    A(wtext(i // 7, i % 7))
tsd(1)
A("s_branch L_w1")
A.label("L_w0")
if OPT.get("slp"):
    A(f"s_sleep {OPT['slp']}")
A(POLL)
A.label("L_w1")
A(f"""s_sub_u32 s{sSpin}, s{sSpin}, 1
s_cselect_b32 s{sT0}, 0xff, 0
s_cselect_b32 s{sSpin}, 0, s{sSpin}
s_waitcnt vmcnt(0)
v_cmp_ne_u32 vcc, -1, v{vQm}
s_or_b32 s{sTk}, vcc_lo, s{sT0}
s_andn2_b32 s{sT0}, 0xff, s{sTk}
s_cbranch_scc1 L_w0""")
tsd(9)
for l in range(8):
    A(f"buffer_load_dwordx4 {v(Of+4*l,4)}, v{vOa}, s[{sWS}:{sWS+3}], s{sSl+l} offen sc1")
tsd(7)
A(f"""v_mov_b32 v{vFl}, 1
s_add_u32 s{sT1}, s{sOut}, {8*1792}""")
for ct in range(1, 4):
    A(f"v_xor_b32 v{vXw[ct]}, {32*ct}, v{vTw}")
ORD = [0, 2, 1, 3, 4, 5, 6, 7]
for k, l in enumerate(ORD):
    b0 = Of + 4 * l
    A(f"s_waitcnt vmcnt({7-max(ORD[:k+1])})" + (" lgkmcnt(0)" if l in (0, 1, 6) else ""))
    if k == 0:
        tsd(2)
    for ct in range(7):
        A(f"v_mfma_f32_16x16x32_bf16 {v(acc+4*ct,4)}, {v(wtile(l,ct),4)}, {v(b0,4)}, {'0' if k == 0 else v(acc+4*ct,4)}")
        if l < 2:
            A(wtext(6 + l, ct))
        if ct == 1:
            A(f"v_max3_u32 v{t0}, v{b0}, v{b0+1}, {'0' if k == 0 else f'v{t0}'}")
        if ct == 3:
            A(f"v_max3_u32 v{t0}, v{b0+2}, v{b0+3}, v{t0}")
        if ct == 5 and k == 7:
            A(f"v_cmp_eq_u32 vcc, -1, v{t0}")
A(f"""s_cmp_lg_u64 vcc, 0
s_cbranch_scc1 L_redo""")
A.label("L_good")
OOL.append(f"""L_redo:
s_sub_u32 s{sSpin}, s{sSpin}, 1
s_cbranch_scc0 L_p3r
s_branch L_good""")
tsd(3)
ts(9)
tsa(8)


XS_ = [f"""L_xsk{kap}:
    s_sleep {OPT.get("xs", 1)}
    ds_read_b32 v{t0}, v{vMf} offset:{32-16*kap}
    s_sub_u32 s{sSpin}, s{sSpin}, 1
    s_waitcnt lgkmcnt(0)
    s_cbranch_scc1 L_yk{kap}
    v_readfirstlane_b32 s{sT0}, v{t0}
    s_cmp_eq_u32 s{sT0}, 0
    s_cbranch_scc1 L_xsk{kap}
    s_branch L_xk{kap}""" for kap in (1, 0)]


def p3(kap):
    n = f"k{kap}"
    keep = [0, 1, 2, 3] if kap == 0 else [4, 5, 6]
    send = [4, 5, 6] if kap == 0 else [0, 1, 2, 3]
    wa_, ra_ = (vSn, vRw) if kap == 0 else (vRw, vSn)
    A(f"s_mov_b32 s{sSpin}, 0x400000")
    for i, ct in enumerate(send):
        A(f"ds_write_b128 v{wa_}, {v(acc+4*ct,4)} offset:{1024*i}")
    A(f"ds_write_b32 v{vMf}, v{vFl} offset:{16+16*kap}")
    A.label(f"L_x{n}")
    A(f"ds_read_b32 v{t0}, v{vMf} offset:{32-16*kap}")
    for i in range(len(keep)):
        A(f"ds_read_b128 {v(rx+4*i,4)}, v{ra_} offset:{1024*i}")
    A(f"""s_sub_u32 s{sSpin}, s{sSpin}, 1
    s_cbranch_scc1 L_y{n}
    s_waitcnt lgkmcnt({len(keep)})
    v_readfirstlane_b32 s{sT0}, v{t0}
    s_cmp_eq_u32 s{sT0}, 0
    s_cbranch_scc1 L_xs{n}""")
    A.label(f"L_y{n}")
    tsd(4)
    tsa(9)
    wa = vXw
    for i, ct in enumerate(keep):
        A(f"""s_waitcnt lgkmcnt({len(keep)-1})
        v_pk_add_f32 {v(acc+4*ct,2)}, {v(acc+4*ct,2)}, {v(rx+4*i,2)}
        v_pk_add_f32 {v(acc+4*ct+2,2)}, {v(acc+4*ct+2,2)}, {v(rx+4*i+2,2)}
        v_cvt_pk_bf16_f32 v{pk2+2*i}, v{acc+4*ct}, v{acc+4*ct+1}
        v_cvt_pk_bf16_f32 v{pk2+2*i+1}, v{acc+4*ct+2}, v{acc+4*ct+3}
        ds_write_b64 v{wa[i]}, {v(pk2+2*i,2)}""")
    os_ = vOs
    OSC = ["", " sc1", " nt", " sc0 sc1", " sc1 nt"][OPT["osc0"] if kap == 0 else OPT["osc"]]
    A(f"""ds_read_b128 {v(rb,4)}, v{vTr}
    ds_read_b128 {v(rb+4,4)}, v{vTr} offset:1024
    s_waitcnt lgkmcnt(1)
    buffer_store_dwordx4 {v(rb,4)}, v{os_}, s[{sOUT}:{sOUT+3}], s{sOut} offen{OSC}
    s_waitcnt lgkmcnt(0)
    buffer_store_dwordx4 {v(rb+4,4)}, v{os_}, s[{sOUT}:{sOUT+3}], s{sT1} offen{OSC}""")


assert Vf[1] == Kf[0] + 24 and O[1] == O[0] + 16
A(f"""s_cmp_eq_u32 s{sKap}, 0
s_cbranch_scc1 L_x0""")
p3(1)
A("s_branch L_noep" if OPT["ts"] or OPT.get("padto") else "s_endpgm")
for x in XS_:
    A(x)
A(f"""L_mspin:
ds_read_b32 v{t2}, v{vPl}
s_sub_u32 s{sSpin}, s{sSpin}, 1
s_waitcnt lgkmcnt(0)
s_cbranch_scc1 L_mgo
v_readfirstlane_b32 s{sT0}, v{t2}
s_cmp_eq_u32 s{sT0}, 0
s_cbranch_scc1 L_mspin
s_branch L_mwait""")
A.label("L_x0")
p3(0)
if OPT.get("wb"):
    A(f"""s_cmp_lg_u32 s{sw}, 0
    s_cbranch_scc1 L_noep
    s_waitcnt vmcnt(0)
    buffer_wbl2 sc1""")
A.label("L_noep")
if OPT.get("padto"):
    A.label("L_pad")
    A(f"""s_sleep 4
    s_memrealtime s[{sRet}:{sRet+1}]
    s_waitcnt lgkmcnt(0)
    s_sub_u32 s{sT0}, s{sRet}, s{sTS}
    s_cmp_lt_u32 s{sT0}, {OPT["padto"]}
    s_cbranch_scc1 L_pad""")
tsd(5)
tsa(10)
if OPT["ts"] == 6:
    A("s_waitcnt lgkmcnt(0)")
    for i, r in enumerate(ASR):
        A(f"v_writelane_b32 v{vTS}, s{r}, {i+1}")
    A(f"""s_sub_u32 s{sRem}, 0x7fffffff, s{sRem}
    v_writelane_b32 v{vTS}, s{sRem}, 13
    v_writelane_b32 v{vTS}, s19, 14""")
if OPT["ts"]:
    A("s_waitcnt vmcnt(0)")
    ts(10)
    tsd(6)
    ts(12, 6)
    A(f"""s_lshl_b32 s{sT0}, s2, 3
    s_add_u32 s{sT0}, s{sT0}, s{sw}
    s_lshl_b32 s{sT0}, s{sT0}, {8 if OPT["ts"] == 5 else 6}
    s_add_u32 s{sT0}, s{sT0}, {TS_OFF}
    s_getreg_b32 s{sT1}, hwreg(HW_REG_XCC_ID)
    {"s_nop 0" if OPT["ts"] == 5 else f"v_writelane_b32 v{vTS}, s{sT1}, 15"}
    v_lshrrev_b32 v{t0}, 2, v{vL16}
    s_mov_b64 exec, {-1 if OPT["ts"] == 5 else "0xffff"}
    buffer_store_dword v{vTS}, v{t0}, s[{sWS}:{sWS+3}], s{sT0} offen""")
    if OPT.get("dbg"):
        A(f"""v_readlane_b32 s{sT0}, v{vTS}, 0
        s_not_b32 s{sT0}, s{sT0}
        v_writelane_b32 v{vTS}, s{sT0}, 15
        s_mov_b32 s{sX}, s22
        s_mov_b32 s{sX+1}, s23
        s_mov_b32 s{sX+2}, 256
        buffer_atomic_umax v{vTS}, v{t0}, s[{sX}:{sX+3}], 0 offen""")
A.label("L_end")
A("s_endpgm")

for x in OOL:
    A(x)
A.label("L_epoch")
A(f"""s_add_u32 s{sE}, s{sE}, 1
s_lshl_b32 s{sT0}, s{sb}, 8
s_add_u32 s{sT0}, s{sT0}, {EPOCH_OFF}
v_mov_b32 v{t1}, s{sE}
s_mov_b64 exec, 1
buffer_store_dword v{t1}, v{vL16}, s[{sWS}:{sWS+3}], s{sT0} offen sc1
s_mov_b64 exec, -1
s_branch L_epd""")

for name, load, reg, mask in (
        ("L_pollc", f"buffer_load_dword v{vQm}, v{vPc}, s[{sWS}:{sWS+3}], s{sPc} offen sc1", vQm, "0xffff"),
        ("L_polll", poll_text(0xffff), vFl, "0xffff"),
        ("L_pollh", poll_text(0x7fff0000).replace('0x7fff0000', '0xffff0000'), vFl, "0xffff0000")):
    A(f"""{name}:
    s_mov_b32 s{sSpin}, 0x40000
    {name}1:
    {load}
    s_sub_u32 s{sSpin}, s{sSpin}, 1
    s_cbranch_scc1 {name}_done
    s_waitcnt vmcnt(0)
    v_cmp_ne_u32 vcc, s{stag}, v{reg}
    s_and_b32 s{sD1}, vcc_lo, {mask}
    s_cbranch_scc1 {name}1
    s_branch {name}_done""")

A.label("L_slow")
Sx, vMn, vAl, vM = S[2], t2, t3, t4
A(f"""s_mov_b32 s{sChk}, -1
v_lshlrev_b32 v{vBk}, 3, v{vLane}
v_mov_b32 v{vM}, 0xff7fffff
s_mov_b32 s{sT0}, s{sKV}
s_mov_b32 s{sI}, 0""")
for r in range(16):
    A(f"v_mov_b32 v{Ob+r}, 0")
    A(f"v_mov_b32 v{R+r}, 0")
A.label("L_slow_t")
for i in range(4):
    A(f"buffer_load_dwordx2 {v(Kf[0]+2*i,2)}, v{vBk}, s[{sWS}:{sWS+3}], s{sT0} offen offset:{512*i} sc1")
A(f"""buffer_load_dwordx4 {v(Vf[0],4)}, v{vL16}, s[{sWS}:{sWS+3}], s{sT0} offen offset:2048 sc1
buffer_load_dwordx4 {v(Vf[0]+4,4)}, v{vL16}, s[{sWS}:{sWS+3}], s{sT0} offen offset:3072 sc1
s_add_u32 s{sT0}, s{sT0}, 4096
s_waitcnt vmcnt(0)
v_mfma_f32_32x32x16_bf16 {v(Sx,16)}, {v(Kf[0],4)}, {v(Q[1],4)}, 0
v_mfma_f32_32x32x16_bf16 {v(Sx,16)}, {v(Kf[0]+4,4)}, {v(Q[1]+4,4)}, {v(Sx,16)}
v_max3_f32 v{t0}, v{Sx}, v{Sx+1}, v{vM}""")
for r in range(2, 16, 2):
    A(f"v_max3_f32 v{t0}, v{Sx+r}, v{Sx+r+1}, v{t0}")
A(f"""v_mov_b32 v{t1}, v{t0}
v_permlane32_swap_b32 v{t0}, v{t1}
v_max_f32 v{vMn}, v{t0}, v{t1}
v_sub_f32 v{vAl}, v{vM}, v{vMn}
v_exp_f32 v{vAl}, v{vAl}
v_mov_b32 v{vM}, v{vMn}""")
for r in range(16):
    A(f"v_sub_f32 v{Sx+r}, v{Sx+r}, v{vMn}")
for r in range(16):
    A(f"v_exp_f32 v{Sx+r}, v{Sx+r}")
for r in range(16):
    A(f"v_mul_f32 v{Ob+r}, v{vAl}, v{Ob+r}")
A(f"""v_smfmac_f32_32x32x32_bf16 {v(Ob,16)}, {v(Vf[0],4)}, {v(Sx,8)}, v{vIdx}
v_smfmac_f32_32x32x32_bf16 {v(Ob,16)}, {v(Vf[0]+4,4)}, {v(Sx+8,8)}, v{vIdx}
s_add_u32 s{sI}, s{sI}, 1
s_cmp_lt_u32 s{sI}, 64
s_cbranch_scc1 L_slow_t
s_nop 11
s_branch L_norm""")

n = A.fix_hazards(verbose=bool(OPT.get("v", 0)))
NV = -(-V.hi // 8) * 8
hdr = open("cdna_kernels/" + NAME + ".s.ref").read().split("; Override launch")[0]
out = hdr + f"""; Fused kernel: QKV projection -> softmax attention -> output projection, one workgroup per
; (branch, head, 256-token block).  Generated by gen/gen.py.
; @launch grid=(256,1,1) block=(512,1,1) lds={LDS_BYTES}
.amdgcn_target "amdgcn-amd-amdhsa--gfx950"
.text
.globl {NAME}_kernel
.p2align 8
.type {NAME}_kernel,@function
""" + A.text().replace("CODE_SPAN", "L_slow-L_nopf") + f""".section .rodata,"a"
.p2align 6
.amdhsa_kernel {NAME}_kernel
  .amdhsa_next_free_vgpr {NV}
  .amdhsa_next_free_sgpr {NSGPR}
  .amdhsa_accum_offset {NV}
  .amdhsa_group_segment_fixed_size 0
  .amdhsa_kernarg_size 72
  .amdhsa_user_sgpr_count 2
  .amdhsa_user_sgpr_kernarg_segment_ptr 1
  .amdhsa_system_sgpr_workgroup_id_x 1
.end_amdhsa_kernel
"""
open(sys.argv[1], "w").write(out)
print(f"wrote {sys.argv[1]}: {len(A.lines)} lines, {n} nops inserted, {NV} vgprs", file=sys.stderr)
```

```python
import sys, struct, math
from asmlib import Asm, Alloc, v, s

NAME = "concat_heads__softmax_full_mha__softmax_full_mha__prompt"

OPT = dict(ts=0, force_slow=0, rot=2, map=1, pf=1, pq=18, tq=5, fq=0, padg=14, pubw=1, pseg=2, npro=0, pp=24, tou=0,
           osc=1, nw0=4, na=2, n1=2, cg=23, xl=4, wqe=0, wqd=2, wqf=0, nb=10, lf=2, yp=0, tch=0, b0=1, lseg=1, reo=1, z0=24, dsl=1, c0=1, off=8, hf=1, gb=12, qo=0, x3=0, yl=2, xe=0, ql=4, nw1=0, rotc=1, osc0=1, cnt=0, o4=0, r4=7, l2e=0, pe=0, sb=2)
for a in sys.argv[2:]:
    k, val = a.split("=")
    OPT[k] = int(val)

FLAG_OFF = 0xD00000
ES = OPT.get("es", 7)
FS = OPT.get("fs", 16 << ES)
HINT = 0x80000
EPOCH_OFF = 0x10000
TS_OFF = 0x20000
KV_OFF = 0x100000
O_OFF = 0x900000
WS_BYTES = 0x1000000
OOB = 0x40000000

XS = 32768
WL = 98304
WQ = 0
CNT = 28800
QOLD = 155648
WOB = 66944
WO15 = 32768
MISC = 161280
SND = 16384
LDS_BYTES = 163840

CSCALE = math.log2(math.e) / math.sqrt(28.0)
SHIFT = OPT['off'] + [0, 4, 2, -4, 1][OPT['c0']]
L_LO = (127 - 60 + SHIFT) << 23
L_RANGE = 120 << 23


def f2u(x):
    return struct.unpack("<I", struct.pack("<f", x))[0]


NTX = " nt" if OPT.get("ntx") else ""
NTW = " nt" if OPT.get("ntw") else ""
OSC = ["", " sc1", " nt", " sc0 sc1", " sc1 nt"][OPT.get("osc", 3)]
C0 = ["0", "4.0", "2.0", "-4.0", "1.0"][OPT.get("c0", 0)]
A = Asm()
sWm, sWm13 = 26, 27
sX, sW, sWS, sWO, sOUT = 28, 32, 36, 40, 44
sw, sb, sh, sj, stag, sE = 48, 49, 50, 51, 52, 53
sCx, sXb, sWb, sMX, sMW, sCw = 54, 55, 56, 57, 58, 59
sT0, sT1, sT2, sT3 = 60, 61, 62, 63
sLo = 64
sLine, sRole = 66, 67
sHo = 10
sCg = 9
sWb0, sSp = 12, 13
sLpx = 8
sKV = 68
sMXs, sWq = 69, 70
sI, sRel, sWn, sHH = 71, 72, 73, 74
sSpin = 75
sOt = 76
sWoff = 77
sKap = 78
sFl = 79
sTS = 80
sRet = 82
sDone, sTodo = 84, 85
sOin = 86
sPc = 87
sOut = 88
sChk = 89
sCs = 90
sKVt = 92
sD0, sD1 = 93, 94
sPend, sRem = 95, 96
sOp = 97
sRdy = 98
sHi, sPl, sC0, sMQ = 4, 5, 6, 7
sCq, sNone = 3, 100
NSGPR = 102


JN = [0]


def ts(idx, grp=1):
    if OPT.get("jit"):
        JN[0] += 1
        A(f"""s_lshl_b32 s{sTS}, s2, 3
        s_add_u32 s{sTS}, s{sTS}, s{sw}
        s_add_u32 s{sTS}, s{sTS}, {OPT["jit"] * 7919 + JN[0] * 104729}
        s_mul_i32 s{sTS}, s{sTS}, 0x9e3779b1
        s_lshr_b32 s{sTS+1}, s{sTS}, 15
        s_xor_b32 s{sTS}, s{sTS}, s{sTS+1}
        s_mul_i32 s{sTS}, s{sTS}, 0x85ebca6b
        s_lshr_b32 s{sTS}, s{sTS}, 26
        s_sub_u32 s{sTS}, s{sTS}, 48
        s_cbranch_scc1 L_jd{JN[0]}
        L_jl{JN[0]}:
        s_sleep {OPT.get("jsl", 12)}
        s_sub_u32 s{sTS}, s{sTS}, 1
        s_cbranch_scc0 L_jl{JN[0]}
        L_jd{JN[0]}:""")
    if OPT.get("padat") == 100 * grp + idx:
        A(f"s_memrealtime s[{sTS}:{sTS+1}]\ns_waitcnt lgkmcnt(0)")
    if not OPT["ts"] or (idx != 0 and OPT["ts"] != grp):
        return
    A(f"""{"s_memtime" if OPT.get("clk") else "s_memrealtime"} s[{sTS}:{sTS+1}]
    s_waitcnt lgkmcnt(0)
    v_writelane_b32 v{vTS}, s{sTS}, {idx}""")


def tsd(code, val=0):
    if OPT.get("jit"):
        ts(15, 9)
    A(tsdt(code, val))


def tsdt(code, val=0):
    if OPT["ts"] != 5:
        return ""
    return (f"""s_memrealtime s[{sTS}:{sTS+1}]
    s_waitcnt lgkmcnt(0)
    s_lshl_b32 s{sTS}, s{sTS}, 8
    s_or_b32 s{sTS}, s{sTS}, {code << 4}
    s_or_b32 s{sTS}, s{sTS}, {val}
    s_mov_b32 m0, s11
    v_writelane_b32 v{vTS}, s{sTS}, m0
    s_add_u32 s11, s11, 1
    s_min_u32 s11, s11, 63""")


ASR = [20, 22, 54, 56, 58, 68, 66, 72, 90, 26, 6]


def tsa(i):
    if OPT["ts"] == 6:
        A(f"s_memrealtime s[{ASR[i]}:{ASR[i]+1}]")


class Cnt:
    def __init__(self, name, cap):
        self.name, self.cap, self.q = name, cap, []

    def room(self):
        if len(self.q) >= self.cap:
            A(f"s_waitcnt {self.name}({self.cap - 4})")
            self.q = self.q[len(self.q) - (self.cap - 4):]

    def issue(self, tag, n=1):
        self.q += [tag] * n
        assert len(self.q) <= self.cap, (self.name, self.q)

    def wait(self, *tags):
        idx = [i for i, t in enumerate(self.q) if t in tags]
        if idx:
            n = len(self.q) - 1 - idx[-1]
            A(f"s_waitcnt {self.name}({n})")
            self.q = self.q[idx[-1] + 1:]


def lines(text):
    return [x.strip() for x in text.split("\n") if x.strip()]


def emit(lst, n):
    for _ in range(min(n, len(lst))):
        A(lst.pop(0))


V = Alloc(1, 256)
vLane = V()
vTS = V()
vL16 = V()
vIdx = V()
vT = [V() for _ in range(6)]
t0, t1, t2, t3, t4, t5 = vT
vQm = V()
DEAD = V(8)
vQw, vQr, vBase, vCur, vWod, vPl, vPc, vBk = range(DEAD, DEAD + 8)
vOa, vW0, vW1, vSn, vRw, vMf, vTw, vTr, vOs, vOs2, vLp = [V() for _ in range(11)]
vTag = V()
vTag2 = V()
vFl = V(2)
m_ph = V.mark()
Xr = V(112)
acc0, acc1 = V(16), V(16)
Wf = V(24)
accQ = V(16)
Wg = V(12)
vXd = [V() for _ in range(4)]
vWd, vWd2 = V(), V()
vWq = V()
vXa = [V() for _ in range(4)]
vWr = [V(), V()]
vWqr = V()
vSt = [V() for _ in range(4)]
vP = [V()]
vPd = V(4)
vOnes = accQ
V.reset(m_ph)
O = [V(16), V(16)]
Q = [V(8), V(8)]
S = [V(16) for _ in range(4)]
Kf = [V(8), V(8)]
Vf = [V(8), V(8)]
pk, pq = V(8), V(8)
Of = V(32)
acc = V(28)
assert O[0] == Xr and WQ == 0

A.label(NAME + "_kernel")
A(f"""s_cmp_ge_u32 s2, 256
s_cbranch_scc1 L_end
s_load_dwordx16 s[8:23], s[0:1], 0
s_load_dwordx2 s[24:25], s[0:1], 64
v_lshrrev_b32 v{t0}, 6, v0
v_and_b32 v{vLane}, 63, v0
v_readfirstlane_b32 s{sw}, v{t0}
v_lshlrev_b32 v{vL16}, 4, v{vLane}""")
if OPT.get("padto"):
    A(f"s_memrealtime s[{sTS}:{sTS+1}]")
if OPT["ts"]:
    A(f"""{"s_memtime" if OPT.get("clk") else "s_memrealtime"} s[{sTS}:{sTS+1}]
    v_mov_b32 v{vTS}, 0""")
if OPT["map"] == 1:
    A(f"""s_and_b32 s{sT0}, s2, 7
    s_lshr_b32 s{sT1}, s2, 3
    s_and_b32 s{sj}, s{sT1}, 7
    s_lshr_b32 s{sT1}, s{sT1}, 3
    s_lshl_b32 s{sT0}, s{sT0}, 2
    s_add_u32 s{sHH}, s{sT0}, s{sT1}""")
elif OPT["map"] == 2:
    A(f"""s_and_b32 s{sT0}, s2, 7
    s_lshr_b32 s{sT1}, s2, 3
    s_and_b32 s{sT2}, s{sT0}, 3
    s_lshl_b32 s{sT2}, s{sT2}, 1
    s_lshr_b32 s{sT3}, s{sT1}, 4
    s_add_u32 s{sj}, s{sT2}, s{sT3}
    s_lshr_b32 s{sT0}, s{sT0}, 2
    s_lshl_b32 s{sT0}, s{sT0}, 4
    s_and_b32 s{sT1}, s{sT1}, 15
    s_add_u32 s{sHH}, s{sT0}, s{sT1}""")
elif OPT["map"] == 3:
    A(f"""s_and_b32 s{sT0}, s2, 7
    s_lshr_b32 s{sT1}, s2, 3
    s_and_b32 s{sT2}, s{sT0}, 1
    s_lshl_b32 s{sT2}, s{sT2}, 2
    s_lshr_b32 s{sT3}, s{sT1}, 3
    s_add_u32 s{sj}, s{sT2}, s{sT3}
    s_lshr_b32 s{sT0}, s{sT0}, 1
    s_lshl_b32 s{sT0}, s{sT0}, 3
    s_and_b32 s{sT1}, s{sT1}, 7
    s_add_u32 s{sHH}, s{sT0}, s{sT1}""")
A(f"""s_lshr_b32 s{sb}, s{sHH}, 4
s_and_b32 s{sh}, s{sHH}, 15
s_lshr_b32 s{sKap}, s{sw}, 2""")
XCALC = (f"""s_cmp_gt_u32 s{sh}, 7
s_cselect_b32 s{sRole}, 1, 0
s_cselect_b32 s{sT0}, 16, 1
s_cselect_b32 s{sT1}, 1, 2
s_cselect_b32 s{sT2}, 2, 8
s_cselect_b32 s{sT3}, 8, 16
v_bfe_u32 v{t0}, v{vLane}, 3, 1
v_mul_u32_u24 v{t0}, s{sT0}, v{t0}
v_bfe_u32 v{t1}, v{vLane}, 4, 1
v_mad_u32_u24 v{t0}, v{t1}, s{sT1}, v{t0}
v_lshrrev_b32 v{t1}, 5, v{vLane}
v_lshl_add_u32 v{t0}, v{t1}, 2, v{t0}
v_mul_u32_u24 v{t3}, 896, v{t0}
s_mul_i32 s{sT2}, s{sT2}, 896
s_mul_i32 s{sT3}, s{sT3}, 896
s_sub_u32 s{sT2}, s{sT2}, 1024
s_sub_u32 s{sT3}, s{sT3}, 2048
v_lshrrev_b32 v{t1}, 4, v{vLane}
v_and_b32 v{t2}, 7, v{vLane}
v_xor_b32 v{t1}, v{t1}, v{t2}
v_lshl_add_u32 v{vXd[0]}, v{t1}, 4, v{t3}
v_xor_b32 v{t1}, 4, v{t1}
v_lshl_add_u32 v{t1}, v{t1}, 4, v{t3}
v_add_u32 v{vXd[1]}, s{sT2}, v{t1}
v_add_u32 v{vXd[2]}, s{sT3}, v{vXd[0]}
v_add_u32 v{vXd[3]}, s{sT3}, v{vXd[1]}
s_lshl_b32 s{sT0}, s{sj}, 3
s_add_u32 s{sT0}, s{sT0}, s{sw}
s_mul_i32 s{sXb}, s{sT0}, {32*896}
s_lshl_b32 s{sMX}, s{sw}, 12
s_lshl_b32 s{sT0}, s{sKap}, 14
s_add_u32 s{sMXs}, s{sMX}, s{sT0}
s_add_u32 s{sMXs}, s{sMXs}, {XS}
s_lshl_b32 s{sCx}, s{sC0}, 7
s_mov_b32 s{sX+2}, {2048*896}
s_mov_b32 s{sX+3}, 0x20000""")
if OPT["rot"] == 0:
    A(f"s_mov_b32 s{sC0}, 0")
else:
    if OPT["rot"] == 1:
        A(f"s_add_u32 s{sC0}, s{sh}, s{sj}")
    elif OPT["rot"] == 2:
        A(f"""s_mul_i32 s{sC0}, s{sh}, 7
        s_lshr_b32 s{sC0}, s{sC0}, 4
        s_add_u32 s{sC0}, s{sC0}, s{sj}""")
    elif OPT["rot"] == 4:
        A(f"""s_lshr_b32 s{sC0}, s{sh}, 2
        s_lshl_b32 s{sC0}, s{sC0}, 1
        s_add_u32 s{sC0}, s{sC0}, s{sj}""")
    elif OPT["rot"] == 5:
        A(f"""s_lshr_b32 s{sC0}, s{sh}, 2
        s_lshl_b32 s{sC0}, s{sC0}, 1
        s_and_b32 s{sT1}, s{sj}, 1
        s_lshl_b32 s{sT1}, s{sT1}, 2
        s_add_u32 s{sC0}, s{sC0}, s{sT1}""")
    elif OPT["rot"] == 3:
        A(f"""s_mul_i32 s{sC0}, s{sh}, 7
        s_lshr_b32 s{sC0}, s{sC0}, 4""")
    A(f"""s_mul_i32 s{sT1}, s{sC0}, 37
    s_lshr_b32 s{sT1}, s{sT1}, 8
    s_mul_i32 s{sT1}, s{sT1}, 7
    s_sub_u32 s{sC0}, s{sC0}, s{sT1}""")
PF = f"""s_and_b32 s{sT0}, s2, 0xf8
s_add_u32 s{sT0}, s{sT0}, s{sw}
s_mul_i32 s{sT0}, s{sT0}, 192
s_getpc_b64 s[{sRet}:{sRet+1}]
L_nopf:
v_and_b32 v{t4}, 0x80, v{vL16}
v_add_u32 v{t4}, s{sT0}, v{t4}
v_min_u32 v{t4}, CODE_SPAN, v{t4}
global_load_dword v{t5}, v{t4}, s[{sRet}:{sRet+1}]"""
if OPT["pf"] == 1:
    A(PF)
SEL = f"""s_cmp_eq_u32 s{sb}, 0
s_waitcnt lgkmcnt(0)
s_cselect_b32 s{sX}, s8, s14
s_cselect_b32 s{sX+1}, s9, s15
s_cselect_b32 s{sW}, s10, s16
s_cselect_b32 s{sW+1}, s11, s17
s_cselect_b32 s{sWO}, s12, s18
s_cselect_b32 s{sWO+1}, s13, s19
{f"v_writelane_b32 v{vTS}, s{sTS}, 0" if OPT["ts"] else ""}"""


def x_pieces(c, slot=None):
    p = [f"""s_add_u32 m0, s{sMXs}, {(c % 2 if slot is None else slot) * 16384}
    s_add_u32 s{sD0}, s{sCx}, s{sXb}
    buffer_load_dwordx4 v{vXd[0]}, s[{sX}:{sX+3}], s{sD0} offen{NTX} lds
    s_add_u32 s{sCx}, s{sCx}, 128
    s_cmp_eq_u32 s{sCx}, 896
    s_cselect_b32 s{sCx}, 0, s{sCx}"""]
    for i in range(1, 4):
        p.append(f"buffer_load_dwordx4 v{vXd[i]}, s[{sX}:{sX+3}], s{sD0} offen offset:{1024*i}{NTX} lds")
    return [(x, f"X{c}") for x in p]


def w_pieces(it):
    return [(f"""s_add_u32 m0, s{sMW}, {it*8192}
    s_add_u32 s{sD1}, s{sCw}, s{sWb}
    buffer_load_dwordx4 v{vWd}, s[{sW}:{sW+3}], s{sD1} offen lds
    s_add_u32 s{sCw}, s{sCw}, {64*2688}
    s_cmp_eq_u32 s{sCw}, {448*2688}
    s_cselect_b32 s{sCw}, 0, s{sCw}""", f"W{it}"),
            (f"buffer_load_dwordx4 v{vWd2}, s[{sW}:{sW+3}], s{sD1} offen offset:1024 lds", f"W{it}")]


def wq_piece(i):
    return (f"""s_add_u32 m0, s{sMQ}, {i*4096}
    s_add_u32 s{sD1}, s{sCq}, s{sWq}
    buffer_load_dwordx4 v{vWq}, s[{sW}:{sW+3}], s{sD1} offen lds
    s_add_u32 s{sCq}, s{sCq}, {64*2688}
    s_cmp_eq_u32 s{sCq}, {448*2688}
    s_cselect_b32 s{sCq}, 0, s{sCq}""", "WQ")


WCALC = f"""s_mov_b32 s{sW+2}, {448*2688}
s_mov_b32 s{sW+3}, 0x20000
s_cmp_gt_u32 s{sh}, 6
s_subb_u32 s{sLine}, s{sh}, 0
s_cmp_gt_u32 s{sh}, 9
s_subb_u32 s{sLine}, s{sLine}, 0
s_lshl_b32 s{sWb}, s{sLine}, 7
s_cmp_ge_u32 s{sLine}, 7
s_cselect_b32 s{sT0}, 7, 0
s_sub_u32 s{sLine}, s{sLine}, s{sT0}
s_and_b32 s{sT1}, s{sw}, 3
s_mul_i32 s{sT0}, s{sT1}, {16*2688}
s_add_u32 s{sWb}, s{sWb}, s{sT0}
s_add_u32 s{sWb}, s{sWb}, 896
s_mul_i32 s{sCw}, s{sC0}, {64*2688}
s_lshl_b32 s{sMW}, s{sT1}, 11
s_add_u32 s{sMW}, s{sMW}, {WL}
v_lshrrev_b32 v{t0}, 3, v{vLane}
v_mul_u32_u24 v{t0}, 2688, v{t0}
v_bfe_u32 v{t1}, v{vLane}, 4, 1
v_lshlrev_b32 v{t1}, 2, v{t1}
v_and_b32 v{t2}, 7, v{vLane}
v_xor_b32 v{t1}, v{t1}, v{t2}
v_lshl_add_u32 v{vWd}, v{t1}, 4, v{t0}
v_add_u32 v{vWd2}, {8*2688-1024}, v{vWd}"""
NW0 = OPT["nw0"]
A(f"""s_lshr_b32 s{sNone}, 0x240, s{sh}
s_and_b32 s{sNone}, s{sNone}, 1
s_cmp_gt_u32 s{sKap}, s{sNone}
s_cbranch_scc1 L_wfirst""")
A(XCALC)
A(SEL)
for p, _ in x_pieces(0) + x_pieces(1):
    A(p)
ts(1, 2)
A(WCALC)
A("s_branch L_now")
A.label("L_wfirst")
A(WCALC)
A(SEL)
for it in range(NW0):
    for p, _ in w_pieces(it):
        A(p)
ts(1, 2)
A(XCALC)
TOUCH = f"""v_lshrrev_b32 v{t0}, 3, v{vLane}
v_and_b32 v{t1}, 7, v{vLane}
v_min_u32 v{t1}, 6, v{t1}
v_lshlrev_b32 v{t1}, 7, v{t1}
s_and_b32 s{sT1}, s{sw}, 3
s_lshl_b32 s{sT0}, s{sh}, 2
s_add_u32 s{sT0}, s{sT0}, s{sT1}
s_lshl_b32 s{sT2}, s{sj}, 7
s_add_u32 s{sT2}, s{sT2}, s{sT0}
s_add_u32 s{sT2}, s{sT2}, 64
s_mul_i32 s{sT2}, s{sT2}, {2*896}
s_movk_i32 s{sT3}, 896
v_mad_u32_u24 v{t3}, v{t0}, s{sT3}, v{t1}
s_lshl_b32 s{sT0}, s{sT0}, 3
s_add_u32 s{sT0}, s{sT0}, s{sj}
s_mul_i32 s{sT0}, s{sT0}, 2688
s_mov_b64 exec, 0xffff
buffer_load_dword v{t5}, v{t3}, s[{sX}:{sX+3}], s{sT2} offen
s_mov_b64 exec, 0xff
buffer_load_dword v{t5}, v{t1}, s[{sW}:{sW+3}], s{sT0} offen
s_mov_b64 exec, -1"""
if OPT["tch"] == 1:
    A(TOUCH)
A.label("L_now")

EARLY = lines(f"""s_lshl_b32 s{sT0}, s{sb}, 8
s_add_u32 s{sT0}, s{sT0}, {EPOCH_OFF}
s_load_dword s{sE}, s[24:25], s{sT0}
v_lshrrev_b32 v{t2}, 5, v{vLane}
v_and_b32 v{t0}, 31, v{vLane}
v_bfe_u32 v{t1}, v{vLane}, 1, 3
v_xor_b32 v{t1}, v{t1}, v{t2}
v_lshlrev_b32 v{t0}, 7, v{t0}
v_add_u32 v{t0}, s{sMXs}, v{t0}""")
for sst in range(4):
    EARLY += lines(f"""v_xor_b32 v{t3}, {2*sst}, v{t1}
    v_lshl_add_u32 v{vXa[sst]}, v{t3}, 4, v{t0}""")
EARLY += lines(f"""v_bfe_u32 v{t1}, v{vLane}, 2, 2
v_lshl_add_u32 v{t0}, v{t2}, 3, v{t1}
v_bfe_u32 v{t3}, v{vLane}, 4, 1
v_and_b32 v{t4}, 3, v{vLane}
v_lshlrev_b32 v{t4}, 3, v{t4}
v_lshl_add_u32 v{t4}, v{t3}, 5, v{t4}
v_lshl_add_u32 v{vWqr}, v{t0}, 6, v{t4}
v_lshl_add_u32 v{t4}, v{t0}, 7, v{t4}
v_lshrrev_b32 v{t1}, 1, v{t1}
v_lshl_add_u32 v{t4}, v{t1}, 6, v{t4}
v_add_u32 v{vWr[0]}, {WL}, v{t4}
v_xor_b32 v{vWr[1]}, 64, v{vWr[0]}""")
if OPT["cnt"]:
    EARLY += lines(f"""v_mov_b32 v{vQm}, {CNT}
    v_mov_b32 v{vFl}, 0
    v_mov_b32 v{vFl+1}, 0
    ds_write_b64 v{vQm}, {v(vFl,2)}
    v_mov_b32 v{vFl+1}, 1""")

MID = lines(f"""s_and_b32 s{sT0}, s{sh}, 1
s_lshl_b32 s{sT0}, s{sT0}, 3
s_add_u32 s{sT0}, s{sT0}, {WQ}
v_add_u32 v{vWqr}, s{sT0}, v{vWqr}
s_mul_i32 s{sWq}, s{sh}, 56
s_and_b32 s{sWq}, s{sWq}, 0xfffffff0
s_and_b32 s{sT0}, s{sw}, 3
s_lshl_b32 s{sMQ}, s{sT0}, 10
s_mul_i32 s{sT0}, s{sT0}, {16*2688}
s_add_u32 s{sWq}, s{sWq}, s{sT0}
s_mul_i32 s{sCq}, s{sC0}, {64*2688}
v_lshrrev_b32 v{t0}, 2, v{vLane}
v_mul_u32_u24 v{t0}, 2688, v{t0}
v_and_b32 v{t1}, 3, v{vLane}
v_lshl_add_u32 v{vWq}, v{t1}, 4, v{t0}""")
MID += lines(f"""s_mov_b32 s{sWS}, s24
s_mov_b32 s{sWS+1}, s25
s_mov_b32 s{sWS+2}, {WS_BYTES}
s_mov_b32 s{sWS+3}, 0x20000
s_lshl_b32 s{sKVt}, s{sb}, 22
s_lshl_b32 s{sRel}, s{sj}, 15
s_add_u32 s{sRel}, s{sRel}, s{sMX}
s_add_u32 s{sKVt}, s{sKVt}, s{sRel}
s_add_u32 s{sKVt}, s{sKVt}, {KV_OFF}
s_and_b32 s{sT0}, s{sw}, 3
s_lshl_b32 s{sT0}, s{sT0}, 1
s_lshl_b32 s{sT1}, s{sb}, 3
s_add_u32 s{sT1}, s{sT1}, s{sj}
s_lshl_b32 s{sT1}, s{sT1}, 3
s_add_u32 s{sT0}, s{sT0}, s{sT1}
s_lshl_b32 s{sT0}, s{sT0}, 4
s_add_u32 s{sT0}, s{sT0}, s{sh}
s_lshl_b32 s{sOp}, s{sT0}, 11
s_add_u32 s{sOp}, s{sOp}, {O_OFF}
s_lshl_b32 s{sOt}, s{sKap}, 15
s_add_u32 s{sOt}, s{sOt}, s{sOp}
v_mov_b32 v{vPd}, {0x3f80 if OPT["off"] else 0}
v_mov_b32 v{vPd+1}, 0
v_mov_b32 v{vPd+2}, {0x3f80 if OPT["off"] else 0}
v_mov_b32 v{vPd+3}, 0
s_add_u32 s{sFl}, s{sT1}, s{sw}
s_mul_i32 s{sFl}, s{sFl}, {FS}
s_lshl_b32 s{sT0}, s{sh}, {ES}
s_add_u32 s{sFl}, s{sFl}, s{sT0}
s_add_u32 s{sFl}, s{sFl}, {FLAG_OFF}""")
LATE = lines(f"""s_lshl_b32 s{sPl}, s{sb}, 6
s_and_b32 s{sT1}, s{sw}, 3
s_add_u32 s{sPl}, s{sPl}, s{sT1}
s_mul_i32 s{sPl}, s{sPl}, {FS}
s_add_u32 s{sPl}, s{sPl}, {FLAG_OFF}
{[f"s_mov_b32 s{sT0}, s{sj}", f"s_mov_b32 s{sT0}, 0", f"s_lshl_b32 s{sT0}, s{sh}, 1", f"s_and_b32 s{sT0}, s{sj}, 4", f"s_and_b32 s{sT0}, s{sj}, 6"][OPT["sb"]]}
s_add_u32 s{sT0}, s{sT0}, s{sKap}
s_and_b32 s{sT0}, s{sT0}, 7
s_lshl_b32 s{sRel}, s{sT0}, 15
s_lshl_b32 s{sT1}, s{sT1}, 12
s_add_u32 s{sRel}, s{sRel}, s{sT1}
v_bfe_u32 v{t3}, v{vLane}, 2, 2
v_lshl_add_u32 v{t3}, v{t3}, 1, s{sT0}
v_lshrrev_b32 v{t1}, 5, v{vLane}
v_add_u32 v{t3}, v{t3}, v{t1}
v_and_b32 v{t3}, 7, v{t3}
v_bfe_u32 v{t1}, v{vLane}, 4, 1
v_lshl_add_u32 v{t3}, v{t3}, 1, v{t1}
v_mul_u32_u24 v{t3}, {4*FS}, v{t3}
s_mul_i32 s{sT0}, s{sh}, 28
s_add_u32 s{sT1}, s{sT0}, 27
s_lshr_b32 s{sT0}, s{sT0}, 6
s_lshr_b32 s{sT1}, s{sT1}, 6
s_sub_u32 s{sT1}, s{sT1}, s{sT0}
v_and_b32 v{t0}, 1, v{vLane}
v_mul_u32_u24 v{t0}, s{sT1}, v{t0}
v_add_u32 v{t0}, s{sT0}, v{t0}
v_bfe_u32 v{t1}, v{vLane}, 1, 1
v_mad_u32_u24 v{t0}, v{t1}, 7, v{t0}
v_add_u32 v{t4}, 10, v{t0}
v_lshrrev_b32 v{t4}, 4, v{t4}
v_lshrrev_b32 v{t2}, 3, v{t0}
v_add3_u32 v{t0}, v{t0}, v{t4}, v{t2}
s_sub_u32 s{sT2}, s{sT1}, 1
s_and_b32 s{sT2}, s{sT2}, 0xaaaaaaaa
s_mov_b32 s{sT3}, s{sT2}
v_mad_u32_u24 v{t1}, v{t1}, 3, 6
v_cndmask_b32 v{t0}, v{t0}, v{t1}, s[{sT2}:{sT3}]
v_lshl_add_u32 v{vPl}, v{t0}, {ES}, v{t3}
s_lshl_b32 s{sKV}, s{sHH}, 18
s_add_u32 s{sKV}, s{sKV}, {KV_OFF}
s_mov_b32 s{sDone}, s{sKap}""")
LATE += lines(f"""s_mov_b32 s{sLo}, -1
s_mov_b32 s{sLo+1}, 0
s_mov_b32 s{sCs}, {hex(f2u(CSCALE))}
s_mov_b32 s{sCs+1}, {hex(f2u(CSCALE))}
s_and_b32 s{sT1}, s{sw}, 3
v_mov_b32 v{vIdx}, 0xdddddddd
s_or_b32 s{sT2}, s{sT1}, 1
s_add_u32 s{sT0}, s{sT1}, s{sT2}
s_lshl_b32 s{sT0}, s{sT0}, 11
s_add_u32 s{sT0}, s{sT0}, {XS+32768}
s_lshl_b32 s{sT2}, s{sT1}, 11
s_add_u32 s{sT2}, s{sT2}, {QOLD}
s_sub_u32 s{sT0}, s{sT0}, s{sT2}
s_mul_i32 s{sT0}, s{sT0}, s{sKap}
s_add_u32 s{sT0}, s{sT0}, s{sT2}
v_and_b32 v{t0}, 1, v{vLane}
v_lshlrev_b32 v{t0}, 4, v{t0}
v_bfe_u32 v{t1}, v{vLane}, 4, 1
v_lshl_add_u32 v{t0}, v{t1}, 3, v{t0}
v_bfe_u32 v{t1}, v{vLane}, 3, 1
v_lshl_add_u32 v{t0}, v{t1}, 1, v{t0}
v_bfe_u32 v{t1}, v{vLane}, 1, 1
v_add_u32 v{t0}, v{t0}, v{t1}
v_and_b32 v{t1}, 0x24, v{vLane}
v_add_u32 v{t0}, v{t0}, v{t1}
v_sub_u32 v{t0}, v{t0}, v{vLane}
v_mul_lo_u32 v{t0}, v{t0}, s{sRole}
v_add_u32 v{t0}, v{t0}, v{vLane}
v_lshl_add_u32 v{vQw}, v{t0}, 4, s{sT0}
s_lshr_b32 s{sT3}, s{sT1}, 1
s_and_b32 s{sT2}, s{sT1}, 1
s_add_u32 s{sT0}, s{sT3}, 12
s_lshl_b32 s{sT2}, s{sT2}, s{sT0}
s_mul_i32 s{sT3}, s{sT3}, {(XS+32768+2048-QOLD) & 0xffffffff}
s_add_u32 s{sT2}, s{sT2}, s{sT3}
s_add_u32 s{sT2}, s{sT2}, {QOLD}
s_lshl_b32 s{sT0}, s{sKap}, 11
s_sub_u32 s{sT3}, s{sT2}, s{sT0}
s_add_u32 s{sT2}, s{sT2}, s{sT0}
v_add_u32 v{vQr}, s{sT3}, v{vL16}
v_add_u32 v{vOs2}, s{sT2}, v{vL16}
s_lshl_b32 s{sT0}, s{sKap}, 14
v_add_u32 v{vBase}, s{sT0}, v{vL16}
v_add_u32 v{vCur}, 0x10000, v{vBase}
v_lshl_add_u32 v{vBk}, v{vLane}, 3, s{sT0}""")
L1, LATE = LATE, []
LATE += lines(f"""s_mov_b32 s{sWO+2}, {448*896}
s_mov_b32 s{sWO+3}, 0x20000
s_mov_b32 s{sOUT}, s20
s_mov_b32 s{sOUT+1}, s21
s_mov_b32 s{sOUT+2}, {2048*1792}
s_mov_b32 s{sOUT+3}, 0x20000
s_mov_b32 s{sChk}, {0 if OPT['force_slow'] else L_RANGE}
s_and_b32 s{sWoff}, s{sh}, 3
s_mul_i32 s{sWoff}, s{sWoff}, 224""")
LATE += lines(f"""s_lshl_b32 s{sT1}, s{sb}, 3
s_add_u32 s{sT1}, s{sT1}, s{sj}
s_lshl_b32 s{sT1}, s{sT1}, 3
s_lshr_b32 s{sT0}, s{sh}, 2
s_bfe_u32 s{sT2}, s{sw}, 0x10001
s_lshl_b32 s{sPc}, s{sT2}, 2
s_add_u32 s{sPc}, s{sPc}, s{sT0}
s_add_u32 s{sPc}, s{sPc}, s{sT1}
s_mul_i32 s{sPc}, s{sPc}, {FS}
s_add_u32 s{sPc}, s{sPc}, {FLAG_OFF + 64}
s_lshl_b32 s{sT3}, s{sT0}, 1
s_add_u32 s{sT3}, s{sT3}, s{sT2}
s_add_u32 s{sT3}, s{sT3}, s{sT1}
s_lshl_b32 s{sOin}, s{sT3}, 15
s_add_u32 s{sOin}, s{sOin}, {O_OFF}
s_and_b32 s{sT3}, s{sw}, 1
s_lshl_b32 s{sT3}, s{sT3}, 8
s_add_u32 s{sOin}, s{sOin}, s{sT3}
s_lshl_b32 s{sT3}, s{sKap}, 11
s_add_u32 s{sOin}, s{sOin}, s{sT3}""")
LATE += lines(f"""s_lshl_b32 s{sT1}, s{sj}, 2
s_add_u32 s{sT0}, s{sT0}, s{sT1}
s_lshl_b32 s{sT0}, s{sT0}, 2
s_and_b32 s{sT1}, s{sw}, 3
s_add_u32 s{sT0}, s{sT0}, s{sT1}
s_mul_i32 s{sOut}, s{sT0}, {16*1792}
s_mul_i32 s{sT0}, s{sb}, 896
s_add_u32 s{sOut}, s{sOut}, s{sT0}
s_add_u32 s{sOut}, s{sOut}, s{sWoff}
v_and_b32 v{t2}, 7, v{vLane}
s_add_u32 s{sT0}, s{sT1}, 5
s_lshl_b32 s{sT0}, s{sT0}, 13
s_and_b32 s{sT0}, s{sT0}, 0xffff
v_add_u32 v{vRw}, s{sT0}, v{vL16}
s_lshl_b32 s{sT2}, s{sT1}, 2
s_add_u32 s{sT2}, s{sT2}, {MISC}
v_mov_b32 v{vMf}, s{sT2}
s_mul_i32 s{sT2}, s{sT1}, 3072
s_add_u32 s{sT2}, s{sT2}, {SND}
v_add_u32 v{vSn}, s{sT2}, v{vL16}
v_lshrrev_b32 v{t1}, 3, v{vLane}
s_lshl_b32 s{sT2}, s{sKap}, 11
s_add_u32 s{sT0}, s{sT0}, s{sT2}
s_add_u32 s{sT0}, s{sT0}, 4096
v_xor_b32 v{t3}, v{t1}, v{t2}
v_lshlrev_b32 v{t3}, 4, v{t3}
v_lshl_add_u32 v{t3}, v{t1}, 7, v{t3}
v_add_u32 v{vTr}, s{sT0}, v{t3}
s_and_b32 s{sCg}, s{sh}, {3 if OPT["rotc"] else 0}
s_lshl_b32 s{sCg}, s{sCg}, 1
s_lshl_b32 s{sT2}, s{sKap}, 3
s_add_u32 s{sT2}, s{sT2}, s{sCg}
v_add_u32 v{t4}, s{sT2}, v{t2}
v_subrev_u32 v{t3}, 14, v{t4}
v_min_u32 v{t4}, v{t4}, v{t3}
v_mul_u32_u24 v{t3}, 1792, v{t1}
v_lshl_add_u32 v{vOs}, v{t4}, 4, v{t3}
v_add_u32 v{t3}, 2, v{t2}
v_lshrrev_b32 v{t3}, 3, v{t3}
v_mul_u32_u24 v{t3}, s{sKap}, v{t3}
v_lshl_add_u32 v{vOs}, v{t3}, 30, v{vOs}
v_and_b32 v{t0}, 15, v{vLane}
v_lshrrev_b32 v{t1}, 4, v{vLane}
v_lshrrev_b32 v{t3}, 1, v{t1}
v_xor_b32 v{t3}, v{t3}, v{t2}
v_lshlrev_b32 v{t3}, 4, v{t3}
v_lshl_add_u32 v{t3}, v{t0}, 7, v{t3}
v_and_b32 v{t4}, 1, v{t1}
v_lshl_add_u32 v{t3}, v{t4}, 3, v{t3}
v_add_u32 v{vTw}, s{sT0}, v{t3}
v_lshlrev_b32 v{vPc}, {ES}, v{t0}
v_lshlrev_b32 v{t2}, 12, v{t2}
v_add_u32 v{vLp}, {3*512+15*16}, v{t2}
v_lshlrev_b32 v{t2}, 9, v{t1}
v_lshl_add_u32 v{vOa}, v{t0}, 4, v{t2}""")
LATE += lines(f"""v_lshrrev_b32 v{t2}, 1, v{t1}
v_lshlrev_b32 v{t2}, 4, v{t2}
v_lshl_add_u32 v{t2}, v{t4}, 2, v{t2}
v_bfe_u32 v{t3}, v{vLane}, 2, 2
v_add_u32 v{t2}, v{t2}, v{t3}
v_mul_u32_u24 v{t2}, 224, v{t2}
v_and_b32 v{t3}, 3, v{vLane}
v_lshl_add_u32 v{t2}, v{t3}, 3, v{t2}
v_add_u32 v{t3}, 1, v{t1}
v_lshrrev_b32 v{t3}, 2, v{t3}
v_mul_u32_u24 v{t3}, {4*224}, v{t3}
v_sub_u32 v{t3}, v{t2}, v{t3}
s_mul_i32 s{sT0}, s{sKap}, 6272
s_add_u32 s{sT0}, s{sT0}, {WOB}
v_add_u32 v{vW0}, s{sT0}, v{t2}
s_add_u32 s{sT0}, s{sT0}, {8*224}
v_add_u32 v{vW1}, s{sT0}, v{t3}
s_mul_i32 s{sSp}, s{sKap}, {(WO15 - WOB - 6272 - 7*12544) & 0xffffffff}
s_add_u32 s{sSp}, s{sSp}, {7*12544}""")
LATE += lines(f"""v_mul_u32_u24 v{t2}, 0x4925, v{vLane}
v_lshrrev_b32 v{t2}, 18, v{t2}
v_mul_u32_u24 v{t3}, 14, v{t2}
v_sub_u32 v{t3}, v{vLane}, v{t3}
v_add_u32 v{t3}, s{sCg}, v{t3}
v_subrev_u32 v{t4}, 14, v{t3}
v_min_u32 v{t3}, v{t3}, v{t4}
v_mul_u32_u24 v{t2}, 896, v{t2}
v_lshl_add_u32 v{vWod}, v{t3}, 4, v{t2}
s_mul_i32 s{sWn}, s{sw}, 3584
s_add_u32 s{sWn}, s{sWn}, s{sWoff}
s_mul_i32 s{sWm}, s{sw}, 896
s_add_u32 s{sWm13}, s{sWm}, {WO15-896}
s_max_u32 s{sT0}, s{sw}, 1
s_sub_u32 s{sT0}, s{sT0}, s{sw}
s_mul_i32 s{sT0}, s{sT0}, {WOB+104*896-(WO15-896)}
s_add_u32 s{sWm13}, s{sWm13}, s{sT0}""")
L2 = LATE
ENDS = lines(f"""s_mul_i32 s{sT2}, s{sLine}, {16*9363}
s_add_u32 s{sT3}, s{sT2}, {16*9363}
s_lshr_b32 s{sT2}, s{sT2}, 16
s_lshr_b32 s{sT3}, s{sT3}, 16
s_sub_u32 s{sT3}, s{sT3}, s{sT2}
s_lshl_b32 s{sT2}, s{sT2}, 18""")
FK = lines(f"""v_and_b32 v{t0}, 15, v{vLane}
v_lshlrev_b32 v{t0}, 4, v{t0}
v_bfe_u32 v{t1}, v{vLane}, 4, 1
v_lshrrev_b32 v{t4}, 5, v{vLane}
v_lshl_add_u32 v{t1}, v{t1}, 1, v{t4}
s_lshl_b32 s{sT0}, s{sLine}, 4
v_add_u32 v{t1}, s{sT0}, v{t1}""")
for i in range(4):
    FK += lines(f"""v_add_u32 v{t2}, {4*i}, v{t1}
    v_mul_u32_u24 v{t3}, 9363, v{t2}
    v_lshrrev_b32 v{t3}, 16, v{t3}
    v_lshl_add_u32 v{vSt[i]}, v{t3}, 18, v{t0}
    v_mul_u32_u24 v{t3}, 7, v{t3}
    v_sub_u32 v{t2}, v{t2}, v{t3}
    v_lshl_add_u32 v{vSt[i]}, v{t2}, 8, v{vSt[i]}""")
FK += ENDS + lines(f"""s_add_u32 s{sT2}, s{sT2}, {7*256}
v_lshrrev_b32 v{t1}, 4, v{vLane}
v_cmp_gt_u32 vcc, s{sT3}, v{t1}
v_lshl_add_u32 v{t0}, v{t1}, 18, v{t0}
v_add_u32 v{t0}, s{sT2}, v{t0}
v_mov_b32 v{t3}, {OOB}
v_cndmask_b32 v{vP[0]}, v{t3}, v{t0}, vcc""")
FV = lines(f"""v_and_b32 v{t0}, 31, v{vLane}
s_lshl_b32 s{sT0}, s{sLine}, 6
v_add_u32 v{t0}, s{sT0}, v{t0}
v_and_b32 v{t4}, 32, v{vLane}""")
for ct in range(2):
    FV += lines(f"""v_add_u32 v{t2}, {32*ct}, v{t0}
    v_mul_u32_u24 v{t3}, 2341, v{t2}
    v_lshrrev_b32 v{t3}, 16, v{t3}
    v_mul_u32_u24 v{t1}, 28, v{t3}
    v_sub_u32 v{t2}, v{t2}, v{t1}
    v_add_u32 v{t2}, v{t2}, v{t4}
    v_lshlrev_b32 v{t2}, 4, v{t2}
    v_lshl_add_u32 v{t2}, v{t3}, 18, v{t2}
    v_add_u32 v{vSt[2*ct]}, 2048, v{t2}
    v_add_u32 v{vSt[2*ct+1]}, 3072, v{t2}""")
FV += ENDS + lines(f"""s_add_u32 s{sT2}, s{sT2}, {2048+28*16}
v_lshrrev_b32 v{t0}, 4, v{vLane}
v_cmp_gt_u32 vcc, s{sT3}, v{t0}
v_bfe_u32 v{t1}, v{vLane}, 2, 2
v_lshlrev_b32 v{t1}, 9, v{t1}
v_lshl_add_u32 v{t1}, v{t0}, 18, v{t1}
v_and_b32 v{t2}, 3, v{vLane}
v_lshl_add_u32 v{t1}, v{t2}, 4, v{t1}
v_add_u32 v{t1}, s{sT2}, v{t1}
v_mov_b32 v{t3}, {OOB}
v_cndmask_b32 v{vP[0]}, v{t3}, v{t1}, vcc
v_cmp_eq_u32 vcc, 0, v{t2}
v_mov_b32 v{t3}, 0x3f803f80
s_nop 0
v_cndmask_b32 v{vPd}, 0, v{t3}, vcc
v_mov_b32 v{vPd+1}, v{vPd}
v_mov_b32 v{vPd+2}, v{vPd}
v_mov_b32 v{vPd+3}, v{vPd}""")


def st16(data, addr, soff, off=0):
    return (f"buffer_store_dwordx4 {v(data,4)}, v{addr}, s[{sWS}:{sWS+3}], s{soff} offen offset:{off} sc1", "ST")


def st8(data, addr, soff):
    return (f"buffer_store_dwordx2 {v(data,2)}, v{addr}, s[{sWS}:{sWS+3}], s{soff} offen sc1", "ST")


POS = [32768, 0, 65536]


def kv_addr(blk, t, off):
    p = POS[blk % 3] + t * 4096 + off
    return (vCur, p - 65536) if POS[blk % 3] >= 65536 else (vBase, p)


def kv_next(st):
    pos = POS[st % 3]
    return f"""s_add_u32 s{sRel}, s{sRel}, {0x14000 if st == 4 else 0x10000}
    s_and_b32 s{sRel}, s{sRel}, 0x3ffff
    s_add_u32 m0, s{sMX}, {pos}
    s_add_u32 s{sD0}, s{sRel}, s{sKV}"""


def kv_piece(i):
    return f"buffer_load_dwordx4 v{vL16}, s[{sWS}:{sWS+3}], s{sD0} offen offset:{1024*i}{['', ' sc1', ' nt', ' sc1 nt'][OPT.get('kvs', 1)]} lds"


def flag_text(second=False):
    return f"""s_mov_b64 exec, 1
    buffer_store_dword v{vTag}, v{vL16}, s[{sWS}:{sWS+3}], s{sFl} offen offset:{64 if second else 0} sc1
    s_mov_b64 exec, -1"""


def poll_text(mask):
    return f"""s_mov_b64 exec, {mask if mask < 64 else hex(mask)}
    buffer_load_dword v{vFl}, v{vPl}, s[{sWS}:{sWS+3}], s{sPl} offen sc1
    s_mov_b64 exec, -1"""


def poll_issue(mask=15):
    A(poll_text(mask))


ntry = [0]


def hook_try(level=2):
    ntry[0] += 1
    A(f"""s_cmp_ge_u32 s{sDone}, {level}
    s_cbranch_scc1 L_skip{ntry[0]}
    s_call_b64 s[{sRet}:{sRet+1}], L_try""")
    A.label(f"L_skip{ntry[0]}")


def spin(level, name):
    A(f"s_mov_b32 s{sSpin}, 0x40000")
    A.label(name)
    A(f"""s_cmp_ge_u32 s{sDone}, {level}
    s_cbranch_scc1 {name}_done
    s_call_b64 s[{sRet}:{sRet+1}], L_try
    s_sub_u32 s{sSpin}, s{sSpin}, 1
    s_cbranch_scc0 {name}""")
    A.label(name + "_done")


POLL0 = f"""s_mov_b32 exec_lo, 15
    s_mov_b32 exec_hi, 15
    buffer_load_dword v{vFl}, v{vPl}, s[{sWS}:{sWS+3}], s{sPl} offen sc1
    s_mov_b64 exec, -1"""
CALL_REST = f"s_call_b64 s[{sRet}:{sRet+1}], L_rest"
pqq = Wf + 16


class Stream:
    def __init__(self, role):
        self.role = role
        self.vm, self.lg = Cnt("vmcnt", 63), Cnt("lgkmcnt", 15)
        self.slot = [c % 2 for c in range(7)]
        self.nkv = self.nq = 0

    def dma(self, p):
        A(p[0])
        self.vm.issue(p[1])

    def ds(self, text, tag):
        self.lg.room()
        A(text)
        self.lg.issue(tag)

    def xreads(self, c):
        return [(f"ds_read_b128 {v(Xr+16*c+4*st,4)}, v{vXa[st]} offset:{self.slot[c] * 16384}", f"R{c}") for st in range(4)]

    def mk(self, kv=None, q=None):
        rd, mm, need = [], [], []
        tag = f"F{kv}_{q}"
        if kv is not None:
            b = Wf + 8 * (self.nkv % 3)
            self.nkv += 1
            for ct in range(2):
                for u in range(2):
                    rd.append((f"ds_read_b64_tr_b16 {v(b+4*ct+2*u,2)}, v{vWr[ct]} offset:{kv*2048+u*512}", tag))
                ac = [acc0, acc1][ct]
                wf, xf = v(b + 4 * ct, 4), v(Xr + 4 * kv, 4)
                a_, b_ = (wf, xf) if self.role == "K" else (xf, wf)
                if OPT.get("m16"):
                    for z in range(2):
                        d = ac + 8 * (kv % 2) + 4 * z
                        xz = v(Xr + 4 * (kv - kv % 2 + z), 4)
                        mm.append(f"v_mfma_f32_16x16x32_bf16 {v(d,4)}, {wf if self.role == 'K' else xz}, {xz if self.role == 'K' else wf}, {'0' if kv < 2 else v(d,4)}")
                    continue
                mm.append(f"v_mfma_f32_32x32x16_bf16 {v(ac,16)}, {a_}, {b_}, {'0' if kv == 0 else v(ac,16)}")
            need.append(f"R{kv//4}")
        if q is not None:
            b = Wg + 4 * (self.nq % 3)
            self.nq += 1
            for u in range(2):
                rd.append((f"ds_read_b64_tr_b16 {v(b+2*u,2)}, v{vWqr} offset:{q*1024+u*256}", tag))
            if OPT.get("m16"):
                for z in range(2):
                    d = accQ + 8 * (q % 2) + 4 * z
                    mm.append(f"v_mfma_f32_16x16x32_bf16 {v(d,4)}, {v(b,4)}, {v(Xr+4*(q-q%2+z),4)}, {'0' if q < 2 else v(d,4)}")
            else:
                mm.append(f"v_mfma_f32_32x32x16_bf16 {v(accQ,16)}, {v(b,4)}, {v(Xr+4*q,4)}, {'0' if q == 0 else v(accQ,16)}")
            need.append(f"R{q//4}")
        return dict(rd=rd, mm=mm, need=need + [tag], pre=[], xr=None, dma=[], post=[])

    def run(self, steps, fill=(), nf=0):
        fill = list(fill)
        for st in steps[:2]:
            for r in st["rd"]:
                self.ds(*r)
        for i, st in enumerate(steps):
            self.lg.wait(*st["need"])
            for f in st["pre"]:
                f()
            side = []
            if st["xr"] is not None:
                self.vm.wait(f"X{st['xr']}")
                side += self.xreads(st["xr"])
            if i + 2 < len(steps):
                side += steps[i + 2]["rd"]
            n = len(st["mm"])
            for k, m in enumerate(st["mm"]):
                A(m if not (OPT.get("nom") and i % OPT["nom"]) else "s_nop 0")
                for r in side[k * len(side) // n:(k + 1) * len(side) // n]:
                    self.ds(*r)
                for p in st["dma"][k * len(st["dma"]) // n:(k + 1) * len(st["dma"]) // n]:
                    self.dma(p)
                emit(fill, nf if not OPT.get("m16") else (nf + (k & 1)) // 2)
            for f in st["post"]:
                f()
        assert not fill

    def xplan(self, steps, first, c0, c1, lead, ahead=2):
        for c in range(c0, c1):
            i = first + 4 * (c - c0) - lead
            steps[i]["xr"] = c
            if c + ahead <= 6:
                steps[i + 1]["need"].append(f"R{c}")
                xp = x_pieces(c + ahead, self.slot[c + ahead])
                steps[i + 1]["dma"] += xp[:2]
                steps[i + 2]["dma"] += xp[2:]

    def pack(self, store):
        for ct in range(2):
            ac = [acc0, acc1][ct]
            pp = Wf + 8 * ct
            for r in range(8):
                A(f"v_cvt_pk_bf16_f32 v{pp+r}, v{ac+2*r}, v{ac+2*r+1}")
                if self.role == "V" and r % 4 == 3 and store:
                    self.dma(st16(pp + r - 3, vSt[2 * ct + r // 4], sKVt))
            if self.role == "K":
                for i in range(2):
                    A(f"v_permlane16_swap_b32 v{pp+4*i}, v{pp+4*i+2}")
                    A(f"v_permlane16_swap_b32 v{pp+4*i+1}, v{pp+4*i+3}")
                    if store:
                        self.dma(st16(pp + 4 * i, vSt[2 * ct + i], sKVt))

    def xonly(self):
        for c in range(7):
            self.vm.wait(f"X{c}")
            for r in self.xreads(c):
                self.ds(*r)
            self.lg.wait(f"R{c}")
            if c + 2 <= 6:
                for p in x_pieces(c + 2):
                    self.dma(p)


def bar():
    A("s_barrier")


def arrive(off):
    return f"""s_mov_b64 exec, 1
    ds_add_u32 v{vQm}, v{vFl+1} offset:{off}
    s_mov_b64 exec, -1"""


nsp = [0]


def await4(off):
    nsp[0] += 1
    n = nsp[0]
    A(f"""s_mov_b32 s{sSpin}, 0x400000
    L_aw{n}:
    ds_read_b32 v{t5}, v{vQm} offset:{off}
    s_sub_u32 s{sSpin}, s{sSpin}, 1
    s_waitcnt lgkmcnt(0)
    s_cbranch_scc1 L_awd{n}
    v_readfirstlane_b32 s{sD0}, v{t5}
    s_cmp_lt_u32 s{sD0}, 4
    s_cbranch_scc1 L_aw{n}
    L_awd{n}:""")


def q_epilogue():
    for r in range(8):
        A(f"v_pk_mul_f32 {v(accQ+2*r,2)}, {v(accQ+2*r,2)}, s[{sCs}:{sCs+1}]")
    for r in range(8):
        A(f"v_cvt_pk_bf16_f32 v{pqq+r}, v{accQ+2*r}, v{accQ+2*r+1}")
    A(f"""v_mov_b32 v{t5}, {f2u(float(OPT["off"])) >> 16}
    v_cndmask_b32 v{pqq+7}, 0, v{pqq+7}, s[{sLo}:{sLo+1}]
    v_cndmask_b32 v{pqq+6}, v{t5}, v{pqq+6}, s[{sLo}:{sLo+1}]""")
    A(f"""ds_write_b128 v{vQw}, {v(pqq,4)}
    ds_write_b128 v{vQw}, {v(pqq+4,4)} offset:1024""")


NOST = [f"v_mov_b32 v{vSt[i]}, {OOB}" for i in range(4)]
ZO = [f"v_mov_b32 v{O[0]+r}, {hex(f2u(1.5 * 2.0 ** OPT['oz'])) if OPT.get('oz') else 0}" for r in range(32)]
NA, N1, CG = OPT["na"], OPT["n1"], OPT["cg"]
GB = OPT["gb"]
QO = min(4 * OPT["wqe"], 26 - GB, OPT["qo"])
QY = min(4 * OPT["wqe"], 4 * N1) if QO else 0


def older(role):
    S_ = Stream(role)
    S_.vm.issue("X0", 4)
    S_.vm.issue("X1", 4)
    if role == "N":
        A(flag_text())
        S_.vm.issue("FL")
        if OPT["cnt"]:
            bar()
        S_.xonly()
        if OPT["cnt"]:
            A(arrive(4))
        else:
            bar()
        if QO:
            S_.run([S_.mk(q=g) for g in range(QO)])
        return
    if OPT["yp"]:
        A("s_setprio 2")
    if OPT["o4"]:
        S_.slot = [0, 1, 2, 3, 0, 1, 0]
        for p in x_pieces(2, 2) + x_pieces(3, 3):
            S_.dma(p)
    S_.vm.wait("X0")
    for r in S_.xreads(0):
        S_.ds(*r)
    S_.lg.wait("R0")
    for p in (x_pieces(4, 0) if OPT["o4"] else x_pieces(2)):
        S_.dma(p)
    ts(3, 2)
    bar()
    ts(4, 2)
    steps = [S_.mk(kv=g, q=(g - GB - 2 if 0 <= g - GB - 2 < QO else None)) for g in range(28)]
    if QO:
        steps[GB]["pre"].append(bar)
    if OPT["o4"]:
        GBB = 4 * NA - 2
        for c, i in {1: 0, 2: min(2, GBB - 3), 3: min(4, GBB - 1), 4: OPT["r4"], 5: 16, 6: 20}.items():
            steps[i]["xr"] = c
        for c, i, r in ((5, 1, 1), (6, OPT["r4"] + 1, 4)):
            steps[i]["need"].append(f"R{r}")
            xp = x_pieces(c, S_.slot[c])
            steps[i]["dma"] += xp[:2]
            steps[i + 1]["dma"] += xp[2:]
        steps[GBB]["need"].append("R3")
    else:
        S_.xplan(steps, 4, 1, 7, OPT["xl"])
    steps[4 * NA - 2]["pre"].append(bar)
    steps[OPT["padg"]]["dma"].append(st16(vPd, vP[0], sKVt))
    if OPT["cnt"]:
        steps[24]["post"].append(lambda: S_.ds(arrive(4), "AR"))
    elif CG < 28:
        steps[CG]["need"].append("R6")
        steps[CG]["pre"].append(bar)
    for c in range(7):
        steps[4 * c]["pre"].append(lambda c=c: ts(5 + c, 2))
    fill = {"K": FK, "V": FV}[role]
    S_.run(steps, fill, -(-len(fill) // 24))
    ts(2)
    ts(12, 2)
    S_.pack(True)
    ts(1)
    if CG == 28:
        bar()
    A("s_branch L_oq")


def younger(role):
    S_ = Stream(role)
    if role == "N":
        S_.vm.issue("X0", 4)
        S_.vm.issue("X1", 4)
        A(flag_text())
        S_.vm.issue("FL")
        if OPT["cnt"]:
            bar()
        for i in range(7):
            S_.dma(wq_piece(i))
        emit(list(REST), len(REST))
        emit(list(NOST), 4)
        if OPT["cnt"]:
            S_.vm.wait("WQ")
            A(arrive(0))
            A("s_waitcnt lgkmcnt(0)")
        S_.xonly()
        if OPT["cnt"]:
            await4(0)
        else:
            bar()
        steps = [S_.mk(q=g) for g in range(28)]
        first = 0
    else:
        S_.vm.q = list(LOADER_Q)
        wq = [wq_piece(i) for i in range(OPT["wqe"] + OPT["wqf"], 7)]
        S_.vm.wait("X0")
        for r in S_.xreads(0):
            S_.ds(*r)
        ts(6, 2)
        steps = [S_.mk(kv=g, q=(g if g < QY else None)) for g in range(4 * N1)]
        for c in range(1, N1):
            steps[4 * c - 2]["xr"] = c
        k = 0
        for p in wq:
            steps[k // OPT["wqd"]]["dma"].append(p)
            k += 1
        fill = {"K": FK, "V": FV}[role]
        late = []
        for c in range(2, N1 + 2):
            if c < N1 + OPT["xe"]:
                steps[4 * (c - 2) + 1]["need"].append(f"R{c-2}")
                steps[4 * (c - 2) + 1]["dma"] = x_pieces(c) + steps[4 * (c - 2) + 1]["dma"]
            else:
                late += x_pieces(c)
        S_.run(steps, fill, -(-len(fill) // (8 * N1)))
        for p in late:
            S_.dma(p)
        ts(7, 2)
        S_.vm.wait("WQ")
        if OPT["cnt"]:
            A(arrive(0))
            await4(0)
        else:
            bar()
        ts(8, 2)
        if OPT["yp"]:
            A("s_setprio 1")
        QL = OPT["ql"]
        steps = ([S_.mk(q=g) for g in range(QY, 4 * N1 - QL)] + [S_.mk(kv=g, q=g - QL) for g in range(4 * N1, 28)]
                 + [S_.mk(q=g) for g in range(28 - QL, 28)])
        if QL:
            n0 = len(A.lines)
            S_.pack(False)
            pk_ = A.lines[n0:]
            del A.lines[n0:]
            for i in range(-QL + 1, 0):
                steps[i]["post"].append(lambda d=-i: emit(pk_, -(-len(pk_) // d)))
        if QY >= 4 * N1 - 1:
            S_.vm.wait(f"X{N1}")
            for r in S_.xreads(N1):
                S_.ds(*r)
            xp = x_pieces(N1 + 2)
            steps[0]["dma"] += xp[:2]
            steps[1]["dma"] += xp[2:]
            S_.xplan(steps, 4 * N1 - QY + 4, N1 + 1, 7, 2)
        elif OPT["x3"] == 2:
            assert N1 == 2 and WL == XS + 65536
            S_.slot = [0, 1, 0, 1, 2, 0, 1]
            f0 = 4 * N1 - QY - QL
            steps[0]["xr"] = 2
            steps[0]["dma"] += x_pieces(4, 2)
            steps[1]["xr"] = 3
            steps[1]["need"].append("R2")
            steps[1]["dma"] += x_pieces(5, 0)
            steps[2]["need"].append("R3")
            steps[2]["dma"] += x_pieces(6, 1)
            for c in (4, 5, 6):
                steps[f0 + 4 * (c - 2) - 2]["xr"] = c
        elif OPT["x3"]:
            assert N1 == 2 and WL == XS + 65536
            S_.slot = [0, 1, 0, 1, 2, 0, 1]
            for k, p in enumerate(x_pieces(4, 2)):
                steps[k // 2]["dma"].append(p)
            S_.xplan(steps, 4 * N1 - QY, N1, 7, OPT["yl"], 3)
        else:
            S_.xplan(steps, 4 * N1 - QY - QL, N1, 7, OPT["yl"])
        steps[-8]["dma"].append(st16(vPd, vP[0], sKVt))
    ts(3)
    steps[-3]["post"].append(lambda: (poll_issue(0xffff), S_.vm.issue("PL")))
    fill = [] if role == "N" else [L1 + L2, list(L2), []][OPT['lf']]
    S_.run(steps, fill, -(-len(fill) // (3 * (24 - 4 * N1) + 4 * N1)))
    ts(2)
    ts(12, 2)
    q_epilogue()
    if role != "N" and not OPT["ql"]:
        S_.pack(False)
    ts(11)
    A("""s_waitcnt lgkmcnt(0)
    s_branch L_b0""")


def loader():
    S_ = Stream("N")
    for it in range(NW0):
        S_.vm.issue(f"W{it}", 2)
    if OPT["tch"] == 2:
        A(TOUCH)
    if OPT["tch"]:
        S_.vm.issue("PF", 2)
    NW1 = max(NW0, OPT["nw1"])
    for it in range(NW0, NW1):
        for p in w_pieces(it):
            S_.dma(p)
    S_.vm.wait(f"W{NA-1}")
    ts(3, 2)
    bar()
    ts(4, 2)
    fill = [[], list(L1), L1 + L2][OPT['lf']]
    wq = [wq_piece(i) for i in range(7)]
    p1 = [p for it in range(NW1, 7) for p in w_pieces(it)] + wq[:OPT["wqe"]] + x_pieces(0) + x_pieces(1)
    p2 = wq[OPT["wqe"]:OPT["wqe"] + OPT["wqf"]]
    nb = OPT["nb"] if not OPT["o4"] else len(p1) - 8
    ps = p1 + p2
    nf = -(-len(fill) // len(ps))
    for k, p in enumerate(ps):
        if k == nb:
            S_.vm.wait("W6")
            bar()
        S_.dma(p)
        emit(fill, nf)
    if nb >= len(ps):
        S_.vm.wait("W6")
        bar()
    if QO:
        assert OPT["wqf"] == 0
        S_.vm.wait("WQ")
        bar()
    ts(5, 2)
    return S_.vm.q


PRO, REST = EARLY + MID, L1 + L2
PRO += lines(f"""s_waitcnt lgkmcnt(0)
s_mul_i32 s{stag}, s{sE}, 0x9e3779b1
s_add_u32 s{stag}, s{stag}, 0x7f4a7c15
v_mov_b32 v{vTag}, s{stag}""")
emit(PRO, len(PRO))
ts(2, 2)
A(f"""s_cmp_eq_u32 s{sKap}, 0
s_cbranch_scc1 L_old
s_cmp_eq_u32 s{sNone}, 1
s_cbranch_scc1 L_yN""")
LOADER_Q = loader()
A(f"""s_cmp_eq_u32 s{sRole}, 1
s_cbranch_scc1 L_yV""")
younger("K")
A.label("L_yV")
younger("V")
A.label("L_yN")
younger("N")
A.label("L_old")
A(f"""s_cmp_eq_u32 s{sNone}, 1
s_cbranch_scc1 L_oN
s_cmp_eq_u32 s{sRole}, 1
s_cbranch_scc1 L_oV""")
older("K")
A.label("L_oV")
older("V")
A.label("L_oN")
older("N")
A.label("L_oq")
ts(3)
ts(13, 2)
emit(list(L1), len(L1))
emit(list(NOST), 4)
S_ = Stream("N")
steps = [S_.mk(q=g) for g in range(QO, 28)]


def oflag():
    A("s_waitcnt vmcnt(0)")
    A(flag_text())
    if OPT["yp"]:
        A("s_setprio 0")
    ts(4)


if OPT["cnt"]:
    oflag()
    l2 = list(L2)
    emit(l2, OPT["l2e"])
    L2 = l2
    await4(4)
    if OPT["pe"]:
        A(POLL0)
        for _ in range(OPT["pe"] - 1):
            hook_try(1)
    await4(0)
else:
    steps[OPT["fq"]]["pre"].append(oflag)
PQ = min(OPT["pq"], len(steps) - 1)
if not (OPT["cnt"] and OPT["pe"]):
    steps[PQ]["post"].append(lambda: A(POLL0))
for g in range(PQ + OPT["tq"], len(steps), OPT["tq"]):
    steps[g]["post"].append(lambda: hook_try(1))
S_.run(steps, L2, -(-len(L2) // (len(steps) - 1)))
q_epilogue()
ts(11)
spin(1, "L_spin0")
A("""s_waitcnt vmcnt(1) lgkmcnt(0)
s_branch L_b0""")
A.label("L_try")
A(f"""s_waitcnt vmcnt(0)
v_cmp_ne_u32 vcc, s{stag}, v{vFl}
s_or_b32 s{sD1}, vcc_lo, vcc_hi
s_and_b32 s{sD1}, s{sD1}, 15
s_cbranch_scc0 L_try0""")
A(POLL0)
A(f"s_setpc_b64 s[{sRet}:{sRet+1}]")
A.label("L_try0")
ts(5)
A(f"""s_add_u32 m0, s{sMX}, {POS[0]}
s_add_u32 s{sD0}, s{sRel}, s{sKV}""")
for i in range(4):
    A(kv_piece(i))
A(f"""s_add_u32 s{sD0}, s{sRel}, 0x8000
s_and_b32 s{sD0}, s{sD0}, 0x3ffff
s_add_u32 m0, s{sMX}, {POS[0]+16384}
s_add_u32 s{sD0}, s{sD0}, s{sKV}""")
for i in range(4):
    A(kv_piece(i))
A(f"s_mov_b32 s{sDone}, 1")
poll_issue(0xffff)
A(f"s_setpc_b64 s[{sRet}:{sRet+1}]")

A.label("L_b0")
for _ in range(OPT.get("idle", 0)):
    A("s_sleep 36")
A("s_barrier")
ts(12)
ts(1, 4)

A(f"""ds_read_b128 {v(Q[0],4)}, v{vQr} offset:2048
ds_read2st64_b64 {v(Kf[0],4)}, v{vBk} offset0:64 offset1:65
ds_read_b128 {v(Q[0]+4,4)}, v{vQr} offset:3072
ds_read2st64_b64 {v(Kf[0]+4,4)}, v{vBk} offset0:66 offset1:67
{chr(10).join(ZO[:OPT["z0"]])}
ds_read_b128 {v(Q[1],4)}, v{vOs2}
ds_read_b128 {v(Q[1]+4,4)}, v{vOs2} offset:1024
s_waitcnt lgkmcnt(4)
v_mfma_f32_32x32x16_bf16 {v(S[0],16)}, {v(Kf[0],4)}, {v(Q[0],4)}, {C0}
s_waitcnt lgkmcnt(2)
v_mfma_f32_32x32x16_bf16 {v(S[0],16)}, {v(Kf[0]+4,4)}, {v(Q[0]+4,4)}, {v(S[0],16)}
ds_read2st64_b64 {v(Kf[1],4)}, v{vBk} offset0:72 offset1:73
ds_read2st64_b64 {v(Kf[1]+4,4)}, v{vBk} offset0:74 offset1:75
ds_read_b128 {v(Vf[0],4)}, v{vBase} offset:34816
ds_read_b128 {v(Vf[0]+4,4)}, v{vBase} offset:35840
{chr(10).join(ZO[OPT["z0"]:])}
s_waitcnt lgkmcnt(4)""")

def wo_piece(r):
    m = f"s_mov_b32 m0, s{sWm13}" if r == 13 else f"s_add_u32 m0, s{sWm}, {WOB + 8*r*896}"
    return f"""{m}
    s_add_u32 s{sD1}, s{sWn}, {8*r*3584}
    buffer_load_dwordx4 v{vWod}, s[{sWO}:{sWO+3}], s{sD1} offen lds"""


EXTRA = {}
AFTER = {}


def extra(w_, sl, text):
    EXTRA.setdefault((w_, sl), []).append(text)


def window(W):
    blk, u = divmod(W, 8)
    un, up = u + 1, u - 1
    tn, qn = un // 2, un % 2
    tp, qp = up // 2, up % 2
    Sc, Sn, Sp = S[u % 4], S[un % 4], S[up % 4]
    Kn, Vp = Kf[tn % 2], Vf[tp % 2]
    if blk == 7 and OPT["reo"]:
        UN = {5: (3, 0), 6: (2, 1)}
        if un in UN:
            Kn, qn = Kf[UN[un][0] % 2], UN[un][1]
        if up in UN:
            Vp, qp = Vf[UN[up][0] % 2], UN[up][1]
        if u in (4, 6):
            A("s_waitcnt lgkmcnt(2)" if u == 4 else "s_waitcnt lgkmcnt(0)")
    h0, h1 = (4, 0) if OPT["hf"] else (0, 4)
    m = [f"v_mfma_f32_32x32x16_bf16 {v(Sn,16)}, {v(Kn+h0,4)}, {v(Q[qn]+h0,4)}, {C0}",
         f"v_mfma_f32_32x32x16_bf16 {v(Sn,16)}, {v(Kn+h1,4)}, {v(Q[qn]+h1,4)}, {v(Sn,16)}",
         f"v_smfmac_f32_32x32x32_bf16 {v(O[qp],16)}, {v(Vp,4)}, {v(Sp,8)}, v{vIdx}",
         f"v_smfmac_f32_32x32x32_bf16 {v(O[qp],16)}, {v(Vp+4,4)}, {v(Sp+8,8)}, v{vIdx}"]
    if W == 0:
        m[2] = m[3] = None
    if W == 63:
        m = [m[2], None, m[3], None]
    if W == 62 and OPT["reo"] == 2:
        m = [m[0], m[2], m[1], m[3]]
    mem = [[], [], [], []]
    pre = [[], [], [], []]

    def rd(dst, T, off):
        if off < 2048 and not OPT.get('kb128'):
            o = (POS[(blk + T // 4) % 3] + (T % 4) * 4096 + off) // 512
            if OPT.get("k64"):
                a, oo = (vBk, o * 512) if o < 128 else (vTag2, o * 512 - 65536)
                return f"ds_read_b64 {v(dst,2)}, v{a} offset:{oo}\nds_read_b64 {v(dst+2,2)}, v{a} offset:{oo+512}"
            return f"ds_read2st64_b64 {v(dst,4)}, v{vBk} offset0:{o} offset1:{o+1}"
        a, o = kv_addr(blk + T // 4, T % 4, off)
        return f"ds_read_b128 {v(dst,4)}, v{a} offset:{o}"
    if u % 2 == 1:
        if not (u == 5 and (blk > 0 or OPT["b0"])):
            A("s_waitcnt lgkmcnt(0)")
        tt = tn
        Kd, Vd = Kf[(tt + 1) % 2], Vf[tt % 2]
        rk = [rd(Kd, tt + 1, 0), rd(Kd + 4, tt + 1, 1024)]
        rv = [rd(Vd, tt, 2048), rd(Vd + 4, tt, 3072)]
        if W == 61 or (W == 5 and not OPT['b0']):
            mem[0 if W == 61 else 2].append(rv[0])
            mem[1 if W == 61 else 3].append(rv[1])
        elif W == 63:
            pass
        elif W == 7 and not OPT['b0']:
            A(rd(Kn, 4, 0))
            A(rd(Kn + 4, 4, 1024))
            m = [m[2], m[3], m[0], m[1]]
            mem[0] += [rk[0], rk[1]]
            mem[1] += [rv[0], rv[1]]
            pre[2].append("s_waitcnt lgkmcnt(4)")
        else:
            RS_ = [[0, 1, 2, 3], [2, 2, 3, 3], [0, 0, 1, 1], [2, 3, 0, 1]][OPT.get("rsl", 0)]
            order = sorted(range(4), key=lambda k: RS_[k])
            for k in range(4):
                mem[RS_[k]].append((rk + rv)[k])
    for q in range(4):
        for x in pre[q]:
            A(x)
        if m[q]:
            A(m[q])
        for x in mem[q] + (EXTRA.get((W, q), []) if not (OPT.get("nodma") and 23 <= W < 53) else []):
            A(x)
        for e in range(4):
            A(f"v_exp_f32 v{Sc+4*q+e}, v{Sc+4*q+e}")
    for hk in AFTER.get(W, []):
        hk()


def mk_bar(n):
    def f():
        A(f"""s_waitcnt vmcnt({n}) lgkmcnt(0)""")
        if not OPT.get("nobar"):
            A("s_barrier")
    return f


def check_text(reg, mask, name):
    return f"""v_cmp_ne_u32 vcc, s{stag}, v{reg}
    s_and_b32 s{sD1}, vcc_lo, {mask}
    s_cbranch_scc1 {name}
    {name}_done:"""


PUB = [st16(Wf + 4 * i, vSt[i], sKVt)[0] for i in range(4)]
if OPT["b0"]:
    extra(0, 2, "s_waitcnt vmcnt(0)\n" + check_text(vFl, "0xffff", "L_polll"))
    extra(0, 3, kv_next(1) + "\n" + kv_piece(0))
    for i in range(1, 4):
        extra(1, i - 1, kv_piece(i))
    for i in range(4):
        extra(2, i, PUB[i])
    AFTER.setdefault(4, []).append(mk_bar(4))
    AFTER[4].append(lambda: ts(6))
    extra(6, 0, "s_waitcnt vmcnt(0)\n" + flag_text())
    extra(6, 1, kv_next(2) + "\n" + kv_piece(0))
    extra(6, 3, kv_piece(1))
    extra(8, 0, kv_piece(2))
    extra(8, 2, kv_piece(3))
else:
    for i in range(4):
        extra(i // 2, [1, 3][i % 2], PUB[i])
    extra(2, 0, "s_waitcnt vmcnt(4)\n" + check_text(vFl, "0xffff", "L_polll"))
    extra(2, 1, kv_next(1) + "\n" + kv_piece(0))
    extra(2, 3, kv_piece(1))
    extra(3, 1, kv_piece(2))
    extra(3, 3, kv_piece(3))
    AFTER.setdefault(6, []).append(lambda: (A("s_waitcnt vmcnt(0)\ns_barrier"), ts(6)))
    extra(7, 2, kv_next(2) + "\n" + kv_piece(0))
    extra(7, 3, kv_piece(1))
    extra(8, 1, kv_piece(2))
    extra(8, 3, kv_piece(3))
    extra(8, 0, flag_text())
extra(9, 1, "\n".join(f"v_mov_b32 v{vOnes+r}, -1" for r in range(4)))
extra(40, 1, f"""v_lshrrev_b32 v{t0}, 2, v{vL16}
v_and_b32 v{t0}, 60, v{t0}
v_add_u32 v{t0}, {MISC}, v{t0}
v_mov_b32 v{t1}, 0
ds_write_b32 v{t0}, v{t1}""")
extra(10, 0, st16(vOnes, vL16, sOt)[0])
extra(10, 2, st16(vOnes, vL16, sOt, 1024)[0])
extra(30, 1, flag_text(True))
extra(17, 1, poll_text(0x7fff0000).replace("0x7fff0000", "0xffff0000"))


extra(21, 2, check_text(vFl, "0xffff0000", "L_pollh"))
if OPT.get("tou"):
    e0, e1 = ("s_mov_b64 exec, 1\n", "\ns_mov_b64 exec, -1") if OPT["tou"] == 2 else ("", "")
    extra(36, 1, f"{e0}buffer_load_dword v{t2}, v{vOs}, s[{sOUT}:{sOUT+3}], s{sOut} offen{e1}")
    extra(28, 1, f"s_add_u32 s{sT1}, s{sOut}, {8*1792}\n{e0}buffer_load_dword v{t2}, v{vOs}, s[{sOUT}:{sOUT+3}], s{sT1} offen{e1}")
wo_early = list(range(5, 13))
for i in range(1, 8):
    nwo = 2 if i == 1 else 0
    if i >= 2 and wo_early:
        for sl in (0, 2):
            extra(8 * i + 2, sl, wo_piece(wo_early.pop(0)))
            nwo += 1
    if OPT.get("tou") and i in (3, 4):
        nwo += 1
    AFTER.setdefault(8 * i + 4, []).append(mk_bar(nwo))
    if i <= 5:
        DS_ = [[(6, 0), (6, 2), (8, 0), (8, 2)], [(6, 2), (6, 3), (8, 2), (8, 3)], [(6, 0), (6, 1), (8, 0), (8, 1)],
               [(6, 1), (6, 3), (8, 1), (8, 3)], [(6, 0), (6, 1), (6, 2), (6, 3)]][OPT.get("dsl", 0)]
        extra(8 * i + DS_[0][0], DS_[0][1], kv_next(i + 2) + "\n" + kv_piece(0))
        for k in range(1, 4):
            extra(8 * i + DS_[k][0], DS_[k][1], kv_piece(k))
assert not wo_early
for k, r in enumerate([0, 1, 2, 3, 4, 13]):
    extra([54, 54, 55, 56, 56, 57][k], [0, 2, 1, 0, 2, 1][k], wo_piece(r))
extra(50, 0, f"buffer_load_dword v{vQm}, v{vPc}, s[{sWS}:{sWS+3}], s{sPc} offen sc1")
extra(58, 0, check_text(vQm, "0xffff", "L_pollc"))
extra(58, 2, f"""s_or_b32 s{sT0}, s{sh}, s{sj}
    s_or_b32 s{sT0}, s{sT0}, s{sw}
    s_cbranch_scc0 L_epoch
    L_epd:""")
sTk, sAv = sTodo, sRem


def oload(l):
    return f"""s_add_u32 s{sT0}, s{sOin}, {l*4096}
    buffer_load_dwordx4 {v(Of+4*l,4)}, v{vOa}, s[{sWS}:{sWS+3}], s{sT0} offen sc1"""


def cload(l):
    return f"""s_bitcmp1_b32 s{sAv}, {l}
    s_cselect_b64 exec, -1, 0
    {oload(l)}"""


POLL = f"""s_andn2_b32 exec_lo, 0xff, s{sTk}
    s_mov_b32 exec_hi, 0
    buffer_load_dword v{vQm}, v{vLp}, s[{sWS}:{sWS+3}], s{sOin} offen sc1
    s_mov_b64 exec, -1"""
SENDL = [f"ds_write_b128 v{vQw}, {v(O[0]+4*i,4)} offset:{1024*i}" for i in range(4)] + [f"ds_write_b32 v{vOs2}, v{t4}"]
SEND = "\n".join(SENDL)
if OPT["reo"]:
    extra(63, 2, SEND)
extra(44, 1, f"""s_lshl_b32 s{sT0}, s{sKap}, 12
    v_add_u32 v{vQw}, s{sT0}, v{vRw}
    v_xor_b32 v{vQr}, 0x1000, v{vQw}
    s_mul_i32 s{sT0}, s{sKap}, 48
    v_add_u32 v{vOs2}, s{sT0}, v{vMf}
    v_xor_b32 v{vPl}, 48, v{vOs2}
    v_mov_b32 v{t4}, 1""")
for (ww, sl, pr) in [[(61, 0, 3), (62, 0, 2), (63, 0, 1), (63, 2, 0)], [(61, 0, 3), (62, 2, 2), (63, 2, 1)],
                     [(61, 0, 1), (63, 0, 0)]][OPT["lseg"]]:
    extra(ww, sl, f"s_setprio {pr}")
PSEG = {1: [(0, 0, 3), (3, 0, 2), (6, 0, 1), (7, 2, 0)], 2: [(0, 0, 3), (4, 0, 2), (6, 2, 1), (7, 3, 0)],
        3: [(0, 0, 1), (7, 2, 0)], 4: [(0, 0, 3), (2, 0, 2), (4, 0, 1), (6, 0, 0)], 5: [(0, 0, 1), (7, 0, 0)],
        6: [(0, 0, 2), (5, 0, 1), (7, 2, 0)]}
if OPT.get("pseg"):
    for (ww, sl, pr) in ([(0, 0, 3), (2, 0, 2), (3, 2, 1), (4, 3, 0)] if OPT["b0"] else
                         [(0, 0, 3), (3, 0, 2), (5, 2, 1), (6, 3, 0), (7, 0, 3), (9, 0, 2), (11, 2, 1), (12, 3, 0)]):
        EXTRA.setdefault((ww, sl), []).insert(0, f"s_setprio {pr}")
    for i in range(0 if OPT["b0"] else 1, 7):
        for (dw, sl, pr) in PSEG[OPT["pseg"]]:
            EXTRA.setdefault((8 * i + 5 + dw, sl), []).insert(0, f"s_setprio {pr}")
if OPT.get("prio"):
    A(f"""s_cmp_eq_u32 s{sKap}, {OPT["prio"] & 1}
    s_cbranch_scc0 L_np
    s_setprio 1""")
    A.label("L_np")
for W in range(64):
    TW = [0, 1, 3, 5, 7, 13, 21, 29, 37, 45, 53, 61] if not OPT.get("tw") else [16, 56]
    if OPT.get("al") and W % OPT["al"] == 0:
        A(".p2align 3")
    if W in TW:
        ts(2 + TW.index(W), 4)
    elif OPT.get("jit") and W % 2 == 0 or OPT.get("jit") and W > 56:
        ts(15, 9)
    window(W)
A(f"""s_nop 0
v_smfmac_f32_32x32x32_bf16 {v(O[1],16)}, {v(Vf[1],4)}, {v(S[3],8)}, v{vIdx}
v_smfmac_f32_32x32x32_bf16 {v(O[1],16)}, {v(Vf[1]+4,4)}, {v(S[3]+8,8)}, v{vIdx}""")
ts(7)
ts(14, 4)

R = S[0]
if not OPT["reo"]:
    A(SEND)
A(f"s_mov_b32 s{sSpin}, 0x400000")
A.label("L_mwait")
A(f"ds_read_b32 v{t2}, v{vPl}")
for i in (3, 0, 1, 2):
    A(f"ds_read_b128 {v(R+4*i,4)}, v{vQr} offset:{1024*i}")
A(f"""s_sub_u32 s{sSpin}, s{sSpin}, 1
s_cbranch_scc1 L_mgo
s_waitcnt lgkmcnt(4)
v_readfirstlane_b32 s{sT0}, v{t2}
s_cmp_eq_u32 s{sT0}, 0
s_cbranch_scc1 L_mspin""")
A.label("L_mgo")
Ob = O[1]
rc = vFl
A(f"""s_waitcnt lgkmcnt(3)
v_pk_add_f32 {v(Ob+12,2)}, {v(Ob+12,2)}, {v(R+12,2)}
v_pk_add_f32 {v(Ob+14,2)}, {v(Ob+14,2)}, {v(R+14,2)}""")
A.label("L_norm")
A(f"""v_mov_b32 v{t0}, v{Ob+12}
v_mov_b32 v{rc}, v{Ob+12}
s_waitcnt lgkmcnt(0)
v_pk_add_f32 {v(Ob,2)}, {v(Ob,2)}, {v(R,2)}
v_permlane32_swap_b32 v{t0}, v{rc}
v_pk_add_f32 {v(Ob+2,2)}, {v(Ob+2,2)}, {v(R+2,2)}
v_subrev_u32 v{t0}, {hex(L_LO)}, v{rc}
v_rcp_f32 v{rc}, v{rc}
v_cmp_lt_u32 vcc, s{sChk}, v{t0}""")
for r in range(4, 12, 2):
    A(f"v_pk_add_f32 {v(Ob+r,2)}, {v(Ob+r,2)}, {v(R+r,2)}")
A("""s_cmp_lg_u64 vcc, 0
s_cbranch_scc1 L_slow""")
for f in range(2):
    for r in range(8 * f, 8 * f + 8, 2):
        A(f"v_pk_mul_f32 {v(Ob+r,2)}, {v(Ob+r,2)}, {v(rc,2)} op_sel_hi:[1,0]")
    for r in range(4 * f, 4 * f + 4):
        A(f"v_cvt_pk_bf16_f32 v{pk+r}, v{Ob+2*r}, v{Ob+2*r+1}")
    if f:
        for r in (6, 7):
            A(f"v_cndmask_b32 v{pk+r}, 0, v{pk+r}, s[{sLo}:{sLo+1}]")
    for r in range(4 * f, 4 * f + 4):
        A(f"v_min_u32 v{pk+r}, -2, v{pk+r}")
    A(f"buffer_store_dwordx4 {v(pk+4*f,4)}, v{vL16}, s[{sWS}:{sWS+3}], s{sOt} offen offset:{1024*f} sc1")
A("s_setprio 0")
ts(8)

TILES = list(range(O[0], Of, 4)) + [DEAD, DEAD + 4]
assert len(TILES) >= 42
rx = S[2]
pk2, rb = Q[0], Q[1]
sOk = sDone
OOL = []


def wtile(l, ct):
    return TILES[7 * (l % 6) + ct]


def wtext(l, ct):
    a0, a1, off = (vW0, vW1, l * 12544) if l < 6 else (t1, t2, 0) if l == 6 else (t3, t4, 0)
    d = wtile(l, ct)
    return f"""ds_read_b64_tr_b16 {v(d,2)}, v{a0} offset:{off+32*ct}
    ds_read_b64_tr_b16 {v(d+2,2)}, v{a1} offset:{off+32*ct}"""


A.label("L_p3e")
if OPT["ts"] == 5:
    A("s_mov_b32 s11, 1")
tsd(0)
A(f"s_mov_b32 s{sSpin}, 0x40000")
sSl = 14
vXw = [vTw, vLane, vIdx, t5]
for l in range(8):
    A(f"s_add_u32 s{sSl+l}, s{sOin}, {4096*l}")
A.label("L_p3r")
A(f"""s_mov_b32 s{sTk}, 0
v_add_u32 v{t1}, {6*12544}, v{vW0}
v_add_u32 v{t2}, {6*12544}, v{vW1}
v_add_u32 v{t3}, s{sSp}, v{vW0}
v_add_u32 v{t4}, s{sSp}, v{vW1}
s_waitcnt lgkmcnt(0)""")
for i in range(42):
    if i >= 6 and i % 3 == 0:
        A("s_waitcnt lgkmcnt(8)")
    if i == OPT["pp"]:
        A(POLL)
    A(wtext(i // 7, i % 7))
tsd(1)
A("s_branch L_w1")
A.label("L_w0")
if OPT.get("slp"):
    A(f"s_sleep {OPT['slp']}")
A(POLL)
A.label("L_w1")
A(f"""s_sub_u32 s{sSpin}, s{sSpin}, 1
s_cselect_b32 s{sT0}, 0xff, 0
s_cselect_b32 s{sSpin}, 0, s{sSpin}
s_waitcnt vmcnt(0)
v_cmp_ne_u32 vcc, -1, v{vQm}
s_or_b32 s{sTk}, vcc_lo, s{sT0}
s_andn2_b32 s{sT0}, 0xff, s{sTk}
s_cbranch_scc1 L_w0""")
tsd(9)
for l in range(8):
    A(f"buffer_load_dwordx4 {v(Of+4*l,4)}, v{vOa}, s[{sWS}:{sWS+3}], s{sSl+l} offen sc1")
tsd(7)
A(f"""v_mov_b32 v{vFl}, 1
s_add_u32 s{sT1}, s{sOut}, {8*1792}""")
for ct in range(1, 4):
    A(f"v_xor_b32 v{vXw[ct]}, {32*ct}, v{vTw}")
ORD = [0, 2, 1, 3, 4, 5, 6, 7]
for k, l in enumerate(ORD):
    b0 = Of + 4 * l
    A(f"s_waitcnt vmcnt({7-max(ORD[:k+1])})" + (" lgkmcnt(0)" if l in (0, 1, 6) else ""))
    if k == 0:
        tsd(2)
    for ct in range(7):
        A(f"v_mfma_f32_16x16x32_bf16 {v(acc+4*ct,4)}, {v(wtile(l,ct),4)}, {v(b0,4)}, {'0' if k == 0 else v(acc+4*ct,4)}")
        if l < 2:
            A(wtext(6 + l, ct))
        if ct == 1:
            A(f"v_max3_u32 v{t0}, v{b0}, v{b0+1}, {'0' if k == 0 else f'v{t0}'}")
        if ct == 3:
            A(f"v_max3_u32 v{t0}, v{b0+2}, v{b0+3}, v{t0}")
        if ct == 5 and k == 7:
            A(f"v_cmp_eq_u32 vcc, -1, v{t0}")
A(f"""s_cmp_lg_u64 vcc, 0
s_cbranch_scc1 L_redo""")
A.label("L_good")
OOL.append(f"""L_redo:
s_sub_u32 s{sSpin}, s{sSpin}, 1
s_cbranch_scc0 L_p3r
s_branch L_good""")
tsd(3)
ts(9)
tsa(8)


XS_ = [f"""L_xsk{kap}:
    s_sleep {OPT.get("xs", 1)}
    ds_read_b32 v{t0}, v{vMf} offset:{32-16*kap}
    s_sub_u32 s{sSpin}, s{sSpin}, 1
    s_waitcnt lgkmcnt(0)
    s_cbranch_scc1 L_yk{kap}
    v_readfirstlane_b32 s{sT0}, v{t0}
    s_cmp_eq_u32 s{sT0}, 0
    s_cbranch_scc1 L_xsk{kap}
    s_branch L_xk{kap}""" for kap in (1, 0)]


def p3(kap):
    n = f"k{kap}"
    keep = [0, 1, 2, 3] if kap == 0 else [4, 5, 6]
    send = [4, 5, 6] if kap == 0 else [0, 1, 2, 3]
    wa_, ra_ = (vSn, vRw) if kap == 0 else (vRw, vSn)
    A(f"s_mov_b32 s{sSpin}, 0x400000")
    for i, ct in enumerate(send):
        A(f"ds_write_b128 v{wa_}, {v(acc+4*ct,4)} offset:{1024*i}")
    A(f"ds_write_b32 v{vMf}, v{vFl} offset:{16+16*kap}")
    A.label(f"L_x{n}")
    A(f"ds_read_b32 v{t0}, v{vMf} offset:{32-16*kap}")
    for i in range(len(keep)):
        A(f"ds_read_b128 {v(rx+4*i,4)}, v{ra_} offset:{1024*i}")
    A(f"""s_sub_u32 s{sSpin}, s{sSpin}, 1
    s_cbranch_scc1 L_y{n}
    s_waitcnt lgkmcnt({len(keep)})
    v_readfirstlane_b32 s{sT0}, v{t0}
    s_cmp_eq_u32 s{sT0}, 0
    s_cbranch_scc1 L_xs{n}""")
    A.label(f"L_y{n}")
    tsd(4)
    tsa(9)
    wa = vXw
    for i, ct in enumerate(keep):
        A(f"""s_waitcnt lgkmcnt({len(keep)-1})
        v_pk_add_f32 {v(acc+4*ct,2)}, {v(acc+4*ct,2)}, {v(rx+4*i,2)}
        v_pk_add_f32 {v(acc+4*ct+2,2)}, {v(acc+4*ct+2,2)}, {v(rx+4*i+2,2)}
        v_cvt_pk_bf16_f32 v{pk2+2*i}, v{acc+4*ct}, v{acc+4*ct+1}
        v_cvt_pk_bf16_f32 v{pk2+2*i+1}, v{acc+4*ct+2}, v{acc+4*ct+3}
        ds_write_b64 v{wa[i]}, {v(pk2+2*i,2)}""")
    os_ = vOs
    OSC = ["", " sc1", " nt", " sc0 sc1", " sc1 nt"][OPT["osc0"] if kap == 0 else OPT["osc"]]
    A(f"""ds_read_b128 {v(rb,4)}, v{vTr}
    ds_read_b128 {v(rb+4,4)}, v{vTr} offset:1024
    s_waitcnt lgkmcnt(1)
    buffer_store_dwordx4 {v(rb,4)}, v{os_}, s[{sOUT}:{sOUT+3}], s{sOut} offen{OSC}
    s_waitcnt lgkmcnt(0)
    buffer_store_dwordx4 {v(rb+4,4)}, v{os_}, s[{sOUT}:{sOUT+3}], s{sT1} offen{OSC}""")


assert Vf[1] == Kf[0] + 24 and O[1] == O[0] + 16
A(f"""s_cmp_eq_u32 s{sKap}, 0
s_cbranch_scc1 L_x0""")
p3(1)
A("s_branch L_noep" if OPT["ts"] or OPT.get("padto") else "s_endpgm")
for x in XS_:
    A(x)
A(f"""L_mspin:
ds_read_b32 v{t2}, v{vPl}
s_sub_u32 s{sSpin}, s{sSpin}, 1
s_waitcnt lgkmcnt(0)
s_cbranch_scc1 L_mgo
v_readfirstlane_b32 s{sT0}, v{t2}
s_cmp_eq_u32 s{sT0}, 0
s_cbranch_scc1 L_mspin
s_branch L_mwait""")
A.label("L_x0")
p3(0)
if OPT.get("wb"):
    A(f"""s_cmp_lg_u32 s{sw}, 0
    s_cbranch_scc1 L_noep
    s_waitcnt vmcnt(0)
    buffer_wbl2 sc1""")
A.label("L_noep")
if OPT.get("padto"):
    A.label("L_pad")
    A(f"""s_sleep 4
    s_memrealtime s[{sRet}:{sRet+1}]
    s_waitcnt lgkmcnt(0)
    s_sub_u32 s{sT0}, s{sRet}, s{sTS}
    s_cmp_lt_u32 s{sT0}, {OPT["padto"]}
    s_cbranch_scc1 L_pad""")
tsd(5)
tsa(10)
if OPT["ts"] == 6:
    A("s_waitcnt lgkmcnt(0)")
    for i, r in enumerate(ASR):
        A(f"v_writelane_b32 v{vTS}, s{r}, {i+1}")
    A(f"""s_sub_u32 s{sRem}, 0x7fffffff, s{sRem}
    v_writelane_b32 v{vTS}, s{sRem}, 13
    v_writelane_b32 v{vTS}, s19, 14""")
if OPT["ts"]:
    A("s_waitcnt vmcnt(0)")
    ts(10)
    tsd(6)
    ts(12, 6)
    A(f"""s_lshl_b32 s{sT0}, s2, 3
    s_add_u32 s{sT0}, s{sT0}, s{sw}
    s_lshl_b32 s{sT0}, s{sT0}, {8 if OPT["ts"] == 5 else 6}
    s_add_u32 s{sT0}, s{sT0}, {TS_OFF}
    s_getreg_b32 s{sT1}, hwreg(HW_REG_XCC_ID)
    {"s_nop 0" if OPT["ts"] == 5 else f"v_writelane_b32 v{vTS}, s{sT1}, 15"}
    v_lshrrev_b32 v{t0}, 2, v{vL16}
    s_mov_b64 exec, {-1 if OPT["ts"] == 5 else "0xffff"}
    buffer_store_dword v{vTS}, v{t0}, s[{sWS}:{sWS+3}], s{sT0} offen""")
    if OPT.get("dbg"):
        A(f"""v_readlane_b32 s{sT0}, v{vTS}, 0
        s_not_b32 s{sT0}, s{sT0}
        v_writelane_b32 v{vTS}, s{sT0}, 15
        s_mov_b32 s{sX}, s22
        s_mov_b32 s{sX+1}, s23
        s_mov_b32 s{sX+2}, 256
        buffer_atomic_umax v{vTS}, v{t0}, s[{sX}:{sX+3}], 0 offen""")
A.label("L_end")
A("s_endpgm")

for x in OOL:
    A(x)
A.label("L_epoch")
A(f"""s_add_u32 s{sE}, s{sE}, 1
s_lshl_b32 s{sT0}, s{sb}, 8
s_add_u32 s{sT0}, s{sT0}, {EPOCH_OFF}
v_mov_b32 v{t1}, s{sE}
s_mov_b64 exec, 1
buffer_store_dword v{t1}, v{vL16}, s[{sWS}:{sWS+3}], s{sT0} offen sc1
s_mov_b64 exec, -1
s_branch L_epd""")

for name, load, reg, mask in (
        ("L_pollc", f"buffer_load_dword v{vQm}, v{vPc}, s[{sWS}:{sWS+3}], s{sPc} offen sc1", vQm, "0xffff"),
        ("L_polll", poll_text(0xffff), vFl, "0xffff"),
        ("L_pollh", poll_text(0x7fff0000).replace('0x7fff0000', '0xffff0000'), vFl, "0xffff0000")):
    A(f"""{name}:
    s_mov_b32 s{sSpin}, 0x40000
    {name}1:
    {load}
    s_sub_u32 s{sSpin}, s{sSpin}, 1
    s_cbranch_scc1 {name}_done
    s_waitcnt vmcnt(0)
    v_cmp_ne_u32 vcc, s{stag}, v{reg}
    s_and_b32 s{sD1}, vcc_lo, {mask}
    s_cbranch_scc1 {name}1
    s_branch {name}_done""")

A.label("L_slow")
Sx, vMn, vAl, vM = S[2], t2, t3, t4
A(f"""s_mov_b32 s{sChk}, -1
v_lshlrev_b32 v{vBk}, 3, v{vLane}
v_mov_b32 v{vM}, 0xff7fffff
s_mov_b32 s{sT0}, s{sKV}
s_mov_b32 s{sI}, 0""")
for r in range(16):
    A(f"v_mov_b32 v{Ob+r}, 0")
    A(f"v_mov_b32 v{R+r}, 0")
A.label("L_slow_t")
for i in range(4):
    A(f"buffer_load_dwordx2 {v(Kf[0]+2*i,2)}, v{vBk}, s[{sWS}:{sWS+3}], s{sT0} offen offset:{512*i} sc1")
A(f"""buffer_load_dwordx4 {v(Vf[0],4)}, v{vL16}, s[{sWS}:{sWS+3}], s{sT0} offen offset:2048 sc1
buffer_load_dwordx4 {v(Vf[0]+4,4)}, v{vL16}, s[{sWS}:{sWS+3}], s{sT0} offen offset:3072 sc1
s_add_u32 s{sT0}, s{sT0}, 4096
s_waitcnt vmcnt(0)
v_mfma_f32_32x32x16_bf16 {v(Sx,16)}, {v(Kf[0],4)}, {v(Q[1],4)}, 0
v_mfma_f32_32x32x16_bf16 {v(Sx,16)}, {v(Kf[0]+4,4)}, {v(Q[1]+4,4)}, {v(Sx,16)}
v_max3_f32 v{t0}, v{Sx}, v{Sx+1}, v{vM}""")
for r in range(2, 16, 2):
    A(f"v_max3_f32 v{t0}, v{Sx+r}, v{Sx+r+1}, v{t0}")
A(f"""v_mov_b32 v{t1}, v{t0}
v_permlane32_swap_b32 v{t0}, v{t1}
v_max_f32 v{vMn}, v{t0}, v{t1}
v_sub_f32 v{vAl}, v{vM}, v{vMn}
v_exp_f32 v{vAl}, v{vAl}
v_mov_b32 v{vM}, v{vMn}""")
for r in range(16):
    A(f"v_sub_f32 v{Sx+r}, v{Sx+r}, v{vMn}")
for r in range(16):
    A(f"v_exp_f32 v{Sx+r}, v{Sx+r}")
for r in range(16):
    A(f"v_mul_f32 v{Ob+r}, v{vAl}, v{Ob+r}")
A(f"""v_smfmac_f32_32x32x32_bf16 {v(Ob,16)}, {v(Vf[0],4)}, {v(Sx,8)}, v{vIdx}
v_smfmac_f32_32x32x32_bf16 {v(Ob,16)}, {v(Vf[0]+4,4)}, {v(Sx+8,8)}, v{vIdx}
s_add_u32 s{sI}, s{sI}, 1
s_cmp_lt_u32 s{sI}, 64
s_cbranch_scc1 L_slow_t
s_nop 11
s_branch L_norm""")

n = A.fix_hazards(verbose=bool(OPT.get("v", 0)))
NV = -(-V.hi // 8) * 8
hdr = open("cdna_kernels/" + NAME + ".s.ref").read().split("; Override launch")[0]
out = hdr + f"""; One fused launch: QKV projection -> softmax attention -> output projection.
; Workgroup = (branch b, head h, 256-token block j), 8 waves; all 256 workgroups are co-resident (one per CU).
;  P1  every workgroup projects Q of its head and one 64-column line of K or V for its tokens and publishes
;      K/V as MFMA fragments in d_ws (write-through stores, then a flag that carries this launch's tag).
;  P2  attention, 64 queries x half of the keys per wave: S^T = K Q^T (+ a constant), P = exp2(S^T), O^T += V^T P
;      with the 2:4 sparse MFMA, whose index picks the bf16 high halves of the fp32 P registers; a ones row in
;      V^T gives the row sums.  Softmax guard: the constant stands in for the row max; it is exact as long as
;      every row sum stays within 2^+-60 of it, which is checked at run time, and otherwise the tile is redone
;      at L_slow by an online softmax with the true running max.
;  P3  O tiles are exchanged through d_ws (pre-filled with a pattern the data cannot take) and multiplied by Wo.
; The tag is derived from a word in d_ws that the launch advances, so stale flags never match.
; Every wait on another workgroup is bounded.  Written by a generator script (gen.py).
; @launch grid=(256,1,1) block=(512,1,1) lds={LDS_BYTES}
.amdgcn_target "amdgcn-amd-amdhsa--gfx950"
.text
.globl {NAME}_kernel
.p2align 8
.type {NAME}_kernel,@function
""" + A.text().replace("CODE_SPAN", "L_slow-L_nopf") + f""".section .rodata,"a"
.p2align 6
.amdhsa_kernel {NAME}_kernel
  .amdhsa_next_free_vgpr {NV}
  .amdhsa_next_free_sgpr {NSGPR}
  .amdhsa_accum_offset {NV}
  .amdhsa_group_segment_fixed_size 0
  .amdhsa_kernarg_size 72
  .amdhsa_user_sgpr_count 2
  .amdhsa_user_sgpr_kernarg_segment_ptr 1
  .amdhsa_system_sgpr_workgroup_id_x 1
.end_amdhsa_kernel
"""
open(sys.argv[1], "w").write(out)
print(f"wrote {sys.argv[1]}: {len(A.lines)} lines, {n} nops inserted, {NV} vgprs", file=sys.stderr)
```

```python
import sys, struct, math
from asmlib import Asm, Alloc, v, s

NAME = "concat_heads__softmax_full_mha__softmax_full_mha__prompt"

OPT = dict(ts=0, force_slow=0, rot=2, map=1, pf=1, pq=18, tq=5, fq=0, padg=14, pubw=1, pseg=2, npro=0, pp=33, tou=0,
           osc=1, nw0=4, na=2, n1=2, cg=23, xl=4, wqe=0, wqd=2, wqf=0, nb=10, lf=2, yp=0, tch=0, b0=1, lseg=1, reo=1, z0=24, dsl=1, c0=1, off=8, hf=1, gb=12, qo=0, x3=0, yl=2, xe=0, ql=4, nw1=0, rotc=1, osc0=1, cnt=0, o4=0, r4=7, l2e=0, pe=0, sb=2)
for a in sys.argv[2:]:
    k, val = a.split("=")
    OPT[k] = int(val)

FLAG_OFF = 0xD00000
ES = OPT.get("es", 7)
FS = OPT.get("fs", 16 << ES)
HINT = 0x80000
EPOCH_OFF = 0x10000
TS_OFF = 0x20000
KV_OFF = 0x100000
O_OFF = 0x900000
WS_BYTES = 0x1000000
OOB = 0x40000000

XS = 32768
WL = 98304
WQ = 0
CNT = 28800
QOLD = 155648
WOB = 66944
WO15 = 32768
MISC = 161280
SND = 16384
LDS_BYTES = 163840

CSCALE = math.log2(math.e) / math.sqrt(28.0)
SHIFT = OPT['off'] + [0, 4, 2, -4, 1][OPT['c0']]
L_LO = (127 - 60 + SHIFT) << 23
L_RANGE = 120 << 23


def f2u(x):
    return struct.unpack("<I", struct.pack("<f", x))[0]


NTX = " nt" if OPT.get("ntx") else ""
NTW = " nt" if OPT.get("ntw") else ""
OSC = ["", " sc1", " nt", " sc0 sc1", " sc1 nt"][OPT.get("osc", 3)]
C0 = ["0", "4.0", "2.0", "-4.0", "1.0"][OPT.get("c0", 0)]
TL = OPT.get("tl", 0)
A = Asm()
sWm, sWm13 = 26, 27
sX, sW, sWS, sWO, sOUT = 28, 32, 36, 40, 44
sw, sb, sh, sj, stag, sE = 48, 49, 50, 51, 52, 53
sCx, sXb, sWb, sMX, sMW, sCw = 54, 55, 56, 57, 58, 59
sT0, sT1, sT2, sT3 = 60, 61, 62, 63
sLo = 64
sLine, sRole = 66, 67
sHo = 10
sCg = 9
sWb0, sSp = 12, 13
sLpx = 8
sKV = 68
sMXs, sWq = 69, 70
sI, sRel, sWn, sHH = 71, 72, 73, 74
sSpin = 75
sOt = 76
sWoff = 77
sKap = 78
sFl = 79
sTS = 80
sRet = 82
sDone, sTodo = 84, 85
sOin = 86
sPc = 87
sOut = 88
sChk = 89
sCs = 90
sKVt = 92
sD0, sD1 = 93, 94
sPend, sRem = 95, 96
sOp = 97
sRdy = 98
sHi, sPl, sC0, sMQ = 4, 5, 6, 7
sCq, sNone = 3, 100
NSGPR = 102


JN = [0]


def ts(idx, grp=1):
    if OPT.get("jit"):
        JN[0] += 1
        A(f"""s_lshl_b32 s{sTS}, s2, 3
        s_add_u32 s{sTS}, s{sTS}, s{sw}
        s_add_u32 s{sTS}, s{sTS}, {OPT["jit"] * 7919 + JN[0] * 104729}
        s_mul_i32 s{sTS}, s{sTS}, 0x9e3779b1
        s_lshr_b32 s{sTS+1}, s{sTS}, 15
        s_xor_b32 s{sTS}, s{sTS}, s{sTS+1}
        s_mul_i32 s{sTS}, s{sTS}, 0x85ebca6b
        s_lshr_b32 s{sTS}, s{sTS}, 26
        s_sub_u32 s{sTS}, s{sTS}, 48
        s_cbranch_scc1 L_jd{JN[0]}
        L_jl{JN[0]}:
        s_sleep {OPT.get("jsl", 12)}
        s_sub_u32 s{sTS}, s{sTS}, 1
        s_cbranch_scc0 L_jl{JN[0]}
        L_jd{JN[0]}:""")
    if OPT.get("padat") == 100 * grp + idx:
        A(f"s_memrealtime s[{sTS}:{sTS+1}]\ns_waitcnt lgkmcnt(0)")
    if not OPT["ts"] or (idx != 0 and OPT["ts"] != grp):
        return
    A(f"""{"s_memtime" if OPT.get("clk") else "s_memrealtime"} s[{sTS}:{sTS+1}]
    s_waitcnt lgkmcnt(0)
    v_writelane_b32 v{vTS}, s{sTS}, {idx}""")


def tsd(code, val=0):
    if OPT.get("jit"):
        ts(15, 9)
    A(tsdt(code, val))


def tsdt(code, val=0):
    if OPT["ts"] != 5:
        return ""
    return (f"""s_memrealtime s[{sTS}:{sTS+1}]
    s_waitcnt lgkmcnt(0)
    s_lshl_b32 s{sTS}, s{sTS}, 8
    s_or_b32 s{sTS}, s{sTS}, {code << 4}
    s_or_b32 s{sTS}, s{sTS}, {val}
    s_mov_b32 m0, s11
    v_writelane_b32 v{vTS}, s{sTS}, m0
    s_add_u32 s11, s11, 1
    s_min_u32 s11, s11, 63""")


ASR = [20, 22, 54, 56, 58, 68, 66, 72, 90, 26, 6]


def tsa(i):
    if OPT["ts"] == 6:
        A(f"s_memrealtime s[{ASR[i]}:{ASR[i]+1}]")


class Cnt:
    def __init__(self, name, cap):
        self.name, self.cap, self.q = name, cap, []

    def room(self):
        if len(self.q) >= self.cap:
            A(f"s_waitcnt {self.name}({self.cap - 4})")
            self.q = self.q[len(self.q) - (self.cap - 4):]

    def issue(self, tag, n=1):
        self.q += [tag] * n
        assert len(self.q) <= self.cap, (self.name, self.q)

    def wait(self, *tags):
        idx = [i for i, t in enumerate(self.q) if t in tags]
        if idx:
            n = len(self.q) - 1 - idx[-1]
            A(f"s_waitcnt {self.name}({n})")
            self.q = self.q[idx[-1] + 1:]


def lines(text):
    return [x.strip() for x in text.split("\n") if x.strip()]


def emit(lst, n):
    for _ in range(min(n, len(lst))):
        A(lst.pop(0))


V = Alloc(1, 256)
vLane = V()
vTS = V()
vL16 = V()
vIdx = V()
vT = [V() for _ in range(6)]
t0, t1, t2, t3, t4, t5 = vT
vQm = V()
DEAD = V(8)
vQw, vQr, vBase, vCur, vWod, vPl, vPc, vBk = range(DEAD, DEAD + 8)
vOa, vW0, vW1, vSn, vRw, vMf, vTw, vTr, vOs, vOs2, vLp = [V() for _ in range(11)]
vTag = V()
vTag2 = V()
vFl = V(2)
m_ph = V.mark()
Xr = V(112)
acc0, acc1 = V(16), V(16)
Wf = V(24)
accQ = V(16)
Wg = V(12)
vXd = [V() for _ in range(4)]
vWd, vWd2 = V(), V()
vWq = V()
vXa = [V() for _ in range(4)]
vWr = [V(), V()]
vWqr = V()
vSt = [V() for _ in range(4)]
vP = [V()]
vPd = V(4)
vOnes = accQ
V.reset(m_ph)
O = [V(16), V(16)]
Q = [V(8), V(8)]
S = [V(16) for _ in range(4)]
Kf = [V(8), V(8)]
Vf = [V(8), V(8)]
pk, pq = V(8), V(8)
Of = V(32)
acc = V(28)
assert O[0] == Xr and WQ == 0

A.label(NAME + "_kernel")
A(f"""s_cmp_ge_u32 s2, 256
s_cbranch_scc1 L_end
s_load_dwordx16 s[8:23], s[0:1], 0
s_load_dwordx2 s[24:25], s[0:1], 64
v_lshrrev_b32 v{t0}, 6, v0
v_and_b32 v{vLane}, 63, v0
v_readfirstlane_b32 s{sw}, v{t0}
v_lshlrev_b32 v{vL16}, 4, v{vLane}""")
if OPT.get("padto"):
    A(f"s_memrealtime s[{sTS}:{sTS+1}]")
if OPT["ts"]:
    A(f"""{"s_memtime" if OPT.get("clk") else "s_memrealtime"} s[{sTS}:{sTS+1}]
    v_mov_b32 v{vTS}, 0""")
if OPT["map"] == 1:
    A(f"""s_and_b32 s{sT0}, s2, 7
    s_lshr_b32 s{sT1}, s2, 3
    s_and_b32 s{sj}, s{sT1}, 7
    s_lshr_b32 s{sT1}, s{sT1}, 3
    s_lshl_b32 s{sT0}, s{sT0}, 2
    s_add_u32 s{sHH}, s{sT0}, s{sT1}""")
elif OPT["map"] == 2:
    A(f"""s_and_b32 s{sT0}, s2, 7
    s_lshr_b32 s{sT1}, s2, 3
    s_and_b32 s{sT2}, s{sT0}, 3
    s_lshl_b32 s{sT2}, s{sT2}, 1
    s_lshr_b32 s{sT3}, s{sT1}, 4
    s_add_u32 s{sj}, s{sT2}, s{sT3}
    s_lshr_b32 s{sT0}, s{sT0}, 2
    s_lshl_b32 s{sT0}, s{sT0}, 4
    s_and_b32 s{sT1}, s{sT1}, 15
    s_add_u32 s{sHH}, s{sT0}, s{sT1}""")
elif OPT["map"] == 3:
    A(f"""s_and_b32 s{sT0}, s2, 7
    s_lshr_b32 s{sT1}, s2, 3
    s_and_b32 s{sT2}, s{sT0}, 1
    s_lshl_b32 s{sT2}, s{sT2}, 2
    s_lshr_b32 s{sT3}, s{sT1}, 3
    s_add_u32 s{sj}, s{sT2}, s{sT3}
    s_lshr_b32 s{sT0}, s{sT0}, 1
    s_lshl_b32 s{sT0}, s{sT0}, 3
    s_and_b32 s{sT1}, s{sT1}, 7
    s_add_u32 s{sHH}, s{sT0}, s{sT1}""")
A(f"""s_lshr_b32 s{sb}, s{sHH}, 4
s_and_b32 s{sh}, s{sHH}, 15
s_lshr_b32 s{sKap}, s{sw}, 2""")
XCALC = (f"""s_cmp_gt_u32 s{sh}, 7
s_cselect_b32 s{sRole}, 1, 0
s_cselect_b32 s{sT0}, 16, 1
s_cselect_b32 s{sT1}, 1, 2
s_cselect_b32 s{sT2}, 2, 8
s_cselect_b32 s{sT3}, 8, 16
v_bfe_u32 v{t0}, v{vLane}, 3, 1
v_mul_u32_u24 v{t0}, s{sT0}, v{t0}
v_bfe_u32 v{t1}, v{vLane}, 4, 1
v_mad_u32_u24 v{t0}, v{t1}, s{sT1}, v{t0}
v_lshrrev_b32 v{t1}, 5, v{vLane}
v_lshl_add_u32 v{t0}, v{t1}, 2, v{t0}
v_mul_u32_u24 v{t3}, 896, v{t0}
s_mul_i32 s{sT2}, s{sT2}, 896
s_mul_i32 s{sT3}, s{sT3}, 896
s_sub_u32 s{sT2}, s{sT2}, 1024
s_sub_u32 s{sT3}, s{sT3}, 2048
v_lshrrev_b32 v{t1}, 4, v{vLane}
v_and_b32 v{t2}, 7, v{vLane}
v_xor_b32 v{t1}, v{t1}, v{t2}
v_lshl_add_u32 v{vXd[0]}, v{t1}, 4, v{t3}
v_xor_b32 v{t1}, 4, v{t1}
v_lshl_add_u32 v{t1}, v{t1}, 4, v{t3}
v_add_u32 v{vXd[1]}, s{sT2}, v{t1}
v_add_u32 v{vXd[2]}, s{sT3}, v{vXd[0]}
v_add_u32 v{vXd[3]}, s{sT3}, v{vXd[1]}
s_lshl_b32 s{sT0}, s{sj}, 3
s_add_u32 s{sT0}, s{sT0}, s{sw}
s_mul_i32 s{sXb}, s{sT0}, {32*896}
s_lshl_b32 s{sMX}, s{sw}, 12
s_lshl_b32 s{sT0}, s{sKap}, 14
s_add_u32 s{sMXs}, s{sMX}, s{sT0}
s_add_u32 s{sMXs}, s{sMXs}, {XS}
s_lshl_b32 s{sCx}, s{sC0}, 7
s_mov_b32 s{sX+2}, {2048*896}
s_mov_b32 s{sX+3}, 0x20000""")
if OPT["rot"] == 0:
    A(f"s_mov_b32 s{sC0}, 0")
else:
    if OPT["rot"] == 1:
        A(f"s_add_u32 s{sC0}, s{sh}, s{sj}")
    elif OPT["rot"] == 2:
        A(f"""s_mul_i32 s{sC0}, s{sh}, 7
        s_lshr_b32 s{sC0}, s{sC0}, 4
        s_add_u32 s{sC0}, s{sC0}, s{sj}""")
    elif OPT["rot"] == 4:
        A(f"""s_lshr_b32 s{sC0}, s{sh}, 2
        s_lshl_b32 s{sC0}, s{sC0}, 1
        s_add_u32 s{sC0}, s{sC0}, s{sj}""")
    elif OPT["rot"] == 5:
        A(f"""s_lshr_b32 s{sC0}, s{sh}, 2
        s_lshl_b32 s{sC0}, s{sC0}, 1
        s_and_b32 s{sT1}, s{sj}, 1
        s_lshl_b32 s{sT1}, s{sT1}, 2
        s_add_u32 s{sC0}, s{sC0}, s{sT1}""")
    elif OPT["rot"] == 3:
        A(f"""s_mul_i32 s{sC0}, s{sh}, 7
        s_lshr_b32 s{sC0}, s{sC0}, 4""")
    A(f"""s_mul_i32 s{sT1}, s{sC0}, 37
    s_lshr_b32 s{sT1}, s{sT1}, 8
    s_mul_i32 s{sT1}, s{sT1}, 7
    s_sub_u32 s{sC0}, s{sC0}, s{sT1}""")
PF = f"""s_and_b32 s{sT0}, s2, 0xf8
s_add_u32 s{sT0}, s{sT0}, s{sw}
s_mul_i32 s{sT0}, s{sT0}, 192
s_getpc_b64 s[{sRet}:{sRet+1}]
L_nopf:
v_and_b32 v{t4}, 0x80, v{vL16}
v_add_u32 v{t4}, s{sT0}, v{t4}
v_min_u32 v{t4}, CODE_SPAN, v{t4}
global_load_dword v{t5}, v{t4}, s[{sRet}:{sRet+1}]"""
if OPT["pf"] == 1:
    A(PF)
SEL = f"""s_cmp_eq_u32 s{sb}, 0
s_waitcnt lgkmcnt(0)
s_cselect_b32 s{sX}, s8, s14
s_cselect_b32 s{sX+1}, s9, s15
s_cselect_b32 s{sW}, s10, s16
s_cselect_b32 s{sW+1}, s11, s17
s_cselect_b32 s{sWO}, s12, s18
s_cselect_b32 s{sWO+1}, s13, s19
{f"v_writelane_b32 v{vTS}, s{sTS}, 0" if OPT["ts"] else ""}"""


def x_pieces(c, slot=None):
    p = [f"""s_add_u32 m0, s{sMXs}, {(c % 2 if slot is None else slot) * 16384}
    s_add_u32 s{sD0}, s{sCx}, s{sXb}
    buffer_load_dwordx4 v{vXd[0]}, s[{sX}:{sX+3}], s{sD0} offen{NTX} lds
    s_add_u32 s{sCx}, s{sCx}, 128
    s_cmp_eq_u32 s{sCx}, 896
    s_cselect_b32 s{sCx}, 0, s{sCx}"""]
    for i in range(1, 4):
        p.append(f"buffer_load_dwordx4 v{vXd[i]}, s[{sX}:{sX+3}], s{sD0} offen offset:{1024*i}{NTX} lds")
    return [(x, f"X{c}") for x in p]


def w_pieces(it):
    return [(f"""s_add_u32 m0, s{sMW}, {it*8192}
    s_add_u32 s{sD1}, s{sCw}, s{sWb}
    buffer_load_dwordx4 v{vWd}, s[{sW}:{sW+3}], s{sD1} offen lds
    s_add_u32 s{sCw}, s{sCw}, {64*2688}
    s_cmp_eq_u32 s{sCw}, {448*2688}
    s_cselect_b32 s{sCw}, 0, s{sCw}""", f"W{it}"),
            (f"buffer_load_dwordx4 v{vWd2}, s[{sW}:{sW+3}], s{sD1} offen offset:1024 lds", f"W{it}")]


def wq_piece(i):
    return (f"""s_add_u32 m0, s{sMQ}, {i*4096}
    s_add_u32 s{sD1}, s{sCq}, s{sWq}
    buffer_load_dwordx4 v{vWq}, s[{sW}:{sW+3}], s{sD1} offen lds
    s_add_u32 s{sCq}, s{sCq}, {64*2688}
    s_cmp_eq_u32 s{sCq}, {448*2688}
    s_cselect_b32 s{sCq}, 0, s{sCq}""", "WQ")


WCALC = f"""s_mov_b32 s{sW+2}, {448*2688}
s_mov_b32 s{sW+3}, 0x20000
s_cmp_gt_u32 s{sh}, 6
s_subb_u32 s{sLine}, s{sh}, 0
s_cmp_gt_u32 s{sh}, 9
s_subb_u32 s{sLine}, s{sLine}, 0
s_lshl_b32 s{sWb}, s{sLine}, 7
s_cmp_ge_u32 s{sLine}, 7
s_cselect_b32 s{sT0}, 7, 0
s_sub_u32 s{sLine}, s{sLine}, s{sT0}
s_and_b32 s{sT1}, s{sw}, 3
s_mul_i32 s{sT0}, s{sT1}, {16*2688}
s_add_u32 s{sWb}, s{sWb}, s{sT0}
s_add_u32 s{sWb}, s{sWb}, 896
s_mul_i32 s{sCw}, s{sC0}, {64*2688}
s_lshl_b32 s{sMW}, s{sT1}, 11
s_add_u32 s{sMW}, s{sMW}, {WL}
v_lshrrev_b32 v{t0}, 3, v{vLane}
v_mul_u32_u24 v{t0}, 2688, v{t0}
v_bfe_u32 v{t1}, v{vLane}, 4, 1
v_lshlrev_b32 v{t1}, 2, v{t1}
v_and_b32 v{t2}, 7, v{vLane}
v_xor_b32 v{t1}, v{t1}, v{t2}
v_lshl_add_u32 v{vWd}, v{t1}, 4, v{t0}
v_add_u32 v{vWd2}, {8*2688-1024}, v{vWd}"""
NW0 = OPT["nw0"]
A(f"""s_lshr_b32 s{sNone}, 0x240, s{sh}
s_and_b32 s{sNone}, s{sNone}, 1
s_cmp_gt_u32 s{sKap}, s{sNone}
s_cbranch_scc1 L_wfirst""")
A(XCALC)
A(SEL)
for p, _ in x_pieces(0) + x_pieces(1):
    A(p)
ts(1, 2)
A(WCALC)
A("s_branch L_now")
A.label("L_wfirst")
A(WCALC)
A(SEL)
for it in range(NW0):
    for p, _ in w_pieces(it):
        A(p)
ts(1, 2)
A(XCALC)
TOUCH = f"""v_lshrrev_b32 v{t0}, 3, v{vLane}
v_and_b32 v{t1}, 7, v{vLane}
v_min_u32 v{t1}, 6, v{t1}
v_lshlrev_b32 v{t1}, 7, v{t1}
s_and_b32 s{sT1}, s{sw}, 3
s_lshl_b32 s{sT0}, s{sh}, 2
s_add_u32 s{sT0}, s{sT0}, s{sT1}
s_lshl_b32 s{sT2}, s{sj}, 7
s_add_u32 s{sT2}, s{sT2}, s{sT0}
s_add_u32 s{sT2}, s{sT2}, 64
s_mul_i32 s{sT2}, s{sT2}, {2*896}
s_movk_i32 s{sT3}, 896
v_mad_u32_u24 v{t3}, v{t0}, s{sT3}, v{t1}
s_lshl_b32 s{sT0}, s{sT0}, 3
s_add_u32 s{sT0}, s{sT0}, s{sj}
s_mul_i32 s{sT0}, s{sT0}, 2688
s_mov_b64 exec, 0xffff
buffer_load_dword v{t5}, v{t3}, s[{sX}:{sX+3}], s{sT2} offen
s_mov_b64 exec, 0xff
buffer_load_dword v{t5}, v{t1}, s[{sW}:{sW+3}], s{sT0} offen
s_mov_b64 exec, -1"""
if OPT["tch"] == 1:
    A(TOUCH)
A.label("L_now")

EARLY = lines(f"""s_lshl_b32 s{sT0}, s{sb}, 8
s_add_u32 s{sT0}, s{sT0}, {EPOCH_OFF}
s_load_dword s{sE}, s[24:25], s{sT0}
v_lshrrev_b32 v{t2}, 5, v{vLane}
v_and_b32 v{t0}, 31, v{vLane}
v_bfe_u32 v{t1}, v{vLane}, 1, 3
v_xor_b32 v{t1}, v{t1}, v{t2}
v_lshlrev_b32 v{t0}, 7, v{t0}
v_add_u32 v{t0}, s{sMXs}, v{t0}""")
for sst in range(4):
    EARLY += lines(f"""v_xor_b32 v{t3}, {2*sst}, v{t1}
    v_lshl_add_u32 v{vXa[sst]}, v{t3}, 4, v{t0}""")
EARLY += lines(f"""v_bfe_u32 v{t1}, v{vLane}, 2, 2
v_lshl_add_u32 v{t0}, v{t2}, 3, v{t1}
v_bfe_u32 v{t3}, v{vLane}, 4, 1
v_and_b32 v{t4}, 3, v{vLane}
v_lshlrev_b32 v{t4}, 3, v{t4}
v_lshl_add_u32 v{t4}, v{t3}, 5, v{t4}
v_lshl_add_u32 v{vWqr}, v{t0}, 6, v{t4}
v_lshl_add_u32 v{t4}, v{t0}, 7, v{t4}
v_lshrrev_b32 v{t1}, 1, v{t1}
v_lshl_add_u32 v{t4}, v{t1}, 6, v{t4}
v_add_u32 v{vWr[0]}, {WL}, v{t4}
v_xor_b32 v{vWr[1]}, 64, v{vWr[0]}""")
if OPT["cnt"]:
    EARLY += lines(f"""v_mov_b32 v{vQm}, {CNT}
    v_mov_b32 v{vFl}, 0
    v_mov_b32 v{vFl+1}, 0
    ds_write_b64 v{vQm}, {v(vFl,2)}
    v_mov_b32 v{vFl+1}, 1""")

MID = lines(f"""s_and_b32 s{sT0}, s{sh}, 1
s_lshl_b32 s{sT0}, s{sT0}, 3
s_add_u32 s{sT0}, s{sT0}, {WQ}
v_add_u32 v{vWqr}, s{sT0}, v{vWqr}
s_mul_i32 s{sWq}, s{sh}, 56
s_and_b32 s{sWq}, s{sWq}, 0xfffffff0
s_and_b32 s{sT0}, s{sw}, 3
s_lshl_b32 s{sMQ}, s{sT0}, 10
s_mul_i32 s{sT0}, s{sT0}, {16*2688}
s_add_u32 s{sWq}, s{sWq}, s{sT0}
s_mul_i32 s{sCq}, s{sC0}, {64*2688}
v_lshrrev_b32 v{t0}, 2, v{vLane}
v_mul_u32_u24 v{t0}, 2688, v{t0}
v_and_b32 v{t1}, 3, v{vLane}
v_lshl_add_u32 v{vWq}, v{t1}, 4, v{t0}""")
MID += lines(f"""s_mov_b32 s{sWS}, s24
s_mov_b32 s{sWS+1}, s25
s_mov_b32 s{sWS+2}, {WS_BYTES}
s_mov_b32 s{sWS+3}, 0x20000
s_lshl_b32 s{sKVt}, s{sb}, 22
s_lshl_b32 s{sRel}, s{sj}, {14 if TL else 15}
s_add_u32 s{sRel}, s{sRel}, s{sMX}
s_mul_i32 s{sT0}, s{sKap}, {0x20000 - 0x4000 if TL else 0}
s_add_u32 s{sRel}, s{sRel}, s{sT0}
s_add_u32 s{sKVt}, s{sKVt}, s{sRel}
s_add_u32 s{sKVt}, s{sKVt}, {KV_OFF}
s_and_b32 s{sT0}, s{sw}, 3
s_lshl_b32 s{sT0}, s{sT0}, 1
s_lshl_b32 s{sT1}, s{sb}, 3
s_add_u32 s{sT1}, s{sT1}, s{sj}
s_lshl_b32 s{sT1}, s{sT1}, 3
s_add_u32 s{sT0}, s{sT0}, s{sT1}
s_lshl_b32 s{sT0}, s{sT0}, 4
s_add_u32 s{sT0}, s{sT0}, s{sh}
s_lshl_b32 s{sOp}, s{sT0}, 11
s_add_u32 s{sOp}, s{sOp}, {O_OFF}
s_lshl_b32 s{sOt}, s{sKap}, 15
s_add_u32 s{sOt}, s{sOt}, s{sOp}
v_mov_b32 v{vPd}, {0x3f80 if OPT["off"] else 0}
v_mov_b32 v{vPd+1}, 0
v_mov_b32 v{vPd+2}, {0x3f80 if OPT["off"] else 0}
v_mov_b32 v{vPd+3}, 0
s_add_u32 s{sFl}, s{sT1}, s{sw}
s_mul_i32 s{sFl}, s{sFl}, {FS}
s_lshl_b32 s{sT0}, s{sh}, {ES}
s_add_u32 s{sFl}, s{sFl}, s{sT0}
s_add_u32 s{sFl}, s{sFl}, {FLAG_OFF}""")
LATE = lines(f"""s_lshl_b32 s{sPl}, s{sb}, 6
s_and_b32 s{sT1}, s{sw}, 3
s_add_u32 s{sPl}, s{sPl}, s{sT1}
s_mul_i32 s{sPl}, s{sPl}, {FS}
s_add_u32 s{sPl}, s{sPl}, {FLAG_OFF}
{[f"s_mov_b32 s{sT0}, s{sj}", f"s_mov_b32 s{sT0}, 0", f"s_lshl_b32 s{sT0}, s{sh}, 1", f"s_and_b32 s{sT0}, s{sj}, 4", f"s_and_b32 s{sT0}, s{sj}, 6"][OPT["sb"]]}
s_add_u32 s{sT0}, s{sT0}, s{sKap}
s_and_b32 s{sT0}, s{sT0}, 7
s_lshl_b32 s{sRel}, s{sT0}, {14 if TL else 15}
s_lshl_b32 s{sT1}, s{sT1}, 12
s_add_u32 s{sRel}, s{sRel}, s{sT1}
v_bfe_u32 v{t3}, v{vLane}, 2, 2
v_lshl_add_u32 v{t3}, v{t3}, 1, s{sT0}
v_lshrrev_b32 v{t1}, 5, v{vLane}
v_add_u32 v{t3}, v{t3}, v{t1}
v_and_b32 v{t3}, 7, v{t3}
v_bfe_u32 v{t1}, v{vLane}, 4, 1
v_lshl_add_u32 v{t3}, v{t3}, 1, v{t1}
v_mul_u32_u24 v{t3}, {4*FS}, v{t3}
s_mul_i32 s{sT0}, s{sh}, 28
s_add_u32 s{sT1}, s{sT0}, 27
s_lshr_b32 s{sT0}, s{sT0}, 6
s_lshr_b32 s{sT1}, s{sT1}, 6
s_sub_u32 s{sT1}, s{sT1}, s{sT0}
v_and_b32 v{t0}, 1, v{vLane}
v_mul_u32_u24 v{t0}, s{sT1}, v{t0}
v_add_u32 v{t0}, s{sT0}, v{t0}
v_bfe_u32 v{t1}, v{vLane}, 1, 1
v_mad_u32_u24 v{t0}, v{t1}, 7, v{t0}
v_add_u32 v{t4}, 10, v{t0}
v_lshrrev_b32 v{t4}, 4, v{t4}
v_lshrrev_b32 v{t2}, 3, v{t0}
v_add3_u32 v{t0}, v{t0}, v{t4}, v{t2}
s_sub_u32 s{sT2}, s{sT1}, 1
s_and_b32 s{sT2}, s{sT2}, 0xaaaaaaaa
s_mov_b32 s{sT3}, s{sT2}
v_mad_u32_u24 v{t1}, v{t1}, 3, 6
v_cndmask_b32 v{t0}, v{t0}, v{t1}, s[{sT2}:{sT3}]
v_lshl_add_u32 v{vPl}, v{t0}, {ES}, v{t3}
s_lshl_b32 s{sKV}, s{sHH}, 18
s_add_u32 s{sKV}, s{sKV}, {KV_OFF}
s_mov_b32 s{sDone}, s{sKap}""")
LATE += lines(f"""s_mov_b32 s{sLo}, -1
s_mov_b32 s{sLo+1}, 0
s_mov_b32 s{sCs}, {hex(f2u(CSCALE))}
s_mov_b32 s{sCs+1}, {hex(f2u(CSCALE))}
s_and_b32 s{sT1}, s{sw}, 3
v_mov_b32 v{vIdx}, 0xdddddddd
s_or_b32 s{sT2}, s{sT1}, 1
s_add_u32 s{sT0}, s{sT1}, s{sT2}
s_lshl_b32 s{sT0}, s{sT0}, 11
s_add_u32 s{sT0}, s{sT0}, {XS+32768}
s_lshl_b32 s{sT2}, s{sT1}, 11
s_add_u32 s{sT2}, s{sT2}, {QOLD}
s_sub_u32 s{sT0}, s{sT0}, s{sT2}
s_mul_i32 s{sT0}, s{sT0}, s{sKap}
s_add_u32 s{sT0}, s{sT0}, s{sT2}
v_and_b32 v{t0}, 1, v{vLane}
v_lshlrev_b32 v{t0}, 4, v{t0}
v_bfe_u32 v{t1}, v{vLane}, 4, 1
v_lshl_add_u32 v{t0}, v{t1}, 3, v{t0}
v_bfe_u32 v{t1}, v{vLane}, 3, 1
v_lshl_add_u32 v{t0}, v{t1}, 1, v{t0}
v_bfe_u32 v{t1}, v{vLane}, 1, 1
v_add_u32 v{t0}, v{t0}, v{t1}
v_and_b32 v{t1}, 0x24, v{vLane}
v_add_u32 v{t0}, v{t0}, v{t1}
v_sub_u32 v{t0}, v{t0}, v{vLane}
v_mul_lo_u32 v{t0}, v{t0}, s{sRole}
v_add_u32 v{t0}, v{t0}, v{vLane}
v_lshl_add_u32 v{vQw}, v{t0}, 4, s{sT0}
s_lshr_b32 s{sT3}, s{sT1}, 1
s_and_b32 s{sT2}, s{sT1}, 1
s_add_u32 s{sT0}, s{sT3}, 12
s_lshl_b32 s{sT2}, s{sT2}, s{sT0}
s_mul_i32 s{sT3}, s{sT3}, {(XS+32768+2048-QOLD) & 0xffffffff}
s_add_u32 s{sT2}, s{sT2}, s{sT3}
s_add_u32 s{sT2}, s{sT2}, {QOLD}
s_lshl_b32 s{sT0}, s{sKap}, 11
s_sub_u32 s{sT3}, s{sT2}, s{sT0}
s_add_u32 s{sT2}, s{sT2}, s{sT0}
v_add_u32 v{vQr}, s{sT3}, v{vL16}
v_add_u32 v{vOs2}, s{sT2}, v{vL16}
s_lshl_b32 s{sT0}, s{sKap}, 14
v_add_u32 v{vBase}, s{sT0}, v{vL16}
v_add_u32 v{vCur}, 0x10000, v{vBase}
v_lshl_add_u32 v{vBk}, v{vLane}, 3, s{sT0}""")
L1, LATE = LATE, []
LATE += lines(f"""s_mov_b32 s{sWO+2}, {448*896}
s_mov_b32 s{sWO+3}, 0x20000
s_mov_b32 s{sOUT}, s20
s_mov_b32 s{sOUT+1}, s21
s_mov_b32 s{sOUT+2}, {2048*1792}
s_mov_b32 s{sOUT+3}, 0x20000
s_mov_b32 s{sChk}, {0 if OPT['force_slow'] else L_RANGE}
s_and_b32 s{sWoff}, s{sh}, 3
s_mul_i32 s{sWoff}, s{sWoff}, 224""")
LATE += lines(f"""s_lshl_b32 s{sT1}, s{sb}, 3
s_add_u32 s{sT1}, s{sT1}, s{sj}
s_lshl_b32 s{sT1}, s{sT1}, 3
s_lshr_b32 s{sT0}, s{sh}, 2
s_bfe_u32 s{sT2}, s{sw}, 0x10001
s_lshl_b32 s{sPc}, s{sT2}, 2
s_add_u32 s{sPc}, s{sPc}, s{sT0}
s_add_u32 s{sPc}, s{sPc}, s{sT1}
s_mul_i32 s{sPc}, s{sPc}, {FS}
s_add_u32 s{sPc}, s{sPc}, {FLAG_OFF + 64}
s_lshl_b32 s{sT3}, s{sT0}, 1
s_add_u32 s{sT3}, s{sT3}, s{sT2}
s_add_u32 s{sT3}, s{sT3}, s{sT1}
s_lshl_b32 s{sOin}, s{sT3}, 15
s_add_u32 s{sOin}, s{sOin}, {O_OFF}
s_and_b32 s{sT3}, s{sw}, 1
s_lshl_b32 s{sT3}, s{sT3}, 8
s_add_u32 s{sOin}, s{sOin}, s{sT3}
s_lshl_b32 s{sT3}, s{sKap}, 11
s_add_u32 s{sOin}, s{sOin}, s{sT3}""")
LATE += lines(f"""s_lshl_b32 s{sT1}, s{sj}, 2
s_add_u32 s{sT0}, s{sT0}, s{sT1}
s_lshl_b32 s{sT0}, s{sT0}, 2
s_and_b32 s{sT1}, s{sw}, 3
s_add_u32 s{sT0}, s{sT0}, s{sT1}
s_mul_i32 s{sOut}, s{sT0}, {16*1792}
s_mul_i32 s{sT0}, s{sb}, 896
s_add_u32 s{sOut}, s{sOut}, s{sT0}
s_add_u32 s{sOut}, s{sOut}, s{sWoff}
v_and_b32 v{t2}, 7, v{vLane}
s_add_u32 s{sT0}, s{sT1}, 5
s_lshl_b32 s{sT0}, s{sT0}, 13
s_and_b32 s{sT0}, s{sT0}, 0xffff
v_add_u32 v{vRw}, s{sT0}, v{vL16}
s_lshl_b32 s{sT2}, s{sT1}, 2
s_add_u32 s{sT2}, s{sT2}, {MISC}
v_mov_b32 v{vMf}, s{sT2}
s_mul_i32 s{sT2}, s{sT1}, 3072
s_add_u32 s{sT2}, s{sT2}, {SND}
v_add_u32 v{vSn}, s{sT2}, v{vL16}
v_lshrrev_b32 v{t1}, 3, v{vLane}
s_lshl_b32 s{sT2}, s{sKap}, 11
s_add_u32 s{sT0}, s{sT0}, s{sT2}
s_add_u32 s{sT0}, s{sT0}, 4096
v_xor_b32 v{t3}, v{t1}, v{t2}
v_lshlrev_b32 v{t3}, 4, v{t3}
v_lshl_add_u32 v{t3}, v{t1}, 7, v{t3}
v_add_u32 v{vTr}, s{sT0}, v{t3}
s_and_b32 s{sCg}, s{sh}, {3 if OPT["rotc"] else 0}
s_lshl_b32 s{sCg}, s{sCg}, 1
s_lshl_b32 s{sT2}, s{sKap}, 3
s_add_u32 s{sT2}, s{sT2}, s{sCg}
v_add_u32 v{t4}, s{sT2}, v{t2}
v_subrev_u32 v{t3}, 14, v{t4}
v_min_u32 v{t4}, v{t4}, v{t3}
v_mul_u32_u24 v{t3}, 1792, v{t1}
v_lshl_add_u32 v{vOs}, v{t4}, 4, v{t3}
v_add_u32 v{t3}, 2, v{t2}
v_lshrrev_b32 v{t3}, 3, v{t3}
v_mul_u32_u24 v{t3}, s{sKap}, v{t3}
v_lshl_add_u32 v{vOs}, v{t3}, 30, v{vOs}
v_and_b32 v{t0}, 15, v{vLane}
v_lshrrev_b32 v{t1}, 4, v{vLane}
v_lshrrev_b32 v{t3}, 1, v{t1}
v_xor_b32 v{t3}, v{t3}, v{t2}
v_lshlrev_b32 v{t3}, 4, v{t3}
v_lshl_add_u32 v{t3}, v{t0}, 7, v{t3}
v_and_b32 v{t4}, 1, v{t1}
v_lshl_add_u32 v{t3}, v{t4}, 3, v{t3}
v_add_u32 v{vTw}, s{sT0}, v{t3}
v_lshlrev_b32 v{vPc}, {ES}, v{t0}
v_lshlrev_b32 v{t2}, 12, v{t2}
v_add_u32 v{vLp}, {3*512+15*16}, v{t2}
v_lshlrev_b32 v{t2}, 9, v{t1}
v_lshl_add_u32 v{vOa}, v{t0}, 4, v{t2}""")
LATE += lines(f"""v_lshrrev_b32 v{t2}, 1, v{t1}
v_lshlrev_b32 v{t2}, 4, v{t2}
v_lshl_add_u32 v{t2}, v{t4}, 2, v{t2}
v_bfe_u32 v{t3}, v{vLane}, 2, 2
v_add_u32 v{t2}, v{t2}, v{t3}
v_mul_u32_u24 v{t2}, 224, v{t2}
v_and_b32 v{t3}, 3, v{vLane}
v_lshl_add_u32 v{t2}, v{t3}, 3, v{t2}
v_add_u32 v{t3}, 1, v{t1}
v_lshrrev_b32 v{t3}, 2, v{t3}
v_mul_u32_u24 v{t3}, {4*224}, v{t3}
v_sub_u32 v{t3}, v{t2}, v{t3}
s_mul_i32 s{sT0}, s{sKap}, 6272
s_add_u32 s{sT0}, s{sT0}, {WOB}
v_add_u32 v{vW0}, s{sT0}, v{t2}
s_add_u32 s{sT0}, s{sT0}, {8*224}
v_add_u32 v{vW1}, s{sT0}, v{t3}
s_mul_i32 s{sSp}, s{sKap}, {(WO15 - WOB - 6272 - 7*12544) & 0xffffffff}
s_add_u32 s{sSp}, s{sSp}, {7*12544}""")
LATE += lines(f"""v_mul_u32_u24 v{t2}, 0x4925, v{vLane}
v_lshrrev_b32 v{t2}, 18, v{t2}
v_mul_u32_u24 v{t3}, 14, v{t2}
v_sub_u32 v{t3}, v{vLane}, v{t3}
v_add_u32 v{t3}, s{sCg}, v{t3}
v_subrev_u32 v{t4}, 14, v{t3}
v_min_u32 v{t3}, v{t3}, v{t4}
v_mul_u32_u24 v{t2}, 896, v{t2}
v_lshl_add_u32 v{vWod}, v{t3}, 4, v{t2}
s_mul_i32 s{sWn}, s{sw}, 3584
s_add_u32 s{sWn}, s{sWn}, s{sWoff}
s_mul_i32 s{sWm}, s{sw}, 896
s_add_u32 s{sWm13}, s{sWm}, {WO15-896}
s_max_u32 s{sT0}, s{sw}, 1
s_sub_u32 s{sT0}, s{sT0}, s{sw}
s_mul_i32 s{sT0}, s{sT0}, {WOB+104*896-(WO15-896)}
s_add_u32 s{sWm13}, s{sWm13}, s{sT0}""")
L2 = LATE
ENDS = lines(f"""s_mul_i32 s{sT2}, s{sLine}, {16*9363}
s_add_u32 s{sT3}, s{sT2}, {16*9363}
s_lshr_b32 s{sT2}, s{sT2}, 16
s_lshr_b32 s{sT3}, s{sT3}, 16
s_sub_u32 s{sT3}, s{sT3}, s{sT2}
s_lshl_b32 s{sT2}, s{sT2}, 18""")
FK = lines(f"""v_and_b32 v{t0}, 15, v{vLane}
v_lshlrev_b32 v{t0}, 4, v{t0}
v_bfe_u32 v{t1}, v{vLane}, 4, 1
v_lshrrev_b32 v{t4}, 5, v{vLane}
v_lshl_add_u32 v{t1}, v{t1}, 1, v{t4}
s_lshl_b32 s{sT0}, s{sLine}, 4
v_add_u32 v{t1}, s{sT0}, v{t1}""")
for i in range(4):
    FK += lines(f"""v_add_u32 v{t2}, {4*i}, v{t1}
    v_mul_u32_u24 v{t3}, 9363, v{t2}
    v_lshrrev_b32 v{t3}, 16, v{t3}
    v_lshl_add_u32 v{vSt[i]}, v{t3}, 18, v{t0}
    v_mul_u32_u24 v{t3}, 7, v{t3}
    v_sub_u32 v{t2}, v{t2}, v{t3}
    v_lshl_add_u32 v{vSt[i]}, v{t2}, 8, v{vSt[i]}""")
FK += ENDS + lines(f"""s_add_u32 s{sT2}, s{sT2}, {7*256}
v_lshrrev_b32 v{t1}, 4, v{vLane}
v_cmp_gt_u32 vcc, s{sT3}, v{t1}
v_lshl_add_u32 v{t0}, v{t1}, 18, v{t0}
v_add_u32 v{t0}, s{sT2}, v{t0}
v_mov_b32 v{t3}, {OOB}
v_cndmask_b32 v{vP[0]}, v{t3}, v{t0}, vcc""")
FV = lines(f"""v_and_b32 v{t0}, 31, v{vLane}
s_lshl_b32 s{sT0}, s{sLine}, 6
v_add_u32 v{t0}, s{sT0}, v{t0}
v_and_b32 v{t4}, 32, v{vLane}""")
for ct in range(2):
    FV += lines(f"""v_add_u32 v{t2}, {32*ct}, v{t0}
    v_mul_u32_u24 v{t3}, 2341, v{t2}
    v_lshrrev_b32 v{t3}, 16, v{t3}
    v_mul_u32_u24 v{t1}, 28, v{t3}
    v_sub_u32 v{t2}, v{t2}, v{t1}
    v_add_u32 v{t2}, v{t2}, v{t4}
    v_lshlrev_b32 v{t2}, 4, v{t2}
    v_lshl_add_u32 v{t2}, v{t3}, 18, v{t2}
    v_add_u32 v{vSt[2*ct]}, 2048, v{t2}
    v_add_u32 v{vSt[2*ct+1]}, 3072, v{t2}""")
FV += ENDS + lines(f"""s_add_u32 s{sT2}, s{sT2}, {2048+28*16}
v_lshrrev_b32 v{t0}, 4, v{vLane}
v_cmp_gt_u32 vcc, s{sT3}, v{t0}
v_bfe_u32 v{t1}, v{vLane}, 2, 2
v_lshlrev_b32 v{t1}, 9, v{t1}
v_lshl_add_u32 v{t1}, v{t0}, 18, v{t1}
v_and_b32 v{t2}, 3, v{vLane}
v_lshl_add_u32 v{t1}, v{t2}, 4, v{t1}
v_add_u32 v{t1}, s{sT2}, v{t1}
v_mov_b32 v{t3}, {OOB}
v_cndmask_b32 v{vP[0]}, v{t3}, v{t1}, vcc
v_cmp_eq_u32 vcc, 0, v{t2}
v_mov_b32 v{t3}, 0x3f803f80
s_nop 0
v_cndmask_b32 v{vPd}, 0, v{t3}, vcc
v_mov_b32 v{vPd+1}, v{vPd}
v_mov_b32 v{vPd+2}, v{vPd}
v_mov_b32 v{vPd+3}, v{vPd}""")


def st16(data, addr, soff, off=0):
    return (f"buffer_store_dwordx4 {v(data,4)}, v{addr}, s[{sWS}:{sWS+3}], s{soff} offen offset:{off} sc1", "ST")


def st8(data, addr, soff):
    return (f"buffer_store_dwordx2 {v(data,2)}, v{addr}, s[{sWS}:{sWS+3}], s{soff} offen sc1", "ST")


POS = [32768, 0, 65536]


def kv_addr(blk, t, off):
    p = POS[blk % 3] + t * 4096 + off
    return (vCur, p - 65536) if POS[blk % 3] >= 65536 else (vBase, p)


def kv_next(st):
    pos = POS[st % 3]
    if TL:
        return f"""s_add_u32 s{sRel}, s{sRel}, 0x8000
        s_{"and" if st < 4 else "or"}_b32 s{sRel}, s{sRel}, {"0x1ffff" if st < 4 else "0x20000"}
        {f"s_and_b32 s{sRel}, s{sRel}, 0x3ffff" if st > 4 else ""}
        s_add_u32 m0, s{sMX}, {pos}
        s_add_u32 s{sD0}, s{sRel}, s{sKV}"""
    return f"""s_add_u32 s{sRel}, s{sRel}, {0x14000 if st == 4 else 0x10000}
    s_and_b32 s{sRel}, s{sRel}, 0x3ffff
    s_add_u32 m0, s{sMX}, {pos}
    s_add_u32 s{sD0}, s{sRel}, s{sKV}"""


def kv_piece(i):
    return f"buffer_load_dwordx4 v{vL16}, s[{sWS}:{sWS+3}], s{sD0} offen offset:{1024*i}{['', ' sc1', ' nt', ' sc1 nt'][OPT.get('kvs', 1)]} lds"


def flag_text(second=False):
    return f"""s_mov_b64 exec, 1
    buffer_store_dword v{vTag}, v{vL16}, s[{sWS}:{sWS+3}], s{sFl} offen offset:{64 if second else 0} sc1
    s_mov_b64 exec, -1"""


def poll_text(mask):
    return f"""s_mov_b64 exec, {mask if mask < 64 else hex(mask)}
    buffer_load_dword v{vFl}, v{vPl}, s[{sWS}:{sWS+3}], s{sPl} offen sc1
    s_mov_b64 exec, -1"""


def poll_issue(mask=15):
    A(poll_text(mask))


ntry = [0]


def hook_try(level=2):
    ntry[0] += 1
    A(f"""s_cmp_ge_u32 s{sDone}, {level}
    s_cbranch_scc1 L_skip{ntry[0]}
    s_call_b64 s[{sRet}:{sRet+1}], L_try""")
    A.label(f"L_skip{ntry[0]}")


def spin(level, name):
    A(f"s_mov_b32 s{sSpin}, 0x40000")
    A.label(name)
    A(f"""s_cmp_ge_u32 s{sDone}, {level}
    s_cbranch_scc1 {name}_done
    s_call_b64 s[{sRet}:{sRet+1}], L_try
    s_sub_u32 s{sSpin}, s{sSpin}, 1
    s_cbranch_scc0 {name}""")
    A.label(name + "_done")


POLL0 = f"""s_mov_b32 exec_lo, 15
    s_mov_b32 exec_hi, 15
    buffer_load_dword v{vFl}, v{vPl}, s[{sWS}:{sWS+3}], s{sPl} offen sc1
    s_mov_b64 exec, -1"""
CALL_REST = f"s_call_b64 s[{sRet}:{sRet+1}], L_rest"
pqq = Wf + 16


class Stream:
    def __init__(self, role):
        self.role = role
        self.vm, self.lg = Cnt("vmcnt", 63), Cnt("lgkmcnt", 15)
        self.slot = [c % 2 for c in range(7)]
        self.nkv = self.nq = 0

    def dma(self, p):
        A(p[0])
        self.vm.issue(p[1])

    def ds(self, text, tag):
        self.lg.room()
        A(text)
        self.lg.issue(tag)

    def xreads(self, c):
        return [(f"ds_read_b128 {v(Xr+16*c+4*st,4)}, v{vXa[st]} offset:{self.slot[c] * 16384}", f"R{c}") for st in range(4)]

    def mk(self, kv=None, q=None):
        rd, mm, need = [], [], []
        tag = f"F{kv}_{q}"
        if kv is not None:
            b = Wf + 8 * (self.nkv % 3)
            self.nkv += 1
            for ct in range(2):
                for u in range(2):
                    rd.append((f"ds_read_b64_tr_b16 {v(b+4*ct+2*u,2)}, v{vWr[ct]} offset:{kv*2048+u*512}", tag))
                ac = [acc0, acc1][ct]
                wf, xf = v(b + 4 * ct, 4), v(Xr + 4 * kv, 4)
                a_, b_ = (wf, xf) if self.role == "K" else (xf, wf)
                if OPT.get("m16"):
                    for z in range(2):
                        d = ac + 8 * (kv % 2) + 4 * z
                        xz = v(Xr + 4 * (kv - kv % 2 + z), 4)
                        mm.append(f"v_mfma_f32_16x16x32_bf16 {v(d,4)}, {wf if self.role == 'K' else xz}, {xz if self.role == 'K' else wf}, {'0' if kv < 2 else v(d,4)}")
                    continue
                mm.append(f"v_mfma_f32_32x32x16_bf16 {v(ac,16)}, {a_}, {b_}, {'0' if kv == 0 else v(ac,16)}")
            need.append(f"R{kv//4}")
        if q is not None:
            b = Wg + 4 * (self.nq % 3)
            self.nq += 1
            for u in range(2):
                rd.append((f"ds_read_b64_tr_b16 {v(b+2*u,2)}, v{vWqr} offset:{q*1024+u*256}", tag))
            if OPT.get("m16"):
                for z in range(2):
                    d = accQ + 8 * (q % 2) + 4 * z
                    mm.append(f"v_mfma_f32_16x16x32_bf16 {v(d,4)}, {v(b,4)}, {v(Xr+4*(q-q%2+z),4)}, {'0' if q < 2 else v(d,4)}")
            else:
                mm.append(f"v_mfma_f32_32x32x16_bf16 {v(accQ,16)}, {v(b,4)}, {v(Xr+4*q,4)}, {'0' if q == 0 else v(accQ,16)}")
            need.append(f"R{q//4}")
        return dict(rd=rd, mm=mm, need=need + [tag], pre=[], xr=None, dma=[], post=[])

    def run(self, steps, fill=(), nf=0):
        fill = list(fill)
        for st in steps[:2]:
            for r in st["rd"]:
                self.ds(*r)
        for i, st in enumerate(steps):
            self.lg.wait(*st["need"])
            for f in st["pre"]:
                f()
            side = []
            if st["xr"] is not None:
                self.vm.wait(f"X{st['xr']}")
                side += self.xreads(st["xr"])
            if i + 2 < len(steps):
                side += steps[i + 2]["rd"]
            n = len(st["mm"])
            for k, m in enumerate(st["mm"]):
                A(m if not (OPT.get("nom") and i % OPT["nom"]) else "s_nop 0")
                for r in side[k * len(side) // n:(k + 1) * len(side) // n]:
                    self.ds(*r)
                for p in st["dma"][k * len(st["dma"]) // n:(k + 1) * len(st["dma"]) // n]:
                    self.dma(p)
                emit(fill, nf if not OPT.get("m16") else (nf + (k & 1)) // 2)
            for f in st["post"]:
                f()
        assert not fill

    def xplan(self, steps, first, c0, c1, lead, ahead=2):
        for c in range(c0, c1):
            i = first + 4 * (c - c0) - lead
            steps[i]["xr"] = c
            if c + ahead <= 6:
                steps[i + 1]["need"].append(f"R{c}")
                xp = x_pieces(c + ahead, self.slot[c + ahead])
                steps[i + 1]["dma"] += xp[:2]
                steps[i + 2]["dma"] += xp[2:]

    def pack(self, store):
        for ct in range(2):
            ac = [acc0, acc1][ct]
            pp = Wf + 8 * ct
            for r in range(8):
                A(f"v_cvt_pk_bf16_f32 v{pp+r}, v{ac+2*r}, v{ac+2*r+1}")
                if self.role == "V" and r % 4 == 3 and store:
                    self.dma(st16(pp + r - 3, vSt[2 * ct + r // 4], sKVt))
            if self.role == "K":
                for i in range(2):
                    A(f"v_permlane16_swap_b32 v{pp+4*i}, v{pp+4*i+2}")
                    A(f"v_permlane16_swap_b32 v{pp+4*i+1}, v{pp+4*i+3}")
                    if store:
                        self.dma(st16(pp + 4 * i, vSt[2 * ct + i], sKVt))

    def xonly(self):
        for c in range(7):
            self.vm.wait(f"X{c}")
            for r in self.xreads(c):
                self.ds(*r)
            self.lg.wait(f"R{c}")
            if c + 2 <= 6:
                for p in x_pieces(c + 2):
                    self.dma(p)


def bar():
    A("s_barrier")


def arrive(off):
    return f"""s_mov_b64 exec, 1
    ds_add_u32 v{vQm}, v{vFl+1} offset:{off}
    s_mov_b64 exec, -1"""


nsp = [0]


def await4(off):
    nsp[0] += 1
    n = nsp[0]
    A(f"""s_mov_b32 s{sSpin}, 0x400000
    L_aw{n}:
    ds_read_b32 v{t5}, v{vQm} offset:{off}
    s_sub_u32 s{sSpin}, s{sSpin}, 1
    s_waitcnt lgkmcnt(0)
    s_cbranch_scc1 L_awd{n}
    v_readfirstlane_b32 s{sD0}, v{t5}
    s_cmp_lt_u32 s{sD0}, 4
    s_cbranch_scc1 L_aw{n}
    L_awd{n}:""")


def q_epilogue():
    for r in range(8):
        A(f"v_pk_mul_f32 {v(accQ+2*r,2)}, {v(accQ+2*r,2)}, s[{sCs}:{sCs+1}]")
    for r in range(8):
        A(f"v_cvt_pk_bf16_f32 v{pqq+r}, v{accQ+2*r}, v{accQ+2*r+1}")
    A(f"""v_mov_b32 v{t5}, {f2u(float(OPT["off"])) >> 16}
    v_cndmask_b32 v{pqq+7}, 0, v{pqq+7}, s[{sLo}:{sLo+1}]
    v_cndmask_b32 v{pqq+6}, v{t5}, v{pqq+6}, s[{sLo}:{sLo+1}]""")
    A(f"""ds_write_b128 v{vQw}, {v(pqq,4)}
    ds_write_b128 v{vQw}, {v(pqq+4,4)} offset:1024""")


NOST = [f"v_mov_b32 v{vSt[i]}, {OOB}" for i in range(4)]
ZO = [f"v_mov_b32 v{O[0]+r}, {hex(f2u(1.5 * 2.0 ** OPT['oz'])) if OPT.get('oz') else 0}" for r in range(32)]
NA, N1, CG = OPT["na"], OPT["n1"], OPT["cg"]
GB = OPT["gb"]
QO = min(4 * OPT["wqe"], 26 - GB, OPT["qo"])
QY = min(4 * OPT["wqe"], 4 * N1) if QO else 0


def older(role):
    S_ = Stream(role)
    S_.vm.issue("X0", 4)
    S_.vm.issue("X1", 4)
    if role == "N":
        A(flag_text())
        S_.vm.issue("FL")
        if OPT["cnt"]:
            bar()
        S_.xonly()
        if OPT["cnt"]:
            A(arrive(4))
        else:
            bar()
        if QO:
            S_.run([S_.mk(q=g) for g in range(QO)])
        return
    if OPT["yp"]:
        A("s_setprio 2")
    if OPT["o4"]:
        S_.slot = [0, 1, 2, 3, 0, 1, 0]
        for p in x_pieces(2, 2) + x_pieces(3, 3):
            S_.dma(p)
    S_.vm.wait("X0")
    for r in S_.xreads(0):
        S_.ds(*r)
    S_.lg.wait("R0")
    for p in (x_pieces(4, 0) if OPT["o4"] else x_pieces(2)):
        S_.dma(p)
    ts(3, 2)
    bar()
    ts(4, 2)
    steps = [S_.mk(kv=g, q=(g - GB - 2 if 0 <= g - GB - 2 < QO else None)) for g in range(28)]
    if QO:
        steps[GB]["pre"].append(bar)
    if OPT["o4"]:
        GBB = 4 * NA - 2
        for c, i in {1: 0, 2: min(2, GBB - 3), 3: min(4, GBB - 1), 4: OPT["r4"], 5: 16, 6: 20}.items():
            steps[i]["xr"] = c
        for c, i, r in ((5, 1, 1), (6, OPT["r4"] + 1, 4)):
            steps[i]["need"].append(f"R{r}")
            xp = x_pieces(c, S_.slot[c])
            steps[i]["dma"] += xp[:2]
            steps[i + 1]["dma"] += xp[2:]
        steps[GBB]["need"].append("R3")
    else:
        S_.xplan(steps, 4, 1, 7, OPT["xl"])
    steps[4 * NA - 2]["pre"].append(bar)
    steps[OPT["padg"]]["dma"].append(st16(vPd, vP[0], sKVt))
    if OPT["cnt"]:
        steps[24]["post"].append(lambda: S_.ds(arrive(4), "AR"))
    elif CG < 28:
        steps[CG]["need"].append("R6")
        steps[CG]["pre"].append(bar)
    for c in range(7):
        steps[4 * c]["pre"].append(lambda c=c: ts(5 + c, 2))
    fill = {"K": FK, "V": FV}[role]
    S_.run(steps, fill, -(-len(fill) // 24))
    ts(2)
    ts(12, 2)
    S_.pack(True)
    ts(1)
    if CG == 28:
        bar()
    A("s_branch L_oq")


def younger(role):
    S_ = Stream(role)
    if role == "N":
        S_.vm.issue("X0", 4)
        S_.vm.issue("X1", 4)
        A(flag_text())
        S_.vm.issue("FL")
        if OPT["cnt"]:
            bar()
        for i in range(7):
            S_.dma(wq_piece(i))
        emit(list(REST), len(REST))
        emit(list(NOST), 4)
        if OPT["cnt"]:
            S_.vm.wait("WQ")
            A(arrive(0))
            A("s_waitcnt lgkmcnt(0)")
        S_.xonly()
        if OPT["cnt"]:
            await4(0)
        else:
            bar()
        steps = [S_.mk(q=g) for g in range(28)]
        first = 0
    else:
        S_.vm.q = list(LOADER_Q)
        wq = [wq_piece(i) for i in range(OPT["wqe"] + OPT["wqf"], 7)]
        S_.vm.wait("X0")
        for r in S_.xreads(0):
            S_.ds(*r)
        ts(6, 2)
        steps = [S_.mk(kv=g, q=(g if g < QY else None)) for g in range(4 * N1)]
        for c in range(1, N1):
            steps[4 * c - 2]["xr"] = c
        k = 0
        for p in wq:
            steps[k // OPT["wqd"]]["dma"].append(p)
            k += 1
        fill = {"K": FK, "V": FV}[role]
        late = []
        for c in range(2, N1 + 2):
            if c < N1 + OPT["xe"]:
                steps[4 * (c - 2) + 1]["need"].append(f"R{c-2}")
                steps[4 * (c - 2) + 1]["dma"] = x_pieces(c) + steps[4 * (c - 2) + 1]["dma"]
            else:
                late += x_pieces(c)
        S_.run(steps, fill, -(-len(fill) // (8 * N1)))
        for p in late:
            S_.dma(p)
        ts(7, 2)
        S_.vm.wait("WQ")
        if OPT["cnt"]:
            A(arrive(0))
            await4(0)
        else:
            bar()
        ts(8, 2)
        if OPT["yp"]:
            A("s_setprio 1")
        QL = OPT["ql"]
        steps = ([S_.mk(q=g) for g in range(QY, 4 * N1 - QL)] + [S_.mk(kv=g, q=g - QL) for g in range(4 * N1, 28)]
                 + [S_.mk(q=g) for g in range(28 - QL, 28)])
        if QL:
            n0 = len(A.lines)
            S_.pack(False)
            pk_ = A.lines[n0:]
            del A.lines[n0:]
            for i in range(-QL + 1, 0):
                steps[i]["post"].append(lambda d=-i: emit(pk_, -(-len(pk_) // d)))
        if QY >= 4 * N1 - 1:
            S_.vm.wait(f"X{N1}")
            for r in S_.xreads(N1):
                S_.ds(*r)
            xp = x_pieces(N1 + 2)
            steps[0]["dma"] += xp[:2]
            steps[1]["dma"] += xp[2:]
            S_.xplan(steps, 4 * N1 - QY + 4, N1 + 1, 7, 2)
        elif OPT["x3"] == 2:
            assert N1 == 2 and WL == XS + 65536
            S_.slot = [0, 1, 0, 1, 2, 0, 1]
            f0 = 4 * N1 - QY - QL
            steps[0]["xr"] = 2
            steps[0]["dma"] += x_pieces(4, 2)
            steps[1]["xr"] = 3
            steps[1]["need"].append("R2")
            steps[1]["dma"] += x_pieces(5, 0)
            steps[2]["need"].append("R3")
            steps[2]["dma"] += x_pieces(6, 1)
            for c in (4, 5, 6):
                steps[f0 + 4 * (c - 2) - 2]["xr"] = c
        elif OPT["x3"]:
            assert N1 == 2 and WL == XS + 65536
            S_.slot = [0, 1, 0, 1, 2, 0, 1]
            for k, p in enumerate(x_pieces(4, 2)):
                steps[k // 2]["dma"].append(p)
            S_.xplan(steps, 4 * N1 - QY, N1, 7, OPT["yl"], 3)
        else:
            S_.xplan(steps, 4 * N1 - QY - QL, N1, 7, OPT["yl"])
        steps[-8]["dma"].append(st16(vPd, vP[0], sKVt))
    ts(3)
    steps[-3]["post"].append(lambda: (poll_issue(0xffff), S_.vm.issue("PL")))
    fill = [] if role == "N" else [L1 + L2, list(L2), []][OPT['lf']]
    S_.run(steps, fill, -(-len(fill) // (3 * (24 - 4 * N1) + 4 * N1)))
    ts(2)
    ts(12, 2)
    q_epilogue()
    if role != "N" and not OPT["ql"]:
        S_.pack(False)
    ts(11)
    A("""s_waitcnt lgkmcnt(0)
    s_branch L_b0""")


def loader():
    S_ = Stream("N")
    for it in range(NW0):
        S_.vm.issue(f"W{it}", 2)
    if OPT["tch"] == 2:
        A(TOUCH)
    if OPT["tch"]:
        S_.vm.issue("PF", 2)
    NW1 = max(NW0, OPT["nw1"])
    for it in range(NW0, NW1):
        for p in w_pieces(it):
            S_.dma(p)
    S_.vm.wait(f"W{NA-1}")
    ts(3, 2)
    bar()
    ts(4, 2)
    fill = [[], list(L1), L1 + L2][OPT['lf']]
    if OPT.get("tlb"):
        S_.dma((f"""v_lshlrev_b32 v{t0}, 16, v{vLane}
        s_lshl_b32 s{sT0}, s{sb}, 22
        s_and_b32 s{sT1}, s{sw}, 3
        s_cmp_eq_u32 s{sT1}, 0
        s_cselect_b32 s{sT0}, s{sT0}, {O_OFF - KV_OFF}
        s_cmp_eq_u32 s{sT1}, 2
        s_cselect_b32 s{sT0}, {FLAG_OFF - KV_OFF + 0x40000 - 256}, s{sT0}
        s_add_u32 s{sT0}, s{sT0}, {KV_OFF + 2048 + 1024 + 29 * 16}
        buffer_load_dword v{t5}, v{t0}, s[{sWS}:{sWS+3}], s{sT0} offen""", "PF"))
    wq = [wq_piece(i) for i in range(7)]
    p1 = [p for it in range(NW1, 7) for p in w_pieces(it)] + wq[:OPT["wqe"]] + x_pieces(0) + x_pieces(1)
    p2 = wq[OPT["wqe"]:OPT["wqe"] + OPT["wqf"]]
    nb = OPT["nb"] if not OPT["o4"] else len(p1) - 8
    ps = p1 + p2
    nf = -(-len(fill) // len(ps))
    for k, p in enumerate(ps):
        if k == nb:
            S_.vm.wait("W6")
            bar()
        S_.dma(p)
        emit(fill, nf)
    if nb >= len(ps):
        S_.vm.wait("W6")
        bar()
    if QO:
        assert OPT["wqf"] == 0
        S_.vm.wait("WQ")
        bar()
    ts(5, 2)
    return S_.vm.q


PRO, REST = EARLY + MID, L1 + L2
PRO += lines(f"""s_waitcnt lgkmcnt(0)
s_mul_i32 s{stag}, s{sE}, 0x9e3779b1
s_add_u32 s{stag}, s{stag}, 0x7f4a7c15
v_mov_b32 v{vTag}, s{stag}""")
emit(PRO, len(PRO))
ts(2, 2)
A(f"""s_cmp_eq_u32 s{sKap}, 0
s_cbranch_scc1 L_old
s_cmp_eq_u32 s{sNone}, 1
s_cbranch_scc1 L_yN""")
LOADER_Q = loader()
A(f"""s_cmp_eq_u32 s{sRole}, 1
s_cbranch_scc1 L_yV""")
younger("K")
A.label("L_yV")
younger("V")
A.label("L_yN")
younger("N")
A.label("L_old")
A(f"""s_cmp_eq_u32 s{sNone}, 1
s_cbranch_scc1 L_oN
s_cmp_eq_u32 s{sRole}, 1
s_cbranch_scc1 L_oV""")
older("K")
A.label("L_oV")
older("V")
A.label("L_oN")
older("N")
A.label("L_oq")
ts(3)
ts(13, 2)
emit(list(L1), len(L1))
emit(list(NOST), 4)
S_ = Stream("N")
steps = [S_.mk(q=g) for g in range(QO, 28)]


def oflag():
    A("s_waitcnt vmcnt(0)")
    A(flag_text())
    if OPT["yp"]:
        A("s_setprio 0")
    ts(4)


if OPT["cnt"]:
    oflag()
    l2 = list(L2)
    emit(l2, OPT["l2e"])
    L2 = l2
    await4(4)
    if OPT["pe"]:
        A(POLL0)
        for _ in range(OPT["pe"] - 1):
            hook_try(1)
    await4(0)
else:
    steps[OPT["fq"]]["pre"].append(oflag)
PQ = min(OPT["pq"], len(steps) - 1)
if not (OPT["cnt"] and OPT["pe"]):
    steps[PQ]["post"].append(lambda: A(POLL0))
for g in range(PQ + OPT["tq"], len(steps), OPT["tq"]):
    steps[g]["post"].append(lambda: hook_try(1))
S_.run(steps, L2, -(-len(L2) // (len(steps) - 1)))
q_epilogue()
ts(11)
spin(1, "L_spin0")
A("""s_waitcnt vmcnt(1) lgkmcnt(0)
s_branch L_b0""")
A.label("L_try")
A(f"""s_waitcnt vmcnt(0)
v_cmp_ne_u32 vcc, s{stag}, v{vFl}
s_or_b32 s{sD1}, vcc_lo, vcc_hi
s_and_b32 s{sD1}, s{sD1}, 15
s_cbranch_scc0 L_try0""")
A(POLL0)
A(f"s_setpc_b64 s[{sRet}:{sRet+1}]")
A.label("L_try0")
ts(5)
A(f"""s_add_u32 m0, s{sMX}, {POS[0]}
s_add_u32 s{sD0}, s{sRel}, s{sKV}""")
for i in range(4):
    A(kv_piece(i))
A(f"""s_add_u32 s{sD0}, s{sRel}, {0x4000 if TL else 0x8000}
s_and_b32 s{sD0}, s{sD0}, {0x1ffff if TL else 0x3ffff}
s_add_u32 m0, s{sMX}, {POS[0]+16384}
s_add_u32 s{sD0}, s{sD0}, s{sKV}""")
for i in range(4):
    A(kv_piece(i))
A(f"s_mov_b32 s{sDone}, 1")
poll_issue(0xffff)
A(f"s_setpc_b64 s[{sRet}:{sRet+1}]")

A.label("L_b0")
for _ in range(OPT.get("idle", 0)):
    A("s_sleep 36")
A("s_barrier")
ts(12)
ts(1, 4)

A(f"""ds_read_b128 {v(Q[0],4)}, v{vQr} offset:2048
ds_read2st64_b64 {v(Kf[0],4)}, v{vBk} offset0:64 offset1:65
ds_read_b128 {v(Q[0]+4,4)}, v{vQr} offset:3072
ds_read2st64_b64 {v(Kf[0]+4,4)}, v{vBk} offset0:66 offset1:67
{chr(10).join(ZO[:OPT["z0"]])}
ds_read_b128 {v(Q[1],4)}, v{vOs2}
ds_read_b128 {v(Q[1]+4,4)}, v{vOs2} offset:1024
s_waitcnt lgkmcnt(4)
v_mfma_f32_32x32x16_bf16 {v(S[0],16)}, {v(Kf[0],4)}, {v(Q[0],4)}, {C0}
s_waitcnt lgkmcnt(2)
v_mfma_f32_32x32x16_bf16 {v(S[0],16)}, {v(Kf[0]+4,4)}, {v(Q[0]+4,4)}, {v(S[0],16)}
ds_read2st64_b64 {v(Kf[1],4)}, v{vBk} offset0:72 offset1:73
ds_read2st64_b64 {v(Kf[1]+4,4)}, v{vBk} offset0:74 offset1:75
ds_read_b128 {v(Vf[0],4)}, v{vBase} offset:34816
ds_read_b128 {v(Vf[0]+4,4)}, v{vBase} offset:35840
{chr(10).join(ZO[OPT["z0"]:])}
s_waitcnt lgkmcnt(4)""")

def wo_piece(r):
    m = f"s_mov_b32 m0, s{sWm13}" if r == 13 else f"s_add_u32 m0, s{sWm}, {WOB + 8*r*896}"
    return f"""{m}
    s_add_u32 s{sD1}, s{sWn}, {8*r*3584}
    buffer_load_dwordx4 v{vWod}, s[{sWO}:{sWO+3}], s{sD1} offen lds"""


EXTRA = {}
AFTER = {}


def extra(w_, sl, text):
    EXTRA.setdefault((w_, sl), []).append(text)


def window(W):
    blk, u = divmod(W, 8)
    un, up = u + 1, u - 1
    tn, qn = un // 2, un % 2
    tp, qp = up // 2, up % 2
    Sc, Sn, Sp = S[u % 4], S[un % 4], S[up % 4]
    Kn, Vp = Kf[tn % 2], Vf[tp % 2]
    if blk == 7 and OPT["reo"]:
        UN = {5: (3, 0), 6: (2, 1)}
        if un in UN:
            Kn, qn = Kf[UN[un][0] % 2], UN[un][1]
        if up in UN:
            Vp, qp = Vf[UN[up][0] % 2], UN[up][1]
        if u in (4, 6):
            A("s_waitcnt lgkmcnt(2)" if u == 4 else "s_waitcnt lgkmcnt(0)")
    h0, h1 = (4, 0) if OPT["hf"] else (0, 4)
    m = [f"v_mfma_f32_32x32x16_bf16 {v(Sn,16)}, {v(Kn+h0,4)}, {v(Q[qn]+h0,4)}, {C0}",
         f"v_mfma_f32_32x32x16_bf16 {v(Sn,16)}, {v(Kn+h1,4)}, {v(Q[qn]+h1,4)}, {v(Sn,16)}",
         f"v_smfmac_f32_32x32x32_bf16 {v(O[qp],16)}, {v(Vp,4)}, {v(Sp,8)}, v{vIdx}",
         f"v_smfmac_f32_32x32x32_bf16 {v(O[qp],16)}, {v(Vp+4,4)}, {v(Sp+8,8)}, v{vIdx}"]
    if W == 0:
        m[2] = m[3] = None
    if W == 63:
        m = [m[2], None, m[3], None]
    if W == 62 and OPT["reo"] == 2:
        m = [m[0], m[2], m[1], m[3]]
    mem = [[], [], [], []]
    pre = [[], [], [], []]

    def rd(dst, T, off):
        if off < 2048 and not OPT.get('kb128'):
            o = (POS[(blk + T // 4) % 3] + (T % 4) * 4096 + off) // 512
            if OPT.get("k64"):
                a, oo = (vBk, o * 512) if o < 128 else (vTag2, o * 512 - 65536)
                return f"ds_read_b64 {v(dst,2)}, v{a} offset:{oo}\nds_read_b64 {v(dst+2,2)}, v{a} offset:{oo+512}"
            return f"ds_read2st64_b64 {v(dst,4)}, v{vBk} offset0:{o} offset1:{o+1}"
        a, o = kv_addr(blk + T // 4, T % 4, off)
        return f"ds_read_b128 {v(dst,4)}, v{a} offset:{o}"
    if u % 2 == 1:
        if not (u == 5 and (blk > 0 or OPT["b0"])):
            A("s_waitcnt lgkmcnt(0)")
        tt = tn
        Kd, Vd = Kf[(tt + 1) % 2], Vf[tt % 2]
        rk = [rd(Kd, tt + 1, 0), rd(Kd + 4, tt + 1, 1024)]
        rv = [rd(Vd, tt, 2048), rd(Vd + 4, tt, 3072)]
        if W == 61 or (W == 5 and not OPT['b0']):
            mem[0 if W == 61 else 2].append(rv[0])
            mem[1 if W == 61 else 3].append(rv[1])
        elif W == 63:
            pass
        elif W == 7 and not OPT['b0']:
            A(rd(Kn, 4, 0))
            A(rd(Kn + 4, 4, 1024))
            m = [m[2], m[3], m[0], m[1]]
            mem[0] += [rk[0], rk[1]]
            mem[1] += [rv[0], rv[1]]
            pre[2].append("s_waitcnt lgkmcnt(4)")
        else:
            RS_ = [[0, 1, 2, 3], [2, 2, 3, 3], [0, 0, 1, 1], [2, 3, 0, 1]][OPT.get("rsl", 0)]
            order = sorted(range(4), key=lambda k: RS_[k])
            for k in range(4):
                mem[RS_[k]].append((rk + rv)[k])
    for q in range(4):
        for x in pre[q]:
            A(x)
        if m[q]:
            A(m[q])
        for x in mem[q] + (EXTRA.get((W, q), []) if not (OPT.get("nodma") and 23 <= W < 53) else []):
            A(x)
        EB = [[0, 4, 8, 12, 16], [0, 0, 8, 8, 16], [0, 3, 8, 11, 16], [0, 2, 8, 10, 16], [0, 3, 7, 10, 16],
              [0, 5, 8, 13, 16]][OPT.get("bb", 0) if W < 62 else 0]
        for e in range(EB[q], EB[q + 1]):
            A(f"v_exp_f32 v{Sc+e}, v{Sc+e}")
    for hk in AFTER.get(W, []):
        hk()


def mk_bar(n):
    def f():
        A(f"""s_waitcnt vmcnt({n}) lgkmcnt(0)""")
        if not OPT.get("nobar"):
            A("s_barrier")
    return f


def check_text(reg, mask, name):
    return f"""v_cmp_ne_u32 vcc, s{stag}, v{reg}
    s_and_b32 s{sD1}, vcc_lo, {mask}
    s_cbranch_scc1 {name}
    {name}_done:"""


PUB = [st16(Wf + 4 * i, vSt[i], sKVt)[0] for i in range(4)]
if OPT["b0"]:
    extra(0, 2, "s_waitcnt vmcnt(0)\n" + check_text(vFl, "0xffff", "L_polll"))
    extra(0, 3, kv_next(1) + "\n" + kv_piece(0))
    for i in range(1, 4):
        extra(1, i - 1, kv_piece(i))
    for i in range(4):
        extra(2, i, PUB[i])
    AFTER.setdefault(4, []).append(mk_bar(4))
    AFTER[4].append(lambda: ts(6))
    extra(6, 0, "s_waitcnt vmcnt(0)\n" + flag_text())
    extra(6, 1, kv_next(2) + "\n" + kv_piece(0))
    extra(6, 3, kv_piece(1))
    extra(8, 0, kv_piece(2))
    extra(8, 2, kv_piece(3))
else:
    for i in range(4):
        extra(i // 2, [1, 3][i % 2], PUB[i])
    extra(2, 0, "s_waitcnt vmcnt(4)\n" + check_text(vFl, "0xffff", "L_polll"))
    extra(2, 1, kv_next(1) + "\n" + kv_piece(0))
    extra(2, 3, kv_piece(1))
    extra(3, 1, kv_piece(2))
    extra(3, 3, kv_piece(3))
    AFTER.setdefault(6, []).append(lambda: (A("s_waitcnt vmcnt(0)\ns_barrier"), ts(6)))
    extra(7, 2, kv_next(2) + "\n" + kv_piece(0))
    extra(7, 3, kv_piece(1))
    extra(8, 1, kv_piece(2))
    extra(8, 3, kv_piece(3))
    extra(8, 0, flag_text())
extra(9, 1, "\n".join(f"v_mov_b32 v{vOnes+r}, -1" for r in range(4)))
extra(40, 1, f"""v_lshrrev_b32 v{t0}, 2, v{vL16}
v_and_b32 v{t0}, 60, v{t0}
v_add_u32 v{t0}, {MISC}, v{t0}
v_mov_b32 v{t1}, 0
ds_write_b32 v{t0}, v{t1}""")
extra(10, 0, st16(vOnes, vL16, sOt)[0])
extra(10, 2, st16(vOnes, vL16, sOt, 1024)[0])
extra(30, 1, flag_text(True))
extra(17, 1, poll_text(0x7fff0000).replace("0x7fff0000", "0xffff0000"))


extra(21, 2, check_text(vFl, "0xffff0000", "L_pollh"))
if OPT.get("tou"):
    e0, e1 = ("s_mov_b64 exec, 1\n", "\ns_mov_b64 exec, -1") if OPT["tou"] == 2 else ("", "")
    extra(36, 1, f"{e0}buffer_load_dword v{t2}, v{vOs}, s[{sOUT}:{sOUT+3}], s{sOut} offen{e1}")
    extra(28, 1, f"s_add_u32 s{sT1}, s{sOut}, {8*1792}\n{e0}buffer_load_dword v{t2}, v{vOs}, s[{sOUT}:{sOUT+3}], s{sT1} offen{e1}")
wo_early = list(range(5, 13))
for i in range(1, 8):
    nwo = 2 if i == 1 else 0
    if i >= 2 and wo_early:
        for sl in (0, 2):
            extra(8 * i + 2, sl, wo_piece(wo_early.pop(0)))
            nwo += 1
    if OPT.get("tou") and i in (3, 4):
        nwo += 1
    AFTER.setdefault(8 * i + 4, []).append(mk_bar(nwo))
    if i <= 5:
        DS_ = [[(6, 0), (6, 2), (8, 0), (8, 2)], [(6, 2), (6, 3), (8, 2), (8, 3)], [(6, 0), (6, 1), (8, 0), (8, 1)],
               [(6, 1), (6, 3), (8, 1), (8, 3)], [(6, 0), (6, 1), (6, 2), (6, 3)]][OPT.get("dsl", 0)]
        extra(8 * i + DS_[0][0], DS_[0][1], kv_next(i + 2) + "\n" + kv_piece(0))
        for k in range(1, 4):
            extra(8 * i + DS_[k][0], DS_[k][1], kv_piece(k))
assert not wo_early
for k, r in enumerate([0, 1, 2, 3, 4, 13]):
    extra([54, 54, 55, 56, 56, 57][k], [0, 2, 1, 0, 2, 1][k], wo_piece(r))
extra(50, 0, f"buffer_load_dword v{vQm}, v{vPc}, s[{sWS}:{sWS+3}], s{sPc} offen sc1")
extra(58, 0, check_text(vQm, "0xffff", "L_pollc"))
extra(58, 2, f"""s_or_b32 s{sT0}, s{sh}, s{sj}
    s_or_b32 s{sT0}, s{sT0}, s{sw}
    s_cbranch_scc0 L_epoch
    L_epd:""")
sTk, sAv = sTodo, sRem


def oload(l):
    return f"""s_add_u32 s{sT0}, s{sOin}, {l*4096}
    buffer_load_dwordx4 {v(Of+4*l,4)}, v{vOa}, s[{sWS}:{sWS+3}], s{sT0} offen sc1"""


def cload(l):
    return f"""s_bitcmp1_b32 s{sAv}, {l}
    s_cselect_b64 exec, -1, 0
    {oload(l)}"""


POLL = f"""s_andn2_b32 exec_lo, 0xff, s{sTk}
    s_mov_b32 exec_hi, 0
    buffer_load_dword v{vQm}, v{vLp}, s[{sWS}:{sWS+3}], s{sOin} offen sc1
    s_mov_b64 exec, -1"""
SENDL = [f"ds_write_b128 v{vQw}, {v(O[0]+4*i,4)} offset:{1024*i}" for i in range(4)] + [f"ds_write_b32 v{vOs2}, v{t4}"]
SEND = "\n".join(SENDL)
if OPT["reo"]:
    extra(63, 2, SEND)
extra(44, 1, f"""s_lshl_b32 s{sT0}, s{sKap}, 12
    v_add_u32 v{vQw}, s{sT0}, v{vRw}
    v_xor_b32 v{vQr}, 0x1000, v{vQw}
    s_mul_i32 s{sT0}, s{sKap}, 48
    v_add_u32 v{vOs2}, s{sT0}, v{vMf}
    v_xor_b32 v{vPl}, 48, v{vOs2}
    v_mov_b32 v{t4}, 1""")
for (ww, sl, pr) in [[(61, 0, 3), (62, 0, 2), (63, 0, 1), (63, 2, 0)], [(61, 0, 3), (62, 2, 2), (63, 2, 1)],
                     [(61, 0, 1), (63, 0, 0)]][OPT["lseg"]]:
    extra(ww, sl, f"s_setprio {pr}")
PSEG = {1: [(0, 0, 3), (3, 0, 2), (6, 0, 1), (7, 2, 0)], 2: [(0, 0, 3), (4, 0, 2), (6, 2, 1), (7, 3, 0)],
        3: [(0, 0, 1), (7, 2, 0)], 4: [(0, 0, 3), (2, 0, 2), (4, 0, 1), (6, 0, 0)], 5: [(0, 0, 1), (7, 0, 0)],
        6: [(0, 0, 2), (5, 0, 1), (7, 2, 0)]}
if OPT.get("pseg"):
    for (ww, sl, pr) in ([(0, 0, 3), (2, 0, 2), (3, 2, 1), (4, 3, 0)] if OPT["b0"] else
                         [(0, 0, 3), (3, 0, 2), (5, 2, 1), (6, 3, 0), (7, 0, 3), (9, 0, 2), (11, 2, 1), (12, 3, 0)]):
        EXTRA.setdefault((ww, sl), []).insert(0, f"s_setprio {pr}")
    for i in range(0 if OPT["b0"] else 1, 7):
        for (dw, sl, pr) in PSEG[OPT["pseg"]]:
            EXTRA.setdefault((8 * i + 5 + dw, sl), []).insert(0, f"s_setprio {pr}")
if OPT.get("prio"):
    A(f"""s_cmp_eq_u32 s{sKap}, {OPT["prio"] & 1}
    s_cbranch_scc0 L_np
    s_setprio 1""")
    A.label("L_np")
for W in range(64):
    TW = [0, 1, 3, 5, 7, 13, 21, 29, 37, 45, 53, 61] if not OPT.get("tw") else [16, 56]
    if OPT.get("al") and W % OPT["al"] == 0:
        A(".p2align 3")
    if W in TW:
        ts(2 + TW.index(W), 4)
    elif OPT.get("jit") and W % 2 == 0 or OPT.get("jit") and W > 56:
        ts(15, 9)
    window(W)
A(f"""s_nop 0
v_smfmac_f32_32x32x32_bf16 {v(O[1],16)}, {v(Vf[1],4)}, {v(S[3],8)}, v{vIdx}
v_smfmac_f32_32x32x32_bf16 {v(O[1],16)}, {v(Vf[1]+4,4)}, {v(S[3]+8,8)}, v{vIdx}""")
ts(7)
ts(14, 4)

R = S[0]
if not OPT["reo"]:
    A(SEND)
A(f"s_mov_b32 s{sSpin}, 0x400000")
A.label("L_mwait")
A(f"ds_read_b32 v{t2}, v{vPl}")
for i in (3, 0, 1, 2):
    A(f"ds_read_b128 {v(R+4*i,4)}, v{vQr} offset:{1024*i}")
A(f"""s_sub_u32 s{sSpin}, s{sSpin}, 1
s_cbranch_scc1 L_mgo
s_waitcnt lgkmcnt(4)
v_readfirstlane_b32 s{sT0}, v{t2}
s_cmp_eq_u32 s{sT0}, 0
s_cbranch_scc1 L_mspin""")
A.label("L_mgo")
Ob = O[1]
rc = vFl
A(f"""s_waitcnt lgkmcnt(3)
v_pk_add_f32 {v(Ob+12,2)}, {v(Ob+12,2)}, {v(R+12,2)}
v_pk_add_f32 {v(Ob+14,2)}, {v(Ob+14,2)}, {v(R+14,2)}""")
A.label("L_norm")
A(f"""v_mov_b32 v{t0}, v{Ob+12}
v_mov_b32 v{rc}, v{Ob+12}
s_waitcnt lgkmcnt(0)
v_pk_add_f32 {v(Ob,2)}, {v(Ob,2)}, {v(R,2)}
v_permlane32_swap_b32 v{t0}, v{rc}
v_pk_add_f32 {v(Ob+2,2)}, {v(Ob+2,2)}, {v(R+2,2)}
v_subrev_u32 v{t0}, {hex(L_LO)}, v{rc}
v_rcp_f32 v{rc}, v{rc}
v_cmp_lt_u32 vcc, s{sChk}, v{t0}""")
for r in range(4, 12, 2):
    A(f"v_pk_add_f32 {v(Ob+r,2)}, {v(Ob+r,2)}, {v(R+r,2)}")
A("""s_cmp_lg_u64 vcc, 0
s_cbranch_scc1 L_slow""")
for f in range(2):
    for r in range(8 * f, 8 * f + 8, 2):
        A(f"v_pk_mul_f32 {v(Ob+r,2)}, {v(Ob+r,2)}, {v(rc,2)} op_sel_hi:[1,0]")
    for r in range(4 * f, 4 * f + 4):
        A(f"v_cvt_pk_bf16_f32 v{pk+r}, v{Ob+2*r}, v{Ob+2*r+1}")
    if f:
        for r in (6, 7):
            A(f"v_cndmask_b32 v{pk+r}, 0, v{pk+r}, s[{sLo}:{sLo+1}]")
    for r in range(4 * f, 4 * f + 4):
        A(f"v_min_u32 v{pk+r}, -2, v{pk+r}")
    A(f"buffer_store_dwordx4 {v(pk+4*f,4)}, v{vL16}, s[{sWS}:{sWS+3}], s{sOt} offen offset:{1024*f} sc1")
A("s_setprio 0")
ts(8)

TILES = list(range(O[0], Of, 4)) + [DEAD, DEAD + 4]
assert len(TILES) >= 42
pk2, rb = Of, Of + 8
sOk = sDone
OOL = []


def wtile(l, ct):
    return TILES[7 * (l % 6) + ct]


def wtext(l, ct):
    a0, a1, off = (vW0, vW1, l * 12544) if l < 6 else (t1, t2, 0) if l == 6 else (t3, t4, 0)
    d = wtile(l, ct)
    return f"""ds_read_b64_tr_b16 {v(d,2)}, v{a0} offset:{off+32*ct}
    ds_read_b64_tr_b16 {v(d+2,2)}, v{a1} offset:{off+32*ct}"""


A.label("L_p3e")
if OPT["ts"] == 5:
    A("s_mov_b32 s11, 1")
tsd(0)
A(f"s_mov_b32 s{sSpin}, 0x40000")
sSl = 14
vXw = [vTw, vLane, vIdx, t5]
for l in range(8):
    A(f"s_add_u32 s{sSl+l}, s{sOin}, {4096*l}")
A.label("L_p3r")
A(f"""s_mov_b32 s{sTk}, 0
v_add_u32 v{t1}, {6*12544}, v{vW0}
v_add_u32 v{t2}, {6*12544}, v{vW1}
v_add_u32 v{t3}, s{sSp}, v{vW0}
v_add_u32 v{t4}, s{sSp}, v{vW1}
s_waitcnt lgkmcnt(0)""")
for i in range(42):
    if i >= 6 and i % 3 == 0:
        A("s_waitcnt lgkmcnt(8)")
    if i == OPT["pp"]:
        A(POLL)
    A(wtext(i // 7, i % 7))
tsd(1)
A("s_branch L_w1")
A.label("L_w0")
if OPT.get("slp"):
    A(f"s_sleep {OPT['slp']}")
A(POLL)
A.label("L_w1")
A(f"""s_sub_u32 s{sSpin}, s{sSpin}, 1
s_cselect_b32 s{sT0}, 0xff, 0
s_cselect_b32 s{sSpin}, 0, s{sSpin}
s_waitcnt vmcnt(0)
v_cmp_ne_u32 vcc, -1, v{vQm}
s_or_b32 s{sTk}, vcc_lo, s{sT0}
s_andn2_b32 s{sT0}, 0xff, s{sTk}
s_cbranch_scc1 L_w0""")
tsd(9)
for l in range(8):
    A(f"buffer_load_dwordx4 {v(Of+4*l,4)}, v{vOa}, s[{sWS}:{sWS+3}], s{sSl+l} offen sc1")
tsd(7)
A(f"""v_mov_b32 v{vFl}, 1
s_add_u32 s{sT1}, s{sOut}, {8*1792}""")
for ct in range(1, 4):
    A(f"v_xor_b32 v{vXw[ct]}, {32*ct}, v{vTw}")
XR_ = {}
HS = OPT.get("hs", 2)


def xspin(kap):
    A(f"""L_xsk{kap}:
    s_sleep {OPT.get("xs", 1)}
    ds_read_b32 v{t0}, v{vMf} offset:{32-16*kap}
    s_sub_u32 s{sSpin}, s{sSpin}, 1
    s_waitcnt lgkmcnt(0)
    s_cbranch_scc1 L_yk{kap}
    v_readfirstlane_b32 s{sT0}, v{t0}
    s_cmp_eq_u32 s{sT0}, 0
    s_cbranch_scc1 L_xsk{kap}
    {XR_[kap]}
    s_branch L_yk{kap}""")


def p3(kap):
    n = f"k{kap}"
    keep = [0, 1, 2, 3] if kap == 0 else [4, 5, 6]
    send = [4, 5, 6] if kap == 0 else [0, 1, 2, 3]
    wa_, ra_ = (vSn, vRw) if kap == 0 else (vRw, vSn)
    rxs = [wtile(2 + i, send[0]) for i in range(len(keep))]
    lg = Cnt("lgkmcnt", 15)

    def mm(l, ct, first):
        lg.wait(f"W{l}_{ct}")
        A(f"v_mfma_f32_16x16x32_bf16 {v(acc+4*ct,4)}, {v(wtile(l,ct),4)}, {v(Of+4*l,4)}, {'0' if first else v(acc+4*ct,4)}")
        if l < 2:
            for x in lines(wtext(6 + l, ct)):
                lg.room()
                A(x)
                lg.issue(f"W{6+l}_{ct}")

    A("s_setprio 1")
    for l in range(8):
        b0 = Of + 4 * l
        A(f"s_waitcnt vmcnt({7-l})" + (" lgkmcnt(0)" if l == 0 else ""))
        if l == 0:
            tsd(2)
        for k, ct in enumerate(send + (keep if l < HS else [])):
            mm(l, ct, l == 0)
            if k < 2:
                A(f"v_max3_u32 v{t0}, v{b0+2*k}, v{b0+2*k+1}, {'0' if l + k == 0 else f'v{t0}'}")
    A(f"v_cmp_eq_u32 vcc, -1, v{t0}")
    side = [f"ds_write_b128 v{wa_}, {v(acc+4*ct,4)} offset:{1024*i}" for i, ct in enumerate(send)]
    side.append(f"ds_write_b32 v{vMf}, v{vFl} offset:{16+16*kap}")
    xrd = [f"ds_read_b32 v{t0}, v{vMf} offset:{32-16*kap}"] + [
        f"ds_read_b128 {v(rxs[i],4)}, v{ra_} offset:{1024*i}" for i in range(len(keep))]
    cnt = 0
    for l in range(HS, 8):
        for k, ct in enumerate(keep):
            mm(l, ct, l == 0)
            cnt += 1
            if cnt == 1:
                A(f"""s_cmp_lg_u64 vcc, 0
                s_cbranch_scc1 L_redo{n}""")
                A.label(f"L_good{n}")
            if l >= 2 and cnt >= 3 and side:
                lg.room()
                A(side.pop(0))
                lg.issue("S")
                if not side:
                    A("s_setprio 0")
            if l == OPT.get("xl7", 7) and k < 3:
                for x in ([xrd[0], xrd[1]], xrd[2:3], xrd[3:])[k]:
                    lg.room()
                    A(x)
                    lg.issue("X")
    OOL.append(f"""L_redo{n}:
    s_sub_u32 s{sSpin}, s{sSpin}, 1
    s_cbranch_scc0 L_p3r
    s_branch L_good{n}""")
    tsd(3)
    ts(9)
    A(f"""s_mov_b32 s{sSpin}, 0x400000
    s_waitcnt lgkmcnt({len(keep)})
    v_readfirstlane_b32 s{sT0}, v{t0}
    s_cmp_eq_u32 s{sT0}, 0
    s_cbranch_scc1 L_xs{n}""")
    XR_[kap] = "\n".join(xrd[1:])
    A.label(f"L_y{n}")
    tsd(4)
    tsa(9)
    wa = vXw
    for i, ct in enumerate(keep):
        A(f"""s_waitcnt lgkmcnt({len(keep)-1})
        v_pk_add_f32 {v(acc+4*ct,2)}, {v(acc+4*ct,2)}, {v(rxs[i],2)}
        v_pk_add_f32 {v(acc+4*ct+2,2)}, {v(acc+4*ct+2,2)}, {v(rxs[i]+2,2)}
        v_cvt_pk_bf16_f32 v{pk2+2*i}, v{acc+4*ct}, v{acc+4*ct+1}
        v_cvt_pk_bf16_f32 v{pk2+2*i+1}, v{acc+4*ct+2}, v{acc+4*ct+3}
        ds_write_b64 v{wa[i]}, {v(pk2+2*i,2)}""")
    os_ = vOs
    OSC = ["", " sc1", " nt", " sc0 sc1", " sc1 nt"][OPT["osc0"] if kap == 0 else OPT["osc"]]
    A(f"""ds_read_b128 {v(rb,4)}, v{vTr}
    ds_read_b128 {v(rb+4,4)}, v{vTr} offset:1024
    s_waitcnt lgkmcnt(1)
    buffer_store_dwordx4 {v(rb,4)}, v{os_}, s[{sOUT}:{sOUT+3}], s{sOut} offen{OSC}
    s_waitcnt lgkmcnt(0)
    buffer_store_dwordx4 {v(rb+4,4)}, v{os_}, s[{sOUT}:{sOUT+3}], s{sT1} offen{OSC}""")


assert Vf[1] == Kf[0] + 24 and O[1] == O[0] + 16
A(f"""s_cmp_eq_u32 s{sKap}, 0
s_cbranch_scc1 L_x0""")
p3(1)
A("s_branch L_noep" if OPT["ts"] or OPT.get("padto") else "s_endpgm")
xspin(1)
A(f"""L_mspin:
ds_read_b32 v{t2}, v{vPl}
s_sub_u32 s{sSpin}, s{sSpin}, 1
s_waitcnt lgkmcnt(0)
s_cbranch_scc1 L_mgo
v_readfirstlane_b32 s{sT0}, v{t2}
s_cmp_eq_u32 s{sT0}, 0
s_cbranch_scc1 L_mspin
s_branch L_mwait""")
A.label("L_x0")
p3(0)
A("s_branch L_noep" if OPT["ts"] or OPT.get("padto") else "s_endpgm")
xspin(0)
if OPT.get("wb"):
    A(f"""s_cmp_lg_u32 s{sw}, 0
    s_cbranch_scc1 L_noep
    s_waitcnt vmcnt(0)
    buffer_wbl2 sc1""")
A.label("L_noep")
if OPT.get("padto"):
    A.label("L_pad")
    A(f"""s_sleep 4
    s_memrealtime s[{sRet}:{sRet+1}]
    s_waitcnt lgkmcnt(0)
    s_sub_u32 s{sT0}, s{sRet}, s{sTS}
    s_cmp_lt_u32 s{sT0}, {OPT["padto"]}
    s_cbranch_scc1 L_pad""")
tsd(5)
tsa(10)
if OPT["ts"] == 6:
    A("s_waitcnt lgkmcnt(0)")
    for i, r in enumerate(ASR):
        A(f"v_writelane_b32 v{vTS}, s{r}, {i+1}")
    A(f"""s_sub_u32 s{sRem}, 0x7fffffff, s{sRem}
    v_writelane_b32 v{vTS}, s{sRem}, 13
    v_writelane_b32 v{vTS}, s19, 14""")
if OPT["ts"]:
    A("s_waitcnt vmcnt(0)")
    ts(10)
    tsd(6)
    ts(12, 6)
    A(f"""s_lshl_b32 s{sT0}, s2, 3
    s_add_u32 s{sT0}, s{sT0}, s{sw}
    s_lshl_b32 s{sT0}, s{sT0}, {8 if OPT["ts"] == 5 else 6}
    s_add_u32 s{sT0}, s{sT0}, {TS_OFF}
    s_getreg_b32 s{sT1}, hwreg(HW_REG_XCC_ID)
    {"s_nop 0" if OPT["ts"] == 5 else f"v_writelane_b32 v{vTS}, s{sT1}, 15"}
    v_lshrrev_b32 v{t0}, 2, v{vL16}
    s_mov_b64 exec, {-1 if OPT["ts"] == 5 else "0xffff"}
    buffer_store_dword v{vTS}, v{t0}, s[{sWS}:{sWS+3}], s{sT0} offen""")
    if OPT.get("dbg"):
        A(f"""v_readlane_b32 s{sT0}, v{vTS}, 0
        s_not_b32 s{sT0}, s{sT0}
        v_writelane_b32 v{vTS}, s{sT0}, 15
        s_mov_b32 s{sX}, s22
        s_mov_b32 s{sX+1}, s23
        s_mov_b32 s{sX+2}, 256
        buffer_atomic_umax v{vTS}, v{t0}, s[{sX}:{sX+3}], 0 offen""")
A.label("L_end")
A("s_endpgm")

for x in OOL:
    A(x)
A.label("L_epoch")
A(f"""s_add_u32 s{sE}, s{sE}, 1
s_lshl_b32 s{sT0}, s{sb}, 8
s_add_u32 s{sT0}, s{sT0}, {EPOCH_OFF}
v_mov_b32 v{t1}, s{sE}
s_mov_b64 exec, 1
buffer_store_dword v{t1}, v{vL16}, s[{sWS}:{sWS+3}], s{sT0} offen sc1
s_mov_b64 exec, -1
s_branch L_epd""")

for name, load, reg, mask in (
        ("L_pollc", f"buffer_load_dword v{vQm}, v{vPc}, s[{sWS}:{sWS+3}], s{sPc} offen sc1", vQm, "0xffff"),
        ("L_polll", poll_text(0xffff), vFl, "0xffff"),
        ("L_pollh", poll_text(0x7fff0000).replace('0x7fff0000', '0xffff0000'), vFl, "0xffff0000")):
    A(f"""{name}:
    s_mov_b32 s{sSpin}, 0x40000
    {name}1:
    {load}
    s_sub_u32 s{sSpin}, s{sSpin}, 1
    s_cbranch_scc1 {name}_done
    s_waitcnt vmcnt(0)
    v_cmp_ne_u32 vcc, s{stag}, v{reg}
    s_and_b32 s{sD1}, vcc_lo, {mask}
    s_cbranch_scc1 {name}1
    s_branch {name}_done""")

A.label("L_slow")
Sx, vMn, vAl, vM = S[2], t2, t3, t4
A(f"""s_mov_b32 s{sChk}, -1
v_lshlrev_b32 v{vBk}, 3, v{vLane}
v_mov_b32 v{vM}, 0xff7fffff
s_mov_b32 s{sT0}, s{sKV}
s_mov_b32 s{sI}, 0""")
for r in range(16):
    A(f"v_mov_b32 v{Ob+r}, 0")
    A(f"v_mov_b32 v{R+r}, 0")
A.label("L_slow_t")
for i in range(4):
    A(f"buffer_load_dwordx2 {v(Kf[0]+2*i,2)}, v{vBk}, s[{sWS}:{sWS+3}], s{sT0} offen offset:{512*i} sc1")
A(f"""buffer_load_dwordx4 {v(Vf[0],4)}, v{vL16}, s[{sWS}:{sWS+3}], s{sT0} offen offset:2048 sc1
buffer_load_dwordx4 {v(Vf[0]+4,4)}, v{vL16}, s[{sWS}:{sWS+3}], s{sT0} offen offset:3072 sc1
s_add_u32 s{sT0}, s{sT0}, 4096
s_waitcnt vmcnt(0)
v_mfma_f32_32x32x16_bf16 {v(Sx,16)}, {v(Kf[0],4)}, {v(Q[1],4)}, 0
v_mfma_f32_32x32x16_bf16 {v(Sx,16)}, {v(Kf[0]+4,4)}, {v(Q[1]+4,4)}, {v(Sx,16)}
v_max3_f32 v{t0}, v{Sx}, v{Sx+1}, v{vM}""")
for r in range(2, 16, 2):
    A(f"v_max3_f32 v{t0}, v{Sx+r}, v{Sx+r+1}, v{t0}")
A(f"""v_mov_b32 v{t1}, v{t0}
v_permlane32_swap_b32 v{t0}, v{t1}
v_max_f32 v{vMn}, v{t0}, v{t1}
v_sub_f32 v{vAl}, v{vM}, v{vMn}
v_exp_f32 v{vAl}, v{vAl}
v_mov_b32 v{vM}, v{vMn}""")
for r in range(16):
    A(f"v_sub_f32 v{Sx+r}, v{Sx+r}, v{vMn}")
for r in range(16):
    A(f"v_exp_f32 v{Sx+r}, v{Sx+r}")
for r in range(16):
    A(f"v_mul_f32 v{Ob+r}, v{vAl}, v{Ob+r}")
A(f"""v_smfmac_f32_32x32x32_bf16 {v(Ob,16)}, {v(Vf[0],4)}, {v(Sx,8)}, v{vIdx}
v_smfmac_f32_32x32x32_bf16 {v(Ob,16)}, {v(Vf[0]+4,4)}, {v(Sx+8,8)}, v{vIdx}
s_add_u32 s{sI}, s{sI}, 1
s_cmp_lt_u32 s{sI}, 64
s_cbranch_scc1 L_slow_t
s_nop 11
s_branch L_norm""")

n = A.fix_hazards(verbose=bool(OPT.get("v", 0)))
NV = -(-V.hi // 8) * 8
hdr = open("cdna_kernels/" + NAME + ".s.ref").read().split("; Override launch")[0]
out = hdr + f"""; One fused launch: QKV projection -> softmax attention -> output projection.
; Workgroup = (branch b, head h, 256-token block j), 8 waves; all 256 workgroups are co-resident (one per CU).
;  P1  every workgroup projects Q of its head and one 64-column line of K or V for its tokens and publishes
;      K/V as MFMA fragments in d_ws (write-through stores, then a flag that carries this launch's tag).
;  P2  attention, 64 queries x half of the keys per wave: S^T = K Q^T (+ a constant), P = exp2(S^T), O^T += V^T P
;      with the 2:4 sparse MFMA, whose index picks the bf16 high halves of the fp32 P registers; a ones row in
;      V^T gives the row sums.  Softmax guard: the constant stands in for the row max; it is exact as long as
;      every row sum stays within 2^+-60 of it, which is checked at run time, and otherwise the tile is redone
;      at L_slow by an online softmax with the true running max.
;  P3  O tiles are exchanged through d_ws (pre-filled with a pattern the data cannot take) and multiplied by Wo.
; The tag is derived from a word in d_ws that the launch advances, so stale flags never match.
; Every wait on another workgroup is bounded.  Written by a generator script (gen.py).
; @launch grid=(256,1,1) block=(512,1,1) lds={LDS_BYTES}
.amdgcn_target "amdgcn-amd-amdhsa--gfx950"
.text
.globl {NAME}_kernel
.p2align 8
.type {NAME}_kernel,@function
""" + A.text().replace("CODE_SPAN", "L_slow-L_nopf") + f""".section .rodata,"a"
.p2align 6
.amdhsa_kernel {NAME}_kernel
  .amdhsa_next_free_vgpr {NV}
  .amdhsa_next_free_sgpr {NSGPR}
  .amdhsa_accum_offset {NV}
  .amdhsa_group_segment_fixed_size 0
  .amdhsa_kernarg_size 72
  .amdhsa_user_sgpr_count 2
  .amdhsa_user_sgpr_kernarg_segment_ptr 1
  .amdhsa_system_sgpr_workgroup_id_x 1
.end_amdhsa_kernel
"""
open(sys.argv[1], "w").write(out)
print(f"wrote {sys.argv[1]}: {len(A.lines)} lines, {n} nops inserted, {NV} vgprs", file=sys.stderr)
```

```python
import sys, struct, math
from asmlib import Asm, Alloc, v, s

NAME = "concat_heads__softmax_full_mha__softmax_full_mha__prompt"

OPT = dict(ts=0, force_slow=0, rot=2, map=1, pf=1, pq=18, tq=5, fq=0, padg=14, pubw=1, pseg=7, bs=3, npro=0, pp=33, tou=0,
           osc=1, nw0=4, na=2, n1=2, cg=23, xl=4, wqe=0, wqd=2, wqf=0, nb=10, lf=2, yp=0, tch=0, b0=1, lseg=1, reo=1, z0=24, dsl=1, c0=1, off=8, hf=1, gb=12, qo=0, x3=0, yl=2, xe=0, ql=4, nw1=0, rotc=1, osc0=1, cnt=0, o4=0, r4=7, l2e=0, pe=0, sb=2)
for a in sys.argv[2:]:
    k, val = a.split("=")
    OPT[k] = int(val)

FLAG_OFF = 0xD00000
ES = OPT.get("es", 7)
FS = OPT.get("fs", 16 << ES)
HINT = 0x80000
EPOCH_OFF = 0x10000
TS_OFF = 0x20000
KV_OFF = 0x100000
O_OFF = 0x900000
WS_BYTES = 0x1000000
OOB = 0x40000000

XS = 32768
WL = 98304
WQ = 0
CNT = 28800
QOLD = 155648
WOB = 66944
WO15 = 32768
MISC = 161280
SND = 16384
LDS_BYTES = 163840

CSCALE = math.log2(math.e) / math.sqrt(28.0)
SHIFT = OPT['off'] + [0, 4, 2, -4, 1][OPT['c0']]
L_LO = (127 - 60 + SHIFT) << 23
L_RANGE = 120 << 23


def f2u(x):
    return struct.unpack("<I", struct.pack("<f", x))[0]


NTX = " nt" if OPT.get("ntx") else ""
NTW = " nt" if OPT.get("ntw") else ""
OSC = ["", " sc1", " nt", " sc0 sc1", " sc1 nt"][OPT.get("osc", 3)]
C0 = ["0", "4.0", "2.0", "-4.0", "1.0"][OPT.get("c0", 0)]
TL = OPT.get("tl", 0)
A = Asm()
sWm, sWm13 = 26, 27
sX, sW, sWS, sWO, sOUT = 28, 32, 36, 40, 44
sw, sb, sh, sj, stag, sE = 48, 49, 50, 51, 52, 53
sCx, sXb, sWb, sMX, sMW, sCw = 54, 55, 56, 57, 58, 59
sT0, sT1, sT2, sT3 = 60, 61, 62, 63
sLo = 64
sLine, sRole = 66, 67
sHo = 10
sCg = 9
sWb0, sSp = 12, 13
sLpx = 8
sKV = 68
sMXs, sWq = 69, 70
sI, sRel, sWn, sHH = 71, 72, 73, 74
sSpin = 75
sOt = 76
sWoff = 77
sKap = 78
sFl = 79
sTS = 80
sRet = 82
sDone, sTodo = 84, 85
sOin = 86
sPc = 87
sOut = 88
sChk = 89
sCs = 90
sKVt = 92
sD0, sD1 = 93, 94
sPend, sRem = 95, 96
sOp = 97
sRdy = 98
sHi, sPl, sC0, sMQ = 4, 5, 6, 7
sCq, sNone = 3, 100
NSGPR = 102


JN = [0]


def ts(idx, grp=1):
    if OPT.get("jit"):
        JN[0] += 1
        A(f"""s_lshl_b32 s{sTS}, s2, 3
        s_add_u32 s{sTS}, s{sTS}, s{sw}
        s_add_u32 s{sTS}, s{sTS}, {OPT["jit"] * 7919 + JN[0] * 104729}
        s_mul_i32 s{sTS}, s{sTS}, 0x9e3779b1
        s_lshr_b32 s{sTS+1}, s{sTS}, 15
        s_xor_b32 s{sTS}, s{sTS}, s{sTS+1}
        s_mul_i32 s{sTS}, s{sTS}, 0x85ebca6b
        s_lshr_b32 s{sTS}, s{sTS}, 26
        s_sub_u32 s{sTS}, s{sTS}, 48
        s_cbranch_scc1 L_jd{JN[0]}
        L_jl{JN[0]}:
        s_sleep {OPT.get("jsl", 12)}
        s_sub_u32 s{sTS}, s{sTS}, 1
        s_cbranch_scc0 L_jl{JN[0]}
        L_jd{JN[0]}:""")
    if OPT.get("padat") == 100 * grp + idx:
        A(f"s_memrealtime s[{sTS}:{sTS+1}]\ns_waitcnt lgkmcnt(0)")
    if not OPT["ts"] or (idx != 0 and OPT["ts"] != grp):
        return
    A(f"""{"s_memtime" if OPT.get("clk") else "s_memrealtime"} s[{sTS}:{sTS+1}]
    s_waitcnt lgkmcnt(0)
    v_writelane_b32 v{vTS}, s{sTS}, {idx}""")


def tsd(code, val=0):
    if OPT.get("jit"):
        ts(15, 9)
    A(tsdt(code, val))


def tsdt(code, val=0):
    if OPT["ts"] != 5:
        return ""
    return (f"""s_memrealtime s[{sTS}:{sTS+1}]
    s_waitcnt lgkmcnt(0)
    s_lshl_b32 s{sTS}, s{sTS}, 8
    s_or_b32 s{sTS}, s{sTS}, {code << 4}
    s_or_b32 s{sTS}, s{sTS}, {val}
    s_mov_b32 m0, s11
    v_writelane_b32 v{vTS}, s{sTS}, m0
    s_add_u32 s11, s11, 1
    s_min_u32 s11, s11, 63""")


ASR = [20, 22, 54, 56, 58, 68, 66, 72, 90, 26, 6]


def tsa(i):
    if OPT["ts"] == 6:
        A(f"s_memrealtime s[{ASR[i]}:{ASR[i]+1}]")


class Cnt:
    def __init__(self, name, cap):
        self.name, self.cap, self.q = name, cap, []

    def room(self):
        if len(self.q) >= self.cap:
            A(f"s_waitcnt {self.name}({self.cap - 4})")
            self.q = self.q[len(self.q) - (self.cap - 4):]

    def issue(self, tag, n=1):
        self.q += [tag] * n
        assert len(self.q) <= self.cap, (self.name, self.q)

    def wait(self, *tags):
        idx = [i for i, t in enumerate(self.q) if t in tags]
        if idx:
            n = len(self.q) - 1 - idx[-1]
            A(f"s_waitcnt {self.name}({n})")
            self.q = self.q[idx[-1] + 1:]


def lines(text):
    return [x.strip() for x in text.split("\n") if x.strip()]


def emit(lst, n):
    for _ in range(min(n, len(lst))):
        A(lst.pop(0))


V = Alloc(1, 256)
vLane = V()
vTS = V()
vL16 = V()
vIdx = V()
vT = [V() for _ in range(6)]
t0, t1, t2, t3, t4, t5 = vT
vQm = V()
DEAD = V(8)
vQw, vQr, vBase, vCur, vWod, vPl, vPc, vBk = range(DEAD, DEAD + 8)
vOa, vW0, vW1, vSn, vRw, vMf, vTw, vTr, vOs, vOs2, vLp = [V() for _ in range(11)]
vTag = V()
vTag2 = V()
vFl = V(2)
m_ph = V.mark()
Xr = V(112)
acc0, acc1 = V(16), V(16)
Wf = V(24)
accQ = V(16)
Wg = V(12)
vXd = [V() for _ in range(4)]
vWd, vWd2 = V(), V()
vWq = V()
vXa = [V() for _ in range(4)]
vWr = [V(), V()]
vWqr = V()
vSt = [V() for _ in range(4)]
vP = [V()]
vPd = V(4)
vOnes = accQ
V.reset(m_ph)
O = [V(16), V(16)]
Q = [V(8), V(8)]
S = [V(16) for _ in range(4)]
Kf = [V(8), V(8)]
Vf = [V(8), V(8)]
pk, pq = V(8), V(8)
Of = V(32)
acc = V(28)
assert O[0] == Xr and WQ == 0

A.label(NAME + "_kernel")
A(f"""s_cmp_ge_u32 s2, 256
s_cbranch_scc1 L_end
s_load_dwordx16 s[8:23], s[0:1], 0
s_load_dwordx2 s[24:25], s[0:1], 64
v_lshrrev_b32 v{t0}, 6, v0
v_and_b32 v{vLane}, 63, v0
v_readfirstlane_b32 s{sw}, v{t0}
v_lshlrev_b32 v{vL16}, 4, v{vLane}""")
if OPT.get("padto"):
    A(f"s_memrealtime s[{sTS}:{sTS+1}]")
if OPT["ts"]:
    A(f"""{"s_memtime" if OPT.get("clk") else "s_memrealtime"} s[{sTS}:{sTS+1}]
    v_mov_b32 v{vTS}, 0""")
if OPT["map"] == 1:
    A(f"""s_and_b32 s{sT0}, s2, 7
    s_lshr_b32 s{sT1}, s2, 3
    s_and_b32 s{sj}, s{sT1}, 7
    s_lshr_b32 s{sT1}, s{sT1}, 3
    s_lshl_b32 s{sT0}, s{sT0}, 2
    s_add_u32 s{sHH}, s{sT0}, s{sT1}""")
elif OPT["map"] == 2:
    A(f"""s_and_b32 s{sT0}, s2, 7
    s_lshr_b32 s{sT1}, s2, 3
    s_and_b32 s{sT2}, s{sT0}, 3
    s_lshl_b32 s{sT2}, s{sT2}, 1
    s_lshr_b32 s{sT3}, s{sT1}, 4
    s_add_u32 s{sj}, s{sT2}, s{sT3}
    s_lshr_b32 s{sT0}, s{sT0}, 2
    s_lshl_b32 s{sT0}, s{sT0}, 4
    s_and_b32 s{sT1}, s{sT1}, 15
    s_add_u32 s{sHH}, s{sT0}, s{sT1}""")
elif OPT["map"] == 3:
    A(f"""s_and_b32 s{sT0}, s2, 7
    s_lshr_b32 s{sT1}, s2, 3
    s_and_b32 s{sT2}, s{sT0}, 1
    s_lshl_b32 s{sT2}, s{sT2}, 2
    s_lshr_b32 s{sT3}, s{sT1}, 3
    s_add_u32 s{sj}, s{sT2}, s{sT3}
    s_lshr_b32 s{sT0}, s{sT0}, 1
    s_lshl_b32 s{sT0}, s{sT0}, 3
    s_and_b32 s{sT1}, s{sT1}, 7
    s_add_u32 s{sHH}, s{sT0}, s{sT1}""")
A(f"""s_lshr_b32 s{sb}, s{sHH}, 4
s_and_b32 s{sh}, s{sHH}, 15
s_lshr_b32 s{sKap}, s{sw}, 2""")
XCALC = (f"""s_cmp_gt_u32 s{sh}, 7
s_cselect_b32 s{sRole}, 1, 0
s_cselect_b32 s{sT0}, 16, 1
s_cselect_b32 s{sT1}, 1, 2
s_cselect_b32 s{sT2}, 2, 8
s_cselect_b32 s{sT3}, 8, 16
v_bfe_u32 v{t0}, v{vLane}, 3, 1
v_mul_u32_u24 v{t0}, s{sT0}, v{t0}
v_bfe_u32 v{t1}, v{vLane}, 4, 1
v_mad_u32_u24 v{t0}, v{t1}, s{sT1}, v{t0}
v_lshrrev_b32 v{t1}, 5, v{vLane}
v_lshl_add_u32 v{t0}, v{t1}, 2, v{t0}
v_mul_u32_u24 v{t3}, 896, v{t0}
s_mul_i32 s{sT2}, s{sT2}, 896
s_mul_i32 s{sT3}, s{sT3}, 896
s_sub_u32 s{sT2}, s{sT2}, 1024
s_sub_u32 s{sT3}, s{sT3}, 2048
v_lshrrev_b32 v{t1}, 4, v{vLane}
v_and_b32 v{t2}, 7, v{vLane}
v_xor_b32 v{t1}, v{t1}, v{t2}
v_lshl_add_u32 v{vXd[0]}, v{t1}, 4, v{t3}
v_xor_b32 v{t1}, 4, v{t1}
v_lshl_add_u32 v{t1}, v{t1}, 4, v{t3}
v_add_u32 v{vXd[1]}, s{sT2}, v{t1}
v_add_u32 v{vXd[2]}, s{sT3}, v{vXd[0]}
v_add_u32 v{vXd[3]}, s{sT3}, v{vXd[1]}
s_lshl_b32 s{sT0}, s{sj}, 3
s_add_u32 s{sT0}, s{sT0}, s{sw}
s_mul_i32 s{sXb}, s{sT0}, {32*896}
s_lshl_b32 s{sMX}, s{sw}, 12
s_lshl_b32 s{sT0}, s{sKap}, 14
s_add_u32 s{sMXs}, s{sMX}, s{sT0}
s_add_u32 s{sMXs}, s{sMXs}, {XS}
s_lshl_b32 s{sCx}, s{sC0}, 7
s_mov_b32 s{sX+2}, {2048*896}
s_mov_b32 s{sX+3}, 0x20000""")
if OPT["rot"] == 0:
    A(f"s_mov_b32 s{sC0}, 0")
else:
    if OPT["rot"] == 1:
        A(f"s_add_u32 s{sC0}, s{sh}, s{sj}")
    elif OPT["rot"] == 2:
        A(f"""s_mul_i32 s{sC0}, s{sh}, 7
        s_lshr_b32 s{sC0}, s{sC0}, 4
        s_add_u32 s{sC0}, s{sC0}, s{sj}""")
    elif OPT["rot"] == 4:
        A(f"""s_lshr_b32 s{sC0}, s{sh}, 2
        s_lshl_b32 s{sC0}, s{sC0}, 1
        s_add_u32 s{sC0}, s{sC0}, s{sj}""")
    elif OPT["rot"] == 5:
        A(f"""s_lshr_b32 s{sC0}, s{sh}, 2
        s_lshl_b32 s{sC0}, s{sC0}, 1
        s_and_b32 s{sT1}, s{sj}, 1
        s_lshl_b32 s{sT1}, s{sT1}, 2
        s_add_u32 s{sC0}, s{sC0}, s{sT1}""")
    elif OPT["rot"] == 3:
        A(f"""s_mul_i32 s{sC0}, s{sh}, 7
        s_lshr_b32 s{sC0}, s{sC0}, 4""")
    A(f"""s_mul_i32 s{sT1}, s{sC0}, 37
    s_lshr_b32 s{sT1}, s{sT1}, 8
    s_mul_i32 s{sT1}, s{sT1}, 7
    s_sub_u32 s{sC0}, s{sC0}, s{sT1}""")
PF = f"""s_and_b32 s{sT0}, s2, 0xf8
s_add_u32 s{sT0}, s{sT0}, s{sw}
s_mul_i32 s{sT0}, s{sT0}, 192
s_getpc_b64 s[{sRet}:{sRet+1}]
L_nopf:
v_and_b32 v{t4}, 0x80, v{vL16}
v_add_u32 v{t4}, s{sT0}, v{t4}
v_min_u32 v{t4}, CODE_SPAN, v{t4}
global_load_dword v{t5}, v{t4}, s[{sRet}:{sRet+1}]"""
if OPT["pf"] == 1:
    A(PF)
SEL = f"""s_cmp_eq_u32 s{sb}, 0
s_waitcnt lgkmcnt(0)
s_cselect_b32 s{sX}, s8, s14
s_cselect_b32 s{sX+1}, s9, s15
s_cselect_b32 s{sW}, s10, s16
s_cselect_b32 s{sW+1}, s11, s17
s_cselect_b32 s{sWO}, s12, s18
s_cselect_b32 s{sWO+1}, s13, s19
{f"v_writelane_b32 v{vTS}, s{sTS}, 0" if OPT["ts"] else ""}"""


def x_pieces(c, slot=None):
    p = [f"""s_add_u32 m0, s{sMXs}, {(c % 2 if slot is None else slot) * 16384}
    s_add_u32 s{sD0}, s{sCx}, s{sXb}
    buffer_load_dwordx4 v{vXd[0]}, s[{sX}:{sX+3}], s{sD0} offen{NTX} lds
    s_add_u32 s{sCx}, s{sCx}, 128
    s_cmp_eq_u32 s{sCx}, 896
    s_cselect_b32 s{sCx}, 0, s{sCx}"""]
    for i in range(1, 4):
        p.append(f"buffer_load_dwordx4 v{vXd[i]}, s[{sX}:{sX+3}], s{sD0} offen offset:{1024*i}{NTX} lds")
    return [(x, f"X{c}") for x in p]


def w_pieces(it):
    return [(f"""s_add_u32 m0, s{sMW}, {it*8192}
    s_add_u32 s{sD1}, s{sCw}, s{sWb}
    buffer_load_dwordx4 v{vWd}, s[{sW}:{sW+3}], s{sD1} offen lds
    s_add_u32 s{sCw}, s{sCw}, {64*2688}
    s_cmp_eq_u32 s{sCw}, {448*2688}
    s_cselect_b32 s{sCw}, 0, s{sCw}""", f"W{it}"),
            (f"buffer_load_dwordx4 v{vWd2}, s[{sW}:{sW+3}], s{sD1} offen offset:1024 lds", f"W{it}")]


def wq_piece(i):
    return (f"""s_add_u32 m0, s{sMQ}, {i*4096}
    s_add_u32 s{sD1}, s{sCq}, s{sWq}
    buffer_load_dwordx4 v{vWq}, s[{sW}:{sW+3}], s{sD1} offen lds
    s_add_u32 s{sCq}, s{sCq}, {64*2688}
    s_cmp_eq_u32 s{sCq}, {448*2688}
    s_cselect_b32 s{sCq}, 0, s{sCq}""", "WQ")


WCALC = f"""s_mov_b32 s{sW+2}, {448*2688}
s_mov_b32 s{sW+3}, 0x20000
s_cmp_gt_u32 s{sh}, 6
s_subb_u32 s{sLine}, s{sh}, 0
s_cmp_gt_u32 s{sh}, 9
s_subb_u32 s{sLine}, s{sLine}, 0
s_lshl_b32 s{sWb}, s{sLine}, 7
s_cmp_ge_u32 s{sLine}, 7
s_cselect_b32 s{sT0}, 7, 0
s_sub_u32 s{sLine}, s{sLine}, s{sT0}
s_and_b32 s{sT1}, s{sw}, 3
s_mul_i32 s{sT0}, s{sT1}, {16*2688}
s_add_u32 s{sWb}, s{sWb}, s{sT0}
s_add_u32 s{sWb}, s{sWb}, 896
s_mul_i32 s{sCw}, s{sC0}, {64*2688}
s_lshl_b32 s{sMW}, s{sT1}, 11
s_add_u32 s{sMW}, s{sMW}, {WL}
v_lshrrev_b32 v{t0}, 3, v{vLane}
v_mul_u32_u24 v{t0}, 2688, v{t0}
v_bfe_u32 v{t1}, v{vLane}, 4, 1
v_lshlrev_b32 v{t1}, 2, v{t1}
v_and_b32 v{t2}, 7, v{vLane}
v_xor_b32 v{t1}, v{t1}, v{t2}
v_lshl_add_u32 v{vWd}, v{t1}, 4, v{t0}
v_add_u32 v{vWd2}, {8*2688-1024}, v{vWd}"""
NW0 = OPT["nw0"]
A(f"""s_lshr_b32 s{sNone}, 0x240, s{sh}
s_and_b32 s{sNone}, s{sNone}, 1
s_cmp_gt_u32 s{sKap}, s{sNone}
s_cbranch_scc1 L_wfirst""")
A(XCALC)
A(SEL)
for p, _ in x_pieces(0) + x_pieces(1):
    A(p)
ts(1, 2)
A(WCALC)
A("s_branch L_now")
A.label("L_wfirst")
A(WCALC)
A(SEL)
for it in range(NW0):
    for p, _ in w_pieces(it):
        A(p)
ts(1, 2)
A(XCALC)
TOUCH = f"""v_lshrrev_b32 v{t0}, 3, v{vLane}
v_and_b32 v{t1}, 7, v{vLane}
v_min_u32 v{t1}, 6, v{t1}
v_lshlrev_b32 v{t1}, 7, v{t1}
s_and_b32 s{sT1}, s{sw}, 3
s_lshl_b32 s{sT0}, s{sh}, 2
s_add_u32 s{sT0}, s{sT0}, s{sT1}
s_lshl_b32 s{sT2}, s{sj}, 7
s_add_u32 s{sT2}, s{sT2}, s{sT0}
s_add_u32 s{sT2}, s{sT2}, 64
s_mul_i32 s{sT2}, s{sT2}, {2*896}
s_movk_i32 s{sT3}, 896
v_mad_u32_u24 v{t3}, v{t0}, s{sT3}, v{t1}
s_lshl_b32 s{sT0}, s{sT0}, 3
s_add_u32 s{sT0}, s{sT0}, s{sj}
s_mul_i32 s{sT0}, s{sT0}, 2688
s_mov_b64 exec, 0xffff
buffer_load_dword v{t5}, v{t3}, s[{sX}:{sX+3}], s{sT2} offen
s_mov_b64 exec, 0xff
buffer_load_dword v{t5}, v{t1}, s[{sW}:{sW+3}], s{sT0} offen
s_mov_b64 exec, -1"""
if OPT["tch"] == 1:
    A(TOUCH)
A.label("L_now")

EARLY = lines(f"""s_lshl_b32 s{sT0}, s{sb}, 8
s_add_u32 s{sT0}, s{sT0}, {EPOCH_OFF}
s_load_dword s{sE}, s[24:25], s{sT0}
v_lshrrev_b32 v{t2}, 5, v{vLane}
v_and_b32 v{t0}, 31, v{vLane}
v_bfe_u32 v{t1}, v{vLane}, 1, 3
v_xor_b32 v{t1}, v{t1}, v{t2}
v_lshlrev_b32 v{t0}, 7, v{t0}
v_add_u32 v{t0}, s{sMXs}, v{t0}""")
for sst in range(4):
    EARLY += lines(f"""v_xor_b32 v{t3}, {2*sst}, v{t1}
    v_lshl_add_u32 v{vXa[sst]}, v{t3}, 4, v{t0}""")
EARLY += lines(f"""v_bfe_u32 v{t1}, v{vLane}, 2, 2
v_lshl_add_u32 v{t0}, v{t2}, 3, v{t1}
v_bfe_u32 v{t3}, v{vLane}, 4, 1
v_and_b32 v{t4}, 3, v{vLane}
v_lshlrev_b32 v{t4}, 3, v{t4}
v_lshl_add_u32 v{t4}, v{t3}, 5, v{t4}
v_lshl_add_u32 v{vWqr}, v{t0}, 6, v{t4}
v_lshl_add_u32 v{t4}, v{t0}, 7, v{t4}
v_lshrrev_b32 v{t1}, 1, v{t1}
v_lshl_add_u32 v{t4}, v{t1}, 6, v{t4}
v_add_u32 v{vWr[0]}, {WL}, v{t4}
v_xor_b32 v{vWr[1]}, 64, v{vWr[0]}""")
if OPT["cnt"]:
    EARLY += lines(f"""v_mov_b32 v{vQm}, {CNT}
    v_mov_b32 v{vFl}, 0
    v_mov_b32 v{vFl+1}, 0
    ds_write_b64 v{vQm}, {v(vFl,2)}
    v_mov_b32 v{vFl+1}, 1""")

MID = lines(f"""s_and_b32 s{sT0}, s{sh}, 1
s_lshl_b32 s{sT0}, s{sT0}, 3
s_add_u32 s{sT0}, s{sT0}, {WQ}
v_add_u32 v{vWqr}, s{sT0}, v{vWqr}
s_mul_i32 s{sWq}, s{sh}, 56
s_and_b32 s{sWq}, s{sWq}, 0xfffffff0
s_and_b32 s{sT0}, s{sw}, 3
s_lshl_b32 s{sMQ}, s{sT0}, 10
s_mul_i32 s{sT0}, s{sT0}, {16*2688}
s_add_u32 s{sWq}, s{sWq}, s{sT0}
s_mul_i32 s{sCq}, s{sC0}, {64*2688}
v_lshrrev_b32 v{t0}, 2, v{vLane}
v_mul_u32_u24 v{t0}, 2688, v{t0}
v_and_b32 v{t1}, 3, v{vLane}
v_lshl_add_u32 v{vWq}, v{t1}, 4, v{t0}""")
MID += lines(f"""s_mov_b32 s{sWS}, s24
s_mov_b32 s{sWS+1}, s25
s_mov_b32 s{sWS+2}, {WS_BYTES}
s_mov_b32 s{sWS+3}, 0x20000
s_lshl_b32 s{sKVt}, s{sb}, 22
s_lshl_b32 s{sRel}, s{sj}, {14 if TL else 15}
s_add_u32 s{sRel}, s{sRel}, s{sMX}
s_mul_i32 s{sT0}, s{sKap}, {0x20000 - 0x4000 if TL else 0}
s_add_u32 s{sRel}, s{sRel}, s{sT0}
s_add_u32 s{sKVt}, s{sKVt}, s{sRel}
s_add_u32 s{sKVt}, s{sKVt}, {KV_OFF}
s_and_b32 s{sT0}, s{sw}, 3
s_lshl_b32 s{sT0}, s{sT0}, 1
s_lshl_b32 s{sT1}, s{sb}, 3
s_add_u32 s{sT1}, s{sT1}, s{sj}
s_lshl_b32 s{sT1}, s{sT1}, 3
s_add_u32 s{sT0}, s{sT0}, s{sT1}
s_lshl_b32 s{sT0}, s{sT0}, 4
s_add_u32 s{sT0}, s{sT0}, s{sh}
s_lshl_b32 s{sOp}, s{sT0}, 11
s_add_u32 s{sOp}, s{sOp}, {O_OFF}
s_lshl_b32 s{sOt}, s{sKap}, 15
s_add_u32 s{sOt}, s{sOt}, s{sOp}
v_mov_b32 v{vPd}, {0x3f80 if OPT["off"] else 0}
v_mov_b32 v{vPd+1}, 0
v_mov_b32 v{vPd+2}, {0x3f80 if OPT["off"] else 0}
v_mov_b32 v{vPd+3}, 0
s_add_u32 s{sFl}, s{sT1}, s{sw}
s_mul_i32 s{sFl}, s{sFl}, {FS}
s_lshl_b32 s{sT0}, s{sh}, {ES}
s_add_u32 s{sFl}, s{sFl}, s{sT0}
s_add_u32 s{sFl}, s{sFl}, {FLAG_OFF}""")
LATE = lines(f"""s_lshl_b32 s{sPl}, s{sb}, 6
s_and_b32 s{sT1}, s{sw}, 3
s_add_u32 s{sPl}, s{sPl}, s{sT1}
s_mul_i32 s{sPl}, s{sPl}, {FS}
s_add_u32 s{sPl}, s{sPl}, {FLAG_OFF}
{[f"s_mov_b32 s{sT0}, s{sj}", f"s_mov_b32 s{sT0}, 0", f"s_lshl_b32 s{sT0}, s{sh}, 1", f"s_and_b32 s{sT0}, s{sj}, 4", f"s_and_b32 s{sT0}, s{sj}, 6"][OPT["sb"]]}
s_add_u32 s{sT0}, s{sT0}, s{sKap}
s_and_b32 s{sT0}, s{sT0}, 7
s_lshl_b32 s{sRel}, s{sT0}, {14 if TL else 15}
s_lshl_b32 s{sT1}, s{sT1}, 12
s_add_u32 s{sRel}, s{sRel}, s{sT1}
v_bfe_u32 v{t3}, v{vLane}, 2, 2
v_lshl_add_u32 v{t3}, v{t3}, 1, s{sT0}
v_lshrrev_b32 v{t1}, 5, v{vLane}
v_add_u32 v{t3}, v{t3}, v{t1}
v_and_b32 v{t3}, 7, v{t3}
v_bfe_u32 v{t1}, v{vLane}, 4, 1
v_lshl_add_u32 v{t3}, v{t3}, 1, v{t1}
v_mul_u32_u24 v{t3}, {4*FS}, v{t3}
s_mul_i32 s{sT0}, s{sh}, 28
s_add_u32 s{sT1}, s{sT0}, 27
s_lshr_b32 s{sT0}, s{sT0}, 6
s_lshr_b32 s{sT1}, s{sT1}, 6
s_sub_u32 s{sT1}, s{sT1}, s{sT0}
v_and_b32 v{t0}, 1, v{vLane}
v_mul_u32_u24 v{t0}, s{sT1}, v{t0}
v_add_u32 v{t0}, s{sT0}, v{t0}
v_bfe_u32 v{t1}, v{vLane}, 1, 1
v_mad_u32_u24 v{t0}, v{t1}, 7, v{t0}
v_add_u32 v{t4}, 10, v{t0}
v_lshrrev_b32 v{t4}, 4, v{t4}
v_lshrrev_b32 v{t2}, 3, v{t0}
v_add3_u32 v{t0}, v{t0}, v{t4}, v{t2}
s_sub_u32 s{sT2}, s{sT1}, 1
s_and_b32 s{sT2}, s{sT2}, 0xaaaaaaaa
s_mov_b32 s{sT3}, s{sT2}
v_mad_u32_u24 v{t1}, v{t1}, 3, 6
v_cndmask_b32 v{t0}, v{t0}, v{t1}, s[{sT2}:{sT3}]
v_lshl_add_u32 v{vPl}, v{t0}, {ES}, v{t3}
s_lshl_b32 s{sKV}, s{sHH}, 18
s_add_u32 s{sKV}, s{sKV}, {KV_OFF}
s_mov_b32 s{sDone}, s{sKap}""")
LATE += lines(f"""s_mov_b32 s{sLo}, -1
s_mov_b32 s{sLo+1}, 0
s_mov_b32 s{sCs}, {hex(f2u(CSCALE))}
s_mov_b32 s{sCs+1}, {hex(f2u(CSCALE))}
s_and_b32 s{sT1}, s{sw}, 3
v_mov_b32 v{vIdx}, 0xdddddddd
s_or_b32 s{sT2}, s{sT1}, 1
s_add_u32 s{sT0}, s{sT1}, s{sT2}
s_lshl_b32 s{sT0}, s{sT0}, 11
s_add_u32 s{sT0}, s{sT0}, {XS+32768}
s_lshl_b32 s{sT2}, s{sT1}, 11
s_add_u32 s{sT2}, s{sT2}, {QOLD}
s_sub_u32 s{sT0}, s{sT0}, s{sT2}
s_mul_i32 s{sT0}, s{sT0}, s{sKap}
s_add_u32 s{sT0}, s{sT0}, s{sT2}
v_and_b32 v{t0}, 1, v{vLane}
v_lshlrev_b32 v{t0}, 4, v{t0}
v_bfe_u32 v{t1}, v{vLane}, 4, 1
v_lshl_add_u32 v{t0}, v{t1}, 3, v{t0}
v_bfe_u32 v{t1}, v{vLane}, 3, 1
v_lshl_add_u32 v{t0}, v{t1}, 1, v{t0}
v_bfe_u32 v{t1}, v{vLane}, 1, 1
v_add_u32 v{t0}, v{t0}, v{t1}
v_and_b32 v{t1}, 0x24, v{vLane}
v_add_u32 v{t0}, v{t0}, v{t1}
v_sub_u32 v{t0}, v{t0}, v{vLane}
v_mul_lo_u32 v{t0}, v{t0}, s{sRole}
v_add_u32 v{t0}, v{t0}, v{vLane}
v_lshl_add_u32 v{vQw}, v{t0}, 4, s{sT0}
s_lshr_b32 s{sT3}, s{sT1}, 1
s_and_b32 s{sT2}, s{sT1}, 1
s_add_u32 s{sT0}, s{sT3}, 12
s_lshl_b32 s{sT2}, s{sT2}, s{sT0}
s_mul_i32 s{sT3}, s{sT3}, {(XS+32768+2048-QOLD) & 0xffffffff}
s_add_u32 s{sT2}, s{sT2}, s{sT3}
s_add_u32 s{sT2}, s{sT2}, {QOLD}
s_lshl_b32 s{sT0}, s{sKap}, 11
s_sub_u32 s{sT3}, s{sT2}, s{sT0}
s_add_u32 s{sT2}, s{sT2}, s{sT0}
v_add_u32 v{vQr}, s{sT3}, v{vL16}
v_add_u32 v{vOs2}, s{sT2}, v{vL16}
s_lshl_b32 s{sT0}, s{sKap}, 14
v_add_u32 v{vBase}, s{sT0}, v{vL16}
v_add_u32 v{vCur}, 0x10000, v{vBase}
v_lshl_add_u32 v{vBk}, v{vLane}, 3, s{sT0}""")
L1, LATE = LATE, []
LATE += lines(f"""s_mov_b32 s{sWO+2}, {448*896}
s_mov_b32 s{sWO+3}, 0x20000
s_mov_b32 s{sOUT}, s20
s_mov_b32 s{sOUT+1}, s21
s_mov_b32 s{sOUT+2}, {2048*1792}
s_mov_b32 s{sOUT+3}, 0x20000
s_mov_b32 s{sChk}, {0 if OPT['force_slow'] else L_RANGE}
s_and_b32 s{sWoff}, s{sh}, 3
s_mul_i32 s{sWoff}, s{sWoff}, 224""")
LATE += lines(f"""s_lshl_b32 s{sT1}, s{sb}, 3
s_add_u32 s{sT1}, s{sT1}, s{sj}
s_lshl_b32 s{sT1}, s{sT1}, 3
s_lshr_b32 s{sT0}, s{sh}, 2
s_bfe_u32 s{sT2}, s{sw}, 0x10001
s_lshl_b32 s{sPc}, s{sT2}, 2
s_add_u32 s{sPc}, s{sPc}, s{sT0}
s_add_u32 s{sPc}, s{sPc}, s{sT1}
s_mul_i32 s{sPc}, s{sPc}, {FS}
s_add_u32 s{sPc}, s{sPc}, {FLAG_OFF + 64}
s_lshl_b32 s{sT3}, s{sT0}, 1
s_add_u32 s{sT3}, s{sT3}, s{sT2}
s_add_u32 s{sT3}, s{sT3}, s{sT1}
s_lshl_b32 s{sOin}, s{sT3}, 15
s_add_u32 s{sOin}, s{sOin}, {O_OFF}
s_and_b32 s{sT3}, s{sw}, 1
s_lshl_b32 s{sT3}, s{sT3}, 8
s_add_u32 s{sOin}, s{sOin}, s{sT3}
s_lshl_b32 s{sT3}, s{sKap}, 11
s_add_u32 s{sOin}, s{sOin}, s{sT3}""")
LATE += lines(f"""s_lshl_b32 s{sT1}, s{sj}, 2
s_add_u32 s{sT0}, s{sT0}, s{sT1}
s_lshl_b32 s{sT0}, s{sT0}, 2
s_and_b32 s{sT1}, s{sw}, 3
s_add_u32 s{sT0}, s{sT0}, s{sT1}
s_mul_i32 s{sOut}, s{sT0}, {16*1792}
s_mul_i32 s{sT0}, s{sb}, 896
s_add_u32 s{sOut}, s{sOut}, s{sT0}
s_add_u32 s{sOut}, s{sOut}, s{sWoff}
v_and_b32 v{t2}, 7, v{vLane}
s_add_u32 s{sT0}, s{sT1}, 5
s_lshl_b32 s{sT0}, s{sT0}, 13
s_and_b32 s{sT0}, s{sT0}, 0xffff
v_add_u32 v{vRw}, s{sT0}, v{vL16}
s_lshl_b32 s{sT2}, s{sT1}, 2
s_add_u32 s{sT2}, s{sT2}, {MISC}
v_mov_b32 v{vMf}, s{sT2}
s_mul_i32 s{sT2}, s{sT1}, 3072
s_add_u32 s{sT2}, s{sT2}, {SND}
v_add_u32 v{vSn}, s{sT2}, v{vL16}
v_lshrrev_b32 v{t1}, 3, v{vLane}
s_lshl_b32 s{sT2}, s{sKap}, 11
s_add_u32 s{sT0}, s{sT0}, s{sT2}
s_add_u32 s{sT0}, s{sT0}, 4096
v_xor_b32 v{t3}, v{t1}, v{t2}
v_lshlrev_b32 v{t3}, 4, v{t3}
v_lshl_add_u32 v{t3}, v{t1}, 7, v{t3}
v_add_u32 v{vTr}, s{sT0}, v{t3}
s_and_b32 s{sCg}, s{sh}, {3 if OPT["rotc"] else 0}
s_lshl_b32 s{sCg}, s{sCg}, 1
s_lshl_b32 s{sT2}, s{sKap}, 3
s_add_u32 s{sT2}, s{sT2}, s{sCg}
v_add_u32 v{t4}, s{sT2}, v{t2}
v_subrev_u32 v{t3}, 14, v{t4}
v_min_u32 v{t4}, v{t4}, v{t3}
v_mul_u32_u24 v{t3}, 1792, v{t1}
v_lshl_add_u32 v{vOs}, v{t4}, 4, v{t3}
v_add_u32 v{t3}, 2, v{t2}
v_lshrrev_b32 v{t3}, 3, v{t3}
v_mul_u32_u24 v{t3}, s{sKap}, v{t3}
v_lshl_add_u32 v{vOs}, v{t3}, 30, v{vOs}
v_and_b32 v{t0}, 15, v{vLane}
v_lshrrev_b32 v{t1}, 4, v{vLane}
v_lshrrev_b32 v{t3}, 1, v{t1}
v_xor_b32 v{t3}, v{t3}, v{t2}
v_lshlrev_b32 v{t3}, 4, v{t3}
v_lshl_add_u32 v{t3}, v{t0}, 7, v{t3}
v_and_b32 v{t4}, 1, v{t1}
v_lshl_add_u32 v{t3}, v{t4}, 3, v{t3}
v_add_u32 v{vTw}, s{sT0}, v{t3}
v_lshlrev_b32 v{vPc}, {ES}, v{t0}
v_lshlrev_b32 v{t2}, 12, v{t2}
v_add_u32 v{vLp}, {3*512+15*16}, v{t2}
v_lshlrev_b32 v{t2}, 9, v{t1}
v_lshl_add_u32 v{vOa}, v{t0}, 4, v{t2}""")
LATE += lines(f"""v_lshrrev_b32 v{t2}, 1, v{t1}
v_lshlrev_b32 v{t2}, 4, v{t2}
v_lshl_add_u32 v{t2}, v{t4}, 2, v{t2}
v_bfe_u32 v{t3}, v{vLane}, 2, 2
v_add_u32 v{t2}, v{t2}, v{t3}
v_mul_u32_u24 v{t2}, 224, v{t2}
v_and_b32 v{t3}, 3, v{vLane}
v_lshl_add_u32 v{t2}, v{t3}, 3, v{t2}
v_add_u32 v{t3}, 1, v{t1}
v_lshrrev_b32 v{t3}, 2, v{t3}
v_mul_u32_u24 v{t3}, {4*224}, v{t3}
v_sub_u32 v{t3}, v{t2}, v{t3}
s_mul_i32 s{sT0}, s{sKap}, 6272
s_add_u32 s{sT0}, s{sT0}, {WOB}
v_add_u32 v{vW0}, s{sT0}, v{t2}
s_add_u32 s{sT0}, s{sT0}, {8*224}
v_add_u32 v{vW1}, s{sT0}, v{t3}
s_mul_i32 s{sSp}, s{sKap}, {(WO15 - WOB - 6272 - 7*12544) & 0xffffffff}
s_add_u32 s{sSp}, s{sSp}, {7*12544}""")
LATE += lines(f"""v_mul_u32_u24 v{t2}, 0x4925, v{vLane}
v_lshrrev_b32 v{t2}, 18, v{t2}
v_mul_u32_u24 v{t3}, 14, v{t2}
v_sub_u32 v{t3}, v{vLane}, v{t3}
v_add_u32 v{t3}, s{sCg}, v{t3}
v_subrev_u32 v{t4}, 14, v{t3}
v_min_u32 v{t3}, v{t3}, v{t4}
v_mul_u32_u24 v{t2}, 896, v{t2}
v_lshl_add_u32 v{vWod}, v{t3}, 4, v{t2}
s_mul_i32 s{sWn}, s{sw}, 3584
s_add_u32 s{sWn}, s{sWn}, s{sWoff}
s_mul_i32 s{sWm}, s{sw}, 896
s_add_u32 s{sWm13}, s{sWm}, {WO15-896}
s_max_u32 s{sT0}, s{sw}, 1
s_sub_u32 s{sT0}, s{sT0}, s{sw}
s_mul_i32 s{sT0}, s{sT0}, {WOB+104*896-(WO15-896)}
s_add_u32 s{sWm13}, s{sWm13}, s{sT0}""")
L2 = LATE
ENDS = lines(f"""s_mul_i32 s{sT2}, s{sLine}, {16*9363}
s_add_u32 s{sT3}, s{sT2}, {16*9363}
s_lshr_b32 s{sT2}, s{sT2}, 16
s_lshr_b32 s{sT3}, s{sT3}, 16
s_sub_u32 s{sT3}, s{sT3}, s{sT2}
s_lshl_b32 s{sT2}, s{sT2}, 18""")
FK = lines(f"""v_and_b32 v{t0}, 15, v{vLane}
v_lshlrev_b32 v{t0}, 4, v{t0}
v_bfe_u32 v{t1}, v{vLane}, 4, 1
v_lshrrev_b32 v{t4}, 5, v{vLane}
v_lshl_add_u32 v{t1}, v{t1}, 1, v{t4}
s_lshl_b32 s{sT0}, s{sLine}, 4
v_add_u32 v{t1}, s{sT0}, v{t1}""")
for i in range(4):
    FK += lines(f"""v_add_u32 v{t2}, {4*i}, v{t1}
    v_mul_u32_u24 v{t3}, 9363, v{t2}
    v_lshrrev_b32 v{t3}, 16, v{t3}
    v_lshl_add_u32 v{vSt[i]}, v{t3}, 18, v{t0}
    v_mul_u32_u24 v{t3}, 7, v{t3}
    v_sub_u32 v{t2}, v{t2}, v{t3}
    v_lshl_add_u32 v{vSt[i]}, v{t2}, 8, v{vSt[i]}""")
FK += ENDS + lines(f"""s_add_u32 s{sT2}, s{sT2}, {7*256}
v_lshrrev_b32 v{t1}, 4, v{vLane}
v_cmp_gt_u32 vcc, s{sT3}, v{t1}
v_lshl_add_u32 v{t0}, v{t1}, 18, v{t0}
v_add_u32 v{t0}, s{sT2}, v{t0}
v_mov_b32 v{t3}, {OOB}
v_cndmask_b32 v{vP[0]}, v{t3}, v{t0}, vcc""")
FV = lines(f"""v_and_b32 v{t0}, 31, v{vLane}
s_lshl_b32 s{sT0}, s{sLine}, 6
v_add_u32 v{t0}, s{sT0}, v{t0}
v_and_b32 v{t4}, 32, v{vLane}""")
for ct in range(2):
    FV += lines(f"""v_add_u32 v{t2}, {32*ct}, v{t0}
    v_mul_u32_u24 v{t3}, 2341, v{t2}
    v_lshrrev_b32 v{t3}, 16, v{t3}
    v_mul_u32_u24 v{t1}, 28, v{t3}
    v_sub_u32 v{t2}, v{t2}, v{t1}
    v_add_u32 v{t2}, v{t2}, v{t4}
    v_lshlrev_b32 v{t2}, 4, v{t2}
    v_lshl_add_u32 v{t2}, v{t3}, 18, v{t2}
    v_add_u32 v{vSt[2*ct]}, 2048, v{t2}
    v_add_u32 v{vSt[2*ct+1]}, 3072, v{t2}""")
FV += ENDS + lines(f"""s_add_u32 s{sT2}, s{sT2}, {2048+28*16}
v_lshrrev_b32 v{t0}, 4, v{vLane}
v_cmp_gt_u32 vcc, s{sT3}, v{t0}
v_bfe_u32 v{t1}, v{vLane}, 2, 2
v_lshlrev_b32 v{t1}, 9, v{t1}
v_lshl_add_u32 v{t1}, v{t0}, 18, v{t1}
v_and_b32 v{t2}, 3, v{vLane}
v_lshl_add_u32 v{t1}, v{t2}, 4, v{t1}
v_add_u32 v{t1}, s{sT2}, v{t1}
v_mov_b32 v{t3}, {OOB}
v_cndmask_b32 v{vP[0]}, v{t3}, v{t1}, vcc
v_cmp_eq_u32 vcc, 0, v{t2}
v_mov_b32 v{t3}, 0x3f803f80
s_nop 0
v_cndmask_b32 v{vPd}, 0, v{t3}, vcc
v_mov_b32 v{vPd+1}, v{vPd}
v_mov_b32 v{vPd+2}, v{vPd}
v_mov_b32 v{vPd+3}, v{vPd}""")


def st16(data, addr, soff, off=0):
    return (f"buffer_store_dwordx4 {v(data,4)}, v{addr}, s[{sWS}:{sWS+3}], s{soff} offen offset:{off} sc1", "ST")


def st8(data, addr, soff):
    return (f"buffer_store_dwordx2 {v(data,2)}, v{addr}, s[{sWS}:{sWS+3}], s{soff} offen sc1", "ST")


POS = [32768, 0, 65536]


def kv_addr(blk, t, off):
    p = POS[blk % 3] + t * 4096 + off
    return (vCur, p - 65536) if POS[blk % 3] >= 65536 else (vBase, p)


def kv_next(st):
    pos = POS[st % 3]
    if TL:
        return f"""s_add_u32 s{sRel}, s{sRel}, 0x8000
        s_{"and" if st < 4 else "or"}_b32 s{sRel}, s{sRel}, {"0x1ffff" if st < 4 else "0x20000"}
        {f"s_and_b32 s{sRel}, s{sRel}, 0x3ffff" if st > 4 else ""}
        s_add_u32 m0, s{sMX}, {pos}
        s_add_u32 s{sD0}, s{sRel}, s{sKV}"""
    return f"""s_add_u32 s{sRel}, s{sRel}, {0x14000 if st == 4 else 0x10000}
    s_and_b32 s{sRel}, s{sRel}, 0x3ffff
    s_add_u32 m0, s{sMX}, {pos}
    s_add_u32 s{sD0}, s{sRel}, s{sKV}"""


def kv_piece(i):
    return f"buffer_load_dwordx4 v{vL16}, s[{sWS}:{sWS+3}], s{sD0} offen offset:{1024*i}{['', ' sc1', ' nt', ' sc1 nt'][OPT.get('kvs', 1)]} lds"


def flag_text(second=False):
    return f"""s_mov_b64 exec, 1
    buffer_store_dword v{vTag}, v{vL16}, s[{sWS}:{sWS+3}], s{sFl} offen offset:{64 if second else 0} sc1
    s_mov_b64 exec, -1"""


def poll_text(mask):
    return f"""s_mov_b64 exec, {mask if mask < 64 else hex(mask)}
    buffer_load_dword v{vFl}, v{vPl}, s[{sWS}:{sWS+3}], s{sPl} offen sc1
    s_mov_b64 exec, -1"""


def poll_issue(mask=15):
    A(poll_text(mask))


ntry = [0]


def hook_try(level=2):
    ntry[0] += 1
    A(f"""s_cmp_ge_u32 s{sDone}, {level}
    s_cbranch_scc1 L_skip{ntry[0]}
    s_call_b64 s[{sRet}:{sRet+1}], L_try""")
    A.label(f"L_skip{ntry[0]}")


def spin(level, name):
    A(f"s_mov_b32 s{sSpin}, 0x40000")
    A.label(name)
    A(f"""s_cmp_ge_u32 s{sDone}, {level}
    s_cbranch_scc1 {name}_done
    s_call_b64 s[{sRet}:{sRet+1}], L_try
    s_sub_u32 s{sSpin}, s{sSpin}, 1
    s_cbranch_scc0 {name}""")
    A.label(name + "_done")


POLL0 = f"""s_mov_b32 exec_lo, 15
    s_mov_b32 exec_hi, 15
    buffer_load_dword v{vFl}, v{vPl}, s[{sWS}:{sWS+3}], s{sPl} offen sc1
    s_mov_b64 exec, -1"""
CALL_REST = f"s_call_b64 s[{sRet}:{sRet+1}], L_rest"
pqq = Wf + 16


class Stream:
    def __init__(self, role):
        self.role = role
        self.vm, self.lg = Cnt("vmcnt", 63), Cnt("lgkmcnt", 15)
        self.slot = [c % 2 for c in range(7)]
        self.nkv = self.nq = 0

    def dma(self, p):
        A(p[0])
        self.vm.issue(p[1])

    def ds(self, text, tag):
        self.lg.room()
        A(text)
        self.lg.issue(tag)

    def xreads(self, c):
        return [(f"ds_read_b128 {v(Xr+16*c+4*st,4)}, v{vXa[st]} offset:{self.slot[c] * 16384}", f"R{c}") for st in range(4)]

    def mk(self, kv=None, q=None):
        rd, mm, need = [], [], []
        tag = f"F{kv}_{q}"
        if kv is not None:
            b = Wf + 8 * (self.nkv % 3)
            self.nkv += 1
            for ct in range(2):
                for u in range(2):
                    rd.append((f"ds_read_b64_tr_b16 {v(b+4*ct+2*u,2)}, v{vWr[ct]} offset:{kv*2048+u*512}", tag))
                ac = [acc0, acc1][ct]
                wf, xf = v(b + 4 * ct, 4), v(Xr + 4 * kv, 4)
                a_, b_ = (wf, xf) if self.role == "K" else (xf, wf)
                if OPT.get("m16"):
                    for z in range(2):
                        d = ac + 8 * (kv % 2) + 4 * z
                        xz = v(Xr + 4 * (kv - kv % 2 + z), 4)
                        mm.append(f"v_mfma_f32_16x16x32_bf16 {v(d,4)}, {wf if self.role == 'K' else xz}, {xz if self.role == 'K' else wf}, {'0' if kv < 2 else v(d,4)}")
                    continue
                mm.append(f"v_mfma_f32_32x32x16_bf16 {v(ac,16)}, {a_}, {b_}, {'0' if kv == 0 else v(ac,16)}")
            need.append(f"R{kv//4}")
        if q is not None:
            b = Wg + 4 * (self.nq % 3)
            self.nq += 1
            for u in range(2):
                rd.append((f"ds_read_b64_tr_b16 {v(b+2*u,2)}, v{vWqr} offset:{q*1024+u*256}", tag))
            if OPT.get("m16"):
                for z in range(2):
                    d = accQ + 8 * (q % 2) + 4 * z
                    mm.append(f"v_mfma_f32_16x16x32_bf16 {v(d,4)}, {v(b,4)}, {v(Xr+4*(q-q%2+z),4)}, {'0' if q < 2 else v(d,4)}")
            else:
                mm.append(f"v_mfma_f32_32x32x16_bf16 {v(accQ,16)}, {v(b,4)}, {v(Xr+4*q,4)}, {'0' if q == 0 else v(accQ,16)}")
            need.append(f"R{q//4}")
        return dict(rd=rd, mm=mm, need=need + [tag], pre=[], xr=None, dma=[], post=[])

    def run(self, steps, fill=(), nf=0):
        fill = list(fill)
        for st in steps[:2]:
            for r in st["rd"]:
                self.ds(*r)
        for i, st in enumerate(steps):
            self.lg.wait(*st["need"])
            for f in st["pre"]:
                f()
            side = []
            if st["xr"] is not None:
                self.vm.wait(f"X{st['xr']}")
                side += self.xreads(st["xr"])
            if i + 2 < len(steps):
                side += steps[i + 2]["rd"]
            n = len(st["mm"])
            for k, m in enumerate(st["mm"]):
                A(m if not (OPT.get("nom") and i % OPT["nom"]) else "s_nop 0")
                for r in side[k * len(side) // n:(k + 1) * len(side) // n]:
                    self.ds(*r)
                for p in st["dma"][k * len(st["dma"]) // n:(k + 1) * len(st["dma"]) // n]:
                    self.dma(p)
                emit(fill, nf if not OPT.get("m16") else (nf + (k & 1)) // 2)
            for f in st["post"]:
                f()
        assert not fill

    def xplan(self, steps, first, c0, c1, lead, ahead=2):
        for c in range(c0, c1):
            i = first + 4 * (c - c0) - lead
            steps[i]["xr"] = c
            if c + ahead <= 6:
                steps[i + 1]["need"].append(f"R{c}")
                xp = x_pieces(c + ahead, self.slot[c + ahead])
                steps[i + 1]["dma"] += xp[:2]
                steps[i + 2]["dma"] += xp[2:]

    def pack(self, store):
        for ct in range(2):
            ac = [acc0, acc1][ct]
            pp = Wf + 8 * ct
            for r in range(8):
                A(f"v_cvt_pk_bf16_f32 v{pp+r}, v{ac+2*r}, v{ac+2*r+1}")
                if self.role == "V" and r % 4 == 3 and store:
                    self.dma(st16(pp + r - 3, vSt[2 * ct + r // 4], sKVt))
            if self.role == "K":
                for i in range(2):
                    A(f"v_permlane16_swap_b32 v{pp+4*i}, v{pp+4*i+2}")
                    A(f"v_permlane16_swap_b32 v{pp+4*i+1}, v{pp+4*i+3}")
                    if store:
                        self.dma(st16(pp + 4 * i, vSt[2 * ct + i], sKVt))

    def xonly(self):
        for c in range(7):
            self.vm.wait(f"X{c}")
            for r in self.xreads(c):
                self.ds(*r)
            self.lg.wait(f"R{c}")
            if c + 2 <= 6:
                for p in x_pieces(c + 2):
                    self.dma(p)


def bar():
    A("s_barrier")


def arrive(off):
    return f"""s_mov_b64 exec, 1
    ds_add_u32 v{vQm}, v{vFl+1} offset:{off}
    s_mov_b64 exec, -1"""


nsp = [0]


def await4(off):
    nsp[0] += 1
    n = nsp[0]
    A(f"""s_mov_b32 s{sSpin}, 0x400000
    L_aw{n}:
    ds_read_b32 v{t5}, v{vQm} offset:{off}
    s_sub_u32 s{sSpin}, s{sSpin}, 1
    s_waitcnt lgkmcnt(0)
    s_cbranch_scc1 L_awd{n}
    v_readfirstlane_b32 s{sD0}, v{t5}
    s_cmp_lt_u32 s{sD0}, 4
    s_cbranch_scc1 L_aw{n}
    L_awd{n}:""")


def q_epilogue():
    for r in range(8):
        A(f"v_pk_mul_f32 {v(accQ+2*r,2)}, {v(accQ+2*r,2)}, s[{sCs}:{sCs+1}]")
    for r in range(8):
        A(f"v_cvt_pk_bf16_f32 v{pqq+r}, v{accQ+2*r}, v{accQ+2*r+1}")
    A(f"""v_mov_b32 v{t5}, {f2u(float(OPT["off"])) >> 16}
    v_cndmask_b32 v{pqq+7}, 0, v{pqq+7}, s[{sLo}:{sLo+1}]
    v_cndmask_b32 v{pqq+6}, v{t5}, v{pqq+6}, s[{sLo}:{sLo+1}]""")
    A(f"""ds_write_b128 v{vQw}, {v(pqq,4)}
    ds_write_b128 v{vQw}, {v(pqq+4,4)} offset:1024""")


NOST = [f"v_mov_b32 v{vSt[i]}, {OOB}" for i in range(4)]
ZO = [f"v_mov_b32 v{O[0]+r}, {hex(f2u(1.5 * 2.0 ** OPT['oz'])) if OPT.get('oz') else 0}" for r in range(32)]
NA, N1, CG = OPT["na"], OPT["n1"], OPT["cg"]
GB = OPT["gb"]
QO = min(4 * OPT["wqe"], 26 - GB, OPT["qo"])
QY = min(4 * OPT["wqe"], 4 * N1) if QO else 0


def older(role):
    S_ = Stream(role)
    S_.vm.issue("X0", 4)
    S_.vm.issue("X1", 4)
    if role == "N":
        A(flag_text())
        S_.vm.issue("FL")
        if OPT["cnt"]:
            bar()
        S_.xonly()
        if OPT["cnt"]:
            A(arrive(4))
        else:
            bar()
        if QO:
            S_.run([S_.mk(q=g) for g in range(QO)])
        return
    if OPT["yp"]:
        A("s_setprio 2")
    if OPT["o4"]:
        S_.slot = [0, 1, 2, 3, 0, 1, 0]
        for p in x_pieces(2, 2) + x_pieces(3, 3):
            S_.dma(p)
    S_.vm.wait("X0")
    for r in S_.xreads(0):
        S_.ds(*r)
    S_.lg.wait("R0")
    for p in (x_pieces(4, 0) if OPT["o4"] else x_pieces(2)):
        S_.dma(p)
    ts(3, 2)
    bar()
    ts(4, 2)
    steps = [S_.mk(kv=g, q=(g - GB - 2 if 0 <= g - GB - 2 < QO else None)) for g in range(28)]
    if QO:
        steps[GB]["pre"].append(bar)
    if OPT["o4"]:
        GBB = 4 * NA - 2
        for c, i in {1: 0, 2: min(2, GBB - 3), 3: min(4, GBB - 1), 4: OPT["r4"], 5: 16, 6: 20}.items():
            steps[i]["xr"] = c
        for c, i, r in ((5, 1, 1), (6, OPT["r4"] + 1, 4)):
            steps[i]["need"].append(f"R{r}")
            xp = x_pieces(c, S_.slot[c])
            steps[i]["dma"] += xp[:2]
            steps[i + 1]["dma"] += xp[2:]
        steps[GBB]["need"].append("R3")
    else:
        S_.xplan(steps, 4, 1, 7, OPT["xl"])
    steps[4 * NA - 2]["pre"].append(bar)
    steps[OPT["padg"]]["dma"].append(st16(vPd, vP[0], sKVt))
    if OPT["cnt"]:
        steps[24]["post"].append(lambda: S_.ds(arrive(4), "AR"))
    elif CG < 28:
        steps[CG]["need"].append("R6")
        steps[CG]["pre"].append(bar)
    for c in range(7):
        steps[4 * c]["pre"].append(lambda c=c: ts(5 + c, 2))
    fill = {"K": FK, "V": FV}[role]
    S_.run(steps, fill, -(-len(fill) // 24))
    ts(2)
    ts(12, 2)
    S_.pack(True)
    ts(1)
    if CG == 28:
        bar()
    A("s_branch L_oq")


def younger(role):
    S_ = Stream(role)
    if role == "N":
        S_.vm.issue("X0", 4)
        S_.vm.issue("X1", 4)
        A(flag_text())
        S_.vm.issue("FL")
        if OPT["cnt"]:
            bar()
        for i in range(7):
            S_.dma(wq_piece(i))
        emit(list(REST), len(REST))
        emit(list(NOST), 4)
        if OPT["cnt"]:
            S_.vm.wait("WQ")
            A(arrive(0))
            A("s_waitcnt lgkmcnt(0)")
        S_.xonly()
        if OPT["cnt"]:
            await4(0)
        else:
            bar()
        steps = [S_.mk(q=g) for g in range(28)]
        first = 0
    else:
        S_.vm.q = list(LOADER_Q)
        wq = [wq_piece(i) for i in range(OPT["wqe"] + OPT["wqf"], 7)]
        S_.vm.wait("X0")
        for r in S_.xreads(0):
            S_.ds(*r)
        ts(6, 2)
        steps = [S_.mk(kv=g, q=(g if g < QY else None)) for g in range(4 * N1)]
        for c in range(1, N1):
            steps[4 * c - 2]["xr"] = c
        k = 0
        for p in wq:
            steps[k // OPT["wqd"]]["dma"].append(p)
            k += 1
        fill = {"K": FK, "V": FV}[role]
        late = []
        for c in range(2, N1 + 2):
            if c < N1 + OPT["xe"]:
                steps[4 * (c - 2) + 1]["need"].append(f"R{c-2}")
                steps[4 * (c - 2) + 1]["dma"] = x_pieces(c) + steps[4 * (c - 2) + 1]["dma"]
            else:
                late += x_pieces(c)
        S_.run(steps, fill, -(-len(fill) // (8 * N1)))
        for p in late:
            S_.dma(p)
        ts(7, 2)
        S_.vm.wait("WQ")
        if OPT["cnt"]:
            A(arrive(0))
            await4(0)
        else:
            bar()
        ts(8, 2)
        if OPT["yp"]:
            A("s_setprio 1")
        QL = OPT["ql"]
        steps = ([S_.mk(q=g) for g in range(QY, 4 * N1 - QL)] + [S_.mk(kv=g, q=g - QL) for g in range(4 * N1, 28)]
                 + [S_.mk(q=g) for g in range(28 - QL, 28)])
        if QL:
            n0 = len(A.lines)
            S_.pack(False)
            pk_ = A.lines[n0:]
            del A.lines[n0:]
            for i in range(-QL + 1, 0):
                steps[i]["post"].append(lambda d=-i: emit(pk_, -(-len(pk_) // d)))
        if QY >= 4 * N1 - 1:
            S_.vm.wait(f"X{N1}")
            for r in S_.xreads(N1):
                S_.ds(*r)
            xp = x_pieces(N1 + 2)
            steps[0]["dma"] += xp[:2]
            steps[1]["dma"] += xp[2:]
            S_.xplan(steps, 4 * N1 - QY + 4, N1 + 1, 7, 2)
        elif OPT["x3"] == 2:
            assert N1 == 2 and WL == XS + 65536
            S_.slot = [0, 1, 0, 1, 2, 0, 1]
            f0 = 4 * N1 - QY - QL
            steps[0]["xr"] = 2
            steps[0]["dma"] += x_pieces(4, 2)
            steps[1]["xr"] = 3
            steps[1]["need"].append("R2")
            steps[1]["dma"] += x_pieces(5, 0)
            steps[2]["need"].append("R3")
            steps[2]["dma"] += x_pieces(6, 1)
            for c in (4, 5, 6):
                steps[f0 + 4 * (c - 2) - 2]["xr"] = c
        elif OPT["x3"]:
            assert N1 == 2 and WL == XS + 65536
            S_.slot = [0, 1, 0, 1, 2, 0, 1]
            for k, p in enumerate(x_pieces(4, 2)):
                steps[k // 2]["dma"].append(p)
            S_.xplan(steps, 4 * N1 - QY, N1, 7, OPT["yl"], 3)
        else:
            S_.xplan(steps, 4 * N1 - QY - QL, N1, 7, OPT["yl"])
        steps[-8]["dma"].append(st16(vPd, vP[0], sKVt))
    ts(3)
    steps[-3]["post"].append(lambda: (poll_issue(0xffff), S_.vm.issue("PL")))
    fill = [] if role == "N" else [L1 + L2, list(L2), []][OPT['lf']]
    S_.run(steps, fill, -(-len(fill) // (3 * (24 - 4 * N1) + 4 * N1)))
    ts(2)
    ts(12, 2)
    q_epilogue()
    if role != "N" and not OPT["ql"]:
        S_.pack(False)
    ts(11)
    A("""s_waitcnt lgkmcnt(0)
    s_branch L_b0""")


def loader():
    S_ = Stream("N")
    for it in range(NW0):
        S_.vm.issue(f"W{it}", 2)
    if OPT["tch"] == 2:
        A(TOUCH)
    if OPT["tch"]:
        S_.vm.issue("PF", 2)
    NW1 = max(NW0, OPT["nw1"])
    for it in range(NW0, NW1):
        for p in w_pieces(it):
            S_.dma(p)
    S_.vm.wait(f"W{NA-1}")
    ts(3, 2)
    bar()
    ts(4, 2)
    fill = [[], list(L1), L1 + L2][OPT['lf']]
    if OPT.get("tlb"):
        S_.dma((f"""v_lshlrev_b32 v{t0}, 16, v{vLane}
        s_lshl_b32 s{sT0}, s{sb}, 22
        s_and_b32 s{sT1}, s{sw}, 3
        s_cmp_eq_u32 s{sT1}, 0
        s_cselect_b32 s{sT0}, s{sT0}, {O_OFF - KV_OFF}
        s_cmp_eq_u32 s{sT1}, 2
        s_cselect_b32 s{sT0}, {FLAG_OFF - KV_OFF + 0x40000 - 256}, s{sT0}
        s_add_u32 s{sT0}, s{sT0}, {KV_OFF + 2048 + 1024 + 29 * 16}
        buffer_load_dword v{t5}, v{t0}, s[{sWS}:{sWS+3}], s{sT0} offen""", "PF"))
    wq = [wq_piece(i) for i in range(7)]
    p1 = [p for it in range(NW1, 7) for p in w_pieces(it)] + wq[:OPT["wqe"]] + x_pieces(0) + x_pieces(1)
    p2 = wq[OPT["wqe"]:OPT["wqe"] + OPT["wqf"]]
    nb = OPT["nb"] if not OPT["o4"] else len(p1) - 8
    ps = p1 + p2
    nf = -(-len(fill) // len(ps))
    for k, p in enumerate(ps):
        if k == nb:
            S_.vm.wait("W6")
            bar()
        S_.dma(p)
        emit(fill, nf)
    if nb >= len(ps):
        S_.vm.wait("W6")
        bar()
    if QO:
        assert OPT["wqf"] == 0
        S_.vm.wait("WQ")
        bar()
    ts(5, 2)
    return S_.vm.q


PRO, REST = EARLY + MID, L1 + L2
PRO += lines(f"""s_waitcnt lgkmcnt(0)
s_mul_i32 s{stag}, s{sE}, 0x9e3779b1
s_add_u32 s{stag}, s{stag}, 0x7f4a7c15
v_mov_b32 v{vTag}, s{stag}""")
emit(PRO, len(PRO))
ts(2, 2)
A(f"""s_cmp_eq_u32 s{sKap}, 0
s_cbranch_scc1 L_old
s_cmp_eq_u32 s{sNone}, 1
s_cbranch_scc1 L_yN""")
LOADER_Q = loader()
A(f"""s_cmp_eq_u32 s{sRole}, 1
s_cbranch_scc1 L_yV""")
younger("K")
A.label("L_yV")
younger("V")
A.label("L_yN")
younger("N")
A.label("L_old")
A(f"""s_cmp_eq_u32 s{sNone}, 1
s_cbranch_scc1 L_oN
s_cmp_eq_u32 s{sRole}, 1
s_cbranch_scc1 L_oV""")
older("K")
A.label("L_oV")
older("V")
A.label("L_oN")
older("N")
A.label("L_oq")
ts(3)
ts(13, 2)
emit(list(L1), len(L1))
emit(list(NOST), 4)
S_ = Stream("N")
steps = [S_.mk(q=g) for g in range(QO, 28)]


def oflag():
    A("s_waitcnt vmcnt(0)")
    A(flag_text())
    if OPT["yp"]:
        A("s_setprio 0")
    ts(4)


if OPT["cnt"]:
    oflag()
    l2 = list(L2)
    emit(l2, OPT["l2e"])
    L2 = l2
    await4(4)
    if OPT["pe"]:
        A(POLL0)
        for _ in range(OPT["pe"] - 1):
            hook_try(1)
    await4(0)
else:
    steps[OPT["fq"]]["pre"].append(oflag)
PQ = min(OPT["pq"], len(steps) - 1)
if not (OPT["cnt"] and OPT["pe"]):
    steps[PQ]["post"].append(lambda: A(POLL0))
for g in range(PQ + OPT["tq"], len(steps), OPT["tq"]):
    steps[g]["post"].append(lambda: hook_try(1))
S_.run(steps, L2, -(-len(L2) // (len(steps) - 1)))
q_epilogue()
ts(11)
spin(1, "L_spin0")
A("""s_waitcnt vmcnt(1) lgkmcnt(0)
s_branch L_b0""")
A.label("L_try")
A(f"""s_waitcnt vmcnt(0)
v_cmp_ne_u32 vcc, s{stag}, v{vFl}
s_or_b32 s{sD1}, vcc_lo, vcc_hi
s_and_b32 s{sD1}, s{sD1}, 15
s_cbranch_scc0 L_try0""")
A(POLL0)
A(f"s_setpc_b64 s[{sRet}:{sRet+1}]")
A.label("L_try0")
ts(5)
A(f"""s_add_u32 m0, s{sMX}, {POS[0]}
s_add_u32 s{sD0}, s{sRel}, s{sKV}""")
for i in range(4):
    A(kv_piece(i))
A(f"""s_add_u32 s{sD0}, s{sRel}, {0x4000 if TL else 0x8000}
s_and_b32 s{sD0}, s{sD0}, {0x1ffff if TL else 0x3ffff}
s_add_u32 m0, s{sMX}, {POS[0]+16384}
s_add_u32 s{sD0}, s{sD0}, s{sKV}""")
for i in range(4):
    A(kv_piece(i))
A(f"s_mov_b32 s{sDone}, 1")
poll_issue(0xffff)
A(f"s_setpc_b64 s[{sRet}:{sRet+1}]")

A.label("L_b0")
for _ in range(OPT.get("idle", 0)):
    A("s_sleep 36")
A("s_barrier")
ts(12)
ts(1, 4)

A(f"""ds_read_b128 {v(Q[0],4)}, v{vQr} offset:2048
ds_read2st64_b64 {v(Kf[0],4)}, v{vBk} offset0:64 offset1:65
ds_read_b128 {v(Q[0]+4,4)}, v{vQr} offset:3072
ds_read2st64_b64 {v(Kf[0]+4,4)}, v{vBk} offset0:66 offset1:67
{chr(10).join(ZO[:OPT["z0"]])}
ds_read_b128 {v(Q[1],4)}, v{vOs2}
ds_read_b128 {v(Q[1]+4,4)}, v{vOs2} offset:1024
s_waitcnt lgkmcnt(4)
v_mfma_f32_32x32x16_bf16 {v(S[0],16)}, {v(Kf[0],4)}, {v(Q[0],4)}, {C0}
s_waitcnt lgkmcnt(2)
v_mfma_f32_32x32x16_bf16 {v(S[0],16)}, {v(Kf[0]+4,4)}, {v(Q[0]+4,4)}, {v(S[0],16)}
ds_read2st64_b64 {v(Kf[1],4)}, v{vBk} offset0:72 offset1:73
ds_read2st64_b64 {v(Kf[1]+4,4)}, v{vBk} offset0:74 offset1:75
ds_read_b128 {v(Vf[0],4)}, v{vBase} offset:34816
ds_read_b128 {v(Vf[0]+4,4)}, v{vBase} offset:35840
{chr(10).join(ZO[OPT["z0"]:])}
s_waitcnt lgkmcnt(4)""")

def wo_piece(r):
    m = f"s_mov_b32 m0, s{sWm13}" if r == 13 else f"s_add_u32 m0, s{sWm}, {WOB + 8*r*896}"
    return f"""{m}
    s_add_u32 s{sD1}, s{sWn}, {8*r*3584}
    buffer_load_dwordx4 v{vWod}, s[{sWO}:{sWO+3}], s{sD1} offen lds"""


EXTRA = {}
AFTER = {}


def extra(w_, sl, text):
    EXTRA.setdefault((w_, sl), []).append(text)


def window(W):
    blk, u = divmod(W, 8)
    un, up = u + 1, u - 1
    tn, qn = un // 2, un % 2
    tp, qp = up // 2, up % 2
    Sc, Sn, Sp = S[u % 4], S[un % 4], S[up % 4]
    Kn, Vp = Kf[tn % 2], Vf[tp % 2]
    if blk == 7 and OPT["reo"]:
        UN = {5: (3, 0), 6: (2, 1)}
        if un in UN:
            Kn, qn = Kf[UN[un][0] % 2], UN[un][1]
        if up in UN:
            Vp, qp = Vf[UN[up][0] % 2], UN[up][1]
        if u in (4, 6):
            A("s_waitcnt lgkmcnt(2)" if u == 4 else "s_waitcnt lgkmcnt(0)")
    h0, h1 = (4, 0) if OPT["hf"] else (0, 4)
    m = [f"v_mfma_f32_32x32x16_bf16 {v(Sn,16)}, {v(Kn+h0,4)}, {v(Q[qn]+h0,4)}, {C0}",
         f"v_mfma_f32_32x32x16_bf16 {v(Sn,16)}, {v(Kn+h1,4)}, {v(Q[qn]+h1,4)}, {v(Sn,16)}",
         f"v_smfmac_f32_32x32x32_bf16 {v(O[qp],16)}, {v(Vp,4)}, {v(Sp,8)}, v{vIdx}",
         f"v_smfmac_f32_32x32x32_bf16 {v(O[qp],16)}, {v(Vp+4,4)}, {v(Sp+8,8)}, v{vIdx}"]
    if W == 0:
        m[2] = m[3] = None
    if W == 63:
        m = [m[2], None, m[3], None]
    if W == 62 and OPT["reo"] == 2:
        m = [m[0], m[2], m[1], m[3]]
    mem = [[], [], [], []]
    pre = [[], [], [], []]

    def rd(dst, T, off):
        if off < 2048 and not OPT.get('kb128'):
            o = (POS[(blk + T // 4) % 3] + (T % 4) * 4096 + off) // 512
            if OPT.get("k64"):
                a, oo = (vBk, o * 512) if o < 128 else (vTag2, o * 512 - 65536)
                return f"ds_read_b64 {v(dst,2)}, v{a} offset:{oo}\nds_read_b64 {v(dst+2,2)}, v{a} offset:{oo+512}"
            return f"ds_read2st64_b64 {v(dst,4)}, v{vBk} offset0:{o} offset1:{o+1}"
        a, o = kv_addr(blk + T // 4, T % 4, off)
        return f"ds_read_b128 {v(dst,4)}, v{a} offset:{o}"
    if u % 2 == 1:
        if not (u == 5 and (blk > 0 or OPT["b0"])):
            A("s_waitcnt lgkmcnt(0)")
        tt = tn
        Kd, Vd = Kf[(tt + 1) % 2], Vf[tt % 2]
        rk = [rd(Kd, tt + 1, 0), rd(Kd + 4, tt + 1, 1024)]
        rv = [rd(Vd, tt, 2048), rd(Vd + 4, tt, 3072)]
        if W == 61 or (W == 5 and not OPT['b0']):
            mem[0 if W == 61 else 2].append(rv[0])
            mem[1 if W == 61 else 3].append(rv[1])
        elif W == 63:
            pass
        elif W == 7 and not OPT['b0']:
            A(rd(Kn, 4, 0))
            A(rd(Kn + 4, 4, 1024))
            m = [m[2], m[3], m[0], m[1]]
            mem[0] += [rk[0], rk[1]]
            mem[1] += [rv[0], rv[1]]
            pre[2].append("s_waitcnt lgkmcnt(4)")
        else:
            RS_ = [[0, 1, 2, 3], [2, 2, 3, 3], [0, 0, 1, 1], [2, 3, 0, 1]][OPT.get("rsl", 0)]
            order = sorted(range(4), key=lambda k: RS_[k])
            for k in range(4):
                mem[RS_[k]].append((rk + rv)[k])
    for q in range(4):
        for x in pre[q]:
            A(x)
        if m[q]:
            A(m[q])
        for x in mem[q] + (EXTRA.get((W, q), []) if not (OPT.get("nodma") and 23 <= W < 53) else []):
            A(x)
        EB = [[0, 4, 8, 12, 16], [0, 0, 8, 8, 16], [0, 3, 8, 11, 16], [0, 2, 8, 10, 16], [0, 3, 7, 10, 16],
              [0, 5, 8, 13, 16]][OPT.get("bb", 0) if W < 62 else 0]
        for e in range(EB[q], EB[q + 1]):
            A(f"v_exp_f32 v{Sc+e}, v{Sc+e}")
    for hk in AFTER.get(W, []):
        hk()


def mk_bar(n):
    def f():
        A(f"""s_waitcnt vmcnt({n}) lgkmcnt(0)""")
        if not OPT.get("nobar"):
            A("s_barrier")
    return f


def check_text(reg, mask, name):
    return f"""v_cmp_ne_u32 vcc, s{stag}, v{reg}
    s_and_b32 s{sD1}, vcc_lo, {mask}
    s_cbranch_scc1 {name}
    {name}_done:"""


PUB = [st16(Wf + 4 * i, vSt[i], sKVt)[0] for i in range(4)]
if OPT["b0"]:
    extra(0, 2, "s_waitcnt vmcnt(0)\n" + check_text(vFl, "0xffff", "L_polll"))
    extra(0, 3, kv_next(1) + "\n" + kv_piece(0))
    for i in range(1, 4):
        extra(1, i - 1, kv_piece(i))
    for i in range(4):
        extra(2, i, PUB[i])
    AFTER.setdefault(4, []).append(mk_bar(4))
    AFTER[4].append(lambda: ts(6))
    extra(6, 0, "s_waitcnt vmcnt(0)\n" + flag_text())
    extra(6, 1, kv_next(2) + "\n" + kv_piece(0))
    extra(6, 3, kv_piece(1))
    extra(8, 0, kv_piece(2))
    extra(8, 2, kv_piece(3))
else:
    for i in range(4):
        extra(i // 2, [1, 3][i % 2], PUB[i])
    extra(2, 0, "s_waitcnt vmcnt(4)\n" + check_text(vFl, "0xffff", "L_polll"))
    extra(2, 1, kv_next(1) + "\n" + kv_piece(0))
    extra(2, 3, kv_piece(1))
    extra(3, 1, kv_piece(2))
    extra(3, 3, kv_piece(3))
    AFTER.setdefault(6, []).append(lambda: (A("s_waitcnt vmcnt(0)\ns_barrier"), ts(6)))
    extra(7, 2, kv_next(2) + "\n" + kv_piece(0))
    extra(7, 3, kv_piece(1))
    extra(8, 1, kv_piece(2))
    extra(8, 3, kv_piece(3))
    extra(8, 0, flag_text())
extra(9, 1, "\n".join(f"v_mov_b32 v{vOnes+r}, -1" for r in range(4)))
extra(40, 1, f"""v_lshrrev_b32 v{t0}, 2, v{vL16}
v_and_b32 v{t0}, 60, v{t0}
v_add_u32 v{t0}, {MISC}, v{t0}
v_mov_b32 v{t1}, 0
ds_write_b32 v{t0}, v{t1}""")
extra(10, 0, st16(vOnes, vL16, sOt)[0])
extra(10, 2, st16(vOnes, vL16, sOt, 1024)[0])
extra(30, 1, flag_text(True))
extra(17, 1, poll_text(0x7fff0000).replace("0x7fff0000", "0xffff0000"))


extra(21, 2, check_text(vFl, "0xffff0000", "L_pollh"))
if OPT.get("tou"):
    e0, e1 = ("s_mov_b64 exec, 1\n", "\ns_mov_b64 exec, -1") if OPT["tou"] == 2 else ("", "")
    extra(36, 1, f"{e0}buffer_load_dword v{t2}, v{vOs}, s[{sOUT}:{sOUT+3}], s{sOut} offen{e1}")
    extra(28, 1, f"s_add_u32 s{sT1}, s{sOut}, {8*1792}\n{e0}buffer_load_dword v{t2}, v{vOs}, s[{sOUT}:{sOUT+3}], s{sT1} offen{e1}")
wo_early = list(range(5, 13))
for i in range(1, 8):
    nwo = 2 if i == 1 else 0
    if i >= 2 and wo_early:
        for sl in (0, 2):
            extra(8 * i + 2, sl, wo_piece(wo_early.pop(0)))
            nwo += 1
    if OPT.get("tou") and i in (3, 4):
        nwo += 1
    if OPT.get("bs") is not None and i < 7:
        extra(8 * i + 4, OPT["bs"], f"s_waitcnt vmcnt({nwo}) lgkmcnt(0)\ns_barrier\ns_setprio 3")
    else:
        AFTER.setdefault(8 * i + 4, []).append(mk_bar(nwo))
    if i <= 5:
        DS_ = [[(6, 0), (6, 2), (8, 0), (8, 2)], [(6, 2), (6, 3), (8, 2), (8, 3)], [(6, 0), (6, 1), (8, 0), (8, 1)],
               [(6, 1), (6, 3), (8, 1), (8, 3)], [(6, 0), (6, 1), (6, 2), (6, 3)]][OPT.get("dsl", 0)]
        extra(8 * i + DS_[0][0], DS_[0][1], kv_next(i + 2) + "\n" + kv_piece(0))
        for k in range(1, 4):
            extra(8 * i + DS_[k][0], DS_[k][1], kv_piece(k))
assert not wo_early
for k, r in enumerate([0, 1, 2, 3, 4, 13]):
    extra([54, 54, 55, 56, 56, 57][k], [0, 2, 1, 0, 2, 1][k], wo_piece(r))
extra(50, 0, f"buffer_load_dword v{vQm}, v{vPc}, s[{sWS}:{sWS+3}], s{sPc} offen sc1")
extra(58, 0, check_text(vQm, "0xffff", "L_pollc"))
extra(58, 2, f"""s_or_b32 s{sT0}, s{sh}, s{sj}
    s_or_b32 s{sT0}, s{sT0}, s{sw}
    s_cbranch_scc0 L_epoch
    L_epd:""")
sTk, sAv = sTodo, sRem


def oload(l):
    return f"""s_add_u32 s{sT0}, s{sOin}, {l*4096}
    buffer_load_dwordx4 {v(Of+4*l,4)}, v{vOa}, s[{sWS}:{sWS+3}], s{sT0} offen sc1"""


def cload(l):
    return f"""s_bitcmp1_b32 s{sAv}, {l}
    s_cselect_b64 exec, -1, 0
    {oload(l)}"""


POLL = f"""s_andn2_b32 exec_lo, 0xff, s{sTk}
    s_mov_b32 exec_hi, 0
    buffer_load_dword v{vQm}, v{vLp}, s[{sWS}:{sWS+3}], s{sOin} offen sc1
    s_mov_b64 exec, -1"""
SENDL = [f"ds_write_b128 v{vQw}, {v(O[0]+4*i,4)} offset:{1024*i}" for i in range(4)] + [f"ds_write_b32 v{vOs2}, v{t4}"]
SEND = "\n".join(SENDL)
if OPT["reo"]:
    extra(63, 2, SEND)
extra(44, 1, f"""s_lshl_b32 s{sT0}, s{sKap}, 12
    v_add_u32 v{vQw}, s{sT0}, v{vRw}
    v_xor_b32 v{vQr}, 0x1000, v{vQw}
    s_mul_i32 s{sT0}, s{sKap}, 48
    v_add_u32 v{vOs2}, s{sT0}, v{vMf}
    v_xor_b32 v{vPl}, 48, v{vOs2}
    v_mov_b32 v{t4}, 1""")
for (ww, sl, pr) in [[(61, 0, 3), (62, 0, 2), (63, 0, 1), (63, 2, 0)], [(61, 0, 3), (62, 2, 2), (63, 2, 1)],
                     [(61, 0, 1), (63, 0, 0)]][OPT["lseg"]]:
    extra(ww, sl, f"s_setprio {pr}")
PSEG = {1: [(0, 0, 3), (3, 0, 2), (6, 0, 1), (7, 2, 0)], 2: [(0, 0, 3), (4, 0, 2), (6, 2, 1), (7, 3, 0)],
        3: [(0, 0, 1), (7, 2, 0)], 4: [(0, 0, 3), (2, 0, 2), (4, 0, 1), (6, 0, 0)], 5: [(0, 0, 1), (7, 0, 0)],
        6: [(0, 0, 2), (5, 0, 1), (7, 2, 0)], 7: [(3, 3, 2), (6, 1, 1), (7, 2, 0)], 8: [(3, 2, 2), (6, 0, 1), (7, 1, 0)],
        9: [(0, 0, 3), (5, 0, 2), (7, 0, 1), (7, 3, 0)], 10: [(0, 0, 3), (3, 0, 2), (5, 2, 1), (7, 1, 0)]}
if OPT.get("pseg"):
    for (ww, sl, pr) in ([(0, 0, 3), (2, 0, 2), (3, 2, 1), (4, 3, 0)] if OPT["b0"] else
                         [(0, 0, 3), (3, 0, 2), (5, 2, 1), (6, 3, 0), (7, 0, 3), (9, 0, 2), (11, 2, 1), (12, 3, 0)]):
        EXTRA.setdefault((ww, sl), []).insert(0, f"s_setprio {pr}")
    if OPT.get("bs") is not None:
        EXTRA.setdefault((5, 0), []).insert(0, "s_setprio 3")
    for i in range(0 if OPT["b0"] else 1, 7):
        for (dw, sl, pr) in PSEG[OPT["pseg"]]:
            EXTRA.setdefault((8 * i + 5 + dw, sl), []).insert(0, f"s_setprio {pr}")
if OPT.get("prio"):
    A(f"""s_cmp_eq_u32 s{sKap}, {OPT["prio"] & 1}
    s_cbranch_scc0 L_np
    s_setprio 1""")
    A.label("L_np")
for W in range(64):
    TW = [0, 1, 3, 5, 7, 13, 21, 29, 37, 45, 53, 61] if not OPT.get("tw") else [16, 56]
    if OPT.get("al") and W % OPT["al"] == 0:
        A(".p2align 3")
    if W in TW:
        ts(2 + TW.index(W), 4)
    elif OPT.get("jit") and W % 2 == 0 or OPT.get("jit") and W > 56:
        ts(15, 9)
    window(W)
A(f"""s_nop 0
v_smfmac_f32_32x32x32_bf16 {v(O[1],16)}, {v(Vf[1],4)}, {v(S[3],8)}, v{vIdx}
v_smfmac_f32_32x32x32_bf16 {v(O[1],16)}, {v(Vf[1]+4,4)}, {v(S[3]+8,8)}, v{vIdx}""")
ts(7)
ts(14, 4)

R = S[0]
if not OPT["reo"]:
    A(SEND)
A(f"s_mov_b32 s{sSpin}, 0x400000")
A.label("L_mwait")
A(f"ds_read_b32 v{t2}, v{vPl}")
for i in (3, 0, 1, 2):
    A(f"ds_read_b128 {v(R+4*i,4)}, v{vQr} offset:{1024*i}")
A(f"""s_sub_u32 s{sSpin}, s{sSpin}, 1
s_cbranch_scc1 L_mgo
s_waitcnt lgkmcnt(4)
v_readfirstlane_b32 s{sT0}, v{t2}
s_cmp_eq_u32 s{sT0}, 0
s_cbranch_scc1 L_mspin""")
A.label("L_mgo")
Ob = O[1]
rc = vFl
A(f"""s_waitcnt lgkmcnt(3)
v_pk_add_f32 {v(Ob+12,2)}, {v(Ob+12,2)}, {v(R+12,2)}
v_pk_add_f32 {v(Ob+14,2)}, {v(Ob+14,2)}, {v(R+14,2)}""")
A.label("L_norm")
A(f"""v_mov_b32 v{t0}, v{Ob+12}
v_mov_b32 v{rc}, v{Ob+12}
s_waitcnt lgkmcnt(0)
v_pk_add_f32 {v(Ob,2)}, {v(Ob,2)}, {v(R,2)}
v_permlane32_swap_b32 v{t0}, v{rc}
v_pk_add_f32 {v(Ob+2,2)}, {v(Ob+2,2)}, {v(R+2,2)}
v_subrev_u32 v{t0}, {hex(L_LO)}, v{rc}
v_rcp_f32 v{rc}, v{rc}
v_cmp_lt_u32 vcc, s{sChk}, v{t0}""")
for r in range(4, 12, 2):
    A(f"v_pk_add_f32 {v(Ob+r,2)}, {v(Ob+r,2)}, {v(R+r,2)}")
A("""s_cmp_lg_u64 vcc, 0
s_cbranch_scc1 L_slow""")
for f in range(2):
    for r in range(8 * f, 8 * f + 8, 2):
        A(f"v_pk_mul_f32 {v(Ob+r,2)}, {v(Ob+r,2)}, {v(rc,2)} op_sel_hi:[1,0]")
    for r in range(4 * f, 4 * f + 4):
        A(f"v_cvt_pk_bf16_f32 v{pk+r}, v{Ob+2*r}, v{Ob+2*r+1}")
    if f:
        for r in (6, 7):
            A(f"v_cndmask_b32 v{pk+r}, 0, v{pk+r}, s[{sLo}:{sLo+1}]")
    for r in range(4 * f, 4 * f + 4):
        A(f"v_min_u32 v{pk+r}, -2, v{pk+r}")
    A(f"buffer_store_dwordx4 {v(pk+4*f,4)}, v{vL16}, s[{sWS}:{sWS+3}], s{sOt} offen offset:{1024*f} sc1")
A("s_setprio 0")
ts(8)

TILES = list(range(O[0], Of, 4)) + [DEAD, DEAD + 4]
assert len(TILES) >= 42
pk2, rb = Of, Of + 8
sOk = sDone
OOL = []


def wtile(l, ct):
    return TILES[7 * (l % 6) + ct]


def wtext(l, ct):
    a0, a1, off = (vW0, vW1, l * 12544) if l < 6 else (t1, t2, 0) if l == 6 else (t3, t4, 0)
    d = wtile(l, ct)
    return f"""ds_read_b64_tr_b16 {v(d,2)}, v{a0} offset:{off+32*ct}
    ds_read_b64_tr_b16 {v(d+2,2)}, v{a1} offset:{off+32*ct}"""


A.label("L_p3e")
if OPT["ts"] == 5:
    A("s_mov_b32 s11, 1")
tsd(0)
A(f"s_mov_b32 s{sSpin}, 0x40000")
sSl = 14
vXw = [vTw, vLane, vIdx, t5]
for l in range(8):
    A(f"s_add_u32 s{sSl+l}, s{sOin}, {4096*l}")
A.label("L_p3r")
A(f"""s_mov_b32 s{sTk}, 0
v_add_u32 v{t1}, {6*12544}, v{vW0}
v_add_u32 v{t2}, {6*12544}, v{vW1}
v_add_u32 v{t3}, s{sSp}, v{vW0}
v_add_u32 v{t4}, s{sSp}, v{vW1}
s_waitcnt lgkmcnt(0)""")
for i in range(42):
    if i >= 6 and i % 3 == 0:
        A("s_waitcnt lgkmcnt(8)")
    if i == OPT["pp"]:
        A(POLL)
    A(wtext(i // 7, i % 7))
tsd(1)
A("s_branch L_w1")
A.label("L_w0")
if OPT.get("slp"):
    A(f"s_sleep {OPT['slp']}")
A(POLL)
A.label("L_w1")
A(f"""s_sub_u32 s{sSpin}, s{sSpin}, 1
s_cselect_b32 s{sT0}, 0xff, 0
s_cselect_b32 s{sSpin}, 0, s{sSpin}
s_waitcnt vmcnt(0)
v_cmp_ne_u32 vcc, -1, v{vQm}
s_or_b32 s{sTk}, vcc_lo, s{sT0}
s_andn2_b32 s{sT0}, 0xff, s{sTk}
s_cbranch_scc1 L_w0""")
tsd(9)
for l in range(8):
    A(f"buffer_load_dwordx4 {v(Of+4*l,4)}, v{vOa}, s[{sWS}:{sWS+3}], s{sSl+l} offen sc1")
tsd(7)
A(f"""v_mov_b32 v{vFl}, 1
s_add_u32 s{sT1}, s{sOut}, {8*1792}""")
for ct in range(1, 4):
    A(f"v_xor_b32 v{vXw[ct]}, {32*ct}, v{vTw}")
XR_ = {}
HS = OPT.get("hs", 2)


def xspin(kap):
    A(f"""L_xsk{kap}:
    ds_read_b32 v{t0}, v{vMf} offset:{32-16*kap}
    s_sub_u32 s{sSpin}, s{sSpin}, 1
    s_waitcnt lgkmcnt(0)
    s_cbranch_scc1 L_yk{kap}
    v_readfirstlane_b32 s{sT0}, v{t0}
    s_cmp_eq_u32 s{sT0}, 0
    s_cbranch_scc1 L_xsk{kap}
    {XR_[kap]}
    s_branch L_yk{kap}""")


def p3(kap):
    n = f"k{kap}"
    keep = [0, 1, 2, 3] if kap == 0 else [4, 5, 6]
    send = [4, 5, 6] if kap == 0 else [0, 1, 2, 3]
    wa_, ra_ = (vSn, vRw) if kap == 0 else (vRw, vSn)
    rxs = [wtile(2 + i, send[0]) for i in range(len(keep))]
    lg = Cnt("lgkmcnt", 15)

    def mm(l, ct, first):
        lg.wait(f"W{l}_{ct}")
        A(f"v_mfma_f32_16x16x32_bf16 {v(acc+4*ct,4)}, {v(wtile(l,ct),4)}, {v(Of+4*l,4)}, {'0' if first else v(acc+4*ct,4)}")
        if l < 2:
            for x in lines(wtext(6 + l, ct)):
                lg.room()
                A(x)
                lg.issue(f"W{6+l}_{ct}")

    A(f"s_setprio {[[1, 1], [2, 2], [3, 2]][OPT.get('kp', 0)][kap]}")
    for l in range(8):
        b0 = Of + 4 * l
        A(f"s_waitcnt vmcnt({7-l})" + (" lgkmcnt(0)" if l == 0 else ""))
        if l == 0:
            tsd(2)
        for k, ct in enumerate(send + (keep if l < HS else [])):
            mm(l, ct, l == 0)
            if k < 2:
                A(f"v_max3_u32 v{t0}, v{b0+2*k}, v{b0+2*k+1}, {'0' if l + k == 0 else f'v{t0}'}")
    A(f"v_cmp_eq_u32 vcc, -1, v{t0}")
    side = [f"ds_write_b128 v{wa_}, {v(acc+4*ct,4)} offset:{1024*i}" for i, ct in enumerate(send)]
    side.append(f"ds_write_b32 v{vMf}, v{vFl} offset:{16+16*kap}")
    xrd = [f"ds_read_b32 v{t0}, v{vMf} offset:{32-16*kap}"] + [
        f"ds_read_b128 {v(rxs[i],4)}, v{ra_} offset:{1024*i}" for i in range(len(keep))]
    cnt = 0
    for l in range(HS, 8):
        for k, ct in enumerate(keep):
            mm(l, ct, l == 0)
            cnt += 1
            if cnt == 1:
                A(f"""s_cmp_lg_u64 vcc, 0
                s_cbranch_scc1 L_redo{n}""")
                A.label(f"L_good{n}")
            if l >= 2 and cnt >= 3 and side:
                lg.room()
                A(side.pop(0))
                lg.issue("S")
                if not side:
                    A(f"s_setprio {kap if OPT.get('kp') else 0}")
            if l == OPT.get("xl7", 7) and k < 3:
                for x in ([xrd[0], xrd[1]], xrd[2:3], xrd[3:])[k]:
                    lg.room()
                    A(x)
                    lg.issue("X")
    OOL.append(f"""L_redo{n}:
    s_sub_u32 s{sSpin}, s{sSpin}, 1
    s_cbranch_scc0 L_p3r
    s_branch L_good{n}""")
    tsd(3)
    ts(9)
    A(f"""s_mov_b32 s{sSpin}, 0x400000
    s_waitcnt lgkmcnt({len(keep)})
    v_readfirstlane_b32 s{sT0}, v{t0}
    s_cmp_eq_u32 s{sT0}, 0
    s_cbranch_scc1 L_xs{n}""")
    XR_[kap] = "\n".join(xrd[1:])
    A.label(f"L_y{n}")
    tsd(4)
    tsa(9)
    wa = vXw
    for i, ct in enumerate(keep):
        A(f"""s_waitcnt lgkmcnt({len(keep)-1})
        v_pk_add_f32 {v(acc+4*ct,2)}, {v(acc+4*ct,2)}, {v(rxs[i],2)}
        v_pk_add_f32 {v(acc+4*ct+2,2)}, {v(acc+4*ct+2,2)}, {v(rxs[i]+2,2)}
        v_cvt_pk_bf16_f32 v{pk2+2*i}, v{acc+4*ct}, v{acc+4*ct+1}
        v_cvt_pk_bf16_f32 v{pk2+2*i+1}, v{acc+4*ct+2}, v{acc+4*ct+3}
        ds_write_b64 v{wa[i]}, {v(pk2+2*i,2)}""")
    os_ = vOs
    OSC = ["", " sc1", " nt", " sc0 sc1", " sc1 nt"][OPT["osc0"] if kap == 0 else OPT["osc"]]
    A(f"""ds_read_b128 {v(rb,4)}, v{vTr}
    ds_read_b128 {v(rb+4,4)}, v{vTr} offset:1024
    s_waitcnt lgkmcnt(1)
    buffer_store_dwordx4 {v(rb,4)}, v{os_}, s[{sOUT}:{sOUT+3}], s{sOut} offen{OSC}
    s_waitcnt lgkmcnt(0)
    buffer_store_dwordx4 {v(rb+4,4)}, v{os_}, s[{sOUT}:{sOUT+3}], s{sT1} offen{OSC}""")


assert Vf[1] == Kf[0] + 24 and O[1] == O[0] + 16
A(f"""s_cmp_eq_u32 s{sKap}, 0
s_cbranch_scc1 L_x0""")
p3(1)
A("s_branch L_noep" if OPT["ts"] or OPT.get("padto") else "s_endpgm")
xspin(1)
A(f"""L_mspin:
ds_read_b32 v{t2}, v{vPl}
s_sub_u32 s{sSpin}, s{sSpin}, 1
s_waitcnt lgkmcnt(0)
s_cbranch_scc1 L_mgo
v_readfirstlane_b32 s{sT0}, v{t2}
s_cmp_eq_u32 s{sT0}, 0
s_cbranch_scc1 L_mspin
s_branch L_mwait""")
A.label("L_x0")
p3(0)
A("s_branch L_noep" if OPT["ts"] or OPT.get("padto") else "s_endpgm")
xspin(0)
if OPT.get("wb"):
    A(f"""s_cmp_lg_u32 s{sw}, 0
    s_cbranch_scc1 L_noep
    s_waitcnt vmcnt(0)
    buffer_wbl2 sc1""")
A.label("L_noep")
if OPT.get("padto"):
    A.label("L_pad")
    A(f"""s_sleep 4
    s_memrealtime s[{sRet}:{sRet+1}]
    s_waitcnt lgkmcnt(0)
    s_sub_u32 s{sT0}, s{sRet}, s{sTS}
    s_cmp_lt_u32 s{sT0}, {OPT["padto"]}
    s_cbranch_scc1 L_pad""")
tsd(5)
tsa(10)
if OPT["ts"] == 6:
    A("s_waitcnt lgkmcnt(0)")
    for i, r in enumerate(ASR):
        A(f"v_writelane_b32 v{vTS}, s{r}, {i+1}")
    A(f"""s_sub_u32 s{sRem}, 0x7fffffff, s{sRem}
    v_writelane_b32 v{vTS}, s{sRem}, 13
    v_writelane_b32 v{vTS}, s19, 14""")
if OPT["ts"]:
    A("s_waitcnt vmcnt(0)")
    ts(10)
    tsd(6)
    ts(12, 6)
    A(f"""s_lshl_b32 s{sT0}, s2, 3
    s_add_u32 s{sT0}, s{sT0}, s{sw}
    s_lshl_b32 s{sT0}, s{sT0}, {8 if OPT["ts"] == 5 else 6}
    s_add_u32 s{sT0}, s{sT0}, {TS_OFF}
    s_getreg_b32 s{sT1}, hwreg(HW_REG_XCC_ID)
    {"s_nop 0" if OPT["ts"] == 5 else f"v_writelane_b32 v{vTS}, s{sT1}, 15"}
    v_lshrrev_b32 v{t0}, 2, v{vL16}
    s_mov_b64 exec, {-1 if OPT["ts"] == 5 else "0xffff"}
    buffer_store_dword v{vTS}, v{t0}, s[{sWS}:{sWS+3}], s{sT0} offen""")
    if OPT.get("dbg"):
        A(f"""v_readlane_b32 s{sT0}, v{vTS}, 0
        s_not_b32 s{sT0}, s{sT0}
        v_writelane_b32 v{vTS}, s{sT0}, 15
        s_mov_b32 s{sX}, s22
        s_mov_b32 s{sX+1}, s23
        s_mov_b32 s{sX+2}, 256
        buffer_atomic_umax v{vTS}, v{t0}, s[{sX}:{sX+3}], 0 offen""")
A.label("L_end")
A("s_endpgm")

for x in OOL:
    A(x)
A.label("L_epoch")
A(f"""s_add_u32 s{sE}, s{sE}, 1
s_lshl_b32 s{sT0}, s{sb}, 8
s_add_u32 s{sT0}, s{sT0}, {EPOCH_OFF}
v_mov_b32 v{t1}, s{sE}
s_mov_b64 exec, 1
buffer_store_dword v{t1}, v{vL16}, s[{sWS}:{sWS+3}], s{sT0} offen sc1
s_mov_b64 exec, -1
s_branch L_epd""")

for name, load, reg, mask in (
        ("L_pollc", f"buffer_load_dword v{vQm}, v{vPc}, s[{sWS}:{sWS+3}], s{sPc} offen sc1", vQm, "0xffff"),
        ("L_polll", poll_text(0xffff), vFl, "0xffff"),
        ("L_pollh", poll_text(0x7fff0000).replace('0x7fff0000', '0xffff0000'), vFl, "0xffff0000")):
    A(f"""{name}:
    s_mov_b32 s{sSpin}, 0x40000
    {name}1:
    {load}
    s_sub_u32 s{sSpin}, s{sSpin}, 1
    s_cbranch_scc1 {name}_done
    s_waitcnt vmcnt(0)
    v_cmp_ne_u32 vcc, s{stag}, v{reg}
    s_and_b32 s{sD1}, vcc_lo, {mask}
    s_cbranch_scc1 {name}1
    s_branch {name}_done""")

A.label("L_slow")
Sx, vMn, vAl, vM = S[2], t2, t3, t4
A(f"""s_mov_b32 s{sChk}, -1
v_lshlrev_b32 v{vBk}, 3, v{vLane}
v_mov_b32 v{vM}, 0xff7fffff
s_mov_b32 s{sT0}, s{sKV}
s_mov_b32 s{sI}, 0""")
for r in range(16):
    A(f"v_mov_b32 v{Ob+r}, 0")
    A(f"v_mov_b32 v{R+r}, 0")
A.label("L_slow_t")
for i in range(4):
    A(f"buffer_load_dwordx2 {v(Kf[0]+2*i,2)}, v{vBk}, s[{sWS}:{sWS+3}], s{sT0} offen offset:{512*i} sc1")
A(f"""buffer_load_dwordx4 {v(Vf[0],4)}, v{vL16}, s[{sWS}:{sWS+3}], s{sT0} offen offset:2048 sc1
buffer_load_dwordx4 {v(Vf[0]+4,4)}, v{vL16}, s[{sWS}:{sWS+3}], s{sT0} offen offset:3072 sc1
s_add_u32 s{sT0}, s{sT0}, 4096
s_waitcnt vmcnt(0)
v_mfma_f32_32x32x16_bf16 {v(Sx,16)}, {v(Kf[0],4)}, {v(Q[1],4)}, 0
v_mfma_f32_32x32x16_bf16 {v(Sx,16)}, {v(Kf[0]+4,4)}, {v(Q[1]+4,4)}, {v(Sx,16)}
v_max3_f32 v{t0}, v{Sx}, v{Sx+1}, v{vM}""")
for r in range(2, 16, 2):
    A(f"v_max3_f32 v{t0}, v{Sx+r}, v{Sx+r+1}, v{t0}")
A(f"""v_mov_b32 v{t1}, v{t0}
v_permlane32_swap_b32 v{t0}, v{t1}
v_max_f32 v{vMn}, v{t0}, v{t1}
v_sub_f32 v{vAl}, v{vM}, v{vMn}
v_exp_f32 v{vAl}, v{vAl}
v_mov_b32 v{vM}, v{vMn}""")
for r in range(16):
    A(f"v_sub_f32 v{Sx+r}, v{Sx+r}, v{vMn}")
for r in range(16):
    A(f"v_exp_f32 v{Sx+r}, v{Sx+r}")
for r in range(16):
    A(f"v_mul_f32 v{Ob+r}, v{vAl}, v{Ob+r}")
A(f"""v_smfmac_f32_32x32x32_bf16 {v(Ob,16)}, {v(Vf[0],4)}, {v(Sx,8)}, v{vIdx}
v_smfmac_f32_32x32x32_bf16 {v(Ob,16)}, {v(Vf[0]+4,4)}, {v(Sx+8,8)}, v{vIdx}
s_add_u32 s{sI}, s{sI}, 1
s_cmp_lt_u32 s{sI}, 64
s_cbranch_scc1 L_slow_t
s_nop 11
s_branch L_norm""")

n = A.fix_hazards(verbose=bool(OPT.get("v", 0)))
NV = -(-V.hi // 8) * 8
hdr = open("cdna_kernels/" + NAME + ".s.ref").read().split("; Override launch")[0]
out = hdr + f"""; One fused launch: QKV projection -> softmax attention -> output projection.
; Workgroup = (branch b, head h, 256-token block j), 8 waves; all 256 workgroups are co-resident (one per CU).
;  P1  every workgroup projects Q of its head and one 64-column line of K or V for its tokens and publishes
;      K/V as MFMA fragments in d_ws (write-through stores, then a flag that carries this launch's tag).
;  P2  attention, 64 queries x half of the keys per wave: S^T = K Q^T (+ a constant), P = exp2(S^T), O^T += V^T P
;      with the 2:4 sparse MFMA, whose index picks the bf16 high halves of the fp32 P registers; a ones row in
;      V^T gives the row sums.  Softmax guard: the constant stands in for the row max; it is exact as long as
;      every row sum stays within 2^+-60 of it, which is checked at run time, and otherwise the tile is redone
;      at L_slow by an online softmax with the true running max.
;  P3  O tiles are exchanged through d_ws (pre-filled with a pattern the data cannot take) and multiplied by Wo.
; The tag is derived from a word in d_ws that the launch advances, so stale flags never match.
; Every wait on another workgroup is bounded.  Written by a generator script (gen.py).
; @launch grid=(256,1,1) block=(512,1,1) lds={LDS_BYTES}
.amdgcn_target "amdgcn-amd-amdhsa--gfx950"
.text
.globl {NAME}_kernel
.p2align 8
.type {NAME}_kernel,@function
""" + A.text().replace("CODE_SPAN", "L_slow-L_nopf") + f""".section .rodata,"a"
.p2align 6
.amdhsa_kernel {NAME}_kernel
  .amdhsa_next_free_vgpr {NV}
  .amdhsa_next_free_sgpr {NSGPR}
  .amdhsa_accum_offset {NV}
  .amdhsa_group_segment_fixed_size 0
  .amdhsa_kernarg_size 72
  .amdhsa_user_sgpr_count 2
  .amdhsa_user_sgpr_kernarg_segment_ptr 1
  .amdhsa_system_sgpr_workgroup_id_x 1
.end_amdhsa_kernel
"""
open(sys.argv[1], "w").write(out)
print(f"wrote {sys.argv[1]}: {len(A.lines)} lines, {n} nops inserted, {NV} vgprs", file=sys.stderr)
```

```python
import sys, struct, math
from asmlib import Asm, Alloc, v, s

NAME = "concat_heads__softmax_full_mha__softmax_full_mha__prompt"

OPT = dict(ts=0, force_slow=0, rot=2, map=1, pf=1, pq=20, tq=4, fq=10, dd=0, ibar=1, padg=14, pubw=1, pseg=7, bs=3, npro=0, pp=33, tou=0,
           osc=1, nw0=4, na=2, n1=2, cg=23, xl=4, wqe=0, wqd=2, wqf=0, nb=10, lf=1, yp=0, tch=0, b0=1, lseg=1, reo=1, z0=24, dsl=1, c0=1, off=8, hf=1, gb=12, qo=0, x3=0, yl=2, xe=0, ql=4, nw1=0, rotc=1, osc0=1, cnt=0, o4=0, r4=7, l2e=0, pe=0, sb=2)
for a in sys.argv[2:]:
    k, val = a.split("=")
    OPT[k] = int(val)

FLAG_OFF = 0xD00000
ES = OPT.get("es", 7)
FS = OPT.get("fs", 16 << ES)
HINT = 0x80000
EPOCH_OFF = 0x10000
TS_OFF = 0x20000
KV_OFF = 0x100000
O_OFF = 0x900000
Q_OFF = 0x1000000
WS_BYTES = 0x1400000
OOB = 0x40000000

RW = 0
RX = 73728
XL = 98304
WOB = 66944
WO15 = 32768
MISC = 161280
SND = 16384
LDS_BYTES = 163840

CSCALE = math.log2(math.e) / math.sqrt(28.0)
SHIFT = OPT['off'] + [0, 4, 2, -4, 1][OPT['c0']]
L_LO = (127 - 60 + SHIFT) << 23
L_RANGE = 120 << 23


def f2u(x):
    return struct.unpack("<I", struct.pack("<f", x))[0]


NTX = " nt" if OPT.get("ntx") else ""
NTW = " nt" if OPT.get("ntw") else ""
OSC = ["", " sc1", " nt", " sc0 sc1", " sc1 nt"][OPT.get("osc", 3)]
C0 = ["0", "4.0", "2.0", "-4.0", "1.0"][OPT.get("c0", 0)]
TL = OPT.get("tl", 0)
A = Asm()
sWm, sWm13 = 26, 27
sX, sW, sWS, sWO, sOUT = 28, 32, 36, 40, 44
sw, sb, sh, sj, stag, sE = 48, 49, 50, 51, 52, 53
sCx, sXb, sWb, sMX, sMW, sCw = 54, 55, 56, 57, 58, 59
sT0, sT1, sT2, sT3 = 60, 61, 62, 63
sLo = 64
sLine, sRole = 66, 67
sHo = 10
sCg = 9
sWb0, sSp = 12, 13
sLpx = 8
sKV = 68
sMXs, sWq = 69, 70
sI, sRel, sWn, sHH = 71, 72, 73, 74
sSpin = 75
sOt = 76
sWoff = 77
sKap = 78
sFl = 79
sTS = 80
sRet = 82
sDone, sTodo = 84, 85
sOin = 86
sPc = 87
sOut = 88
sChk = 89
sCs = 90
sKVt = 92
sD0, sD1 = 93, 94
sPend, sRem = 95, 96
sOp = 97
sRdy = 98
sHi, sPl, sC0, sMQ = 4, 5, 6, 7
sCq, sNone = 3, 100
NSGPR = 102


JN = [0]


def ts(idx, grp=1):
    if OPT.get("jit"):
        JN[0] += 1
        A(f"""s_lshl_b32 s{sTS}, s2, 3
        s_add_u32 s{sTS}, s{sTS}, s{sw}
        s_add_u32 s{sTS}, s{sTS}, {OPT["jit"] * 7919 + JN[0] * 104729}
        s_mul_i32 s{sTS}, s{sTS}, 0x9e3779b1
        s_lshr_b32 s{sTS+1}, s{sTS}, 15
        s_xor_b32 s{sTS}, s{sTS}, s{sTS+1}
        s_mul_i32 s{sTS}, s{sTS}, 0x85ebca6b
        s_lshr_b32 s{sTS}, s{sTS}, 26
        s_sub_u32 s{sTS}, s{sTS}, 48
        s_cbranch_scc1 L_jd{JN[0]}
        L_jl{JN[0]}:
        s_sleep {OPT.get("jsl", 12)}
        s_sub_u32 s{sTS}, s{sTS}, 1
        s_cbranch_scc0 L_jl{JN[0]}
        L_jd{JN[0]}:""")
    if OPT.get("padat") == 100 * grp + idx:
        A(f"s_memrealtime s[{sTS}:{sTS+1}]\ns_waitcnt lgkmcnt(0)")
    if not OPT["ts"] or (idx != 0 and OPT["ts"] != grp):
        return
    A(f"""{"s_memtime" if OPT.get("clk") else "s_memrealtime"} s[{sTS}:{sTS+1}]
    s_waitcnt lgkmcnt(0)
    v_writelane_b32 v{vTS}, s{sTS}, {idx}""")


def tsd(code, val=0):
    if OPT.get("jit"):
        ts(15, 9)
    A(tsdt(code, val))


def tsdt(code, val=0):
    if OPT["ts"] != 5:
        return ""
    return (f"""s_memrealtime s[{sTS}:{sTS+1}]
    s_waitcnt lgkmcnt(0)
    s_lshl_b32 s{sTS}, s{sTS}, 8
    s_or_b32 s{sTS}, s{sTS}, {code << 4}
    s_or_b32 s{sTS}, s{sTS}, {val}
    s_mov_b32 m0, s11
    v_writelane_b32 v{vTS}, s{sTS}, m0
    s_add_u32 s11, s11, 1
    s_min_u32 s11, s11, 63""")


ASR = [20, 22, 54, 56, 58, 68, 66, 72, 90, 26, 6]


def tsa(i):
    if OPT["ts"] == 6:
        A(f"s_memrealtime s[{ASR[i]}:{ASR[i]+1}]")


class Cnt:
    def __init__(self, name, cap):
        self.name, self.cap, self.q = name, cap, []

    def room(self):
        if len(self.q) >= self.cap:
            A(f"s_waitcnt {self.name}({self.cap - 4})")
            self.q = self.q[len(self.q) - (self.cap - 4):]

    def issue(self, tag, n=1):
        self.q += [tag] * n
        assert len(self.q) <= self.cap, (self.name, self.q)

    def wait(self, *tags):
        idx = [i for i, t in enumerate(self.q) if t in tags]
        if idx:
            n = len(self.q) - 1 - idx[-1]
            A(f"s_waitcnt {self.name}({n})")
            self.q = self.q[idx[-1] + 1:]


def lines(text):
    return [x.strip() for x in text.split("\n") if x.strip()]


def emit(lst, n):
    for _ in range(min(n, len(lst))):
        A(lst.pop(0))


V = Alloc(1, 256)
vLane = V()
vTS = V()
vL16 = V()
vIdx = V()
vT = [V() for _ in range(6)]
t0, t1, t2, t3, t4, t5 = vT
vQm = V()
DEAD = V(8)
vQw, vQr, vBase, vCur, vWod, vPl, vPc, vBk = range(DEAD, DEAD + 8)
vOa, vW0, vW1, vSn, vRw, vMf, vTw, vTr, vOs, vOs2, vLp = [V() for _ in range(11)]
vTag = V()
vTag2 = V()
vFl = V(2)
m_ph = V.mark()
Ws = V(112)
accU, accQ = V(16), V(16)
PK = V(16)
Wg, Xe, Xl = V(12), V(12), V(12)
vXd, vWd = V(), V()
vXa = [V() for _ in range(4)]
vXl = [V() for _ in range(4)]
vWr, vWqr = V(), V()
vSt = [V(), V()]
vSq = [V(), V()]
vP = V()
vPd = V(4)
vOnes = Wg
V.reset(m_ph)
O = [V(16), V(16)]
S = [V(16) for _ in range(4)]
Kf = [V(8), V(8)]
Vf = [V(8), V(8)]
Q = [V(8), V(8)]
pk, pq = V(8), V(8)
Of = V(32)
acc = V(28)
assert Q[0] == accQ and pk == PK
sHalf, sQt, sQa, sQb, sG = sRole, sMXs, sWq, sMQ, sCq

A.label(NAME + "_kernel")
A(f"""s_cmp_ge_u32 s2, 256
s_cbranch_scc1 L_end
s_load_dwordx16 s[8:23], s[0:1], 0
s_load_dwordx2 s[24:25], s[0:1], 64
v_lshrrev_b32 v{t0}, 6, v0
v_and_b32 v{vLane}, 63, v0
v_readfirstlane_b32 s{sw}, v{t0}
v_lshlrev_b32 v{vL16}, 4, v{vLane}""")
if OPT.get("padto"):
    A(f"s_memrealtime s[{sTS}:{sTS+1}]")
if OPT["ts"]:
    A(f"""{"s_memtime" if OPT.get("clk") else "s_memrealtime"} s[{sTS}:{sTS+1}]
    v_mov_b32 v{vTS}, 0""")
if OPT["map"] == 1:
    A(f"""s_and_b32 s{sT0}, s2, 7
    s_lshr_b32 s{sT1}, s2, 3
    s_and_b32 s{sj}, s{sT1}, 7
    s_lshr_b32 s{sT1}, s{sT1}, 3
    s_lshl_b32 s{sT0}, s{sT0}, 2
    s_add_u32 s{sHH}, s{sT0}, s{sT1}""")
elif OPT["map"] == 2:
    A(f"""s_and_b32 s{sT0}, s2, 7
    s_lshr_b32 s{sT1}, s2, 3
    s_and_b32 s{sT2}, s{sT0}, 3
    s_lshl_b32 s{sT2}, s{sT2}, 1
    s_lshr_b32 s{sT3}, s{sT1}, 4
    s_add_u32 s{sj}, s{sT2}, s{sT3}
    s_lshr_b32 s{sT0}, s{sT0}, 2
    s_lshl_b32 s{sT0}, s{sT0}, 4
    s_and_b32 s{sT1}, s{sT1}, 15
    s_add_u32 s{sHH}, s{sT0}, s{sT1}""")
elif OPT["map"] == 3:
    A(f"""s_and_b32 s{sT0}, s2, 7
    s_lshr_b32 s{sT1}, s2, 3
    s_and_b32 s{sT2}, s{sT0}, 1
    s_lshl_b32 s{sT2}, s{sT2}, 2
    s_lshr_b32 s{sT3}, s{sT1}, 3
    s_add_u32 s{sj}, s{sT2}, s{sT3}
    s_lshr_b32 s{sT0}, s{sT0}, 1
    s_lshl_b32 s{sT0}, s{sT0}, 3
    s_and_b32 s{sT1}, s{sT1}, 7
    s_add_u32 s{sHH}, s{sT0}, s{sT1}""")
A(f"""s_lshr_b32 s{sb}, s{sHH}, 4
s_and_b32 s{sh}, s{sHH}, 15
s_lshr_b32 s{sKap}, s{sw}, 2""")
if OPT["rot"] == 0:
    A(f"s_mov_b32 s{sC0}, 0")
else:
    if OPT["rot"] == 1:
        A(f"s_add_u32 s{sC0}, s{sh}, s{sj}")
    elif OPT["rot"] == 2:
        A(f"""s_mul_i32 s{sC0}, s{sh}, 7
        s_lshr_b32 s{sC0}, s{sC0}, 4
        s_add_u32 s{sC0}, s{sC0}, s{sj}""")
    elif OPT["rot"] == 4:
        A(f"""s_lshr_b32 s{sC0}, s{sh}, 2
        s_lshl_b32 s{sC0}, s{sC0}, 1
        s_add_u32 s{sC0}, s{sC0}, s{sj}""")
    elif OPT["rot"] == 5:
        A(f"""s_lshr_b32 s{sC0}, s{sh}, 2
        s_lshl_b32 s{sC0}, s{sC0}, 1
        s_and_b32 s{sT1}, s{sj}, 1
        s_lshl_b32 s{sT1}, s{sT1}, 2
        s_add_u32 s{sC0}, s{sC0}, s{sT1}""")
    elif OPT["rot"] == 6:
        A(f"""s_bfe_u32 s{sC0}, s{sh}, 0x10002
        s_mul_i32 s{sC0}, s{sC0}, 3
        s_lshr_b32 s{sT1}, s{sh}, 3
        s_lshl_b32 s{sT1}, s{sT1}, 1
        s_add_u32 s{sC0}, s{sC0}, s{sT1}
        s_add_u32 s{sC0}, s{sC0}, s{sj}""")
    elif OPT["rot"] == 3:
        A(f"""s_mul_i32 s{sC0}, s{sh}, 7
        s_lshr_b32 s{sC0}, s{sC0}, 4""")
    A(f"""s_mul_i32 s{sT1}, s{sC0}, 37
    s_lshr_b32 s{sT1}, s{sT1}, 8
    s_mul_i32 s{sT1}, s{sT1}, 7
    s_sub_u32 s{sC0}, s{sC0}, s{sT1}""")
PF = f"""s_and_b32 s{sT0}, s2, 0xf8
s_add_u32 s{sT0}, s{sT0}, s{sw}
s_mul_i32 s{sT0}, s{sT0}, 192
s_getpc_b64 s[{sRet}:{sRet+1}]
L_nopf:
v_and_b32 v{t4}, 0x80, v{vL16}
v_add_u32 v{t4}, s{sT0}, v{t4}
v_min_u32 v{t4}, CODE_SPAN, v{t4}
global_load_dword v{t5}, v{t4}, s[{sRet}:{sRet+1}]"""
if OPT["pf"] == 1:
    A(PF)
SEL = f"""s_cmp_eq_u32 s{sb}, 0
s_waitcnt lgkmcnt(0)
s_cselect_b32 s{sX}, s8, s14
s_cselect_b32 s{sX+1}, s9, s15
s_cselect_b32 s{sW}, s10, s16
s_cselect_b32 s{sW+1}, s11, s17
s_cselect_b32 s{sWO}, s12, s18
s_cselect_b32 s{sWO+1}, s13, s19
{f"v_writelane_b32 v{vTS}, s{sTS}, 0" if OPT["ts"] else ""}"""


A(f"""s_cmp_gt_u32 s{sh}, 6
s_subb_u32 s{sLine}, s{sh}, 0
s_cmp_gt_u32 s{sh}, 9
s_subb_u32 s{sLine}, s{sLine}, 0
s_cmp_ge_u32 s{sLine}, 7
s_cselect_b32 s{sHalf}, 1, 0
s_cselect_b32 s{sT0}, 7, 0
s_sub_u32 s{sLine}, s{sLine}, s{sT0}
v_lshrrev_b32 v{t0}, 3, v{vLane}
v_and_b32 v{t2}, 7, v{vLane}
v_lshrrev_b32 v{t1}, 4, v{vLane}
s_and_b32 s{sT0}, s{sw}, 1
s_lshl_b32 s{sT0}, s{sT0}, 2
s_bfe_u32 s{sT1}, s{sw}, 0x10001
s_or_b32 s{sT0}, s{sT0}, s{sT1}
v_xor_b32 v{t3}, v{t1}, v{t2}
v_xor_b32 v{t3}, s{sT0}, v{t3}
v_mul_u32_u24 v{t4}, 896, v{t0}
v_lshl_add_u32 v{vXd}, v{t3}, 4, v{t4}
v_and_b32 v{t1}, 1, v{t1}
v_lshlrev_b32 v{t1}, 2, v{t1}
v_xor_b32 v{t1}, v{t1}, v{t2}
v_mul_u32_u24 v{t4}, 2688, v{t0}
v_lshl_add_u32 v{vWd}, v{t1}, 4, v{t4}
s_lshl_b32 s{sT0}, s{sj}, 1
s_add_u32 s{sT0}, s{sT0}, s{sHalf}
s_lshl_b32 s{sT0}, s{sT0}, 4
s_add_u32 s{sT0}, s{sT0}, s{sw}
s_mul_i32 s{sXb}, s{sT0}, {8*896}
s_mul_i32 s{sWb}, s{sw}, {8*2688}
s_lshl_b32 s{sT0}, s{sLine}, 7
s_add_u32 s{sWb}, s{sWb}, s{sT0}
s_lshl_b32 s{sMW}, s{sw}, 10
s_lshl_b32 s{sMX}, s{sw}, 12
s_lshl_b32 s{sCx}, s{sC0}, 7
s_mul_i32 s{sCw}, s{sC0}, {64*2688}
s_mov_b32 s{sX+2}, {2048*896}
s_mov_b32 s{sX+3}, 0x20000
s_mov_b32 s{sW+2}, {448*2688}
s_mov_b32 s{sW+3}, 0x20000
s_lshr_b32 s{sNone}, 0x240, s{sh}
s_and_b32 s{sNone}, s{sNone}, 1""")
A(SEL)


def pieces(it):
    sl = (it % 3) * 8192
    p = [f"""s_add_u32 m0, s{sMW}, {RX + sl}
    s_add_u32 s{sD0}, s{sCx}, s{sXb}
    buffer_load_dwordx4 v{vXd}, s[{sX}:{sX+3}], s{sD0} offen lds""",
         f"""s_add_u32 m0, s{sMW}, {RW + sl}
    s_add_u32 s{sD1}, s{sCw}, s{sWb}
    buffer_load_dwordx4 v{vWd}, s[{sW}:{sW+3}], s{sD1} offen lds""",
         f"""s_add_u32 m0, s{sMW}, {RW + 24576 + sl - 896}
    s_add_u32 s{sCx}, s{sCx}, 128
    buffer_load_dwordx4 v{vWd}, s[{sW}:{sW+3}], s{sD1} offen offset:896 lds""",
         f"""s_add_u32 m0, s{sMW}, {RW + 49152 + sl - 1792}
    s_add_u32 s{sCw}, s{sCw}, {64*2688}
    buffer_load_dwordx4 v{vWd}, s[{sW}:{sW+3}], s{sD1} offen offset:1792 lds""",
         f"""s_add_u32 m0, s{sMW}, {XL + it*8192}
    s_add_u32 s{sD0}, s{sD0}, {64*896}
    buffer_load_dwordx4 v{vXd}, s[{sX}:{sX+3}], s{sD0} offen lds
    s_cmp_eq_u32 s{sCx}, 896
    s_cselect_b32 s{sCx}, 0, s{sCx}
    s_cselect_b32 s{sCw}, 0, s{sCw}"""]
    return [(x, f"C{it}") for x in p]


EARLY = lines(f"""s_lshl_b32 s{sT0}, s{sb}, 8
s_add_u32 s{sT0}, s{sT0}, {EPOCH_OFF}
s_load_dword s{sE}, s[24:25], s{sT0}
v_and_b32 v{t0}, 1, v{vLane}
v_lshlrev_b32 v{t0}, 4, v{t0}
v_bfe_u32 v{t1}, v{vLane}, 4, 1
v_lshl_add_u32 v{t0}, v{t1}, 3, v{t0}
v_bfe_u32 v{t1}, v{vLane}, 3, 1
v_lshl_add_u32 v{t0}, v{t1}, 1, v{t0}
v_bfe_u32 v{t1}, v{vLane}, 1, 1
v_and_b32 v{t2}, 4, v{vLane}
v_add3_u32 v{t0}, v{t0}, v{t1}, v{t2}
v_and_b32 v{t1}, 31, v{vLane}
v_sub_u32 v{t0}, v{t0}, v{t1}
v_mul_lo_u32 v{t0}, v{t0}, s{sKap}
v_add_u32 v{t0}, v{t0}, v{t1}
v_bfe_u32 v{t1}, v{t0}, 1, 3
v_lshrrev_b32 v{t3}, 4, v{t0}
v_xor_b32 v{t1}, v{t1}, v{t3}
v_lshrrev_b32 v{t2}, 5, v{vLane}
v_xor_b32 v{t1}, v{t1}, v{t2}
s_and_b32 s{sT0}, s{sw}, 1
s_lshl_b32 s{sT0}, s{sT0}, 12
s_add_u32 s{sT0}, s{sT0}, {RX}
v_lshl_add_u32 v{t0}, v{t0}, 7, s{sT0}""")
for sst in range(4):
    EARLY += lines(f"""v_xor_b32 v{t3}, {2*sst}, v{t1}
    v_lshl_add_u32 v{vXa[sst]}, v{t3}, 4, v{t0}
    v_add_u32 v{vXl[sst]}, {XL-RX}, v{vXa[sst]}""")
EARLY += lines(f"""v_bfe_u32 v{t1}, v{vLane}, 2, 2
v_lshl_add_u32 v{t0}, v{t2}, 3, v{t1}
v_bfe_u32 v{t3}, v{vLane}, 4, 1
v_and_b32 v{t4}, 3, v{vLane}
v_lshlrev_b32 v{t4}, 3, v{t4}
v_lshl_add_u32 v{t4}, v{t3}, 5, v{t4}
v_lshl_add_u32 v{t4}, v{t0}, 7, v{t4}
v_lshrrev_b32 v{t1}, 1, v{t1}
v_lshl_add_u32 v{t4}, v{t1}, 6, v{t4}
s_bfe_u32 s{sT0}, s{sw}, 0x10001
s_lshl_b32 s{sG}, s{sLine}, 1
s_add_u32 s{sG}, s{sG}, s{sT0}
s_lshl_b32 s{sT0}, s{sT0}, 6
v_xor_b32 v{vWqr}, s{sT0}, v{t4}
s_mul_i32 s{sT0}, s{sKap}, 24576
s_add_u32 s{sT0}, s{sT0}, 24576
v_add_u32 v{vWr}, s{sT0}, v{vWqr}""")
assert RW == 0
MID = []
MID += lines(f"""s_mov_b32 s{sWS}, s24
s_mov_b32 s{sWS+1}, s25
s_mov_b32 s{sWS+2}, {WS_BYTES}
s_mov_b32 s{sWS+3}, 0x20000
s_lshl_b32 s{sT0}, s{sj}, 1
s_add_u32 s{sT0}, s{sT0}, s{sHalf}
s_lshl_b32 s{sT0}, s{sT0}, 2
s_and_b32 s{sT1}, s{sw}, 1
s_add_u32 s{sT0}, s{sT0}, s{sT1}
s_lshl_b32 s{sT1}, s{sb}, 10
s_add_u32 s{sT0}, s{sT0}, s{sT1}
s_lshl_b32 s{sKVt}, s{sT0}, 12
s_add_u32 s{sKVt}, s{sKVt}, {KV_OFF}
s_lshl_b32 s{sT1}, s{sKap}, 1
s_add_u32 s{sT0}, s{sT0}, s{sT1}
s_lshl_b32 s{sQt}, s{sT0}, 11
s_add_u32 s{sQt}, s{sQt}, {Q_OFF}
s_mov_b32 s{sLo}, -1
s_mov_b32 s{sLo+1}, 0
s_mov_b32 s{sCs}, {hex(f2u(CSCALE))}
s_mov_b32 s{sCs+1}, {hex(f2u(CSCALE))}
s_and_b32 s{sT0}, s{sw}, 3
s_lshl_b32 s{sT0}, s{sT0}, 1
s_lshl_b32 s{sT1}, s{sb}, 3
s_add_u32 s{sT1}, s{sT1}, s{sj}
s_lshl_b32 s{sT1}, s{sT1}, 3
s_add_u32 s{sT0}, s{sT0}, s{sT1}
s_lshl_b32 s{sT0}, s{sT0}, 4
s_add_u32 s{sT0}, s{sT0}, s{sh}
s_lshl_b32 s{sOp}, s{sT0}, 11
s_add_u32 s{sOp}, s{sOp}, {O_OFF}
s_lshl_b32 s{sOt}, s{sKap}, 15
s_add_u32 s{sOt}, s{sOt}, s{sOp}
v_mov_b32 v{vPd}, {0x3f80 if OPT["off"] else 0}
v_mov_b32 v{vPd+1}, 0
v_mov_b32 v{vPd+2}, {0x3f80 if OPT["off"] else 0}
v_mov_b32 v{vPd+3}, 0
s_add_u32 s{sFl}, s{sT1}, s{sw}
s_mul_i32 s{sFl}, s{sFl}, {FS}
s_lshl_b32 s{sT0}, s{sh}, {ES}
s_add_u32 s{sFl}, s{sFl}, s{sT0}
s_add_u32 s{sFl}, s{sFl}, {FLAG_OFF}""")
LATE = lines(f"""s_mul_i32 s{sPl}, s{sb}, {64*FS}
s_add_u32 s{sPl}, s{sPl}, {FLAG_OFF}
{[f"s_mov_b32 s{sT0}, s{sj}", f"s_mov_b32 s{sT0}, 0", f"s_lshl_b32 s{sT0}, s{sh}, 1"][OPT["sb"]]}
s_add_u32 s{sT0}, s{sT0}, s{sKap}
s_and_b32 s{sT0}, s{sT0}, 7
s_lshl_b32 s{sRel}, s{sT0}, 15
s_and_b32 s{sT1}, s{sw}, 1
s_bfe_u32 s{sT2}, s{sw}, 0x10001
s_lshl_b32 s{sT3}, s{sT2}, 2
s_add_u32 s{sT3}, s{sT3}, s{sT1}
s_lshl_b32 s{sT3}, s{sT3}, 12
s_add_u32 s{sRel}, s{sRel}, s{sT3}
v_bfe_u32 v{t3}, v{vLane}, 2, 2
v_lshl_add_u32 v{t3}, v{t3}, 1, s{sT0}
v_and_b32 v{t3}, 7, v{t3}
v_mov_b32 v{t4}, s{sj}
v_cndmask_b32 v{t3}, v{t4}, v{t3}, s[{sLo}:{sLo+1}]
v_bfe_u32 v{t1}, v{vLane}, 1, 1
v_lshl_add_u32 v{t4}, v{t1}, 2, s{sT1}
s_lshl_b32 s{sT1}, s{sT1}, 2
v_add_u32 v{t2}, s{sT1}, v{t1}
v_cndmask_b32 v{t4}, v{t2}, v{t4}, s[{sLo}:{sLo+1}]
v_lshl_add_u32 v{t3}, v{t3}, 3, v{t4}
s_mul_i32 s{sT2}, s{sT2}, 7
s_mul_i32 s{sT0}, s{sh}, 28
s_add_u32 s{sT1}, s{sT0}, 27
s_lshr_b32 s{sT0}, s{sT0}, 5
s_lshr_b32 s{sT1}, s{sT1}, 5
s_sub_u32 s{sT1}, s{sT1}, s{sT0}
v_and_b32 v{t0}, 1, v{vLane}
v_mul_u32_u24 v{t0}, s{sT1}, v{t0}
v_add_u32 v{t0}, s{sT0}, v{t0}
v_and_b32 v{t2}, 1, v{t0}
v_lshl_add_u32 v{t3}, v{t2}, 1, v{t3}
v_mul_u32_u24 v{t3}, {FS}, v{t3}
v_lshrrev_b32 v{t0}, 1, v{t0}
v_add_u32 v{t0}, s{sT2}, v{t0}
v_add_u32 v{t4}, 10, v{t0}
v_lshrrev_b32 v{t4}, 4, v{t4}
v_lshrrev_b32 v{t2}, 3, v{t0}
v_add3_u32 v{t0}, v{t0}, v{t4}, v{t2}
s_sub_u32 s{sT2}, s{sT1}, 1
s_and_b32 s{sT2}, s{sT2}, 0xaaaaaaaa
s_mov_b32 s{sT3}, 0
v_mad_u32_u24 v{t1}, v{t1}, 3, 6
v_cndmask_b32 v{t0}, v{t0}, v{t1}, s[{sT2}:{sT3}]
v_lshl_add_u32 v{t3}, v{t0}, {ES}, v{t3}
v_and_b32 v{t0}, 16, v{vLane}
v_lshl_add_u32 v{vPl}, v{t0}, 1, v{t3}
s_lshl_b32 s{sKV}, s{sHH}, 18
s_add_u32 s{sKV}, s{sKV}, {KV_OFF}
s_mov_b32 s{sDone}, 0
v_mov_b32 v{vIdx}, 0xdddddddd""")
LATE += lines(f"""s_lshl_b32 s{sT0}, s{sHH}, 3
s_add_u32 s{sT0}, s{sT0}, s{sj}
s_lshl_b32 s{sT0}, s{sT0}, 2
s_and_b32 s{sT1}, s{sw}, 3
s_add_u32 s{sT0}, s{sT0}, s{sT1}
s_lshl_b32 s{sT0}, s{sT0}, 12
s_lshl_b32 s{sT1}, s{sKap}, 11
s_add_u32 s{sQb}, s{sT0}, s{sT1}
s_add_u32 s{sQb}, s{sQb}, {Q_OFF}
s_xor_b32 s{sQa}, s{sQb}, 2048
v_and_b32 v{t0}, 15, v{vLane}
v_bfe_u32 v{t1}, v{vLane}, 4, 1
v_lshl_add_u32 v{t0}, v{t0}, 1, v{t1}
v_bfe_u32 v{t2}, v{vLane}, 3, 1
v_lshl_add_u32 v{t2}, v{t1}, 1, v{t2}
v_and_b32 v{t1}, 1, v{vLane}
v_lshl_add_u32 v{t2}, v{t1}, 2, v{t2}
v_and_b32 v{t1}, 4, v{vLane}
v_lshl_add_u32 v{t2}, v{t1}, 1, v{t2}
v_and_b32 v{t1}, 2, v{vLane}
v_lshl_add_u32 v{t2}, v{t1}, 3, v{t2}
v_sub_u32 v{t2}, v{t2}, v{t0}
s_and_b32 s{sT1}, s{sw}, 1
v_mul_lo_u32 v{t2}, v{t2}, s{sT1}
v_and_b32 v{t1}, 32, v{vLane}
v_add3_u32 v{t0}, v{t0}, v{t1}, v{t2}
v_lshlrev_b32 v{vQr}, 3, v{t0}
s_lshl_b32 s{sT0}, s{sKap}, 14
v_add_u32 v{vBase}, s{sT0}, v{vL16}
v_add_u32 v{vCur}, 0x10000, v{vBase}
v_lshl_add_u32 v{vBk}, v{vLane}, 3, s{sT0}""")
L1, LATE = LATE, []
LATE += lines(f"""s_mov_b32 s{sWO+2}, {448*896}
s_mov_b32 s{sWO+3}, 0x20000
s_mov_b32 s{sOUT}, s20
s_mov_b32 s{sOUT+1}, s21
s_mov_b32 s{sOUT+2}, {2048*1792}
s_mov_b32 s{sOUT+3}, 0x20000
s_mov_b32 s{sChk}, {0 if OPT['force_slow'] else L_RANGE}
s_and_b32 s{sWoff}, s{sh}, 3
s_mul_i32 s{sWoff}, s{sWoff}, 224""")
LATE += lines(f"""s_lshl_b32 s{sT1}, s{sb}, 3
s_add_u32 s{sT1}, s{sT1}, s{sj}
s_lshl_b32 s{sT1}, s{sT1}, 3
s_lshr_b32 s{sT0}, s{sh}, 2
s_bfe_u32 s{sT2}, s{sw}, 0x10001
s_lshl_b32 s{sPc}, s{sT2}, 2
s_add_u32 s{sPc}, s{sPc}, s{sT0}
s_add_u32 s{sPc}, s{sPc}, s{sT1}
s_mul_i32 s{sPc}, s{sPc}, {FS}
s_add_u32 s{sPc}, s{sPc}, {FLAG_OFF + 64}
s_lshl_b32 s{sT3}, s{sT0}, 1
s_add_u32 s{sT3}, s{sT3}, s{sT2}
s_add_u32 s{sT3}, s{sT3}, s{sT1}
s_lshl_b32 s{sOin}, s{sT3}, 15
s_add_u32 s{sOin}, s{sOin}, {O_OFF}
s_and_b32 s{sT3}, s{sw}, 1
s_lshl_b32 s{sT3}, s{sT3}, 8
s_add_u32 s{sOin}, s{sOin}, s{sT3}
s_lshl_b32 s{sT3}, s{sKap}, 11
s_add_u32 s{sOin}, s{sOin}, s{sT3}""")
LATE += lines(f"""s_lshl_b32 s{sT1}, s{sj}, 2
s_add_u32 s{sT0}, s{sT0}, s{sT1}
s_lshl_b32 s{sT0}, s{sT0}, 2
s_and_b32 s{sT1}, s{sw}, 3
s_add_u32 s{sT0}, s{sT0}, s{sT1}
s_mul_i32 s{sOut}, s{sT0}, {16*1792}
s_mul_i32 s{sT0}, s{sb}, 896
s_add_u32 s{sOut}, s{sOut}, s{sT0}
s_add_u32 s{sOut}, s{sOut}, s{sWoff}
v_and_b32 v{t2}, 7, v{vLane}
s_add_u32 s{sT0}, s{sT1}, 5
s_lshl_b32 s{sT0}, s{sT0}, 13
s_and_b32 s{sT0}, s{sT0}, 0xffff
v_add_u32 v{vRw}, s{sT0}, v{vL16}
s_lshl_b32 s{sT2}, s{sT1}, 2
s_add_u32 s{sT2}, s{sT2}, {MISC}
v_mov_b32 v{vMf}, s{sT2}
s_mul_i32 s{sT2}, s{sT1}, 3072
s_add_u32 s{sT2}, s{sT2}, {SND}
v_add_u32 v{vSn}, s{sT2}, v{vL16}
v_lshrrev_b32 v{t1}, 3, v{vLane}
s_lshl_b32 s{sT2}, s{sKap}, 11
s_add_u32 s{sT0}, s{sT0}, s{sT2}
s_add_u32 s{sT0}, s{sT0}, 4096
v_xor_b32 v{t3}, v{t1}, v{t2}
v_lshlrev_b32 v{t3}, 4, v{t3}
v_lshl_add_u32 v{t3}, v{t1}, 7, v{t3}
v_add_u32 v{vTr}, s{sT0}, v{t3}
s_and_b32 s{sCg}, s{sh}, {3 if OPT["rotc"] else 0}
s_lshl_b32 s{sCg}, s{sCg}, 1
s_lshl_b32 s{sT2}, s{sKap}, 3
s_add_u32 s{sT2}, s{sT2}, s{sCg}
v_add_u32 v{t4}, s{sT2}, v{t2}
v_subrev_u32 v{t3}, 14, v{t4}
v_min_u32 v{t4}, v{t4}, v{t3}
v_mul_u32_u24 v{t3}, 1792, v{t1}
v_lshl_add_u32 v{vOs}, v{t4}, 4, v{t3}
v_add_u32 v{t3}, 2, v{t2}
v_lshrrev_b32 v{t3}, 3, v{t3}
v_mul_u32_u24 v{t3}, s{sKap}, v{t3}
v_lshl_add_u32 v{vOs}, v{t3}, 30, v{vOs}
v_and_b32 v{t0}, 15, v{vLane}
v_lshrrev_b32 v{t1}, 4, v{vLane}
v_lshrrev_b32 v{t3}, 1, v{t1}
v_xor_b32 v{t3}, v{t3}, v{t2}
v_lshlrev_b32 v{t3}, 4, v{t3}
v_lshl_add_u32 v{t3}, v{t0}, 7, v{t3}
v_and_b32 v{t4}, 1, v{t1}
v_lshl_add_u32 v{t3}, v{t4}, 3, v{t3}
v_add_u32 v{vTw}, s{sT0}, v{t3}
v_lshlrev_b32 v{vPc}, {ES}, v{t0}
v_lshlrev_b32 v{t2}, 12, v{t2}
v_add_u32 v{vLp}, {3*512+15*16}, v{t2}
v_lshlrev_b32 v{t2}, 9, v{t1}
v_lshl_add_u32 v{vOa}, v{t0}, 4, v{t2}""")
LATE += lines(f"""v_lshrrev_b32 v{t2}, 1, v{t1}
v_lshlrev_b32 v{t2}, 4, v{t2}
v_lshl_add_u32 v{t2}, v{t4}, 2, v{t2}
v_bfe_u32 v{t3}, v{vLane}, 2, 2
v_add_u32 v{t2}, v{t2}, v{t3}
v_mul_u32_u24 v{t2}, 224, v{t2}
v_and_b32 v{t3}, 3, v{vLane}
v_lshl_add_u32 v{t2}, v{t3}, 3, v{t2}
v_add_u32 v{t3}, 1, v{t1}
v_lshrrev_b32 v{t3}, 2, v{t3}
v_mul_u32_u24 v{t3}, {4*224}, v{t3}
v_sub_u32 v{t3}, v{t2}, v{t3}
s_mul_i32 s{sT0}, s{sKap}, 6272
s_add_u32 s{sT0}, s{sT0}, {WOB}
v_add_u32 v{vW0}, s{sT0}, v{t2}
s_add_u32 s{sT0}, s{sT0}, {8*224}
v_add_u32 v{vW1}, s{sT0}, v{t3}
s_mul_i32 s{sSp}, s{sKap}, {(WO15 - WOB - 6272 - 7*12544) & 0xffffffff}
s_add_u32 s{sSp}, s{sSp}, {7*12544}""")
LATE += lines(f"""v_mul_u32_u24 v{t2}, 0x4925, v{vLane}
v_lshrrev_b32 v{t2}, 18, v{t2}
v_mul_u32_u24 v{t3}, 14, v{t2}
v_sub_u32 v{t3}, v{vLane}, v{t3}
v_add_u32 v{t3}, s{sCg}, v{t3}
v_subrev_u32 v{t4}, 14, v{t3}
v_min_u32 v{t3}, v{t3}, v{t4}
v_mul_u32_u24 v{t2}, 896, v{t2}
v_lshl_add_u32 v{vWod}, v{t3}, 4, v{t2}
s_mul_i32 s{sWn}, s{sw}, 3584
s_add_u32 s{sWn}, s{sWn}, s{sWoff}
s_mul_i32 s{sWm}, s{sw}, 896
s_add_u32 s{sWm13}, s{sWm}, {WO15-896}
s_max_u32 s{sT0}, s{sw}, 1
s_sub_u32 s{sT0}, s{sT0}, s{sw}
s_mul_i32 s{sT0}, s{sT0}, {WOB+104*896-(WO15-896)}
s_add_u32 s{sWm13}, s{sWm13}, s{sT0}""")
L2 = LATE
ENDS = lines(f"""s_mul_i32 s{sT2}, s{sG}, {8*9363}
s_add_u32 s{sT3}, s{sT2}, {8*9363}
s_lshr_b32 s{sT2}, s{sT2}, 16
s_lshr_b32 s{sT3}, s{sT3}, 16
s_sub_u32 s{sT3}, s{sT3}, s{sT2}
s_lshl_b32 s{sT2}, s{sT2}, 18""")


def fq(withk):
    t = lines(f"""v_and_b32 v{t0}, 15, v{vLane}
    v_lshlrev_b32 v{t0}, 4, v{t0}
    v_bfe_u32 v{t1}, v{vLane}, 4, 1
    v_lshrrev_b32 v{t4}, 5, v{vLane}
    v_lshl_add_u32 v{t1}, v{t1}, 1, v{t4}
    s_lshl_b32 s{sT0}, s{sG}, 3
    v_add_u32 v{t1}, s{sT0}, v{t1}""")
    for i in range(2):
        t += lines(f"""v_add_u32 v{t2}, {4*i}, v{t1}
        v_mul_u32_u24 v{t3}, 9363, v{t2}
        v_lshrrev_b32 v{t3}, 16, v{t3}
        v_mul_u32_u24 v{t4}, 7, v{t3}
        v_sub_u32 v{t2}, v{t2}, v{t4}
        v_lshl_add_u32 v{t2}, v{t2}, 8, v{t0}
        v_lshl_add_u32 v{vSq[i]}, v{t3}, 17, v{t2}""")
        if withk:
            t.append(f"v_lshl_add_u32 v{vSt[i]}, v{t3}, 18, v{t2}")
    return t


FK = fq(True) + ENDS + lines(f"""s_add_u32 s{sT2}, s{sT2}, {7*256}
v_lshrrev_b32 v{t1}, 4, v{vLane}
v_cmp_gt_u32 vcc, s{sT3}, v{t1}
v_lshl_add_u32 v{t0}, v{t1}, 18, v{t0}
v_add_u32 v{t0}, s{sT2}, v{t0}
v_mov_b32 v{t3}, {OOB}
v_cndmask_b32 v{vP}, v{t3}, v{t0}, vcc""")
FV = fq(False) + lines(f"""v_and_b32 v{t0}, 31, v{vLane}
s_lshl_b32 s{sT0}, s{sG}, 5
v_add_u32 v{t2}, s{sT0}, v{t0}
v_and_b32 v{t4}, 32, v{vLane}
v_mul_u32_u24 v{t3}, 2341, v{t2}
v_lshrrev_b32 v{t3}, 16, v{t3}
v_mul_u32_u24 v{t1}, 28, v{t3}
v_sub_u32 v{t2}, v{t2}, v{t1}
v_add_u32 v{t2}, v{t2}, v{t4}
v_lshlrev_b32 v{t2}, 4, v{t2}
v_lshl_add_u32 v{t2}, v{t3}, 18, v{t2}
v_add_u32 v{vSt[0]}, 2048, v{t2}
v_add_u32 v{vSt[1]}, 3072, v{t2}""") + ENDS + lines(f"""s_add_u32 s{sT2}, s{sT2}, {2048+28*16}
v_lshrrev_b32 v{t0}, 4, v{vLane}
v_cmp_gt_u32 vcc, s{sT3}, v{t0}
v_bfe_u32 v{t1}, v{vLane}, 2, 2
v_lshlrev_b32 v{t1}, 9, v{t1}
v_lshl_add_u32 v{t1}, v{t0}, 18, v{t1}
v_and_b32 v{t2}, 3, v{vLane}
v_lshl_add_u32 v{t1}, v{t2}, 4, v{t1}
v_add_u32 v{t1}, s{sT2}, v{t1}
v_mov_b32 v{t3}, {OOB}
v_cndmask_b32 v{vP}, v{t3}, v{t1}, vcc
v_cmp_eq_u32 vcc, 0, v{t2}
v_mov_b32 v{t3}, 0x3f803f80
s_nop 0
v_cndmask_b32 v{vPd}, 0, v{t3}, vcc
v_mov_b32 v{vPd+1}, v{vPd}
v_mov_b32 v{vPd+2}, v{vPd}
v_mov_b32 v{vPd+3}, v{vPd}""")


def st16(data, addr, soff, off=0):
    return (f"buffer_store_dwordx4 {v(data,4)}, v{addr}, s[{sWS}:{sWS+3}], s{soff} offen offset:{off} sc1", "ST")


def st8(data, addr, soff):
    return (f"buffer_store_dwordx2 {v(data,2)}, v{addr}, s[{sWS}:{sWS+3}], s{soff} offen sc1", "ST")


POS = [32768, 0, 65536]


def kv_addr(blk, t, off):
    p = POS[blk % 3] + t * 4096 + off
    return (vCur, p - 65536) if POS[blk % 3] >= 65536 else (vBase, p)


def kv_next(st):
    pos = POS[st % 3]
    return f"""s_add_u32 s{sRel}, s{sRel}, {0x12000 if st == 4 else 0x10000}
    s_and_b32 s{sRel}, s{sRel}, 0x3ffff
    s_add_u32 m0, s{sMX}, {pos}
    s_add_u32 s{sD0}, s{sRel}, s{sKV}"""


def kv_piece(i):
    return f"buffer_load_dwordx4 v{vL16}, s[{sWS}:{sWS+3}], s{sD0} offen offset:{1024*i}{['', ' sc1', ' nt', ' sc1 nt'][OPT.get('kvs', 1)]} lds"


def flag_text(off=0):
    return f"""s_mov_b64 exec, 1
    buffer_store_dword v{vTag}, v{vL16}, s[{sWS}:{sWS+3}], s{sFl} offen offset:{off} sc1
    s_mov_b64 exec, -1"""


def poll_text(mask):
    return f"""s_mov_b64 exec, {mask if mask < 64 else hex(mask)}
    buffer_load_dword v{vFl}, v{vPl}, s[{sWS}:{sWS+3}], s{sPl} offen sc1
    s_mov_b64 exec, -1"""


def poll_issue(mask=15):
    A(poll_text(mask))


ntry = [0]


def hook_try(level=2):
    ntry[0] += 1
    A(f"""s_cmp_ge_u32 s{sDone}, {level}
    s_cbranch_scc1 L_skip{ntry[0]}
    s_call_b64 s[{sRet}:{sRet+1}], L_try""")
    A.label(f"L_skip{ntry[0]}")


def spin(level, name):
    A(f"s_mov_b32 s{sSpin}, 0x40000")
    A.label(name)
    A(f"""s_cmp_ge_u32 s{sDone}, {level}
    s_cbranch_scc1 {name}_done
    s_call_b64 s[{sRet}:{sRet+1}], L_try
    s_sub_u32 s{sSpin}, s{sSpin}, 1
    s_cbranch_scc0 {name}""")
    A.label(name + "_done")


POLL0 = f"""s_mov_b32 exec_lo, 15
    s_mov_b32 exec_hi, 15
    buffer_load_dword v{vFl}, v{vPl}, s[{sWS}:{sWS+3}], s{sPl} offen sc1
    s_mov_b64 exec, -1"""


class Stream:
    def __init__(self):
        self.vm, self.lg = Cnt("vmcnt", 63), Cnt("lgkmcnt", 15)

    def dma(self, p):
        A(p[0])
        self.vm.issue(p[1])

    def ds(self, text, tag):
        self.lg.room()
        A(text)
        self.lg.issue(tag)

    def run(self, steps, fill=(), nf=0):
        fill = list(fill)
        for st in steps[:2]:
            for r in st["rd"]:
                self.ds(*r)
        for i, st in enumerate(steps):
            self.lg.wait(*st["need"])
            for f in st["pre"]:
                f()
            side = steps[i + 2]["rd"] if i + 2 < len(steps) else []
            n = len(st["mm"])
            for k, m in enumerate(st["mm"]):
                A(m if not (OPT.get("nom") and i % OPT["nom"]) else "s_nop 0")
                for r in side[k * len(side) // n:(k + 1) * len(side) // n]:
                    self.ds(*r)
                for p in st["dma"][k * len(st["dma"]) // n:(k + 1) * len(st["dma"]) // n]:
                    self.dma(p)
                emit(fill, nf)
            for f in st["post"]:
                f()
        assert not fill


def mf(d, a_, b_, first):
    return f"v_mfma_f32_32x32x16_bf16 {v(d,16)}, {v(a_,4)}, {v(b_,4)}, {'0' if first else v(d,16)}"


def pack(ac, pp, swap):
    t = [f"v_cvt_pk_bf16_f32 v{pp+r}, v{ac+2*r}, v{ac+2*r+1}" for r in range(8)]
    if swap:
        t += [f"v_permlane16_swap_b32 v{pp+4*i+k}, v{pp+4*i+k+2}" for i in range(2) for k in range(2)]
    return "\n".join(t)


ZO = [f"v_mov_b32 v{O[0]+r}, 0" for r in range(32)]


def project(m):
    S_ = Stream()
    S_.vm.issue("C0", 5)
    S_.vm.issue("C1", 5)
    steps = []
    for g in range(28):
        it, st = divmod(g, 4)
        sl, tag = (it % 3) * 8192, f"F{g}"
        w_, q_, xe, xl = Ws + 4 * g, Wg + 4 * (g % 3), Xe + 4 * (g % 3), Xl + 4 * (g % 3)
        rd = [(f"ds_read_b128 {v(xe,4)}, v{vXa[st]} offset:{sl}", tag)]
        rd += [(f"ds_read_b64_tr_b16 {v(w_+2*u,2)}, v{vWr} offset:{sl+st*2048+u*512}", tag) for u in range(2)]
        rd += [(f"ds_read_b64_tr_b16 {v(q_+2*u,2)}, v{vWqr} offset:{sl+st*2048+u*512}", tag) for u in range(2)]
        if m:
            rd += [(f"ds_read_b128 {v(xl,4)}, v{vXl[st]} offset:{it*8192}", tag)]
        mm = [mf(accU, xe, w_, g == 0) if m else mf(accU, w_, xe, g == 0), mf(accQ, q_, xl if m else xe, g == 0)]
        steps.append(dict(rd=rd, mm=mm, need=[tag], pre=[], dma=[], post=[]))
    for c in range(1, 7):
        i = 4 * c - 2
        steps[i]["need"].append(f"F{i+1}")
        steps[i]["pre"].append(lambda c=c: (S_.vm.wait(f"C{c}"), A("s_barrier"), ts(4 + c, 2)))
        if c + 2 <= 6:
            for k, p in enumerate(pieces(c + 2)):
                steps[i + [0, 0, 1, 1, 2][k] if OPT["dd"] else i + [0, 1, 1, 2, 3][k]]["dma"].append(p)
    for k, p in enumerate(pieces(2)):
        steps[k // 3]["dma"].append(p)
    steps[23]["dma"].append(st16(vPd, vP, sKVt))
    S_.vm.wait("C0")
    ts(3, 2)
    A("s_barrier")
    ts(4, 2)
    fill = ([] if OPT.get('mp') else MID) + [FK, FV][m] + (L1 if OPT["lf"] else [])
    S_.run(steps, fill, -(-len(fill) // 44))
    ts(2)
    ts(12, 2)
    A(pack(accU, PK, not m))
    for i in range(2):
        A(st16(PK + 4 * i, vSt[i], sKVt)[0])
    for r in range(8):
        A(f"v_pk_mul_f32 {v(accQ+2*r,2)}, {v(accQ+2*r,2)}, s[{sCs}:{sCs+1}]")
    A(pack(accQ, PK + 8, True))
    for i in range(2):
        A(st16(PK + 8 + 4 * i, vSq[i], sQt)[0])
    ts(1)
    A("s_barrier")
    steps = []
    for g in range(28):
        it, st = divmod(g, 4)
        xl = Xl + 4 * (g % 3)
        steps.append(dict(rd=[(f"ds_read_b128 {v(xl,4)}, v{vXl[st]} offset:{it*8192}", f"L{g}")],
                          mm=[mf(accU, xl, Ws + 4 * g, g == 0) if m else mf(accU, Ws + 4 * g, xl, g == 0)],
                          need=[f"L{g}"], pre=[], dma=[], post=[]))
    steps[OPT["fq"]]["post"].append(lambda: (A("s_waitcnt vmcnt(0)"), A(flag_text()), ts(4)))
    steps[OPT["pq"]]["post"].append(lambda: A(POLL0))
    for g in range(OPT["pq"] + OPT["tq"], 28, OPT["tq"]):
        steps[g]["post"].append(lambda: hook_try(1))
    fill = ([] if OPT["lf"] else L1) + L2
    nf = -(-len(fill) // 27)
    assert OPT["lf"] or nf * OPT["pq"] >= len(L1)
    S_.run(steps, fill, nf)
    A(pack(accU, PK, not m))
    ts(11)
    A("s_branch L_j")


TAG = lines(f"""s_waitcnt lgkmcnt(0)
s_mul_i32 s{stag}, s{sE}, 0x9e3779b1
s_add_u32 s{stag}, s{stag}, 0x7f4a7c15
v_mov_b32 v{vTag}, s{stag}""")
A(f"""s_cmp_eq_u32 s{sNone}, 1
s_cbranch_scc1 L_none""")
ea = list(EARLY)
for k, (p, _) in enumerate(pieces(0) + pieces(1)):
    A(p)
    if k == 4:
        ts(1, 2)
        if OPT["ibar"]:
            A("s_barrier")
    if k >= 4:
        emit(ea, -(-len(EARLY) // 6))
if OPT.get('mp'):
    emit(list(MID), 99)
emit(list(TAG), 4)
ts(2, 2)
A(f"""s_cmp_lg_u32 s{sKap}, 0
s_cbranch_scc1 L_pv""")
project(0)
A.label("L_pv")
project(1)
A.label("L_none")
emit(EARLY[:3] + MID + TAG, 999)
A(flag_text())
emit(L1 + L2 + [f"v_mov_b32 v{x}, {OOB}" for x in (vSt[0], vSt[1], vP)], 999)
for _ in range(OPT.get("nsl", 0)):
    A("s_sleep 36")
A(POLL0)
A.label("L_j")
spin(1, "L_spin0")
emit(list(ZO), 32)
A(f"""s_add_u32 s{sKVt}, s{sKVt}, 8192
v_mov_b32 v{t5}, {f2u(float(OPT["off"])) >> 16}
s_waitcnt vmcnt(1)""")
for q in range(2):
    A(f"""v_cndmask_b32 v{Q[q]+6}, v{t5}, v{Q[q]+6}, s[{sLo}:{sLo+1}]
    v_cndmask_b32 v{Q[q]+7}, 0, v{Q[q]+7}, s[{sLo}:{sLo+1}]""")
A("s_branch L_b0")
A.label("L_try")
A(f"""s_waitcnt vmcnt(0)
v_cmp_ne_u32 vcc, s{stag}, v{vFl}
s_or_b32 s{sD1}, vcc_lo, vcc_hi
s_and_b32 s{sD1}, s{sD1}, 15
s_cbranch_scc0 L_try0""")
A(POLL0)
A(f"s_setpc_b64 s[{sRet}:{sRet+1}]")
A.label("L_try0")
ts(5)
A(f"""s_add_u32 m0, s{sMX}, {POS[0]}
s_add_u32 s{sD0}, s{sRel}, s{sKV}""")
for i in range(4):
    A(kv_piece(i))
for q in range(2):
    for i in range(4):
        A(f"buffer_load_dwordx2 {v(Q[q]+2*i,2)}, v{vQr}, s[{sWS}:{sWS+3}], s{[sQa, sQb][q]} offen offset:{512*i} sc1")
A(f"s_mov_b32 s{sDone}, 1")
poll_issue(0xffff)
A(f"s_setpc_b64 s[{sRet}:{sRet+1}]")

A.label("L_b0")
for _ in range(OPT.get("idle", 0)):
    A("s_sleep 36")
A("s_barrier")
ts(12)
ts(1, 4)

A(f"""ds_read2st64_b64 {v(Kf[0],4)}, v{vBk} offset0:64 offset1:65
ds_read2st64_b64 {v(Kf[0]+4,4)}, v{vBk} offset0:66 offset1:67
s_waitcnt lgkmcnt(1)
v_mfma_f32_32x32x16_bf16 {v(S[0],16)}, {v(Kf[0],4)}, {v(Q[0],4)}, {C0}
s_waitcnt lgkmcnt(0)
v_mfma_f32_32x32x16_bf16 {v(S[0],16)}, {v(Kf[0]+4,4)}, {v(Q[0]+4,4)}, {v(S[0],16)}
ds_read2st64_b64 {v(Kf[1],4)}, v{vBk} offset0:72 offset1:73
ds_read2st64_b64 {v(Kf[1]+4,4)}, v{vBk} offset0:74 offset1:75
ds_read_b128 {v(Vf[0],4)}, v{vBase} offset:34816
ds_read_b128 {v(Vf[0]+4,4)}, v{vBase} offset:35840""")


def wo_piece(r):
    m = f"s_mov_b32 m0, s{sWm13}" if r == 13 else f"s_add_u32 m0, s{sWm}, {WOB + 8*r*896}"
    return f"""{m}
    s_add_u32 s{sD1}, s{sWn}, {8*r*3584}
    buffer_load_dwordx4 v{vWod}, s[{sWO}:{sWO+3}], s{sD1} offen lds"""


EXTRA = {}
AFTER = {}


def extra(w_, sl, text):
    EXTRA.setdefault((w_, sl), []).append(text)


def window(W):
    blk, u = divmod(W, 8)
    un, up = u + 1, u - 1
    tn, qn = un // 2, un % 2
    tp, qp = up // 2, up % 2
    Sc, Sn, Sp = S[u % 4], S[un % 4], S[up % 4]
    Kn, Vp = Kf[tn % 2], Vf[tp % 2]
    if blk == 7 and OPT["reo"]:
        UN = {5: (3, 0), 6: (2, 1)}
        if un in UN:
            Kn, qn = Kf[UN[un][0] % 2], UN[un][1]
        if up in UN:
            Vp, qp = Vf[UN[up][0] % 2], UN[up][1]
        if u in (4, 6):
            A("s_waitcnt lgkmcnt(2)" if u == 4 else "s_waitcnt lgkmcnt(0)")
    h0, h1 = (4, 0) if OPT["hf"] else (0, 4)
    m = [f"v_mfma_f32_32x32x16_bf16 {v(Sn,16)}, {v(Kn+h0,4)}, {v(Q[qn]+h0,4)}, {C0}",
         f"v_mfma_f32_32x32x16_bf16 {v(Sn,16)}, {v(Kn+h1,4)}, {v(Q[qn]+h1,4)}, {v(Sn,16)}",
         f"v_smfmac_f32_32x32x32_bf16 {v(O[qp],16)}, {v(Vp,4)}, {v(Sp,8)}, v{vIdx}",
         f"v_smfmac_f32_32x32x32_bf16 {v(O[qp],16)}, {v(Vp+4,4)}, {v(Sp+8,8)}, v{vIdx}"]
    if W == 0:
        m[2] = m[3] = None
    if W == 63:
        m = [m[2], None, m[3], None]
    if W == 62 and OPT["reo"] == 2:
        m = [m[0], m[2], m[1], m[3]]
    mem = [[], [], [], []]
    pre = [[], [], [], []]

    def rd(dst, T, off):
        if off < 2048 and not OPT.get('kb128'):
            o = (POS[(blk + T // 4) % 3] + (T % 4) * 4096 + off) // 512
            if OPT.get("k64"):
                a, oo = (vBk, o * 512) if o < 128 else (vTag2, o * 512 - 65536)
                return f"ds_read_b64 {v(dst,2)}, v{a} offset:{oo}\nds_read_b64 {v(dst+2,2)}, v{a} offset:{oo+512}"
            return f"ds_read2st64_b64 {v(dst,4)}, v{vBk} offset0:{o} offset1:{o+1}"
        a, o = kv_addr(blk + T // 4, T % 4, off)
        return f"ds_read_b128 {v(dst,4)}, v{a} offset:{o}"
    if u % 2 == 1:
        if not (u == 5 and (blk > 0 or OPT["b0"])):
            A("s_waitcnt lgkmcnt(0)")
        tt = tn
        Kd, Vd = Kf[(tt + 1) % 2], Vf[tt % 2]
        rk = [rd(Kd, tt + 1, 0), rd(Kd + 4, tt + 1, 1024)]
        rv = [rd(Vd, tt, 2048), rd(Vd + 4, tt, 3072)]
        if W == 61 or (W == 5 and not OPT['b0']):
            mem[0 if W == 61 else 2].append(rv[0])
            mem[1 if W == 61 else 3].append(rv[1])
        elif W == 63:
            pass
        elif W == 7 and not OPT['b0']:
            A(rd(Kn, 4, 0))
            A(rd(Kn + 4, 4, 1024))
            m = [m[2], m[3], m[0], m[1]]
            mem[0] += [rk[0], rk[1]]
            mem[1] += [rv[0], rv[1]]
            pre[2].append("s_waitcnt lgkmcnt(4)")
        else:
            RS_ = [[0, 1, 2, 3], [2, 2, 3, 3], [0, 0, 1, 1], [2, 3, 0, 1]][OPT.get("rsl", 0)]
            order = sorted(range(4), key=lambda k: RS_[k])
            for k in range(4):
                mem[RS_[k]].append((rk + rv)[k])
    for q in range(4):
        for x in pre[q]:
            A(x)
        if m[q]:
            A(m[q])
        for x in mem[q] + (EXTRA.get((W, q), []) if not (OPT.get("nodma") and 23 <= W < 53) else []):
            A(x)
        EB = [[0, 4, 8, 12, 16], [0, 0, 8, 8, 16], [0, 3, 8, 11, 16], [0, 2, 8, 10, 16], [0, 3, 7, 10, 16],
              [0, 5, 8, 13, 16]][OPT.get("bb", 0) if W < 62 else 0]
        for e in range(EB[q], EB[q + 1]):
            A(f"v_exp_f32 v{Sc+e}, v{Sc+e}")
    for hk in AFTER.get(W, []):
        hk()


def mk_bar(n):
    def f():
        A(f"""s_waitcnt vmcnt({n}) lgkmcnt(0)""")
        if not OPT.get("nobar"):
            A("s_barrier")
    return f


def check_text(reg, mask, name):
    return f"""v_cmp_ne_u32 vcc, s{stag}, v{reg}
    s_and_b32 s{sD1}, vcc_lo, {mask}
    s_cbranch_scc1 {name}
    {name}_done:"""


PUB = [st16(PK + 4 * i, vSt[i], sKVt)[0] for i in range(2)] + [st16(vPd, vP, sKVt)[0]]
extra(0, 2, "s_waitcnt vmcnt(0)\n" + check_text(vFl, "0xffff", "L_polll"))
extra(0, 3, kv_next(1) + "\n" + kv_piece(0))
for i in range(1, 4):
    extra(1, i - 1, kv_piece(i))
for i in range(3):
    extra(2, i, PUB[i])
AFTER.setdefault(4, []).append(mk_bar(3))
AFTER[4].append(lambda: ts(6))
extra(6, 0, "s_waitcnt vmcnt(0)\n" + flag_text(32))
extra(6, 1, kv_next(2) + "\n" + kv_piece(0))
extra(6, 3, kv_piece(1))
extra(8, 0, kv_piece(2))
extra(8, 2, kv_piece(3))
extra(9, 1, "\n".join(f"v_mov_b32 v{vOnes+r}, -1" for r in range(4)))
extra(40, 1, f"""v_lshrrev_b32 v{t0}, 2, v{vL16}
v_and_b32 v{t0}, 60, v{t0}
v_add_u32 v{t0}, {MISC}, v{t0}
v_mov_b32 v{t1}, 0
ds_write_b32 v{t0}, v{t1}""")
extra(10, 0, st16(vOnes, vL16, sOt)[0])
extra(10, 2, st16(vOnes, vL16, sOt, 1024)[0])
extra(30, 1, flag_text(64))
extra(17, 1, poll_text(0x7fff0000).replace("0x7fff0000", "0xffff0000"))


extra(21, 2, check_text(vFl, "0xffff0000", "L_pollh"))
if OPT.get("tou"):
    e0, e1 = ("s_mov_b64 exec, 1\n", "\ns_mov_b64 exec, -1") if OPT["tou"] == 2 else ("", "")
    extra(36, 1, f"{e0}buffer_load_dword v{t2}, v{vOs}, s[{sOUT}:{sOUT+3}], s{sOut} offen{e1}")
    extra(28, 1, f"s_add_u32 s{sT1}, s{sOut}, {8*1792}\n{e0}buffer_load_dword v{t2}, v{vOs}, s[{sOUT}:{sOUT+3}], s{sT1} offen{e1}")
wo_early = list(range(5, 13))
for i in range(1, 8):
    nwo = 2 if i == 1 else 0
    if i >= 2 and wo_early:
        for sl in (0, 2):
            extra(8 * i + 2, sl, wo_piece(wo_early.pop(0)))
            nwo += 1
    if OPT.get("tou") and i in (3, 4):
        nwo += 1
    if OPT.get("bs") is not None and i < 7:
        extra(8 * i + 4, OPT["bs"], f"s_waitcnt vmcnt({nwo}) lgkmcnt(0)\ns_barrier\ns_setprio 3")
    else:
        AFTER.setdefault(8 * i + 4, []).append(mk_bar(nwo))
    if i <= 5:
        DS_ = [[(6, 0), (6, 2), (8, 0), (8, 2)], [(6, 2), (6, 3), (8, 2), (8, 3)], [(6, 0), (6, 1), (8, 0), (8, 1)],
               [(6, 1), (6, 3), (8, 1), (8, 3)], [(6, 0), (6, 1), (6, 2), (6, 3)]][OPT.get("dsl", 0)]
        extra(8 * i + DS_[0][0], DS_[0][1], kv_next(i + 2) + "\n" + kv_piece(0))
        for k in range(1, 4):
            extra(8 * i + DS_[k][0], DS_[k][1], kv_piece(k))
assert not wo_early
for k, r in enumerate([0, 1, 2, 3, 4, 13]):
    extra([54, 54, 55, 56, 56, 57][k], [0, 2, 1, 0, 2, 1][k], wo_piece(r))
extra(50, 0, f"buffer_load_dword v{vQm}, v{vPc}, s[{sWS}:{sWS+3}], s{sPc} offen sc1")
extra(58, 0, check_text(vQm, "0xffff", "L_pollc"))
extra(58, 2, f"""s_or_b32 s{sT0}, s{sh}, s{sj}
    s_or_b32 s{sT0}, s{sT0}, s{sw}
    s_cbranch_scc0 L_epoch
    L_epd:""")
sTk, sAv = sTodo, sRem


def oload(l):
    return f"""s_add_u32 s{sT0}, s{sOin}, {l*4096}
    buffer_load_dwordx4 {v(Of+4*l,4)}, v{vOa}, s[{sWS}:{sWS+3}], s{sT0} offen sc1"""


def cload(l):
    return f"""s_bitcmp1_b32 s{sAv}, {l}
    s_cselect_b64 exec, -1, 0
    {oload(l)}"""


POLL = f"""s_andn2_b32 exec_lo, 0xff, s{sTk}
    s_mov_b32 exec_hi, 0
    buffer_load_dword v{vQm}, v{vLp}, s[{sWS}:{sWS+3}], s{sOin} offen sc1
    s_mov_b64 exec, -1"""
SENDL = [f"ds_write_b128 v{vQw}, {v(O[0]+4*i,4)} offset:{1024*i}" for i in range(4)] + [f"ds_write_b32 v{vOs2}, v{t4}"]
SEND = "\n".join(SENDL)
if OPT["reo"]:
    extra(63, 2, SEND)
extra(44, 1, f"""s_lshl_b32 s{sT0}, s{sKap}, 12
    v_add_u32 v{vQw}, s{sT0}, v{vRw}
    v_xor_b32 v{vQr}, 0x1000, v{vQw}
    s_mul_i32 s{sT0}, s{sKap}, 48
    v_add_u32 v{vOs2}, s{sT0}, v{vMf}
    v_xor_b32 v{vPl}, 48, v{vOs2}
    v_mov_b32 v{t4}, 1""")
for (ww, sl, pr) in [[(61, 0, 3), (62, 0, 2), (63, 0, 1), (63, 2, 0)], [(61, 0, 3), (62, 2, 2), (63, 2, 1)],
                     [(61, 0, 1), (63, 0, 0)]][OPT["lseg"]]:
    extra(ww, sl, f"s_setprio {pr}")
PSEG = {1: [(0, 0, 3), (3, 0, 2), (6, 0, 1), (7, 2, 0)], 2: [(0, 0, 3), (4, 0, 2), (6, 2, 1), (7, 3, 0)],
        3: [(0, 0, 1), (7, 2, 0)], 4: [(0, 0, 3), (2, 0, 2), (4, 0, 1), (6, 0, 0)], 5: [(0, 0, 1), (7, 0, 0)],
        6: [(0, 0, 2), (5, 0, 1), (7, 2, 0)], 7: [(3, 3, 2), (6, 1, 1), (7, 2, 0)], 8: [(3, 2, 2), (6, 0, 1), (7, 1, 0)],
        9: [(0, 0, 3), (5, 0, 2), (7, 0, 1), (7, 3, 0)], 10: [(0, 0, 3), (3, 0, 2), (5, 2, 1), (7, 1, 0)]}
if OPT.get("pseg"):
    for (ww, sl, pr) in ([(0, 0, 3), (2, 0, 2), (3, 2, 1), (4, 3, 0)] if OPT["b0"] else
                         [(0, 0, 3), (3, 0, 2), (5, 2, 1), (6, 3, 0), (7, 0, 3), (9, 0, 2), (11, 2, 1), (12, 3, 0)]):
        EXTRA.setdefault((ww, sl), []).insert(0, f"s_setprio {pr}")
    if OPT.get("bs") is not None:
        EXTRA.setdefault((5, 0), []).insert(0, "s_setprio 3")
    for i in range(0 if OPT["b0"] else 1, 7):
        for (dw, sl, pr) in PSEG[OPT["pseg"]]:
            EXTRA.setdefault((8 * i + 5 + dw, sl), []).insert(0, f"s_setprio {pr}")
if OPT.get("prio"):
    A(f"""s_cmp_eq_u32 s{sKap}, {OPT["prio"] & 1}
    s_cbranch_scc0 L_np
    s_setprio 1""")
    A.label("L_np")
for W in range(64):
    TW = [0, 1, 3, 5, 7, 13, 21, 29, 37, 45, 53, 61] if not OPT.get("tw") else [16, 56]
    if OPT.get("al") and W % OPT["al"] == 0:
        A(".p2align 3")
    if W in TW:
        ts(2 + TW.index(W), 4)
    elif OPT.get("jit") and W % 2 == 0 or OPT.get("jit") and W > 56:
        ts(15, 9)
    window(W)
A(f"""s_nop 0
v_smfmac_f32_32x32x32_bf16 {v(O[1],16)}, {v(Vf[1],4)}, {v(S[3],8)}, v{vIdx}
v_smfmac_f32_32x32x32_bf16 {v(O[1],16)}, {v(Vf[1]+4,4)}, {v(S[3]+8,8)}, v{vIdx}""")
ts(7)
ts(14, 4)

R = S[0]
if not OPT["reo"]:
    A(SEND)
A(f"s_mov_b32 s{sSpin}, 0x400000")
A.label("L_mwait")
A(f"ds_read_b32 v{t2}, v{vPl}")
for i in (3, 0, 1, 2):
    A(f"ds_read_b128 {v(R+4*i,4)}, v{vQr} offset:{1024*i}")
A(f"""s_sub_u32 s{sSpin}, s{sSpin}, 1
s_cbranch_scc1 L_mgo
s_waitcnt lgkmcnt(4)
v_readfirstlane_b32 s{sT0}, v{t2}
s_cmp_eq_u32 s{sT0}, 0
s_cbranch_scc1 L_mspin""")
A.label("L_mgo")
Ob = O[1]
rc = vFl
A(f"""s_waitcnt lgkmcnt(3)
v_pk_add_f32 {v(Ob+12,2)}, {v(Ob+12,2)}, {v(R+12,2)}
v_pk_add_f32 {v(Ob+14,2)}, {v(Ob+14,2)}, {v(R+14,2)}""")
A.label("L_norm")
A(f"""v_mov_b32 v{t0}, v{Ob+12}
v_mov_b32 v{rc}, v{Ob+12}
s_waitcnt lgkmcnt(0)
v_pk_add_f32 {v(Ob,2)}, {v(Ob,2)}, {v(R,2)}
v_permlane32_swap_b32 v{t0}, v{rc}
v_pk_add_f32 {v(Ob+2,2)}, {v(Ob+2,2)}, {v(R+2,2)}
v_subrev_u32 v{t0}, {hex(L_LO)}, v{rc}
v_rcp_f32 v{rc}, v{rc}
v_cmp_lt_u32 vcc, s{sChk}, v{t0}""")
for r in range(4, 12, 2):
    A(f"v_pk_add_f32 {v(Ob+r,2)}, {v(Ob+r,2)}, {v(R+r,2)}")
A("""s_cmp_lg_u64 vcc, 0
s_cbranch_scc1 L_slow""")
for f in range(2):
    for r in range(8 * f, 8 * f + 8, 2):
        A(f"v_pk_mul_f32 {v(Ob+r,2)}, {v(Ob+r,2)}, {v(rc,2)} op_sel_hi:[1,0]")
    for r in range(4 * f, 4 * f + 4):
        A(f"v_cvt_pk_bf16_f32 v{pk+r}, v{Ob+2*r}, v{Ob+2*r+1}")
    if f:
        for r in (6, 7):
            A(f"v_cndmask_b32 v{pk+r}, 0, v{pk+r}, s[{sLo}:{sLo+1}]")
    for r in range(4 * f, 4 * f + 4):
        A(f"v_min_u32 v{pk+r}, -2, v{pk+r}")
    A(f"buffer_store_dwordx4 {v(pk+4*f,4)}, v{vL16}, s[{sWS}:{sWS+3}], s{sOt} offen offset:{1024*f} sc1")
A("s_setprio 0")
ts(8)

TILES = list(range(O[0], Of, 4)) + [DEAD, DEAD + 4]
assert len(TILES) >= 42
pk2, rb = Of, Of + 8
sOk = sDone
OOL = []


def wtile(l, ct):
    return TILES[7 * (l % 6) + ct]


def wtext(l, ct):
    a0, a1, off = (vW0, vW1, l * 12544) if l < 6 else (t1, t2, 0) if l == 6 else (t3, t4, 0)
    d = wtile(l, ct)
    return f"""ds_read_b64_tr_b16 {v(d,2)}, v{a0} offset:{off+32*ct}
    ds_read_b64_tr_b16 {v(d+2,2)}, v{a1} offset:{off+32*ct}"""


A.label("L_p3e")
if OPT["ts"] == 5:
    A("s_mov_b32 s11, 1")
tsd(0)
A(f"s_mov_b32 s{sSpin}, 0x40000")
sSl = 14
vXw = [vTw, vLane, vIdx, t5]
for l in range(8):
    A(f"s_add_u32 s{sSl+l}, s{sOin}, {4096*l}")
A.label("L_p3r")
A(f"""s_mov_b32 s{sTk}, 0
v_add_u32 v{t1}, {6*12544}, v{vW0}
v_add_u32 v{t2}, {6*12544}, v{vW1}
v_add_u32 v{t3}, s{sSp}, v{vW0}
v_add_u32 v{t4}, s{sSp}, v{vW1}
s_waitcnt lgkmcnt(0)""")
for i in range(42):
    if i >= 6 and i % 3 == 0:
        A("s_waitcnt lgkmcnt(8)")
    if i == OPT["pp"]:
        A(POLL)
    A(wtext(i // 7, i % 7))
tsd(1)
A("s_branch L_w1")
A.label("L_w0")
if OPT.get("slp"):
    A(f"s_sleep {OPT['slp']}")
A(POLL)
A.label("L_w1")
A(f"""s_sub_u32 s{sSpin}, s{sSpin}, 1
s_cselect_b32 s{sT0}, 0xff, 0
s_cselect_b32 s{sSpin}, 0, s{sSpin}
s_waitcnt vmcnt(0)
v_cmp_ne_u32 vcc, -1, v{vQm}
s_or_b32 s{sTk}, vcc_lo, s{sT0}
s_andn2_b32 s{sT0}, 0xff, s{sTk}
s_cbranch_scc1 L_w0""")
tsd(9)
for l in range(8):
    A(f"buffer_load_dwordx4 {v(Of+4*l,4)}, v{vOa}, s[{sWS}:{sWS+3}], s{sSl+l} offen sc1")
tsd(7)
A(f"""v_mov_b32 v{vFl}, 1
s_add_u32 s{sT1}, s{sOut}, {8*1792}""")
for ct in range(1, 4):
    A(f"v_xor_b32 v{vXw[ct]}, {32*ct}, v{vTw}")
XR_ = {}
HS = OPT.get("hs", 2)


def xspin(kap):
    A(f"""L_xsk{kap}:
    ds_read_b32 v{t0}, v{vMf} offset:{32-16*kap}
    s_sub_u32 s{sSpin}, s{sSpin}, 1
    s_waitcnt lgkmcnt(0)
    s_cbranch_scc1 L_yk{kap}
    v_readfirstlane_b32 s{sT0}, v{t0}
    s_cmp_eq_u32 s{sT0}, 0
    s_cbranch_scc1 L_xsk{kap}
    {XR_[kap]}
    s_branch L_yk{kap}""")


def p3(kap):
    n = f"k{kap}"
    keep = [0, 1, 2, 3] if kap == 0 else [4, 5, 6]
    send = [4, 5, 6] if kap == 0 else [0, 1, 2, 3]
    wa_, ra_ = (vSn, vRw) if kap == 0 else (vRw, vSn)
    rxs = [wtile(2 + i, send[0]) for i in range(len(keep))]
    lg = Cnt("lgkmcnt", 15)

    def mm(l, ct, first):
        lg.wait(f"W{l}_{ct}")
        A(f"v_mfma_f32_16x16x32_bf16 {v(acc+4*ct,4)}, {v(wtile(l,ct),4)}, {v(Of+4*l,4)}, {'0' if first else v(acc+4*ct,4)}")
        if l < 2:
            for x in lines(wtext(6 + l, ct)):
                lg.room()
                A(x)
                lg.issue(f"W{6+l}_{ct}")

    A(f"s_setprio {[[1, 1], [2, 2], [3, 2]][OPT.get('kp', 0)][kap]}")
    for l in range(8):
        b0 = Of + 4 * l
        A(f"s_waitcnt vmcnt({7-l})" + (" lgkmcnt(0)" if l == 0 else ""))
        if l == 0:
            tsd(2)
        for k, ct in enumerate(send + (keep if l < HS else [])):
            mm(l, ct, l == 0)
            if k < 2:
                A(f"v_max3_u32 v{t0}, v{b0+2*k}, v{b0+2*k+1}, {'0' if l + k == 0 else f'v{t0}'}")
    A(f"v_cmp_eq_u32 vcc, -1, v{t0}")
    side = [f"ds_write_b128 v{wa_}, {v(acc+4*ct,4)} offset:{1024*i}" for i, ct in enumerate(send)]
    side.append(f"ds_write_b32 v{vMf}, v{vFl} offset:{16+16*kap}")
    xrd = [f"ds_read_b32 v{t0}, v{vMf} offset:{32-16*kap}"] + [
        f"ds_read_b128 {v(rxs[i],4)}, v{ra_} offset:{1024*i}" for i in range(len(keep))]
    cnt = 0
    for l in range(HS, 8):
        for k, ct in enumerate(keep):
            mm(l, ct, l == 0)
            cnt += 1
            if cnt == 1:
                A(f"""s_cmp_lg_u64 vcc, 0
                s_cbranch_scc1 L_redo{n}""")
                A.label(f"L_good{n}")
            if l >= 2 and cnt >= 3 and side:
                lg.room()
                A(side.pop(0))
                lg.issue("S")
                if not side:
                    A(f"s_setprio {kap if OPT.get('kp') else 0}")
            if l == OPT.get("xl7", 7) and k < 3:
                for x in ([xrd[0], xrd[1]], xrd[2:3], xrd[3:])[k]:
                    lg.room()
                    A(x)
                    lg.issue("X")
    OOL.append(f"""L_redo{n}:
    s_sub_u32 s{sSpin}, s{sSpin}, 1
    s_cbranch_scc0 L_p3r
    s_branch L_good{n}""")
    tsd(3)
    ts(9)
    A(f"""s_mov_b32 s{sSpin}, 0x400000
    s_waitcnt lgkmcnt({len(keep)})
    v_readfirstlane_b32 s{sT0}, v{t0}
    s_cmp_eq_u32 s{sT0}, 0
    s_cbranch_scc1 L_xs{n}""")
    XR_[kap] = "\n".join(xrd[1:])
    A.label(f"L_y{n}")
    tsd(4)
    tsa(9)
    wa = vXw
    for i, ct in enumerate(keep):
        A(f"""s_waitcnt lgkmcnt({len(keep)-1})
        v_pk_add_f32 {v(acc+4*ct,2)}, {v(acc+4*ct,2)}, {v(rxs[i],2)}
        v_pk_add_f32 {v(acc+4*ct+2,2)}, {v(acc+4*ct+2,2)}, {v(rxs[i]+2,2)}
        v_cvt_pk_bf16_f32 v{pk2+2*i}, v{acc+4*ct}, v{acc+4*ct+1}
        v_cvt_pk_bf16_f32 v{pk2+2*i+1}, v{acc+4*ct+2}, v{acc+4*ct+3}
        ds_write_b64 v{wa[i]}, {v(pk2+2*i,2)}""")
    os_ = vOs
    OSC = ["", " sc1", " nt", " sc0 sc1", " sc1 nt"][OPT["osc0"] if kap == 0 else OPT["osc"]]
    A(f"""ds_read_b128 {v(rb,4)}, v{vTr}
    ds_read_b128 {v(rb+4,4)}, v{vTr} offset:1024
    s_waitcnt lgkmcnt(1)
    buffer_store_dwordx4 {v(rb,4)}, v{os_}, s[{sOUT}:{sOUT+3}], s{sOut} offen{OSC}
    s_waitcnt lgkmcnt(0)
    buffer_store_dwordx4 {v(rb+4,4)}, v{os_}, s[{sOUT}:{sOUT+3}], s{sT1} offen{OSC}""")


assert Vf[1] == Kf[0] + 24 and O[1] == O[0] + 16
A(f"""s_cmp_eq_u32 s{sKap}, 0
s_cbranch_scc1 L_x0""")
p3(1)
A("s_branch L_noep" if OPT["ts"] or OPT.get("padto") else "s_endpgm")
xspin(1)
A(f"""L_mspin:
ds_read_b32 v{t2}, v{vPl}
s_sub_u32 s{sSpin}, s{sSpin}, 1
s_waitcnt lgkmcnt(0)
s_cbranch_scc1 L_mgo
v_readfirstlane_b32 s{sT0}, v{t2}
s_cmp_eq_u32 s{sT0}, 0
s_cbranch_scc1 L_mspin
s_branch L_mwait""")
A.label("L_x0")
p3(0)
A("s_branch L_noep" if OPT["ts"] or OPT.get("padto") else "s_endpgm")
xspin(0)
if OPT.get("wb"):
    A(f"""s_cmp_lg_u32 s{sw}, 0
    s_cbranch_scc1 L_noep
    s_waitcnt vmcnt(0)
    buffer_wbl2 sc1""")
A.label("L_noep")
if OPT.get("padto"):
    A.label("L_pad")
    A(f"""s_sleep 4
    s_memrealtime s[{sRet}:{sRet+1}]
    s_waitcnt lgkmcnt(0)
    s_sub_u32 s{sT0}, s{sRet}, s{sTS}
    s_cmp_lt_u32 s{sT0}, {OPT["padto"]}
    s_cbranch_scc1 L_pad""")
tsd(5)
tsa(10)
if OPT["ts"] == 6:
    A("s_waitcnt lgkmcnt(0)")
    for i, r in enumerate(ASR):
        A(f"v_writelane_b32 v{vTS}, s{r}, {i+1}")
    A(f"""s_sub_u32 s{sRem}, 0x7fffffff, s{sRem}
    v_writelane_b32 v{vTS}, s{sRem}, 13
    v_writelane_b32 v{vTS}, s19, 14""")
if OPT["ts"]:
    A("s_waitcnt vmcnt(0)")
    ts(10)
    tsd(6)
    ts(12, 6)
    A(f"""s_lshl_b32 s{sT0}, s2, 3
    s_add_u32 s{sT0}, s{sT0}, s{sw}
    s_lshl_b32 s{sT0}, s{sT0}, {8 if OPT["ts"] == 5 else 6}
    s_add_u32 s{sT0}, s{sT0}, {TS_OFF}
    s_getreg_b32 s{sT1}, hwreg(HW_REG_XCC_ID)
    {"s_nop 0" if OPT["ts"] == 5 else f"v_writelane_b32 v{vTS}, s{sT1}, 15"}
    v_lshrrev_b32 v{t0}, 2, v{vL16}
    s_mov_b64 exec, {-1 if OPT["ts"] == 5 else "0xffff"}
    buffer_store_dword v{vTS}, v{t0}, s[{sWS}:{sWS+3}], s{sT0} offen""")
    if OPT.get("dbg"):
        A(f"""v_readlane_b32 s{sT0}, v{vTS}, 0
        s_not_b32 s{sT0}, s{sT0}
        v_writelane_b32 v{vTS}, s{sT0}, 15
        s_mov_b32 s{sX}, s22
        s_mov_b32 s{sX+1}, s23
        s_mov_b32 s{sX+2}, 256
        buffer_atomic_umax v{vTS}, v{t0}, s[{sX}:{sX+3}], 0 offen""")
A.label("L_end")
A("s_endpgm")

for x in OOL:
    A(x)
A.label("L_epoch")
A(f"""s_add_u32 s{sE}, s{sE}, 1
s_lshl_b32 s{sT0}, s{sb}, 8
s_add_u32 s{sT0}, s{sT0}, {EPOCH_OFF}
v_mov_b32 v{t1}, s{sE}
s_mov_b64 exec, 1
buffer_store_dword v{t1}, v{vL16}, s[{sWS}:{sWS+3}], s{sT0} offen sc1
s_mov_b64 exec, -1
s_branch L_epd""")

for name, load, reg, mask in (
        ("L_pollc", f"buffer_load_dword v{vQm}, v{vPc}, s[{sWS}:{sWS+3}], s{sPc} offen sc1", vQm, "0xffff"),
        ("L_polll", poll_text(0xffff), vFl, "0xffff"),
        ("L_pollh", poll_text(0x7fff0000).replace('0x7fff0000', '0xffff0000'), vFl, "0xffff0000")):
    A(f"""{name}:
    s_mov_b32 s{sSpin}, 0x40000
    {name}1:
    {load}
    s_sub_u32 s{sSpin}, s{sSpin}, 1
    s_cbranch_scc1 {name}_done
    s_waitcnt vmcnt(0)
    v_cmp_ne_u32 vcc, s{stag}, v{reg}
    s_and_b32 s{sD1}, vcc_lo, {mask}
    s_cbranch_scc1 {name}1
    s_branch {name}_done""")

A.label("L_slow")
Sx, vMn, vAl, vM = S[2], t2, t3, t4
A(f"""s_mov_b32 s{sChk}, -1
v_lshlrev_b32 v{vBk}, 3, v{vLane}
v_mov_b32 v{vM}, 0xff7fffff
s_mov_b32 s{sT0}, s{sKV}
s_mov_b32 s{sI}, 0""")
for r in range(16):
    A(f"v_mov_b32 v{Ob+r}, 0")
    A(f"v_mov_b32 v{R+r}, 0")
A.label("L_slow_t")
for i in range(4):
    A(f"buffer_load_dwordx2 {v(Kf[0]+2*i,2)}, v{vBk}, s[{sWS}:{sWS+3}], s{sT0} offen offset:{512*i} sc1")
A(f"""buffer_load_dwordx4 {v(Vf[0],4)}, v{vL16}, s[{sWS}:{sWS+3}], s{sT0} offen offset:2048 sc1
buffer_load_dwordx4 {v(Vf[0]+4,4)}, v{vL16}, s[{sWS}:{sWS+3}], s{sT0} offen offset:3072 sc1
s_add_u32 s{sT0}, s{sT0}, 4096
s_waitcnt vmcnt(0)
v_mfma_f32_32x32x16_bf16 {v(Sx,16)}, {v(Kf[0],4)}, {v(Q[1],4)}, 0
v_mfma_f32_32x32x16_bf16 {v(Sx,16)}, {v(Kf[0]+4,4)}, {v(Q[1]+4,4)}, {v(Sx,16)}
v_max3_f32 v{t0}, v{Sx}, v{Sx+1}, v{vM}""")
for r in range(2, 16, 2):
    A(f"v_max3_f32 v{t0}, v{Sx+r}, v{Sx+r+1}, v{t0}")
A(f"""v_mov_b32 v{t1}, v{t0}
v_permlane32_swap_b32 v{t0}, v{t1}
v_max_f32 v{vMn}, v{t0}, v{t1}
v_sub_f32 v{vAl}, v{vM}, v{vMn}
v_exp_f32 v{vAl}, v{vAl}
v_mov_b32 v{vM}, v{vMn}""")
for r in range(16):
    A(f"v_sub_f32 v{Sx+r}, v{Sx+r}, v{vMn}")
for r in range(16):
    A(f"v_exp_f32 v{Sx+r}, v{Sx+r}")
for r in range(16):
    A(f"v_mul_f32 v{Ob+r}, v{vAl}, v{Ob+r}")
A(f"""v_smfmac_f32_32x32x32_bf16 {v(Ob,16)}, {v(Vf[0],4)}, {v(Sx,8)}, v{vIdx}
v_smfmac_f32_32x32x32_bf16 {v(Ob,16)}, {v(Vf[0]+4,4)}, {v(Sx+8,8)}, v{vIdx}
s_add_u32 s{sI}, s{sI}, 1
s_cmp_lt_u32 s{sI}, 64
s_cbranch_scc1 L_slow_t
s_nop 11
s_branch L_norm""")

n = A.fix_hazards(verbose=bool(OPT.get("v", 0)))
NV = -(-V.hi // 8) * 8
hdr = open("cdna_kernels/" + NAME + ".s.ref").read().split("; Override launch")[0]
out = hdr + f"""; One fused launch: QKV projection -> softmax attention -> output projection.
; Workgroup = (branch b, head h, 256-token block j), 8 waves; all 256 workgroups are co-resident (one per CU).
;  P1  every workgroup projects Q of its head and one 64-column line of K or V for its tokens and publishes
;      K/V as MFMA fragments in d_ws (write-through stores, then a flag that carries this launch's tag).
;  P2  attention, 64 queries x half of the keys per wave: S^T = K Q^T (+ a constant), P = exp2(S^T), O^T += V^T P
;      with the 2:4 sparse MFMA, whose index picks the bf16 high halves of the fp32 P registers; a ones row in
;      V^T gives the row sums.  Softmax guard: the constant stands in for the row max; it is exact as long as
;      every row sum stays within 2^+-60 of it, which is checked at run time, and otherwise the tile is redone
;      at L_slow by an online softmax with the true running max.
;  P3  O tiles are exchanged through d_ws (pre-filled with a pattern the data cannot take) and multiplied by Wo.
; The tag is derived from a word in d_ws that the launch advances, so stale flags never match.
; Every wait on another workgroup is bounded.  Written by a generator script (gen.py).
; @launch grid=(256,1,1) block=(512,1,1) lds={LDS_BYTES}
.amdgcn_target "amdgcn-amd-amdhsa--gfx950"
.text
.globl {NAME}_kernel
.p2align 8
.type {NAME}_kernel,@function
""" + A.text().replace("CODE_SPAN", "L_slow-L_nopf") + f""".section .rodata,"a"
.p2align 6
.amdhsa_kernel {NAME}_kernel
  .amdhsa_next_free_vgpr {NV}
  .amdhsa_next_free_sgpr {NSGPR}
  .amdhsa_accum_offset {NV}
  .amdhsa_group_segment_fixed_size 0
  .amdhsa_kernarg_size 72
  .amdhsa_user_sgpr_count 2
  .amdhsa_user_sgpr_kernarg_segment_ptr 1
  .amdhsa_system_sgpr_workgroup_id_x 1
.end_amdhsa_kernel
"""
open(sys.argv[1], "w").write(out)
print(f"wrote {sys.argv[1]}: {len(A.lines)} lines, {n} nops inserted, {NV} vgprs", file=sys.stderr)
```
